```python
import torch

def _softmax(x, axis=-1):
    return torch.softmax(x, dim=axis)
def _gelu(x):
    return torch.nn.functional.gelu(x, approximate="tanh")
def _silu(x):
    return torch.nn.functional.silu(x)
def _sigmoid(x):
    return torch.sigmoid(x)
def _layernorm(x, axis=-1, eps=1e-5):
    m = x.mean(dim=axis, keepdim=True)
    v = x.var(dim=axis, keepdim=True, unbiased=False)
    return (x - m) / torch.sqrt(v + eps)
def _scatter_add(tgt, idx, src, axis=0):
    return tgt.clone().index_add_(axis, idx, src)
def _segment_sum(src, seg, n):
    out = torch.zeros((n,) + src.shape[1:], dtype=src.dtype)
    return out.index_add_(0, seg, src)
def _pad(x, pw):
    flat = tuple(v for pair in reversed(pw) for v in pair)
    return torch.nn.functional.pad(x, flat)

kernel_name = 'interleave_layers__spectral_fnet__dense_activation_relu__prompt'

def setup_inputs():

    _w = (lambda a: (lambda t: t.to(torch.bfloat16) if t.is_floating_point() else t)(torch.as_tensor(a)))
    def _A_setup():
        B, S, D = 1, 2048, 448
        ns = torch.arange(S)[:, None] * torch.arange(S)[None, :]
        nd = torch.arange(D)[:, None] * torch.arange(D)[None, :]
        Ws_re = torch.cos(-2.0 * torch.pi * ns / S).to(float)
        Ws_im = torch.sin(-2.0 * torch.pi * ns / S).to(float)
        Wd_re = torch.cos(-2.0 * torch.pi * nd / D).to(float)
        Wd_im = torch.sin(-2.0 * torch.pi * nd / D).to(float)
        return {
            "x": _w((lambda *s: torch.randn(*s, dtype=torch.bfloat16) * 0.05)(B, S, D)),
            "dft_seq_re": _w(Ws_re),
            "dft_seq_im": _w(Ws_im),
            "dft_hid_re": _w(Wd_re),
            "dft_hid_im": _w(Wd_im),
        }
    _A_in = _A_setup()

    def _B_setup():
        B, S, D, Dff = 1, 2048, 448, 1792
        return {
            "x": _w((lambda *s: torch.randn(*s, dtype=torch.bfloat16) * 0.05)(B, S, D)),
            "w1": _w((lambda *s: torch.randn(*s, dtype=torch.bfloat16) * 1.6)(D, Dff)),
            "w2": _w((lambda *s: torch.randn(*s, dtype=torch.bfloat16) * 1.6)(Dff, D)),
        }
    _B_in = _B_setup()

    return {
        "A_x": _A_in["x"],
        "A_dft_seq_re": _A_in["dft_seq_re"],
        "A_dft_seq_im": _A_in["dft_seq_im"],
        "A_dft_hid_re": _A_in["dft_hid_re"],
        "A_dft_hid_im": _A_in["dft_hid_im"],
        "B_x": _B_in["x"],
        "B_w1": _B_in["w1"],
        "B_w2": _B_in["w2"],
    }

def reference(A_x, A_dft_seq_re, A_dft_seq_im, A_dft_hid_re, A_dft_hid_im, B_x, B_w1, B_w2):
    def _A_ref(x, dft_seq_re, dft_seq_im, dft_hid_re, dft_hid_im):
        a = torch.einsum("bsd,ed->bse", x, dft_hid_re)
        b = torch.einsum("bsd,ed->bse", x, dft_hid_im)
        y = torch.einsum("ts,bse->bte", dft_seq_re, a) - torch.einsum("ts,bse->bte", dft_seq_im, b)
        return y

    def _B_ref(x, w1, w2):
        h = torch.einsum("bsd,df->bsf", x, w1)
        zero = torch.zeros_like(h)
        h = torch.maximum(h, zero)
        return torch.einsum("bsf,fd->bsd", h, w2)

    x = A_x
    x = x + _A_ref(_layernorm(x, axis=-1), A_dft_seq_re, A_dft_seq_im, A_dft_hid_re, A_dft_hid_im)
    x = x + _B_ref(_layernorm(x, axis=-1), B_w1, B_w2)
    x = x + _A_ref(_layernorm(x, axis=-1), A_dft_seq_re, A_dft_seq_im, A_dft_hid_re, A_dft_hid_im)
    x = x + _B_ref(_layernorm(x, axis=-1), B_w1, B_w2)
    return x
```

```python
KN = "interleave_layers__spectral_fnet__dense_activation_relu__prompt_kernel"
class Asm:
    def __init__(self):
        self.out = []; self.kds = []; self.launches = []; self.nlab = 0
    def e(self, s):
        for line in s.split('\n'):
            line = line.strip()
            if line: self.out.append(('' if line.endswith(':') else '    ') + line)
    __call__ = e
    def lab(self, base='L'):
        self.nlab += 1
        return f'{base}_{self.nlab}'
    def begin(self, name):
        self.out.append(f'.globl {name}\n.p2align 8\n.type {name},@function\n{name}:')
    def end(self, name, vgpr, accum=None, sgpr=102):
        accum = accum if accum is not None else min(256, (vgpr + 3) // 4 * 4)
        self.kds.append(f'''.amdhsa_kernel {name}
  .amdhsa_next_free_vgpr {vgpr}
  .amdhsa_next_free_sgpr {sgpr}
  .amdhsa_accum_offset {accum}
  .amdhsa_group_segment_fixed_size 0
  .amdhsa_kernarg_size 88
  .amdhsa_user_sgpr_count 2
  .amdhsa_user_sgpr_kernarg_segment_ptr 1
  .amdhsa_system_sgpr_workgroup_id_x 1
  .amdhsa_float_denorm_mode_32 3
.end_amdhsa_kernel''')
    def text(self, single=None):
        if single:
            g, b, lds = single
            hdr = [f'; @launch grid=({g},1,1) block=({b},1,1) lds={lds}']
        else:
            hdr = [f'; @launch kernel={n} grid=({g},1,1) block=({b},1,1) lds={l}' for n, g, b, l in self.launches]
        s = '\n'.join(hdr) + '\n.amdgcn_target "amdgcn-amd-amdhsa--gfx950"\n.text\n' + '\n'.join(self.out)
        s += '\n.section .rodata,"a"\n' + '\n'.join('.p2align 6\n' + k for k in self.kds) + '\n'
        return s
```

```python
import sys, subprocess
from asmlib import *
kind = sys.argv[1]
AMP = 40
a = Asm(); e = a.e
a.begin('probe_kernel')
e('s_memrealtime s[40:41]')
e('s_cmp_ge_u32 s2, 256'); e('s_cbranch_scc1 pdone')
e('s_load_dwordx4 s[4:7], s[0:1], 48')
e('s_load_dwordx2 s[20:21], s[0:1], 0')
e('v_lshrrev_b32 v1, 6, v0'); e('s_nop 0'); e('v_readfirstlane_b32 s24, v1')
e('v_and_b32 v2, 63, v0'); e('v_lshlrev_b32 v3, 4, v2')
e('s_waitcnt lgkmcnt(0)')
e('s_mov_b32 s8, s4'); e('s_mov_b32 s9, s5'); e('s_mov_b32 s10, 1605632'); e('s_mov_b32 s11, 0x20000')
e('s_mov_b32 s12, s6'); e('s_mov_b32 s13, s7'); e('s_mov_b32 s14, 1605632'); e('s_mov_b32 s15, 0x20000')
e('s_mov_b32 s22, 1835008'); e('s_mov_b32 s23, 0x20000')
if kind != 'ka':
    e('s_memrealtime s[40:41]'); e('s_waitcnt lgkmcnt(0)')
if kind == 'w':
    e('s_bfe_u32 s16, s2, 0x30003'); e('s_mul_i32 s16, s16, 200704'); e('s_mul_i32 s17, s24, 50176'); e('s_add_u32 s16, s16, s17')
    for srd in ('s[8:11]', 's[12:15]'):
        e('s_mov_b32 s17, s16')
        for i in range(49):
            e(f'buffer_load_dwordx4 v[{8+4*i}:{11+4*i}], v3, {srd}, s17 offen'); e('s_add_u32 s17, s17, 1024')
            if srd == 's[12:15]': e('s_waitcnt vmcnt(48)')
    e('s_waitcnt vmcnt(0)'); e('s_barrier')
elif kind == 'x':
    e('s_mul_i32 s16, s2, 7168'); e('s_mul_i32 s17, s24, 1024'); e('s_add_u32 s16, s16, s17')
    e('buffer_load_dwordx4 v[8:11], v3, s[20:23], s16 offen')
    e('s_waitcnt vmcnt(0)'); e('s_barrier')
elif kind.startswith('i'):
    n = int(kind[1:])
    for i in range(n): e(f'v_add3_u32 v{8 + i % 32}, v1, v2, v3')
elif kind.startswith('j'):
    n = int(kind[1:])
    e(f's_mov_b32 s30, {n // 64}')
    e('jl:')
    for i in range(64): e(f'v_add3_u32 v{8 + i % 32}, v1, v2, v3')
    e('s_sub_u32 s30, s30, 1'); e('s_cmp_lg_u32 s30, 0'); e('s_cbranch_scc1 jl')
e('s_memrealtime s[42:43]'); e('s_waitcnt lgkmcnt(0)')
e('s_cmp_lg_u32 s2, 0'); e('s_cbranch_scc1 pdone')
e('s_sub_u32 s44, s42, s40'); e('s_min_u32 s44, s44, 5000'); e(f's_mul_i32 s44, s44, {AMP}'); e('s_add_u32 s44, s44, s42')
e('pw:'); e('s_memrealtime s[46:47]'); e('s_waitcnt lgkmcnt(0)'); e('s_sub_u32 s45, s46, s44'); e('s_cmp_lt_i32 s45, 0'); e('s_cbranch_scc1 pw')
e('pdone:'); e('s_endpgm')
a.end('probe_kernel', 256)
base = subprocess.run(['python3', 'gen_naive.py', '0', '0'], capture_output=True, text=True, check=True).stdout
hdr = '; @launch kernel=probe_kernel grid=(256,1,1) block=(256,1,1) lds=131072\n'
i = base.index('.section .rodata')
print(hdr + base[:i] + '\n'.join(a.out) + '\n' + base[i:] + '.p2align 6\n' + a.kds[0])
```

```python
import re
KN = "interleave_layers__spectral_fnet__dense_activation_relu__prompt_kernel"

def vr(a, n=1): return f'v{a}' if n == 1 else f'v[{a}:{a+n-1}]'
def ar(a, n=1): return f'a{a}' if n == 1 else f'a[{a}:{a+n-1}]'
def sr(a, n=1): return f's{a}' if n == 1 else f's[{a}:{a+n-1}]'

class K:
    def __init__(self):
        self.out = []
        self.tail = []
        self.vm = []; self.lg = []
        self.nlab = 0
    def e(self, s):
        for line in s.split('\n'):
            line = line.strip()
            if line: self.out.append(line)
    __call__ = e
    def lab(self, base='L'):
        self.nlab += 1
        return f'{base}_{self.nlab}'
    def vmem(self, s, tag=None):
        self.e(s); self.vm.append(tag)
    def ds(self, s, tag=None):
        self.e(s); self.lg.append(tag)
    def _n_after(self, q, tag):
        idx = [i for i, t in enumerate(q) if t == tag]
        return None if not idx else len(q) - 1 - idx[-1]
    def wait(self, vm=None, lg=None):
        parts = []
        if vm is not None:
            n = 0 if vm == 'all' else self._n_after(self.vm, vm)
            if n is not None and (self.vm or vm == 'all'):
                n = min(n, 63); parts.append(f'vmcnt({n})'); self.vm = self.vm[len(self.vm) - n:] if n else []
        if lg is not None:
            n = 0 if lg == 'all' else self._n_after(self.lg, lg)
            if n is not None and (self.lg or lg == 'all'):
                n = min(n, 15); parts.append(f'lgkmcnt({n})'); self.lg = self.lg[len(self.lg) - n:] if n else []
        if parts: self.e('s_waitcnt ' + ' '.join(parts))
    def begin_tail(self):
        self._save = (self.out, list(self.vm), list(self.lg)); self.out = self.tail
    def end_tail(self):
        self.out, self.vm, self.lg = self._save

_REG = re.compile(r'^(-|\|)?(abs\()?([vas])(\d+|\[(\d+):(\d+)\])\)?\|?$')
def regs(op):
    op = op.strip()
    if op in ('vcc', 'vcc_lo', 'vcc_hi'): return {('s', 'vcc')}
    if op in ('exec', 'exec_lo', 'exec_hi'): return {('s', 'exec')}
    if op == 'm0': return {('s', 'm0')}
    m = _REG.match(op)
    if not m: return set()
    k = m.group(3)
    if m.group(5) is not None: return {(k, i) for i in range(int(m.group(5)), int(m.group(6)) + 1)}
    return {(k, int(m.group(4)))}
TRANS = ('v_exp_', 'v_log_', 'v_rcp_', 'v_rsq_', 'v_sqrt_', 'v_sin_', 'v_cos_')
class I:
    def __init__(s, text):
        s.text = text
        t = text.split(';')[0].strip()
        s.label = t.endswith(':') or t.startswith('.')
        s.op = t.split()[0] if t else ''
        rest = t[len(s.op):].strip()
        ops = [o.strip() for o in re.split(r',\s*(?![^\[]*\])', rest)] if rest else []
        if ops:
            last = ops[-1].split()
            s.mods = last[1:]; ops[-1] = last[0] if last else ''
        else: s.mods = []
        s.ops = ops
        R = [regs(o) for o in ops]
        U = lambda l: set().union(*l) if l else set()
        s.w = set(); s.r = set(); s.kind = 'other'; s.passes = 0; s.A = s.C = set(); s.data = set()
        op = s.op
        if s.label: s.kind = 'label'
        elif op.startswith('v_mfma'):
            s.kind = 'mfma'; s.w = R[0]; s.A = R[1] | R[2]; s.C = R[3]; s.r = s.A | s.C
            s.passes = 8 if '32x32' in op else 4
        elif op.startswith('v_'):
            s.kind = 'valu'; s.w = R[0]; s.r = U(R[1:])
            if op.startswith(('v_fmac', 'v_dot2c', 'v_writelane', 'v_pk_fmac')) or 'dpp' in op or any(m.startswith(('row_', 'quad_perm')) for m in s.mods): s.r |= R[0]
            if op.startswith(('v_swap', 'v_permlane')): s.w = R[0] | R[1]; s.r = R[0] | R[1]
            if op.startswith(('v_add_co', 'v_sub_co', 'v_addc_co', 'v_subb_co')): s.w = R[0] | R[1]; s.r = U(R[2:])
            if op.startswith('v_cmpx'): s.w |= {('s', 'exec')}
        elif op.startswith('ds_'):
            s.kind = 'ds'
            if op.startswith(('ds_read', 'ds_bpermute', 'ds_permute', 'ds_swizzle')): s.w = R[0]; s.r = U(R[1:])
            else: s.r = U(R)
        elif op.startswith(('buffer_', 'global_')):
            s.kind = 'vmem'
            if 'lds' in s.mods: s.r = U(R) | {('s', 'm0')}
            elif 'load' in op: s.w = R[0]; s.r = U(R[1:])
            else:
                s.r = U(R)
                if op.endswith(('x3', 'x4')): s.data = R[0] if op.startswith('buffer_') else R[1]
        elif op.startswith('s_'):
            s.kind = 'salu'
            if op.startswith(('s_cmp', 's_bitcmp', 's_cbranch', 's_branch', 's_waitcnt', 's_nop', 's_barrier', 's_endpgm', 's_sleep', 's_setprio')): s.r = U(R)
            else:
                s.w = R[0] if R else set(); s.r = U(R[1:])
                if 'saveexec' in op: s.w |= {('s', 'exec')}
        s.states = int(ops[0]) + 1 if op == 's_nop' else (0 if s.label else 1)
        s.dpp = 'dpp' in op or any(m.startswith(('row_', 'quad_perm', 'wave_')) for m in s.mods)
def need(p, c):
    n = 0
    vec = lambda S: {x for x in S if x[0] in 'va'}
    sc = lambda S: {x for x in S if x[0] == 's'}
    if p.kind == 'valu':
        wv, ws = vec(p.w), sc(p.w)
        if c.kind == 'mfma' and wv & c.r: n = max(n, 3 if p.op.startswith('v_dot') else 2)
        if c.kind == 'mfma' and ('s', 'exec') in ws: n = max(n, 4)
        if c.kind == 'valu':
            if c.op.startswith(('v_readfirstlane', 'v_readlane')) and wv & c.r: n = max(n, 1)
            if c.op.startswith('v_permlane') and wv & c.r: n = max(n, 2)
            if c.dpp and wv & c.r: n = max(n, 2)
            if p.op.startswith(TRANS) and wv & c.r and not c.op.startswith(TRANS): n = max(n, 1)
            if ws & c.r: n = max(n, 4 if c.op.startswith(('v_readlane', 'v_writelane')) else 2)
            if c.op.startswith('v_cndmask') and ('s', 'vcc') in ws: n = max(n, 2)
        if p.op.startswith('v_dot') and c.kind in ('valu', 'ds', 'vmem') and wv & (c.r | c.w):
            same_c = c.op == p.op and not (wv & (regs(c.ops[1]) | regs(c.ops[2])))
            if not same_c: n = max(n, 3)
        if c.kind == 'vmem' and ws & c.r: n = max(n, 5)
        if c.kind == 'salu' and ws & c.r and not c.op.startswith('s_cbranch'): n = max(n, 1)
    if p.kind == 'mfma':
        big = {4: 8, 8: 12}[p.passes]
        if c.kind == 'mfma':
            if p.w & c.A: n = max(n, big)
            if p.w & c.C and not (p.w == c.C and p.passes == c.passes): n = max(n, big - 2)
            if p.w & c.w and not (p.w == c.w and p.passes == c.passes): n = max(n, big - 2)
        elif c.kind in ('valu', 'ds', 'vmem'):
            if p.w & (c.r | c.w): n = max(n, big)
            if c.kind == 'valu' and p.C & c.w: n = max(n, p.passes - 1)
    if p.kind == 'salu':
        if ('s', 'm0') in p.w and ('s', 'm0') in c.r and c.kind in ('vmem', 'valu'): n = max(n, 1)
    if p.kind == 'vmem' and p.data and c.kind in ('valu', 'ds', 'vmem', 'mfma') and p.data & c.w: n = max(n, 2)
    return n
def fix_hazards(lines, verbose=False):
    out = []; added = 0
    for text in lines:
        c = I(text)
        if c.kind != 'label':
            dist = 0; lack = 0; why = None
            for p in reversed(out):
                if dist >= 14: break
                if p.op in ('s_branch', 's_endpgm'): break
                k = need(p, c) - dist
                if k > lack: lack, why = k, p
                dist += p.states
            if lack > 0:
                out.append(I(f's_nop {lack-1}')); added += lack
                if verbose: print(f'; nop {lack}: [{why.text}] -> [{c.text}]')
        out.append(c)
    return [i.text for i in out], added

def finish(k, grid, block, lds, vgpr=512, accum=256, sgpr=102, header='', verbose=False):
    main, n1 = fix_hazards(k.out, verbose)
    tail, n2 = fix_hazards(k.tail, False)
    fmt = lambda l: l if l.endswith(':') or l.startswith('.') else '    ' + l
    s = header + f'; @launch grid=({grid},1,1) block=({block},1,1) lds={lds}\n'
    s += f'.amdgcn_target "amdgcn-amd-amdhsa--gfx950"\n.text\n.globl {KN}\n.p2align 8\n.type {KN},@function\n{KN}:\n'
    s += '\n'.join(fmt(l) for l in main + tail) + '\n'
    s += f'''.section .rodata,"a"
.p2align 6
.amdhsa_kernel {KN}
  .amdhsa_next_free_vgpr {vgpr}
  .amdhsa_next_free_sgpr {sgpr}
  .amdhsa_accum_offset {accum}
  .amdhsa_group_segment_fixed_size 0
  .amdhsa_kernarg_size 88
  .amdhsa_user_sgpr_count 2
  .amdhsa_user_sgpr_kernarg_segment_ptr 1
  .amdhsa_system_sgpr_workgroup_id_x 1
  .amdhsa_float_denorm_mode_32 3
.end_amdhsa_kernel
'''
    return s, n1
```

```python
import sys, struct
from kasm import *

OPT = dict(ts=0, stop='', verbose=0, hq_slot=88, t1_grp=4, grid=256)
for a in sys.argv[1:]:
    key, val = a.split('=')
    OPT[key] = val if key == 'stop' else int(val)
TS, STOP = OPT['ts'], OPT['stop']

S, D, F = 2048, 448, 1792
XB = S * D * 2
WS_U1, WS_U2, WS_X2, WS_H = 0, XB, 2 * XB, 3 * XB
WS_END = WS_H + S * F * 2
WS_TS = 0x1000000
WS_DBG = 0x1100000
L_X = 0; L_RED = 0; L_C = 0; L_H = 35840
L_M = 64512; L_ST = L_M + 8192; L_WA = L_ST + 1024; WA_SZ = 22528
LDS_SZ = L_WA + 4 * WA_SZ
assert LDS_SZ <= 163840
NSLOT = 11
sX0, sW1, sW2, sOUT, sWS, sDBG = 8, 12, 16, 20, 24, 28
sW, sG, sP, sRB, sRETRY, sWA, sSO, sLO, sHI = 32, 33, 34, 35, 36, 37, 38, 39, 40
sT = 42
sMK = 52
sHS = 60
sTS = 70
vL, vL16, vCS, vSa, vSb, vT1, vT2, vA = 0, 1, 2, 6, 7, 8, 10, 12
B = [16 + 16 * i for i in range(8)]; vR = 144
def w1f(kap, u): return ar(8 * kap + 4 * u, 4)
def w2reg(kk, v):
    if kk < 4: return ('a', 224 + 8 * kk + 4 * v)
    if kk < 17: return ('v', 152 + 8 * (kk - 4) + 4 * v)
    return None
def rn(t, n): return ar(t[1], n) if t[0] == 'a' else vr(t[1], n)
fl = lambda x: '0x%08x' % struct.unpack('<I', struct.pack('<f', x))[0]

k = K(); e = k.e
nts = [0]; tsn = []
def stamp(name):
    if not TS: return
    i = nts[0]; nts[0] += 1; tsn.append(name)
    k.wait(lg='all')
    e(f's_memrealtime s[50:51]'); e('s_waitcnt lgkmcnt(0)'); e(f's_mov_b32 s{sTS+i}, s50')
def finish_stamps():
    if not TS: return
    e('v_mov_b32 v16, 0')
    for i in range(nts[0]): e(f'v_writelane_b32 v16, s{sTS+i}, {i}')
    e(f'v_writelane_b32 v16, s{sRETRY}, 63')
    e(f's_lshl_b32 s{sT}, s2, 2'); e(f's_add_u32 s{sT}, s{sT}, s{sW}'); e(f's_lshl_b32 s{sT}, s{sT}, 8'); e(f's_add_u32 s{sT}, s{sT}, {WS_TS}')
    e(f'v_lshlrev_b32 v17, 2, v{vL}')
    e(f'buffer_store_dword v16, v17, {sr(sWS,4)}, s{sT} offen')
def stop(name, dump_lds=0):
    if STOP != name: return False
    k.wait(vm='all', lg='all'); e('s_barrier')
    if dump_lds:
        e(f's_lshl_b32 s{sT}, s{sW}, 10'); e(f'v_add_u32 v20, s{sT}, v{vL16}')
        e(f's_lshl_b32 s{sT}, s2, 16'); e(f's_add_u32 s{sT}, s{sT}, {WS_DBG}')
        for i in range(dump_lds // 4096):
            e(f'ds_read_b128 v[16:19], v20'); e('s_waitcnt lgkmcnt(0)')
            e(f'buffer_store_dwordx4 v[16:19], v20, {sr(sWS,4)}, s{sT} offen'); e('s_nop 1'); e('v_add_u32 v20, 4096, v20')
    finish_stamps(); e('s_endpgm')
    return True

def retry_site(check, reload, name, br='s_cbranch_vccnz'):
    slow, ok = k.lab('slow_' + name), k.lab('ok_' + name)
    e(f'{br} {slow}'); e(f'{ok}:')
    k.begin_tail()
    e(f'{slow}:')
    e(f's_cmp_eq_u32 s{sRETRY}, 0'); e(f's_cbranch_scc1 {ok}'); e(f's_sub_u32 s{sRETRY}, s{sRETRY}, 1')
    reload(); k.wait(vm='all', lg='all'); check(); k.wait(vm='all', lg='all')
    e(f'{br} {slow}'); e('s_nop 1'); e(f's_branch {ok}')
    k.end_tail()

def cnt_load(i, reg): k.vmem(f'buffer_load_dword v{reg}, off, {sr(sDBG,4)}, 0 offset:{64*i} sc1', f'cnt{i}')
def cnt_check(i, reg):
    chk = lambda: (e(f'v_readfirstlane_b32 s49, v{reg}'), e('s_nop 1'), e('s_cmp_lg_u32 s49, 32'))
    k.wait(vm=f'cnt{i}'); chk(); retry_site(chk, lambda: cnt_load(i, reg), f'cnt{i}', 's_cbranch_scc1')

class Stream:
    def __init__(s): s.ni = 0; s.nd = 0; s.limit = 4; s.pend = []
    def can_issue(s): return s.ni < 56 and s.ni < s.limit and s.ni - NSLOT < s.nd - len(s.pend)
    def issue_ops(s):
        n = s.ni; s.ni += 1; ops = []
        if n == 28:
            def sw():
                src_off(896)
                e(f's_lshl_b32 s{sSO}, s{sG}, 2'); e(f's_add_u32 s{sSO}, s{sSO}, s{sW}'); e(f's_mul_i32 s{sSO}, s{sSO}, {64*896}')
                e(f's_lshl_b32 s{sT}, s{sG}, 7'); e(f's_add_u32 s{sSO}, s{sSO}, s{sT}')
            ops.append(sw)
        srd = sr(sW1 if n < 28 else sW2, 4)
        def a():
            if n >= NSLOT: k.wait(lg=f'tr{n-NSLOT}')
            e(f's_add_u32 m0, s{sWA}, {(n % NSLOT)*2048}')
            k.vmem(f'buffer_load_dwordx4 v{vSa}, {srd}, s{sSO} offen lds', f'wa{n}')
        def b():
            k.vmem(f'buffer_load_dwordx4 v{vSb}, {srd}, s{sSO} offen offset:1024 lds', f'w{n}')
            if n < 27: e(f's_add_u32 s{sSO}, s{sSO}, {16*3584}')
            elif 28 <= n < 55:
                if (n - 28) % 4 != 3: e(f's_add_u32 s{sSO}, s{sSO}, {16*896}')
                else:
                    e(f's_add_u32 s{sSO}, s{sSO}, {208*896}'); e(f's_cmp_ge_u32 s{sSO}, {F*896}')
                    e(f's_cselect_b32 s{sT+9}, {F*896}, 0'); e(f's_sub_u32 s{sSO}, s{sSO}, s{sT+9}')
        return ops + [a, b]
    def can_drain(s): return s.nd < min(s.ni, 45)
    def drain_ops(s):
        n = s.nd; s.nd += 1; ops = []
        so = (n % NSLOT) * 2048
        def rd(u, h2):
            def f():
                k.wait(vm=f'w{n}')
                if n < 28: dst, ad, off = ar(8*n + 4*u + 2*h2, 2), vT1 + u, so + 512*h2
                else:
                    t = w2reg(n - 28, u); dst, ad, off = rn((t[0], t[1] + 2*h2), 2), vT2 + u, so + 1024*h2
                k.ds(f'ds_read_b64_tr_b16 {dst}, v{ad} offset:{off}', f'tr{n}')
            return f
        ops += [rd(0, 0), rd(0, 1), rd(1, 0), rd(1, 1)]
        return ops
    def cs_ops(s, n):
        def f(u):
            def g():
                k.wait(lg=f'tr{n}')
                acc = vr(224 + 16*u, 16)
                e(f'v_mfma_f32_32x32x16_bf16 {acc}, v[220:223], {w1f(n, u)}, {acc if n else 0}')
            return g
        return [f(0), f(1)]
    def issue(s, cnt):
        for _ in range(cnt):
            if s.can_issue():
                for f in s.issue_ops(): f()
    def pump(s, upto):
        while s.nd < min(upto, 45):
            s.issue(NSLOT)
            n = s.nd
            for f in s.drain_ops(): f()
            if 1 <= n < 28:
                for f in s.cs_ops(n - 1): f()
            if n == 27:
                for f in s.cs_ops(27): f()
                cs_finish()
        s.issue(NSLOT)
ws = Stream()
def src_off(stride):
    e(f'v_lshrrev_b32 v{vSa}, 3, v{vL}'); e(f'v_lshrrev_b32 v{vSb}, 2, v{vL}'); e(f'v_and_b32 v{vSb}, 4, v{vSb}')
    e(f'v_xor_b32 v{vSb}, v{vSb}, v{vL}'); e(f'v_and_b32 v{vSb}, 7, v{vSb}'); e(f'v_mul_u32_u24 v{vSa}, {stride}, v{vSa}')
    e(f'v_lshl_add_u32 v{vSa}, v{vSb}, 4, v{vSa}'); e(f'v_add_u32 v{vSb}, {8*stride-1024}, v{vSa}')
def cs_finish():
    for u in range(2):
        c = 224 + 16*u; t = c + 1; d = vCS + 2*u
        e(f'v_cvt_pk_bf16_f32 v{t}, v{c}, v{c}'); e(f'v_and_b32 v{t+1}, 0xffff0000, v{t}'); e(f'v_sub_f32 v{t+2}, v{c}, v{t+1}')
        e(f'v_cvt_pk_bf16_f32 v{d}, v{t+1}, v{t+2}'); e(f'v_and_b32 v{d+1}, 0xffff, v{t}')

def prologue():
    e('s_cmp_ge_u32 s2, 256'); e('s_cbranch_scc1 L_exit')
    e('s_load_dwordx2 s[8:9], s[0:1], 0'); e('s_load_dwordx4 s[4:7], s[0:1], 48')
    e('s_load_dwordx4 s[44:47], s[0:1], 64'); e('s_load_dwordx2 s[24:25], s[0:1], 80')
    e('v_lshrrev_b32 v1, 6, v0'); e('v_and_b32 v0, 63, v0'); e(f'v_readfirstlane_b32 s{sW}, v1'); e(f'v_lshlrev_b32 v{vL16}, 4, v0')
    for r, n in ((sX0, XB), (sW1, D*F*2), (sW2, D*F*2), (sOUT, XB), (sWS, 0x2000000 if (TS or STOP) else WS_END), (sDBG, 256)):
        e(f's_mov_b32 s{r+2}, {n}'); e(f's_mov_b32 s{r+3}, 0x20000')
    e('s_cmp_lt_u32 s2, 32'); e('s_cbranch_scc1 L_helper')
    if TS: e(f's_memrealtime s[50:51]')
    e(f's_sub_u32 s3, s2, 32'); e(f's_lshr_b32 s{sT}, s3, 3'); e(f's_mul_i32 s{sT+1}, s{sT}, 37'); e(f's_lshr_b32 s{sT+1}, s{sT+1}, 8')
    e(f's_mul_i32 s{sG}, s{sT+1}, 7'); e(f's_sub_u32 s{sG}, s{sT}, s{sG}')
    e(f's_and_b32 s3, s3, 7'); e('s_lshl_b32 s3, s3, 1'); e(f's_lshr_b32 s{sT}, s{sT+1}, 1'); e(f's_add_u32 s3, s3, s{sT}')
    e(f's_sub_u32 s{sT}, 32, s3'); e('s_cmp_eq_u32 s3, 0'); e(f's_cselect_b32 s{sT}, 16, s{sT}')
    e(f's_bitcmp1_b32 s{sT+1}, 0'); e(f's_cselect_b32 s{sP}, s{sT}, s3')
    e(f's_sub_u32 s{sRB}, 64, s{sP}'); e(f's_cmp_eq_u32 s{sP}, 0'); e(f's_cselect_b32 s{sRB}, 32, s{sRB}')
    e(f's_mul_i32 s{sWA}, s{sW}, {WA_SZ}'); e(f's_add_u32 s{sWA}, s{sWA}, {L_WA}')
    e(f's_mov_b32 s{sRETRY}, 20000'); e(f's_mov_b32 s{sLO}, 0x3f80'); e(f's_mov_b32 s{sHI}, 0x3f800000')
def load_ptrs():
    e('s_waitcnt lgkmcnt(0)')
    e(f's_mov_b32 s{sW1}, s4'); e(f's_mov_b32 s{sW1+1}, s5'); e(f's_mov_b32 s{sW2}, s6'); e(f's_mov_b32 s{sW2+1}, s7')
    e(f's_mov_b32 s{sOUT}, s44'); e(f's_mov_b32 s{sOUT+1}, s45'); e(f's_mov_b32 s{sDBG}, s46'); e(f's_mov_b32 s{sDBG+1}, s47')

def helper():
    k.begin_tail()
    e('L_helper:')
    e('s_getpc_b64 s[48:49]'); e('L_pc:'); e(f's_sub_u32 s48, s48, L_pc-{KN}'); e('s_subb_u32 s49, s49, 0')
    e(f's_lshl_b32 s{sT}, s{sW}, 13'); e(f'v_lshl_add_u32 v2, v{vL}, 7, s{sT}')
    e(f'v_min_u32 v3, L_end-{KN}-4, v2'); e('global_load_dword v8, v3, s[48:49]')
    e('v_add_u32 v2, 0x8000, v2'); e(f'v_min_u32 v3, L_end-{KN}-4, v2'); e('global_load_dword v9, v3, s[48:49]')
    for i in range(4, 8): e(f'v_mov_b32 v{i}, -1')
    e(f's_lshl_b32 s{sT}, s{sW}, 10'); e(f'v_add_u32 v2, s{sT}, v{vL16}'); e('v_mov_b32 v10, 1')
    load_ptrs()
    for i, (base, n) in enumerate(((WS_U1, XB), (WS_H, S*F*2), (WS_U2, 2*XB))):
        per = n // 32; l = k.lab('fill')
        e(f's_mul_i32 s{sT}, s2, {per}'); e(f's_add_u32 s{sT}, s{sT}, {base}'); e(f's_mov_b32 s{sT+1}, {per // 4096 // 14}')
        e(f'{l}:')
        for j in range(14):
            e(f'buffer_store_dwordx4 v[4:7], v2, {sr(sWS,4)}, s{sT} offen sc1'); e(f's_add_u32 s{sT}, s{sT}, 4096')
        e(f's_sub_u32 s{sT+1}, s{sT+1}, 1'); e(f's_cmp_lg_u32 s{sT+1}, 0'); e(f's_cbranch_scc1 {l}')
        e('s_waitcnt vmcnt(0)'); e('s_barrier')
        l = k.lab('nosig'); e(f's_cmp_lg_u32 s{sW}, 0'); e(f's_cbranch_scc1 {l}')
        e('s_mov_b64 exec, 1'); e(f'buffer_atomic_add v10, off, {sr(sDBG,4)}, 0 offset:{64*i} sc1'); e('s_mov_b64 exec, -1')
        e(f'{l}:')
    e('L_exit:'); e('s_endpgm')
    k.end_tail()

def gen_H():
    ef, a0, tc, q8 = 72, 73, 74, 75
    P0, P1, PK = 76, 84, 92
    e(f'v_and_b32 v{ef}, 15, v{vL}'); e(f's_and_b32 s{sT}, s{sW}, 1'); e(f's_lshl_b32 s{sT+1}, s{sG}, 5'); e(f's_add_u32 s{sT}, s{sT}, s{sT+1}')
    e(f'v_lshl_add_u32 v{ef}, v{ef}, 1, s{sT}'); e(f'v_mov_b32 v{a0}, 224'); e(f'v_cmp_eq_u32 vcc, 0, v{ef}')
    e(f'v_lshrrev_b32 v{q8}, 4, v{vL}'); e(f'v_lshlrev_b32 v{q8}, 3, v{q8}')
    e(f'v_cndmask_b32 v{ef}, v{ef}, v{a0}, vcc'); e(f'v_cvt_f32_u32 v{q8}, v{q8}'); e(f'v_cvt_f32_u32 v{ef}, v{ef}')
    e(f's_cmp_ge_u32 s{sW}, 2'); e(f's_cselect_b32 s{sT}, {fl(-0.25)}, 0')
    e(f'v_mul_f32 v{ef}, {fl(1.0/448)}, v{ef}'); e(f'v_fma_f32 v{a0}, v{q8}, v{ef}, s{sT}')
    e(f'v_mul_f32 v{tc}, {fl(32.0)}, v{ef}'); e(f'v_cos_f32 v{tc}, v{tc}')
    e(f's_mul_i32 s{sT}, s{sW}, {7*1024}'); e(f's_add_u32 s{sT}, s{sT}, {L_H}'); e(f'v_add_u32 v{q8}, s{sT}, v{vL16}')
    e(f'v_add_f32 v{tc}, v{tc}, v{tc}')
    for kap in range(7):
        cur, prv = (P0, P1) if kap % 2 == 0 else (P1, P0)
        if kap < 2:
            for jj in range(8): e(f'v_fmamk_f32 v{cur+jj}, v{ef}, {fl(32.0*kap+jj)}, v{a0}')
            for jj in range(8): e(f'v_cos_f32 v{cur+jj}, v{cur+jj}')
        else:
            for jj in range(8): e(f'v_fma_f32 v{cur+jj}, v{tc}, v{prv+jj}, -v{cur+jj}')
        pk = PK + 4*(kap % 2)
        for m in range(4): e(f'v_cvt_pk_bf16_f32 v{pk+m}, v{cur+2*m}, v{cur+2*m+1}')
        k.ds(f'ds_write_b128 v{q8}, {vr(pk,4)} offset:{1024*kap}', 'Hw')
def gen_F(dst):
    mf, a0, t = 100, 101, 102
    T = 104
    e(f'v_bfe_u32 v{mf}, v{vL}, 1, 3'); e(f's_lshl_b32 s{sT}, s{sW}, 3'); e(f'v_add_u32 v{mf}, s{sT}, v{mf}')
    e(f'v_and_b32 v{t}, 1, v{vL}'); e(f'v_cvt_f32_u32 v{a0}, v{t}'); e(f'v_cmp_eq_u32 vcc, 0, v{mf}')
    e(f'v_lshlrev_b32 v{t}, 5, v{t}'); e(f'v_mul_f32 v{a0}, {fl(-0.25)}, v{a0}')
    e(f'v_cndmask_b32 v{mf}, v{mf}, v{t}, vcc'); e(f'v_cndmask_b32 v{a0}, v{a0}, 0, vcc')
    e(f'v_cvt_f32_u32 v{mf}, v{mf}'); e(f'v_lshrrev_b32 v{t}, 4, v{vL}'); e(f'v_lshlrev_b32 v{t}, 3, v{t}'); e(f'v_cvt_f32_u32 v{t}, v{t}')
    e(f'v_mul_f32 v{mf}, {fl(1.0/64)}, v{mf}'); e(f'v_fma_f32 v{a0}, v{t}, v{mf}, v{a0}')
    for k1 in range(2):
        for jj in range(8): e(f'v_fmamk_f32 v{T+8*k1+jj}, v{mf}, {fl(k1 + 32.0*(jj >> 2) + 2.0*(jj & 3))}, v{a0}')
    for i in range(16): e(f'v_cos_f32 v{T+i}, v{T+i}')
    for m in range(8): e(f'v_cvt_pk_f16_f32 v{dst+m}, v{T+2*m}, v{T+2*m+1}')
def gen_M(t0):
    j, s2f, ad = t0, t0 + 1, t0 + 2
    T = t0 + 4
    e(f'v_and_b32 v{j}, 31, v{vL}'); e(f'v_lshlrev_b32 v{j}, 6, v{j}')
    e(f'v_lshrrev_b32 v{s2f}, 5, v{vL}'); e(f's_lshl_b32 s{sT}, s{sW}, 3'); e(f'v_lshl_add_u32 v{s2f}, v{s2f}, 2, s{sT}'); e(f'v_cvt_f32_u32 v{s2f}, v{s2f}')
    e(f's_lshl_b32 s{sT}, s{sW}, 10'); e(f's_add_u32 s{sT}, s{sT}, {L_M}'); e(f'v_add_u32 v{ad}, s{sT}, v{vL16}')
    e(f's_cmp_eq_u32 s{sP}, 0'); e(f's_cselect_b32 s{sT}, {fl(0.25)}, 0')
    for pq in range(2):
        tf, a0 = T + 12, T + 13
        e(f'v_add_u32 v{tf}, s{sRB if pq else sP}, v{j}'); e(f'v_cvt_f32_u32 v{tf}, v{tf}'); e(f'v_mul_f32 v{tf}, {fl(1.0/2048)}, v{tf}')
        if pq: e(f'v_fma_f32 v{a0}, v{tf}, v{s2f}, s{sT}')
        else: e(f'v_mul_f32 v{a0}, v{tf}, v{s2f}')
        for jj in range(4): e(f'v_fmamk_f32 v{T+jj}, v{tf}, {fl(float(jj))}, v{a0}')
        for jj in range(4): e(f'v_sin_f32 v{T+4+jj}, v{T+jj}')
        for jj in range(4): e(f'v_cos_f32 v{T+jj}, v{T+jj}')
        for jj in range(4): e(f'v_cvt_pk_f16_f32 v{T+8+jj}, v{T+jj}, v{T+4+jj}')
        k.ds(f'ds_write_b128 v{ad}, {vr(T+8,4)} offset:{4096*pq}', 'Mw')
        k.wait(lg='Mw')

XF = lambda kap: 16 + 4 * kap
BORD = [0, 3, 4, 1, 5, 2, 6]
def phA_issue(half):
    if half == 0:
        va, vb = vA, vA + 1
        e(f'v_lshrrev_b32 v{va}, 3, v{vL}'); e(f'v_lshrrev_b32 v{vb}, 4, v{vL}'); e(f'v_xor_b32 v{vb}, v{vb}, v{vL}'); e(f'v_and_b32 v{vb}, 7, v{vb}')
        e(f'v_mul_u32_u24 v{va}, 57344, v{va}'); e(f'v_lshl_add_u32 v{va}, v{vb}, 4, v{va}')
        e(f'v_xor_b32 v{vb}, 64, v{va}'); e(f'v_add_u32 v{vb}, {8*57344-1024}, v{vb}')
        e(f's_lshr_b32 s{sT}, s{sW}, 1'); e(f's_lshl_b32 s{sT}, s{sT}, 5'); e(f's_add_u32 s{sT}, s{sT}, s{sP}')
        e(f's_and_b32 s{sT+1}, s{sW}, 1'); e(f's_lshl_b32 s{sT+1}, s{sT+1}, 10'); e(f's_add_u32 s{sT}, s{sT}, s{sT+1}'); e(f's_mul_i32 s3, s{sT}, 896')
        load_ptrs()
        if TS: e(f's_mov_b32 s{sTS}, s50'); nts[0] = 1; tsn.append('start')
        for b in BORD:
            e(f's_add_u32 m0, s{sWA}, {8192 + 2048*b}'); e(f's_add_u32 s{sT}, s3, {128*b}')
            k.vmem(f'buffer_load_dwordx4 v{va}, {sr(sX0,4)}, s{sT} offen lds', f'xa{b}')
            k.vmem(f'buffer_load_dwordx4 v{vb}, {sr(sX0,4)}, s{sT} offen offset:1024 lds', f'xb{b}')
    else:
        e(f's_lshr_b32 s{sT}, s{sW}, 1'); e(f's_lshl_b32 s{sT}, s{sT}, 5'); e(f's_add_u32 s{sT}, s{sT}, s{sP}'); e(f's_lshl_b32 s{sT}, s{sT}, 1')
        e(f's_and_b32 s{sT+1}, s{sW}, 1'); e(f's_add_u32 s{sT}, s{sT}, s{sT+1}'); e(f's_mul_i32 s{sT}, s{sT}, 14336'); e(f's_add_u32 s{sHS}, s{sT}, {WS_X2}')
        for i in range(1, 4): e(f's_add_u32 s{sHS+i}, s{sHS}, {4096*i}')
        x2_loads(0)
def x2_loads(first):
    for kp in range(first, 7):
        for kap in (kp, kp + 7):
            k.vmem(f'buffer_load_dwordx4 {vr(XF(kap),4)}, v{vL16}, {sr(sWS,4)}, s{sHS + kap//4} offen offset:{1024*(kap%4)} sc1', f'x{kap}')
def phA(half):
    aT = [72, 76, 84, 88]; aHi = {1: 80, 3: 92}; aS, aG = 96, 100
    HR = [104, 120]; ones = 136; Ff = 140; t = 148
    vh, vx = vA + 2, vA
    gen_H(); gen_F(Ff)
    for i in range(4): e(f'v_mov_b32 v{ones+i}, 0x3f803f80')
    e(f'v_add_u32 v{vh}, {L_H}, v{vL16}')
    if half == 0:
        e(f'v_and_b32 v{t}, 15, v{vL}'); e(f'v_lshrrev_b32 v{t+1}, 1, v{t}'); e(f'v_lshrrev_b32 v{t+2}, 4, v{vL}'); e(f'v_xor_b32 v{t+1}, v{t+1}, v{t+2}')
        e(f'v_lshlrev_b32 v{t}, 7, v{t}'); e(f'v_lshl_add_u32 v{t}, v{t+1}, 4, v{t}'); e(f's_add_u32 s{sT}, s{sWA}, 8192')
        e(f'v_add_u32 v{vx}, s{sT}, v{t}'); e(f'v_xor_b32 v{vx+1}, 64, v{vx}')
    mk = [0x1000010000100001, 0x2000020000200002, 0x4000040000400004, 0x8000080000800008]
    for i in range(4): e(f's_mov_b32 s{sMK+2*i}, {mk[i] & 0xffffffff:#x}'); e(f's_mov_b32 s{sMK+2*i+1}, {mk[i] >> 32:#x}')
    k.wait(lg='all'); e('s_barrier')
    stamp(f'A{half}.consts')
    def hread(kp):
        for tl in range(4): k.ds(f'ds_read_b128 {vr(HR[kp%2]+4*tl,4)}, v{vh} offset:{(7*tl+kp)*1024}', f'H{kp}')
    got = set()
    def xread(kp):
        for kap in (kp, kp + 7):
            b = kap // 2
            if b in got: continue
            got.add(b); k.wait(vm=f'xb{b}')
            for h in range(2): k.ds(f'ds_read_b128 {vr(XF(2*b+h),4)}, v{vx+h} offset:{2048*b}', f'xr{b}')
    hread(0)
    if half == 0: xread(0)
    for kp in range(7):
        lo, hi = vr(XF(kp), 4), vr(XF(kp+7), 4)
        if half == 0:
            k.wait(lg='all')
            if kp < 6: hread(kp + 1); xread(kp + 1)
        else:
            chk = lambda kp=kp: (e(f'v_max_u32 v{t}, v{XF(kp)}, v{XF(kp+7)}'), e(f'v_cmp_eq_u32 vcc, -1, v{t}'))
            k.wait(vm=f'x{kp+7}', lg='all'); chk()
            if kp < 6: hread(kp + 1)
            retry_site(chk, lambda kp=kp: x2_loads(kp), f'x2_{kp}')
        c = lambda a: vr(a, 4) if kp else '0'
        mm = lambda d, a, b, cc: e(f'v_mfma_f32_16x16x32_bf16 {vr(d,4)}, {a}, {b}, {cc}')
        mm(aS, vr(ones, 4), lo, c(aS)); mm(aG, lo, lo, c(aG)); mm(aS, vr(ones, 4), hi, vr(aS, 4)); mm(aG, hi, hi, vr(aG, 4))
        for tl in range(4): mm(aT[tl], vr(HR[kp%2]+4*tl, 4), lo, c(aT[tl]))
        for tl in range(4):
            if tl in aHi: mm(aHi[tl], vr(HR[kp%2]+4*tl, 4), hi, c(aHi[tl]))
            else: mm(aT[tl], vr(HR[kp%2]+4*tl, 4), hi, vr(aT[tl], 4))
    if half == 0:
        ws.limit = 56; cnt_load(0, t + 3)
    e(f'v_cndmask_b32 v{t}, 0, v{aG}, {sr(sMK,2)}')
    for r in range(1, 4): e(f'v_cndmask_b32 v{t}, v{t}, v{aG+r}, {sr(sMK+2*r,2)}')
    e(f'v_mul_f32 v{aS}, {fl(1.0/448)}, v{aS}')
    for sw in ('16', '32'):
        e(f'v_mov_b32 v{t+1}, v{t}'); e(f'v_permlane{sw}_swap_b32 v{t}, v{t+1}'); e(f'v_add_f32 v{t}, v{t}, v{t+1}')
    e(f'v_mul_f32 v{aS}, v{aS}, v{aS}'); e(f'v_fmamk_f32 v{t}, v{t}, {fl(-1.0/448)}, v{aS}')
    e(f'v_min_f32 v{t}, 0, v{t}'); e(f'v_sub_f32 v{t}, {fl(1e-5)}, v{t}'); e(f'v_rsq_f32 v{t}, v{t}')
    for tl in (1, 3):
        for r in range(4): e(f'v_sub_f32 v{aT[tl]+r}, v{aT[tl]+r}, v{aHi[tl]+r}')
    e(f'v_and_b32 v{t+1}, 15, v{vL}'); e(f'v_lshrrev_b32 v{t+2}, 4, v{vL}'); e(f'v_lshlrev_b32 v{t+1}, 5, v{t+1}'); e(f'v_lshl_add_u32 v{t+1}, v{t+2}, 3, v{t+1}')
    e(f's_lshl_b32 s{sT}, s{sW}, 9'); e(f'v_add_u32 v{t+1}, s{sT}, v{t+1}')
    for tl in range(4):
        for r in range(4): e(f'v_mul_f32 v{aT[tl]+r}, v{aT[tl]+r}, v{t}')
        for m in range(2): e(f'v_cvt_pk_f16_f32 v{aT[tl]+m}, v{aT[tl]+2*m}, v{aT[tl]+2*m+1}')
        k.ds(f'ds_write_b64 v{t+1}, {vr(aT[tl],2)} offset:{L_C + 2048*tl}', 'cw')
    e(f'v_lshlrev_b32 v{t+2}, 3, v{vL}')
    vu, k1 = vA, vA + 1
    e(f'v_lshrrev_b32 v{vu}, 4, v{vL}'); e(f's_lshl_b32 s{sT}, s{sW}, 2'); e(f'v_add_u32 v{vu}, s{sT}, v{vu}'); e(f'v_cmp_eq_u32 vcc, 0, v{vu}')
    e(f'v_mul_u32_u24 v{vu}, {2*57344}, v{vu}'); e(f'v_and_b32 v{k1}, 15, v{vL}'); e(f'v_lshl_add_u32 v{vu}, v{k1}, 4, v{vu}')
    e(f'v_cndmask_b32 v{k1}, -1.0, 0, vcc')
    e(f's_mul_i32 s{sT}, s{sP}, 7'); e(f's_add_u32 s{sT}, s{sT}, s{sG}'); e(f's_lshl_b32 s{sT}, s{sT}, 8'); e(f's_add_u32 s{sT}, s{sT}, {WS_U2 if half else WS_U1}')
    e(f's_add_u32 s{sT+1}, s{sT}, 57344')
    k.wait(lg='all'); e('s_barrier')
    stamp(f'A{half}.hdft')
    cf = lambda tl, k1_: 16 + 8*tl + 4*k1_
    for k1_ in range(2):
        for tl in range(4):
            for h2 in range(2): k.ds(f'ds_read_b64_tr_b16 {vr(cf(tl,k1_)+2*h2,2)}, v{t+2} offset:{L_C + 2048*tl + 1024*k1_ + 512*h2}', f'c{tl}{k1_}')
    if half == 0: cnt_check(0, t + 3)
    Dt = lambda tl: 48 + 4*tl
    for k1_ in range(2):
        for tl in range(4):
            k.wait(lg=f'c{tl}{k1_}')
            e(f'v_mfma_f32_16x16x32_f16 {vr(Dt(tl),4)}, {vr(Ff+4*k1_,4)}, {vr(cf(tl,k1_),4)}, {vr(Dt(tl),4) if k1_ else 0}')
    for pp in range(2):
        kk1 = f'v{k1}' if pp == 0 else '-1.0'; nk1 = f'-v{k1}' if pp == 0 else '1.0'
        for u in range(2):
            CA, SA, CB, SB = Dt(u) + 2*pp, Dt(u) + 2*pp + 1, Dt(2+u) + 2*pp, Dt(2+u) + 2*pp + 1
            o = 64 + 8*pp + 4*u
            e(f'v_fma_f32 v{o}, {kk1}, v{SB}, v{CA}'); e(f'v_fma_f32 v{o+1}, {kk1}, v{SA}, -v{CB}')
            e(f'v_fma_f32 v{o+2}, {nk1}, v{CA}, v{SB}'); e(f'v_fma_f32 v{o+3}, {kk1}, v{CB}, v{SA}')
        for m in range(4): e(f'v_cvt_pk_f16_f32 v{80+4*pp+m}, v{64+8*pp+2*m}, v{64+8*pp+2*m+1}')
        k.vmem(f'buffer_store_dwordx4 {vr(80+4*pp,4)}, v{vu}, {sr(sWS,4)}, s{sT+pp} offen sc1', 'Ust')
    stamp(f'A{half}.ust')

def US(half): return 16 if half == 0 else 256
def TOFF(half): return 32 * 912 if half == 0 else 28672
def rowaddr(half, dst, j, t):
    if half == 0: e(f'v_mul_u32_u24 v{dst}, 912, v{j}')
    else:
        e(f'v_lshrrev_b32 v{t}, 4, v{j}'); e(f'v_mul_u32_u24 v{t}, 14336, v{t}'); e(f'v_and_b32 v{dst}, 15, v{j}'); e(f'v_lshl_add_u32 v{dst}, v{dst}, 4, v{t}')
def resid_dma(half):
    e(f's_cmp_ge_u32 s{sW}, 2'); e(f's_cselect_b32 s{sT}, s{sRB}, s{sP}'); e(f's_and_b32 s{sT+1}, s{sW}, 1')
    if half == 0:
        e(f's_lshl_b32 s{sT+1}, s{sT+1}, 10'); e(f's_add_u32 s{sT}, s{sT}, s{sT+1}'); e(f's_mul_i32 s{sT}, s{sT}, 896')
        e(f's_mul_i32 s{sT+1}, s{sW}, {16*912}'); e('s_mov_b32 exec_hi, 0x00ffffff')
        for r in range(16):
            e(f's_add_u32 m0, s{sT+1}, {L_X + 912*r}')
            if r: e(f's_add_u32 s{sT}, s{sT}, 57344')
            k.vmem(f'buffer_load_dwordx4 v{vL16}, {sr(sX0,4)}, s{sT} offen lds', 'img')
        e('s_mov_b32 exec_hi, -1')
    else:
        e(f's_lshl_b32 s{sT}, s{sT}, 1'); e(f's_add_u32 s{sT}, s{sT}, s{sT+1}'); e(f's_mul_i32 s{sT}, s{sT}, 14336'); e(f's_add_u32 s{sT}, s{sT}, {WS_X2}')
        e(f's_mul_i32 s{sT+1}, s{sW}, 14336')
        for i in range(14):
            if i % 4 == 0:
                e(f's_add_u32 m0, s{sT+1}, {L_X + 1024*i}')
                if i: e(f's_add_u32 s{sT}, s{sT}, 4096')
                else: e('s_nop 0')
            k.vmem(f'buffer_load_dwordx4 v{vL16}, {sr(sWS,4)}, s{sT} offen offset:{1024*(i%4)} sc1 lds', 'img')
def phB(half):
    us = US(half); RAW = lambda kap: 16 + 16*kap; ACC = lambda u, pq: 80 + 32*pq + 16*u; MF = 144
    vu, vd, vmP, vmQ = vA, vA + 1, vA + 2, vA + 3
    t = 80
    e('s_barrier')
    resid_dma(half)
    if half == 0: gen_M(96)
    vu2 = vSa if half else 152
    e(f'v_bfe_u32 v{t}, v{vL}, 2, 1'); e(f'v_bfe_u32 v{t+1}, v{vL}, 3, 2'); e(f'v_and_b32 v{t+2}, 3, v{vL}')
    e(f'v_lshl_add_u32 v{t+1}, v{t}, 2, v{t+1}'); e(f'v_lshl_add_u32 v{t+1}, v{t+1}, 2, v{t+2}'); e(f's_mul_i32 s{sT+2}, s{sW}, 448')
    e(f'v_lshl_add_u32 v{t+1}, v{t+1}, 4, s{sT+2}'); e(f'v_subrev_u32 v{t}, 1792, v{t+1}'); e(f'v_min_u32 v{t+1}, v{t}, v{t+1}')
    e(f'v_lshrrev_b32 v{t+2}, 5, v{vL}'); e(f'v_mul_u32_u24 v{t}, 7168, v{t+2}'); e(f'v_add_u32 v{vu}, v{t}, v{t+1}'); e(f'v_add_u32 v{vu2}, 3584, v{vu}')
    e(f's_mul_i32 s{sHS}, s{sP}, 57344'); e(f's_add_u32 s{sHS}, s{sHS}, {WS_U2 if half else WS_U1}')
    for i in range(1, 4): e(f's_add_u32 s{sHS+i}, s{sHS}, {14336*i}')
    if half == 0: ws.pump(OPT.get('pumpB', 28))
    k.wait(vm='Ust')
    stamp(f'B{half}.ack')
    def uloads(first):
        for kap in range(first, 4):
            for jj in range(4):
                k.vmem(f'buffer_load_dwordx4 {vr(RAW(kap)+4*jj,4)}, v{vu if jj < 2 else vu2}, {sr(sWS,4)}, s{sHS+kap} offen offset:{1792*(jj%2)} sc1', f'U{kap}')
    uloads(0)
    j, a = t + 3, t + 4
    e(f'v_and_b32 v{j}, 31, v{vL}'); e(f's_mul_i32 s{sT}, s{sW}, 7'); e(f'v_lshl_add_u32 v{a}, v{t+2}, 2, s{sT}')
    rowaddr(half, vd, j, t); e(f'v_mul_u32_u24 v{t+1}, {us}, v{a}'); e(f'v_add_u32 v{vd}, v{vd}, v{t+1}')
    e(f'v_sub_u32 v{a}, {52*us}, v{t+1}')
    e(f's_cmp_eq_u32 s{sP}, 0'); e(f's_cselect_b32 s{sT}, 32, 63'); e(f's_cselect_b32 s{sT+1}, 31, 63'); e(f's_cselect_b32 s{sT+2}, 63, 31')
    e(f'v_sub_u32 v{t+5}, s{sT}, v{j}'); e(f'v_and_b32 v{t+5}, s{sT+1}, v{t+5}'); rowaddr(half, vmP, t + 5, t); e(f'v_add_u32 v{vmP}, v{vmP}, v{a}')
    e(f'v_sub_u32 v{t+5}, s{sT+2}, v{j}'); rowaddr(half, vmQ, t + 5, t); e(f'v_add_u32 v{vmQ}, v{vmQ}, v{a}')
    e(f's_cmp_eq_u32 s{sW}, 0'); e(f's_cselect_b32 s{sMK}, 0, -1'); e(f's_mov_b32 s{sMK+1}, -1')
    k.wait(vm='img')
    if half:
        def chk():
            e(f's_mul_i32 s{sT}, s{sW}, 14336'); e(f'v_add_u32 v{t}, s{sT}, v{vL16}')
            for i in range(14): k.ds(f'ds_read_b32 v{t+2+i}, v{t} offset:{L_X + 1024*i}', 'ic')
            k.wait(lg='all'); e(f'v_max_u32 v{t+1}, v{t+2}, v{t+3}')
            for i in range(6): e(f'v_max3_u32 v{t+1}, v{t+1}, v{t+4+2*i}, v{t+5+2*i}')
            e(f'v_cmp_eq_u32 vcc, -1, v{t+1}')
        chk(); retry_site(chk, lambda: resid_dma(1), 'img')
    k.wait(lg='all'); e('s_barrier')
    vm = vSb if half else 153
    e(f'v_add_u32 v{vm}, {L_M}, v{vL16}')
    mread = lambda kap, pq: k.ds(f'ds_read_b128 {vr(MF+4*pq,4)}, v{vm} offset:{4096*pq + 1024*kap}', f'M{pq}')
    mread(0, 0); mread(0, 1)
    XU = lambda pq, b, mir: RAW(2*pq + (b >> 1)) + 8*(b & 1) + 4*mir
    def xread(pq, b):
        k.ds(f'ds_read_b128 {vr(XU(pq,b,0),4)}, v{vd} offset:{L_X + pq*TOFF(half) + b*us}', f'xd{pq}{b}')
        k.ds(f'ds_read_b128 {vr(XU(pq,b,1),4)}, v{vmQ if pq else vmP} offset:{L_X + (3-b)*us}', f'xm{pq}{b}')
    tc = vT1 if half else 154
    for kap in range(4):
        R = RAW(kap)
        chk = lambda R=R: (e(f'v_max3_u32 v{tc}, v{R}, v{R+4}, v{R+8}'), e(f'v_max_u32 v{tc}, v{tc}, v{R+12}'), e(f'v_cmp_eq_u32 vcc, -1, v{tc}'))
        k.wait(vm=f'U{kap}'); chk(); retry_site(chk, lambda kap=kap: uloads(kap), f'U{half}{kap}')
        if kap == 3: stamp(f'B{half}.Uin')
        for i, jx in ((0, 1), (0, 2), (0, 3), (1, 2), (2, 3), (1, 3)): e(f'v_swap_b32 v{R+4*i+jx}, v{R+4*jx+i}')
        for pq in range(2):
            k.wait(lg=f'M{pq}')
            for u in range(2):
                A = ACC(u, pq); e(f'v_mfma_f32_32x32x16_f16 {vr(A,16)}, {vr(R+4*(2*u+pq),4)}, {vr(MF+4*pq,4)}, {vr(A,16) if kap else 0}')
            if kap < 3: mread(kap + 1, pq)
        xread(kap >> 1, 2*(kap & 1)); xread(kap >> 1, 2*(kap & 1) + 1)
    T = MF
    sel = lambda hi: f's{sHI if hi else sLO}'
    for pq in range(2):
        Y = lambda b, n: ACC(n & 1, pq) + 4*b + (n >> 1)
        e(f'v_mov_b32 v{vu}, v{Y(0,0)}'); e(f'v_cndmask_b32 v{Y(0,0)}, 0, v{Y(0,0)}, {sr(sMK,2)}'); e(f'v_permlane32_swap_b32 v{vu}, v{tc}')
        for b in range(4):
            if b == 3: e('s_mov_b32 exec_hi, 0')
            xd, xm = XU(pq, b, 0), XU(pq, b, 1)
            k.wait(lg=f'xm{pq}{b}')
            for n in range(8): e(f'v_dot2_f32_bf16 v{T+n}, v{xd + (n >> 1)}, {sel(n & 1)}, v{Y(b,n)}')
            e(f'v_dot2_f32_bf16 v{Y(b,0)}, v{xm}, {sel(0)}, v{Y(b+1,0) if b < 3 else tc}')
            for m in range(1, 8): e(f'v_dot2c_f32_bf16 v{Y(b,8-m)}, {sel(m & 1)}, v{xm + (m >> 1)}')
            for m in range(4): e(f'v_cvt_pk_bf16_f32 v{xd+m}, v{T+2*m}, v{T+2*m+1}')
            k.ds(f'ds_write_b128 v{vd}, {vr(xd,4)} offset:{L_X + pq*TOFF(half) + b*us}', 'xw')
            for m in range(4): e(f'v_cvt_pk_bf16_f32 v{xm+m}, v{Y(b,(8-2*m)%8)}, v{Y(b,7-2*m)}')
            k.ds(f'ds_write_b128 v{vmQ if pq else vmP}, {vr(xm,4)} offset:{L_X + (3-b)*us}', 'xw')
        e('s_mov_b32 exec_hi, -1')

def run_slots(slots, fillers, per):
    q = []
    for i, (mf, pre, post) in enumerate(slots):
        q += fillers.pop(i, [])
        mf()
        for f in pre: f()
        n = per - len(pre)
        while q and n > 0:
            f = q.pop(0)
            if f is None: break
            f(); n -= 1
        for f in post: f()
    return q
def ffn(half):
    us = US(half); toff = TOFF(half)
    vb, vs, vst, vh = vA, vA + 1, vA + 2, vA + 3
    BR = lambda i: B[5] + 4*(i % 3); MFR = B[5] + 12; t = B[5] + 14
    e(f'v_and_b32 v{t}, 31, v{vL}'); rowaddr(half, vb, t, t + 1); e(f'v_lshlrev_b32 v{vst}, 3, v{t}'); e(f'v_add_u32 v{vst}, {L_ST}, v{vst}')
    e(f'v_lshrrev_b32 v{t}, 5, v{vL}'); e(f'v_mul_u32_u24 v{t}, {us}, v{t}'); e(f'v_add_u32 v{vb}, v{vb}, v{t}')
    e(f'v_lshrrev_b32 v{t}, 3, v{vL}'); e(f's_lshl_b32 s{sT}, s{sW}, 3'); e(f'v_add_u32 v{t}, s{sT}, v{t}'); rowaddr(half, vs, t, t + 1)
    e(f'v_lshlrev_b32 v{vh}, 3, v{t}'); e(f'v_add_u32 v{vh}, {L_ST}, v{vh}')
    e(f'v_and_b32 v{t}, 7, v{vL}'); e(f'v_mul_u32_u24 v{t}, {us}, v{t}'); e(f'v_add_u32 v{vs}, v{vs}, v{t}')
    vres = B[4]
    if half == 0:
        e(f'v_and_b32 v{t}, 7, v{vL}'); e(f'v_add_u32 v{t}, s{sT}, v{t}'); rowaddr(half, vres, t, t + 1)
        e(f'v_lshrrev_b32 v{t}, 3, v{vL}'); e(f'v_mul_u32_u24 v{t}, {us}, v{t}'); e(f'v_add_u32 v{vres}, v{vres}, v{t}')
    else: e(f'v_mov_b32 v{vres}, v{vs}')
    e(f's_mul_i32 s{sT+1}, s{sG}, {8*us}'); e(f'v_add_u32 v{vres}, s{sT+1}, v{vres}')
    e(f's_mul_i32 s{sT}, s{sP}, {2*7*16384}'); e(f's_lshl_b32 s{sT+1}, s{sW}, 12'); e(f's_add_u32 s{sT}, s{sT}, s{sT+1}'); e(f's_add_u32 s{sT}, s{sT}, {WS_H}')
    for jp in range(7):
        e(f's_add_u32 s{sT+1}, s{sG}, {jp}'); e(f's_sub_u32 s{sT+2}, s{sT+1}, 7'); e(f's_min_u32 s{sT+1}, s{sT+1}, s{sT+2}')
        e(f's_lshl_b32 s{sT+1}, s{sT+1}, 14'); e(f's_add_u32 s{sHS+jp}, s{sT}, s{sT+1}')
    e(f's_mov_b32 s{sMK}, -1'); e(f's_mov_b32 s{sMK+1}, 0'); e(f's_mov_b32 s{sMK+2}, 0x80008000')
    vh1 = vT1
    if half == 0: ws.pump(OPT.get('pumpC', 56))
    e(f'v_add_u32 v{vh1}, {7*16384}, v{vL16}')
    k.wait(lg='all'); e('s_barrier')
    stamp(f'B{half}.end')
    if stop(f'B{half}', 61440): return True
    hvo = lambda T: vh1 if T else vL16
    ACC1 = lambda T, u: B[2*T + u]
    bread = lambda i: (lambda: k.ds(f'ds_read_b128 {vr(BR(i),4)}, v{vb} offset:{L_X + (i//28)*toff + 2*(i%28)*us}', f'B{i}'))
    bread(0)(); bread(1)()
    for T in range(2): k.ds(f'ds_read_b128 {vr(vR+4*T,4)}, v{vres} offset:{L_X + T*toff}', 'res')
    def stats_ops(T):
        ops = []; SB = lambda j: B[6] + 4*(j % 2); s1, s2, lo, hi = B[6] + 8, B[6] + 9, B[6] + 10, B[6] + 12
        rd = lambda j: (lambda: k.ds(f'ds_read_b128 {vr(SB(j),4)}, v{vs} offset:{L_X + T*toff + 8*j*us}', f'S{T}{j}'))
        E = lambda s_: (lambda: e(s_))
        ops += [rd(0), rd(1), None]
        for j in range(7):
            for m in range(4):
                l_, h_ = lo + m % 2, hi + m % 2
                first = j == 0 and m == 0
                ops.append((lambda j=j, m=m, l_=l_: (k.wait(lg=f'S{T}{j}'), e(f'v_lshlrev_b32 v{l_}, 16, v{SB(j)+m}'))))
                ops.append(E(f'v_and_b32 v{h_}, 0xffff0000, v{SB(j)+m}'))
                if m == 3 and j + 2 < 7: ops.append(rd(j + 2))
                if first:
                    ops += [E(f'v_add_f32 v{s1}, v{l_}, v{h_}'), E(f'v_mul_f32 v{s2}, v{l_}, v{l_}'), E(f'v_fmac_f32 v{s2}, v{h_}, v{h_}')]
                else:
                    ops += [E(f'v_add_f32 v{s1}, v{s1}, v{l_}'), E(f'v_fmac_f32 v{s2}, v{l_}, v{l_}'), E(f'v_add_f32 v{s1}, v{s1}, v{h_}'), E(f'v_fmac_f32 v{s2}, v{h_}, v{h_}')]
        for c in ('quad_perm:[1,0,3,2]', 'quad_perm:[2,3,0,1]', 'row_half_mirror'):
            ops.append(None)
            for r in (s1, s2): ops.append(E(f'v_add_f32_dpp v{r}, v{r}, v{r} {c} row_mask:0xf bank_mask:0xf'))
        ops += [E(f'v_mul_f32 v{s1}, {fl(-1.0/448)}, v{s1}'), E(f'v_mul_f32 v{lo}, v{s1}, v{s1}'), E(f'v_fmamk_f32 v{s2}, v{s2}, {fl(-1.0/448)}, v{lo}'),
                E(f'v_min_f32 v{s2}, 0, v{s2}'), E(f'v_sub_f32 v{s2}, {fl(1e-5)}, v{s2}'), E(f'v_rsq_f32 v{s2}, v{s2}'), None,
                lambda: k.ds(f'ds_write_b64 v{vh}, {vr(s1,2)} offset:{256*T}', 'stw'), None,
                lambda: (k.wait(lg='stw'), e('s_barrier')), None,
                lambda: k.ds(f'ds_read_b32 v{t}, v{vst} offset:{256*T}', 'm'), None, None, None,
                lambda: (k.wait(lg='m'), e(f'v_cndmask_b32 v{t}, 0, v{t}, {sr(sMK,2)}')), E(f'v_cvt_pk_bf16_f32 v{MFR}, v{t}, v{t}'),
                E(f'v_and_b32 v{t+1}, 0xffff0000, v{MFR}'), E(f'v_sub_f32 v{t}, v{t}, v{t+1}'), E(f'v_cvt_pk_bf16_f32 v{MFR+1}, v{t}, 0')]
        return ops
    OWN = [B[4], B[6]]
    def epi1_ops(T):
        ops = []; E = lambda s_: (lambda: e(s_)); ng = '-' if half else ''
        for u in range(2):
            for be in range(2):
                d = OWN[T] + 8*u + 4*be; a = ACC1(T, u) + 8*be
                ops += [E(f'v_cvt_pk_bf16_f32 v{d+m}, {ng}v{a+2*m}, {ng}v{a+2*m+1}') for m in range(4)]
                ops += [E(f'v_pk_max_u16 v{d+m}, v{d+m}, s{sMK+2}' if half else f'v_pk_max_i16 v{d+m}, v{d+m}, 0') for m in range(4)]
                ops.append(lambda d=d, u=u, be=be: k.vmem(f'buffer_store_dwordx4 {vr(d,4)}, v{hvo(T)}, {sr(sWS,4)}, s{sHS} offen offset:{1024*(2*u+be)} sc1', 'hst'))
        return ops
    HB = {(0, 0): B[4], (0, 1): B[0], (0, 2): B[1], (0, 3): B[7], (0, 4): B[4], (0, 5): B[0], (0, 6): B[1],
          (1, 0): B[6], (1, 1): B[7], (1, 2): B[4], (1, 3): B[6], (1, 4): B[7], (1, 5): B[4], (1, 6): B[6]}
    inflight = []
    def hload(T, jp, i, track=True):
        def f():
            k.vmem(f'buffer_load_dwordx4 {vr(HB[T,jp]+4*i,4)}, v{hvo(T)}, {sr(sWS,4)}, s{sHS+jp} offen offset:{1024*i} sc1', f'h{T}{jp}')
            if track: inflight.append((T, jp, i))
        return f
    slots = []
    for T in range(2):
        for kap in range(28):
            i = 28*T + kap
            for u in range(2):
                A = ACC1(T, u)
                mf = lambda A=A, kap=kap, u=u, i=i: (k.wait(lg=f'B{i}'), e(f'v_mfma_f32_32x32x16_bf16 {vr(A,16)}, {w1f(kap,u)}, {vr(BR(i),4)}, {vr(A,16) if kap else 0}'))
                slots.append((mf, [bread(i + 2)] if (u == 0 and i + 2 < 56) else [], []))
        for u in range(2):
            A = ACC1(T, u)
            slots.append((lambda A=A, u=u: e(f'v_mfma_f32_32x32x8_bf16 {vr(A,16)}, {vr(vCS+2*u,2)}, {vr(MFR,2)}, {vr(A,16)}'), [], []))
    q = run_slots(slots[:56], {0: stats_ops(0)}, 5); assert not q
    chk1 = []
    if half == 0: cnt_load(1, B[7]); chk1 = [lambda: cnt_check(1, B[7]), None]
    hq = OPT['hq_slot'] - 56
    for n, (jp, i) in enumerate((jp, i) for jp in (1, 2, 3) for i in range(4)):
        sl = 56 + hq + 2*n + 1
        assert sl < 116; slots[sl][1].append(hload(0, jp, i))
    q = run_slots(slots[56:114], {3: chk1 + epi1_ops(0) + stats_ops(1)}, 5)
    for f in q:
        if f: f()
    run_slots(slots[114:], {}, 5)
    stamp(f'C{half}.g1')
    for f in epi1_ops(1): f()
    if stop(f'C{half}'): return True
    ACC2 = lambda T, v: (B[2 + v] if T == 0 else B[v])
    AR = lambda kk, v: B[5] + 8*(kk % 2) + 4*v
    def aread(kk, v, h2):
        so = ((28 + kk) % NSLOT) * 2048
        def f():
            k.wait(vm=f'w{28+kk}')
            k.ds(f'ds_read_b64_tr_b16 {vr(AR(kk,v)+2*h2,2)}, v{vT2+v} offset:{so + 1024*h2}', f'A{kk}{v}')
        return f
    tc = vb
    def hcheck(T, jp):
        R = HB[T, jp]
        def chk():
            if half == 0:
                e(f'v_or3_b32 v{tc}, v{R}, v{R+4}, v{R+8}'); e(f'v_or_b32 v{tc}, v{tc}, v{R+12}'); e(f'v_cmp_gt_i32 vcc, 0, v{tc}')
            else:
                e(f'v_bitop3_b32 v{tc}, v{R}, v{R+4}, v{R+8} bitop3:0x80'); e(f'v_and_b32 v{tc}, v{tc}, v{R+12}'); e(f'v_cmp_le_i32 vcc, 0, v{tc}')
        def pre(): k.wait(vm=f'h{T}{jp}'); chk()
        def br():
            todo = [x for x in inflight if x[:2] >= (T, jp)]
            retry_site(chk, lambda: [hload(*x, track=False)() for x in todo], f'h{half}{T}{jp}')
        return pre, br
    RS = 1088; vrw, vrr, vo = vL16, vs, vh
    tau, cc = B[5], B[5] + 1
    if half == 0: e(f'v_and_b32 v{tau}, 7, v{vL}'); e(f'v_lshrrev_b32 v{cc}, 3, v{vL}')
    else: e(f'v_lshrrev_b32 v{tau}, 3, v{vL}'); e(f'v_and_b32 v{cc}, 7, v{vL}')
    e(f's_lshl_b32 s{sT}, s{sW}, 3'); e(f'v_add_u32 v{tau}, s{sT}, v{tau}')
    e(f'v_mul_u32_u24 v{vrr}, {RS}, v{cc}'); e(f'v_lshl_add_u32 v{vrr}, v{tau}, 4, v{vrr}')
    e(f'v_lshlrev_b32 v{vst}, 3, v{tau}'); e(f'v_add_u32 v{vst}, {L_ST + 4}, v{vst}')
    if half == 0:
        rowaddr(1, vo, tau, cc + 1); e(f'v_lshl_add_u32 v{vo}, v{cc}, 8, v{vo}')
        for T in range(2):
            e(f's_mul_i32 s{sMK+4+T}, s{sRB if T else sP}, 28672'); e(f's_lshl_b32 s{sT}, s{sG}, 11'); e(f's_add_u32 s{sMK+4+T}, s{sMK+4+T}, s{sT}'); e(f's_add_u32 s{sMK+4+T}, s{sMK+4+T}, {WS_X2}')
    else:
        e(f'v_mul_u32_u24 v{vo}, 57344, v{tau}'); e(f'v_lshl_add_u32 v{vo}, v{cc}, 4, v{vo}')
        for T in range(2):
            e(f's_mul_i32 s{sMK+4+T}, s{sRB if T else sP}, 896'); e(f's_lshl_b32 s{sT}, s{sG}, 7'); e(f's_add_u32 s{sMK+4+T}, s{sMK+4+T}, s{sT}')
    vrwb = vT1 + 1
    e(f's_mul_i32 s{sT}, s{sW}, {8*RS}'); e(f'v_add_u32 v{vrwb}, s{sT}, v{vL16}')
    def red_write_ops(T):
        ops = []
        for c in range(8):
            ops += [lambda c=c: k.ds(f'ds_write_b128 v{vrwb}, {vr(ACC2(T, c >> 2) + 4*(c & 3), 4)} offset:{L_RED + RS*c}', 'rw'), None, None]
        return ops
    def red_final_ops(T, PB, rr):
        ops = []; E = lambda s_: (lambda: e(s_)); x = vR + 4*T
        ops.append(lambda: k.ds(f'ds_read_b32 v{rr}, v{vst} offset:{256*T}', 'r'))
        for pw in range(4):
            for h in range(2): ops.append(lambda pw=pw, h=h: k.ds(f'ds_read_b128 {vr(PB+8*pw+4*h,4)}, v{vrr} offset:{L_RED + 8*RS*pw + 512*h}', f'p{pw}'))
            ops.append(None)
        ops += [None, None]
        for pw in range(1, 4):
            for n in range(8):
                ops.append(lambda pw=pw, n=n: (k.wait(lg=f'p{pw}'), e(f'v_add_f32 v{PB+n}, v{PB+n}, v{PB+8*pw+n}')))
        for n in range(8):
            ops.append(E(f'v_and_b32 v{PB+8+n}, 0xffff0000, v{x + n//2}' if n & 1 else f'v_lshlrev_b32 v{PB+8+n}, 16, v{x + n//2}'))
        for n in range(8): ops.append(E(f'v_fma_f32 v{PB+n}, {"-" if half else ""}v{rr}, v{PB+n}, v{PB+8+n}'))
        for m in range(4): ops.append(E(f'v_cvt_pk_bf16_f32 v{x+m}, v{PB+2*m}, v{PB+2*m+1}'))
        if half == 0: ops.append(lambda: k.vmem(f'buffer_store_dwordx4 {vr(x,4)}, v{vo}, {sr(sWS,4)}, s{sMK+4+T} offen sc1', 'xst'))
        else: ops.append(lambda: k.vmem(f'buffer_store_dwordx4 {vr(x,4)}, v{vo}, {sr(sOUT,4)}, s{sMK+4+T} offen', 'xst'))
        return ops
    t1g = OPT['t1_grp']
    nxt = {(0, 0): (0, 4), (0, 1): (0, 5), (0, 2): (0, 6), (0, t1g): (1, 1), (0, t1g + 1): (1, 2), (1, 0): (1, 3), (1, 1): (1, 4), (1, 2): (1, 5), (1, 3): (1, 6)}
    for T in range(2):
        slots = []
        for kk in range(28):
            jp, i = kk >> 2, kk & 3
            for v in range(2):
                A = ACC2(T, v); wr = w2reg(kk, v)
                def mf(A=A, wr=wr, kk=kk, v=v, jp=jp, i=i):
                    if wr is None: k.wait(lg=f'A{kk}{v}')
                    a = rn(wr, 4) if wr else vr(AR(kk, v), 4)
                    e(f'v_mfma_f32_32x32x16_bf16 {vr(A,16)}, {a}, {vr(HB[T,jp]+4*i,4)}, {vr(A,16) if kk else 0}')
                pre, post = [], []
                kn = kk + 2 if kk >= 15 else None
                if kn is not None and 17 <= kn < 28: pre += [aread(kn, v, 0), aread(kn, v, 1)]
                if v == 1 and (T, jp) in nxt: pre.append(hload(*nxt[T, jp], i))
                if i == 3 and jp < 6:
                    p_, b_ = hcheck(T, jp + 1)
                    post.append(p_ if v == 0 else b_)
                slots.append((mf, pre, post))
        fill = {10: [lambda: e('s_barrier')]}
        if T == 1:
            fill = {3: red_write_ops(0) + [lambda: (k.wait(lg='rw'), e('s_barrier')), None]}
            if half == 0: fill[3] = [lambda: cnt_load(2, vSa)] + fill[3] + [lambda: cnt_check(2, vSa), None]
            fill[3] += red_final_ops(0, B[2], vSb) + [None, lambda: e('s_barrier')]
        q = run_slots(slots, fill, 4)
        for f in q:
            if f: f()
    stamp(f'D{half}.g2')
    for f in red_write_ops(1):
        if f: f()
    k.wait(lg='all'); e('s_barrier')
    for f in red_final_ops(1, B[2], vSb):
        if f: f()
    stamp(f'D{half}.st')
    return False

def main():
    prologue()
    phA_issue(0)
    src_off(3584)
    e(f's_lshl_b32 s{sSO}, s{sG}, 2'); e(f's_add_u32 s{sSO}, s{sSO}, s{sW}'); e(f's_lshl_b32 s{sSO}, s{sSO}, 7')
    t = 16
    e(f'v_bfe_u32 v{t}, v{vL}, 2, 2'); e(f'v_bfe_u32 v{t+1}, v{vL}, 3, 1'); e(f'v_bfe_u32 v{t+2}, v{vL}, 4, 1'); e(f'v_and_b32 v{t+3}, 3, v{vL}')
    e(f'v_lshlrev_b32 v{t}, 7, v{t}'); e(f'v_lshl_add_u32 v{t}, v{t+1}, 6, v{t}'); e(f'v_lshl_add_u32 v{t}, v{t+2}, 5, v{t}'); e(f'v_lshl_add_u32 v{t}, v{t+3}, 3, v{t}')
    e(f'v_add_u32 v{t}, s{sWA}, v{t}'); e(f'v_lshrrev_b32 v{t+1}, 5, v{vL}')
    e(f'v_lshl_add_u32 v{vT1}, v{t+1}, 10, v{t}'); e(f'v_lshl_add_u32 v{vT2}, v{t+1}, 9, v{t}')
    e(f'v_xor_b32 v{vT1+1}, 64, v{vT1}'); e(f'v_xor_b32 v{vT2+1}, 64, v{vT2}')
    for i in range(4): e(f'v_mov_b32 v{220+i}, 0x3f803f80')
    ws.issue(4)
    for half in range(2):
        if half:
            k.wait(vm='xst'); stamp('A1.ack'); phA_issue(1)
        phA(half)
        if stop(f'A{half}'): return
        phB(half)
        if ffn(half): return
        if stop(f'D{half}'): return
    finish_stamps()
    e('s_endpgm')
main()
helper()
k.tail.append('L_end:')
k.tail.append('s_endpgm')
txt, nops = finish(k, OPT['grid'], 256, LDS_SZ, verbose=OPT['verbose'])
print(txt)
```

```python
import sys, struct
from kasm import *

OPT = dict(ts=0, stop='', verbose=0, hq_slot=88, t1_grp=4, grid=256)
for a in sys.argv[1:]:
    key, val = a.split('=')
    OPT[key] = val if key in ('stop', 'amp') else int(val)
AMP = OPT.get('amp')
if AMP: OPT['ts'] = 1
TS, STOP = OPT['ts'], OPT['stop']
TSI = 's_memtime' if TS == 2 else 's_memrealtime'

S, D, F = 2048, 448, 1792
XB = S * D * 2
WS_U1, WS_U2, WS_X2, WS_H = 0, XB, 2 * XB, 3 * XB
WS_END = WS_H + S * F * 2
WS_TS = 0x1000000
WS_DBG = 0x1100000
L_X = 0; L_RED = 0; L_C = 0; L_H = 35840
L_M = 64512; L_ST = L_M + 8192; L_WA = L_ST + 1024; WA_SZ = 22528
LDS_SZ = L_WA + 4 * WA_SZ
assert LDS_SZ <= 163840
NSLOT = 11
sX0, sW1, sW2, sOUT, sWS, sDBG = 8, 12, 16, 20, 24, 28
sW, sG, sP, sRB, sRETRY, sWA, sSO, sLO, sHI = 32, 33, 34, 35, 36, 37, 38, 39, 40
sT = 42
sMK = 52
sHS = 60
sTS = 70
vL, vL16, vCS, vSa, vSb, vT1, vT2, vA = 0, 1, 2, 6, 7, 8, 10, 12
B = [16 + 16 * i for i in range(8)]; vR = 144
def w1f(kap, u): return ar(8 * kap + 4 * u, 4)
def w2reg(kk, v):
    if kk < 4: return ('a', 224 + 8 * kk + 4 * v)
    if kk < 17: return ('v', 152 + 8 * (kk - 4) + 4 * v)
    return None
def rn(t, n): return ar(t[1], n) if t[0] == 'a' else vr(t[1], n)
fl = lambda x: '0x%08x' % struct.unpack('<I', struct.pack('<f', x))[0]

k = K(); e = k.e
nts = [0]; tsn = []
def stamp(name):
    if not TS or (AMP and name != AMP): return
    i = nts[0]; nts[0] += 1; tsn.append(name)
    k.wait(lg='all')
    e(f'{TSI} s[50:51]'); e('s_waitcnt lgkmcnt(0)'); e(f's_mov_b32 s{sTS+i}, s50')
def finish_stamps():
    if not TS: return
    if AMP:
        e('s_cmp_lg_u32 s2, 100'); e('s_cbranch_scc1 L_exit')
        e(f's_sub_u32 s44, s{sTS+1}, s{sTS}'); e('s_min_u32 s44, s44, 10000'); e('s_mul_i32 s44, s44, 10')
        e('s_memrealtime s[50:51]'); e('s_waitcnt lgkmcnt(0)'); e('s_add_u32 s44, s44, s50')
        e('L_amp:'); e('s_memrealtime s[50:51]'); e('s_waitcnt lgkmcnt(0)'); e('s_sub_u32 s45, s50, s44'); e('s_cmp_lt_i32 s45, 0'); e('s_cbranch_scc1 L_amp')
        return
    e('v_mov_b32 v16, 0')
    for i in range(nts[0]): e(f'v_writelane_b32 v16, s{sTS+i}, {i}')
    e(f'v_writelane_b32 v16, s{sRETRY}, 63')
    e(f's_lshl_b32 s{sT}, s2, 2'); e(f's_add_u32 s{sT}, s{sT}, s{sW}'); e(f's_lshl_b32 s{sT}, s{sT}, 8'); e(f's_add_u32 s{sT}, s{sT}, {WS_TS}')
    e(f'v_lshlrev_b32 v17, 2, v{vL}')
    e(f'buffer_store_dword v16, v17, {sr(sWS,4)}, s{sT} offen')
def stop(name, dump_lds=0):
    if STOP != name: return False
    k.wait(vm='all', lg='all'); e('s_barrier')
    if dump_lds:
        e(f's_lshl_b32 s{sT}, s{sW}, 10'); e(f'v_add_u32 v20, s{sT}, v{vL16}')
        e(f's_lshl_b32 s{sT}, s2, 16'); e(f's_add_u32 s{sT}, s{sT}, {WS_DBG}')
        for i in range(dump_lds // 4096):
            e(f'ds_read_b128 v[16:19], v20'); e('s_waitcnt lgkmcnt(0)')
            e(f'buffer_store_dwordx4 v[16:19], v20, {sr(sWS,4)}, s{sT} offen'); e('s_nop 1'); e('v_add_u32 v20, 4096, v20')
    finish_stamps(); e('s_endpgm')
    return True

def retry_site(check, reload, name, br='s_cbranch_vccnz'):
    slow, ok = k.lab('slow_' + name), k.lab('ok_' + name)
    e(f'{br} {slow}'); e(f'{ok}:')
    k.begin_tail()
    e(f'{slow}:')
    e(f's_cmp_eq_u32 s{sRETRY}, 0'); e(f's_cbranch_scc1 {ok}'); e(f's_sub_u32 s{sRETRY}, s{sRETRY}, 1')
    reload(); k.wait(vm='all', lg='all'); check(); k.wait(vm='all', lg='all')
    e(f'{br} {slow}'); e('s_nop 1'); e(f's_branch {ok}')
    k.end_tail()

def cnt_load(i, reg): k.vmem(f'buffer_load_dword v{reg}, off, {sr(sDBG,4)}, 0 offset:{64*i} sc1', f'cnt{i}')
def cnt_check(i, reg):
    chk = lambda: (e(f'v_readfirstlane_b32 s49, v{reg}'), e('s_nop 1'), e('s_cmp_lt_u32 s49, 32'))
    k.wait(vm=f'cnt{i}'); chk(); retry_site(chk, lambda: cnt_load(i, reg), f'cnt{i}', 's_cbranch_scc1')

class Stream:
    def __init__(s): s.ni = 0; s.nd = 0; s.limit = 4; s.pend = []
    def can_issue(s): return s.ni < 56 and s.ni < s.limit and s.ni - NSLOT < s.nd - len(s.pend)
    def issue_ops(s):
        n = s.ni; s.ni += 1; ops = []
        if n == 28:
            def sw():
                src_off(896)
                e(f's_lshl_b32 s{sSO}, s{sG}, 2'); e(f's_add_u32 s{sSO}, s{sSO}, s{sW}'); e(f's_mul_i32 s{sSO}, s{sSO}, {64*896}')
                e(f's_lshl_b32 s{sT}, s{sG}, 7'); e(f's_add_u32 s{sSO}, s{sSO}, s{sT}')
            ops.append(sw)
        srd = sr(sW1 if n < 28 else sW2, 4)
        def a():
            if n >= NSLOT: k.wait(lg=f'tr{n-NSLOT}')
            e(f's_add_u32 m0, s{sWA}, {(n % NSLOT)*2048}')
            k.vmem(f'buffer_load_dwordx4 v{vSa}, {srd}, s{sSO} offen lds', f'wa{n}')
        def b():
            k.vmem(f'buffer_load_dwordx4 v{vSb}, {srd}, s{sSO} offen offset:1024 lds', f'w{n}')
            if n < 27: e(f's_add_u32 s{sSO}, s{sSO}, {16*3584}')
            elif 28 <= n < 55:
                if (n - 28) % 4 != 3: e(f's_add_u32 s{sSO}, s{sSO}, {16*896}')
                else:
                    e(f's_add_u32 s{sSO}, s{sSO}, {208*896}'); e(f's_cmp_ge_u32 s{sSO}, {F*896}')
                    e(f's_cselect_b32 s{sT+9}, {F*896}, 0'); e(f's_sub_u32 s{sSO}, s{sSO}, s{sT+9}')
        return ops + [a, b]
    def can_drain(s): return s.nd < min(s.ni, 45)
    def drain_ops(s):
        n = s.nd; s.nd += 1; ops = []
        so = (n % NSLOT) * 2048
        def rd(u, h2):
            def f():
                k.wait(vm=f'w{n}')
                if n < 28: dst, ad, off = ar(8*n + 4*u + 2*h2, 2), vT1 + u, so + 512*h2
                else:
                    t = w2reg(n - 28, u); dst, ad, off = rn((t[0], t[1] + 2*h2), 2), vT2 + u, so + 1024*h2
                k.ds(f'ds_read_b64_tr_b16 {dst}, v{ad} offset:{off}', f'tr{n}')
            return f
        ops += [rd(0, 0), rd(0, 1), rd(1, 0), rd(1, 1)]
        return ops
    def cs_ops(s, n):
        def f(u):
            def g():
                k.wait(lg=f'tr{n}')
                acc = vr(224 + 16*u, 16)
                e(f'v_mfma_f32_32x32x16_bf16 {acc}, v[220:223], {w1f(n, u)}, {acc if n else 0}')
            return g
        return [f(0), f(1)]
    def issue(s, cnt):
        for _ in range(cnt):
            if s.can_issue():
                for f in s.issue_ops(): f()
    def pump(s, upto):
        while s.nd < min(upto, 45):
            s.issue(NSLOT)
            n = s.nd
            for f in s.drain_ops(): f()
            if 1 <= n < 28:
                for f in s.cs_ops(n - 1): f()
            if n == 27:
                for f in s.cs_ops(27): f()
                cs_finish()
        s.issue(NSLOT)
ws = Stream()
def src_off(stride):
    e(f'v_lshrrev_b32 v{vSa}, 3, v{vL}'); e(f'v_lshrrev_b32 v{vSb}, 2, v{vL}'); e(f'v_and_b32 v{vSb}, 4, v{vSb}')
    e(f'v_xor_b32 v{vSb}, v{vSb}, v{vL}'); e(f'v_and_b32 v{vSb}, 7, v{vSb}'); e(f'v_mul_u32_u24 v{vSa}, {stride}, v{vSa}')
    e(f'v_lshl_add_u32 v{vSa}, v{vSb}, 4, v{vSa}'); e(f'v_add_u32 v{vSb}, {8*stride-1024}, v{vSa}')
def cs_finish():
    for u in range(2):
        c = 224 + 16*u; t = c + 1; d = vCS + 2*u
        e(f'v_cvt_pk_bf16_f32 v{t}, v{c}, v{c}'); e(f'v_and_b32 v{t+1}, 0xffff0000, v{t}'); e(f'v_sub_f32 v{t+2}, v{c}, v{t+1}')
        e(f'v_cvt_pk_bf16_f32 v{d}, v{t+1}, v{t+2}'); e(f'v_and_b32 v{d+1}, 0xffff, v{t}')

def prologue():
    e('s_cmp_ge_u32 s2, 256'); e('s_cbranch_scc1 L_exit')
    e('s_load_dwordx2 s[8:9], s[0:1], 0'); e('s_load_dwordx4 s[4:7], s[0:1], 48')
    e('s_load_dwordx4 s[44:47], s[0:1], 64'); e('s_load_dwordx2 s[24:25], s[0:1], 80')
    e('v_lshrrev_b32 v1, 6, v0'); e('v_and_b32 v0, 63, v0'); e(f'v_readfirstlane_b32 s{sW}, v1'); e(f'v_lshlrev_b32 v{vL16}, 4, v0')
    for r, n in ((sX0, XB), (sW1, D*F*2), (sW2, D*F*2), (sOUT, XB), (sWS, 0x2000000 if (TS or STOP) else WS_END), (sDBG, 256)):
        e(f's_mov_b32 s{r+2}, {n}'); e(f's_mov_b32 s{r+3}, 0x20000')
    e('s_cmp_lt_u32 s2, 32'); e('s_cbranch_scc1 L_helper')
    if TS: e(f'{TSI} s[50:51]')
    e(f's_sub_u32 s3, s2, 32'); e(f's_lshr_b32 s{sT}, s3, 3'); e(f's_mul_i32 s{sT+1}, s{sT}, 37'); e(f's_lshr_b32 s{sT+1}, s{sT+1}, 8')
    e(f's_mul_i32 s{sG}, s{sT+1}, 7'); e(f's_sub_u32 s{sG}, s{sT}, s{sG}')
    e(f's_and_b32 s3, s3, 7'); e('s_lshl_b32 s3, s3, 1'); e(f's_lshr_b32 s{sT}, s{sT+1}, 1'); e(f's_add_u32 s3, s3, s{sT}')
    e(f's_sub_u32 s{sT}, 32, s3'); e('s_cmp_eq_u32 s3, 0'); e(f's_cselect_b32 s{sT}, 16, s{sT}')
    e(f's_bitcmp1_b32 s{sT+1}, 0'); e(f's_cselect_b32 s{sP}, s{sT}, s3')
    e(f's_sub_u32 s{sRB}, 64, s{sP}'); e(f's_cmp_eq_u32 s{sP}, 0'); e(f's_cselect_b32 s{sRB}, 32, s{sRB}')
    e(f's_mul_i32 s{sWA}, s{sW}, {WA_SZ}'); e(f's_add_u32 s{sWA}, s{sWA}, {L_WA}')
    e(f's_mov_b32 s{sRETRY}, 20000'); e(f's_mov_b32 s{sLO}, 0x3f80'); e(f's_mov_b32 s{sHI}, 0x3f800000')
def load_ptrs():
    e('s_waitcnt lgkmcnt(0)')
    e(f's_mov_b32 s{sW1}, s4'); e(f's_mov_b32 s{sW1+1}, s5'); e(f's_mov_b32 s{sW2}, s6'); e(f's_mov_b32 s{sW2+1}, s7')
    e(f's_mov_b32 s{sOUT}, s44'); e(f's_mov_b32 s{sOUT+1}, s45'); e(f's_mov_b32 s{sDBG}, s46'); e(f's_mov_b32 s{sDBG+1}, s47')

def helper():
    k.begin_tail()
    e('L_helper:')
    e('s_getpc_b64 s[48:49]'); e('L_pc:'); e(f's_sub_u32 s48, s48, L_pc-{KN}'); e('s_subb_u32 s49, s49, 0')
    e(f's_lshl_b32 s{sT}, s{sW}, 13'); e(f'v_lshl_add_u32 v2, v{vL}, 7, s{sT}')
    e(f'v_min_u32 v3, L_end-{KN}-4, v2'); e('global_load_dword v8, v3, s[48:49]')
    e('v_add_u32 v2, 0x8000, v2'); e(f'v_min_u32 v3, L_end-{KN}-4, v2'); e('global_load_dword v9, v3, s[48:49]')
    for i in range(4, 8): e(f'v_mov_b32 v{i}, -1')
    e(f's_lshl_b32 s{sT}, s{sW}, 10'); e(f'v_add_u32 v2, s{sT}, v{vL16}'); e('v_mov_b32 v10, 1')
    load_ptrs()
    for i, (base, n) in enumerate(((WS_U1, XB), (WS_H, S*F*2), (WS_U2, 2*XB))):
        per = n // 32; l = k.lab('fill')
        e(f's_mul_i32 s{sT}, s2, {per}'); e(f's_add_u32 s{sT}, s{sT}, {base}'); e(f's_mov_b32 s{sT+1}, {per // 4096 // 14}')
        e(f'{l}:')
        for j in range(14):
            e(f'buffer_store_dwordx4 v[4:7], v2, {sr(sWS,4)}, s{sT} offen sc1'); e(f's_add_u32 s{sT}, s{sT}, 4096')
        e(f's_sub_u32 s{sT+1}, s{sT+1}, 1'); e(f's_cmp_lg_u32 s{sT+1}, 0'); e(f's_cbranch_scc1 {l}')
        e('s_waitcnt vmcnt(0)'); e('s_barrier')
        l = k.lab('nosig'); e(f's_cmp_lg_u32 s{sW}, 0'); e(f's_cbranch_scc1 {l}')
        e('s_mov_b64 exec, 1'); e(f'buffer_atomic_add v10, off, {sr(sDBG,4)}, 0 offset:{64*i} sc1'); e('s_mov_b64 exec, -1')
        e(f'{l}:')
    e('L_exit:'); e('s_endpgm')
    k.end_tail()

def gen_H():
    ef, a0, tc, q8 = 72, 73, 74, 75
    P0, P1, PK = 76, 84, 92
    e(f'v_and_b32 v{ef}, 15, v{vL}'); e(f's_and_b32 s{sT}, s{sW}, 1'); e(f's_lshl_b32 s{sT+1}, s{sG}, 5'); e(f's_add_u32 s{sT}, s{sT}, s{sT+1}')
    e(f'v_lshl_add_u32 v{ef}, v{ef}, 1, s{sT}'); e(f'v_mov_b32 v{a0}, 224'); e(f'v_cmp_eq_u32 vcc, 0, v{ef}')
    e(f'v_lshrrev_b32 v{q8}, 4, v{vL}'); e(f'v_lshlrev_b32 v{q8}, 3, v{q8}')
    e(f'v_cndmask_b32 v{ef}, v{ef}, v{a0}, vcc'); e(f'v_cvt_f32_u32 v{q8}, v{q8}'); e(f'v_cvt_f32_u32 v{ef}, v{ef}')
    e(f's_cmp_ge_u32 s{sW}, 2'); e(f's_cselect_b32 s{sT}, {fl(-0.25)}, 0')
    e(f'v_mul_f32 v{ef}, {fl(1.0/448)}, v{ef}'); e(f'v_fma_f32 v{a0}, v{q8}, v{ef}, s{sT}')
    e(f'v_mul_f32 v{tc}, {fl(32.0)}, v{ef}'); e(f'v_cos_f32 v{tc}, v{tc}')
    e(f's_mul_i32 s{sT}, s{sW}, {7*1024}'); e(f's_add_u32 s{sT}, s{sT}, {L_H}'); e(f'v_add_u32 v{q8}, s{sT}, v{vL16}')
    e(f'v_add_f32 v{tc}, v{tc}, v{tc}')
    for kap in range(7):
        cur, prv = (P0, P1) if kap % 2 == 0 else (P1, P0)
        if kap < 2:
            for jj in range(8): e(f'v_fmamk_f32 v{cur+jj}, v{ef}, {fl(32.0*kap+jj)}, v{a0}')
            for jj in range(8): e(f'v_cos_f32 v{cur+jj}, v{cur+jj}')
        else:
            for jj in range(8): e(f'v_fma_f32 v{cur+jj}, v{tc}, v{prv+jj}, -v{cur+jj}')
        pk = PK + 4*(kap % 2)
        for m in range(4): e(f'v_cvt_pk_bf16_f32 v{pk+m}, v{cur+2*m}, v{cur+2*m+1}')
        k.ds(f'ds_write_b128 v{q8}, {vr(pk,4)} offset:{1024*kap}', 'Hw')
def gen_F(dst):
    mf, a0, t = 100, 101, 102
    T = 104
    e(f'v_bfe_u32 v{mf}, v{vL}, 1, 3'); e(f's_lshl_b32 s{sT}, s{sW}, 3'); e(f'v_add_u32 v{mf}, s{sT}, v{mf}')
    e(f'v_and_b32 v{t}, 1, v{vL}'); e(f'v_cvt_f32_u32 v{a0}, v{t}'); e(f'v_cmp_eq_u32 vcc, 0, v{mf}')
    e(f'v_lshlrev_b32 v{t}, 5, v{t}'); e(f'v_mul_f32 v{a0}, {fl(-0.25)}, v{a0}')
    e(f'v_cndmask_b32 v{mf}, v{mf}, v{t}, vcc'); e(f'v_cndmask_b32 v{a0}, v{a0}, 0, vcc')
    e(f'v_cvt_f32_u32 v{mf}, v{mf}'); e(f'v_lshrrev_b32 v{t}, 4, v{vL}'); e(f'v_lshlrev_b32 v{t}, 3, v{t}'); e(f'v_cvt_f32_u32 v{t}, v{t}')
    e(f'v_mul_f32 v{mf}, {fl(1.0/64)}, v{mf}'); e(f'v_fma_f32 v{a0}, v{t}, v{mf}, v{a0}')
    for k1 in range(2):
        for jj in range(8): e(f'v_fmamk_f32 v{T+8*k1+jj}, v{mf}, {fl(k1 + 32.0*(jj >> 2) + 2.0*(jj & 3))}, v{a0}')
    for i in range(16): e(f'v_cos_f32 v{T+i}, v{T+i}')
    for m in range(8): e(f'v_cvt_pk_f16_f32 v{dst+m}, v{T+2*m}, v{T+2*m+1}')
def gen_M(t0):
    j, s2f, ad = t0, t0 + 1, t0 + 2
    T = t0 + 4
    e(f'v_and_b32 v{j}, 31, v{vL}'); e(f'v_lshlrev_b32 v{j}, 6, v{j}')
    e(f'v_lshrrev_b32 v{s2f}, 5, v{vL}'); e(f's_lshl_b32 s{sT}, s{sW}, 3'); e(f'v_lshl_add_u32 v{s2f}, v{s2f}, 2, s{sT}'); e(f'v_cvt_f32_u32 v{s2f}, v{s2f}')
    e(f's_lshl_b32 s{sT}, s{sW}, 10'); e(f's_add_u32 s{sT}, s{sT}, {L_M}'); e(f'v_add_u32 v{ad}, s{sT}, v{vL16}')
    e(f's_cmp_eq_u32 s{sP}, 0'); e(f's_cselect_b32 s{sT}, {fl(0.25)}, 0')
    for pq in range(2):
        tf, a0 = T + 12, T + 13
        e(f'v_add_u32 v{tf}, s{sRB if pq else sP}, v{j}'); e(f'v_cvt_f32_u32 v{tf}, v{tf}'); e(f'v_mul_f32 v{tf}, {fl(1.0/2048)}, v{tf}')
        if pq: e(f'v_fma_f32 v{a0}, v{tf}, v{s2f}, s{sT}')
        else: e(f'v_mul_f32 v{a0}, v{tf}, v{s2f}')
        for jj in range(4): e(f'v_fmamk_f32 v{T+jj}, v{tf}, {fl(float(jj))}, v{a0}')
        for jj in range(4): e(f'v_sin_f32 v{T+4+jj}, v{T+jj}')
        for jj in range(4): e(f'v_cos_f32 v{T+jj}, v{T+jj}')
        for jj in range(4): e(f'v_cvt_pk_f16_f32 v{T+8+jj}, v{T+jj}, v{T+4+jj}')
        k.ds(f'ds_write_b128 v{ad}, {vr(T+8,4)} offset:{4096*pq}', 'Mw')
        k.wait(lg='Mw')

XF = lambda kap: 16 + 4 * kap
BORD = [0, 3, 4, 1, 5, 2, 6]
def phA_issue(half):
    if half == 0:
        va, vb = vA, vA + 1
        e(f'v_lshrrev_b32 v{va}, 3, v{vL}'); e(f'v_lshrrev_b32 v{vb}, 4, v{vL}'); e(f'v_xor_b32 v{vb}, v{vb}, v{vL}'); e(f'v_and_b32 v{vb}, 7, v{vb}')
        e(f'v_mul_u32_u24 v{va}, 57344, v{va}'); e(f'v_lshl_add_u32 v{va}, v{vb}, 4, v{va}')
        e(f'v_xor_b32 v{vb}, 64, v{va}'); e(f'v_add_u32 v{vb}, {8*57344-1024}, v{vb}')
        e(f's_lshr_b32 s{sT}, s{sW}, 1'); e(f's_lshl_b32 s{sT}, s{sT}, 5'); e(f's_add_u32 s{sT}, s{sT}, s{sP}')
        e(f's_and_b32 s{sT+1}, s{sW}, 1'); e(f's_lshl_b32 s{sT+1}, s{sT+1}, 10'); e(f's_add_u32 s{sT}, s{sT}, s{sT+1}'); e(f's_mul_i32 s3, s{sT}, 896')
        load_ptrs()
        if TS: e(f's_mov_b32 s{sTS}, s50'); nts[0] = 1; tsn.append('start')
        for b in BORD:
            e(f's_add_u32 m0, s{sWA}, {8192 + 2048*b}'); e(f's_add_u32 s{sT}, s3, {128*b}')
            k.vmem(f'buffer_load_dwordx4 v{va}, {sr(sX0,4)}, s{sT} offen lds', f'xa{b}')
            k.vmem(f'buffer_load_dwordx4 v{vb}, {sr(sX0,4)}, s{sT} offen offset:1024 lds', f'xb{b}')
    else:
        e(f's_lshr_b32 s{sT}, s{sW}, 1'); e(f's_lshl_b32 s{sT}, s{sT}, 5'); e(f's_add_u32 s{sT}, s{sT}, s{sP}'); e(f's_lshl_b32 s{sT}, s{sT}, 1')
        e(f's_and_b32 s{sT+1}, s{sW}, 1'); e(f's_add_u32 s{sT}, s{sT}, s{sT+1}'); e(f's_mul_i32 s{sT}, s{sT}, 14336'); e(f's_add_u32 s{sHS}, s{sT}, {WS_X2}')
        for i in range(1, 4): e(f's_add_u32 s{sHS+i}, s{sHS}, {4096*i}')
        x2_loads(0)
def x2_loads(first):
    for kp in range(first, 7):
        for kap in (kp, kp + 7):
            k.vmem(f'buffer_load_dwordx4 {vr(XF(kap),4)}, v{vL16}, {sr(sWS,4)}, s{sHS + kap//4} offen offset:{1024*(kap%4)} sc1', f'x{kap}')
def phA(half):
    aT = [72, 76, 84, 88]; aHi = {1: 80, 3: 92}; aS, aG = 96, 100
    HR = [104, 120]; ones = 136; Ff = 140; t = 148
    vh, vx = vA + 2, vA
    gen_H(); gen_F(Ff)
    for i in range(4): e(f'v_mov_b32 v{ones+i}, 0x3f803f80')
    e(f'v_add_u32 v{vh}, {L_H}, v{vL16}')
    if half == 0:
        e(f'v_and_b32 v{t}, 15, v{vL}'); e(f'v_lshrrev_b32 v{t+1}, 1, v{t}'); e(f'v_lshrrev_b32 v{t+2}, 4, v{vL}'); e(f'v_xor_b32 v{t+1}, v{t+1}, v{t+2}')
        e(f'v_lshlrev_b32 v{t}, 7, v{t}'); e(f'v_lshl_add_u32 v{t}, v{t+1}, 4, v{t}'); e(f's_add_u32 s{sT}, s{sWA}, 8192')
        e(f'v_add_u32 v{vx}, s{sT}, v{t}'); e(f'v_xor_b32 v{vx+1}, 64, v{vx}')
    mk = [0x1000010000100001, 0x2000020000200002, 0x4000040000400004, 0x8000080000800008]
    for i in range(4): e(f's_mov_b32 s{sMK+2*i}, {mk[i] & 0xffffffff:#x}'); e(f's_mov_b32 s{sMK+2*i+1}, {mk[i] >> 32:#x}')
    k.wait(lg='all'); e('s_barrier')
    stamp(f'A{half}.consts')
    def hread(kp):
        for tl in range(4): k.ds(f'ds_read_b128 {vr(HR[kp%2]+4*tl,4)}, v{vh} offset:{(7*tl+kp)*1024}', f'H{kp}')
    got = set()
    def xread(kp):
        for kap in (kp, kp + 7):
            b = kap // 2
            if b in got: continue
            got.add(b); k.wait(vm=f'xb{b}')
            for h in range(2): k.ds(f'ds_read_b128 {vr(XF(2*b+h),4)}, v{vx+h} offset:{2048*b}', f'xr{b}')
    hread(0)
    if half == 0: xread(0)
    for kp in range(7):
        lo, hi = vr(XF(kp), 4), vr(XF(kp+7), 4)
        if half == 0:
            k.wait(lg='all')
            if kp < 6: hread(kp + 1); xread(kp + 1)
        else:
            chk = lambda kp=kp: (e(f'v_max_u32 v{t}, v{XF(kp)}, v{XF(kp+7)}'), e(f'v_cmp_eq_u32 vcc, -1, v{t}'))
            k.wait(vm=f'x{kp+7}', lg='all'); chk()
            if kp < 6: hread(kp + 1)
            retry_site(chk, lambda kp=kp: x2_loads(kp), f'x2_{kp}')
        c = lambda a: vr(a, 4) if kp else '0'
        mm = lambda d, a, b, cc: e(f'v_mfma_f32_16x16x32_bf16 {vr(d,4)}, {a}, {b}, {cc}')
        mm(aS, vr(ones, 4), lo, c(aS)); mm(aG, lo, lo, c(aG)); mm(aS, vr(ones, 4), hi, vr(aS, 4)); mm(aG, hi, hi, vr(aG, 4))
        for tl in range(4): mm(aT[tl], vr(HR[kp%2]+4*tl, 4), lo, c(aT[tl]))
        for tl in range(4):
            if tl in aHi: mm(aHi[tl], vr(HR[kp%2]+4*tl, 4), hi, c(aHi[tl]))
            else: mm(aT[tl], vr(HR[kp%2]+4*tl, 4), hi, vr(aT[tl], 4))
    if half == 0:
        ws.limit = 56; cnt_load(0, t + 3)
    e(f'v_cndmask_b32 v{t}, 0, v{aG}, {sr(sMK,2)}')
    for r in range(1, 4): e(f'v_cndmask_b32 v{t}, v{t}, v{aG+r}, {sr(sMK+2*r,2)}')
    e(f'v_mul_f32 v{aS}, {fl(1.0/448)}, v{aS}')
    for sw in ('16', '32'):
        e(f'v_mov_b32 v{t+1}, v{t}'); e(f'v_permlane{sw}_swap_b32 v{t}, v{t+1}'); e(f'v_add_f32 v{t}, v{t}, v{t+1}')
    e(f'v_mul_f32 v{aS}, v{aS}, v{aS}'); e(f'v_fmamk_f32 v{t}, v{t}, {fl(-1.0/448)}, v{aS}')
    e(f'v_min_f32 v{t}, 0, v{t}'); e(f'v_sub_f32 v{t}, {fl(1e-5)}, v{t}'); e(f'v_rsq_f32 v{t}, v{t}')
    for tl in (1, 3):
        for r in range(4): e(f'v_sub_f32 v{aT[tl]+r}, v{aT[tl]+r}, v{aHi[tl]+r}')
    e(f'v_and_b32 v{t+1}, 15, v{vL}'); e(f'v_lshrrev_b32 v{t+2}, 4, v{vL}'); e(f'v_lshlrev_b32 v{t+1}, 5, v{t+1}'); e(f'v_lshl_add_u32 v{t+1}, v{t+2}, 3, v{t+1}')
    e(f's_lshl_b32 s{sT}, s{sW}, 9'); e(f'v_add_u32 v{t+1}, s{sT}, v{t+1}')
    for tl in range(4):
        for r in range(4): e(f'v_mul_f32 v{aT[tl]+r}, v{aT[tl]+r}, v{t}')
        for m in range(2): e(f'v_cvt_pk_f16_f32 v{aT[tl]+m}, v{aT[tl]+2*m}, v{aT[tl]+2*m+1}')
        k.ds(f'ds_write_b64 v{t+1}, {vr(aT[tl],2)} offset:{L_C + 2048*tl}', 'cw')
    e(f'v_lshlrev_b32 v{t+2}, 3, v{vL}')
    vu, k1 = vA, vA + 1
    e(f'v_lshrrev_b32 v{vu}, 4, v{vL}'); e(f's_lshl_b32 s{sT}, s{sW}, 2'); e(f'v_add_u32 v{vu}, s{sT}, v{vu}'); e(f'v_cmp_eq_u32 vcc, 0, v{vu}')
    e(f'v_mul_u32_u24 v{vu}, {2*57344}, v{vu}'); e(f'v_and_b32 v{k1}, 15, v{vL}'); e(f'v_lshl_add_u32 v{vu}, v{k1}, 4, v{vu}')
    e(f'v_cndmask_b32 v{k1}, -1.0, 0, vcc')
    e(f's_mul_i32 s{sT}, s{sP}, 7'); e(f's_add_u32 s{sT}, s{sT}, s{sG}'); e(f's_lshl_b32 s{sT}, s{sT}, 8'); e(f's_add_u32 s{sT}, s{sT}, {WS_U2 if half else WS_U1}')
    e(f's_add_u32 s{sT+1}, s{sT}, 57344')
    k.wait(lg='all'); e('s_barrier')
    stamp(f'A{half}.hdft')
    cf = lambda tl, k1_: 16 + 8*tl + 4*k1_
    for k1_ in range(2):
        for tl in range(4):
            for h2 in range(2): k.ds(f'ds_read_b64_tr_b16 {vr(cf(tl,k1_)+2*h2,2)}, v{t+2} offset:{L_C + 2048*tl + 1024*k1_ + 512*h2}', f'c{tl}{k1_}')
    if half == 0: cnt_check(0, t + 3)
    Dt = lambda tl: 48 + 4*tl
    for k1_ in range(2):
        for tl in range(4):
            k.wait(lg=f'c{tl}{k1_}')
            e(f'v_mfma_f32_16x16x32_f16 {vr(Dt(tl),4)}, {vr(Ff+4*k1_,4)}, {vr(cf(tl,k1_),4)}, {vr(Dt(tl),4) if k1_ else 0}')
    for pp in range(2):
        kk1 = f'v{k1}' if pp == 0 else '-1.0'; nk1 = f'-v{k1}' if pp == 0 else '1.0'
        for u in range(2):
            CA, SA, CB, SB = Dt(u) + 2*pp, Dt(u) + 2*pp + 1, Dt(2+u) + 2*pp, Dt(2+u) + 2*pp + 1
            o = 64 + 8*pp + 4*u
            e(f'v_fma_f32 v{o}, {kk1}, v{SB}, v{CA}'); e(f'v_fma_f32 v{o+1}, {kk1}, v{SA}, -v{CB}')
            e(f'v_fma_f32 v{o+2}, {nk1}, v{CA}, v{SB}'); e(f'v_fma_f32 v{o+3}, {kk1}, v{CB}, v{SA}')
        for m in range(4): e(f'v_cvt_pk_f16_f32 v{80+4*pp+m}, v{64+8*pp+2*m}, v{64+8*pp+2*m+1}')
        k.vmem(f'buffer_store_dwordx4 {vr(80+4*pp,4)}, v{vu}, {sr(sWS,4)}, s{sT+pp} offen sc1', 'Ust')
    stamp(f'A{half}.ust')

def US(half): return 16 if half == 0 else 256
def TOFF(half): return 32 * 912 if half == 0 else 28672
def rowaddr(half, dst, j, t):
    if half == 0: e(f'v_mul_u32_u24 v{dst}, 912, v{j}')
    else:
        e(f'v_lshrrev_b32 v{t}, 4, v{j}'); e(f'v_mul_u32_u24 v{t}, 14336, v{t}'); e(f'v_and_b32 v{dst}, 15, v{j}'); e(f'v_lshl_add_u32 v{dst}, v{dst}, 4, v{t}')
def resid_dma(half):
    e(f's_cmp_ge_u32 s{sW}, 2'); e(f's_cselect_b32 s{sT}, s{sRB}, s{sP}'); e(f's_and_b32 s{sT+1}, s{sW}, 1')
    if half == 0:
        e(f's_lshl_b32 s{sT+1}, s{sT+1}, 10'); e(f's_add_u32 s{sT}, s{sT}, s{sT+1}'); e(f's_mul_i32 s{sT}, s{sT}, 896')
        e(f's_mul_i32 s{sT+1}, s{sW}, {16*912}'); e('s_mov_b32 exec_hi, 0x00ffffff')
        for r in range(16):
            e(f's_add_u32 m0, s{sT+1}, {L_X + 912*r}')
            if r: e(f's_add_u32 s{sT}, s{sT}, 57344')
            k.vmem(f'buffer_load_dwordx4 v{vL16}, {sr(sX0,4)}, s{sT} offen lds', 'img')
        e('s_mov_b32 exec_hi, -1')
    else:
        e(f's_lshl_b32 s{sT}, s{sT}, 1'); e(f's_add_u32 s{sT}, s{sT}, s{sT+1}'); e(f's_mul_i32 s{sT}, s{sT}, 14336'); e(f's_add_u32 s{sT}, s{sT}, {WS_X2}')
        e(f's_mul_i32 s{sT+1}, s{sW}, 14336')
        for i in range(14):
            if i % 4 == 0:
                e(f's_add_u32 m0, s{sT+1}, {L_X + 1024*i}')
                if i: e(f's_add_u32 s{sT}, s{sT}, 4096')
                else: e('s_nop 0')
            k.vmem(f'buffer_load_dwordx4 v{vL16}, {sr(sWS,4)}, s{sT} offen offset:{1024*(i%4)} sc1 lds', 'img')
def phB(half):
    us = US(half); RAW = lambda kap: 16 + 16*kap; ACC = lambda u, pq: 80 + 32*pq + 16*u; MF = 144
    vu, vd, vmP, vmQ = vA, vA + 1, vA + 2, vA + 3
    t = 80
    e('s_barrier')
    resid_dma(half)
    if half == 0: gen_M(96)
    vu2 = vSa if half else 152
    e(f'v_bfe_u32 v{t}, v{vL}, 2, 1'); e(f'v_bfe_u32 v{t+1}, v{vL}, 3, 2'); e(f'v_and_b32 v{t+2}, 3, v{vL}')
    e(f'v_lshl_add_u32 v{t+1}, v{t}, 2, v{t+1}'); e(f'v_lshl_add_u32 v{t+1}, v{t+1}, 2, v{t+2}'); e(f's_mul_i32 s{sT+2}, s{sW}, 448')
    e(f'v_lshl_add_u32 v{t+1}, v{t+1}, 4, s{sT+2}'); e(f'v_subrev_u32 v{t}, 1792, v{t+1}'); e(f'v_min_u32 v{t+1}, v{t}, v{t+1}')
    e(f'v_lshrrev_b32 v{t+2}, 5, v{vL}'); e(f'v_mul_u32_u24 v{t}, 7168, v{t+2}'); e(f'v_add_u32 v{vu}, v{t}, v{t+1}'); e(f'v_add_u32 v{vu2}, 3584, v{vu}')
    e(f's_mul_i32 s{sHS}, s{sP}, 57344'); e(f's_add_u32 s{sHS}, s{sHS}, {WS_U2 if half else WS_U1}')
    for i in range(1, 4): e(f's_add_u32 s{sHS+i}, s{sHS}, {14336*i}')
    if half == 0: ws.pump(OPT.get('pumpB', 28))
    k.wait(vm='Ust')
    stamp(f'B{half}.ack')
    def uloads(first):
        for kap in range(first, 4):
            for jj in range(4):
                k.vmem(f'buffer_load_dwordx4 {vr(RAW(kap)+4*jj,4)}, v{vu if jj < 2 else vu2}, {sr(sWS,4)}, s{sHS+kap} offen offset:{1792*(jj%2)} sc1', f'U{kap}')
    uloads(0)
    j, a = t + 3, t + 4
    e(f'v_and_b32 v{j}, 31, v{vL}'); e(f's_mul_i32 s{sT}, s{sW}, 7'); e(f'v_lshl_add_u32 v{a}, v{t+2}, 2, s{sT}')
    rowaddr(half, vd, j, t); e(f'v_mul_u32_u24 v{t+1}, {us}, v{a}'); e(f'v_add_u32 v{vd}, v{vd}, v{t+1}')
    e(f'v_sub_u32 v{a}, {52*us}, v{t+1}')
    e(f's_cmp_eq_u32 s{sP}, 0'); e(f's_cselect_b32 s{sT}, 32, 63'); e(f's_cselect_b32 s{sT+1}, 31, 63'); e(f's_cselect_b32 s{sT+2}, 63, 31')
    e(f'v_sub_u32 v{t+5}, s{sT}, v{j}'); e(f'v_and_b32 v{t+5}, s{sT+1}, v{t+5}'); rowaddr(half, vmP, t + 5, t); e(f'v_add_u32 v{vmP}, v{vmP}, v{a}')
    e(f'v_sub_u32 v{t+5}, s{sT+2}, v{j}'); rowaddr(half, vmQ, t + 5, t); e(f'v_add_u32 v{vmQ}, v{vmQ}, v{a}')
    e(f's_cmp_eq_u32 s{sW}, 0'); e(f's_cselect_b32 s{sMK}, 0, -1'); e(f's_mov_b32 s{sMK+1}, -1')
    k.wait(vm='img')
    if half:
        def chk():
            e(f's_mul_i32 s{sT}, s{sW}, 14336'); e(f'v_add_u32 v{t}, s{sT}, v{vL16}')
            for i in range(14): k.ds(f'ds_read_b32 v{t+2+i}, v{t} offset:{L_X + 1024*i}', 'ic')
            k.wait(lg='all'); e(f'v_max_u32 v{t+1}, v{t+2}, v{t+3}')
            for i in range(6): e(f'v_max3_u32 v{t+1}, v{t+1}, v{t+4+2*i}, v{t+5+2*i}')
            e(f'v_cmp_eq_u32 vcc, -1, v{t+1}')
        chk(); retry_site(chk, lambda: resid_dma(1), 'img')
    k.wait(lg='all'); e('s_barrier')
    vm = vSb if half else 153
    e(f'v_add_u32 v{vm}, {L_M}, v{vL16}')
    mread = lambda kap, pq: k.ds(f'ds_read_b128 {vr(MF+4*pq,4)}, v{vm} offset:{4096*pq + 1024*kap}', f'M{pq}')
    mread(0, 0); mread(0, 1)
    XU = lambda pq, b, mir: RAW(2*pq + (b >> 1)) + 8*(b & 1) + 4*mir
    def xread(pq, b):
        k.ds(f'ds_read_b128 {vr(XU(pq,b,0),4)}, v{vd} offset:{L_X + pq*TOFF(half) + b*us}', f'xd{pq}{b}')
        k.ds(f'ds_read_b128 {vr(XU(pq,b,1),4)}, v{vmQ if pq else vmP} offset:{L_X + (3-b)*us}', f'xm{pq}{b}')
    tc = vT1 if half else 154
    for kap in range(4):
        R = RAW(kap)
        chk = lambda R=R: (e(f'v_max3_u32 v{tc}, v{R}, v{R+4}, v{R+8}'), e(f'v_max_u32 v{tc}, v{tc}, v{R+12}'), e(f'v_cmp_eq_u32 vcc, -1, v{tc}'))
        k.wait(vm=f'U{kap}'); chk(); retry_site(chk, lambda kap=kap: uloads(kap), f'U{half}{kap}')
        if kap == 3: stamp(f'B{half}.Uin')
        for i, jx in ((0, 1), (0, 2), (0, 3), (1, 2), (2, 3), (1, 3)): e(f'v_swap_b32 v{R+4*i+jx}, v{R+4*jx+i}')
        for pq in range(2):
            k.wait(lg=f'M{pq}')
            for u in range(2):
                A = ACC(u, pq); e(f'v_mfma_f32_32x32x16_f16 {vr(A,16)}, {vr(R+4*(2*u+pq),4)}, {vr(MF+4*pq,4)}, {vr(A,16) if kap else 0}')
            if kap < 3: mread(kap + 1, pq)
        xread(kap >> 1, 2*(kap & 1)); xread(kap >> 1, 2*(kap & 1) + 1)
    T = MF
    sel = lambda hi: f's{sHI if hi else sLO}'
    for pq in range(2):
        Y = lambda b, n: ACC(n & 1, pq) + 4*b + (n >> 1)
        e(f'v_mov_b32 v{vu}, v{Y(0,0)}'); e(f'v_cndmask_b32 v{Y(0,0)}, 0, v{Y(0,0)}, {sr(sMK,2)}'); e(f'v_permlane32_swap_b32 v{vu}, v{tc}')
        for b in range(4):
            if b == 3: e('s_mov_b32 exec_hi, 0')
            xd, xm = XU(pq, b, 0), XU(pq, b, 1)
            k.wait(lg=f'xm{pq}{b}')
            for n in range(8): e(f'v_dot2_f32_bf16 v{T+n}, v{xd + (n >> 1)}, {sel(n & 1)}, v{Y(b,n)}')
            e(f'v_dot2_f32_bf16 v{Y(b,0)}, v{xm}, {sel(0)}, v{Y(b+1,0) if b < 3 else tc}')
            for m in range(1, 8): e(f'v_dot2c_f32_bf16 v{Y(b,8-m)}, {sel(m & 1)}, v{xm + (m >> 1)}')
            for m in range(4): e(f'v_cvt_pk_bf16_f32 v{xd+m}, v{T+2*m}, v{T+2*m+1}')
            k.ds(f'ds_write_b128 v{vd}, {vr(xd,4)} offset:{L_X + pq*TOFF(half) + b*us}', 'xw')
            for m in range(4): e(f'v_cvt_pk_bf16_f32 v{xm+m}, v{Y(b,(8-2*m)%8)}, v{Y(b,7-2*m)}')
            k.ds(f'ds_write_b128 v{vmQ if pq else vmP}, {vr(xm,4)} offset:{L_X + (3-b)*us}', 'xw')
        e('s_mov_b32 exec_hi, -1')

def run_slots(slots, fillers, per):
    q = []
    for i, (mf, pre, post) in enumerate(slots):
        q += fillers.pop(i, [])
        mf()
        for f in pre: f()
        n = per - len(pre)
        while q and n > 0:
            f = q.pop(0)
            if f is None: break
            f(); n -= 1
        for f in post: f()
    return q
def ffn(half):
    us = US(half); toff = TOFF(half)
    vb, vs, vst, vh = vA, vA + 1, vA + 2, vA + 3
    BR = lambda i: B[5] + 4*(i % 3); MFR = B[5] + 12; t = B[5] + 14
    e(f'v_and_b32 v{t}, 31, v{vL}'); rowaddr(half, vb, t, t + 1); e(f'v_lshlrev_b32 v{vst}, 3, v{t}'); e(f'v_add_u32 v{vst}, {L_ST}, v{vst}')
    e(f'v_lshrrev_b32 v{t}, 5, v{vL}'); e(f'v_mul_u32_u24 v{t}, {us}, v{t}'); e(f'v_add_u32 v{vb}, v{vb}, v{t}')
    e(f'v_lshrrev_b32 v{t}, 3, v{vL}'); e(f's_lshl_b32 s{sT}, s{sW}, 3'); e(f'v_add_u32 v{t}, s{sT}, v{t}'); rowaddr(half, vs, t, t + 1)
    e(f'v_lshlrev_b32 v{vh}, 3, v{t}'); e(f'v_add_u32 v{vh}, {L_ST}, v{vh}')
    e(f'v_and_b32 v{t}, 7, v{vL}'); e(f'v_mul_u32_u24 v{t}, {us}, v{t}'); e(f'v_add_u32 v{vs}, v{vs}, v{t}')
    vres = B[4]
    if half == 0:
        e(f'v_and_b32 v{t}, 7, v{vL}'); e(f'v_add_u32 v{t}, s{sT}, v{t}'); rowaddr(half, vres, t, t + 1)
        e(f'v_lshrrev_b32 v{t}, 3, v{vL}'); e(f'v_mul_u32_u24 v{t}, {us}, v{t}'); e(f'v_add_u32 v{vres}, v{vres}, v{t}')
    else: e(f'v_mov_b32 v{vres}, v{vs}')
    e(f's_mul_i32 s{sT+1}, s{sG}, {8*us}'); e(f'v_add_u32 v{vres}, s{sT+1}, v{vres}')
    e(f's_mul_i32 s{sT}, s{sP}, {2*7*16384}'); e(f's_lshl_b32 s{sT+1}, s{sW}, 12'); e(f's_add_u32 s{sT}, s{sT}, s{sT+1}'); e(f's_add_u32 s{sT}, s{sT}, {WS_H}')
    for jp in range(7):
        e(f's_add_u32 s{sT+1}, s{sG}, {jp}'); e(f's_sub_u32 s{sT+2}, s{sT+1}, 7'); e(f's_min_u32 s{sT+1}, s{sT+1}, s{sT+2}')
        e(f's_lshl_b32 s{sT+1}, s{sT+1}, 14'); e(f's_add_u32 s{sHS+jp}, s{sT}, s{sT+1}')
    e(f's_mov_b32 s{sMK}, -1'); e(f's_mov_b32 s{sMK+1}, 0'); e(f's_mov_b32 s{sMK+2}, 0x80008000')
    vh1 = vT1
    if half == 0: ws.pump(OPT.get('pumpC', 56))
    e(f'v_add_u32 v{vh1}, {7*16384}, v{vL16}')
    k.wait(lg='all'); e('s_barrier')
    stamp(f'B{half}.end')
    if stop(f'B{half}', 61440): return True
    hvo = lambda T: vh1 if T else vL16
    ACC1 = lambda T, u: B[2*T + u]
    bread = lambda i: (lambda: k.ds(f'ds_read_b128 {vr(BR(i),4)}, v{vb} offset:{L_X + (i//28)*toff + 2*(i%28)*us}', f'B{i}'))
    bread(0)(); bread(1)()
    for T in range(2): k.ds(f'ds_read_b128 {vr(vR+4*T,4)}, v{vres} offset:{L_X + T*toff}', 'res')
    def stats_ops(T):
        ops = []; SB = lambda j: B[6] + 4*(j % 2); s1, s2, lo, hi = B[6] + 8, B[6] + 9, B[6] + 10, B[6] + 12
        rd = lambda j: (lambda: k.ds(f'ds_read_b128 {vr(SB(j),4)}, v{vs} offset:{L_X + T*toff + 8*j*us}', f'S{T}{j}'))
        E = lambda s_: (lambda: e(s_))
        ops += [rd(0), rd(1), None]
        for j in range(7):
            for m in range(4):
                l_, h_ = lo + m % 2, hi + m % 2
                first = j == 0 and m == 0
                ops.append((lambda j=j, m=m, l_=l_: (k.wait(lg=f'S{T}{j}'), e(f'v_lshlrev_b32 v{l_}, 16, v{SB(j)+m}'))))
                ops.append(E(f'v_and_b32 v{h_}, 0xffff0000, v{SB(j)+m}'))
                if m == 3 and j + 2 < 7: ops.append(rd(j + 2))
                if first:
                    ops += [E(f'v_add_f32 v{s1}, v{l_}, v{h_}'), E(f'v_mul_f32 v{s2}, v{l_}, v{l_}'), E(f'v_fmac_f32 v{s2}, v{h_}, v{h_}')]
                else:
                    ops += [E(f'v_add_f32 v{s1}, v{s1}, v{l_}'), E(f'v_fmac_f32 v{s2}, v{l_}, v{l_}'), E(f'v_add_f32 v{s1}, v{s1}, v{h_}'), E(f'v_fmac_f32 v{s2}, v{h_}, v{h_}')]
        for c in ('quad_perm:[1,0,3,2]', 'quad_perm:[2,3,0,1]', 'row_half_mirror'):
            ops.append(None)
            for r in (s1, s2): ops.append(E(f'v_add_f32_dpp v{r}, v{r}, v{r} {c} row_mask:0xf bank_mask:0xf'))
        ops += [E(f'v_mul_f32 v{s1}, {fl(-1.0/448)}, v{s1}'), E(f'v_mul_f32 v{lo}, v{s1}, v{s1}'), E(f'v_fmamk_f32 v{s2}, v{s2}, {fl(-1.0/448)}, v{lo}'),
                E(f'v_min_f32 v{s2}, 0, v{s2}'), E(f'v_sub_f32 v{s2}, {fl(1e-5)}, v{s2}'), E(f'v_rsq_f32 v{s2}, v{s2}'), None,
                lambda: k.ds(f'ds_write_b64 v{vh}, {vr(s1,2)} offset:{256*T}', 'stw'), None,
                lambda: (k.wait(lg='stw'), e('s_barrier')), None,
                lambda: k.ds(f'ds_read_b32 v{t}, v{vst} offset:{256*T}', 'm'), None, None, None,
                lambda: (k.wait(lg='m'), e(f'v_cndmask_b32 v{t}, 0, v{t}, {sr(sMK,2)}')), E(f'v_cvt_pk_bf16_f32 v{MFR}, v{t}, v{t}'),
                E(f'v_and_b32 v{t+1}, 0xffff0000, v{MFR}'), E(f'v_sub_f32 v{t}, v{t}, v{t+1}'), E(f'v_cvt_pk_bf16_f32 v{MFR+1}, v{t}, 0')]
        return ops
    OWN = [B[4], B[6]]
    def epi1_ops(T):
        ops = []; E = lambda s_: (lambda: e(s_)); ng = '-' if half else ''
        for u in range(2):
            for be in range(2):
                d = OWN[T] + 8*u + 4*be; a = ACC1(T, u) + 8*be
                ops += [E(f'v_cvt_pk_bf16_f32 v{d+m}, {ng}v{a+2*m}, {ng}v{a+2*m+1}') for m in range(4)]
                ops += [E(f'v_pk_max_u16 v{d+m}, v{d+m}, s{sMK+2}' if half else f'v_pk_max_i16 v{d+m}, v{d+m}, 0') for m in range(4)]
                ops.append(lambda d=d, u=u, be=be: k.vmem(f'buffer_store_dwordx4 {vr(d,4)}, v{hvo(T)}, {sr(sWS,4)}, s{sHS} offen offset:{1024*(2*u+be)} sc1', 'hst'))
        return ops
    HB = {(0, 0): B[4], (0, 1): B[0], (0, 2): B[1], (0, 3): B[7], (0, 4): B[4], (0, 5): B[0], (0, 6): B[1],
          (1, 0): B[6], (1, 1): B[7], (1, 2): B[4], (1, 3): B[6], (1, 4): B[7], (1, 5): B[4], (1, 6): B[6]}
    inflight = []
    def hload(T, jp, i, track=True):
        def f():
            k.vmem(f'buffer_load_dwordx4 {vr(HB[T,jp]+4*i,4)}, v{hvo(T)}, {sr(sWS,4)}, s{sHS+jp} offen offset:{1024*i} sc1', f'h{T}{jp}')
            if track: inflight.append((T, jp, i))
        return f
    slots = []
    for T in range(2):
        for kap in range(28):
            i = 28*T + kap
            for u in range(2):
                A = ACC1(T, u)
                mf = lambda A=A, kap=kap, u=u, i=i: (k.wait(lg=f'B{i}'), e(f'v_mfma_f32_32x32x16_bf16 {vr(A,16)}, {w1f(kap,u)}, {vr(BR(i),4)}, {vr(A,16) if kap else 0}'))
                slots.append((mf, [bread(i + 2)] if (u == 0 and i + 2 < 56) else [], []))
        for u in range(2):
            A = ACC1(T, u)
            slots.append((lambda A=A, u=u: e(f'v_mfma_f32_32x32x8_bf16 {vr(A,16)}, {vr(vCS+2*u,2)}, {vr(MFR,2)}, {vr(A,16)}'), [], []))
    q = run_slots(slots[:56], {0: stats_ops(0)}, 5); assert not q
    chk1 = []
    if half == 0: cnt_load(1, B[7]); chk1 = [lambda: cnt_check(1, B[7]), None]
    hq = OPT['hq_slot'] - 56
    for n, (jp, i) in enumerate((jp, i) for jp in (1, 2, 3) for i in range(4)):
        sl = 56 + hq + 2*n + 1
        assert sl < 116; slots[sl][1].append(hload(0, jp, i))
    q = run_slots(slots[56:114], {3: chk1 + epi1_ops(0) + stats_ops(1)}, 5)
    for f in q:
        if f: f()
    run_slots(slots[114:], {}, 5)
    stamp(f'C{half}.g1')
    for f in epi1_ops(1): f()
    if stop(f'C{half}'): return True
    ACC2 = lambda T, v: (B[2 + v] if T == 0 else B[v])
    AR = lambda kk, v: B[5] + 8*(kk % 2) + 4*v
    def aread(kk, v, h2):
        so = ((28 + kk) % NSLOT) * 2048
        def f():
            k.wait(vm=f'w{28+kk}')
            k.ds(f'ds_read_b64_tr_b16 {vr(AR(kk,v)+2*h2,2)}, v{vT2+v} offset:{so + 1024*h2}', f'A{kk}{v}')
        return f
    tc = vb
    def hcheck(T, jp):
        R = HB[T, jp]
        def chk():
            if half == 0:
                e(f'v_or3_b32 v{tc}, v{R}, v{R+4}, v{R+8}'); e(f'v_or_b32 v{tc}, v{tc}, v{R+12}'); e(f'v_cmp_gt_i32 vcc, 0, v{tc}')
            else:
                e(f'v_bitop3_b32 v{tc}, v{R}, v{R+4}, v{R+8} bitop3:0x80'); e(f'v_and_b32 v{tc}, v{tc}, v{R+12}'); e(f'v_cmp_le_i32 vcc, 0, v{tc}')
        def pre(): k.wait(vm=f'h{T}{jp}'); chk()
        def br():
            todo = [x for x in inflight if x[:2] >= (T, jp)]
            retry_site(chk, lambda: [hload(*x, track=False)() for x in todo], f'h{half}{T}{jp}')
        return pre, br
    RS = 1088; vrw, vrr, vo = vL16, vs, vh
    tau, cc = B[5], B[5] + 1
    if half == 0: e(f'v_and_b32 v{tau}, 7, v{vL}'); e(f'v_lshrrev_b32 v{cc}, 3, v{vL}')
    else: e(f'v_lshrrev_b32 v{tau}, 3, v{vL}'); e(f'v_and_b32 v{cc}, 7, v{vL}')
    e(f's_lshl_b32 s{sT}, s{sW}, 3'); e(f'v_add_u32 v{tau}, s{sT}, v{tau}')
    e(f'v_mul_u32_u24 v{vrr}, {RS}, v{cc}'); e(f'v_lshl_add_u32 v{vrr}, v{tau}, 4, v{vrr}')
    e(f'v_lshlrev_b32 v{vst}, 3, v{tau}'); e(f'v_add_u32 v{vst}, {L_ST + 4}, v{vst}')
    if half == 0:
        rowaddr(1, vo, tau, cc + 1); e(f'v_lshl_add_u32 v{vo}, v{cc}, 8, v{vo}')
        for T in range(2):
            e(f's_mul_i32 s{sMK+4+T}, s{sRB if T else sP}, 28672'); e(f's_lshl_b32 s{sT}, s{sG}, 11'); e(f's_add_u32 s{sMK+4+T}, s{sMK+4+T}, s{sT}'); e(f's_add_u32 s{sMK+4+T}, s{sMK+4+T}, {WS_X2}')
    else:
        e(f'v_mul_u32_u24 v{vo}, 57344, v{tau}'); e(f'v_lshl_add_u32 v{vo}, v{cc}, 4, v{vo}')
        for T in range(2):
            e(f's_mul_i32 s{sMK+4+T}, s{sRB if T else sP}, 896'); e(f's_lshl_b32 s{sT}, s{sG}, 7'); e(f's_add_u32 s{sMK+4+T}, s{sMK+4+T}, s{sT}')
    vrwb = vT1 + 1
    e(f's_mul_i32 s{sT}, s{sW}, {8*RS}'); e(f'v_add_u32 v{vrwb}, s{sT}, v{vL16}')
    def red_write_ops(T):
        ops = []
        for c in range(8):
            ops += [lambda c=c: k.ds(f'ds_write_b128 v{vrwb}, {vr(ACC2(T, c >> 2) + 4*(c & 3), 4)} offset:{L_RED + RS*c}', 'rw'), None, None]
        return ops
    def red_final_ops(T, PB, rr):
        ops = []; E = lambda s_: (lambda: e(s_)); x = vR + 4*T
        ops.append(lambda: k.ds(f'ds_read_b32 v{rr}, v{vst} offset:{256*T}', 'r'))
        for pw in range(4):
            for h in range(2): ops.append(lambda pw=pw, h=h: k.ds(f'ds_read_b128 {vr(PB+8*pw+4*h,4)}, v{vrr} offset:{L_RED + 8*RS*pw + 512*h}', f'p{pw}'))
            ops.append(None)
        ops += [None, None]
        for pw in range(1, 4):
            for n in range(8):
                ops.append(lambda pw=pw, n=n: (k.wait(lg=f'p{pw}'), e(f'v_add_f32 v{PB+n}, v{PB+n}, v{PB+8*pw+n}')))
        for n in range(8):
            ops.append(E(f'v_and_b32 v{PB+8+n}, 0xffff0000, v{x + n//2}' if n & 1 else f'v_lshlrev_b32 v{PB+8+n}, 16, v{x + n//2}'))
        for n in range(8): ops.append(E(f'v_fma_f32 v{PB+n}, {"-" if half else ""}v{rr}, v{PB+n}, v{PB+8+n}'))
        for m in range(4): ops.append(E(f'v_cvt_pk_bf16_f32 v{x+m}, v{PB+2*m}, v{PB+2*m+1}'))
        if half == 0: ops.append(lambda: k.vmem(f'buffer_store_dwordx4 {vr(x,4)}, v{vo}, {sr(sWS,4)}, s{sMK+4+T} offen sc1', 'xst'))
        else: ops.append(lambda: k.vmem(f'buffer_store_dwordx4 {vr(x,4)}, v{vo}, {sr(sOUT,4)}, s{sMK+4+T} offen', 'xst'))
        return ops
    t1g = OPT['t1_grp']
    nxt = {(0, 0): (0, 4), (0, 1): (0, 5), (0, 2): (0, 6), (0, t1g): (1, 1), (0, t1g + 1): (1, 2), (1, 0): (1, 3), (1, 1): (1, 4), (1, 2): (1, 5), (1, 3): (1, 6)}
    for T in range(2):
        slots = []
        for kk in range(28):
            jp, i = kk >> 2, kk & 3
            for v in range(2):
                A = ACC2(T, v); wr = w2reg(kk, v)
                def mf(A=A, wr=wr, kk=kk, v=v, jp=jp, i=i):
                    if wr is None: k.wait(lg=f'A{kk}{v}')
                    a = rn(wr, 4) if wr else vr(AR(kk, v), 4)
                    e(f'v_mfma_f32_32x32x16_bf16 {vr(A,16)}, {a}, {vr(HB[T,jp]+4*i,4)}, {vr(A,16) if kk else 0}')
                pre, post = [], []
                kn = kk + 2 if kk >= 15 else None
                if kn is not None and 17 <= kn < 28: pre += [aread(kn, v, 0), aread(kn, v, 1)]
                if v == 1 and (T, jp) in nxt: pre.append(hload(*nxt[T, jp], i))
                if i == 3 and jp < 6:
                    p_, b_ = hcheck(T, jp + 1)
                    post.append(p_ if v == 0 else b_)
                slots.append((mf, pre, post))
        fill = {10: [lambda: e('s_barrier')]}
        if T == 1:
            fill = {3: red_write_ops(0) + [lambda: (k.wait(lg='rw'), e('s_barrier')), None]}
            if half == 0: fill[3] = [lambda: cnt_load(2, vSa)] + fill[3] + [lambda: cnt_check(2, vSa), None]
            fill[3] += red_final_ops(0, B[2], vSb) + [None, lambda: e('s_barrier')]
        q = run_slots(slots, fill, 4)
        for f in q:
            if f: f()
    stamp(f'D{half}.g2')
    for f in red_write_ops(1):
        if f: f()
    k.wait(lg='all'); e('s_barrier')
    for f in red_final_ops(1, B[2], vSb):
        if f: f()
    stamp(f'D{half}.st')
    return False

def main():
    prologue()
    phA_issue(0)
    src_off(3584)
    e(f's_lshl_b32 s{sSO}, s{sG}, 2'); e(f's_add_u32 s{sSO}, s{sSO}, s{sW}'); e(f's_lshl_b32 s{sSO}, s{sSO}, 7')
    t = 16
    e(f'v_bfe_u32 v{t}, v{vL}, 2, 2'); e(f'v_bfe_u32 v{t+1}, v{vL}, 3, 1'); e(f'v_bfe_u32 v{t+2}, v{vL}, 4, 1'); e(f'v_and_b32 v{t+3}, 3, v{vL}')
    e(f'v_lshlrev_b32 v{t}, 7, v{t}'); e(f'v_lshl_add_u32 v{t}, v{t+1}, 6, v{t}'); e(f'v_lshl_add_u32 v{t}, v{t+2}, 5, v{t}'); e(f'v_lshl_add_u32 v{t}, v{t+3}, 3, v{t}')
    e(f'v_add_u32 v{t}, s{sWA}, v{t}'); e(f'v_lshrrev_b32 v{t+1}, 5, v{vL}')
    e(f'v_lshl_add_u32 v{vT1}, v{t+1}, 10, v{t}'); e(f'v_lshl_add_u32 v{vT2}, v{t+1}, 9, v{t}')
    e(f'v_xor_b32 v{vT1+1}, 64, v{vT1}'); e(f'v_xor_b32 v{vT2+1}, 64, v{vT2}')
    for i in range(4): e(f'v_mov_b32 v{220+i}, 0x3f803f80')
    ws.issue(4)
    for half in range(2):
        if half:
            k.wait(vm='xst'); stamp('A1.ack'); phA_issue(1)
        phA(half)
        if stop(f'A{half}'): return
        phB(half)
        if ffn(half): return
        if stop(f'D{half}'): return
    finish_stamps()
    e('s_endpgm')
main()
helper()
k.tail.append('L_end:')
k.tail.append('s_endpgm')
txt, nops = finish(k, OPT['grid'], 256, LDS_SZ, verbose=OPT['verbose'])
print(txt)
print(f'; wait states added: {nops}; stamps: {",".join(tsn)}')
```

```python
import re
KN = "interleave_layers__spectral_fnet__dense_activation_relu__prompt_kernel"

def vr(a, n=1): return f'v{a}' if n == 1 else f'v[{a}:{a+n-1}]'
def ar(a, n=1): return f'a{a}' if n == 1 else f'a[{a}:{a+n-1}]'
def sr(a, n=1): return f's{a}' if n == 1 else f's[{a}:{a+n-1}]'

def icost(line):
    op = line.split()[0]
    if line.endswith(':') or line.startswith('.'): return 'lab', 0
    if op.startswith('v_mfma'): return 'mfma', 8
    if op.startswith(('v_exp', 'v_log', 'v_rcp', 'v_rsq', 'v_sqrt', 'v_sin', 'v_cos', 'v_swap', 'v_permlane')): return 'v', 8
    if op.startswith('v_'): return 'v', 4
    if op.startswith('ds_'): return 'ds', 4
    if op.startswith(('buffer_', 'global_')): return 'vm', 4
    if op.startswith('s_cbranch'): return 's', 20
    return 's', 4
class Op:
    def __init__(s, kind, cost, fn, ta=0): s.kind, s.cost, s.fn, s.ta = kind, cost, fn, ta
    def __call__(s): s.fn()
class K:
    def __init__(self):
        self.out = []
        self.tail = []
        self.vm = []; self.lg = []
        self.nlab = 0
        self.recq = None; self.depth = 0
        self.clk = 0; self.mfma_free = 0; self.last = ''
        self.bg = []; self.bg_next = 0; self.bg_period = None; self.refill = None; self.in_bg = False; self.in_tail = False
    def _emit(self, s):
        for line in s.split('\n'):
            line = line.strip()
            if not line: continue
            self.out.append(line)
            if self.in_tail: continue
            kind, c = icost(line)
            if kind == 'mfma':
                self.clk = max(self.clk, self.mfma_free); self.mfma_free = self.clk + (32 if '32x32' in line else 16)
            elif line.startswith(('v_dot', 'v_pk_add_f32', 'v_pk_mul_f32', 'v_pk_fma_f32')): self.clk = max(self.clk, self.mfma_free + 12 if self.mfma_free > self.clk else 0)
            if kind in ('ds', 'vm') and self.last == 'v': c += 8
            self.clk += c
            if kind != 'lab': self.last = kind
    def _do(self, s, fn):
        if self.recq is not None:
            lines = [l.strip() for l in s.split('\n') if l.strip()]
            self.recq.append(Op(icost(lines[0])[0], sum(icost(l)[1] for l in lines), fn))
        else:
            fn(); self.tick()
    def e(self, s): self._do(s, lambda: self._emit(s))
    __call__ = e
    def vmem(self, s, tag=None): self._do(s, lambda: (self._emit(s), self.vm.append(tag)))
    def ds(self, s, tag=None): self._do(s, lambda: (self._emit(s), self.lg.append(tag)))
    def wait(self, vm=None, lg=None):
        if self.recq is not None: self.recq.append(Op('w', 0, lambda: self._wait(vm, lg)))
        else: self._wait(vm, lg)
    def call(self, fn, kind='s', cost=4):
        def run():
            self.depth += 1; fn(); self.depth -= 1
        if self.recq is not None: self.recq.append(Op(kind, cost, run))
        else: run(); self.tick()
    def rec(self, fn):
        save = self.recq; self.recq = []; fn(); q = self.recq; self.recq = save; return q
    def run(self, ops):
        for o in ops:
            if o is None: continue
            if self.recq is not None: self.recq.append(o)
            else: o(); self.tick()
    def lab(self, base='L'):
        self.nlab += 1
        return f'{base}_{self.nlab}'
    def tick(self):
        if self.depth or self.in_bg or self.in_tail or self.bg_period is None: return
        if self.bg_due(): self.bg_step()
    def bg_due(self):
        if self.bg_period is None: return False
        if not self.bg and self.refill: self.refill()
        return bool(self.bg) and (self.bg[0].ta == 0 or self.clk >= self.bg_next)
    def bg_flush(self):
        while self.bg: self.bg_step()
    def bg_step(self):
        o = self.bg.pop(0); self.in_bg = True; o(); self.in_bg = False
        if o.ta: self.bg_next = max(self.bg_next, self.clk - 100) + (self.bg_period or 72) * o.ta
    def idle(self, cycles):
        end = self.clk + cycles
        while self.bg_period is not None:
            if not self.bg and self.refill: self.refill()
            if not self.bg: break
            if self.bg[0].ta and self.bg_next > end: break
            if self.bg[0].ta: self.clk = max(self.clk, self.bg_next - 200)
            if self.clk >= end: break
            self.bg_step()
        self.clk = max(self.clk, end)
    def slots(self, sl, q=None, deadline=None, nbg=2):
        q = list(q or []); head = []; self.depth += 1
        deadline = len(sl) if deadline is None else deadline
        for i, (mf, pre, post) in enumerate(sl):
            for o in mf: o()
            for o in list(pre) + head: o()
            head = []
            n = 0
            while n < nbg and self.bg_due(): self.bg_step(); n += 1
            left = deadline - i
            brk = sum(1 for o in q if o is None)
            share = sum(o.cost for o in q if o) / max(1, left - brk * 0.5) if left > 0 else 1e9
            res = 4 + sum(o.cost for o in post); used = 0
            while q:
                o = q[0]
                if o is None:
                    q.pop(0)
                    if left > 0: break
                    continue
                if o.kind in ('ds', 'vm') and self.last == 'v' and left > 1 and i + 1 < len(sl):
                    if head and len(head) >= 2: break
                    head.append(q.pop(0)); used += o.cost; continue
                if o.kind == 'w' and head: break
                if self.clk + o.cost > self.mfma_free - res and used + o.cost / 2 > share: break
                q.pop(0); o(); used += o.cost
            for o in post: o()
        for o in head + q:
            if o: o()
        self.depth -= 1
    def weave(self, mem, fill, gap):
        fill = list(fill); self.depth += 1
        for o in mem:
            o(); t = self.clk + gap
            while fill and self.clk < t: fill.pop(0)()
        self.depth -= 1
        return fill
    def _n_after(self, q, tag):
        idx = [i for i, t in enumerate(q) if t == tag]
        return None if not idx else len(q) - 1 - idx[-1]
    def _wait(self, vm=None, lg=None):
        parts = []
        if vm is not None:
            n = 0 if vm == 'all' else self._n_after(self.vm, vm)
            if n is not None and (self.vm or vm == 'all'):
                n = min(n, 63); parts.append(f'vmcnt({n})'); self.vm = self.vm[len(self.vm) - n:] if n else []
        if lg is not None:
            n = 0 if lg == 'all' else self._n_after(self.lg, lg)
            if n is not None and (self.lg or lg == 'all'):
                n = min(n, 15); parts.append(f'lgkmcnt({n})'); self.lg = self.lg[len(self.lg) - n:] if n else []
        if parts: self._emit('s_waitcnt ' + ' '.join(parts))
    def begin_tail(self):
        assert self.recq is None
        self._save = (self.out, list(self.vm), list(self.lg)); self.out = self.tail; self.in_tail = True
    def end_tail(self):
        self.out, self.vm, self.lg = self._save; self.in_tail = False

_REG = re.compile(r'^(-|\|)?(abs\()?([vas])(\d+|\[(\d+):(\d+)\])\)?\|?$')
def regs(op):
    op = op.strip()
    if op in ('vcc', 'vcc_lo', 'vcc_hi'): return {('s', 'vcc')}
    if op in ('exec', 'exec_lo', 'exec_hi'): return {('s', 'exec')}
    if op == 'm0': return {('s', 'm0')}
    m = _REG.match(op)
    if not m: return set()
    k = m.group(3)
    if m.group(5) is not None: return {(k, i) for i in range(int(m.group(5)), int(m.group(6)) + 1)}
    return {(k, int(m.group(4)))}
TRANS = ('v_exp_', 'v_log_', 'v_rcp_', 'v_rsq_', 'v_sqrt_', 'v_sin_', 'v_cos_')
class I:
    def __init__(s, text):
        s.text = text
        t = text.split(';')[0].strip()
        s.label = t.endswith(':') or t.startswith('.')
        s.op = t.split()[0] if t else ''
        rest = t[len(s.op):].strip()
        ops = [o.strip() for o in re.split(r',\s*(?![^\[]*\])', rest)] if rest else []
        if ops:
            last = ops[-1].split()
            s.mods = last[1:]; ops[-1] = last[0] if last else ''
        else: s.mods = []
        s.ops = ops
        R = [regs(o) for o in ops]
        U = lambda l: set().union(*l) if l else set()
        s.w = set(); s.r = set(); s.kind = 'other'; s.passes = 0; s.A = s.C = set(); s.data = set()
        op = s.op
        if s.label: s.kind = 'label'
        elif op.startswith('v_mfma'):
            s.kind = 'mfma'; s.w = R[0]; s.A = R[1] | R[2]; s.C = R[3]; s.r = s.A | s.C
            s.passes = 8 if '32x32' in op else 4
        elif op.startswith('v_'):
            s.kind = 'valu'; s.w = R[0]; s.r = U(R[1:])
            if op.startswith(('v_fmac', 'v_dot2c', 'v_writelane', 'v_pk_fmac')) or 'dpp' in op or any(m.startswith(('row_', 'quad_perm')) for m in s.mods): s.r |= R[0]
            if op.startswith(('v_swap', 'v_permlane')): s.w = R[0] | R[1]; s.r = R[0] | R[1]
            if op.startswith(('v_add_co', 'v_sub_co', 'v_addc_co', 'v_subb_co')): s.w = R[0] | R[1]; s.r = U(R[2:])
            if op.startswith('v_cmpx'): s.w |= {('s', 'exec')}
        elif op.startswith('ds_'):
            s.kind = 'ds'
            if op.startswith(('ds_read', 'ds_bpermute', 'ds_permute', 'ds_swizzle')): s.w = R[0]; s.r = U(R[1:])
            else: s.r = U(R)
        elif op.startswith(('buffer_', 'global_')):
            s.kind = 'vmem'
            if 'lds' in s.mods: s.r = U(R) | {('s', 'm0')}
            elif 'load' in op: s.w = R[0]; s.r = U(R[1:])
            else:
                s.r = U(R)
                if op.endswith(('x3', 'x4')): s.data = R[0] if op.startswith('buffer_') else R[1]
        elif op.startswith('s_'):
            s.kind = 'salu'
            if op.startswith(('s_cmp', 's_bitcmp', 's_cbranch', 's_branch', 's_waitcnt', 's_nop', 's_barrier', 's_endpgm', 's_sleep', 's_setprio')): s.r = U(R)
            else:
                s.w = R[0] if R else set(); s.r = U(R[1:])
                if 'saveexec' in op: s.w |= {('s', 'exec')}
        s.states = int(ops[0]) + 1 if op == 's_nop' else (0 if s.label else 1)
        s.dpp = 'dpp' in op or any(m.startswith(('row_', 'quad_perm', 'wave_')) for m in s.mods)
def need(p, c):
    n = 0
    vec = lambda S: {x for x in S if x[0] in 'va'}
    sc = lambda S: {x for x in S if x[0] == 's'}
    if p.kind == 'valu':
        wv, ws = vec(p.w), sc(p.w)
        if c.kind == 'mfma' and wv & c.r: n = max(n, 3 if p.op.startswith('v_dot') else 2)
        if c.kind == 'mfma' and ('s', 'exec') in ws: n = max(n, 4)
        if c.kind == 'valu':
            if c.op.startswith(('v_readfirstlane', 'v_readlane')) and wv & c.r: n = max(n, 1)
            if c.op.startswith('v_permlane') and wv & c.r: n = max(n, 2)
            if c.dpp and wv & c.r: n = max(n, 2)
            if p.op.startswith(TRANS) and wv & c.r and not c.op.startswith(TRANS): n = max(n, 1)
            if ws & c.r: n = max(n, 4 if c.op.startswith(('v_readlane', 'v_writelane')) else 2)
            if c.op.startswith('v_cndmask') and ('s', 'vcc') in ws: n = max(n, 2)
        if p.op.startswith('v_dot') and c.kind in ('valu', 'ds', 'vmem') and wv & (c.r | c.w):
            same_c = c.op == p.op and not (wv & (regs(c.ops[1]) | regs(c.ops[2])))
            if not same_c: n = max(n, 3)
        if c.kind == 'vmem' and ws & c.r: n = max(n, 5)
        if c.kind == 'salu' and ws & c.r and not c.op.startswith('s_cbranch'): n = max(n, 1)
    if p.kind == 'mfma':
        big = {4: 8, 8: 12}[p.passes]
        if c.kind == 'mfma':
            if p.w & c.A: n = max(n, big)
            if p.w & c.C and not (p.w == c.C and p.passes == c.passes): n = max(n, big - 2)
            if p.w & c.w and not (p.w == c.w and p.passes == c.passes): n = max(n, big - 2)
        elif c.kind in ('valu', 'ds', 'vmem'):
            if p.w & (c.r | c.w): n = max(n, big)
            if c.kind == 'valu' and p.C & c.w: n = max(n, p.passes - 1)
    if p.kind == 'salu':
        if ('s', 'm0') in p.w and ('s', 'm0') in c.r and c.kind in ('vmem', 'valu'): n = max(n, 1)
    if p.kind == 'vmem' and p.data and c.kind in ('valu', 'ds', 'vmem', 'mfma') and p.data & c.w: n = max(n, 2)
    return n
def fix_hazards(lines, verbose=False):
    out = []; added = 0
    for text in lines:
        c = I(text)
        if c.kind != 'label':
            dist = 0; lack = 0; why = None
            for p in reversed(out):
                if dist >= 14: break
                if p.op in ('s_branch', 's_endpgm'): break
                k = need(p, c) - dist
                if k > lack: lack, why = k, p
                dist += p.states
            if lack > 0:
                out.append(I(f's_nop {lack-1}')); added += lack
                if verbose: print(f'; nop {lack}: [{why.text}] -> [{c.text}]')
        out.append(c)
    return [i.text for i in out], added

def finish(k, grid, block, lds, vgpr=512, accum=256, sgpr=102, header='', verbose=False):
    main, n1 = fix_hazards(k.out, verbose)
    tail, n2 = fix_hazards(k.tail, False)
    fmt = lambda l: l if l.endswith(':') or l.startswith('.') else '    ' + l
    s = header + f'; @launch grid=({grid},1,1) block=({block},1,1) lds={lds}\n'
    s += f'.amdgcn_target "amdgcn-amd-amdhsa--gfx950"\n.text\n.globl {KN}\n.p2align 8\n.type {KN},@function\n{KN}:\n'
    s += '\n'.join(fmt(l) for l in main + tail) + '\n'
    s += f'''.section .rodata,"a"
.p2align 6
.amdhsa_kernel {KN}
  .amdhsa_next_free_vgpr {vgpr}
  .amdhsa_next_free_sgpr {sgpr}
  .amdhsa_accum_offset {accum}
  .amdhsa_group_segment_fixed_size 0
  .amdhsa_kernarg_size 88
  .amdhsa_user_sgpr_count 2
  .amdhsa_user_sgpr_kernarg_segment_ptr 1
  .amdhsa_system_sgpr_workgroup_id_x 1
  .amdhsa_float_denorm_mode_32 3
.end_amdhsa_kernel
'''
    return s, n1
```

```python
import sys, struct
from kasm import *

OPT = dict(ts=0, stop='', verbose=0, hq_slot=90, t1_grp=4, grid=256, lag=6, per=72, perA=72, perB=72, perG=72, rot=1, touch=7,
           idleU=500, late=900, nostats=0, nofill=0, nocnt=0, fine=0)
for a in sys.argv[1:]:
    key, val = a.split('=')
    OPT[key] = val if key in ('stop', 'amp') else int(val)
AMP = OPT.get('amp')
if AMP: OPT['ts'] = 1
TS, STOP = OPT['ts'], OPT['stop']
TSI = 's_memtime' if TS == 2 else 's_memrealtime'

S, D, F = 2048, 448, 1792
XB = S * D * 2
WS_U1, WS_U2, WS_X2, WS_H = 0, XB, 2 * XB, 3 * XB
WS_END = WS_H + S * F * 2
WS_TS = 0x1000000
WS_DBG = 0x1100000
L_X = 0; L_RED = 0; L_H = 36864; L_ST = 64512
L_M = 65536; L_WA = L_M + 8192; WA_SZ = 22528
L_C = lambda half: 28672 if half else L_M
LDS_SZ = L_WA + 4 * WA_SZ
assert LDS_SZ <= 163840
NSLOT = 11
sX0, sW1, sW2, sOUT, sWS, sDBG = 8, 12, 16, 20, 24, 28
sW, sG, sP, sRB, sRETRY, sWA, sSO, sLO, sHI, sCI = 32, 33, 34, 35, 36, 37, 38, 39, 40, 41
sT = 42
sBG = 48
sMK = 52
sHS = 60
sIM, sIL = 67, 68
sFF = 69
sUO = 4
sRD = 96
sTS = 70
sRC = 100
vL, vL16, vCS, vSa, vSb, vT1, vT2, vA = 0, 1, 2, 6, 7, 8, 10, 12
B = [16 + 16 * i for i in range(8)]; vR = 144
vCA, vSEL, vX = 240, 248, 252
def w1f(n, u): return ar(8 * n + 4 * u, 4)
def w2reg(kk, v):
    if kk < 4: return ('a', 224 + 8 * kk + 4 * v)
    if kk < 17: return ('v', 152 + 8 * (kk - 4) + 4 * v)
    return None
def rn(t, n): return ar(t[1], n) if t[0] == 'a' else vr(t[1], n)
fl = lambda x: '0x%08x' % struct.unpack('<I', struct.pack('<f', x))[0]

k = K(); e = k.e; rec = k.rec
nts = [0]; tsn = []
def log(msg):
    if OPT['verbose']: print(f'; [{k.clk}] {msg} ni={ws.ni} nd={ws.nd} cs={ws.nc}', file=sys.stderr)
def stamp(name):
    log(name)
    if not TS or (AMP and name != AMP): return
    i = nts[0]; nts[0] += 1; tsn.append(name)
    k.wait(lg='all')
    e(f'{TSI} s[50:51]\ns_waitcnt lgkmcnt(0)\ns_mov_b32 s{sTS+i}, s50')
def finish_stamps():
    if not TS: return
    if AMP:
        e('s_cmp_lg_u32 s2, 100'); e('s_cbranch_scc1 L_exit')
        e(f's_sub_u32 s44, s{sTS+1}, s{sTS}'); e('s_min_u32 s44, s44, 10000'); e('s_mul_i32 s44, s44, 50')
        e('s_memrealtime s[50:51]'); e('s_waitcnt lgkmcnt(0)'); e('s_add_u32 s44, s44, s50')
        e('L_amp:'); e('s_memrealtime s[50:51]'); e('s_waitcnt lgkmcnt(0)'); e('s_sub_u32 s45, s50, s44'); e('s_cmp_lt_i32 s45, 0'); e('s_cbranch_scc1 L_amp')
        return
    e('v_mov_b32 v16, 0')
    for i in range(nts[0]): e(f'v_writelane_b32 v16, s{sTS+i}, {i}')
    e(f'v_writelane_b32 v16, s{sRETRY}, 63'); e(f'v_writelane_b32 v16, s{sRC}, 62')
    e(f's_lshl_b32 s{sT}, s2, 2'); e(f's_add_u32 s{sT}, s{sT}, s{sW}'); e(f's_lshl_b32 s{sT}, s{sT}, 8'); e(f's_add_u32 s{sT}, s{sT}, {WS_TS}')
    e(f'v_lshlrev_b32 v17, 2, v{vL}')
    e(f'buffer_store_dword v16, v17, {sr(sWS,4)}, s{sT} offen')
def stop(name, dump_lds=0):
    if STOP != name: return False
    k.bg_period = None
    k.wait(vm='all', lg='all'); e('s_barrier')
    if dump_lds:
        e(f's_lshl_b32 s{sT}, s{sW}, 10'); e(f'v_add_u32 v20, s{sT}, v{vL16}')
        e(f's_lshl_b32 s{sT}, s2, 16'); e(f's_add_u32 s{sT}, s{sT}, {WS_DBG}')
        for i in range(dump_lds // 4096):
            e(f'ds_read_b128 v[16:19], v20'); e('s_waitcnt lgkmcnt(0)')
            e(f'buffer_store_dwordx4 v[16:19], v20, {sr(sWS,4)}, s{sT} offen'); e('s_nop 1'); e('v_add_u32 v20, 4096, v20')
    finish_stamps(); e('s_endpgm')
    return True

RCLS = {'cnt': 0, 'U0': 1, 'h0': 2, 'x2': 3, 'img': 4, 'U1': 5, 'h1': 6}
def retry_site(check, reload, name, br='s_cbranch_vccnz'):
    def f():
        slow, ok = k.lab('slow_' + name), k.lab('ok_' + name)
        e(f'{br} {slow}'); e(f'{ok}:')
        k.begin_tail()
        e(f'{slow}:')
        e(f's_cmp_eq_u32 s{sRETRY}, 0'); e(f's_cbranch_scc1 {ok}'); e(f's_sub_u32 s{sRETRY}, s{sRETRY}, 1')
        if TS: e(f's_add_u32 s{sRC}, s{sRC}, {1 << 4*RCLS[name.split("_")[0]]}')
        reload(); k.wait(vm='all', lg='all'); check(); k.wait(vm='all', lg='all')
        e(f'{br} {slow}'); e('s_nop 1'); e(f's_branch {ok}')
        k.end_tail()
    k.call(f, 's', 20)
def cnt_load(i, reg): k.vmem(f'buffer_load_dword v{reg}, off, {sr(sDBG,4)}, 0 offset:{64*i} sc1', f'cnt{i}')
def cnt_check(i, reg):
    if OPT['nocnt']: return
    chk = lambda: e(f'v_readfirstlane_b32 s49, v{reg}\ns_nop 1\ns_cmp_lt_u32 s49, 32')
    k.call(lambda: (k.wait(vm=f'cnt{i}'), chk(), retry_site(chk, lambda: cnt_load(i, reg), f'cnt_{i}', 's_cbranch_scc1')), 'v', 40)

class Stream:
    def __init__(s): s.ni = 0; s.nd = 0; s.nc = 0; s.limit = 4; s.lag = OPT['lag']
    def issue_ops(s):
        n = s.ni; s.ni += 1; ops = []
        if n == 28: ops += [Op(o.kind, o.cost, o.fn) for o in rec(lambda: src_off(896))]
        srd = sr(sW1 if n < 28 else sW2, 4)
        def a():
            if n >= NSLOT: k.wait(lg=f'tr{n-NSLOT}')
            elif n >= 4: k.wait(lg=f'xr{n-4}')
            e(f's_add_u32 m0, s{sWA}, {(n % NSLOT)*2048}')
            if n < 28:
                if n % 7 == 0 and n: e(f's_mul_i32 s{sBG}, s{sRD + n//7 - 1}, {16*3584}\ns_add_u32 s{sSO}, s{sSO}, s{sBG}\ns_sub_u32 s{sSO}, s{sSO}, {6*16*3584}')
                elif n: e(f's_add_u32 s{sSO}, s{sSO}, {16*3584}')
            else:
                if (n - 28) % 4: e(f's_add_u32 s{sSO}, s{sSO}, {16*896}')
                else:
                    e(f's_mul_i32 s{sBG}, s{sP}, {2*7*16384}\ns_sub_u32 s{sSO}, s{sHS + (n-28)//4}, s{sBG}\ns_sub_u32 s{sSO}, s{sSO}, {WS_H}\ns_mul_i32 s{sSO}, s{sSO}, 14\ns_lshl_b32 s{sBG}, s{sG}, 7\ns_add_u32 s{sSO}, s{sSO}, s{sBG}')
            k.vmem(f'buffer_load_dwordx4 v{vSa}, {srd}, s{sSO} offen lds', f'wa{n}')
        def b(): k.vmem(f'buffer_load_dwordx4 v{vSb}, {srd}, s{sSO} offen offset:1024 lds', f'w{n}')
        return ops + [Op('s', 12, a, 1), Op('vm', 4, b, 1)]
    def drain_ops(s):
        n = s.nd; s.nd += 1
        so = (n % NSLOT) * 2048
        def rd(u, h2):
            def f():
                k.wait(vm=f'w{n}')
                if n < 28: dst, ad, off = ar(8*n + 4*u + 2*h2, 2), vT1 + u, so + 512*h2
                else:
                    t = w2reg(n - 28, u); dst, ad, off = rn((t[0], t[1] + 2*h2), 2), vT2 + u, so + 1024*h2
                k.ds(f'ds_read_b64_tr_b16 {dst}, v{ad} offset:{off}', f'tr{n}')
                if u and h2: s.done = n + 1
            return Op('ds', 4, f)
        return [rd(0, 0), rd(0, 1), rd(1, 0), rd(1, 1)]
    done = 0
    def refill(s):
        if s.nd < 45 and (s.ni - s.nd > s.lag or (s.ni == 56 and s.nd < s.ni)): k.bg += s.drain_ops()
        elif s.ni < min(56, s.limit) and s.ni - NSLOT < s.nd: k.bg += s.issue_ops()
    def drain_landed(s, keep):
        while s.nd < min(45, s.ni - keep): k.bg += s.drain_ops()
    def ensure(s, n):
        n = min(n, 55)
        while (s.done <= n if n < 45 else (s.ni <= n or k.bg)):
            if not k.bg:
                if s.ni <= n and s.ni - NSLOT < s.nd: k.bg += s.issue_ops()
                else: k.bg += s.drain_ops()
            k.bg_step()
    def cs_op(s):
        n, u = s.nc >> 1, s.nc & 1; s.nc += 1
        def g():
            k.wait(lg=f'tr{n}')
            acc = vr(vCA + 4*u, 4)
            e(f'v_mfma_f32_16x16x32_bf16 {acc}, {vr(vSEL,4)}, {w1f(n, u)}, {acc if n else 0}')
        return Op('mfma', 16, g)
    def cs_flush(s, maxn=99):
        while s.nc < 2*min(28, s.done) and maxn > 0: k.run([s.cs_op()]); maxn -= 1
ws = Stream()
def src_off(stride):
    e(f'v_lshrrev_b32 v{vSa}, 3, v{vL}'); e(f'v_lshrrev_b32 v{vSb}, 2, v{vL}'); e(f'v_and_b32 v{vSb}, 4, v{vSb}')
    e(f'v_xor_b32 v{vSb}, v{vSb}, v{vL}'); e(f'v_and_b32 v{vSb}, 7, v{vSb}'); e(f'v_mul_u32_u24 v{vSa}, {stride}, v{vSa}')
    e(f'v_lshl_add_u32 v{vSa}, v{vSb}, 4, v{vSa}'); e(f'v_add_u32 v{vSb}, {8*stride-1024}, v{vSa}')
def cs_finish():
    for u in range(2):
        c = vCA + 4*u; t = c + 1; d = vCS + 2*u
        e(f'v_cvt_pk_bf16_f32 v{t}, v{c}, v{c}'); e(f'v_and_b32 v{t+1}, s{sFF}, v{t}'); e(f'v_sub_f32 v{t+2}, v{c}, v{t+1}')
        e(f'v_cvt_pk_bf16_f32 v{d}, v{t+1}, v{t+2}'); e(f'v_and_b32 v{d+1}, 0xffff, v{t}')
def stream_setup():
    src_off(3584)
    rot = OPT['rot']
    e(f's_lshl_b32 s{sSO}, s{sG}, 2'); e(f's_add_u32 s{sSO}, s{sSO}, s{sW}'); e(f's_lshl_b32 s{sSO}, s{sSO}, 7')
    if rot: e(f's_mul_i32 s{sT}, s{sCI}, {7*16*3584}'); e(f's_add_u32 s{sSO}, s{sSO}, s{sT}')
    for q in range(4):
        if rot: e(f's_cmp_eq_u32 s{sCI}, {3-q}\ns_cselect_b32 s{sRD+q}, -21, 7')
        else: e(f's_mov_b32 s{sRD+q}, {-21 if q == 3 else 7}')
    t = B[0]
    e(f'v_bfe_u32 v{t}, v{vL}, 2, 2'); e(f'v_bfe_u32 v{t+1}, v{vL}, 3, 1'); e(f'v_bfe_u32 v{t+2}, v{vL}, 4, 1'); e(f'v_and_b32 v{t+3}, 3, v{vL}')
    e(f'v_lshlrev_b32 v{t}, 7, v{t}'); e(f'v_lshl_add_u32 v{t}, v{t+1}, 6, v{t}'); e(f'v_lshl_add_u32 v{t}, v{t+2}, 5, v{t}'); e(f'v_lshl_add_u32 v{t}, v{t+3}, 3, v{t}')
    e(f'v_add_u32 v{t}, s{sWA}, v{t}'); e(f'v_lshrrev_b32 v{t+1}, 5, v{vL}')
    e(f'v_lshl_add_u32 v{vT1}, v{t+1}, 10, v{t}'); e(f'v_lshl_add_u32 v{vT2}, v{t+1}, 9, v{t}')
    e(f'v_xor_b32 v{vT1+1}, 64, v{vT1}'); e(f'v_xor_b32 v{vT2+1}, 64, v{vT2}')
def late_setup():
    t = vSEL
    e(f'v_lshrrev_b32 v{t}, 2, v{vL}'); e(f'v_lshrrev_b32 v{t+1}, 4, v{vL}'); e(f'v_xor_b32 v{t}, v{t}, v{t+1}'); e(f'v_and_b32 v{t}, 1, v{t}')
    e(f'v_add_u32 v{t}, -1, v{t}'); e(f'v_and_b32 v{t}, 0x3f803f80, v{t}')
    for i in range(1, 4): e(f'v_mov_b32 v{t+i}, v{t}')
    e(f's_mul_i32 s{sT}, s{sP}, {2*7*16384}'); e(f's_lshl_b32 s{sT+1}, s{sW}, 12'); e(f's_add_u32 s{sT}, s{sT}, s{sT+1}'); e(f's_add_u32 s{sT}, s{sT}, {WS_H}')
    e(f's_add_u32 s{sT+3}, s{sCI}, 1' if OPT['rot'] else f's_mov_b32 s{sT+3}, 1'); e(f's_mov_b32 s{sT+1}, s{sG}')
    for jp in range(7):
        if jp: e(f's_add_u32 s{sT+1}, s{sT+1}, s{sT+3}'); e(f's_sub_u32 s{sT+2}, s{sT+1}, 7'); e(f's_min_u32 s{sT+1}, s{sT+1}, s{sT+2}')
        e(f's_lshl_b32 s{sT+2}, s{sT+1}, 14'); e(f's_add_u32 s{sHS+jp}, s{sT}, s{sT+2}')

def prologue():
    e('s_load_dwordx2 s[8:9], s[0:1], 0'); e('s_load_dwordx4 s[4:7], s[0:1], 48')
    e('s_load_dwordx4 s[44:47], s[0:1], 64'); e('s_load_dwordx2 s[24:25], s[0:1], 80')
    e('v_lshrrev_b32 v1, 6, v0'); e('v_and_b32 v0, 63, v0'); e(f'v_readfirstlane_b32 s{sW}, v1'); e(f'v_lshlrev_b32 v{vL16}, 4, v0')
    e('s_sub_u32 s3, s2, 32'); e('s_cmp_ge_u32 s3, 224'); e('s_cbranch_scc1 L_helper')
    if TS: e(f'{TSI} s[50:51]'); e(f's_mov_b32 s{sRC}, 0')
    e(f's_lshr_b32 s{sT}, s3, 3'); e(f's_mul_i32 s{sCI}, s{sT}, 37'); e(f's_lshr_b32 s{sCI}, s{sCI}, 8')
    e(f's_mul_i32 s{sG}, s{sCI}, 7'); e(f's_sub_u32 s{sG}, s{sT}, s{sG}')
    e(f's_and_b32 s{sP}, s3, 7'); e(f's_lshl_b32 s{sP}, s{sP}, 1'); e(f's_lshr_b32 s{sT}, s{sCI}, 1'); e(f's_add_u32 s{sP}, s{sP}, s{sT}')
    e(f's_sub_u32 s{sT}, 32, s{sP}'); e(f's_cmp_eq_u32 s{sP}, 0'); e(f's_cselect_b32 s{sT}, 16, s{sT}')
    e(f's_bitcmp1_b32 s{sCI}, 0'); e(f's_cselect_b32 s{sP}, s{sT}, s{sP}')
    e(f's_mul_i32 s{sWA}, s{sW}, {WA_SZ}'); e(f's_add_u32 s{sWA}, s{sWA}, {L_WA}')
def srds(which):
    for r, n in ((sX0, XB), (sW1, D*F*2), (sW2, D*F*2), (sOUT, XB), (sWS, 0x2000000 if (TS or STOP) else WS_END), (sDBG, 256)):
        if r in which: e(f's_mov_b32 s{r+2}, {n}'); e(f's_mov_b32 s{r+3}, 0x20000')
def copy_ptrs(first):
    if first: e(f's_mov_b32 s{sW1}, s4'); e(f's_mov_b32 s{sW1+1}, s5')
    else:
        e(f's_mov_b32 s{sW2}, s6'); e(f's_mov_b32 s{sW2+1}, s7')
        e(f's_mov_b32 s{sOUT}, s44'); e(f's_mov_b32 s{sOUT+1}, s45'); e(f's_mov_b32 s{sDBG}, s46'); e(f's_mov_b32 s{sDBG+1}, s47')

def helper():
    k.begin_tail()
    e('L_helper:')
    e('s_cmp_ge_u32 s2, 32'); e('s_cbranch_scc1 L_exit')
    e('s_getpc_b64 s[48:49]'); e('L_pc:'); e(f's_sub_u32 s48, s48, L_pc-{KN}'); e('s_subb_u32 s49, s49, 0')
    e(f's_lshr_b32 s{sT}, s2, 3'); e(f's_lshl_b32 s{sT}, s{sT}, 2'); e(f's_add_u32 s{sT}, s{sT}, s{sW}'); e(f's_lshl_b32 s{sT}, s{sT}, 7')
    e(f'v_lshl_add_u32 v2, v{vL}, 11, s{sT}'); e(f'v_cmp_gt_u32 vcc, L_end-{KN}, v2'); e('s_and_b64 exec, exec, vcc')
    e('global_load_dword v8, v2, s[48:49]'); e('s_mov_b64 exec, -1')
    srds((sW2, sWS, sDBG))
    for i in range(4, 8): e(f'v_mov_b32 v{i}, -1')
    e(f's_lshl_b32 s{sT}, s{sW}, 10'); e(f'v_add_u32 v2, s{sT}, v{vL16}'); e('v_mov_b32 v10, 1')
    e(f's_lshl_b32 s{sT}, s2, 2'); e(f's_add_u32 s{sT}, s{sT}, s{sW}'); e(f's_mul_i32 s3, s{sT}, {98*128}'); e(f'v_min_u32 v3, 48, v{vL}'); e('v_lshlrev_b32 v3, 8, v3')
    hs = [0]
    def hstamp():
        if TS and not AMP: e(f'{TSI} s[50:51]\ns_waitcnt lgkmcnt(0)\ns_mov_b32 s{sTS+hs[0]}, s50'); hs[0] += 1
    e('s_waitcnt lgkmcnt(0)'); copy_ptrs(False); hstamp()
    for i, (base, n) in enumerate(((WS_U1, XB), (WS_H, S*F*2), (WS_U2, 2*XB))):
        per = n // 32; l = k.lab('fill')
        if OPT['nofill'] >> i & 1: continue
        e(f's_mul_i32 s{sT}, s2, {per}'); e(f's_add_u32 s{sT}, s{sT}, {base}'); e(f's_mov_b32 s{sT+1}, {per // 4096 // 14}')
        e(f'{l}:')
        for j in range(14):
            e(f'buffer_store_dwordx4 v[4:7], v2, {sr(sWS,4)}, s{sT} offen sc1'); e(f's_add_u32 s{sT}, s{sT}, 4096')
        e(f's_sub_u32 s{sT+1}, s{sT+1}, 1'); e(f's_cmp_lg_u32 s{sT+1}, 0'); e(f's_cbranch_scc1 {l}')
        hstamp()
        if i == 0 and OPT['touch'] & 4:
            e(f'buffer_load_dword v8, v3, {sr(sW2,4)}, s3 offen'); e(f'buffer_load_dword v9, v3, {sr(sW2,4)}, s3 offen offset:128')
            e('s_waitcnt vmcnt(2)')
        else: e('s_waitcnt vmcnt(0)')
        e('s_barrier'); hstamp()
        l = k.lab('nosig'); e(f's_cmp_lg_u32 s{sW}, 0'); e(f's_cbranch_scc1 {l}')
        e('s_mov_b64 exec, 1'); e(f'buffer_atomic_add v10, off, {sr(sDBG,4)}, 0 offset:{64*i} sc1'); e('s_mov_b64 exec, -1')
        e(f'{l}:')
    if TS and not AMP: e('s_waitcnt vmcnt(0)'); hstamp(); finish_stamps()
    e('L_exit:'); e('s_endpgm')
    k.end_tail()

def gen_H():
    ef, a0, tc, q8 = 72, 73, 74, 75
    P0, P1, PK = 76, 84, 92
    e(f'v_and_b32 v{ef}, 15, v{vL}'); e(f's_and_b32 s{sT}, s{sW}, 1'); e(f's_lshl_b32 s{sT+1}, s{sG}, 5'); e(f's_add_u32 s{sT}, s{sT}, s{sT+1}')
    e(f'v_lshl_add_u32 v{ef}, v{ef}, 1, s{sT}'); e(f'v_mov_b32 v{a0}, 224'); e(f'v_cmp_eq_u32 vcc, 0, v{ef}')
    e(f'v_lshrrev_b32 v{q8}, 4, v{vL}'); e(f'v_lshlrev_b32 v{q8}, 3, v{q8}')
    e(f'v_cndmask_b32 v{ef}, v{ef}, v{a0}, vcc'); e(f'v_cvt_f32_u32 v{q8}, v{q8}'); e(f'v_cvt_f32_u32 v{ef}, v{ef}')
    e(f's_cmp_ge_u32 s{sW}, 2\ns_cselect_b32 s{sT}, {fl(-0.25)}, 0')
    e(f'v_mul_f32 v{ef}, {fl(1.0/448)}, v{ef}'); e(f'v_fma_f32 v{a0}, v{q8}, v{ef}, s{sT}')
    e(f'v_mul_f32 v{tc}, {fl(32.0)}, v{ef}'); e(f'v_cos_f32 v{tc}, v{tc}')
    e(f's_mul_i32 s{sT}, s{sW}, {7*1024}'); e(f's_add_u32 s{sT}, s{sT}, {L_H}'); e(f'v_add_u32 v{q8}, s{sT}, v{vL16}')
    e(f'v_add_f32 v{tc}, v{tc}, v{tc}')
    for kap in range(7):
        cur, prv = (P0, P1) if kap % 2 == 0 else (P1, P0)
        if kap < 2:
            for jj in range(8): e(f'v_fmamk_f32 v{cur+jj}, v{ef}, {fl(32.0*kap+jj)}, v{a0}')
            for jj in range(8): e(f'v_cos_f32 v{cur+jj}, v{cur+jj}')
        else:
            for jj in range(0, 8, 2): e(f'v_pk_fma_f32 {vr(cur+jj,2)}, {vr(tc,2)}, {vr(prv+jj,2)}, {vr(cur+jj,2)} op_sel_hi:[0,1,1] neg_lo:[0,0,1] neg_hi:[0,0,1]')
        pk = PK + 4*(kap % 2)
        for m in range(4): e(f'v_cvt_pk_bf16_f32 v{pk+m}, v{cur+2*m}, v{cur+2*m+1}')
        k.ds(f'ds_write_b128 v{q8}, {vr(pk,4)} offset:{1024*kap}', 'Hw')
def gen_F(dst):
    mf, a0, t = 100, 101, 102
    T = 120
    e(f'v_bfe_u32 v{mf}, v{vL}, 1, 3'); e(f's_lshl_b32 s{sT}, s{sW}, 3'); e(f'v_add_u32 v{mf}, s{sT}, v{mf}')
    e(f'v_and_b32 v{t}, 1, v{vL}'); e(f'v_cvt_f32_u32 v{a0}, v{t}'); e(f'v_cmp_eq_u32 vcc, 0, v{mf}')
    e(f'v_lshlrev_b32 v{t}, 5, v{t}'); e(f'v_mul_f32 v{a0}, {fl(-0.25)}, v{a0}')
    e(f'v_cndmask_b32 v{mf}, v{mf}, v{t}, vcc'); e(f'v_cndmask_b32 v{a0}, v{a0}, 0, vcc')
    e(f'v_cvt_f32_u32 v{mf}, v{mf}'); e(f'v_lshrrev_b32 v{t}, 4, v{vL}'); e(f'v_lshlrev_b32 v{t}, 3, v{t}'); e(f'v_cvt_f32_u32 v{t}, v{t}')
    e(f'v_mul_f32 v{mf}, {fl(1.0/64)}, v{mf}'); e(f'v_fma_f32 v{a0}, v{t}, v{mf}, v{a0}')
    for k1 in range(2):
        for jj in range(8): e(f'v_fmamk_f32 v{T+8*k1+jj}, v{mf}, {fl(k1 + 32.0*(jj >> 2) + 2.0*(jj & 3))}, v{a0}')
    for i in range(16): e(f'v_cos_f32 v{T+i}, v{T+i}')
    for m in range(8): e(f'v_cvt_pk_f16_f32 v{dst+m}, v{T+2*m}, v{T+2*m+1}')
def gen_M(t0):
    j, s2f, ad = t0, t0 + 1, t0 + 2
    e(f'v_and_b32 v{j}, 31, v{vL}'); e(f'v_lshlrev_b32 v{j}, 6, v{j}')
    e(f'v_lshrrev_b32 v{s2f}, 5, v{vL}'); e(f's_lshl_b32 s{sT}, s{sW}, 3'); e(f'v_lshl_add_u32 v{s2f}, v{s2f}, 2, s{sT}'); e(f'v_cvt_f32_u32 v{s2f}, v{s2f}')
    e(f's_lshl_b32 s{sT}, s{sW}, 10'); e(f's_add_u32 s{sT}, s{sT}, {L_M}'); e(f'v_add_u32 v{ad}, s{sT}, v{vL16}')
    e(f's_cmp_eq_u32 s{sP}, 0\ns_cselect_b32 s{sT}, {fl(0.25)}, 0')
    for pq in range(2):
        T = t0 + 4 + 16*pq
        tf, a0 = T + 12, T + 13
        e(f'v_add_u32 v{tf}, s{sRB if pq else sP}, v{j}'); e(f'v_cvt_f32_u32 v{tf}, v{tf}'); e(f'v_mul_f32 v{tf}, {fl(1.0/2048)}, v{tf}')
        if pq: e(f'v_fma_f32 v{a0}, v{tf}, v{s2f}, s{sT}')
        else: e(f'v_mul_f32 v{a0}, v{tf}, v{s2f}')
        for jj in range(4): e(f'v_fmamk_f32 v{T+jj}, v{tf}, {fl(float(jj))}, v{a0}')
        for jj in range(4): e(f'v_sin_f32 v{T+4+jj}, v{T+jj}')
        for jj in range(4): e(f'v_cos_f32 v{T+jj}, v{T+jj}')
        for jj in range(4): e(f'v_cvt_pk_f16_f32 v{T+8+jj}, v{T+jj}, v{T+4+jj}')
        k.ds(f'ds_write_b128 v{ad}, {vr(T+8,4)} offset:{4096*pq}', 'Mw')

def img_ops(half, T):
    ops = []; rho = sRB if T else sP
    if half == 0:
        for r in range(8):
            def f(r=r):
                if r == 0: e(f's_lshl_b32 s{sIM}, s{sW}, 9\ns_add_u32 s{sIM}, s{sIM}, s{rho}\ns_mul_i32 s{sIM}, s{sIM}, 896\ns_mul_i32 s{sIL}, s{sW}, {8*912}')
                else: e(f's_add_u32 s{sIM}, s{sIM}, 57344')
                e(f's_add_u32 m0, s{sIL}, {L_X + 912*(32*T + r)}'); e('s_mov_b32 exec_hi, 0x00ffffff')
                k.vmem(f'buffer_load_dwordx4 v{vL16}, {sr(sX0,4)}, s{sIM} offen lds', f'img{T}'); e('s_mov_b32 exec_hi, -1')
            ops.append(Op('s', 20, f, 1))
    else:
        for i in range(7):
            def f(i=i):
                if i == 0: e(f's_mul_i32 s{sIL}, s{sW}, 7168\ns_add_u32 m0, s{sIL}, {L_X + 28672*T}\ns_mul_i32 s{sIM}, s{rho}, 28672\ns_add_u32 s{sIM}, s{sIM}, s{sIL}\ns_add_u32 s{sIM}, s{sIM}, {WS_X2}')
                if i == 4: e(f's_add_u32 m0, m0, 4096\ns_add_u32 s{sIM}, s{sIM}, 4096')
                k.vmem(f'buffer_load_dwordx4 v{vL16}, {sr(sWS,4)}, s{sIM} offen offset:{1024*(i%4)} sc1 lds', f'img{T}')
            ops.append(Op('s' if i % 4 == 0 else 'vm', 4, f, 1))
    return ops

XF = lambda kap: 16 + 4 * kap
BORD = [0, 3, 4, 1, 5, 2, 6]
def x2_loads(first):
    for kp in range(first, 7):
        for kap in (kp, kp + 7):
            k.vmem(f'buffer_load_dwordx4 {vr(XF(kap),4)}, v{vL16}, {sr(sWS,4)}, s{sUO + kap//4} offen offset:{1024*(kap%4)} sc1', f'x{kap}')
def phA(half):
    aT = [72, 76, 84, 88]; aHi = {1: 80, 3: 92}; aS, aG = 96, 100
    HR = [104, 120]; ones = 136; Ff = 140; t = 148
    vx, vh, vu, vcw, k1 = vA, vA + 2, vA + 3, 150, 151
    lc = L_C(half)
    def misc():
        for i in range(4): e(f'v_mov_b32 v{ones+i}, 0x3f803f80')
        e(f'v_add_u32 v{vh}, {L_H}, v{vL16}')
        mk = [0x1000010000100001, 0x2000020000200002, 0x4000040000400004, 0x8000080000800008]
        for i in range(4): e(f's_mov_b32 s{sMK+2*i}, {mk[i] & 0xffffffff:#x}'); e(f's_mov_b32 s{sMK+2*i+1}, {mk[i] >> 32:#x}')
        e(f'v_and_b32 v{t}, 15, v{vL}'); e(f'v_lshrrev_b32 v{t+1}, 4, v{vL}'); e(f'v_lshlrev_b32 v{vcw}, 5, v{t}'); e(f'v_lshl_add_u32 v{vcw}, v{t+1}, 3, v{vcw}')
        e(f's_lshl_b32 s{sT}, s{sW}, 9'); e(f's_add_u32 s{sT}, s{sT}, {lc}'); e(f'v_add_u32 v{vcw}, s{sT}, v{vcw}')
        e(f's_lshl_b32 s{sT}, s{sW}, 2'); e(f'v_add_u32 v{vu}, s{sT}, v{t+1}'); e(f'v_cmp_eq_u32 vcc, 0, v{vu}')
        e(f'v_mul_u32_u24 v{vu}, {2*57344}, v{vu}'); e(f'v_lshl_add_u32 v{vu}, v{t}, 4, v{vu}'); e(f'v_cndmask_b32 v{k1}, -1.0, 0, vcc')
        e(f's_mul_i32 s{sT+4}, s{sP}, 7'); e(f's_add_u32 s{sT+4}, s{sT+4}, s{sG}'); e(f's_lshl_b32 s{sT+4}, s{sT+4}, 8'); e(f's_add_u32 s{sT+4}, s{sT+4}, {WS_U2 if half else WS_U1}')
        e(f's_add_u32 s{sT+5}, s{sT+4}, 57344')
    if half == 0:
        va, vb = vX, vX + 1
        srds((sX0, sW1))
        e(f'v_lshrrev_b32 v{va}, 3, v{vL}'); e(f'v_lshrrev_b32 v{vb}, 4, v{vL}'); e(f'v_xor_b32 v{vb}, v{vb}, v{vL}'); e(f'v_and_b32 v{vb}, 7, v{vb}')
        e(f'v_mul_u32_u24 v{va}, 57344, v{va}'); e(f'v_lshl_add_u32 v{va}, v{vb}, 4, v{va}')
        e(f'v_xor_b32 v{vb}, 64, v{va}'); e(f'v_add_u32 v{vb}, {8*57344-1024}, v{vb}')
        if OPT['touch']:
            e(f'v_mul_u32_u24 v16, 57344, v{vL}'); e(f'v_lshlrev_b32 v17, 7, v{vL}')
            e(f's_lshl_b32 s{sIL}, s3, 2'); e(f's_add_u32 s{sIL}, s{sIL}, s{sW}'); e(f's_mul_i32 s{sIL}, s{sIL}, {14*128}')
        e(f's_lshr_b32 s{sT}, s{sW}, 1'); e(f's_lshl_b32 s{sT}, s{sT}, 5'); e(f's_add_u32 s{sT}, s{sT}, s{sP}')
        e(f's_and_b32 s{sT+1}, s{sW}, 1'); e(f's_lshl_b32 s{sT+1}, s{sT+1}, 10'); e(f's_add_u32 s{sT}, s{sT}, s{sT+1}'); e(f's_mul_i32 s3, s{sT}, 896')
        e(f's_lshl_b32 s{sT}, s{sG}, 7'); e(f's_add_u32 s{sT}, s{sT}, s3')
        e('s_waitcnt lgkmcnt(0)'); copy_ptrs(True)
        if TS: e(f's_mov_b32 s{sTS}, s50'); nts[0] = 1; tsn.append('start')
        if OPT['touch']:
            if OPT['touch'] & 1: e('s_mov_b64 exec, 0xffff'); k.vmem(f'buffer_load_dword v18, v16, {sr(sX0,4)}, s{sT} offen', 'touch')
            if OPT['touch'] & 2: e('s_mov_b64 exec, 0x3fff'); k.vmem(f'buffer_load_dword v19, v17, {sr(sW1,4)}, s{sIL} offen', 'touch')
            e('s_mov_b64 exec, -1')
        def xdma(i):
            b = BORD[i]
            return [Op('s', 12, lambda: (e(f's_add_u32 m0, s{sWA}, {8192 + 2048*i}\ns_add_u32 s{sBG}, s3, {128*b}'),
                                         k.vmem(f'buffer_load_dwordx4 v{va}, {sr(sX0,4)}, s{sBG} offen lds', f'xa{b}'))),
                    Op('vm', 4, lambda: k.vmem(f'buffer_load_dwordx4 v{vb}, {sr(sX0,4)}, s{sBG} offen offset:1024 lds', f'xb{b}'))]
        k.run(xdma(0) + xdma(1)); t0 = k.clk
        if OPT['fine']: stamp('iss')
        def rest():
            copy_ptrs(False); srds((sW2, sOUT, sWS, sDBG))
            e(f's_sub_u32 s{sRB}, 64, s{sP}'); e(f's_cmp_eq_u32 s{sP}, 0\ns_cselect_b32 s{sRB}, 32, s{sRB}')
            e(f's_mov_b32 s{sRETRY}, 20000'); e(f's_mov_b32 s{sLO}, 0x3f80'); e(f's_mov_b32 s{sHI}, 0x3f800000'); e(f's_mov_b32 s{sFF}, 0xffff0000')
            gen_H(); gen_F(Ff); misc()
            e(f'v_lshrrev_b32 v{vx}, 1, v{t}'); e(f'v_xor_b32 v{vx}, v{vx}, v{t+1}'); e(f'v_lshlrev_b32 v{t}, 7, v{t}'); e(f'v_lshl_add_u32 v{t}, v{vx}, 4, v{t}')
            e(f's_add_u32 s{sT}, s{sWA}, 8192'); e(f'v_add_u32 v{vx}, s{sT}, v{t}'); e(f'v_xor_b32 v{vx+1}, 64, v{vx}')
        fill = rec(rest)
        fill = k.weave(xdma(2) + xdma(3), fill, 64)
        while fill and k.clk < t0 + OPT['late']: fill.pop(0)()
        if OPT['fine']: stamp('gen')
        k.wait(vm='touch')
        if OPT['fine']: stamp('touch'); k.wait(vm='xb3'); stamp('xb3')
        fill += rec(stream_setup)
        fill = k.weave(xdma(4) + xdma(5) + xdma(6), fill, 56)
        k.run(fill)
        k.refill = ws.refill; k.bg_period = OPT['perA']; k.bg_next = k.clk
    else:
        e(f's_lshr_b32 s{sT}, s{sW}, 1'); e(f's_lshl_b32 s{sT}, s{sT}, 5'); e(f's_add_u32 s{sT}, s{sT}, s{sP}'); e(f's_lshl_b32 s{sT}, s{sT}, 1')
        e(f's_and_b32 s{sT+1}, s{sW}, 1'); e(f's_add_u32 s{sT}, s{sT}, s{sT+1}'); e(f's_mul_i32 s{sT}, s{sT}, 14336'); e(f's_add_u32 s{sUO}, s{sT}, {WS_X2}')
        for i in range(1, 4): e(f's_add_u32 s{sUO+i}, s{sUO}, {4096*i}')
        gen_H()
        k.wait(vm='xst'); stamp('A1.ack')
        ld = rec(lambda: x2_loads(0))
        k.run(ld[:5])
        k.run(k.weave(ld[5:11], rec(lambda: (gen_F(Ff), misc())), 60))
        k.run(ld[11:])
        k.bg_period = 72; k.bg_next = k.clk + 300
    k.wait(lg='Hw'); e('s_barrier')
    stamp(f'A{half}.consts')
    hread = lambda kp: rec(lambda: [k.ds(f'ds_read_b128 {vr(HR[kp%2]+4*tl,4)}, v{vh} offset:{(7*tl+kp)*1024}', f'H{kp}') for tl in range(4)])
    def xread(i):
        b = BORD[i]
        def g(h):
            k.wait(vm=f'xb{b}'); k.ds(f'ds_read_b128 {vr(XF(2*b+h),4)}, v{vx+h} offset:{2048*i}', f'xr{i}')
            if h: ws.limit = 5 + i if i < 6 else 56
        return [Op('ds', 8, lambda: g(0)), Op('ds', 4, lambda: g(1))]
    def xchk(kp):
        chk = lambda: (e(f'v_max_u32 v{t}, v{XF(kp)}, v{XF(kp+7)}'), e(f'v_cmp_eq_u32 vcc, -1, v{t}'))
        o = rec(lambda: (k.wait(vm=f'x{kp+7}'), chk(), retry_site(chk, lambda: x2_loads(kp), f'x2_{kp}')))
        return o[:2], o[2:3], o[3:]
    k.depth += 1
    k.run(hread(0))
    if half == 0: k.run(xread(0) + xread(1))
    else:
        for o in xchk(0): k.run(o)
        k.bg += img_ops(1, 0)
    k.depth -= 1
    sl = []
    for kp in range(7):
        lo, hi = vr(XF(kp), 4), vr(XF(kp+7), 4)
        c = lambda a: vr(a, 4) if kp else '0'
        mm = lambda d, a, b, cc: f'v_mfma_f32_16x16x32_bf16 {vr(d,4)}, {a}, {b}, {cc}'
        ms = [mm(aS, vr(ones, 4), lo, c(aS)), mm(aG, lo, lo, c(aG)), mm(aS, vr(ones, 4), hi, vr(aS, 4)), mm(aG, hi, hi, vr(aG, 4))]
        ms += [mm(aT[tl], vr(HR[kp%2]+4*tl, 4), lo, c(aT[tl])) for tl in range(4)]
        ms += [mm(aHi[tl], vr(HR[kp%2]+4*tl, 4), hi, c(aHi[tl])) if tl in aHi else mm(aT[tl], vr(HR[kp%2]+4*tl, 4), hi, vr(aT[tl], 4)) for tl in (1, 3, 0, 2)]
        cur = [[rec(lambda m=m: e(m)), [], []] for m in ms]
        if half == 0: cur[0][0] = rec(lambda: k.wait(lg=f'xr{min(kp+1, 6)}')) + cur[0][0]
        cur[4][0] = rec(lambda: k.wait(lg=f'H{kp}')) + cur[4][0]
        if kp < 6:
            for i, o in enumerate(hread(kp + 1)): cur[4 + i][1].append(o)
            if half == 0 and kp < 5:
                for i, o in enumerate(xread(kp + 2)): cur[2 + i][1].append(o)
            if half:
                a_, b_, c_ = xchk(kp + 1); cur[9][2] += a_; cur[10][2] += b_; cur[11][2] += c_
        sl += cur
    if half == 0: sl[60][1] += rec(lambda: cnt_load(0, vX + 2))
    def stats():
        e(f'v_cndmask_b32 v{t}, 0, v{aG}, {sr(sMK,2)}')
        for r in range(1, 4): e(f'v_cndmask_b32 v{t}, v{t}, v{aG+r}, {sr(sMK+2*r,2)}')
        e(f'v_mul_f32 v{aS}, {fl(1.0/448)}, v{aS}')
        for sw in ('16', '32'):
            e(f'v_mov_b32 v{t+1}, v{t}')
            if sw == '16': e(f'v_mul_f32 v{aS}, v{aS}, v{aS}')
            e(f'v_permlane{sw}_swap_b32 v{t}, v{t+1}'); e(f'v_add_f32 v{t}, v{t}, v{t+1}')
        e(f'v_fmamk_f32 v{t}, v{t}, {fl(-1.0/448)}, v{aS}')
        e(f'v_min_f32 v{t}, 0, v{t}'); e(f'v_sub_f32 v{t}, {fl(1e-5)}, v{t}'); e(f'v_rsq_f32 v{t}, v{t}')
    k.slots(sl[:80], nbg=1)
    if OPT['fine']: stamp(f'A{half}.mf')
    if half == 0: k.bg += img_ops(0, 0)
    st = rec(stats)
    for i in range(80, 84): sl[i][2] += st[:2]; st = st[2:]
    k.slots(sl[80:], nbg=0)
    k.run(st)
    for tl in (1, 3, 0, 2):
        for r in (0, 2):
            if tl in aHi: e(f'v_pk_add_f32 {vr(aT[tl]+r,2)}, {vr(aT[tl]+r,2)}, {vr(aHi[tl]+r,2)} neg_lo:[0,1] neg_hi:[0,1]')
        for r in (0, 2): e(f'v_pk_mul_f32 {vr(aT[tl]+r,2)}, {vr(aT[tl]+r,2)}, {vr(t,2)} op_sel_hi:[1,0]')
        for m in range(2): e(f'v_cvt_pk_f16_f32 v{aT[tl]+m}, v{aT[tl]+2*m}, v{aT[tl]+2*m+1}')
        k.ds(f'ds_write_b64 v{vcw}, {vr(aT[tl],2)} offset:{2048*tl}', 'cw')
    e(f'v_lshlrev_b32 v{t}, 3, v{vL}'); e(f'v_add_u32 v{t}, {lc}, v{t}')
    if half == 0: cnt_check(0, vX + 2)
    k.idle(40)
    k.wait(lg='cw'); e('s_barrier')
    stamp(f'A{half}.hdft')
    cf = lambda tl, k1_: 16 + 8*tl + 4*k1_
    k.depth += 1
    for k1_ in range(2):
        for tl in (0, 2, 1, 3):
            for h2 in range(2): k.ds(f'ds_read_b64_tr_b16 {vr(cf(tl,k1_)+2*h2,2)}, v{t} offset:{2048*tl + 1024*k1_ + 512*h2}', f'c{tl}{k1_}')
    Dt = lambda tl: 48 + 4*tl
    for k1_ in range(2):
        for tl in (0, 2, 1, 3):
            k.wait(lg=f'c{tl}{k1_}')
            e(f'v_mfma_f32_16x16x32_f16 {vr(Dt(tl),4)}, {vr(Ff+4*k1_,4)}, {vr(cf(tl,k1_),4)}, {vr(Dt(tl),4) if k1_ else 0}')
    e('s_barrier')
    def bfly(pp, u):
        kk1 = f'v{k1}' if pp == 0 else '-1.0'; nk1 = f'-v{k1}' if pp == 0 else '1.0'
        CA, SA, CB, SB = Dt(u) + 2*pp, Dt(u) + 2*pp + 1, Dt(2+u) + 2*pp, Dt(2+u) + 2*pp + 1
        o = 64 + 8*pp + 4*u
        e(f'v_fma_f32 v{o}, {kk1}, v{SB}, v{CA}'); e(f'v_fma_f32 v{o+1}, {kk1}, v{SA}, -v{CB}')
        e(f'v_fma_f32 v{o+2}, {nk1}, v{CA}, v{SB}'); e(f'v_fma_f32 v{o+3}, {kk1}, v{CB}, v{SA}')
        for m in range(2): e(f'v_cvt_pk_f16_f32 v{80+4*pp+2*u+m}, v{o+2*m}, v{o+2*m+1}')
    bfly(0, 0); bfly(1, 0)
    for pp in range(2):
        bfly(pp, 1)
        k.vmem(f'buffer_store_dwordx4 {vr(80+4*pp,4)}, v{vu}, {sr(sWS,4)}, s{sT+4+pp} offen sc1', 'Ust')
    k.depth -= 1
    stamp(f'A{half}.ust')

def US(half): return 16 if half == 0 else 256
def TOFF(half): return 32 * 912 if half == 0 else 28672
def rowaddr(half, dst, j, t):
    if half == 0: e(f'v_mul_u32_u24 v{dst}, 912, v{j}')
    else:
        e(f'v_lshrrev_b32 v{t}, 4, v{j}'); e(f'v_mul_u32_u24 v{t}, 14336, v{t}'); e(f'v_and_b32 v{dst}, 15, v{j}'); e(f'v_lshl_add_u32 v{dst}, v{dst}, 4, v{t}')
def phB(half):
    us = US(half); RAW = lambda kap: 16 + 16*kap; ACC = lambda u, pq: 80 + 32*pq + 16*u; MF = 144
    vu, vd, vmP, vmQ = vA, vA + 1, vA + 2, vA + 3
    vu2, vm, tc = (vSa, vSb, vT1) if half else (vX, vX + 1, vX + 2)
    t = 88; t0 = k.clk
    k.bg += img_ops(half, 1); k.bg_period = OPT['perB'] if half == 0 else 64
    save = k.refill; k.refill = None
    e(f'v_bfe_u32 v{t}, v{vL}, 2, 1'); e(f'v_bfe_u32 v{t+1}, v{vL}, 3, 2'); e(f'v_and_b32 v{t+2}, 3, v{vL}')
    e(f'v_lshl_add_u32 v{t+1}, v{t}, 2, v{t+1}'); e(f'v_lshl_add_u32 v{t+1}, v{t+1}, 2, v{t+2}'); e(f's_mul_i32 s{sT+2}, s{sW}, 448')
    e(f'v_lshl_add_u32 v{t+1}, v{t+1}, 4, s{sT+2}'); e(f'v_subrev_u32 v{t}, 1792, v{t+1}'); e(f'v_min_u32 v{t+1}, v{t}, v{t+1}')
    e(f'v_lshrrev_b32 v{t+2}, 5, v{vL}'); e(f'v_mul_u32_u24 v{t}, 7168, v{t+2}'); e(f'v_add_u32 v{vu}, v{t}, v{t+1}'); e(f'v_add_u32 v{vu2}, 3584, v{vu}')
    e(f's_mul_i32 s{sUO}, s{sP}, 57344'); e(f's_add_u32 s{sUO}, s{sUO}, {WS_U2 if half else WS_U1}')
    for i in range(1, 4): e(f's_add_u32 s{sUO+i}, s{sUO}, {14336*i}')
    j, a = t + 3, t + 4
    e(f'v_and_b32 v{j}, 31, v{vL}'); e(f's_mul_i32 s{sT}, s{sW}, 7'); e(f'v_lshl_add_u32 v{a}, v{t+2}, 2, s{sT}')
    rowaddr(half, vd, j, t); e(f'v_mul_u32_u24 v{t+1}, {us}, v{a}'); e(f'v_add_u32 v{vd}, v{vd}, v{t+1}')
    e(f'v_sub_u32 v{a}, {52*us}, v{t+1}')
    e(f's_cmp_eq_u32 s{sP}, 0\ns_cselect_b32 s{sT}, 32, 63\ns_cselect_b32 s{sT+1}, 31, 63\ns_cselect_b32 s{sT+2}, 63, 31')
    e(f'v_sub_u32 v{t+5}, s{sT}, v{j}'); e(f'v_and_b32 v{t+5}, s{sT+1}, v{t+5}'); rowaddr(half, vmP, t + 5, t); e(f'v_add_u32 v{vmP}, v{vmP}, v{a}')
    e(f'v_sub_u32 v{t+5}, s{sT+2}, v{j}'); rowaddr(half, vmQ, t + 5, t); e(f'v_add_u32 v{vmQ}, v{vmQ}, v{a}')
    e(f's_cmp_eq_u32 s{sW}, 0\ns_cselect_b32 s{sMK}, 0, -1'); e(f's_mov_b32 s{sMK+1}, -1')
    e(f'v_add_u32 v{vm}, {L_M}, v{vL16}')
    if half == 0:
        gen_M(96); late_setup()
        k.bg_flush(); k.refill = save
        k.idle(max(0, t0 + OPT['idleU'] - k.clk))
        k.refill = None
    k.bg_flush()
    k.wait(vm='Ust')
    stamp(f'B{half}.ack')
    def uloads(first):
        for kap in range(first, 4):
            for jj in range(4):
                k.vmem(f'buffer_load_dwordx4 {vr(RAW(kap)+4*jj,4)}, v{vu if jj < 2 else vu2}, {sr(sWS,4)}, s{sUO+kap} offen offset:{1792*(jj%2)} sc1', f'U{kap}')
    ld = rec(lambda: uloads(0))
    if half == 0:
        ws.drain_landed(0); fill = k.bg; k.bg = []
        k.run(k.weave(ld[:11], fill, 40))
        k.wait(vm='img1')
    else:
        k.run(ld[:8])
        def chk():
            e(f's_mul_i32 s{sT}, s{sW}, 7168'); e(f'v_add_u32 v{t}, s{sT}, v{vL16}')
            for i in range(14): k.ds(f'ds_read_b32 v{t+2+i}, v{t} offset:{L_X + 28672*(i//7) + 1024*(i%7)}', 'ic')
            k.wait(lg='all'); e(f'v_max_u32 v{t+1}, v{t+2}, v{t+3}')
            for i in range(6): e(f'v_max3_u32 v{t+1}, v{t+1}, v{t+4+2*i}, v{t+5+2*i}')
            e(f'v_cmp_eq_u32 vcc, -1, v{t+1}')
        k.wait(vm='img1')
        k.run(k.weave(ld[8:11], rec(chk), 50)); retry_site(chk, lambda: k.run(img_ops(1, 0) + img_ops(1, 1)), 'img')
    k.wait(lg='Mw'); e('s_barrier')
    mread = lambda kap, pq: k.ds(f'ds_read_b128 {vr(MF+4*pq,4)}, v{vm} offset:{4096*pq + 1024*kap}', f'M{pq}')
    mread(0, 0); mread(0, 1)
    if half == 0:
        for o in ld[11:]: ws.cs_flush(6); k.run([o])
        k.refill = save; k.bg_next = k.clk + 300
        ws.cs_flush()
    else: k.run(ld[11:])
    XU = lambda pq, b, mir: RAW(2*pq + (b >> 1)) + 8*(b & 1) + 4*mir
    def xread(pq, b):
        k.ds(f'ds_read_b128 {vr(XU(pq,b,0),4)}, v{vd} offset:{L_X + pq*TOFF(half) + b*us}', f'xd{pq}{b}')
        k.ds(f'ds_read_b128 {vr(XU(pq,b,1),4)}, v{vmQ if pq else vmP} offset:{L_X + (3-b)*us}', f'xm{pq}{b}')
    lag = ws.lag; ws.lag = 99
    for kap in range(4):
        R = RAW(kap)
        chk = lambda R=R: (e(f'v_max3_u32 v{tc}, v{R}, v{R+4}, v{R+8}'), e(f'v_max_u32 v{tc}, v{tc}, v{R+12}'), e(f'v_cmp_eq_u32 vcc, -1, v{tc}'))
        k.wait(vm=f'U{kap}'); chk(); retry_site(chk, lambda kap=kap: uloads(kap), f'U{half}_{kap}')
        if kap == 3: stamp(f'B{half}.Uin')
        sw = lambda i, jx: e(f'v_swap_b32 v{R+4*i+jx}, v{R+4*jx+i}')
        def mf(u, pq):
            A = ACC(u, pq); e(f'v_mfma_f32_32x32x16_f16 {vr(A,16)}, {vr(R+4*(2*u+pq),4)}, {vr(MF+4*pq,4)}, {vr(A,16) if kap else 0}')
        sw(0, 1); sw(0, 2); sw(0, 3); sw(1, 2); k.wait(lg='M0');
        mf(0, 0); sw(2, 3); sw(1, 3); k.wait(lg='M1'); mf(1, 0)
        if kap < 3: mread(kap + 1, 0)
        mf(0, 1); mf(1, 1)
        if kap < 3: mread(kap + 1, 1)
        xread(kap >> 1, 2*(kap & 1)); xread(kap >> 1, 2*(kap & 1) + 1)
    ws.lag = lag
    T = MF
    sel = lambda hi: f's{sHI if hi else sLO}'
    for pq in range(2):
        Y = lambda b, n: ACC(n & 1, pq) + 4*b + (n >> 1)
        e(f'v_mov_b32 v{vu}, v{Y(0,0)}'); e(f'v_cndmask_b32 v{Y(0,0)}, 0, v{Y(0,0)}, {sr(sMK,2)}')
        for b in range(4):
            if b == 3: k.depth += 1; e('s_mov_b32 exec_hi, 0')
            xd, xm = XU(pq, b, 0), XU(pq, b, 1)
            k.wait(lg=f'xm{pq}{b}')
            for n in range(8): e(f'v_dot2_f32_bf16 v{T+n}, v{xd + (n >> 1)}, {sel(n & 1)}, v{Y(b,n)}')
            e(f'v_dot2_f32_bf16 v{Y(b,0)}, v{xm}, {sel(0)}, v{Y(b+1,0) if b < 3 else tc}')
            for m in range(1, 8): e(f'v_dot2c_f32_bf16 v{Y(b,8-m)}, {sel(m & 1)}, v{xm + (m >> 1)}')
            if b == 0: e(f'v_permlane32_swap_b32 v{vu}, v{tc}')
            for m in range(4): e(f'v_cvt_pk_bf16_f32 v{xd+m}, v{T+2*m}, v{T+2*m+1}')
            for m in range(4): e(f'v_cvt_pk_bf16_f32 v{xm+m}, v{Y(b,(8-2*m)%8)}, v{Y(b,7-2*m)}')
            k.ds(f'ds_write_b128 v{vd}, {vr(xd,4)} offset:{L_X + pq*TOFF(half) + b*us}', 'xw')
            k.ds(f'ds_write_b128 v{vmQ if pq else vmP}, {vr(xm,4)} offset:{L_X + (3-b)*us}', 'xw')
        e('s_mov_b32 exec_hi, -1'); k.depth -= 1

def ffn(half):
    us = US(half); toff = TOFF(half)
    vb, vs, vst, vh = vA, vA + 1, vA + 2, vA + 3
    BR = lambda i: B[5] + 4*(i % 3); MFR = B[5] + 12; t = B[5] + 14
    vres = B[4]
    e(f'v_and_b32 v{t}, 31, v{vL}'); rowaddr(half, vb, t, t + 1); e(f'v_lshlrev_b32 v{vst}, 3, v{t}')
    e(f'v_lshrrev_b32 v{t}, 5, v{vL}')
    if OPT['rot']: e(f's_mul_i32 s{sT+1}, s{sCI}, 14'); e(f'v_add_u32 v{t}, s{sT+1}, v{t}')
    e(f'v_mul_u32_u24 v{t}, {us}, v{t}'); e(f'v_add_u32 v{vb}, v{vb}, v{t}')
    e(f'v_lshrrev_b32 v{t}, 3, v{vL}'); e(f's_lshl_b32 s{sT}, s{sW}, 3'); e(f'v_add_u32 v{t}, s{sT}, v{t}'); rowaddr(half, vs, t, t + 1)
    e(f'v_lshlrev_b32 v{vh}, 3, v{t}')
    e(f'v_and_b32 v{t}, 7, v{vL}'); e(f'v_mul_u32_u24 v{t}, {us}, v{t}'); e(f'v_add_u32 v{vs}, v{vs}, v{t}')
    def more():
        e(f's_mul_i32 s{sT+1}, s{sG}, {8*us}')
        if half == 0:
            e(f'v_and_b32 v{t}, 7, v{vL}'); e(f'v_add_u32 v{t}, s{sT}, v{t}'); rowaddr(half, vres, t, t + 1)
            e(f'v_lshrrev_b32 v{t}, 3, v{vL}'); e(f'v_lshl_add_u32 v{vres}, v{t}, 4, v{vres}'); e(f'v_add_u32 v{vres}, s{sT+1}, v{vres}')
        else: e(f'v_add_u32 v{vres}, s{sT+1}, v{vs}')
        for T in range(2): k.ds(f'ds_read_b128 {vr(vR+4*T,4)}, v{vres} offset:{L_X + T*toff}', 'res')
        e(f's_mov_b32 s{sMK}, -1'); e(f's_mov_b32 s{sMK+1}, 0'); e(f's_mov_b32 s{sMK+2}, 0x80008000')
    vh1 = vT1
    if half == 0: ws.ensure(1); k.bg_period = OPT['perG']
    k.wait(lg='xw'); e('s_barrier')
    stamp(f'B{half}.end')
    if stop(f'B{half}', 61440): return True
    hvo = lambda T: vh1 if T else vL16
    ACC1 = lambda T, u: B[2*T + u]
    def bread(i):
        q = i % 28
        def f():
            k.ds(f'ds_read_b128 {vr(BR(i),4)}, v{vb} offset:{L_X + (i//28)*toff + 2*(q%7)*us}', f'B{i}')
            if q % 7 == 6 and i < 55: e(f's_mul_i32 s{sT+2}, s{sRD + q//7}, {2*us}\nv_add_u32 v{vb}, s{sT+2}, v{vb}')
        return Op('ds', 4, f)
    k.depth += 1; bread(0)(); bread(1)(); k.depth -= 1
    def stats_ops(T):
        SB = lambda j: B[6] + 4*(j % 2); s1, s2, lo, hi = B[6] + 8, B[6] + 9, B[6] + 10, B[6] + 12
        rd = lambda j: k.ds(f'ds_read_b128 {vr(SB(j),4)}, v{vs} offset:{L_X + T*toff + 8*j*us}', f'S{T}{j}')
        ops = rec(lambda: (rd(0), rd(1))) + [None, None]
        def body():
            for j in range(1 if OPT['nostats'] else 7):
                k.wait(lg=f'S{T}{j}')
                for m in range(4):
                    l_, h_ = lo + m % 2, hi + m % 2
                    e(f'v_lshlrev_b32 v{l_}, 16, v{SB(j)+m}'); e(f'v_and_b32 v{h_}, s{sFF}, v{SB(j)+m}')
                    if m == 3 and j + 2 < 7: rd(j + 2)
                    if j == 0 and m == 0: e(f'v_add_f32 v{s1}, v{l_}, v{h_}'); e(f'v_mul_f32 v{s2}, v{l_}, v{l_}'); e(f'v_fmac_f32 v{s2}, v{h_}, v{h_}')
                    else: e(f'v_add_f32 v{s1}, v{s1}, v{l_}'); e(f'v_fmac_f32 v{s2}, v{l_}, v{l_}'); e(f'v_add_f32 v{s1}, v{s1}, v{h_}'); e(f'v_fmac_f32 v{s2}, v{h_}, v{h_}')
        ops += rec(body)
        for c in ('quad_perm:[1,0,3,2]', 'quad_perm:[2,3,0,1]', 'row_half_mirror'):
            ops += rec(lambda: [e('s_nop 0')] + [e(f'v_add_f32_dpp v{r}, v{r}, v{r} {c} row_mask:0xf bank_mask:0xf') for r in (s1, s2)])
        ops += rec(lambda: (e(f'v_mul_f32 v{s1}, {fl(-1.0/448)}, v{s1}'), e(f'v_mul_f32 v{lo}, v{s1}, v{s1}'), e(f'v_fmamk_f32 v{s2}, v{s2}, {fl(-1.0/448)}, v{lo}'),
                e(f'v_min_f32 v{s2}, 0, v{s2}'), e(f'v_sub_f32 v{s2}, {fl(1e-5)}, v{s2}'), e(f'v_rsq_f32 v{s2}, v{s2}'))) + [None]
        ops += rec(lambda: k.ds(f'ds_write_b64 v{vh}, {vr(s1,2)} offset:{L_ST + 256*T}', 'stw')) + [None, None]
        ops += rec(lambda: (k.wait(lg='stw'), e('s_barrier'), k.ds(f'ds_read_b32 v{t}, v{vst} offset:{L_ST + 256*T}', 'm'))) + [None, None, None]
        ops += rec(lambda: (k.wait(lg='m'), e(f'v_cndmask_b32 v{t}, 0, v{t}, {sr(sMK,2)}'), e(f'v_cvt_pk_bf16_f32 v{MFR}, v{t}, v{t}'),
                e(f'v_and_b32 v{t+1}, s{sFF}, v{MFR}'), e(f'v_sub_f32 v{t}, v{t}, v{t+1}'), e(f'v_cvt_pk_bf16_f32 v{MFR+1}, v{t}, 0')))
        return ops
    OWN = [B[4], B[6]]
    def epi1(T):
        ng = '-' if half else ''
        for u in range(2):
            for be in range(2):
                d = OWN[T] + 8*u + 4*be; a = ACC1(T, u) + 8*be
                for m in range(4): e(f'v_cvt_pk_bf16_f32 v{d+m}, {ng}v{a+2*m}, {ng}v{a+2*m+1}')
                for m in range(4): e(f'v_pk_max_u16 v{d+m}, v{d+m}, s{sMK+2}' if half else f'v_pk_max_i16 v{d+m}, v{d+m}, 0')
                k.vmem(f'buffer_store_dwordx4 {vr(d,4)}, v{hvo(T)}, {sr(sWS,4)}, s{sHS} offen offset:{1024*(2*u+be)} sc1', 'hst')
    HB = {(0, 0): B[4], (0, 1): B[0], (0, 2): B[1], (0, 3): B[7], (0, 4): B[4], (0, 5): B[0], (0, 6): B[1],
          (1, 0): B[6], (1, 1): B[7], (1, 2): B[4], (1, 3): B[6], (1, 4): B[7], (1, 5): B[4], (1, 6): B[6]}
    inflight = []
    def hload(T, jp, i, track=True):
        def f():
            k.vmem(f'buffer_load_dwordx4 {vr(HB[T,jp]+4*i,4)}, v{hvo(T)}, {sr(sWS,4)}, s{sHS+jp} offen offset:{1024*i} sc1', f'h{T}{jp}')
            if track: inflight.append((T, jp, i)); k.bg_next = max(k.bg_next, k.clk) + 64
        return Op('vm', 4, f)
    def g1_slots(T):
        sl = []
        for n in range(28):
            i = 28*T + n
            for u in range(2):
                A = ACC1(T, u)
                def mf(A=A, n=n, u=u, i=i):
                    k.wait(lg=f'B{i}')
                    if half == 0 and T == 0: k.wait(lg=f'tr{n}')
                    e(f'v_mfma_f32_32x32x16_bf16 {vr(A,16)}, {w1f(n,u)}, {vr(BR(i),4)}, {vr(A,16) if n else 0}')
                pre = [bread(i + 2)] if (u == 0 and i + 2 < 56) else []
                if half == 0 and T == 0 and u == 1: pre.append(Op('ds', 0, lambda n=n: ws.ensure(min(n + 2, 27))))
                sl.append([[Op('mfma', 8, mf)], pre, []])
        return sl
    def corr(T): return [[rec(lambda: e(f'v_mfma_f32_32x32x8_bf16 {vr(ACC1(T,u),16)}, {vr(vCS+2*u,2)}, {vr(MFR,2)}, {vr(ACC1(T,u),16)}')), [], []] for u in range(2)]
    st0 = stats_ops(0); st1 = stats_ops(1)
    sl = g1_slots(0)
    k.slots(sl, st0[:2] + rec(more) + st0[2:], 54)
    if half == 0:
        k.depth += 1; ws.cs_flush(); assert ws.nc == 56 and ws.nd <= 43; cnt_load(1, B[7]); cs_finish(); k.depth -= 1
    log('g1(0) done')
    sl = corr(0) + g1_slots(1)
    hq = OPT['hq_slot'] - 56
    for n, (jp, i) in enumerate((jp, i) for jp in (1, 2, 3) for i in range(4)): sl[hq + 2*n + 1][1].append(hload(0, jp, i))
    q = st1[:24] + (rec(lambda: cnt_check(1, B[7])) if half == 0 else []) + rec(lambda: epi1(0)) + st1[24:] + rec(lambda: e(f'v_add_u32 v{vh1}, {7*16384}, v{vL16}'))
    k.slots(sl, q, 57)
    k.slots(corr(1))
    stamp(f'C{half}.g1')
    k.depth += 1; epi1(1); k.depth -= 1
    if stop(f'C{half}'): return True
    ACC2 = lambda T, v: (B[2 + v] if T == 0 else B[v])
    AR = lambda kk, v: B[5] + 8*(kk % 2) + 4*v
    def aread(kk, v, h2):
        so = ((28 + kk) % NSLOT) * 2048
        def f():
            k.wait(vm=f'w{28+kk}')
            k.ds(f'ds_read_b64_tr_b16 {vr(AR(kk,v)+2*h2,2)}, v{vT2+v} offset:{so + 1024*h2}', f'A{kk}{v}')
        return Op('ds', 4, f)
    tc = vb
    def hcheck(T, jp):
        R = HB[T, jp]
        def chk():
            if half == 0:
                e(f'v_or3_b32 v{tc}, v{R}, v{R+4}, v{R+8}'); e(f'v_or_b32 v{tc}, v{tc}, v{R+12}'); e(f'v_cmp_gt_i32 vcc, 0, v{tc}')
            else:
                e(f'v_bitop3_b32 v{tc}, v{R}, v{R+4}, v{R+8} bitop3:0x80'); e(f'v_and_b32 v{tc}, v{tc}, v{R+12}'); e(f'v_cmp_le_i32 vcc, 0, v{tc}')
        def br():
            todo = [x for x in inflight if x[:2] >= (T, jp)]
            retry_site(chk, lambda: [hload(*x, track=False)() for x in todo], f'h{half}_{T}{jp}')
        return Op('v', 16, lambda: (k.wait(vm=f'h{T}{jp}'), chk())), Op('s', 20, br)
    RS = 1088; vrr, vo, vrwb = vs, vh, vT1 + 1
    def g2addr():
        tau, cc = B[5], B[5] + 1
        if half == 0: e(f'v_and_b32 v{tau}, 7, v{vL}'); e(f'v_lshrrev_b32 v{cc}, 3, v{vL}')
        else: e(f'v_lshrrev_b32 v{tau}, 3, v{vL}'); e(f'v_and_b32 v{cc}, 7, v{vL}')
        e(f's_lshl_b32 s{sT}, s{sW}, 3'); e(f'v_add_u32 v{tau}, s{sT}, v{tau}')
        e(f'v_mul_u32_u24 v{vrr}, {RS}, v{cc}'); e(f'v_lshl_add_u32 v{vrr}, v{tau}, 4, v{vrr}')
        e(f'v_lshlrev_b32 v{vst}, 3, v{tau}')
        if half == 0:
            rowaddr(1, vo, tau, cc + 1); e(f'v_lshl_add_u32 v{vo}, v{cc}, 8, v{vo}')
            for T in range(2):
                e(f's_mul_i32 s{sMK+4+T}, s{sRB if T else sP}, 28672'); e(f's_lshl_b32 s{sT}, s{sG}, 11'); e(f's_add_u32 s{sMK+4+T}, s{sMK+4+T}, s{sT}'); e(f's_add_u32 s{sMK+4+T}, s{sMK+4+T}, {WS_X2}')
        else:
            e(f'v_mul_u32_u24 v{vo}, 57344, v{tau}'); e(f'v_lshl_add_u32 v{vo}, v{cc}, 4, v{vo}')
            for T in range(2):
                e(f's_mul_i32 s{sMK+4+T}, s{sRB if T else sP}, 896'); e(f's_lshl_b32 s{sT}, s{sG}, 7'); e(f's_add_u32 s{sMK+4+T}, s{sMK+4+T}, s{sT}')
        e(f's_mul_i32 s{sT}, s{sW}, {8*RS}'); e(f'v_add_u32 v{vrwb}, s{sT}, v{vL16}')
        e('s_barrier')
    rr = vSb
    rwr = lambda T, c: k.ds(f'ds_write_b128 v{vrwb}, {vr(ACC2(T, c >> 2) + 4*(c & 3), 4)} offset:{L_RED + RS*c}', 'rw')
    rrd = lambda T: k.ds(f'ds_read_b32 v{rr}, v{vst} offset:{L_ST + 4 + 256*T}', 'rw')
    def red_final(T, PB, pk):
        x = vR + 4*T; ops = []
        for pw in range(4):
            ops += rec(lambda: [k.ds(f'ds_read_b128 {vr(PB+8*pw+4*h,4)}, v{vrr} offset:{L_RED + 8*RS*pw + 512*h}', f'p{pw}') for h in range(2)]) + [None]
        XT = B[7] if pk else None
        def body():
            if pk:
                for n in range(8): e(f'v_and_b32 v{XT+n}, s{sFF}, v{x + n//2}' if n & 1 else f'v_lshlrev_b32 v{XT+n}, 16, v{x + n//2}')
                k.wait(lg='p1')
                for n in range(0, 8, 2): e(f'v_pk_add_f32 {vr(PB+n,2)}, {vr(PB+n,2)}, {vr(PB+8+n,2)}')
                k.wait(lg='p3')
                for n in range(0, 8, 2): e(f'v_pk_add_f32 {vr(PB+16+n,2)}, {vr(PB+16+n,2)}, {vr(PB+24+n,2)}')
                for n in range(0, 8, 2): e(f'v_pk_add_f32 {vr(PB+n,2)}, {vr(PB+n,2)}, {vr(PB+16+n,2)}')
                ng = ' neg_lo:[1,0,0] neg_hi:[1,0,0]' if half else ''
                for n in range(0, 8, 2): e(f'v_pk_fma_f32 {vr(PB+n,2)}, {vr(PB+n,2)}, {vr(rr-1,2)}, {vr(XT+n,2)} op_sel:[0,1,0]{ng}')
            else:
                for pw in range(1, 4):
                    k.wait(lg=f'p{pw}')
                    for n in range(8): e(f'v_add_f32 v{PB+n}, v{PB+n}, v{PB+8*pw+n}')
                for n in range(8): e(f'v_and_b32 v{PB+8+n}, s{sFF}, v{x + n//2}' if n & 1 else f'v_lshlrev_b32 v{PB+8+n}, 16, v{x + n//2}')
                for n in range(8): e(f'v_fma_f32 v{PB+n}, {"-" if half else ""}v{rr}, v{PB+n}, v{PB+8+n}')
            for m in range(4): e(f'v_cvt_pk_bf16_f32 v{x+m}, v{PB+2*m}, v{PB+2*m+1}')
            if half == 0: k.vmem(f'buffer_store_dwordx4 {vr(x,4)}, v{vo}, {sr(sWS,4)}, s{sMK+4+T} offen sc1', 'xst')
            else: k.vmem(f'buffer_store_dwordx4 {vr(x,4)}, v{vo}, {sr(sOUT,4)}, s{sMK+4+T} offen', 'xst')
        return ops + [None] + rec(body)
    t1g = OPT['t1_grp']
    nxt = {(0, 0): (0, 4), (0, 1): (0, 5), (0, 2): (0, 6), (0, t1g): (1, 1), (0, t1g + 1): (1, 2), (1, 0): (1, 3), (1, 1): (1, 4), (1, 2): (1, 5), (1, 3): (1, 6)}
    for T in range(2):
        sl = []
        for kk in range(28):
            jp, i = kk >> 2, kk & 3
            for v in range(2):
                A = ACC2(T, v); wr = w2reg(kk, v)
                def mf(A=A, wr=wr, kk=kk, v=v, jp=jp, i=i):
                    if wr is None: k.wait(lg=f'A{kk}{v}')
                    elif half == 0 and T == 0:
                        if kk == 0: ws.ensure(28)
                        k.wait(lg=f'tr{28+kk}')
                    a = rn(wr, 4) if wr else vr(AR(kk, v), 4)
                    e(f'v_mfma_f32_32x32x16_bf16 {vr(A,16)}, {a}, {vr(HB[T,jp]+4*i,4)}, {vr(A,16) if kk else 0}')
                pre, post = [], []
                if half == 0 and T == 0 and v == 0: pre.append(Op('ds', 0, lambda kk=kk: ws.ensure(28 + kk + 2)))
                if 17 <= kk + 2 < 28: pre += [aread(kk + 2, v, 0), aread(kk + 2, v, 1)]
                if v == 1 and (T, jp) in nxt: pre.append(hload(*nxt[T, jp], i))
                if i == 3 and jp < 6: post.append(hcheck(T, jp + 1)[v])
                sl.append([[Op('mfma', 8, mf)], pre, post])
        if T == 0: k.slots(sl, rec(g2addr), 20)
        else:
            assert half or (ws.ni == 56 and not k.bg)
            q = [None, None]
            if half == 0: q += rec(lambda: cnt_load(2, vSa))
            q += rec(lambda: rrd(0))
            for c in range(8): q += rec(lambda: rwr(0, c)) + [None, None]
            if half == 0: q += rec(lambda: cnt_check(2, vSa)) + [None]
            q += rec(lambda: (k.wait(lg='rw'), e('s_barrier'))) + red_final(0, B[2], False) + [None] + rec(lambda: (e('s_barrier'), rrd(1)))
            k.slots(sl, q, 54)
        log(f'g2({T}) done')
    stamp(f'D{half}.g2')
    for c in range(8): rwr(1, c)
    k.wait(lg='all'); e('s_barrier')
    k.run(red_final(1, B[2], True))
    stamp(f'D{half}.st')
    k.refill = None
    return False

def main():
    prologue()
    for half in range(2):
        phA(half)
        if stop(f'A{half}'): return
        phB(half)
        if ffn(half): return
        if stop(f'D{half}'): return
    finish_stamps()
    e('s_endpgm')
main()
helper()
k.tail.append('L_end:')
k.tail.append('s_endpgm')
txt, nops = finish(k, OPT['grid'], 256, LDS_SZ, verbose=OPT['verbose'] > 1)
print(txt)
print(f'; wait states added: {nops}; stamps: {",".join(tsn)}')
```

```python
import re
KN = "interleave_layers__spectral_fnet__dense_activation_relu__prompt_kernel"

def vr(a, n=1): return f'v{a}' if n == 1 else f'v[{a}:{a+n-1}]'
def ar(a, n=1): return f'a{a}' if n == 1 else f'a[{a}:{a+n-1}]'
def sr(a, n=1): return f's{a}' if n == 1 else f's[{a}:{a+n-1}]'

def icost(line):
    op = line.split()[0]
    if line.endswith(':') or line.startswith('.'): return 'lab', 0
    if op.startswith('v_mfma'): return 'mfma', 8
    if op.startswith(('v_exp', 'v_log', 'v_rcp', 'v_rsq', 'v_sqrt', 'v_sin', 'v_cos', 'v_swap', 'v_permlane')): return 'v', 8
    if op.startswith('v_'): return 'v', 4
    if op.startswith('ds_'): return 'ds', 4
    if op.startswith(('buffer_', 'global_')): return 'vm', 4
    if op.startswith('s_cbranch'): return 's', 20
    return 's', 4
class Op:
    def __init__(s, kind, cost, fn, ta=0): s.kind, s.cost, s.fn, s.ta = kind, cost, fn, ta
    def __call__(s): s.fn()
class K:
    def __init__(self):
        self.out = []
        self.tail = []
        self.vm = []; self.lg = []
        self.nlab = 0
        self.recq = None; self.depth = 0
        self.clk = 0; self.mfma_free = 0; self.last = ''
        self.bg = []; self.bg_next = 0; self.bg_period = None; self.refill = None; self.quota = 999; self.in_bg = False; self.in_tail = False
    def _emit(self, s):
        for line in s.split('\n'):
            line = line.strip()
            if not line: continue
            self.out.append(line)
            if self.in_tail: continue
            kind, c = icost(line)
            if kind == 'mfma':
                self.clk = max(self.clk, self.mfma_free); self.mfma_free = self.clk + (32 if '32x32' in line else 16)
            elif line.startswith(('v_dot', 'v_pk_add_f32', 'v_pk_mul_f32', 'v_pk_fma_f32')): self.clk = max(self.clk, self.mfma_free + 12 if self.mfma_free > self.clk else 0)
            if kind in ('ds', 'vm') and self.last == 'v': c += 8
            self.clk += c
            if kind != 'lab': self.last = kind
    def _do(self, s, fn):
        if self.recq is not None:
            lines = [l.strip() for l in s.split('\n') if l.strip()]
            self.recq.append(Op(icost(lines[0])[0], sum(icost(l)[1] for l in lines), fn))
        else:
            fn(); self.tick()
    def e(self, s): self._do(s, lambda: self._emit(s))
    __call__ = e
    def vmem(self, s, tag=None): self._do(s, lambda: (self._emit(s), self.vm.append(tag)))
    def ds(self, s, tag=None): self._do(s, lambda: (self._emit(s), self.lg.append(tag)))
    def wait(self, vm=None, lg=None):
        if self.recq is not None: self.recq.append(Op('w', 0, lambda: self._wait(vm, lg)))
        else: self._wait(vm, lg)
    def call(self, fn, kind='s', cost=4):
        def run():
            self.depth += 1; fn(); self.depth -= 1
        if self.recq is not None: self.recq.append(Op(kind, cost, run))
        else: run(); self.tick()
    def rec(self, fn):
        save = self.recq; self.recq = []; fn(); q = self.recq; self.recq = save; return q
    def run(self, ops):
        for o in ops:
            if o is None: continue
            if self.recq is not None: self.recq.append(o)
            else: o(); self.tick()
    def lab(self, base='L'):
        self.nlab += 1
        return f'{base}_{self.nlab}'
    def tick(self):
        if self.depth or self.in_bg or self.in_tail or self.bg_period is None: return
        if self.bg_due(): self.bg_step()
    def bg_due(self):
        if self.bg_period is None: return False
        if not self.bg and self.refill: self.refill()
        return bool(self.bg) and (self.bg[0].ta == 0 or (self.clk >= self.bg_next and self.quota > 0))
    def bg_flush(self):
        while self.bg: self.bg_step()
    def bg_step(self):
        o = self.bg.pop(0); self.in_bg = True; o(); self.in_bg = False
        if o.ta: self.bg_next = max(self.bg_next, self.clk - 100) + (self.bg_period or 72) * o.ta; self.quota -= 1
    def seg(self, count, cycles, delay=0):
        self.quota = count; self.bg_period = max(1, cycles // max(1, count)); self.bg_next = self.clk + delay
    def burst(self, count):
        while count > 0:
            if not self.bg and self.refill: self.refill()
            if not self.bg: break
            count -= self.bg[0].ta; self.bg_step()
    def idle(self, cycles):
        end = self.clk + cycles
        while self.bg_period is not None:
            if not self.bg and self.refill: self.refill()
            if not self.bg: break
            if self.bg[0].ta and self.bg_next > end: break
            if self.bg[0].ta: self.clk = max(self.clk, self.bg_next - 200)
            if self.clk >= end: break
            self.bg_step()
        self.clk = max(self.clk, end)
    def slots(self, sl, q=None, deadline=None, nbg=2):
        q = list(q or []); head = []; self.depth += 1
        deadline = len(sl) if deadline is None else deadline
        for i, (mf, pre, post) in enumerate(sl):
            for o in mf: o()
            for o in list(pre) + head: o()
            head = []
            n = 0
            while n < nbg and self.bg_due(): self.bg_step(); n += 1
            left = deadline - i
            brk = sum(1 for o in q if o is None)
            share = sum(o.cost for o in q if o) / max(1, left - brk * 0.5) if left > 0 else 1e9
            res = 4 + sum(o.cost for o in post); used = 0
            while q:
                o = q[0]
                if o is None:
                    q.pop(0)
                    if left > 0: break
                    continue
                if o.kind in ('ds', 'vm') and self.last == 'v' and left > 1 and i + 1 < len(sl):
                    if head and len(head) >= 2: break
                    head.append(q.pop(0)); used += o.cost; continue
                if o.kind == 'w' and head: break
                if self.clk + o.cost > self.mfma_free - res and used + o.cost / 2 > share: break
                q.pop(0); o(); used += o.cost
            for o in post: o()
        for o in head + q:
            if o: o()
        self.depth -= 1
    def weave(self, mem, fill, gap):
        fill = list(fill); self.depth += 1
        for o in mem:
            o(); t = self.clk + gap
            while fill and self.clk < t: fill.pop(0)()
        self.depth -= 1
        return fill
    def _n_after(self, q, tag):
        idx = [i for i, t in enumerate(q) if t == tag]
        return None if not idx else len(q) - 1 - idx[-1]
    def _wait(self, vm=None, lg=None):
        parts = []
        if vm is not None:
            n = 0 if vm == 'all' else self._n_after(self.vm, vm)
            if n is not None and (self.vm or vm == 'all'):
                n = min(n, 63); parts.append(f'vmcnt({n})'); self.vm = self.vm[len(self.vm) - n:] if n else []
        if lg is not None:
            n = 0 if lg == 'all' else self._n_after(self.lg, lg)
            if n is not None and (self.lg or lg == 'all'):
                n = min(n, 15); parts.append(f'lgkmcnt({n})'); self.lg = self.lg[len(self.lg) - n:] if n else []
        if parts: self._emit('s_waitcnt ' + ' '.join(parts))
    def begin_tail(self):
        assert self.recq is None
        self._save = (self.out, list(self.vm), list(self.lg)); self.out = self.tail; self.in_tail = True
    def end_tail(self):
        self.out, self.vm, self.lg = self._save; self.in_tail = False

_REG = re.compile(r'^(-|\|)?(abs\()?([vas])(\d+|\[(\d+):(\d+)\])\)?\|?$')
def regs(op):
    op = op.strip()
    if op in ('vcc', 'vcc_lo', 'vcc_hi'): return {('s', 'vcc')}
    if op in ('exec', 'exec_lo', 'exec_hi'): return {('s', 'exec')}
    if op == 'm0': return {('s', 'm0')}
    m = _REG.match(op)
    if not m: return set()
    k = m.group(3)
    if m.group(5) is not None: return {(k, i) for i in range(int(m.group(5)), int(m.group(6)) + 1)}
    return {(k, int(m.group(4)))}
TRANS = ('v_exp_', 'v_log_', 'v_rcp_', 'v_rsq_', 'v_sqrt_', 'v_sin_', 'v_cos_')
class I:
    def __init__(s, text):
        s.text = text
        t = text.split(';')[0].strip()
        s.label = t.endswith(':') or t.startswith('.')
        s.op = t.split()[0] if t else ''
        rest = t[len(s.op):].strip()
        ops = [o.strip() for o in re.split(r',\s*(?![^\[]*\])', rest)] if rest else []
        if ops:
            last = ops[-1].split()
            s.mods = last[1:]; ops[-1] = last[0] if last else ''
        else: s.mods = []
        s.ops = ops
        R = [regs(o) for o in ops]
        U = lambda l: set().union(*l) if l else set()
        s.w = set(); s.r = set(); s.kind = 'other'; s.passes = 0; s.A = s.C = set(); s.data = set()
        op = s.op
        if s.label: s.kind = 'label'
        elif op.startswith('v_mfma'):
            s.kind = 'mfma'; s.w = R[0]; s.A = R[1] | R[2]; s.C = R[3]; s.r = s.A | s.C
            s.passes = 8 if '32x32' in op else 4
        elif op.startswith('v_'):
            s.kind = 'valu'; s.w = R[0]; s.r = U(R[1:])
            if op.startswith(('v_fmac', 'v_dot2c', 'v_writelane', 'v_pk_fmac')) or 'dpp' in op or any(m.startswith(('row_', 'quad_perm')) for m in s.mods): s.r |= R[0]
            if op.startswith(('v_swap', 'v_permlane')): s.w = R[0] | R[1]; s.r = R[0] | R[1]
            if op.startswith(('v_add_co', 'v_sub_co', 'v_addc_co', 'v_subb_co')): s.w = R[0] | R[1]; s.r = U(R[2:])
            if op.startswith('v_cmpx'): s.w |= {('s', 'exec')}
        elif op.startswith('ds_'):
            s.kind = 'ds'
            if op.startswith(('ds_read', 'ds_bpermute', 'ds_permute', 'ds_swizzle')): s.w = R[0]; s.r = U(R[1:])
            else: s.r = U(R)
        elif op.startswith(('buffer_', 'global_')):
            s.kind = 'vmem'
            if 'lds' in s.mods: s.r = U(R) | {('s', 'm0')}
            elif 'load' in op: s.w = R[0]; s.r = U(R[1:])
            else:
                s.r = U(R)
                if op.endswith(('x3', 'x4')): s.data = R[0] if op.startswith('buffer_') else R[1]
        elif op.startswith('s_'):
            s.kind = 'salu'
            if op.startswith(('s_cmp', 's_bitcmp', 's_cbranch', 's_branch', 's_waitcnt', 's_nop', 's_barrier', 's_endpgm', 's_sleep', 's_setprio')): s.r = U(R)
            else:
                s.w = R[0] if R else set(); s.r = U(R[1:])
                if 'saveexec' in op: s.w |= {('s', 'exec')}
        s.states = int(ops[0]) + 1 if op == 's_nop' else (0 if s.label else 1)
        s.dpp = 'dpp' in op or any(m.startswith(('row_', 'quad_perm', 'wave_')) for m in s.mods)
def need(p, c):
    n = 0
    vec = lambda S: {x for x in S if x[0] in 'va'}
    sc = lambda S: {x for x in S if x[0] == 's'}
    if p.kind == 'valu':
        wv, ws = vec(p.w), sc(p.w)
        if c.kind == 'mfma' and wv & c.r: n = max(n, 3 if p.op.startswith('v_dot') else 2)
        if c.kind == 'mfma' and ('s', 'exec') in ws: n = max(n, 4)
        if c.kind == 'valu':
            if c.op.startswith(('v_readfirstlane', 'v_readlane')) and wv & c.r: n = max(n, 1)
            if c.op.startswith('v_permlane') and wv & c.r: n = max(n, 2)
            if c.dpp and wv & c.r: n = max(n, 2)
            if p.op.startswith(TRANS) and wv & c.r and not c.op.startswith(TRANS): n = max(n, 1)
            if ws & c.r: n = max(n, 4 if c.op.startswith(('v_readlane', 'v_writelane')) else 2)
            if c.op.startswith('v_cndmask') and ('s', 'vcc') in ws: n = max(n, 2)
        if p.op.startswith('v_dot') and c.kind in ('valu', 'ds', 'vmem') and wv & (c.r | c.w):
            same_c = c.op == p.op and not (wv & (regs(c.ops[1]) | regs(c.ops[2])))
            if not same_c: n = max(n, 3)
        if c.kind == 'vmem' and ws & c.r: n = max(n, 5)
        if c.kind == 'salu' and ws & c.r and not c.op.startswith('s_cbranch'): n = max(n, 1)
    if p.kind == 'mfma':
        big = {4: 8, 8: 12}[p.passes]
        if c.kind == 'mfma':
            if p.w & c.A: n = max(n, big)
            if p.w & c.C and not (p.w == c.C and p.passes == c.passes): n = max(n, big - 2)
            if p.w & c.w and not (p.w == c.w and p.passes == c.passes): n = max(n, big - 2)
        elif c.kind in ('valu', 'ds', 'vmem'):
            if p.w & (c.r | c.w): n = max(n, big)
            if c.kind == 'valu' and p.C & c.w: n = max(n, p.passes - 1)
    if p.kind == 'salu':
        if ('s', 'm0') in p.w and ('s', 'm0') in c.r and c.kind in ('vmem', 'valu'): n = max(n, 1)
    if p.kind == 'vmem' and p.data and c.kind in ('valu', 'ds', 'vmem', 'mfma') and p.data & c.w: n = max(n, 2)
    return n
def fix_hazards(lines, verbose=False):
    out = []; added = 0
    for text in lines:
        c = I(text)
        if c.kind != 'label':
            dist = 0; lack = 0; why = None
            for p in reversed(out):
                if dist >= 14: break
                if p.op in ('s_branch', 's_endpgm'): break
                k = need(p, c) - dist
                if k > lack: lack, why = k, p
                dist += p.states
            if lack > 0:
                out.append(I(f's_nop {lack-1}')); added += lack
                if verbose: print(f'; nop {lack}: [{why.text}] -> [{c.text}]')
        out.append(c)
    return [i.text for i in out], added

def _wrap(lines, grid, block, lds, vgpr, accum, sgpr, header):
    fmt = lambda l: l if l.endswith(':') or l.startswith('.') else '    ' + l
    s = header + f'; @launch grid=({grid},1,1) block=({block},1,1) lds={lds}\n'
    s += f'.amdgcn_target "amdgcn-amd-amdhsa--gfx950"\n.text\n.globl {KN}\n.p2align 12\n.p2align 8\n.type {KN},@function\n{KN}:\n'
    s += '\n'.join(fmt(l) for l in lines) + '\n'
    s += f'''.section .rodata,"a"
.p2align 6
.amdhsa_kernel {KN}
  .amdhsa_next_free_vgpr {vgpr}
  .amdhsa_next_free_sgpr {sgpr}
  .amdhsa_accum_offset {accum}
  .amdhsa_group_segment_fixed_size 0
  .amdhsa_kernarg_size 88
  .amdhsa_user_sgpr_count 2
  .amdhsa_user_sgpr_kernarg_segment_ptr 1
  .amdhsa_system_sgpr_workgroup_id_x 1
  .amdhsa_float_denorm_mode_32 3
.end_amdhsa_kernel
'''
    return s
def sizes(text):
    import subprocess, tempfile, os
    d = tempfile.mkdtemp(); open(d + '/a.s', 'w').write(text)
    r = subprocess.run(['clang', '-x', 'assembler', '-target', 'amdgcn-amd-amdhsa', '-mcpu=gfx950', '-c', d + '/a.s', '-o', d + '/a.o'], capture_output=True, text=True)
    assert r.returncode == 0, r.stderr[:2000]
    o = subprocess.run(['llvm-objdump', '-d', '--mcpu=gfx950', d + '/a.o'], capture_output=True, text=True).stdout
    return [4 * len(m.group(1).split()) for m in re.finditer(r'// [0-9A-F]{12}: ((?:[0-9A-F]{8} ?)+)', o)]
ENTRY_OFF = 0x300
def finish(k, grid, block, lds, vgpr=512, accum=256, sgpr=102, header='', verbose=False, pads=None):
    main, n1 = fix_hazards(k.out, verbose)
    tail, n2 = fix_hazards(k.tail, False)
    lines = main + tail
    if pads:
        MAXP = 16
        islab = lambda l: l.endswith(':') or l.startswith('.')
        sz = sizes(_wrap(lines + [f'L_pad{p}:' for p in range(1, MAXP + 1)], grid, block, lds, vgpr, accum, sgpr, header))
        assert len(sz) == sum(1 for l in lines if not islab(l)), (len(sz), len(lines))
        npages = (ENTRY_OFF + sum(sz) + 8 * MAXP) // 4096
        out = []; addr = ENTRY_OFF; page = 0; it = iter(sz); made = set(); ez = 0
        for l in lines:
            if ez == 1 and l.startswith('L_ret'): ez = 2
            if not islab(l):
                if addr // 4096 > page and not ez:
                    page = addr // 4096
                    out += [f'L_pad{page}:', f's_cbranch_execz {pads(page)}', 's_nop 0']; addr += 8; made.add(page)
                addr += next(it)
                if l == 's_mov_b64 exec, 0': ez = 1
                elif ez == 2: assert l == 's_mov_b64 exec, -1'; ez = 0
            out.append(l)
        def resolve(lab):
            while lab.startswith('L_pad') and int(lab[5:]) not in made: lab = pads(int(lab[5:]))
            return lab
        lines = [re.sub(r'L_pad\d+$', lambda m: resolve(m.group(0)), l) for l in out]
    return _wrap(lines, grid, block, lds, vgpr, accum, sgpr, header), n1
```

```python
import sys, struct
from kasm import *

OPT = dict(ts=0, stop='', verbose=0, hq_slot=90, t1_grp=4, grid=256, lag=6, perA=96, perB=96, perG=96, perH=76, rot=0, touch=1, pads=1, hpre=7, nx=8, nA=14, dA=100, nT=2, nK=6, nU=6, nE=12, imgfirst=1, nU0=0, nS=0, fill0=0, fillslot=6, e0=14, t1_slot=26, hord=0, hdl=14, lead=18, rot2=0, only=0, hq0=104,
           idleU=500, late=900, nostats=0, nofill=0, nocnt=0, fine=0, noh=0)
for a in sys.argv[1:]:
    key, val = a.split('=')
    OPT[key] = val if key in ('stop', 'amp') else int(val)
AMP = OPT.get('amp')
if AMP: OPT['ts'] = 1
TS, STOP = OPT['ts'], OPT['stop']
TSI = 's_memtime' if TS == 2 else 's_memrealtime'

S, D, F = 2048, 448, 1792
XB = S * D * 2
WS_U1, WS_U2, WS_X2, WS_H = 0, XB, 2 * XB, 3 * XB
WS_EP = WS_H + S * F * 2
WS_END = WS_EP + 64
WS_TS = 0x1000000
WS_DBG = 0x1100000
L_X = 0; L_RED = 0; L_H = 36864; L_ST = 64512
L_M = 65536; L_WA = L_M + 8192; WA_SZ = 22528
L_C = lambda half: 28672 if half else L_M
LDS_SZ = L_WA + 4 * WA_SZ
assert LDS_SZ <= 163840
NSLOT = 11
sX0, sW1, sW2, sOUT, sWS = 8, 12, 16, 20, 24
sW, sG, sP, sRB, sRETRY, sWA, sSO, sLO, sHI, sCI = 32, 33, 34, 35, 36, 37, 38, 39, 40, 41
sT = 42
sBG = 48
sMK = 52
sHS = 60
sIM, sIL = 67, 68
sFF = 69
sUO = 4
sRD = 96
sN = 28
sTS = 70
sRC = 100
sRO = 101
vL, vL16, vCS, vSa, vSb, vT1, vT2, vA = 0, 1, 2, 6, 7, 8, 10, 12
B = [16 + 16 * i for i in range(8)]; vR = 144
vCA, vSEL, vX = 240, 248, 252
def w1f(n, u): return ar(8 * n + 4 * u, 4)
def w2reg(kk, v):
    if kk < 4: return ('a', 224 + 8 * kk + 4 * v)
    if kk < 17: return ('v', 152 + 8 * (kk - 4) + 4 * v)
    return None
def rn(t, n): return ar(t[1], n) if t[0] == 'a' else vr(t[1], n)
fl = lambda x: '0x%08x' % struct.unpack('<I', struct.pack('<f', x))[0]

k = K(); e = k.e; rec = k.rec
nts = [0]; tsn = []
def log(msg):
    if OPT['verbose']: print(f'; [{k.clk}] {msg} ni={ws.ni} nd={ws.nd} cs={ws.nc}', file=sys.stderr)
def stamp(name):
    log(name)
    if not TS or (AMP and name != AMP): return
    i = nts[0]; nts[0] += 1; tsn.append(name); assert i < 26
    k.wait(lg='all')
    e(f'{TSI} s[50:51]\ns_waitcnt lgkmcnt(0)\ns_mov_b32 s{sTS+i}, s50')
def finish_stamps():
    if not TS: return
    if AMP:
        e('s_cmp_lg_u32 s2, 100'); e('s_cbranch_scc1 L_exit')
        e(f's_sub_u32 s44, s{sTS+1}, s{sTS}'); e('s_min_u32 s44, s44, 10000'); e('s_mul_i32 s44, s44, 50')
        e('s_memrealtime s[50:51]'); e('s_waitcnt lgkmcnt(0)'); e('s_add_u32 s44, s44, s50')
        e('L_amp:'); e('s_memrealtime s[50:51]'); e('s_waitcnt lgkmcnt(0)'); e('s_sub_u32 s45, s50, s44'); e('s_cmp_lt_i32 s45, 0'); e('s_cbranch_scc1 L_amp')
        return
    e('v_mov_b32 v16, 0')
    for i in range(nts[0]): e(f'v_writelane_b32 v16, s{sTS+i}, {i}')
    e(f'v_writelane_b32 v16, s{sRETRY}, 63'); e(f'v_writelane_b32 v16, s{sRC}, 62')
    e(f's_lshl_b32 s{sT}, s2, 2'); e(f's_add_u32 s{sT}, s{sT}, s{sW}'); e(f's_lshl_b32 s{sT}, s{sT}, 8'); e(f's_add_u32 s{sT}, s{sT}, {WS_TS}')
    e(f'v_lshlrev_b32 v17, 2, v{vL}')
    e(f'buffer_store_dword v16, v17, {sr(sWS,4)}, s{sT} offen')
def stop(name, dump_lds=0):
    if STOP != name: return False
    k.bg_period = None
    k.wait(vm='all', lg='all'); e('s_barrier')
    if dump_lds:
        e(f's_lshl_b32 s{sT}, s{sW}, 10'); e(f'v_add_u32 v20, s{sT}, v{vL16}')
        e(f's_lshl_b32 s{sT}, s2, 16'); e(f's_add_u32 s{sT}, s{sT}, {WS_DBG}')
        for i in range(dump_lds // 4096):
            e(f'ds_read_b128 v[16:19], v20'); e('s_waitcnt lgkmcnt(0)')
            e(f'buffer_store_dwordx4 v[16:19], v20, {sr(sWS,4)}, s{sT} offen'); e('s_nop 1'); e('v_add_u32 v20, 4096, v20')
    finish_stamps(); e('s_endpgm')
    return True

RCLS = {'cnt': 0, 'U0': 1, 'h0': 2, 'x2': 3, 'img': 4, 'U1': 5, 'h1': 6}
def retry_site(check, reload, name, br='s_cbranch_vccnz'):
    def f():
        slow, ok = k.lab('slow_' + name), k.lab('ok_' + name)
        e(f'{br} {slow}'); e(f'{ok}:')
        k.begin_tail()
        e(f'{slow}:')
        e(f's_cmp_eq_u32 s{sRETRY}, 0'); e(f's_cbranch_scc1 {ok}'); e(f's_sub_u32 s{sRETRY}, s{sRETRY}, 1')
        if TS: e(f's_add_u32 s{sRC}, s{sRC}, {1 << 4*RCLS[name.split("_")[0]]}')
        reload(); k.wait(vm='all', lg='all'); check(); k.wait(vm='all', lg='all')
        e(f'{br} {slow}'); e('s_nop 1'); e(f's_branch {ok}')
        k.end_tail()
    k.call(f, 's', 20)
def warm(site, first):
    def f():
        if OPT['pads']:
            e('s_mov_b64 exec, 0')
            for w in range(3): e(f's_cmp_eq_u32 s{sW}, {w}'); e(f's_cbranch_scc1 L_pad{first+w}')
            e(f's_branch L_pad{first+3}')
        elif site == 0: e('s_branch L_ret0')
        if site == 0: k.in_tail = True; helper(); k.in_tail = False
        e(f'L_ret{site}:'); e('s_mov_b64 exec, -1'); k.clk += 200
    k.call(f, 's', 250)
PADS = lambda p: 'L_ret0' if p <= 4 else (f'L_pad{p+4}' if p <= 12 else 'L_ret1')

class Stream:
    def __init__(s): s.ni = 0; s.nd = 0; s.nc = 0; s.limit = 4; s.lag = OPT['lag']
    def issue_ops(s):
        n = s.ni; s.ni += 1; ops = []
        if n == 28: ops += [Op(o.kind, o.cost, o.fn) for o in rec(lambda: src_off(896))]
        srd = sr(sW1 if n < 28 else sW2, 4)
        def a():
            if n >= NSLOT: assert s.done > n - NSLOT; k.wait(lg=f'tr{n-NSLOT}')
            elif n >= 4: k.wait(lg=f'xr{n-4}')
            e(f's_add_u32 m0, s{sWA}, {(n % NSLOT)*2048}')
            if n < 28:
                if n % 7 == 0 and n: e(f's_mul_i32 s{sBG}, s{sRD + n//7 - 1}, {16*3584}\ns_add_u32 s{sSO}, s{sSO}, s{sBG}\ns_sub_u32 s{sSO}, s{sSO}, {6*16*3584}')
                elif n: e(f's_add_u32 s{sSO}, s{sSO}, {16*3584}')
            else:
                if (n - 28) % 4: e(f's_add_u32 s{sSO}, s{sSO}, {16*896}')
                else:
                    e(f's_mul_i32 s{sBG}, s{sP}, {2*7*16384}\ns_sub_u32 s{sSO}, s{sHS + (n-28)//4}, s{sBG}\ns_sub_u32 s{sSO}, s{sSO}, {WS_H}\ns_mul_i32 s{sSO}, s{sSO}, 14\ns_lshl_b32 s{sBG}, s{sG}, 7\ns_add_u32 s{sSO}, s{sSO}, s{sBG}')
            k.vmem(f'buffer_load_dwordx4 v{vSa}, {srd}, s{sSO} offen lds', f'wa{n}')
        def b(): k.vmem(f'buffer_load_dwordx4 v{vSb}, {srd}, s{sSO} offen offset:1024 lds', f'w{n}'); s.sent = n + 1
        return ops + [Op('s', 12, a, 1), Op('vm', 4, b, 1)]
    def drain_ops(s):
        n = s.nd; s.nd += 1
        so = (n % NSLOT) * 2048
        def rd(u, h2):
            def f():
                assert s.sent > n; k.wait(vm=f'w{n}')
                if n < 28: dst, ad, off = ar(8*n + 4*u + 2*h2, 2), vT1 + u, so + 512*h2
                else:
                    t = w2reg(n - 28, u); dst, ad, off = rn((t[0], t[1] + 2*h2), 2), vT2 + u, so + 1024*h2
                k.ds(f'ds_read_b64_tr_b16 {dst}, v{ad} offset:{off}', f'tr{n}')
                if u and h2: s.done = n + 1
            return Op('ds', 4, f)
        return [rd(0, 0), rd(0, 1), rd(1, 0), rd(1, 1)]
    done = 0; sent = 0
    cs_on = 0; dmax = 45
    def mix(s, ops):
        out = []; n = s.cs_on
        for o in ops:
            out.append(o)
            if n > 0 and s.nc < 2*min(28, s.done - 1 if s.done < 29 else 28): out.append(s.cs_op()); n -= 1
        return out
    def refill(s):
        if s.nd < s.dmax and (s.ni - s.nd > s.lag or (s.ni == 56 and s.nd < s.ni)): k.bg += s.mix(s.drain_ops())
        elif s.ni < min(56, s.limit) and s.ni - NSLOT < s.nd: k.bg += s.mix(s.issue_ops())
    def drain_landed(s, keep):
        while s.nd < min(45, s.ni - keep): k.bg += s.drain_ops()
    def ensure(s, n):
        n = min(n, 55)
        while (s.done <= n if n < 45 else (s.ni <= n or k.bg)):
            if not k.bg:
                if s.ni <= n and s.ni - NSLOT < s.nd: k.bg += s.issue_ops()
                else: k.bg += s.drain_ops()
            k.bg_step()
    use = staticmethod(lambda n: 2*n if n < 28 else 116 + 2*(n - 28))
    def force(s, slot):
        if s.sent < s.ni and s.use(s.sent) <= slot + OPT['lead']: k.bg_flush()
        while s.ni < 56 and s.use(s.ni) <= slot + OPT['lead']:
            k.bg_flush()
            if s.ni - NSLOT >= s.nd: k.bg += s.drain_ops()
            k.bg += s.issue_ops(); k.bg_flush()
        n = max([-1] + [i for i in range(45) if s.use(i) <= slot + 4])
        if n >= 0: s.ensure(n)
    def cs_op(s):
        n, u = s.nc >> 1, s.nc & 1; s.nc += 1
        def g():
            assert s.done > n; k.wait(lg=f'tr{n}')
            acc = vr(vCA + 4*u, 4)
            e(f'v_mfma_f32_16x16x32_bf16 {acc}, {vr(vSEL,4)}, {w1f(n, u)}, {acc if n else 0}')
        return Op('mfma', 16, g)
    def cs_flush(s, maxn=99, behind=0):
        while s.nc < 2*min(28, s.done - behind) and maxn > 0: k.run([s.cs_op()]); maxn -= 1
ws = Stream()
def src_off(stride):
    e(f'v_lshrrev_b32 v{vSa}, 3, v{vL}'); e(f'v_lshrrev_b32 v{vSb}, 2, v{vL}'); e(f'v_and_b32 v{vSb}, 4, v{vSb}')
    e(f'v_xor_b32 v{vSb}, v{vSb}, v{vL}'); e(f'v_and_b32 v{vSb}, 7, v{vSb}'); e(f'v_mul_u32_u24 v{vSa}, {stride}, v{vSa}')
    e(f'v_lshl_add_u32 v{vSa}, v{vSb}, 4, v{vSa}'); e(f'v_add_u32 v{vSb}, {8*stride-1024}, v{vSa}')
def cs_finish():
    for u in range(2):
        c = vCA + 4*u; t = c + 1; d = vCS + 2*u
        e(f'v_cvt_pk_bf16_f32 v{t}, v{c}, v{c}'); e(f'v_and_b32 v{t+1}, s{sFF}, v{t}'); e(f'v_sub_f32 v{t+2}, v{c}, v{t+1}')
        e(f'v_cvt_pk_bf16_f32 v{d}, v{t+1}, v{t+2}'); e(f'v_and_b32 v{d+1}, 0xffff, v{t}')
def stream_setup():
    src_off(3584)
    rot = OPT['rot']
    e(f's_lshl_b32 s{sSO}, s{sG}, 2'); e(f's_add_u32 s{sSO}, s{sSO}, s{sW}'); e(f's_lshl_b32 s{sSO}, s{sSO}, 7')
    if rot == 1: e(f's_mov_b32 s{sRO}, s{sCI}')
    if rot == 2: e(f's_add_u32 s{sRO}, s2, s{sW}'); e(f's_and_b32 s{sRO}, s{sRO}, 3')
    if rot == 3: e(f's_and_b32 s{sRO}, s2, 3')
    if rot == 4: e(f's_mov_b32 s{sRO}, s{sW}')
    if rot: e(f's_mul_i32 s{sT}, s{sRO}, {7*16*3584}'); e(f's_add_u32 s{sSO}, s{sSO}, s{sT}')
    for q in range(4):
        if rot: e(f's_cmp_eq_u32 s{sRO}, {3-q}\ns_cselect_b32 s{sRD+q}, -21, 7')
        else: e(f's_mov_b32 s{sRD+q}, {-21 if q == 3 else 7}')
    t = B[1]
    e(f'v_bfe_u32 v{t}, v{vL}, 2, 2'); e(f'v_bfe_u32 v{t+1}, v{vL}, 3, 1'); e(f'v_bfe_u32 v{t+2}, v{vL}, 4, 1'); e(f'v_and_b32 v{t+3}, 3, v{vL}')
    e(f'v_lshlrev_b32 v{t}, 7, v{t}'); e(f'v_lshl_add_u32 v{t}, v{t+1}, 6, v{t}'); e(f'v_lshl_add_u32 v{t}, v{t+2}, 5, v{t}'); e(f'v_lshl_add_u32 v{t}, v{t+3}, 3, v{t}')
    e(f'v_add_u32 v{t}, s{sWA}, v{t}'); e(f'v_lshrrev_b32 v{t+1}, 5, v{vL}')
    e(f'v_lshl_add_u32 v{vT1}, v{t+1}, 10, v{t}'); e(f'v_lshl_add_u32 v{vT2}, v{t+1}, 9, v{t}')
    e(f'v_xor_b32 v{vT1+1}, 64, v{vT1}'); e(f'v_xor_b32 v{vT2+1}, 64, v{vT2}')
def late_setup():
    t = vSEL
    e(f'v_lshrrev_b32 v{t}, 2, v{vL}'); e(f'v_lshrrev_b32 v{t+1}, 4, v{vL}'); e(f'v_xor_b32 v{t}, v{t}, v{t+1}'); e(f'v_and_b32 v{t}, 1, v{t}')
    e(f'v_add_u32 v{t}, -1, v{t}'); e(f'v_and_b32 v{t}, 0x3f803f80, v{t}')
    for i in range(1, 4): e(f'v_mov_b32 v{t+i}, v{t}')
    e(f's_mul_i32 s{sT}, s{sP}, {2*7*16384}'); e(f's_lshl_b32 s{sT+1}, s{sW}, 12'); e(f's_add_u32 s{sT}, s{sT}, s{sT+1}'); e(f's_add_u32 s{sT}, s{sT}, {WS_H}')
    e({0: f's_mov_b32 s{sT+3}, 1', 1: f's_add_u32 s{sT+3}, s{sCI}, 1', 2: f's_and_b32 s{sT+3}, s2, 3\ns_add_u32 s{sT+3}, s{sT+3}, 1'}[OPT['rot2']]); e(f's_mov_b32 s{sT+1}, s{sG}')
    for jp in range(7):
        if jp: e(f's_add_u32 s{sT+1}, s{sT+1}, s{sT+3}'); e(f's_sub_u32 s{sT+2}, s{sT+1}, 7'); e(f's_min_u32 s{sT+1}, s{sT+1}, s{sT+2}')
        e(f's_lshl_b32 s{sT+2}, s{sT+1}, 14'); e(f's_add_u32 s{sHS+jp}, s{sT}, s{sT+2}')

def prologue():
    e('s_load_dwordx2 s[8:9], s[0:1], 0'); e('s_load_dwordx4 s[4:7], s[0:1], 48')
    e('s_load_dwordx2 s[20:21], s[0:1], 64'); e('s_load_dwordx2 s[24:25], s[0:1], 80')
    e('s_getpc_b64 s[46:47]'); e('L_pc:')
    e('v_lshrrev_b32 v1, 6, v0'); e('v_and_b32 v0, 63, v0'); e('s_bfe_u32 s3, s2, 0x50003'); e(f'v_readfirstlane_b32 s{sW}, v1')
    e('v_lshl_add_u32 v2, s3, 2, v1'); e('v_lshl_add_u32 v2, v0, 7, v2'); e('v_lshlrev_b32 v2, 7, v2'); e('v_min_u32 v2, L_end-L_pc, v2')
    e('s_mov_b64 exec, 7'); k.vmem('global_load_dword v3, v2, s[46:47]', 'touch'); e('s_mov_b64 exec, -1')
    e(f'v_lshlrev_b32 v{vL16}, 4, v0')
    e('s_sub_u32 s3, s2, 32'); e('s_cmp_ge_u32 s3, 224'); e('s_cbranch_scc1 L_helper')
    if TS: e(f'{TSI} s[50:51]'); e(f's_mov_b32 s{sRC}, 0')
    e(f's_lshr_b32 s{sT}, s3, 3'); e(f's_mul_i32 s{sCI}, s{sT}, 37'); e(f's_lshr_b32 s{sCI}, s{sCI}, 8')
    e(f's_mul_i32 s{sG}, s{sCI}, 7'); e(f's_sub_u32 s{sG}, s{sT}, s{sG}')
    e(f's_and_b32 s{sP}, s3, 7'); e(f's_lshl_b32 s{sP}, s{sP}, 1'); e(f's_lshr_b32 s{sT}, s{sCI}, 1'); e(f's_add_u32 s{sP}, s{sP}, s{sT}')
    e(f's_sub_u32 s{sT}, 32, s{sP}'); e(f's_cmp_eq_u32 s{sP}, 0'); e(f's_cselect_b32 s{sT}, 16, s{sT}')
    e(f's_bitcmp1_b32 s{sCI}, 0'); e(f's_cselect_b32 s{sP}, s{sT}, s{sP}')
    e(f's_mul_i32 s{sWA}, s{sW}, {WA_SZ}'); e(f's_add_u32 s{sWA}, s{sWA}, {L_WA}')
def srds(which):
    for r, n in ((sX0, XB), (sW1, D*F*2), (sW2, D*F*2), (sOUT, XB), (sWS, 0x2000000 if (TS or STOP) else WS_END)):
        if r in which: e(f's_mov_b32 s{r+2}, {n}'); e(f's_mov_b32 s{r+3}, 0x20000')
def copy_ptrs(first):
    if first: e(f's_mov_b32 s{sW1}, s4'); e(f's_mov_b32 s{sW1+1}, s5')
    else:
        e(f's_mov_b32 s{sW2}, s6'); e(f's_mov_b32 s{sW2+1}, s7')

def helper():
    e('L_helper:')
    e('s_cmp_ge_u32 s2, 32'); e('s_cbranch_scc1 L_exit')
    srds((sW1, sW2, sWS))
    e(f's_lshl_b32 s{sT}, s2, 2'); e(f's_add_u32 s{sT}, s{sT}, s{sW}'); e(f's_lshl_b32 s{sT+1}, s{sT}, 13'); e(f'v_lshl_add_u32 v2, v{vL}, 7, s{sT+1}')
    e(f's_mul_i32 s{sT+1}, s{sT}, {34*128}'); e(f's_add_u32 s{sT+1}, s{sT+1}, {8192*128}'); e(f'v_min_u32 v4, 33, v{vL}'); e(f'v_lshl_add_u32 v4, v4, 7, s{sT+1}')
    e('s_waitcnt lgkmcnt(0)'); copy_ptrs(True); copy_ptrs(False)
    hs = [0]
    def hstamp(w=None):
        if TS and not AMP:
            if w is not None: e(f's_waitcnt vmcnt({w})')
            e(f'{TSI} s[50:51]\ns_waitcnt lgkmcnt(0)\ns_mov_b32 s{sTS+hs[0]}, s50'); hs[0] += 1
    if OPT['hpre'] & 4: e('s_waitcnt vmcnt(0)')
    hstamp()
    if OPT['hpre'] & 1:
        for r in ((sW2,) if OPT['hpre'] & 8 else (sW1, sW2)):
            e(f'buffer_load_dword v8, v2, {sr(r,4)}, 0 offen'); e('s_barrier'); e(f'buffer_load_dword v8, v4, {sr(r,4)}, 0 offen'); e('s_barrier')
        hstamp(2); hstamp(0)
    if OPT['hpre'] & 2:
        e(f'v_min_u32 v5, 55, v{vL}'); e('v_lshrrev_b32 v6, 3, v5'); e('v_and_b32 v5, 7, v5')
        e(f's_lshr_b32 s{sT}, s2, 3'); e(f's_lshl_b32 s{sT}, s{sT}, 3'); e(f's_add_u32 s{sT}, s{sT}, s{sW}'); e(f's_lshl_b32 s{sT}, s{sT}, 3')
        e(f'v_add_u32 v5, s{sT}, v5'); e('v_mul_u32_u24 v5, 896, v5'); e(f'v_mul_u32_u24 v6, {256*896+128}, v6'); e(f'v_add3_u32 v5, v5, v6, 0')
        e(f'v_add_u32 v5, {256*896}, v5'); e(f's_mov_b32 s{sT}, {32*896}'); e(f's_mov_b32 s{sT+1}, 5')
        e('L_hl2:')
        e(f'v_add_u32 v5, {256*896}, v5'); e(f'v_subrev_u32 v6, {F*896}, v5'); e('v_min_u32 v5, v5, v6')
        e(f'buffer_load_dword v8, v5, {sr(sW2,4)}, 0 offen'); e(f'buffer_load_dword v8, v5, {sr(sW2,4)}, s{sT} offen')
        e(f's_sub_u32 s{sT+1}, s{sT+1}, 1'); e(f's_cmp_lg_u32 s{sT+1}, 0'); e('s_cbranch_scc1 L_hl2')
        hstamp(0)
    if TS and not AMP:
        n = nts[0]; nts[0] = 8; finish_stamps(); nts[0] = n
    e('L_exit:'); e('s_endpgm')

def gen_H():
    ef, a0, tc, q8 = 72, 73, 74, 75
    P0, P1, PK = 76, 84, 92
    e(f'v_and_b32 v{ef}, 15, v{vL}'); e(f's_and_b32 s{sT}, s{sW}, 1'); e(f's_lshl_b32 s{sT+1}, s{sG}, 5'); e(f's_add_u32 s{sT}, s{sT}, s{sT+1}')
    e(f'v_lshl_add_u32 v{ef}, v{ef}, 1, s{sT}'); e(f'v_mov_b32 v{a0}, 224'); e(f'v_cmp_eq_u32 vcc, 0, v{ef}')
    e(f'v_lshrrev_b32 v{q8}, 4, v{vL}'); e(f's_lshl_b32 s{sT+1}, s{sT+1}, 1'); e(f'v_lshl_add_u32 v{q8}, v{q8}, 3, s{sT+1}')
    e(f'v_cndmask_b32 v{ef}, v{ef}, v{a0}, vcc'); e(f'v_cvt_f32_u32 v{q8}, v{q8}'); e(f'v_cvt_f32_u32 v{ef}, v{ef}')
    e(f's_cmp_ge_u32 s{sW}, 2\ns_cselect_b32 s{sT}, {fl(-112.0)}, 0')
    e(f'v_fma_f32 v{a0}, v{q8}, v{ef}, s{sT}'); e(f'v_mul_f32 v{ef}, {fl(1.0/448)}, v{ef}'); e(f'v_mul_f32 v{q8}, {fl(1.0/448)}, v{a0}')
    e(f'v_rndne_f32 v{q8}, v{q8}'); e(f'v_fmamk_f32 v{a0}, v{q8}, {fl(-448.0)}, v{a0}'); e(f'v_mul_f32 v{a0}, {fl(1.0/448)}, v{a0}')
    e(f'v_mul_f32 v{tc}, {fl(32.0)}, v{ef}'); e(f'v_cos_f32 v{tc}, v{tc}')
    e(f's_mul_i32 s{sT}, s{sW}, {7*1024}'); e(f's_add_u32 s{sT}, s{sT}, {L_H}'); e(f'v_add_u32 v{q8}, s{sT}, v{vL16}')
    e(f'v_add_f32 v{tc}, v{tc}, v{tc}')
    for kap in range(7):
        cur, prv = (P0, P1) if kap % 2 == 0 else (P1, P0)
        if kap < 2:
            for jj in range(8): e(f'v_fmamk_f32 v{cur+jj}, v{ef}, {fl(32.0*kap+jj)}, v{a0}')
            for jj in range(8): e(f'v_cos_f32 v{cur+jj}, v{cur+jj}')
        else:
            for jj in range(0, 8, 2): e(f'v_pk_fma_f32 {vr(cur+jj,2)}, {vr(tc,2)}, {vr(prv+jj,2)}, {vr(cur+jj,2)} op_sel_hi:[0,1,1] neg_lo:[0,0,1] neg_hi:[0,0,1]')
        pk = PK + 4*(kap % 2)
        for m in range(4): e(f'v_cvt_pk_bf16_f32 v{pk+m}, v{cur+2*m}, v{cur+2*m+1}')
        k.ds(f'ds_write_b128 v{q8}, {vr(pk,4)} offset:{1024*kap}', 'Hw')
def gen_F(dst):
    mf, a0, t = 100, 101, 102
    T = 120
    e(f'v_bfe_u32 v{mf}, v{vL}, 1, 3'); e(f's_lshl_b32 s{sT}, s{sW}, 3'); e(f'v_add_u32 v{mf}, s{sT}, v{mf}')
    e(f'v_and_b32 v{t}, 1, v{vL}'); e(f'v_cvt_f32_u32 v{a0}, v{t}'); e(f'v_cmp_eq_u32 vcc, 0, v{mf}')
    e(f'v_lshlrev_b32 v{t}, 5, v{t}'); e(f'v_mul_f32 v{a0}, {fl(-0.25)}, v{a0}')
    e(f'v_cndmask_b32 v{mf}, v{mf}, v{t}, vcc'); e(f'v_cndmask_b32 v{a0}, v{a0}, 0, vcc')
    e(f'v_cvt_f32_u32 v{mf}, v{mf}'); e(f'v_lshrrev_b32 v{t}, 4, v{vL}'); e(f'v_lshlrev_b32 v{t}, 3, v{t}'); e(f'v_cvt_f32_u32 v{t}, v{t}')
    e(f'v_mul_f32 v{mf}, {fl(1.0/64)}, v{mf}'); e(f'v_fma_f32 v{a0}, v{t}, v{mf}, v{a0}')
    for k1 in range(2):
        for jj in range(8): e(f'v_fmamk_f32 v{T+8*k1+jj}, v{mf}, {fl(k1 + 32.0*(jj >> 2) + 2.0*(jj & 3))}, v{a0}')
    for i in range(16): e(f'v_cos_f32 v{T+i}, v{T+i}')
    for m in range(8): e(f'v_cvt_pk_f16_f32 v{dst+m}, v{T+2*m}, v{T+2*m+1}')
def gen_M(t0):
    j, s2f, ad = t0, t0 + 1, t0 + 2
    e(f'v_and_b32 v{j}, 31, v{vL}'); e(f'v_lshlrev_b32 v{j}, 6, v{j}')
    e(f'v_lshrrev_b32 v{s2f}, 5, v{vL}'); e(f's_lshl_b32 s{sT}, s{sW}, 3'); e(f'v_lshl_add_u32 v{s2f}, v{s2f}, 2, s{sT}'); e(f'v_cvt_f32_u32 v{s2f}, v{s2f}')
    e(f's_lshl_b32 s{sT}, s{sW}, 10'); e(f's_add_u32 s{sT}, s{sT}, {L_M}'); e(f'v_add_u32 v{ad}, s{sT}, v{vL16}')
    e(f's_cmp_eq_u32 s{sP}, 0\ns_cselect_b32 s{sT}, {fl(0.25)}, 0')
    for pq in range(2):
        T = t0 + 4 + 16*pq
        tf, a0 = T + 12, T + 13
        e(f'v_add_u32 v{tf}, s{sRB if pq else sP}, v{j}'); e(f'v_cvt_f32_u32 v{tf}, v{tf}'); e(f'v_mul_f32 v{tf}, {fl(1.0/2048)}, v{tf}')
        if pq: e(f'v_fma_f32 v{a0}, v{tf}, v{s2f}, s{sT}')
        else: e(f'v_mul_f32 v{a0}, v{tf}, v{s2f}')
        for jj in range(4): e(f'v_fmamk_f32 v{T+jj}, v{tf}, {fl(float(jj))}, v{a0}')
        for jj in range(4): e(f'v_sin_f32 v{T+4+jj}, v{T+jj}')
        for jj in range(4): e(f'v_cos_f32 v{T+jj}, v{T+jj}')
        for jj in range(4): e(f'v_cvt_pk_f16_f32 v{T+8+jj}, v{T+jj}, v{T+4+jj}')
        k.ds(f'ds_write_b128 v{ad}, {vr(T+8,4)} offset:{4096*pq}', 'Mw')

def img_ops(half, T):
    ops = []; rho = sRB if T else sP
    if half == 0:
        for r in range(8):
            def f(r=r):
                if r == 0: e(f's_lshl_b32 s{sIM}, s{sW}, 9\ns_add_u32 s{sIM}, s{sIM}, s{rho}\ns_mul_i32 s{sIM}, s{sIM}, 896\ns_mul_i32 s{sIL}, s{sW}, {8*912}')
                else: e(f's_add_u32 s{sIM}, s{sIM}, 57344')
                e(f's_add_u32 m0, s{sIL}, {L_X + 912*(32*T + r)}'); e('s_mov_b32 exec_hi, 0x00ffffff')
                k.vmem(f'buffer_load_dwordx4 v{vL16}, {sr(sX0,4)}, s{sIM} offen lds', f'img{T}'); e('s_mov_b32 exec_hi, -1')
            ops.append(Op('s', 20, f, 1))
    else:
        for i in range(7):
            def f(i=i):
                if i == 0: e(f's_mul_i32 s{sIL}, s{sW}, 7168\ns_add_u32 m0, s{sIL}, {L_X + 28672*T}\ns_mul_i32 s{sIM}, s{rho}, 28672\ns_add_u32 s{sIM}, s{sIM}, s{sIL}\ns_add_u32 s{sIM}, s{sIM}, {WS_X2}')
                if i == 4: e(f's_add_u32 m0, m0, 4096\ns_add_u32 s{sIM}, s{sIM}, 4096')
                k.vmem(f'buffer_load_dwordx4 v{vL16}, {sr(sWS,4)}, s{sIM} offen offset:{1024*(i%4)} sc1 lds', f'img{T}')
            ops.append(Op('s' if i % 4 == 0 else 'vm', 4, f, 1))
    return ops

XF = lambda kap: 16 + 4 * kap
BORD = [0, 3, 4, 1, 5, 2, 6]
SX = [0, 1, 3, 4, 5, 6, 7]
def x2_loads(first):
    for kp in range(first, 7):
        for kap in (kp, kp + 7):
            k.vmem(f'buffer_load_dwordx4 {vr(XF(kap),4)}, v{vL16}, {sr(sWS,4)}, s{SX[kap//2]} offen offset:{1024*(kap%2)} sc1', f'x{kap}')
def phA(half):
    aT = [72, 76, 84, 88]; aHi = {1: 80, 3: 92}; aS, aG = 96, 100
    HR = [104, 120]; ones = 136; Ff = 140; t = 148
    vx, vh, vu, vcw, k1 = vA, vA + 2, vA + 3, 150, 151
    lc = L_C(half)
    def misc():
        for i in range(4): e(f'v_mov_b32 v{ones+i}, 0x3f803f80')
        e(f'v_add_u32 v{vh}, {L_H}, v{vL16}')
        mk = [0x1000010000100001, 0x2000020000200002, 0x4000040000400004, 0x8000080000800008]
        for i in range(4): e(f's_mov_b32 s{sMK+2*i}, {mk[i] & 0xffffffff:#x}'); e(f's_mov_b32 s{sMK+2*i+1}, {mk[i] >> 32:#x}')
        e(f'v_and_b32 v{t}, 15, v{vL}'); e(f'v_lshrrev_b32 v{t+1}, 4, v{vL}'); e(f'v_lshlrev_b32 v{vcw}, 5, v{t}'); e(f'v_lshl_add_u32 v{vcw}, v{t+1}, 3, v{vcw}')
        e(f's_lshl_b32 s{sT}, s{sW}, 9'); e(f's_add_u32 s{sT}, s{sT}, {lc}'); e(f'v_add_u32 v{vcw}, s{sT}, v{vcw}')
        e(f's_lshl_b32 s{sT}, s{sW}, 2'); e(f'v_add_u32 v{vu}, s{sT}, v{t+1}'); e(f'v_cmp_eq_u32 vcc, 0, v{vu}')
        e(f'v_mul_u32_u24 v{vu}, {2*57344}, v{vu}'); e(f'v_lshl_add_u32 v{vu}, v{t}, 4, v{vu}'); e(f'v_cndmask_b32 v{k1}, -1.0, 0, vcc')
        e(f's_mul_i32 s{sT+4}, s{sP}, 7'); e(f's_add_u32 s{sT+4}, s{sT+4}, s{sG}'); e(f's_lshl_b32 s{sT+4}, s{sT+4}, 8'); e(f's_add_u32 s{sT+4}, s{sT+4}, {WS_U2 if half else WS_U1}')
        e(f's_add_u32 s{sT+5}, s{sT+4}, 57344')
    nfill = [0]
    def fills():
        ops = []
        for i in range(4):
            def f(i=i):
                if i == 0: e(f's_lshl_b32 s49, s49, 12\ns_add_u32 s49, s49, {WS_U2}')
                k.vmem(f'buffer_store_dwordx4 {vr(vCA,4)}, v{vL16}, {sr(sWS,4)}, s49 offen offset:{1024*i} sc1', 'fill'); nfill[0] += 1
            ops.append(Op('vm', 4, f, 1))
        k.bg += ops
    if half == 0:
        va, vb = vX, vX + 1
        srds((sX0,))
        e(f'v_lshrrev_b32 v{va}, 3, v{vL}'); e(f'v_lshrrev_b32 v{vb}, 4, v{vL}'); e(f'v_xor_b32 v{vb}, v{vb}, v{vL}'); e(f'v_and_b32 v{vb}, 7, v{vb}')
        e(f'v_mul_u32_u24 v{va}, 57344, v{va}'); e(f'v_lshl_add_u32 v{va}, v{vb}, 4, v{va}')
        e(f'v_xor_b32 v{vb}, 64, v{va}'); e(f'v_add_u32 v{vb}, {8*57344-1024}, v{vb}')
        e(f's_lshl_b32 s49, s3, 2'); e(f's_add_u32 s49, s49, s{sW}')
        e(f's_lshr_b32 s{sT}, s{sW}, 1'); e(f's_lshl_b32 s{sT}, s{sT}, 5'); e(f's_add_u32 s{sT}, s{sT}, s{sP}')
        e(f's_and_b32 s{sT+1}, s{sW}, 1'); e(f's_lshl_b32 s{sT+1}, s{sT+1}, 10'); e(f's_add_u32 s{sT}, s{sT}, s{sT+1}'); e(f's_mul_i32 s3, s{sT}, 896')
        e(f's_lshl_b32 s{sIM}, s{sG}, 7')
        def xdma(i):
            b = BORD[i]
            def a():
                if b: e(f's_add_u32 s{sBG}, s{sIM}, {128*b}\ns_sub_u32 s{sIL}, s{sBG}, 896\ns_min_u32 s{sBG}, s{sBG}, s{sIL}')
                e(f's_add_u32 m0, s{sWA}, {8192 + 2048*i}\ns_add_u32 s{sBG}, s3, s{sBG if b else sIM}')
                if i == 0:
                    e('s_waitcnt lgkmcnt(0)')
                    if TS: e(f's_mov_b32 s{sTS}, s50'); nts[0] = 1; tsn.append('start')
                k.vmem(f'buffer_load_dwordx4 v{va}, {sr(sX0,4)}, s{sBG} offen lds', f'xa{b}')
            return [Op('s', 24, a), Op('vm', 4, lambda: k.vmem(f'buffer_load_dwordx4 v{vb}, {sr(sX0,4)}, s{sBG} offen offset:1024 lds', f'xb{b}'))]
        xs = []
        for i in range(7): xs += xdma(i)
        k.run(xs[:4])
        if OPT['fine'] & 1: stamp('iss')
        def rest():
            gen_H()
            copy_ptrs(True); copy_ptrs(False); srds((sW1, sW2, sOUT, sWS))
            e(f's_sub_u32 s{sRB}, 64, s{sP}'); e(f's_cmp_eq_u32 s{sP}, 0\ns_cselect_b32 s{sRB}, 32, s{sRB}')
            e(f's_mov_b32 s{sRETRY}, 20000'); e(f's_mov_b32 s{sLO}, 0x3f80'); e(f's_mov_b32 s{sHI}, 0x3f800000'); e(f's_mov_b32 s{sFF}, 0xffff0000')
            misc()
            e(f'v_lshrrev_b32 v{vx}, 1, v{t}'); e(f'v_xor_b32 v{vx}, v{vx}, v{t+1}'); e(f'v_lshlrev_b32 v{t}, 7, v{t}'); e(f'v_lshl_add_u32 v{t}, v{vx}, 4, v{t}')
            e(f's_add_u32 s{sT}, s{sWA}, 8192'); e(f'v_add_u32 v{vx}, s{sT}, v{t}'); e(f'v_xor_b32 v{vx+1}, 64, v{vx}')
            gen_F(Ff); stream_setup()
            if not OPT['fill0']:
                for i in range(4): e(f'v_mov_b32 v{vCA+i}, -1')
            e(f'v_mov_b32 v{vX+2}, 0x10001')
        nx = OPT['nx']
        if OPT['fill0']:
            srds((sWS,))
            for i in range(4): e(f'v_mov_b32 v{vCA+i}, -1')
            fills(); xs = xs[:nx] + k.bg + xs[nx:]; nx += 4; k.bg = []
        k.run(k.weave(xs[4:nx], rec(rest), 64))
        if OPT['fine'] & 1: stamp('gen')
        warm(0, 1)
        if OPT['fine'] & 1: stamp('warm')
        k.run(xs[nx:])
        e(f's_mov_b32 s{sT}, {WS_EP}'); e('s_mov_b64 exec, 1'); k.vmem(f'buffer_load_dwordx4 {vr(vSEL,4)}, off, {sr(sWS,4)}, s{sT} sc1', 'ep'); e('s_mov_b64 exec, -1')
    else:
        e(f's_lshr_b32 s{sT}, s{sW}, 1'); e(f's_lshl_b32 s{sT}, s{sT}, 5'); e(f's_add_u32 s{sT}, s{sT}, s{sP}'); e(f's_lshl_b32 s{sT}, s{sT}, 1')
        e(f's_and_b32 s{sT+1}, s{sW}, 1'); e(f's_add_u32 s{sT}, s{sT}, s{sT+1}'); e(f's_mul_i32 s{sT}, s{sT}, 14336'); e(f's_add_u32 s{sT}, s{sT}, {WS_X2}')
        e(f's_lshl_b32 s{sT+1}, s{sG}, 11')
        for b in range(7):
            if b: e(f's_add_u32 s{sT+1}, s{sT+1}, 2048'); e(f's_sub_u32 s{sT+2}, s{sT+1}, 14336'); e(f's_min_u32 s{sT+1}, s{sT+1}, s{sT+2}')
            e(f's_add_u32 s{SX[b]}, s{sT}, s{sT+1}')
        gen_H()
        k.wait(vm='xst'); stamp('A1.ack')
        ld = rec(lambda: x2_loads(0))
        k.run(ld[:5])
        k.run(k.weave(ld[5:11], rec(lambda: (gen_F(Ff), misc())), 60))
        k.run(ld[11:])
        k.seg(7, 500, 300)
    k.wait(lg='Hw'); e('s_barrier')
    stamp(f'A{half}.consts')
    hread = lambda kp: rec(lambda: [k.ds(f'ds_read_b128 {vr(HR[kp%2]+4*tl,4)}, v{vh} offset:{(7*tl+kp)*1024}', f'H{kp}') for tl in range(4)])
    def xread(i):
        b = BORD[i]
        def g(h):
            k.wait(vm=f'xb{b}'); k.ds(f'ds_read_b128 {vr(XF(2*b+h),4)}, v{vx+h} offset:{2048*i}', f'xr{i}')
            if h: ws.limit = 5 + i if i < 6 else 56
        return [Op('ds', 8, lambda: g(0)), Op('ds', 4, lambda: g(1))]
    def xchk(kp):
        chk = lambda: (e(f'v_max_u32 v{t}, v{XF(kp)}, v{XF(kp+7)}'), e(f'v_cmp_eq_u32 vcc, -1, v{t}'))
        o = rec(lambda: (k.wait(vm=f'x{kp+7}'), chk(), retry_site(chk, lambda: x2_loads(kp), f'x2_{kp}')))
        return o[:2], o[2:3], o[3:]
    k.depth += 1
    k.run(hread(0))
    if half == 0: k.run(xread(0) + xread(1))
    else:
        for o in xchk(0): k.run(o)
        k.bg += img_ops(1, 0)
    k.depth -= 1
    sl = []
    for kp in range(7):
        lo, hi = vr(XF(kp), 4), vr(XF(kp+7), 4)
        c = lambda a: vr(a, 4) if kp else '0'
        mm = lambda d, a, b, cc: f'v_mfma_f32_16x16x32_bf16 {vr(d,4)}, {a}, {b}, {cc}'
        ms = [mm(aS, vr(ones, 4), lo, c(aS)), mm(aG, lo, lo, c(aG)), mm(aS, vr(ones, 4), hi, vr(aS, 4)), mm(aG, hi, hi, vr(aG, 4))]
        ms += [mm(aT[tl], vr(HR[kp%2]+4*tl, 4), lo, c(aT[tl])) for tl in range(4)]
        ms += [mm(aHi[tl], vr(HR[kp%2]+4*tl, 4), hi, c(aHi[tl])) if tl in aHi else mm(aT[tl], vr(HR[kp%2]+4*tl, 4), hi, vr(aT[tl], 4)) for tl in (1, 3, 0, 2)]
        cur = [[rec(lambda m=m: e(m)), [], []] for m in ms]
        if half == 0: cur[0][0] = rec(lambda: k.wait(lg=f'xr{min(kp+1, 6)}')) + cur[0][0]
        cur[4][0] = rec(lambda: k.wait(lg=f'H{kp}')) + cur[4][0]
        if kp < 6:
            for i, o in enumerate(hread(kp + 1)): cur[4 + i][1].append(o)
            if half == 0 and kp < 5:
                for i, o in enumerate(xread(kp + 2)): cur[2 + i][1].append(o)
            if half:
                a_, b_, c_ = xchk(kp + 1); cur[9][2] += a_; cur[10][2] += b_; cur[11][2] += c_
        sl += cur
    if half == 0:
        if OPT['imgfirst']: k.bg += img_ops(0, 0)
        if not OPT['fill0']: fills()
        k.refill = ws.refill; k.seg(OPT['nA'], 1300 - OPT['dA'], OPT['dA'])
        ep = rec(lambda: (k.wait(vm='ep'), [e(f'v_readfirstlane_b32 s{sN+i}, v{vSEL+i}') for i in range(4)], [e(f's_not_b32 s{sN+i}, s{sN+i}') for i in range(4)]))
        for i, o in enumerate(ep): sl[68 + i][2].append(o)
    def stats():
        e(f'v_cndmask_b32 v{t}, 0, v{aG}, {sr(sMK,2)}')
        for r in range(1, 4): e(f'v_cndmask_b32 v{t}, v{t}, v{aG+r}, {sr(sMK+2*r,2)}')
        e(f'v_mul_f32 v{aS}, {fl(1.0/448)}, v{aS}')
        for sw in ('16', '32'):
            e(f'v_mov_b32 v{t+1}, v{t}')
            if sw == '16': e(f'v_mul_f32 v{aS}, v{aS}, v{aS}')
            e(f'v_permlane{sw}_swap_b32 v{t}, v{t+1}'); e(f'v_add_f32 v{t}, v{t}, v{t+1}')
        e(f'v_fmamk_f32 v{t}, v{t}, {fl(-1.0/448)}, v{aS}')
        e(f'v_min_f32 v{t}, 0, v{t}'); e(f'v_sub_f32 v{t}, {fl(1e-5)}, v{t}'); e(f'v_rsq_f32 v{t}, v{t}')
    k.slots(sl[:80], nbg=1)
    if OPT['fine'] & 1: stamp(f'A{half}.mf')
    if half == 0:
        if not OPT['imgfirst']: k.bg += img_ops(0, 0)
        k.seg(OPT['nT'], 250)
    st = rec(stats)
    for i in range(80, 84): sl[i][2] += st[:2]; st = st[2:]
    k.slots(sl[80:], nbg=0)
    k.run(st)
    for tl in (1, 3, 0, 2):
        for r in (0, 2):
            if tl in aHi: e(f'v_pk_add_f32 {vr(aT[tl]+r,2)}, {vr(aT[tl]+r,2)}, {vr(aHi[tl]+r,2)} neg_lo:[0,1] neg_hi:[0,1]')
        for r in (0, 2): e(f'v_pk_mul_f32 {vr(aT[tl]+r,2)}, {vr(aT[tl]+r,2)}, {vr(t,2)} op_sel_hi:[1,0]')
        for m in range(2): e(f'v_cvt_pk_f16_f32 v{aT[tl]+m}, v{aT[tl]+2*m}, v{aT[tl]+2*m+1}')
        k.ds(f'ds_write_b64 v{vcw}, {vr(aT[tl],2)} offset:{2048*tl}', 'cw')
    e(f'v_lshlrev_b32 v{t}, 3, v{vL}'); e(f'v_add_u32 v{t}, {lc}, v{t}')
    assert half or nfill[0] == 4
    k.wait(lg='cw', vm='fill'); e('s_barrier')
    stamp(f'A{half}.hdft')
    cf = lambda tl, k1_: 16 + 8*tl + 4*k1_
    k.depth += 1
    for k1_ in range(2):
        for tl in (0, 2, 1, 3):
            for h2 in range(2): k.ds(f'ds_read_b64_tr_b16 {vr(cf(tl,k1_)+2*h2,2)}, v{t} offset:{2048*tl + 1024*k1_ + 512*h2}', f'c{tl}{k1_}')
    if half == 0: k.burst(OPT['nS'])
    Dt = lambda tl: 48 + 4*tl
    for k1_ in range(2):
        for tl in (0, 2, 1, 3):
            k.wait(lg=f'c{tl}{k1_}')
            e(f'v_mfma_f32_16x16x32_f16 {vr(Dt(tl),4)}, {vr(Ff+4*k1_,4)}, {vr(cf(tl,k1_),4)}, {vr(Dt(tl),4) if k1_ else 0}')
    e('s_barrier')
    def bfly(pp, u):
        kk1 = f'v{k1}' if pp == 0 else '-1.0'; nk1 = f'-v{k1}' if pp == 0 else '1.0'
        CA, SA, CB, SB = Dt(u) + 2*pp, Dt(u) + 2*pp + 1, Dt(2+u) + 2*pp, Dt(2+u) + 2*pp + 1
        o = 64 + 8*pp + 4*u
        e(f'v_fma_f32 v{o}, {kk1}, v{SB}, v{CA}'); e(f'v_fma_f32 v{o+1}, {kk1}, v{SA}, -v{CB}')
        e(f'v_fma_f32 v{o+2}, {nk1}, v{CA}, v{SB}'); e(f'v_fma_f32 v{o+3}, {kk1}, v{CB}, v{SA}')
        for m in range(2): e(f'v_cvt_pk_f16_f32 v{80+4*pp+2*u+m}, v{o+2*m}, v{o+2*m+1}')
        if half == 0:
            for m in range(2): e(f'v_bfi_b32 v{80+4*pp+2*u+m}, v{vX+2}, s{sN+2*u+m}, v{80+4*pp+2*u+m}')
    bfly(0, 0); bfly(1, 0)
    for pp in range(2):
        bfly(pp, 1)
        k.vmem(f'buffer_store_dwordx4 {vr(80+4*pp,4)}, v{vu}, {sr(sWS,4)}, s{sT+4+pp} offen sc1', 'Ust')
    k.depth -= 1
    stamp(f'A{half}.ust')

def US(half): return 16 if half == 0 else 256
def TOFF(half): return 32 * 912 if half == 0 else 28672
def rowaddr(half, dst, j, t):
    if half == 0: e(f'v_mul_u32_u24 v{dst}, 912, v{j}')
    else:
        e(f'v_lshrrev_b32 v{t}, 4, v{j}'); e(f'v_mul_u32_u24 v{t}, 14336, v{t}'); e(f'v_and_b32 v{dst}, 15, v{j}'); e(f'v_lshl_add_u32 v{dst}, v{dst}, 4, v{t}')
def phB(half):
    us = US(half); RAW = lambda kap: 16 + 16*kap; ACC = lambda u, pq: 80 + 32*pq + 16*u; MF = 144
    vu, vd, vmP, vmQ = vA, vA + 1, vA + 2, vA + 3
    vu2, vm, tc = (vSa, vSb, vT1) if half else (vX, vX + 1, vX + 2)
    t = 88; t0 = k.clk
    k.bg += img_ops(half, 1); k.seg(sum(o.ta for o in k.bg) + (0 if half else OPT['nK']), 400 if half else 800)
    save = k.refill
    if half == 0: late_setup(); ws.cs_on = 4; ws.dmax = 39
    e(f'v_bfe_u32 v{t}, v{vL}, 2, 1'); e(f'v_bfe_u32 v{t+1}, v{vL}, 3, 2'); e(f'v_and_b32 v{t+2}, 3, v{vL}')
    e(f'v_lshl_add_u32 v{t+1}, v{t}, 2, v{t+1}'); e(f'v_lshl_add_u32 v{t+1}, v{t+1}, 2, v{t+2}'); e(f's_mul_i32 s{sT+2}, s{sW}, 448')
    e(f'v_lshl_add_u32 v{t+1}, v{t+1}, 4, s{sT+2}'); e(f'v_subrev_u32 v{t}, 1792, v{t+1}'); e(f'v_min_u32 v{t+1}, v{t}, v{t+1}')
    e(f'v_lshrrev_b32 v{t+2}, 5, v{vL}'); e(f'v_mul_u32_u24 v{t}, 7168, v{t+2}'); e(f'v_add_u32 v{vu}, v{t}, v{t+1}'); e(f'v_add_u32 v{vu2}, 3584, v{vu}')
    e(f's_mul_i32 s{sUO}, s{sP}, 57344'); e(f's_add_u32 s{sUO}, s{sUO}, {WS_U2 if half else WS_U1}')
    for i in range(1, 4): e(f's_add_u32 s{sUO+i}, s{sUO}, {14336*i}')
    j, a = t + 3, t + 4
    e(f'v_and_b32 v{j}, 31, v{vL}'); e(f's_mul_i32 s{sT}, s{sW}, 7'); e(f'v_lshl_add_u32 v{a}, v{t+2}, 2, s{sT}')
    rowaddr(half, vd, j, t); e(f'v_mul_u32_u24 v{t+1}, {us}, v{a}'); e(f'v_add_u32 v{vd}, v{vd}, v{t+1}')
    e(f'v_sub_u32 v{a}, {52*us}, v{t+1}')
    e(f's_cmp_eq_u32 s{sP}, 0\ns_cselect_b32 s{sT}, 32, 63\ns_cselect_b32 s{sT+1}, 31, 63\ns_cselect_b32 s{sT+2}, 63, 31')
    e(f'v_sub_u32 v{t+5}, s{sT}, v{j}'); e(f'v_and_b32 v{t+5}, s{sT+1}, v{t+5}'); rowaddr(half, vmP, t + 5, t); e(f'v_add_u32 v{vmP}, v{vmP}, v{a}')
    e(f'v_sub_u32 v{t+5}, s{sT+2}, v{j}'); rowaddr(half, vmQ, t + 5, t); e(f'v_add_u32 v{vmQ}, v{vmQ}, v{a}')
    e(f's_cmp_eq_u32 s{sW}, 0\ns_cselect_b32 s{sMK}, 0, -1'); e(f's_mov_b32 s{sMK+1}, -1')
    e(f'v_add_u32 v{vm}, {L_M}, v{vL16}')
    if half == 0:
        gen_M(96); e(f's_mov_b32 s{sMK+2}, 0xfffefffe')
        warm(1, 5)
        k.burst(k.quota)
    k.refill = None; k.bg_flush()
    k.wait(vm='Ust')
    stamp(f'B{half}.ack')
    def uloads(first):
        for kap in range(first, 4):
            for jj in range(4):
                k.vmem(f'buffer_load_dwordx4 {vr(RAW(kap)+4*jj,4)}, v{vu if jj < 2 else vu2}, {sr(sWS,4)}, s{sUO+kap} offen offset:{1792*(jj%2)} sc1', f'U{kap}')
    ld = rec(lambda: uloads(0))
    if half == 0:
        fill = []
        while ws.nd < min(ws.dmax, ws.ni): fill += ws.drain_ops()
        for o in ld[:11]:
            k.run([o] + fill[:4]); fill = fill[4:]; ws.cs_flush(2, 1)
        k.run(fill)
        k.wait(vm='img1')
    else:
        k.run(ld[:8])
        def chk():
            e(f's_mul_i32 s{sT}, s{sW}, 7168'); e(f'v_add_u32 v{t}, s{sT}, v{vL16}')
            for i in range(14): k.ds(f'ds_read_b32 v{t+2+i}, v{t} offset:{L_X + 28672*(i//7) + 1024*(i%7)}', 'ic')
            k.wait(lg='all'); e(f'v_max_u32 v{t+1}, v{t+2}, v{t+3}')
            for i in range(6): e(f'v_max3_u32 v{t+1}, v{t+1}, v{t+4+2*i}, v{t+5+2*i}')
            e(f'v_cmp_eq_u32 vcc, -1, v{t+1}')
        k.wait(vm='img1')
        k.run(k.weave(ld[8:11], rec(chk), 50)); retry_site(chk, lambda: k.run(img_ops(1, 0) + img_ops(1, 1)), 'img')
    k.wait(lg='Mw'); e('s_barrier')
    mread = lambda kap, pq: k.ds(f'ds_read_b128 {vr(MF+4*pq,4)}, v{vm} offset:{4096*pq + 1024*kap}', f'M{pq}')
    mread(0, 0); mread(0, 1)
    if half == 0:
        for o in ld[11:]: ws.cs_flush(4); k.run([o])
        k.refill = save; ws.cs_on = 0; ws.lag = 99; k.seg(OPT['nU'], 900); k.burst(OPT['nU0'])
        ws.cs_flush()
    else: k.run(ld[11:])
    XU = lambda pq, b, mir: RAW(2*pq + (b >> 1)) + 8*(b & 1) + 4*mir
    def xread(pq, b):
        k.ds(f'ds_read_b128 {vr(XU(pq,b,0),4)}, v{vd} offset:{L_X + pq*TOFF(half) + b*us}', f'xd{pq}{b}')
        k.ds(f'ds_read_b128 {vr(XU(pq,b,1),4)}, v{vmQ if pq else vmP} offset:{L_X + (3-b)*us}', f'xm{pq}{b}')
    for kap in range(4):
        R = RAW(kap)
        if half:
            chk = lambda R=R: (e(f'v_max3_u32 v{tc}, v{R}, v{R+4}, v{R+8}'), e(f'v_max_u32 v{tc}, v{tc}, v{R+12}'), e(f'v_cmp_eq_u32 vcc, -1, v{tc}'))
        else:
            def chk(R=R):
                e(f'v_xor_b32 v{tc}, s{sN}, v{R}')
                for i in range(1, 16): e(f'v_bitop3_b32 v{tc}, v{tc}, v{R+i}, s{sN + i%4} bitop3:0xf6')
                e(f'v_and_b32 v{tc}, 0x10001, v{tc}'); e(f'v_cmp_ne_u32 vcc, 0, v{tc}')
        k.wait(vm=f'U{kap}'); chk(); retry_site(chk, lambda kap=kap: uloads(kap), f'U{half}_{kap}')
        if kap == 3: stamp(f'B{half}.Uin')
        SP = R if half else 208 + 16*(kap & 1)
        def mf(u, pq):
            A = ACC(u, pq); e(f'v_mfma_f32_32x32x16_f16 {vr(A,16)}, {vr(SP+4*(2*u+pq),4)}, {vr(MF+4*pq,4)}, {vr(A,16) if kap else 0}')
        if half:
            sw = lambda i, jx: e(f'v_swap_b32 v{R+4*i+jx}, v{R+4*jx+i}')
            sw(0, 1); sw(0, 2); sw(0, 3); sw(1, 2); k.wait(lg='M0')
            mf(0, 0); sw(2, 3); sw(1, 3); k.wait(lg='M1'); mf(1, 0)
            if kap < 3: mread(kap + 1, 0)
            mf(0, 1); mf(1, 1)
        else:
            assert ws.nd <= 39
            mv = lambda d: [e(f'v_and_b32 v{SP+4*d+jj}, s{sMK+2}, v{R+4*jj+d}') for jj in range(4)]
            mv(0); mv(2); k.wait(lg='M0'); mf(0, 0); mv(1); mf(1, 0)
            if kap < 3: mread(kap + 1, 0)
            mv(3); k.wait(lg='M1'); mf(0, 1); mf(1, 1)
        if kap < 3: mread(kap + 1, 1)
        xread(kap >> 1, 2*(kap & 1)); xread(kap >> 1, 2*(kap & 1) + 1)
    if half == 0: ws.lag = OPT['lag']; ws.dmax = 43; k.seg(OPT['nE'], 1200)
    T = MF
    sel = lambda hi: f's{sHI if hi else sLO}'
    for pq in range(2):
        Y = lambda b, n: ACC(n & 1, pq) + 4*b + (n >> 1)
        e(f'v_mov_b32 v{vu}, v{Y(0,0)}'); e(f'v_cndmask_b32 v{Y(0,0)}, 0, v{Y(0,0)}, {sr(sMK,2)}')
        for b in range(4):
            if b == 3: k.depth += 1; e('s_mov_b32 exec_hi, 0')
            xd, xm = XU(pq, b, 0), XU(pq, b, 1)
            k.wait(lg=f'xm{pq}{b}')
            for n in range(8): e(f'v_dot2_f32_bf16 v{T+n}, v{xd + (n >> 1)}, {sel(n & 1)}, v{Y(b,n)}')
            e(f'v_dot2_f32_bf16 v{Y(b,0)}, v{xm}, {sel(0)}, v{Y(b+1,0) if b < 3 else tc}')
            for m in range(1, 8): e(f'v_dot2c_f32_bf16 v{Y(b,8-m)}, {sel(m & 1)}, v{xm + (m >> 1)}')
            if b == 0: e(f'v_permlane32_swap_b32 v{vu}, v{tc}')
            for m in range(4): e(f'v_cvt_pk_bf16_f32 v{xd+m}, v{T+2*m}, v{T+2*m+1}')
            for m in range(4): e(f'v_cvt_pk_bf16_f32 v{xm+m}, v{Y(b,(8-2*m)%8)}, v{Y(b,7-2*m)}')
            k.ds(f'ds_write_b128 v{vd}, {vr(xd,4)} offset:{L_X + pq*TOFF(half) + b*us}', 'xw')
            k.ds(f'ds_write_b128 v{vmQ if pq else vmP}, {vr(xm,4)} offset:{L_X + (3-b)*us}', 'xw')
        e('s_mov_b32 exec_hi, -1'); k.depth -= 1

def ffn(half):
    us = US(half); toff = TOFF(half)
    vb, vs, vst, vh = vA, vA + 1, vA + 2, vA + 3
    BR = lambda i: B[5] + 4*(i % 3); MFR = B[5] + 12; t = B[5] + 14
    vres = B[4]
    e(f'v_and_b32 v{t}, 31, v{vL}'); rowaddr(half, vb, t, t + 1); e(f'v_lshlrev_b32 v{vst}, 3, v{t}')
    e(f'v_lshrrev_b32 v{t}, 5, v{vL}')
    if OPT['rot']: e(f's_mul_i32 s{sT+1}, s{sRO}, 14'); e(f'v_add_u32 v{t}, s{sT+1}, v{t}')
    e(f'v_mul_u32_u24 v{t}, {us}, v{t}'); e(f'v_add_u32 v{vb}, v{vb}, v{t}')
    e(f'v_lshrrev_b32 v{t}, 3, v{vL}'); e(f's_lshl_b32 s{sT}, s{sW}, 3'); e(f'v_add_u32 v{t}, s{sT}, v{t}'); rowaddr(half, vs, t, t + 1)
    e(f'v_lshlrev_b32 v{vh}, 3, v{t}')
    e(f'v_and_b32 v{t}, 7, v{vL}'); e(f'v_mul_u32_u24 v{t}, {us}, v{t}'); e(f'v_add_u32 v{vs}, v{vs}, v{t}')
    def more():
        e(f's_mul_i32 s{sT+1}, s{sG}, {8*us}')
        if half == 0:
            e(f'v_and_b32 v{t}, 7, v{vL}'); e(f'v_add_u32 v{t}, s{sT}, v{t}'); rowaddr(half, vres, t, t + 1)
            e(f'v_lshrrev_b32 v{t}, 3, v{vL}'); e(f'v_lshl_add_u32 v{vres}, v{t}, 4, v{vres}'); e(f'v_add_u32 v{vres}, s{sT+1}, v{vres}')
        else: e(f'v_add_u32 v{vres}, s{sT+1}, v{vs}')
        for T in range(2): k.ds(f'ds_read_b128 {vr(vR+4*T,4)}, v{vres} offset:{L_X + T*toff}', 'res')
        e(f's_mov_b32 s{sMK}, -1'); e(f's_mov_b32 s{sMK+1}, 0'); e(f's_mov_b32 s{sMK+2}, 0x80008000')
        if half == 0:
            def ep():
                e(f's_lshl_b32 s{sT+1}, s2, 2'); e(f's_add_u32 s{sT+1}, s{sT+1}, s{sW}'); e(f's_cmp_eq_u32 s{sT+1}, 128'); e('s_cbranch_scc1 L_epoch'); e('L_epoch_ret:')
                k.begin_tail(); e('L_epoch:')
                for i in range(4): e(f'v_mov_b32 v{B[7]+i}, s{sN+i}')
                e(f's_mov_b32 s{sT+1}, {WS_EP}'); e('s_mov_b64 exec, 1'); e(f'buffer_store_dwordx4 {vr(B[7],4)}, off, {sr(sWS,4)}, s{sT+1} sc1'); e('s_mov_b64 exec, -1'); e('s_branch L_epoch_ret')
                k.end_tail()
            k.call(ep, 's', 32)
    vh1 = vT1
    if half == 0: ws.force(-1); ws.cs_on = 2; k.seg(999, 999*OPT['perG'])
    k.wait(lg='xw'); e('s_barrier')
    stamp(f'B{half}.end')
    if stop(f'B{half}', 61440): return True
    hvo = lambda T: vh1 if T else vL16
    ACC1 = lambda T, u: B[2*T + u]
    def bread(i):
        q = i % 28
        def f():
            k.ds(f'ds_read_b128 {vr(BR(i),4)}, v{vb} offset:{L_X + (i//28)*toff + 2*(q%7)*us}', f'B{i}')
            if q % 7 == 6 and i < 55: e(f's_mul_i32 s{sT+2}, s{sRD + q//7}, {2*us}\nv_add_u32 v{vb}, s{sT+2}, v{vb}')
        return Op('ds', 4, f)
    k.depth += 1; bread(0)(); bread(1)(); k.depth -= 1
    def stats_ops(T):
        SB = lambda j: B[6] + 4*(j % 2); s1, s2, lo, hi = B[6] + 8, B[6] + 9, B[6] + 10, B[6] + 12
        rd = lambda j: k.ds(f'ds_read_b128 {vr(SB(j),4)}, v{vs} offset:{L_X + T*toff + 8*j*us}', f'S{T}{j}')
        ops = rec(lambda: (rd(0), rd(1))) + [None, None]
        def body():
            for j in range(1 if OPT['nostats'] else 7):
                k.wait(lg=f'S{T}{j}')
                for m in range(4):
                    l_, h_ = lo + m % 2, hi + m % 2
                    e(f'v_lshlrev_b32 v{l_}, 16, v{SB(j)+m}'); e(f'v_and_b32 v{h_}, s{sFF}, v{SB(j)+m}')
                    if m == 3 and j + 2 < 7: rd(j + 2)
                    if j == 0 and m == 0: e(f'v_add_f32 v{s1}, v{l_}, v{h_}'); e(f'v_mul_f32 v{s2}, v{l_}, v{l_}'); e(f'v_fmac_f32 v{s2}, v{h_}, v{h_}')
                    else: e(f'v_add_f32 v{s1}, v{s1}, v{l_}'); e(f'v_fmac_f32 v{s2}, v{l_}, v{l_}'); e(f'v_add_f32 v{s1}, v{s1}, v{h_}'); e(f'v_fmac_f32 v{s2}, v{h_}, v{h_}')
        ops += rec(body)
        for c in ('quad_perm:[1,0,3,2]', 'quad_perm:[2,3,0,1]', 'row_half_mirror'):
            ops += rec(lambda: [e('s_nop 0')] + [e(f'v_add_f32_dpp v{r}, v{r}, v{r} {c} row_mask:0xf bank_mask:0xf') for r in (s1, s2)])
        ops += rec(lambda: (e(f'v_mul_f32 v{s1}, {fl(-1.0/448)}, v{s1}'), e(f'v_mul_f32 v{lo}, v{s1}, v{s1}'), e(f'v_fmamk_f32 v{s2}, v{s2}, {fl(-1.0/448)}, v{lo}'),
                e(f'v_min_f32 v{s2}, 0, v{s2}'), e(f'v_sub_f32 v{s2}, {fl(1e-5)}, v{s2}'), e(f'v_rsq_f32 v{s2}, v{s2}'))) + [None]
        ops += rec(lambda: k.ds(f'ds_write_b64 v{vh}, {vr(s1,2)} offset:{L_ST + 256*T}', 'stw')) + [None, None]
        ops += rec(lambda: (k.wait(lg='stw'), e('s_barrier'), k.ds(f'ds_read_b32 v{t}, v{vst} offset:{L_ST + 256*T}', 'm'))) + [None, None, None]
        ops += rec(lambda: (k.wait(lg='m'), e(f'v_cndmask_b32 v{t}, 0, v{t}, {sr(sMK,2)}'), e(f'v_cvt_pk_bf16_f32 v{MFR}, v{t}, v{t}'),
                e(f'v_and_b32 v{t+1}, s{sFF}, v{MFR}'), e(f'v_sub_f32 v{t}, v{t}, v{t+1}'), e(f'v_cvt_pk_bf16_f32 v{MFR+1}, v{t}, 0')))
        return ops
    OWN = [B[4], B[6]]
    def bump(c): k.bg_next = max(k.bg_next, k.clk - 40) + c
    def ownfix(T):
        if half == 0:
            for i in range(4): e(f'v_xor_b32 v{OWN[T]+4*i+3}, s{sMK+2}, v{OWN[T]+4*i+3}')
    def epi1(T):
        ng = '-' if half else ''
        for u in range(2):
            for be in range(2):
                d = OWN[T] + 8*u + 4*be; a = ACC1(T, u) + 8*be
                for m in range(4):
                    ng = '-' if (half or m == 3) else ''; e(f'v_cvt_pk_bf16_f32 v{d+m}, {ng}v{a+2*m}, {ng}v{a+2*m+1}')
                for m in range(4): e(f'v_pk_max_u16 v{d+m}, v{d+m}, s{sMK+2}' if (half or m == 3) else f'v_pk_max_i16 v{d+m}, v{d+m}, 0')
                if OPT['noh'] & (4 << T): continue
                k.call(lambda d=d, u=u, be=be: (k.vmem(f'buffer_store_dwordx4 {vr(d,4)}, v{hvo(T)}, {sr(sWS,4)}, s{sHS} offen offset:{1024*(2*u+be)} sc1', 'hst'), bump(96)), 'vm', 4)
    HB = {(0, 0): B[4], (0, 1): B[0], (0, 2): B[1], (0, 3): B[7], (0, 4): B[4], (0, 5): B[0], (0, 6): B[1],
          (1, 0): B[6], (1, 1): B[7], (1, 2): B[4], (1, 3): B[6], (1, 4): B[7], (1, 5): B[4], (1, 6): B[6]}
    inflight = []
    def hload(T, jp, i, track=True):
        def f():
            if OPT['noh'] & 1: return
            k.vmem(f'buffer_load_dwordx4 {vr(HB[T,jp]+4*i,4)}, v{hvo(T)}, {sr(sWS,4)}, s{sHS+jp} offen offset:{1024*i} sc1', f'h{T}{jp}{i}')
            if track: inflight.append((T, jp, i)); bump(OPT['perH'])
        return Op('vm', 4, f)
    prevuse = {(0, 4): (0, 0), (0, 5): (0, 1), (0, 6): (0, 2), (1, 1): (0, 3), (1, 2): (0, 4), (1, 3): (1, 0), (1, 4): (1, 1), (1, 5): (1, 2), (1, 6): (1, 3)}
    order = [(0, 1), (0, 2), (0, 3), (0, 4), (0, 5), (1, 1), (0, 6)] + [(1, j) for j in range(2, 7)] if OPT['hord'] else [(T, j) for T in range(2) for j in range(1, 7)]
    hq = []
    for T, jp in order:
        for i in range(4):
            rdy = OPT['hq_slot' if half else 'hq0'] if T == 0 else 116 + OPT['t1_slot']
            if (T, jp) in prevuse: pT, pj = prevuse[T, jp]; rdy = max(rdy, 116 + 56*pT + 8*pj + 2*i + 1)
            hq.append((rdy, 116 + 56*T + 8*jp - OPT['hdl'] - 2*(3 - i), T, jp, i))
    def hpace(slot):
        def f():
            if not hq or OPT['noh'] & 1: return
            due = min(x[1] for x in hq[:8]) <= slot
            wfirst = half == 0 and ws.sent < 56 and ws.use(ws.sent) - OPT['lead'] <= hq[0][1]
            if hq[0][0] <= slot and ((k.clk >= k.bg_next and not wfirst) or due):
                x = hq.pop(0); hload(*x[2:])()
                if OPT['verbose'] > 2: print(f'; h{x[2:]} at slot {slot} use {116 + 56*x[2] + 8*x[3]}', file=sys.stderr)
        return Op('vm', 0, f)
    def g1_slots(T):
        sl = []
        for n in range(28):
            i = 28*T + n
            for u in range(2):
                A = ACC1(T, u)
                def mf(A=A, n=n, u=u, i=i):
                    k.wait(lg=f'B{i}')
                    if half == 0 and T == 0: assert ws.done > n; k.wait(lg=f'tr{n}')
                    e(f'v_mfma_f32_32x32x16_bf16 {vr(A,16)}, {w1f(n,u)}, {vr(BR(i),4)}, {vr(A,16) if n else 0}')
                pre = [bread(i + 2)] if (u == 0 and i + 2 < 56) else []
                if half == 0 and u == 1: pre.append(Op('ds', 0, lambda n=n: ws.force(58*T + 2*n + 1)))
                sl.append([[Op('mfma', 8, mf)], pre, []])
        return sl
    def corr(T): return [[rec(lambda: e(f'v_mfma_f32_32x32x8_bf16 {vr(ACC1(T,u),16)}, {vr(vCS+2*u,2)}, {vr(MFR,2)}, {vr(ACC1(T,u),16)}')), [], []] for u in range(2)]
    st0 = stats_ops(0); st1 = stats_ops(1)
    sl = g1_slots(0)
    k.slots(sl, st0[:2] + rec(more) + st0[2:], 54)
    if half == 0:
        k.depth += 1; ws.cs_on = 0; k.bg_flush(); log('cs left'); ws.cs_flush(); assert ws.nc == 56 and ws.nd <= 43; cs_finish(); ws.dmax = 45; k.depth -= 1
    log('g1(0) done')
    if OPT['fine'] & 2: stamp(f'C{half}.g10')
    sl = corr(0) + g1_slots(1)
    for n in range(len(sl)): sl[n][1].append(hpace(56 + n))
    q = st1[:OPT['e0']] + rec(lambda: epi1(0)) + st1[OPT['e0']:OPT['e0']+12] + rec(lambda: ownfix(0)) + st1[OPT['e0']+12:] + rec(lambda: e(f'v_add_u32 v{vh1}, {7*16384}, v{vL16}'))
    k.slots(sl, q, 57)
    k.slots(corr(1))
    stamp(f'C{half}.g1')
    k.depth += 1; epi1(1); k.depth -= 1
    if OPT['fine'] & 4: stamp(f'C{half}.epi'); k.wait(vm='h023'); stamp(f'C{half}.h02'); k.wait(vm='all'); stamp(f'C{half}.ack')
    if stop(f'C{half}'): return True
    ACC2 = lambda T, v: (B[2 + v] if T == 0 else B[v])
    AR = lambda kk, v: B[5] + 8*(kk % 2) + 4*v
    def aread(kk, v, h2):
        so = ((28 + kk) % NSLOT) * 2048
        def f():
            assert ws.sent > 28 + kk; k.wait(vm=f'w{28+kk}')
            k.ds(f'ds_read_b64_tr_b16 {vr(AR(kk,v)+2*h2,2)}, v{vT2+v} offset:{so + 1024*h2}', f'A{kk}{v}')
        return Op('ds', 4, f)
    tc = vb
    def hcheck(T, jp):
        R = HB[T, jp]
        def part(i):
            r = R + 4*i
            e(f'v_xor_b32 v{r+3}, s{sMK+2}, v{r+3}')
            e(f'v_or3_b32 v{tc}, v{r}, v{r+1}, v{tc}' if i else f'v_or_b32 v{tc}, v{r}, v{r+1}'); e(f'v_or3_b32 v{tc}, v{r+2}, v{r+3}, v{tc}')
        def fin(): e(f'v_and_b32 v{tc}, s{sMK+2}, v{tc}'); e(f'v_cmp_ne_u32 vcc, 0, v{tc}')
        def chk():
            if half == 0: [part(i) for i in range(4)]; fin()
            else: e(f'v_bitop3_b32 v{tc}, v{R}, v{R+4}, v{R+8} bitop3:0x80'); e(f'v_and_b32 v{tc}, v{tc}, v{R+12}'); e(f'v_cmp_le_i32 vcc, 0, v{tc}')
        def br():
            todo = [x for x in inflight if x[:2] >= (T, jp)]
            retry_site(chk, lambda: [hload(*x, track=False)() for x in todo], f'h{half}_{T}{jp}')
        def w(i):
            assert (T, jp, i) in inflight, (T, jp, i); k.wait(vm=f'h{T}{jp}{i}')
        o = [[] for _ in range(8)]
        if half: o[6] = [Op('v', 16, lambda: (w(3), chk()))]
        else:
            o[4] = [Op('v', 16, lambda: (w(0), part(0)))]; o[5] = [Op('v', 28, lambda: (w(2), part(1), part(2)))]; o[6] = [Op('v', 24, lambda: (w(3), part(3), fin()))]
        o[7] = [Op('s', 20, br)]
        return o
    RS = 1088; vrr, vo, vrwb = vs, vh, vT1 + 1
    def g2addr():
        tau, cc = B[5], B[5] + 1
        if half == 0: e(f'v_and_b32 v{tau}, 7, v{vL}'); e(f'v_lshrrev_b32 v{cc}, 3, v{vL}')
        else: e(f'v_lshrrev_b32 v{tau}, 3, v{vL}'); e(f'v_and_b32 v{cc}, 7, v{vL}')
        e(f's_lshl_b32 s{sT}, s{sW}, 3'); e(f'v_add_u32 v{tau}, s{sT}, v{tau}')
        e(f'v_mul_u32_u24 v{vrr}, {RS}, v{cc}'); e(f'v_lshl_add_u32 v{vrr}, v{tau}, 4, v{vrr}')
        e(f'v_lshlrev_b32 v{vst}, 3, v{tau}')
        if half == 0:
            rowaddr(1, vo, tau, cc + 1); e(f'v_lshl_add_u32 v{vo}, v{cc}, 8, v{vo}')
            for T in range(2):
                e(f's_mul_i32 s{sMK+4+T}, s{sRB if T else sP}, 28672'); e(f's_lshl_b32 s{sT}, s{sG}, 11'); e(f's_add_u32 s{sMK+4+T}, s{sMK+4+T}, s{sT}'); e(f's_add_u32 s{sMK+4+T}, s{sMK+4+T}, {WS_X2}')
        else:
            e(f'v_mul_u32_u24 v{vo}, 57344, v{tau}'); e(f'v_lshl_add_u32 v{vo}, v{cc}, 4, v{vo}')
            for T in range(2):
                e(f's_mul_i32 s{sMK+4+T}, s{sRB if T else sP}, 896'); e(f's_lshl_b32 s{sT}, s{sG}, 7'); e(f's_add_u32 s{sMK+4+T}, s{sMK+4+T}, s{sT}')
        e(f's_mul_i32 s{sT}, s{sW}, {8*RS}'); e(f'v_add_u32 v{vrwb}, s{sT}, v{vL16}')
        e('s_barrier')
    rr = vSb
    rwr = lambda T, c: k.ds(f'ds_write_b128 v{vrwb}, {vr(ACC2(T, c >> 2) + 4*(c & 3), 4)} offset:{L_RED + RS*c}', 'rw')
    rrd = lambda T: k.ds(f'ds_read_b32 v{rr}, v{vst} offset:{L_ST + 4 + 256*T}', 'rw')
    def red_final(T, PB, pk):
        x = vR + 4*T; ops = []
        for pw in range(4):
            ops += rec(lambda: [k.ds(f'ds_read_b128 {vr(PB+8*pw+4*h,4)}, v{vrr} offset:{L_RED + 8*RS*pw + 512*h}', f'p{pw}') for h in range(2)]) + [None]
        XT = B[7] if pk else None
        def body():
            if pk:
                for n in range(8): e(f'v_and_b32 v{XT+n}, s{sFF}, v{x + n//2}' if n & 1 else f'v_lshlrev_b32 v{XT+n}, 16, v{x + n//2}')
                k.wait(lg='p1')
                for n in range(0, 8, 2): e(f'v_pk_add_f32 {vr(PB+n,2)}, {vr(PB+n,2)}, {vr(PB+8+n,2)}')
                k.wait(lg='p3')
                for n in range(0, 8, 2): e(f'v_pk_add_f32 {vr(PB+16+n,2)}, {vr(PB+16+n,2)}, {vr(PB+24+n,2)}')
                for n in range(0, 8, 2): e(f'v_pk_add_f32 {vr(PB+n,2)}, {vr(PB+n,2)}, {vr(PB+16+n,2)}')
                ng = ' neg_lo:[1,0,0] neg_hi:[1,0,0]' if half else ''
                for n in range(0, 8, 2): e(f'v_pk_fma_f32 {vr(PB+n,2)}, {vr(PB+n,2)}, {vr(rr-1,2)}, {vr(XT+n,2)} op_sel:[0,1,0]{ng}')
            else:
                for pw in range(1, 4):
                    k.wait(lg=f'p{pw}')
                    for n in range(8): e(f'v_add_f32 v{PB+n}, v{PB+n}, v{PB+8*pw+n}')
                for n in range(8): e(f'v_and_b32 v{PB+8+n}, s{sFF}, v{x + n//2}' if n & 1 else f'v_lshlrev_b32 v{PB+8+n}, 16, v{x + n//2}')
                for n in range(8): e(f'v_fma_f32 v{PB+n}, {"-" if half else ""}v{rr}, v{PB+n}, v{PB+8+n}')
            for m in range(4): e(f'v_cvt_pk_bf16_f32 v{x+m}, v{PB+2*m}, v{PB+2*m+1}')
            if half == 0: k.vmem(f'buffer_store_dwordx4 {vr(x,4)}, v{vo}, {sr(sWS,4)}, s{sMK+4+T} offen sc1', 'xst')
            else: k.vmem(f'buffer_store_dwordx4 {vr(x,4)}, v{vo}, {sr(sOUT,4)}, s{sMK+4+T} offen', 'xst')
        return ops + [None] + rec(body)
    for T in range(2):
        sl = []
        for kk in range(28):
            jp, i = kk >> 2, kk & 3
            for v in range(2):
                A = ACC2(T, v); wr = w2reg(kk, v)
                def mf(A=A, wr=wr, kk=kk, v=v, jp=jp, i=i):
                    if wr is None: k.wait(lg=f'A{kk}{v}')
                    elif half == 0 and T == 0:
                        if kk == 0: ws.ensure(29)
                        assert ws.done > 28 + kk; k.wait(lg=f'tr{28+kk}')
                    a = rn(wr, 4) if wr else vr(AR(kk, v), 4)
                    e(f'v_mfma_f32_32x32x16_bf16 {vr(A,16)}, {a}, {vr(HB[T,jp]+4*i,4)}, {vr(A,16) if kk else 0}')
                pre, post = [], []
                if half == 0 and T == 0 and v == 0: pre.append(Op('ds', 0, lambda kk=kk: ws.force(116 + 2*kk)))
                if 17 <= kk + 2 < 28: pre += [aread(kk + 2, v, 0), aread(kk + 2, v, 1)]
                pre.append(hpace(116 + 56*T + 2*kk + v))
                if jp < 6 and not OPT['noh'] & 2: post += hcheck(T, jp + 1)[2*i + v]
                sl.append([[Op('mfma', 8, mf)], pre, post])
        if T == 0: k.slots(sl, rec(lambda: (g2addr(), ownfix(1))), 22)
        else:
            k.bg_flush(); assert half or ws.ni == 56
            q = [None, None]
            q += rec(lambda: rrd(0))
            for c in range(8): q += rec(lambda: rwr(0, c)) + [None, None]
            q += rec(lambda: (k.wait(lg='rw'), e('s_barrier'))) + red_final(0, B[2], False) + [None] + rec(lambda: (e('s_barrier'), rrd(1)))
            k.slots(sl, q, 54)
        log(f'g2({T}) done')
        if OPT['fine'] & 2 and T == 0: stamp(f'D{half}.g20')
    stamp(f'D{half}.g2')
    for c in range(8): rwr(1, c)
    k.wait(lg='all'); e('s_barrier')
    k.run(red_final(1, B[2], True))
    stamp(f'D{half}.st')
    k.refill = None
    return False

def only_stream():
    srds((sX0, sW1, sW2, sWS)); e(f's_lshl_b32 s49, s3, 2'); e(f's_add_u32 s49, s49, s{sW}')
    e(f'v_lshlrev_b32 v17, 7, v{vL}'); e(f's_mul_i32 s{sIL}, s49, {14*128}')
    e('s_waitcnt lgkmcnt(0)'); copy_ptrs(True); copy_ptrs(False)
    e(f's_mov_b32 s{sTS}, s50'); nts[0] = 1; tsn.append('start'); e(f's_mov_b32 s{sRETRY}, 20000')
    e('s_mov_b64 exec, 0x3fff')
    if OPT['touch'] & 2: k.vmem(f'buffer_load_dword v19, v17, {sr(sW1,4)}, s{sIL} offen', 'touch')
    if OPT['touch'] & 4: k.vmem(f'buffer_load_dword v19, v17, {sr(sW2,4)}, s{sIL} offen', 'touch')
    e('s_mov_b64 exec, -1')
    stream_setup(); late_setup(); warm(0, 1); warm(1, 5)
    if OPT['touch'] & 8: k.wait(vm='touch')
    stamp('go'); ws.limit = 56; ws.lag = 9
    while ws.ni < 56 or ws.nd < 45:
        n = ws.nd; ws.refill(); k.bg_flush()
        if ws.nd != n and ws.nd % 7 == 0: stamp(f'nd{ws.nd}')
    k.wait(vm='all'); stamp('end'); finish_stamps(); e('s_endpgm')
def main():
    prologue()
    if OPT['only']: return only_stream()
    for half in range(2):
        phA(half)
        if stop(f'A{half}'): return
        phB(half)
        if ffn(half): return
        if stop(f'D{half}'): return
    finish_stamps()
    e('s_endpgm')
main()
k.tail.append('L_end:')
k.tail.append('s_endpgm')
txt, nops = finish(k, OPT['grid'], 256, LDS_SZ, verbose=OPT['verbose'] > 1, pads=PADS if OPT['pads'] else None)
print(txt)
print(f'; wait states added: {nops}; stamps: {",".join(tsn)}')
```

```python
import re
KN = "interleave_layers__spectral_fnet__dense_activation_relu__prompt_kernel"

def vr(a, n=1): return f'v{a}' if n == 1 else f'v[{a}:{a+n-1}]'
def ar(a, n=1): return f'a{a}' if n == 1 else f'a[{a}:{a+n-1}]'
def sr(a, n=1): return f's{a}' if n == 1 else f's[{a}:{a+n-1}]'

def icost(line):
    op = line.split()[0]
    if line.endswith(':') or line.startswith('.'): return 'lab', 0
    if op.startswith('v_mfma'): return 'mfma', 8
    if op.startswith(('v_exp', 'v_log', 'v_rcp', 'v_rsq', 'v_sqrt', 'v_sin', 'v_cos', 'v_swap', 'v_permlane')): return 'v', 8
    if op.startswith('v_'): return 'v', 4
    if op == 'ds_write_b128': return 'ds', 24
    if op == 'ds_write_b64': return 'ds', 12
    if op.startswith('ds_'): return 'ds', 4
    if op == 'buffer_store_dwordx4': return 'vm', 24
    if op == 's_barrier': return 's', 12
    if op.startswith(('buffer_', 'global_')): return 'vm', 4
    if op.startswith('s_cbranch'): return 's', 20
    return 's', 4
class Op:
    def __init__(s, kind, cost, fn, ta=0): s.kind, s.cost, s.fn, s.ta = kind, cost, fn, ta
    def __call__(s): s.fn()
class K:
    def __init__(self):
        self.out = []
        self.tail = []
        self.vm = []; self.lg = []
        self.nlab = 0
        self.recq = None; self.depth = 0
        self.clk = 0; self.mfma_free = 0; self.last = ''
        self.bg = []; self.bg_next = 0; self.bg_period = None; self.refill = None; self.quota = 999; self.in_bg = False; self.in_tail = False
    def _emit(self, s):
        for line in s.split('\n'):
            line = line.strip()
            if not line: continue
            self.out.append(line)
            if self.in_tail: continue
            kind, c = icost(line)
            if kind == 'mfma':
                self.clk = max(self.clk, self.mfma_free); self.mfma_free = self.clk + (32 if '32x32' in line else 16)
            elif line.startswith(('v_dot', 'v_pk_add_f32', 'v_pk_mul_f32', 'v_pk_fma_f32')): self.clk = max(self.clk, self.mfma_free + 12 if self.mfma_free > self.clk else 0)
            if kind in ('ds', 'vm') and self.last == 'v': c += 8
            self.clk += c
            if kind != 'lab': self.last = kind
    def _do(self, s, fn):
        if self.recq is not None:
            lines = [l.strip() for l in s.split('\n') if l.strip()]
            self.recq.append(Op(icost(lines[0])[0], sum(icost(l)[1] for l in lines), fn))
        else:
            fn(); self.tick()
    def e(self, s): self._do(s, lambda: self._emit(s))
    __call__ = e
    def vmem(self, s, tag=None): self._do(s, lambda: (self._emit(s), self.vm.append(tag)))
    def ds(self, s, tag=None): self._do(s, lambda: (self._emit(s), self.lg.append(tag)))
    def wait(self, vm=None, lg=None):
        if self.recq is not None: self.recq.append(Op('w', 0, lambda: self._wait(vm, lg)))
        else: self._wait(vm, lg)
    def call(self, fn, kind='s', cost=4):
        def run():
            self.depth += 1; fn(); self.depth -= 1
        if self.recq is not None: self.recq.append(Op(kind, cost, run))
        else: run(); self.tick()
    def rec(self, fn):
        save = self.recq; self.recq = []; fn(); q = self.recq; self.recq = save; return q
    def run(self, ops):
        for o in ops:
            if o is None: continue
            if self.recq is not None: self.recq.append(o)
            else: o(); self.tick()
    def lab(self, base='L'):
        self.nlab += 1
        return f'{base}_{self.nlab}'
    def tick(self):
        if self.depth or self.in_bg or self.in_tail or self.bg_period is None: return
        if self.bg_due(): self.bg_step()
    def bg_due(self):
        if self.bg_period is None: return False
        if not self.bg and self.refill: self.refill()
        return bool(self.bg) and (self.bg[0].ta == 0 or (self.clk >= self.bg_next and self.quota > 0))
    def bg_flush(self):
        while self.bg: self.bg_step()
    def bg_step(self):
        o = self.bg.pop(0); self.in_bg = True; o(); self.in_bg = False
        if o.ta: self.bg_next = max(self.bg_next, self.clk - 100) + (self.bg_period or 72) * o.ta; self.quota -= 1
    def seg(self, count, cycles, delay=0):
        self.quota = count; self.bg_period = max(1, cycles // max(1, count)); self.bg_next = self.clk + delay
    def burst(self, count):
        while count > 0:
            if not self.bg and self.refill: self.refill()
            if not self.bg: break
            count -= self.bg[0].ta; self.bg_step()
    def idle(self, cycles):
        end = self.clk + cycles
        while self.bg_period is not None:
            if not self.bg and self.refill: self.refill()
            if not self.bg: break
            if self.bg[0].ta and self.bg_next > end: break
            if self.bg[0].ta: self.clk = max(self.clk, self.bg_next - 200)
            if self.clk >= end: break
            self.bg_step()
        self.clk = max(self.clk, end)
    def slots(self, sl, q=None, deadline=None, nbg=2):
        q = list(q or []); head = []; self.depth += 1
        deadline = len(sl) if deadline is None else deadline
        for i, (mf, pre, post) in enumerate(sl):
            for o in mf: o()
            for o in list(pre) + head: o()
            head = []
            n = 0
            while n < nbg and self.bg_due(): self.bg_step(); n += 1
            left = deadline - i
            brk = sum(1 for o in q if o is None)
            share = sum(o.cost for o in q if o) / max(1, left - brk * 0.5) if left > 0 else 1e9
            res = 4 + sum(o.cost for o in post); used = 0
            while q:
                o = q[0]
                if o is None:
                    q.pop(0)
                    if left > 0: break
                    continue
                if o.kind in ('ds', 'vm') and self.last == 'v' and left > 1 and i + 1 < len(sl):
                    if head and len(head) >= 2: break
                    head.append(q.pop(0)); used += o.cost; continue
                if o.kind == 'w' and head: break
                if self.clk + o.cost > self.mfma_free - res and used + o.cost / 2 > share: break
                q.pop(0); o(); used += o.cost
            for o in post: o()
        for o in head + q:
            if o: o()
        self.depth -= 1
    def weave(self, mem, fill, gap):
        fill = list(fill); self.depth += 1
        for o in mem:
            o(); t = self.clk + gap
            while fill and self.clk < t: fill.pop(0)()
        self.depth -= 1
        return fill
    def _n_after(self, q, tag):
        idx = [i for i, t in enumerate(q) if t == tag]
        return None if not idx else len(q) - 1 - idx[-1]
    def _wait(self, vm=None, lg=None):
        parts = []
        if vm is not None:
            n = 0 if vm == 'all' else self._n_after(self.vm, vm)
            if n is not None and (self.vm or vm == 'all'):
                n = min(n, 63); parts.append(f'vmcnt({n})'); self.vm = self.vm[len(self.vm) - n:] if n else []
        if lg is not None:
            n = 0 if lg == 'all' else self._n_after(self.lg, lg)
            if n is not None and (self.lg or lg == 'all'):
                n = min(n, 15); parts.append(f'lgkmcnt({n})'); self.lg = self.lg[len(self.lg) - n:] if n else []
        if parts: self._emit('s_waitcnt ' + ' '.join(parts))
    def begin_tail(self):
        assert self.recq is None
        self._save = (self.out, list(self.vm), list(self.lg)); self.out = self.tail; self.in_tail = True
    def end_tail(self):
        self.out, self.vm, self.lg = self._save; self.in_tail = False

_REG = re.compile(r'^(-|\|)?(abs\()?([vas])(\d+|\[(\d+):(\d+)\])\)?\|?$')
def regs(op):
    op = op.strip()
    if op in ('vcc', 'vcc_lo', 'vcc_hi'): return {('s', 'vcc')}
    if op in ('exec', 'exec_lo', 'exec_hi'): return {('s', 'exec')}
    if op == 'm0': return {('s', 'm0')}
    m = _REG.match(op)
    if not m: return set()
    k = m.group(3)
    if m.group(5) is not None: return {(k, i) for i in range(int(m.group(5)), int(m.group(6)) + 1)}
    return {(k, int(m.group(4)))}
TRANS = ('v_exp_', 'v_log_', 'v_rcp_', 'v_rsq_', 'v_sqrt_', 'v_sin_', 'v_cos_')
class I:
    def __init__(s, text):
        s.text = text
        t = text.split(';')[0].strip()
        s.label = t.endswith(':') or t.startswith('.')
        s.op = t.split()[0] if t else ''
        rest = t[len(s.op):].strip()
        ops = [o.strip() for o in re.split(r',\s*(?![^\[]*\])', rest)] if rest else []
        if ops:
            last = ops[-1].split()
            s.mods = last[1:]; ops[-1] = last[0] if last else ''
        else: s.mods = []
        s.ops = ops
        R = [regs(o) for o in ops]
        U = lambda l: set().union(*l) if l else set()
        s.w = set(); s.r = set(); s.kind = 'other'; s.passes = 0; s.A = s.C = set(); s.data = set()
        op = s.op
        if s.label: s.kind = 'label'
        elif op.startswith('v_mfma'):
            s.kind = 'mfma'; s.w = R[0]; s.A = R[1] | R[2]; s.C = R[3]; s.r = s.A | s.C
            s.passes = 8 if '32x32' in op else 4
        elif op.startswith('v_'):
            s.kind = 'valu'; s.w = R[0]; s.r = U(R[1:])
            if op.startswith(('v_fmac', 'v_dot2c', 'v_writelane', 'v_pk_fmac')) or 'dpp' in op or any(m.startswith(('row_', 'quad_perm')) for m in s.mods): s.r |= R[0]
            if op.startswith(('v_swap', 'v_permlane')): s.w = R[0] | R[1]; s.r = R[0] | R[1]
            if op.startswith(('v_add_co', 'v_sub_co', 'v_addc_co', 'v_subb_co')): s.w = R[0] | R[1]; s.r = U(R[2:])
            if op.startswith('v_cmpx'): s.w |= {('s', 'exec')}
        elif op.startswith('ds_'):
            s.kind = 'ds'
            if op.startswith(('ds_read', 'ds_bpermute', 'ds_permute', 'ds_swizzle')): s.w = R[0]; s.r = U(R[1:])
            else: s.r = U(R)
        elif op.startswith(('buffer_', 'global_')):
            s.kind = 'vmem'
            if 'lds' in s.mods: s.r = U(R) | {('s', 'm0')}
            elif 'load' in op: s.w = R[0]; s.r = U(R[1:])
            else:
                s.r = U(R)
                if op.endswith(('x3', 'x4')): s.data = R[0] if op.startswith('buffer_') else R[1]
        elif op.startswith('s_'):
            s.kind = 'salu'
            if op.startswith(('s_cmp', 's_bitcmp', 's_cbranch', 's_branch', 's_waitcnt', 's_nop', 's_barrier', 's_endpgm', 's_sleep', 's_setprio')): s.r = U(R)
            else:
                s.w = R[0] if R else set(); s.r = U(R[1:])
                if 'saveexec' in op: s.w |= {('s', 'exec')}
        s.states = int(ops[0]) + 1 if op == 's_nop' else (0 if s.label else 1)
        s.dpp = 'dpp' in op or any(m.startswith(('row_', 'quad_perm', 'wave_')) for m in s.mods)
def need(p, c):
    n = 0
    vec = lambda S: {x for x in S if x[0] in 'va'}
    sc = lambda S: {x for x in S if x[0] == 's'}
    if p.kind == 'valu':
        wv, ws = vec(p.w), sc(p.w)
        if c.kind == 'mfma' and wv & c.r: n = max(n, 3 if p.op.startswith('v_dot') else 2)
        if c.kind == 'mfma' and ('s', 'exec') in ws: n = max(n, 4)
        if c.kind == 'valu':
            if c.op.startswith(('v_readfirstlane', 'v_readlane')) and wv & c.r: n = max(n, 1)
            if c.op.startswith('v_permlane') and wv & c.r: n = max(n, 2)
            if c.dpp and wv & c.r: n = max(n, 2)
            if p.op.startswith(TRANS) and wv & c.r and not c.op.startswith(TRANS): n = max(n, 1)
            if ws & c.r: n = max(n, 4 if c.op.startswith(('v_readlane', 'v_writelane')) else 2)
            if c.op.startswith('v_cndmask') and ('s', 'vcc') in ws: n = max(n, 2)
        if p.op.startswith('v_dot') and c.kind in ('valu', 'ds', 'vmem') and wv & (c.r | c.w):
            same_c = c.op == p.op and not (wv & (regs(c.ops[1]) | regs(c.ops[2])))
            if not same_c: n = max(n, 3)
        if c.kind == 'vmem' and ws & c.r: n = max(n, 5)
        if c.kind == 'salu' and ws & c.r and not c.op.startswith('s_cbranch'): n = max(n, 1)
    if p.kind == 'mfma':
        big = {4: 8, 8: 12}[p.passes]
        if c.kind == 'mfma':
            if p.w & c.A: n = max(n, big)
            if p.w & c.C and not (p.w == c.C and p.passes == c.passes): n = max(n, big - 2)
            if p.w & c.w and not (p.w == c.w and p.passes == c.passes): n = max(n, big - 2)
        elif c.kind in ('valu', 'ds', 'vmem'):
            if p.w & (c.r | c.w): n = max(n, big)
            if c.kind == 'valu' and p.C & c.w: n = max(n, p.passes - 1)
    if p.kind == 'salu':
        if ('s', 'm0') in p.w and ('s', 'm0') in c.r and c.kind in ('vmem', 'valu'): n = max(n, 1)
    if p.kind == 'vmem' and p.data and c.kind in ('valu', 'ds', 'vmem', 'mfma') and p.data & c.w: n = max(n, 2)
    return n
def fix_hazards(lines, verbose=False):
    out = []; added = 0
    for text in lines:
        c = I(text)
        if c.kind != 'label':
            dist = 0; lack = 0; why = None
            for p in reversed(out):
                if dist >= 14: break
                if p.op in ('s_branch', 's_endpgm'): break
                k = need(p, c) - dist
                if k > lack: lack, why = k, p
                dist += p.states
            if lack > 0:
                out.append(I(f's_nop {lack-1}')); added += lack
                if verbose: print(f'; nop {lack}: [{why.text}] -> [{c.text}]')
        out.append(c)
    return [i.text for i in out], added

def _wrap(lines, grid, block, lds, vgpr, accum, sgpr, header):
    fmt = lambda l: l if l.endswith(':') or l.startswith('.') else '    ' + l
    s = header + f'; @launch grid=({grid},1,1) block=({block},1,1) lds={lds}\n'
    s += f'.amdgcn_target "amdgcn-amd-amdhsa--gfx950"\n.text\n.globl {KN}\n.p2align 12\n.p2align 8\n.type {KN},@function\n{KN}:\n'
    s += '\n'.join(fmt(l) for l in lines) + '\n'
    s += f'''.section .rodata,"a"
.p2align 6
.amdhsa_kernel {KN}
  .amdhsa_next_free_vgpr {vgpr}
  .amdhsa_next_free_sgpr {sgpr}
  .amdhsa_accum_offset {accum}
  .amdhsa_group_segment_fixed_size 0
  .amdhsa_kernarg_size 88
  .amdhsa_user_sgpr_count 2
  .amdhsa_user_sgpr_kernarg_segment_ptr 1
  .amdhsa_system_sgpr_workgroup_id_x 1
  .amdhsa_float_denorm_mode_32 3
.end_amdhsa_kernel
'''
    return s
def sizes(text):
    import subprocess, tempfile, os
    d = tempfile.mkdtemp(); open(d + '/a.s', 'w').write(text)
    r = subprocess.run(['clang', '-x', 'assembler', '-target', 'amdgcn-amd-amdhsa', '-mcpu=gfx950', '-c', d + '/a.s', '-o', d + '/a.o'], capture_output=True, text=True)
    assert r.returncode == 0, r.stderr[:2000]
    o = subprocess.run(['llvm-objdump', '-d', '--mcpu=gfx950', d + '/a.o'], capture_output=True, text=True).stdout
    return [4 * len(m.group(1).split()) for m in re.finditer(r'// [0-9A-F]{12}: ((?:[0-9A-F]{8} ?)+)', o)]
ENTRY_OFF = 0x300
def finish(k, grid, block, lds, vgpr=512, accum=256, sgpr=102, header='', verbose=False, pads=None):
    main, n1 = fix_hazards(k.out, verbose)
    tail, n2 = fix_hazards(k.tail, False)
    lines = main + tail
    if pads:
        MAXP = 16
        islab = lambda l: l.endswith(':') or l.startswith('.')
        sz = sizes(_wrap(lines + [f'L_pad{p}:' for p in range(1, MAXP + 1)], grid, block, lds, vgpr, accum, sgpr, header))
        assert len(sz) == sum(1 for l in lines if not islab(l)), (len(sz), len(lines))
        npages = (ENTRY_OFF + sum(sz) + 8 * MAXP) // 4096
        out = []; addr = ENTRY_OFF; page = 0; it = iter(sz); made = set(); ez = 0
        for l in lines:
            if ez == 1 and l.startswith('L_ret'): ez = 2
            if not islab(l):
                if addr // 4096 > page and not ez:
                    page = addr // 4096
                    out += [f'L_pad{page}:', f's_cbranch_execz {pads(page)}', 's_nop 0']; addr += 8; made.add(page)
                addr += next(it)
                if l == 's_mov_b64 exec, 0': ez = 1
                elif ez == 2: assert l == 's_mov_b64 exec, -1'; ez = 0
            out.append(l)
        def resolve(lab):
            while lab.startswith('L_pad') and int(lab[5:]) not in made: lab = pads(int(lab[5:]))
            return lab
        lines = [re.sub(r'L_pad\d+$', lambda m: resolve(m.group(0)), l) for l in out]
    return _wrap(lines, grid, block, lds, vgpr, accum, sgpr, header), n1
```

```python
import sys, struct, re
from kasm import *

OPT = dict(ts=0, stop='', verbose=0, hq_slot=93, t1_grp=4, grid=256, lag=6, perA=96, perB=96, perG=90, perH=76, rot=0, touch=1, pads=1, hpre=21, nx=8, nA=16, dA=60, nT=2, nK=26, nU=10, nE=10, nU0=0, nS=0, late=1250, xack=0, uack=1, ud=500, outsc=0, xd=800, wt=0, usel=1, hsel=1, pS=92, pA=92, pT=92, pK=92, pU=92, pE=92, n0=11, xs0=4, fillslot=6, e0=14, t1_slot=26, hord=0, hdl=14, lead=18, rot2=0, only=0, hq0=94,
           idleU=500, nostats=0, nofill=0, nocnt=0, fine=0, noh=0)
for a in sys.argv[1:]:
    key, val = a.split('=')
    OPT[key] = val if key in ('stop', 'amp', 'ls') else int(val)
AMP = OPT.get('amp')
if AMP: OPT['ts'] = 1
TS, STOP = OPT['ts'], OPT['stop']
TSI = 's_memtime' if TS == 2 else 's_memrealtime'

S, D, F = 2048, 448, 1792
XB = S * D * 2
WS_U1, WS_U2, WS_X2, WS_H = 0, XB, 2 * XB, 3 * XB
WS_SS = WS_H + S * F * 2
WS_EP = WS_SS + 131072
WS_END = WS_EP + 64
WS_TS = 0x1000000
WS_DBG = 0x1100000
L_X = 0; L_RED = 28672; L_H = 0; L_ST = 64512
L_M = 65536; L_WA = L_M + 8192; WA_SZ = 22528
L_C = lambda half: 57344 if half else L_M
LDS_SZ = L_WA + 4 * WA_SZ
assert LDS_SZ <= 163840
NSLOT = 11
sX0, sW1, sW2, sOUT, sWS = 8, 12, 16, 20, 24
sW, sG, sP, sRB, sRETRY, sWA, sSO, sLO, sHI, sCI = 32, 33, 34, 35, 36, 37, 38, 39, 40, 41
sT = 42
sBG = 48
sMK = 52
sHS = 60
sIM, sIL = 67, 68
sFF = 69
sUO = 4
sRD = 96
sN = 28
sTS = 70
sDBG = 92
sRC = 100
sRO = 101
vL, vL16, vCS, vSa, vSb, vT1, vT2, vA = 0, 1, 2, 6, 7, 8, 10, 12
B = [16 + 16 * i for i in range(8)]; vR = 144
vCA, vSEL, vX = 240, 248, 252
def w1f(n, u): return ar(8 * n + 4 * u, 4)
def w2reg(kk, v):
    if kk < 4: return ('a', 224 + 8 * kk + 4 * v)
    if kk < 17: return ('v', 152 + 8 * (kk - 4) + 4 * v)
    return None
def rn(t, n): return ar(t[1], n) if t[0] == 'a' else vr(t[1], n)
fl = lambda x: '0x%08x' % struct.unpack('<I', struct.pack('<f', x))[0]

k = K(); e = k.e; rec = k.rec
nts = [0]; tsn = []
def log(msg):
    if OPT['verbose']: print(f'; [{k.clk}] {msg} ni={ws.ni} nd={ws.nd} cs={ws.nc}', file=sys.stderr)
LS = OPT.get('ls')
def ls(name):
    if TS and LS and re.fullmatch(LS, name):
        i = nts[0]; nts[0] += 1; tsn.append(name); assert i < 11
        k._emit(f'{TSI} s[{sTS+2*i}:{sTS+2*i+1}]')
def stamp(name):
    log(name)
    if LS: return ls(name)
    if not TS or (AMP and name != AMP) or ('half' in OPT and name[1] == str(1 - OPT['half']) and name != 'D0.st'): return
    i = nts[0]; nts[0] += 1; tsn.append(name); assert i < 22
    k.wait(lg='all')
    e(f'{TSI} s[50:51]\ns_waitcnt lgkmcnt(0)\ns_mov_b32 s{sTS+i}, s50')
def finish_stamps():
    if not TS: return
    if AMP:
        e('s_cmp_lg_u32 s2, 100'); e('s_cbranch_scc1 L_exit')
        e(f's_sub_u32 s44, s{sTS+1}, s{sTS}'); e('s_min_u32 s44, s44, 10000'); e('s_mul_i32 s44, s44, 20')
        e('s_memrealtime s[50:51]'); e('s_waitcnt lgkmcnt(0)'); e('s_add_u32 s44, s44, s50')
        e('L_amp:'); e('s_memrealtime s[50:51]'); e('s_waitcnt lgkmcnt(0)'); e('s_sub_u32 s45, s50, s44'); e('s_cmp_lt_i32 s45, 0'); e('s_cbranch_scc1 L_amp')
        return
    e('v_mov_b32 v16, 0')
    e('s_waitcnt lgkmcnt(0)')
    for i in range(nts[0]): e(f'v_writelane_b32 v16, s{sTS + (2*i if LS and not k.in_tail else i)}, {i}')
    e(f'v_writelane_b32 v16, s{sRETRY}, 63'); e(f'v_writelane_b32 v16, s{sRC}, 62')
    e(f's_lshl_b32 s{sT}, s2, 2'); e(f's_add_u32 s{sT}, s{sT}, s{sW}'); e(f's_lshl_b32 s{sT}, s{sT}, 8'); e(f's_add_u32 s{sT}, s{sT}, {WS_TS}')
    e(f'v_lshlrev_b32 v17, 2, v{vL}')
    e(f'buffer_store_dword v16, v17, {sr(sWS,4)}, s{sT} offen')
def stop(name, dump_lds=0):
    if STOP != name: return False
    k.bg_period = None
    k.wait(vm='all', lg='all'); e('s_barrier')
    if dump_lds:
        e(f's_lshl_b32 s{sT}, s{sW}, 10'); e(f'v_add_u32 v20, s{sT}, v{vL16}')
        e(f's_lshl_b32 s{sT}, s2, 16'); e(f's_add_u32 s{sT}, s{sT}, {WS_DBG}')
        for i in range(dump_lds // 4096):
            e(f'ds_read_b128 v[16:19], v20'); e('s_waitcnt lgkmcnt(0)')
            e(f'buffer_store_dwordx4 v[16:19], v20, {sr(sWS,4)}, s{sT} offen'); e('s_nop 1'); e('v_add_u32 v20, 4096, v20')
    finish_stamps(); e('s_endpgm')
    return True

RCLS = {'cnt': 0, 'U0': 1, 'h0': 2, 'x2': 3, 'img': 4, 'U1': 5, 'h1': 6}
def retry_site(check, reload, name, br='s_cbranch_vccnz'):
    def f():
        slow, ok = k.lab('slow_' + name), k.lab('ok_' + name)
        e(f'{br} {slow}'); e(f'{ok}:')
        k.begin_tail()
        e(f'{slow}:')
        e(f's_cmp_eq_u32 s{sRETRY}, 0'); e(f's_cbranch_scc1 {ok}'); e(f's_sub_u32 s{sRETRY}, s{sRETRY}, 1')
        if TS: e(f's_add_u32 s{sRC}, s{sRC}, {1 << 4*RCLS[name.split("_")[0]]}')
        reload(); k.wait(vm='all', lg='all'); check(); k.wait(vm='all', lg='all')
        e(f'{br} {slow}'); e('s_nop 1'); e(f's_branch {ok}')
        k.end_tail()
    k.call(f, 's', 20)
def cnt_load(reg): k.vmem(f'buffer_load_dword v{reg}, off, {sr(sDBG,4)}, 0 sc1', 'cnt')
def cnt_check(reg):
    chk = lambda: e(f'v_readfirstlane_b32 s49, v{reg}\ns_nop 1\ns_cmp_lt_u32 s49, 32')
    k.call(lambda: (k.wait(vm='cnt'), chk(), retry_site(chk, lambda: (e('s_sleep 16'), cnt_load(reg)), 'cnt_0', 's_cbranch_scc1')), 'v', 40)
def warm(site, first):
    def f():
        if OPT['pads']:
            e('s_mov_b64 exec, 0')
            for w in range(3): e(f's_cmp_eq_u32 s{sW}, {w}'); e(f's_cbranch_scc1 L_pad{first+w}')
            e(f's_branch L_pad{first+3}')
        elif site == 0: e('s_branch L_ret0')
        if site == 0: k.in_tail = True; helper(); k.in_tail = False
        e(f'L_ret{site}:'); e('s_mov_b64 exec, -1'); k.clk += 200
    k.call(f, 's', 250)
PADS = lambda p: 'L_ret0' if p <= 4 else (f'L_pad{p+4}' if p <= 12 else 'L_ret1')

class Stream:
    def __init__(s): s.ni = 0; s.nd = 0; s.nc = 0; s.limit = 4; s.lag = OPT['lag']
    def issue_ops(s):
        n = s.ni; s.ni += 1; ops = []
        if n == 28: ops += [Op(o.kind, o.cost, o.fn) for o in rec(lambda: src_off(896))]
        srd = sr(sW1 if n < 28 else sW2, 4)
        def a():
            if n >= NSLOT: assert s.done > n - NSLOT; k.wait(lg=f'tr{n-NSLOT}')
            elif n >= 4: k.wait(lg=f'xr{n-4}')
            e(f's_add_u32 m0, s{sWA}, {(n % NSLOT)*2048}')
            if n < 28:
                if n: e(f's_add_u32 s{sSO}, s{sSO}, {16*3584}')
            else:
                if (n - 28) % 4: e(f's_add_u32 s{sSO}, s{sSO}, {16*896}')
                else:
                    e(f's_mul_i32 s{sBG}, s{sP}, {2*7*16384}\ns_sub_u32 s{sSO}, s{sHS + (n-28)//4}, s{sBG}\ns_sub_u32 s{sSO}, s{sSO}, {WS_H}\ns_mul_i32 s{sSO}, s{sSO}, 14\ns_lshl_b32 s{sBG}, s{sG}, 7\ns_add_u32 s{sSO}, s{sSO}, s{sBG}')
            k.vmem(f'buffer_load_dwordx4 v{vSa}, {srd}, s{sSO} offen lds', f'wa{n}')
        def b(): k.vmem(f'buffer_load_dwordx4 v{vSb}, {srd}, s{sSO} offen offset:1024 lds', f'w{n}'); s.sent = n + 1
        return ops + [Op('s', 12, a, 1), Op('vm', 4, b, 1)]
    def drain_ops(s):
        n = s.nd; s.nd += 1
        so = (n % NSLOT) * 2048
        def rd(u, h2):
            def f():
                assert s.sent > n; k.wait(vm=f'w{n}')
                if n < 28: dst, ad, off = ar(8*n + 4*u + 2*h2, 2), vT1 + u, so + 512*h2
                else:
                    t = w2reg(n - 28, u); dst, ad, off = rn((t[0], t[1] + 2*h2), 2), vT2 + u, so + 1024*h2
                k.ds(f'ds_read_b64_tr_b16 {dst}, v{ad} offset:{off}', f'tr{n}')
                if u and h2: s.done = n + 1
            return Op('ds', 4, f)
        return [rd(0, 0), rd(0, 1), rd(1, 0), rd(1, 1)]
    done = 0; sent = 0
    cs_on = 0; dmax = 45
    def mix(s, ops):
        out = []; n = s.cs_on
        for o in ops:
            out.append(o)
            if n > 0 and s.nc < 2*min(28, s.done - 1 if s.done < 29 else 28): out.append(s.cs_op()); n -= 1
        return out
    def refill(s):
        if s.nd < s.dmax and (s.ni - s.nd > s.lag or (s.ni == 56 and s.nd < s.ni)): k.bg += s.mix(s.drain_ops())
        elif s.ni < min(56, s.limit) and s.ni - NSLOT < s.nd: k.bg += s.mix(s.issue_ops())
    def drain_landed(s, keep):
        while s.nd < min(45, s.ni - keep): k.bg += s.drain_ops()
    def ensure(s, n):
        n = min(n, 55)
        while (s.done <= n if n < 45 else (s.ni <= n or k.bg)):
            if not k.bg:
                if s.ni <= n and s.ni - NSLOT < s.nd: k.bg += s.issue_ops()
                else: k.bg += s.drain_ops()
            k.bg_step()
    use = staticmethod(lambda n: 2*n if n < 28 else 116 + 2*(n - 28))
    def force(s, slot):
        if s.sent < s.ni and s.use(s.sent) <= slot + OPT['lead']: k.bg_flush()
        while s.ni < 56 and s.use(s.ni) <= slot + OPT['lead']:
            k.bg_flush()
            if s.ni - NSLOT >= s.nd: k.bg += s.drain_ops()
            k.bg += s.issue_ops(); k.bg_flush()
        n = max([-1] + [i for i in range(45) if s.use(i) <= slot + 4])
        if n >= 0: s.ensure(n)
    def cs_op(s):
        n, u = s.nc >> 1, s.nc & 1; s.nc += 1
        def g():
            assert s.done > n; k.wait(lg=f'tr{n}')
            acc = vr(vCA + 4*u, 4)
            e(f'v_mfma_f32_16x16x32_bf16 {acc}, {vr(vSEL,4)}, {w1f(n, u)}, {acc if n else 0}')
        return Op('mfma', 16, g)
    def cs_flush(s, maxn=99, behind=0):
        while s.nc < 2*min(28, s.done - behind) and maxn > 0: k.run([s.cs_op()]); maxn -= 1
ws = Stream()
def src_off(stride):
    e(f'v_lshrrev_b32 v{vSa}, 3, v{vL}'); e(f'v_lshrrev_b32 v{vSb}, 2, v{vL}'); e(f'v_and_b32 v{vSb}, 4, v{vSb}')
    e(f'v_xor_b32 v{vSb}, v{vSb}, v{vL}'); e(f'v_and_b32 v{vSb}, 7, v{vSb}'); e(f'v_mul_u32_u24 v{vSa}, {stride}, v{vSa}')
    e(f'v_lshl_add_u32 v{vSa}, v{vSb}, 4, v{vSa}'); e(f'v_add_u32 v{vSb}, {8*stride-1024}, v{vSa}')
def cs_finish():
    for u in range(2):
        c = vCA + 4*u; t = c + 1; d = vCS + 2*u
        e(f'v_cvt_pk_bf16_f32 v{t}, v{c}, v{c}'); e(f'v_and_b32 v{t+1}, s{sFF}, v{t}'); e(f'v_sub_f32 v{t+2}, v{c}, v{t+1}')
        e(f'v_cvt_pk_bf16_f32 v{d}, v{t+1}, v{t+2}'); e(f'v_and_b32 v{d+1}, 0xffff, v{t}')
def stream_setup():
    src_off(3584)
    rot = OPT['rot']
    e(f's_lshl_b32 s{sSO}, s{sG}, 2'); e(f's_add_u32 s{sSO}, s{sSO}, s{sW}'); e(f's_lshl_b32 s{sSO}, s{sSO}, 7')
    t = B[1]
    e(f'v_bfe_u32 v{t}, v{vL}, 2, 2'); e(f'v_bfe_u32 v{t+1}, v{vL}, 3, 1'); e(f'v_bfe_u32 v{t+2}, v{vL}, 4, 1'); e(f'v_and_b32 v{t+3}, 3, v{vL}')
    e(f'v_lshlrev_b32 v{t}, 7, v{t}'); e(f'v_lshl_add_u32 v{t}, v{t+1}, 6, v{t}'); e(f'v_lshl_add_u32 v{t}, v{t+2}, 5, v{t}'); e(f'v_lshl_add_u32 v{t}, v{t+3}, 3, v{t}')
    e(f'v_add_u32 v{t}, s{sWA}, v{t}'); e(f'v_lshrrev_b32 v{t+1}, 5, v{vL}')
    e(f'v_lshl_add_u32 v{vT1}, v{t+1}, 10, v{t}'); e(f'v_lshl_add_u32 v{vT2}, v{t+1}, 9, v{t}')
    e(f'v_xor_b32 v{vT1+1}, 64, v{vT1}'); e(f'v_xor_b32 v{vT2+1}, 64, v{vT2}')
def late_setup():
    t = vSEL
    e(f'v_lshrrev_b32 v{t}, 2, v{vL}'); e(f'v_lshrrev_b32 v{t+1}, 4, v{vL}'); e(f'v_xor_b32 v{t}, v{t}, v{t+1}'); e(f'v_and_b32 v{t}, 1, v{t}')
    e(f'v_add_u32 v{t}, -1, v{t}'); e(f'v_and_b32 v{t}, 0x3f803f80, v{t}')
    for i in range(1, 4): e(f'v_mov_b32 v{t+i}, v{t}')
    e(f's_mul_i32 s{sT}, s{sP}, {2*7*16384}'); e(f's_lshl_b32 s{sT+1}, s{sW}, 12'); e(f's_add_u32 s{sT}, s{sT}, s{sT+1}'); e(f's_add_u32 s{sT}, s{sT}, {WS_H}')
    e({0: f's_mov_b32 s{sT+3}, 1', 1: f's_add_u32 s{sT+3}, s{sCI}, 1', 2: f's_and_b32 s{sT+3}, s2, 3\ns_add_u32 s{sT+3}, s{sT+3}, 1'}[OPT['rot2']]); e(f's_mov_b32 s{sT+1}, s{sG}')
    for jp in range(7):
        if jp: e(f's_add_u32 s{sT+1}, s{sT+1}, s{sT+3}'); e(f's_sub_u32 s{sT+2}, s{sT+1}, 7'); e(f's_min_u32 s{sT+1}, s{sT+1}, s{sT+2}')
        e(f's_lshl_b32 s{sT+2}, s{sT+1}, 14'); e(f's_add_u32 s{sHS+jp}, s{sT}, s{sT+2}')

def prologue():
    e('s_load_dwordx2 s[8:9], s[0:1], 0'); e('s_load_dwordx4 s[4:7], s[0:1], 48')
    e('s_load_dwordx2 s[20:21], s[0:1], 64'); e('s_load_dwordx2 s[24:25], s[0:1], 80'); e(f's_load_dwordx2 {sr(sDBG,2)}, s[0:1], 72')
    e('s_getpc_b64 s[46:47]'); e('L_pc:')
    e('v_lshrrev_b32 v1, 6, v0'); e('v_and_b32 v0, 63, v0'); e('s_bfe_u32 s3, s2, 0x50003'); e(f'v_readfirstlane_b32 s{sW}, v1')
    e('v_lshl_add_u32 v2, s3, 2, v1'); e('v_lshl_add_u32 v2, v0, 7, v2'); e('v_lshlrev_b32 v2, 7, v2'); e('v_min_u32 v2, L_end-L_pc, v2')
    e('s_mov_b64 exec, 7'); k.vmem('global_load_dword v3, v2, s[46:47]', 'touch'); e('s_mov_b64 exec, -1')
    e(f'v_lshlrev_b32 v{vL16}, 4, v0')
    e('s_sub_u32 s3, s2, 32'); e('s_cmp_ge_u32 s3, 224'); e('s_cbranch_scc1 L_helper')
    if TS: e(f'{TSI} s[50:51]'); e(f's_mov_b32 s{sRC}, 0')
    e(f's_lshr_b32 s{sT}, s3, 3'); e(f's_mul_i32 s{sCI}, s{sT}, 37'); e(f's_lshr_b32 s{sCI}, s{sCI}, 8')
    e(f's_mul_i32 s{sG}, s{sCI}, 7'); e(f's_sub_u32 s{sG}, s{sT}, s{sG}')
    e(f's_and_b32 s{sP}, s3, 7'); e(f's_lshl_b32 s{sP}, s{sP}, 1'); e(f's_lshr_b32 s{sT}, s{sCI}, 1'); e(f's_add_u32 s{sP}, s{sP}, s{sT}')
    e(f's_sub_u32 s{sT}, 32, s{sP}'); e(f's_cmp_eq_u32 s{sP}, 0'); e(f's_cselect_b32 s{sT}, 16, s{sT}')
    e(f's_bitcmp1_b32 s{sCI}, 0'); e(f's_cselect_b32 s{sP}, s{sT}, s{sP}')
    e(f's_mul_i32 s{sWA}, s{sW}, {WA_SZ}'); e(f's_add_u32 s{sWA}, s{sWA}, {L_WA}')
def srds(which):
    for r, n in ((sX0, XB), (sW1, D*F*2), (sW2, D*F*2), (sOUT, XB), (sWS, 0x2000000 if (TS or STOP) else WS_END), (sDBG, 256)):
        if r in which: e(f's_mov_b32 s{r+2}, {n}'); e(f's_mov_b32 s{r+3}, 0x20000')
def copy_ptrs(first):
    if first: e(f's_mov_b32 s{sW1}, s4'); e(f's_mov_b32 s{sW1+1}, s5')
    else:
        e(f's_mov_b32 s{sW2}, s6'); e(f's_mov_b32 s{sW2+1}, s7')

def helper():
    e('L_helper:')
    e('s_cmp_ge_u32 s2, 32'); e('s_cbranch_scc1 L_exit')
    srds((sW1, sW2, sWS, sDBG))
    e(f's_lshl_b32 s{sT}, s2, 2'); e(f's_add_u32 s{sT}, s{sT}, s{sW}'); e(f's_lshl_b32 s{sT+1}, s{sT}, 13'); e(f'v_lshl_add_u32 v2, v{vL}, 7, s{sT+1}')
    e(f's_mul_i32 s{sT+1}, s{sT}, {34*128}'); e(f's_add_u32 s{sT+1}, s{sT+1}, {8192*128}'); e(f'v_min_u32 v4, 33, v{vL}'); e(f'v_lshl_add_u32 v4, v4, 7, s{sT+1}')
    e('s_waitcnt lgkmcnt(0)'); copy_ptrs(True); copy_ptrs(False)
    hs = [0]
    def hstamp(w=None):
        if TS and not AMP:
            if w is not None: e(f's_waitcnt vmcnt({w})')
            e(f'{TSI} s[50:51]\ns_waitcnt lgkmcnt(0)\ns_mov_b32 s{sTS+hs[0]}, s50'); hs[0] += 1
    if OPT['hpre'] & 4: e('s_waitcnt vmcnt(0)')
    hstamp()
    if OPT['hpre'] & 1:
        for r in ((sW2,) if OPT['hpre'] & 8 else (sW1, sW2)):
            e(f'buffer_load_dword v8, v2, {sr(r,4)}, 0 offen'); e('s_barrier'); e(f'buffer_load_dword v8, v4, {sr(r,4)}, 0 offen'); e('s_barrier')
        hstamp(2); hstamp(0)
    def fills():
        for i in range(4): e(f'v_mov_b32 v{12+i}, -1')
        e(f's_lshl_b32 s{sT}, s{sW}, 10'); e(f'v_add_u32 v10, s{sT}, v{vL16}'); e('v_mov_b32 v11, 1')
        e(f's_lshl_b32 s{sT}, s2, 12'); e(f's_add_u32 s{sT}, s{sT}, {WS_SS}'); e(f'buffer_store_dwordx4 v[12:15], v10, {sr(sWS,4)}, s{sT} offen sc1')
        e(f's_mul_i32 s{sT}, s2, {2*XB//32}'); e(f's_add_u32 s{sT}, s{sT}, {WS_U2}'); e(f's_mov_b32 s{sT+1}, 14')
        e('L_fill:')
        for j in range(2): e(f'buffer_store_dwordx4 v[12:15], v10, {sr(sWS,4)}, s{sT} offen sc1'); e(f's_add_u32 s{sT}, s{sT}, 4096')
        e(f's_sub_u32 s{sT+1}, s{sT+1}, 1'); e(f's_cmp_lg_u32 s{sT+1}, 0'); e('s_cbranch_scc1 L_fill')
        e('s_waitcnt vmcnt(0)'); e('s_barrier')
        e(f's_cmp_lg_u32 s{sW}, 0'); e('s_cbranch_scc1 L_nosig')
        e('s_mov_b64 exec, 1'); e(f'buffer_atomic_add v11, off, {sr(sDBG,4)}, 0 sc1'); e('s_mov_b64 exec, -1')
        e('L_nosig:'); hstamp()
    if not OPT['hpre'] & 16: fills()
    if OPT['hpre'] & 2:
        e(f'v_min_u32 v5, 55, v{vL}'); e('v_lshrrev_b32 v6, 3, v5'); e('v_and_b32 v5, 7, v5')
        e(f's_lshr_b32 s{sT}, s2, 3'); e(f's_lshl_b32 s{sT}, s{sT}, 3'); e(f's_add_u32 s{sT}, s{sT}, s{sW}'); e(f's_lshl_b32 s{sT}, s{sT}, 3')
        e(f'v_add_u32 v5, s{sT}, v5'); e('v_mul_u32_u24 v5, 896, v5'); e(f'v_mul_u32_u24 v6, {256*896+128}, v6'); e(f'v_add3_u32 v5, v5, v6, 0')
        e(f'v_add_u32 v5, {256*896}, v5'); e(f's_mov_b32 s{sT}, {32*896}'); e(f's_mov_b32 s{sT+1}, 5')
        e('L_hl2:')
        e(f'v_add_u32 v5, {256*896}, v5'); e(f'v_subrev_u32 v6, {F*896}, v5'); e('v_min_u32 v5, v5, v6')
        e(f'buffer_load_dword v8, v5, {sr(sW2,4)}, 0 offen'); e(f'buffer_load_dword v8, v5, {sr(sW2,4)}, s{sT} offen')
        e(f's_sub_u32 s{sT+1}, s{sT+1}, 1'); e(f's_cmp_lg_u32 s{sT+1}, 0'); e('s_cbranch_scc1 L_hl2')
        hstamp(0)
    if OPT['hpre'] & 16: fills()
    if TS and not AMP:
        n = nts[0]; nts[0] = 8; finish_stamps(); nts[0] = n
    e('L_exit:'); e('s_endpgm')

HALF = [0]
def gen_H():
    ef, a0, tc, q8 = 72, 73, 74, 75
    P0, P1, PK = 76, 84, 92
    e(f'v_and_b32 v{ef}, 15, v{vL}'); e(f's_and_b32 s{sT}, s{sW}, 1'); e(f's_lshl_b32 s{sT+1}, s{sG}, 5'); e(f's_add_u32 s{sT}, s{sT}, s{sT+1}')
    e(f'v_lshl_add_u32 v{ef}, v{ef}, 1, s{sT}'); e(f'v_mov_b32 v{a0}, 224'); e(f'v_cmp_eq_u32 vcc, 0, v{ef}')
    e(f'v_lshrrev_b32 v{q8}, 4, v{vL}'); e(f's_lshl_b32 s{sT+1}, s{sT+1}, 1'); e(f'v_lshl_add_u32 v{q8}, v{q8}, 3, s{sT+1}')
    e(f'v_cndmask_b32 v{ef}, v{ef}, v{a0}, vcc'); e(f'v_cvt_f32_u32 v{q8}, v{q8}'); e(f'v_cvt_f32_u32 v{ef}, v{ef}')
    e(f's_cmp_ge_u32 s{sW}, 2\ns_cselect_b32 s{sT}, {fl(-112.0)}, 0')
    e(f'v_fma_f32 v{a0}, v{q8}, v{ef}, s{sT}'); e(f'v_mul_f32 v{ef}, {fl(1.0/448)}, v{ef}'); e(f'v_mul_f32 v{q8}, {fl(1.0/448)}, v{a0}')
    e(f'v_rndne_f32 v{q8}, v{q8}'); e(f'v_fmamk_f32 v{a0}, v{q8}, {fl(-448.0)}, v{a0}'); e(f'v_mul_f32 v{a0}, {fl(1.0/448)}, v{a0}')
    e(f'v_mul_f32 v{tc}, {fl(32.0)}, v{ef}'); e(f'v_cos_f32 v{tc}, v{tc}')
    e(f's_mul_i32 s{sT}, s{sW}, {7*1024}'); e(f's_add_u32 s{sT}, s{sT}, {L_H}'); e(f'v_add_u32 v{q8}, s{sT}, v{vL16}')
    e(f'v_add_f32 v{tc}, v{tc}, v{tc}')
    for kap in range(7):
        cur, prv = (P0, P1) if kap % 2 == 0 else (P1, P0)
        if HALF[0]: ls(f'H.{kap}')
        if kap < 2:
            for jj in range(8): e(f'v_fmamk_f32 v{cur+jj}, v{ef}, {fl(32.0*kap+jj)}, v{a0}')
            for jj in range(8): e(f'v_cos_f32 v{cur+jj}, v{cur+jj}')
        else:
            for jj in range(0, 8, 2): e(f'v_pk_fma_f32 {vr(cur+jj,2)}, {vr(tc,2)}, {vr(prv+jj,2)}, {vr(cur+jj,2)} op_sel_hi:[0,1,1] neg_lo:[0,0,1] neg_hi:[0,0,1]')
        pk = PK + 4*(kap % 2)
        for m in range(4): e(f'v_cvt_pk_bf16_f32 v{pk+m}, v{cur+2*m}, v{cur+2*m+1}')
        k.ds(f'ds_write_b128 v{q8}, {vr(pk,4)} offset:{1024*kap}', 'Hw')
def gen_F(dst):
    mf, a0, t = 100, 101, 102
    T = 120
    e(f'v_bfe_u32 v{mf}, v{vL}, 1, 3'); e(f's_lshl_b32 s{sT}, s{sW}, 3'); e(f'v_add_u32 v{mf}, s{sT}, v{mf}')
    e(f'v_and_b32 v{t}, 1, v{vL}'); e(f'v_cvt_f32_u32 v{a0}, v{t}'); e(f'v_cmp_eq_u32 vcc, 0, v{mf}')
    e(f'v_lshlrev_b32 v{t}, 5, v{t}'); e(f'v_mul_f32 v{a0}, {fl(-0.25)}, v{a0}')
    e(f'v_cndmask_b32 v{mf}, v{mf}, v{t}, vcc'); e(f'v_cndmask_b32 v{a0}, v{a0}, 0, vcc')
    e(f'v_cvt_f32_u32 v{mf}, v{mf}'); e(f'v_lshrrev_b32 v{t}, 4, v{vL}'); e(f'v_lshlrev_b32 v{t}, 3, v{t}'); e(f'v_cvt_f32_u32 v{t}, v{t}')
    e(f'v_mul_f32 v{mf}, {fl(1.0/64)}, v{mf}'); e(f'v_fma_f32 v{a0}, v{t}, v{mf}, v{a0}')
    for k1 in range(2):
        for jj in range(8): e(f'v_fmamk_f32 v{T+8*k1+jj}, v{mf}, {fl(k1 + 32.0*(jj >> 2) + 2.0*(jj & 3))}, v{a0}')
    for i in range(16): e(f'v_cos_f32 v{T+i}, v{T+i}')
    for m in range(8): e(f'v_cvt_pk_f16_f32 v{dst+m}, v{T+2*m}, v{T+2*m+1}')
def gen_M(t0):
    j, s2f, ad = t0, t0 + 1, t0 + 2
    e(f'v_and_b32 v{j}, 31, v{vL}'); e(f'v_lshlrev_b32 v{j}, 6, v{j}')
    S2 = t0 + 36
    e(f'v_lshrrev_b32 v{s2f}, 5, v{vL}'); e(f's_add_u32 s{sT}, s{sW}, s{sG}'); e(f's_and_b32 s{sT}, s{sT}, 3'); e(f's_lshl_b32 s{sT}, s{sT}, 2')
    for jj in range(4):
        if jj: e(f's_add_u32 s{sT}, s{sT}, 1')
        e(f's_lshl_b32 s{sT+1}, s{sT}, 1'); e(f's_sub_u32 s{sT+1}, 32, s{sT+1}')
        if jj == 0: e(f's_cmp_eq_u32 s{sT}, 0\ns_cselect_b32 s{sT+1}, 16, s{sT+1}')
        e(f'v_mul_u32_u24 v{S2+jj}, s{sT+1}, v{s2f}'); e(f'v_add_u32 v{S2+jj}, s{sT}, v{S2+jj}'); e(f'v_cvt_f32_u32 v{S2+jj}, v{S2+jj}')
    e(f's_lshl_b32 s{sT}, s{sW}, 10'); e(f's_add_u32 s{sT}, s{sT}, {L_M}'); e(f'v_add_u32 v{ad}, s{sT}, v{vL16}')
    e(f's_cmp_eq_u32 s{sP}, 0\ns_cselect_b32 s{sT}, {fl(0.25)}, 0')
    for pq in range(2):
        T = t0 + 4 + 16*pq
        tf, a0 = T + 12, T + 13
        e(f'v_add_u32 v{tf}, s{sRB if pq else sP}, v{j}'); e(f'v_cvt_f32_u32 v{tf}, v{tf}'); e(f'v_mul_f32 v{tf}, {fl(1.0/2048)}, v{tf}')
        for jj in range(4): e(f'v_fma_f32 v{T+jj}, v{tf}, v{S2+jj}, s{sT}' if pq else f'v_mul_f32 v{T+jj}, v{tf}, v{S2+jj}')
        for jj in range(4): e(f'v_sin_f32 v{T+4+jj}, v{T+jj}')
        for jj in range(4): e(f'v_cos_f32 v{T+jj}, v{T+jj}')
        for jj in range(4): e(f'v_cvt_pk_f16_f32 v{T+8+jj}, v{T+jj}, v{T+4+jj}')
        k.ds(f'ds_write_b128 v{ad}, {vr(T+8,4)} offset:{4096*pq}', 'Mw')

def img_ops(half, T):
    ops = []; rho = sRB if T else sP
    if half == 0:
        for r in range(8):
            def f(r=r):
                if r == 0: e(f's_lshl_b32 s{sIM}, s{sW}, 9\ns_add_u32 s{sIM}, s{sIM}, s{rho}\ns_mul_i32 s{sIM}, s{sIM}, 896\ns_mul_i32 s{sIL}, s{sW}, {8*912}')
                else: e(f's_add_u32 s{sIM}, s{sIM}, 57344')
                e(f's_add_u32 m0, s{sIL}, {L_X + 912*(32*T + r)}'); e('s_mov_b32 exec_hi, 0x00ffffff')
                k.vmem(f'buffer_load_dwordx4 v{vL16}, {sr(sX0,4)}, s{sIM} offen lds', f'img{T}'); e('s_mov_b32 exec_hi, -1')
            ops.append(Op('s', 20, f, 1))
    else:
        for i in range(7):
            def f(i=i):
                if i == 0: e(f's_mul_i32 s{sIL}, s{sW}, 7168\ns_add_u32 m0, s{sIL}, {L_X + 28672*T}\ns_mul_i32 s{sIM}, s{rho}, 28672\ns_add_u32 s{sIM}, s{sIM}, s{sIL}\ns_add_u32 s{sIM}, s{sIM}, {WS_X2}')
                if i == 4: e(f's_add_u32 m0, m0, 4096\ns_add_u32 s{sIM}, s{sIM}, 4096')
                k.vmem(f'buffer_load_dwordx4 v{vL16}, {sr(sWS,4)}, s{sIM} offen offset:{1024*(i%4)} sc1 lds', f'img{T}')
            ops.append(Op('s' if i % 4 == 0 else 'vm', 4, f, 1))
    return ops

XF = lambda kap: 16 + 4 * kap
BORD = [0, 3, 4, 1, 5, 2, 6]
SX = [0, 1, 3, 4, 5, 6, 7]
def x2_loads(first):
    for kp in range(first, 7):
        for kap in (kp, kp + 7):
            k.vmem(f'buffer_load_dwordx4 {vr(XF(kap),4)}, v{vL16}, {sr(sWS,4)}, s{SX[kap//2]} offen offset:{1024*(kap%2)} sc1', f'x{kap}')
def phA(half):
    aT = [72, 76, 84, 88]; aHi = {1: 80, 3: 92}; aS, aG = 96, 100
    HR = [104, 120]; ones = 136; Ff = 140; t = 148
    vx, vh, vtr, vu, vcw, k1 = vA, vL16, vA + 2, vA + 3, 150, 151
    lc = L_C(half)
    def misc():
        if half == 0:
            for i in range(4): e(f'v_mov_b32 v{ones+i}, 0x3f803f80')
            mk = [0x1000010000100001, 0x2000020000200002, 0x4000040000400004, 0x8000080000800008]
            for i in range(4): e(f's_mov_b32 s{sMK+2*i}, {mk[i] & 0xffffffff:#x}'); e(f's_mov_b32 s{sMK+2*i+1}, {mk[i] >> 32:#x}')
        else: e(f's_mov_b32 s{sMK}, -1'); e(f's_mov_b32 s{sMK+1}, 0xffff')
        e(f'v_and_b32 v{t}, 15, v{vL}'); e(f'v_lshrrev_b32 v{t+1}, 4, v{vL}'); e(f'v_lshlrev_b32 v{vcw}, 5, v{t}'); e(f'v_lshl_add_u32 v{vcw}, v{t+1}, 3, v{vcw}')
        e(f's_lshl_b32 s{sT}, s{sW}, 9'); e(f's_add_u32 s{sT}, s{sT}, {lc}'); e(f'v_add_u32 v{vcw}, s{sT}, v{vcw}')
        e(f's_lshl_b32 s{sT}, s{sW}, 2'); e(f'v_add_u32 v{vu}, s{sT}, v{t+1}'); e(f'v_cmp_eq_u32 vcc, 0, v{vu}')
        e(f'v_mul_u32_u24 v{vu}, {2*57344}, v{vu}'); e(f'v_lshl_add_u32 v{vu}, v{t}, 4, v{vu}'); e(f'v_cndmask_b32 v{k1}, -1.0, 0, vcc')
        e(f's_and_b32 s{sT+4}, s2, 7'); e(f's_lshl_b32 s{sT+4}, s{sT+4}, 2'); e(f's_add_u32 s{sT+4}, s{sT+4}, s{sCI}'); e(f's_mul_i32 s{sT+4}, s{sT+4}, 7'); e(f's_add_u32 s{sT+4}, s{sT+4}, s{sG}'); e(f's_lshl_b32 s{sT+4}, s{sT+4}, 8'); e(f's_add_u32 s{sT+4}, s{sT+4}, {WS_U2 if half else WS_U1}')
        e(f's_add_u32 s{sT+5}, s{sT+4}, 57344'); e(f'v_lshlrev_b32 v{vtr}, 3, v{vL}'); e(f'v_add_u32 v{vtr}, {lc}, v{vtr}')
    hread = lambda kp: rec(lambda: [k.ds(f'ds_read_b128 {vr(HR[kp%2]+4*tl,4)}, v{vh} offset:{L_H + (7*tl+kp)*1024}', f'H{kp}') for tl in range(4)])
    st_load = lambda: k.vmem(f'buffer_load_dwordx4 {vr(ones,4)}, v{vL16}, {sr(sWS,4)}, s49 offen sc1', 'ss')
    if half == 0:
        va, vb = vX, vX + 1
        srds((sX0,))
        e(f'v_lshrrev_b32 v{va}, 3, v{vL}'); e(f'v_lshrrev_b32 v{vb}, 4, v{vL}'); e(f'v_xor_b32 v{vb}, v{vb}, v{vL}'); e(f'v_and_b32 v{vb}, 7, v{vb}')
        e(f'v_mul_u32_u24 v{va}, 57344, v{va}'); e(f'v_lshl_add_u32 v{va}, v{vb}, 4, v{va}')
        e(f'v_xor_b32 v{vb}, 64, v{va}'); e(f'v_add_u32 v{vb}, {8*57344-1024}, v{vb}')
        e(f's_lshr_b32 s{sT}, s{sW}, 1'); e(f's_lshl_b32 s{sT}, s{sT}, 5'); e(f's_add_u32 s{sT}, s{sT}, s{sP}')
        e(f's_and_b32 s{sT+1}, s{sW}, 1'); e(f's_lshl_b32 s{sT+1}, s{sT+1}, 10'); e(f's_add_u32 s{sT}, s{sT}, s{sT+1}'); e(f's_mul_i32 s3, s{sT}, 896')
        e(f's_lshl_b32 s{sIM}, s{sG}, 7')
        def xdma(i):
            b = BORD[i]
            def a():
                if b: e(f's_add_u32 s{sBG}, s{sIM}, {128*b}\ns_sub_u32 s{sIL}, s{sBG}, 896\ns_min_u32 s{sBG}, s{sBG}, s{sIL}')
                e(f's_add_u32 m0, s{sWA}, {8192 + 2048*i}\ns_add_u32 s{sBG}, s3, s{sBG if b else sIM}')
                if i == 0:
                    e('s_waitcnt lgkmcnt(0)')
                    if TS: e(f's_mov_b32 s{sTS}, s50'); nts[0] = 1; tsn.append('start')
                k.vmem(f'buffer_load_dwordx4 v{va}, {sr(sX0,4)}, s{sBG} offen lds', f'xa{b}')
            return [Op('s', 24, a), Op('vm', 4, lambda: k.vmem(f'buffer_load_dwordx4 v{vb}, {sr(sX0,4)}, s{sBG} offen offset:1024 lds', f'xb{b}'))]
        xs = []
        for i in range(7): xs += xdma(i)
        k.run(xs[:4]); t0 = k.clk
        if OPT['fine'] & 1: stamp('iss')
        def rest():
            gen_H()
            if not OPT['wt']: copy_ptrs(True); srds((sW1,))
            copy_ptrs(False); srds((sW2, sOUT, sWS, sDBG))
            e(f's_sub_u32 s{sRB}, 64, s{sP}'); e(f's_cmp_eq_u32 s{sP}, 0\ns_cselect_b32 s{sRB}, 32, s{sRB}')
            e(f's_mov_b32 s{sRETRY}, 20000'); e(f's_mov_b32 s{sLO}, 0x3f80'); e(f's_mov_b32 s{sHI}, 0x3f800000'); e(f's_mov_b32 s{sFF}, 0xffff0000')
            warm(0, 1)
            misc()
            e(f'v_lshrrev_b32 v{vx}, 1, v{t}'); e(f'v_xor_b32 v{vx}, v{vx}, v{t+1}'); e(f'v_lshlrev_b32 v{t}, 7, v{t}'); e(f'v_lshl_add_u32 v{t}, v{vx}, 4, v{t}')
            e(f's_add_u32 s{sT}, s{sWA}, 8192'); e(f'v_add_u32 v{vx}, s{sT}, v{t}'); e(f'v_xor_b32 v{vx+1}, 64, v{vx}')
            stream_setup(); gen_F(Ff)
            e(f'v_mov_b32 v{vX+2}, 0x10001')
        nx = OPT['nx']
        if OPT['wt']:
            copy_ptrs(True); srds((sW1,)); e(f's_sub_u32 s{sT}, s2, 32'); e(f's_lshl_b32 s{sT}, s{sT}, 2'); e(f's_add_u32 s{sT}, s{sT}, s{sW}'); e(f's_mul_i32 s{sT}, s{sT}, {14*128}')
            e(f'v_lshlrev_b32 v4, 7, v{vL}'); e('s_mov_b64 exec, 0x3fff'); k.vmem(f'buffer_load_dword v5, v4, {sr(sW1,4)}, s{sT} offen', 'touch'); e('s_mov_b64 exec, -1')
        fill = k.weave(xs[4:nx], rec(rest), 64)
        while fill and k.clk < t0 + OPT['late']: fill.pop(0)()
        epl = Op('s', 16, lambda: (e(f's_mov_b32 s{sBG}, {WS_EP}'), e('s_mov_b64 exec, 1'), k.vmem(f'buffer_load_dwordx4 {vr(vSEL,4)}, off, {sr(sWS,4)}, s{sBG} sc1', 'ep'), e('s_mov_b64 exec, -1')), 1)
        k.bg += [Op(o.kind, o.cost, o.fn, 1) for o in xs[nx:]] + [epl] + img_ops(0, 1)
        k.seg(999, 999*OPT['pS'])
        k.run(fill)
        while len(k.bg) > 8: k.bg_step()
        k.refill = ws.refill
        k.wait(lg='Hw'); e('s_barrier')
        k.run(hread(0))
    else:
        t0 = k.clk
        fill = rec(lambda: (gen_H(), misc(), k.wait(lg='Hw'), e('s_barrier'), k.run(hread(0)), gen_F(Ff)))
        while fill and k.clk < t0 + OPT['xd']: fill.pop(0)()
        if OPT['xack']: k.wait(vm='xst')
        stamp('A1.ack')
        ld = rec(lambda: x2_loads(0)); ld = ld[:6] + rec(st_load) + ld[6:]
        k.run(ld[:4])
        k.run(k.weave(ld[4:11], fill, 60))
        k.bg += [Op(o.kind, o.cost, o.fn, 1) for o in ld[11:]] + img_ops(1, 1)
    stamp(f'A{half}.consts')
    def xread(i):
        b = BORD[i]
        def g(h):
            k.wait(vm=f'xb{b}'); k.ds(f'ds_read_b128 {vr(XF(2*b+h),4)}, v{vx+h} offset:{2048*i}', f'xr{i}')
            if h: ws.limit = 5 + i if i < 6 else 56
        return [Op('ds', 8, lambda: g(0)), Op('ds', 4, lambda: g(1))]
    sent = set()
    def xchk(kp):
        chk = lambda: (e(f'v_max_u32 v{t+1}, v{XF(kp)}, v{XF(kp+7)}'), e(f'v_cmp_eq_u32 vcc, -1, v{t+1}'))
        def w():
            while len(k.bg) > 7 + 2*(6 - kp): k.bg_step()
            k.wait(vm=f'x{kp+7}')
        o = [Op('w', 4, w)] + rec(lambda: (chk(), retry_site(chk, lambda: x2_loads(kp), f'x2_{kp}')))
        return o[:2], o[2:3], o[3:]
    k.depth += 1
    if half == 0: k.run(xread(0) + xread(1))
    else:
        for o in xchk(0): k.run(o)
    k.depth -= 1
    def rstd():
        e(f'v_fmamk_f32 v{t}, v{t}, {fl(-1.0/448)}, v{aS}')
        e(f'v_min_f32 v{t}, 0, v{t}'); e(f'v_sub_f32 v{t}, {fl(1e-5)}, v{t}'); e(f'v_rsq_f32 v{t}, v{t}')
    def scale(tl, pk):
        a = aT[tl]
        if pk:
            if tl in aHi:
                for r in (0, 2): e(f'v_pk_add_f32 {vr(a+r,2)}, {vr(a+r,2)}, {vr(aHi[tl]+r,2)} neg_lo:[0,1] neg_hi:[0,1]')
            for r in (0, 2): e(f'v_pk_mul_f32 {vr(a+r,2)}, {vr(a+r,2)}, {vr(t,2)} op_sel_hi:[1,0]')
        else:
            for r in range(4): e(f'v_sub_f32 v{a+r}, v{a+r}, v{aHi[tl]+r}')
            for r in range(4): e(f'v_mul_f32 v{a+r}, v{a+r}, v{t}')
        for m in range(2): e(f'v_cvt_pk_f16_f32 v{a+m}, v{a+2*m}, v{a+2*m+1}')
        k.ds(f'ds_write_b64 v{vcw}, {vr(a,2)} offset:{2048*tl}', 'cw')
    sl = []; o0 = 0 if half else 4
    for kp in range(7):
        lo, hi = vr(XF(kp), 4), vr(XF(kp+7), 4)
        c = lambda a: vr(a, 4) if kp else '0'
        mm = lambda d, a, b, cc: f'v_mfma_f32_16x16x32_bf16 {vr(d,4)}, {a}, {b}, {cc}'
        ms = [] if half else [mm(aS, vr(ones, 4), lo, c(aS)), mm(aG, lo, lo, c(aG)), mm(aS, vr(ones, 4), hi, vr(aS, 4)), mm(aG, hi, hi, vr(aG, 4))]
        ms += [mm(aT[tl], vr(HR[kp%2]+4*tl, 4), lo, c(aT[tl])) for tl in (1, 3, 0, 2)]
        ms += [mm(aHi[tl], vr(HR[kp%2]+4*tl, 4), hi, c(aHi[tl])) if tl in aHi else mm(aT[tl], vr(HR[kp%2]+4*tl, 4), hi, vr(aT[tl], 4)) for tl in (1, 3, 0, 2)]
        if kp == 6: ms = ms[:o0] + [ms[o0 + i] for i in (0, 4, 1, 5, 2, 6, 3, 7)]
        cur = [[rec(lambda m=m: e(m)), [], []] for m in ms]; cur[0][1].append(Op('s', 0, lambda kp=kp: ls(f'a{half}.{kp}')))
        if half == 0: cur[0][0] = rec(lambda: k.wait(lg=f'xr{min(kp+1, 6)}')) + cur[0][0]
        cur[o0][0] = rec(lambda: k.wait(lg=f'H{kp}')) + cur[o0][0]
        if kp < 6:
            for i, o in enumerate(hread(kp + 1)): cur[o0 + i][1].append(o)
            if half == 0 and kp < 5:
                for i, o in enumerate(xread(kp + 2)): cur[2 + i][1].append(o)
            if half:
                a_, b_, c_ = xchk(kp + 1); x0 = OPT['xs0']; cur[x0][2] += a_; cur[x0+1][2] += b_; cur[x0+2][2] += c_
        sl += cur
    if half == 0:
        k.bg_period = OPT['pA']
        ep = rec(lambda: (k.wait(vm='ep'), [e(f'v_readfirstlane_b32 s{sN+i}, v{vSEL+i}') for i in range(4)], [e(f's_not_b32 s{sN+i}, s{sN+i}') for i in range(4)]))
        for i, o in enumerate(ep): sl[68 + i][2].append(o)
        def stats():
            e(f'v_cndmask_b32 v{t}, 0, v{aG}, {sr(sMK,2)}')
            for r in range(1, 4): e(f'v_cndmask_b32 v{t}, v{t}, v{aG+r}, {sr(sMK+2*r,2)}')
            e(f'v_mul_f32 v{aS}, {fl(1.0/448)}, v{aS}')
            for sw in ('16', '32'):
                e(f'v_mov_b32 v{t+1}, v{t}')
                if sw == '16': e(f'v_mul_f32 v{aS}, v{aS}, v{aS}')
                e(f'v_permlane{sw}_swap_b32 v{t}, v{t+1}'); e(f'v_add_f32 v{t}, v{t}, v{t+1}')
            rstd()
        k.slots(sl[:80], nbg=1)
        if OPT['fine'] & 1: stamp(f'A{half}.mf')
        k.bg_period = OPT['pT']
        st = rec(stats)
        for i in range(80, 84): sl[i][2] += st[:2]; st = st[2:]
        k.slots(sl[80:], nbg=0)
        k.run(st)
    else:
        d = ones
        def schk():
            e(f'v_cndmask_b32 v{d+2}, 0, v{d+2}, {sr(sMK,2)}'); e(f'v_cndmask_b32 v{d+3}, 0, v{d+3}, {sr(sMK,2)}')
            e(f'v_max3_u32 v{aG}, v{d}, v{d+1}, v{d+2}'); e(f'v_max_u32 v{aG}, v{aG}, v{d+3}'); e(f'v_cmp_eq_u32 vcc, -1, v{aG}')
        o = rec(lambda: (k.wait(vm='ss'), schk(), retry_site(schk, st_load, 'x2_s')))
        for i, x in zip((24, 24, 24, 25, 25, 26, 27), o): sl[i][2].append(x)
        def sums():
            e(f'v_add_f32 v{d}, v{d}, v{d+2}'); e(f'v_add_f32 v{d+1}, v{d+1}, v{d+3}'); e(f'v_permlane32_swap_b32 v{d}, v{d+1}'); e(f'v_add_f32 v{d}, v{d}, v{d+1}')
            e(f'v_mov_b32 v{d+1}, v{d}'); e(f'v_permlane16_swap_b32 v{d}, v{d+1}'); e(f'v_add_f32 v{aS}, v{d}, v{d+1}')
            e(f'v_mov_b32 v{t}, v{aS}'); e(f'v_permlane32_swap_b32 v{aS}, v{t}')
            e(f'v_mul_f32 v{aS}, {fl(1.0/448)}, v{aS}'); e(f'v_mul_f32 v{aS}, v{aS}, v{aS}'); rstd()
        idx = [31, 32, 33, 34, 35, 35, 39, 40, 41, 42, 43, 43, 47, 47, 48]
        for i, x in zip(idx, rec(sums)): sl[i][2].append(x)
        k.seg(11, 11*64)
        sc = rec(lambda: scale(1, False)); sl[53][2] += sc[:3]; sl[54][2] += sc[3:6]; sl[55][2] += sc[6:]
        k.slots(sl, nbg=1)
        if OPT['fine'] & 1: stamp(f'A{half}.mf')
    for tl in ((3, 0, 2) if half else (1, 3, 0, 2)): scale(tl, True)
    k.wait(lg='cw'); e('s_barrier')
    stamp(f'A{half}.hdft')
    cf = lambda tl, k1_: 72 + 8*tl + 4*k1_
    k.depth += 1
    so = [(0, 0), (2, 0), (0, 1), (2, 1), (1, 0), (3, 0), (1, 1), (3, 1)]
    for tl, k1_ in so:
        for h2 in range(2): k.ds(f'ds_read_b64_tr_b16 {vr(cf(tl,k1_)+2*h2,2)}, v{vtr} offset:{2048*tl + 1024*k1_ + 512*h2}', f'c{tl}{k1_}')
    if half == 0: k.burst(OPT['nS'])
    else: k.bg_flush()
    Dt = lambda tl: 104 + 4*tl
    def smf(tl, k1_):
        k.wait(lg=f'c{tl}{k1_}')
        e(f'v_mfma_f32_16x16x32_f16 {vr(Dt(tl),4)}, {vr(Ff+4*k1_,4)}, {vr(cf(tl,k1_),4)}, {vr(Dt(tl),4) if k1_ else 0}')
    def bfly(pp, u):
        kk1 = f'v{k1}' if pp == 0 else '-1.0'; nk1 = f'-v{k1}' if pp == 0 else '1.0'
        CA, SA, CB, SB = Dt(u) + 2*pp, Dt(u) + 2*pp + 1, Dt(2+u) + 2*pp, Dt(2+u) + 2*pp + 1
        o = 120 + 8*pp + 4*u
        e(f'v_fma_f32 v{o}, {kk1}, v{SB}, v{CA}'); e(f'v_fma_f32 v{o+1}, {kk1}, v{SA}, -v{CB}')
        e(f'v_fma_f32 v{o+2}, {nk1}, v{CA}, v{SB}'); e(f'v_fma_f32 v{o+3}, {kk1}, v{CB}, v{SA}')
        for m in range(2): e(f'v_cvt_pk_f16_f32 v{72+4*pp+2*u+m}, v{o+2*m}, v{o+2*m+1}')
        if half == 0:
            for m in range(2): e(f'v_bfi_b32 v{72+4*pp+2*u+m}, v{vX+2}, s{sN+2*u+m}, v{72+4*pp+2*u+m}')
    for x in so: smf(*x)
    if half == 0: e('s_barrier')
    bfly(0, 0); bfly(1, 0)
    for pp in range(2):
        bfly(pp, 1)
        k.vmem(f'buffer_store_dwordx4 {vr(72+4*pp,4)}, v{vu}, {sr(sWS,4)}, s{sT+4+pp} offen sc1', 'Ust')
    k.depth -= 1
    stamp(f'A{half}.ust')

def US(half): return 16 if half == 0 else 256
def TOFF(half): return 32 * 912 if half == 0 else 28672
def rowaddr(half, dst, j, t):
    if half == 0: e(f'v_mul_u32_u24 v{dst}, 912, v{j}')
    else:
        e(f'v_lshrrev_b32 v{t}, 4, v{j}'); e(f'v_mul_u32_u24 v{t}, 14336, v{t}'); e(f'v_and_b32 v{dst}, 15, v{j}'); e(f'v_lshl_add_u32 v{dst}, v{dst}, 4, v{t}')
def phB(half):
    us = US(half); RAW = lambda kap: 16 + 16*kap; ACC = lambda u, pq: 80 + 32*pq + 16*u; MF = 144
    vu, vd, vmP, vmQ = vA, vA + 1, vA + 2, vA + 3
    vu2, vm, tc, vbn = (vSa, vSb, vT1, vT1 + 1) if half else (vX, vX + 1, vX + 2, vX + 3)
    t = 88; t0 = k.clk
    save = k.refill
    if half == 0: k.burst(4); k.seg(OPT['nK'], OPT['pK']*OPT['nK'], 300)
    def tile0():
        e(f's_cmp_ge_u32 s{sW}, 2'); e(f's_cbranch_scc1 L_t0_{half}')
        bs = 128 if half == 0 else 2048
        if half == 0:
            e(f'v_and_b32 v{t}, 15, v{vL}'); e(f'v_lshl_add_u32 v{t}, s{sW}, 4, v{t}'); e(f'v_mul_u32_u24 v{t}, 912, v{t}')
            e(f'v_and_b32 v{t+1}, 48, v{vL}'); e(f'v_add_u32 v{t}, v{t}, v{t+1}')
        else: e(f's_mul_i32 s{sT}, s{sW}, 14336'); e(f'v_add_u32 v{t}, s{sT}, v{vL16}')
        e(f's_mul_i32 s{sT}, s{sG}, {bs}')
        for b in range(7):
            if b: e(f's_add_u32 s{sT}, s{sT}, {bs}'); e(f's_sub_u32 s{sT+1}, s{sT}, {7*bs}'); e(f's_min_u32 s{sT}, s{sT}, s{sT+1}')
            e(f'v_add_u32 v{t+1}, s{sT}, v{t}')
            for h in range(2): e(f'ds_write_b128 v{t+1}, {vr(XF(2*b+h),4)} offset:{L_X + h*bs//2}')
        e(f'L_t0_{half}:')
    k.call(tile0); ls(f'b{half}.t0')
    if half == 0: late_setup(); ws.cs_on = 4; ws.dmax = 39
    e(f'v_bfe_u32 v{t}, v{vL}, 2, 1'); e(f'v_bfe_u32 v{t+1}, v{vL}, 3, 2'); e(f'v_and_b32 v{t+2}, 3, v{vL}')
    e(f'v_lshl_add_u32 v{t+1}, v{t}, 2, v{t+1}'); e(f'v_lshl_add_u32 v{t+1}, v{t+1}, 2, v{t+2}'); e(f's_mul_i32 s{sT+2}, s{sW}, 448')
    e(f'v_lshl_add_u32 v{t+1}, v{t+1}, 4, s{sT+2}'); e(f'v_subrev_u32 v{t}, 1792, v{t+1}'); e(f'v_min_u32 v{t+1}, v{t}, v{t+1}')
    e(f'v_lshrrev_b32 v{t+2}, 5, v{vL}'); e(f'v_mul_u32_u24 v{t}, 1792, v{t+2}'); e(f'v_add_u32 v{vu}, v{t}, v{t+1}'); e(f'v_add_u32 v{vu2}, 7168, v{vu}')
    e(f's_mul_i32 s{sT}, s{sP}, 57344'); e(f's_add_u32 s{sT}, s{sT}, {WS_U2 if half else WS_U1}')
    for i in range(4): e(f's_add_u32 s{sT+1}, s{sG}, {i}'); e(f's_and_b32 s{sT+1}, s{sT+1}, 3'); e(f's_mul_i32 s{sT+1}, s{sT+1}, 14336'); e(f's_add_u32 s{sUO+i}, s{sT}, s{sT+1}')
    def adr():
        j, a = t + 3, t + 4
        e(f'v_and_b32 v{j}, 31, v{vL}'); e(f's_mul_i32 s{sT}, s{sW}, 7'); e(f'v_lshl_add_u32 v{a}, v{t+2}, 2, s{sT}')
        rowaddr(half, vd, j, t); e(f'v_mul_u32_u24 v{t+1}, {us}, v{a}'); e(f'v_add_u32 v{vd}, v{vd}, v{t+1}')
        e(f'v_sub_u32 v{a}, {52*us}, v{t+1}')
        e(f's_cmp_eq_u32 s{sP}, 0\ns_cselect_b32 s{sT}, 32, 63\ns_cselect_b32 s{sT+1}, 31, 63\ns_cselect_b32 s{sT+2}, 63, 31')
        e(f'v_sub_u32 v{t+5}, s{sT}, v{j}'); e(f'v_and_b32 v{t+5}, s{sT+1}, v{t+5}'); rowaddr(half, vmP, t + 5, t); e(f'v_add_u32 v{vmP}, v{vmP}, v{a}')
        e(f'v_sub_u32 v{t+5}, s{sT+2}, v{j}'); rowaddr(half, vmQ, t + 5, t); e(f'v_add_u32 v{vmQ}, v{vmQ}, v{a}')
        e(f's_cmp_eq_u32 s{sW}, 0\ns_cselect_b32 s{sMK}, 0, -1'); e(f's_mov_b32 s{sMK+1}, -1')
        e(f'v_add_u32 v{vm}, {L_M}, v{vL16}')
        e(f's_mul_i32 s{sT}, s{sW}, {7*us}'); e(f'v_mul_u32_u24 v{t+2}, {3*us}, v{t+2}'); e(f'v_subrev_u32 v{vbn}, s{sT}, v{vd}'); e(f'v_sub_u32 v{vbn}, v{vbn}, v{t+2}')
    if half == 0:
        adr(); gen_M(96); e(f's_mov_b32 s{sMK+2}, 0xfffefffe')
        warm(1, 5)
        k.burst(k.quota)
    else:
        def ichk():
            e(f's_mul_i32 s{sT}, s{sW}, 7168'); e(f'v_add_u32 v{t}, s{sT}, v{vL16}')
            for i in range(7): k.ds(f'ds_read_b32 v{t+2+i}, v{t} offset:{L_X + 28672 + 1024*i}', 'ic')
            k.wait(lg='all')
            for i in range(3): e(f'v_max3_u32 v{t+2}, v{t+2}, v{t+3+2*i}, v{t+4+2*i}')
            e(f'v_cmp_eq_u32 vcc, -1, v{t+2}')
    k.refill = None; k.bg_flush()
    if OPT['uack']: k.wait(vm='Ust')
    stamp(f'B{half}.ack')
    def uloads(first, last=4):
        for kap in range(first, last):
            for jj in range(4):
                k.vmem(f'buffer_load_dwordx4 {vr(RAW(kap)+4*jj,4)}, v{vu if jj < 2 else vu2}, {sr(sWS,4)}, s{sUO+kap} offen offset:{3584*(jj%2)} sc1', f'U{kap}')
    ld = rec(lambda: uloads(0))
    n0 = OPT['n0']
    if half == 0:
        fill = []
        while ws.nd < min(ws.dmax, ws.ni): fill += ws.drain_ops()
        for o in ld[:n0]:
            k.run([o] + fill[:4]); fill = fill[4:]; ws.cs_flush(2, 1)
        k.run(fill)
        k.wait(vm='img1', lg='all'); e('s_barrier')
    else:
        k.run(ld[:4])
        k.run(k.weave(ld[4:n0], rec(lambda: (adr(), k.wait(vm='img1'), ichk())), 56))
        retry_site(ichk, lambda: k.run(img_ops(1, 1)), 'img')
        e('s_barrier')
    mread = lambda kap, pq: k.ds(f'ds_read_b128 {vr(MF+4*pq,4)}, v{vm} offset:{4096*pq + 1024*kap}', f'M{pq}')
    mread(0, 0); mread(0, 1)
    if half == 0: ws.cs_flush(); ws.cs_on = 0; ws.lag = 99
    rest = ld[n0:]
    XU = lambda pq, b, mir: RAW(2*pq + (b >> 1)) + 8*(b & 1) + 4*mir
    def xread(pq, b):
        k.ds(f'ds_read_b128 {vr(XU(pq,b,0),4)}, v{vd} offset:{L_X + pq*TOFF(half) + b*us}', f'xd{pq}{b}')
        k.ds(f'ds_read_b128 {vr(XU(pq,b,1),4)}, v{vmQ if pq else vmP} offset:{L_X + (3-b)*us}', f'xm{pq}{b}')
    def uchk(kap):
        R = RAW(kap)
        if half: e(f'v_max3_u32 v{tc}, v{R}, v{R+4}, v{R+8}'); e(f'v_max_u32 v{tc}, v{tc}, v{R+12}'); e(f'v_cmp_eq_u32 vcc, -1, v{tc}')
        else:
            e(f'v_xor_b32 v{tc}, s{sN}, v{R}')
            for i in range(1, 16): e(f'v_bitop3_b32 v{tc}, v{tc}, v{R+i}, s{sN + i%4} bitop3:0xf6')
            e(f'v_and_b32 v{tc}, 0x10001, v{tc}'); e(f'v_cmp_ne_u32 vcc, 0, v{tc}')
    def ureload(kap):
        if half == 0 or not OPT['usel']: return uloads(kap)
        uloads(kap, kap + 1)
        if kap < 3: e('s_waitcnt vmcnt(4)')
        for k2 in range(kap + 1, 4):
            l = k.lab('have'); uchk(k2); e(f's_cbranch_vccz {l}'); uloads(k2, k2 + 1); e(f'{l}:')
    for kap in range(4):
        R = RAW(kap)
        ls(f'b{half}.w{kap}'); k.wait(vm=f'U{kap}'); ls(f'b{half}.u{kap}')
        if kap == 0:
            k.run(rest)
            if half == 0: k.refill = save; k.seg(999, 999*OPT['pU'], 300)
        uchk(kap); retry_site(lambda kap=kap: uchk(kap), lambda kap=kap: ureload(kap), f'U{half}_{kap}')
        if kap == 3: stamp(f'B{half}.Uin')
        SP = R if half else 208 + 16*(kap & 1)
        def mf(u, pq):
            A = ACC(u, pq); e(f'v_mfma_f32_32x32x16_f16 {vr(A,16)}, {vr(SP+4*(2*u+pq),4)}, {vr(MF+4*pq,4)}, {vr(A,16) if kap else 0}')
        if half:
            sw = lambda i, jx: e(f'v_swap_b32 v{R+4*i+jx}, v{R+4*jx+i}')
            sw(0, 1); sw(0, 2); sw(0, 3); sw(1, 2); k.wait(lg='M0')
            mf(0, 0); sw(2, 3); sw(1, 3); k.wait(lg='M1'); mf(1, 0)
            if kap < 3: mread(kap + 1, 0)
            mf(0, 1); mf(1, 1)
        else:
            assert ws.nd <= 39
            mv = lambda d: [e(f'v_and_b32 v{SP+4*d+jj}, s{sMK+2}, v{R+4*jj+d}') for jj in range(4)]
            mv(0); mv(2); k.wait(lg='M0'); mf(0, 0); mv(1); mf(1, 0)
            if kap < 3: mread(kap + 1, 0)
            mv(3); k.wait(lg='M1'); mf(0, 1); mf(1, 1)
        if kap < 3: mread(kap + 1, 1)
        xread(kap >> 1, 2*(kap & 1)); xread(kap >> 1, 2*(kap & 1) + 1)
    if half == 0: ws.lag = OPT['lag']; ws.dmax = 43; k.bg_period = OPT['pE']
    T = MF
    sel = lambda hi: f's{sHI if hi else sLO}'
    for pq in range(2):
        Y = lambda b, n: ACC(n & 1, pq) + 4*b + (n >> 1)
        e(f'v_mov_b32 v{vu}, v{Y(0,0)}'); e(f'v_cndmask_b32 v{Y(0,0)}, 0, v{Y(0,0)}, {sr(sMK,2)}')
        for b in range(4):
            if b == 3: k.depth += 1; e('s_mov_b32 exec_hi, 0')
            xd, xm = XU(pq, b, 0), XU(pq, b, 1); ls(f'e{half}.{pq}{b}')
            k.wait(lg=f'xm{pq}{b}')
            for n in range(8): e(f'v_dot2_f32_bf16 v{T+n}, v{xd + (n >> 1)}, {sel(n & 1)}, v{Y(b,n)}')
            e(f'v_dot2_f32_bf16 v{Y(b,0)}, v{xm}, {sel(0)}, v{Y(b+1,0) if b < 3 else tc}')
            for m in range(4): e(f'v_cvt_pk_bf16_f32 v{xd+m}, v{T+2*m}, v{T+2*m+1}')
            k.ds(f'ds_write_b128 v{vd}, {vr(xd,4)} offset:{L_X + pq*TOFF(half) + b*us}', 'xw')
            for m in range(1, 8): e(f'v_dot2c_f32_bf16 v{Y(b,8-m)}, {sel(m & 1)}, v{xm + (m >> 1)}')
            if b == 0: e(f'v_permlane32_swap_b32 v{vu}, v{tc}')
            for m in range(4): e(f'v_cvt_pk_bf16_f32 v{xm+m}, v{Y(b,(8-2*m)%8)}, v{Y(b,7-2*m)}')
            k.ds(f'ds_write_b128 v{vmQ if pq else vmP}, {vr(xm,4)} offset:{L_X + (3-b)*us}', 'xw')
        e('s_mov_b32 exec_hi, -1'); k.depth -= 1

def ffn(half):
    us = US(half); toff = TOFF(half); ls(f'e{half}.x')
    vb, vs, vst, vh = vA, vA + 1, vA + 2, vA + 3
    BR = lambda i: B[5] + 4*(i % 3); MFR = B[5] + 12; t = B[5] + 14
    vres = B[4]
    assert not OPT['rot']
    e(f'v_mov_b32 v{vb}, v{vT1 + 1 if half else vX + 3}')
    def adr0():
        e(f'v_lshrrev_b32 v{t}, 3, v{vL}'); e(f's_lshl_b32 s{sT}, s{sW}, 3'); e(f'v_add_u32 v{t}, s{sT}, v{t}'); rowaddr(half, vs, t, t + 1)
        e(f'v_lshlrev_b32 v{vh}, 3, v{t}')
        e(f'v_and_b32 v{t}, 7, v{vL}'); e(f'v_lshl_add_u32 v{vs}, v{t}, {us.bit_length()-1}, v{vs}')
    adr0()
    def more():
        e(f's_mul_i32 s{sT+1}, s{sG}, {8*us}')
        if half == 0:
            e(f'v_and_b32 v{t}, 7, v{vL}'); e(f'v_add_u32 v{t}, s{sT}, v{t}'); rowaddr(half, vres, t, t + 1)
            e(f'v_lshrrev_b32 v{t}, 3, v{vL}'); e(f'v_lshl_add_u32 v{vres}, v{t}, 4, v{vres}'); e(f'v_add_u32 v{vres}, s{sT+1}, v{vres}')
        else: e(f'v_add_u32 v{vres}, s{sT+1}, v{vs}')
        e(f'v_and_b32 v{vst}, 31, v{vL}'); e(f'v_lshlrev_b32 v{vst}, 3, v{vst}')
        e(f's_mov_b32 s{sMK}, -1'); e(f's_mov_b32 s{sMK+1}, 0'); e(f's_mov_b32 s{sMK+2}, 0x80008000')
        if half == 0:
            def ep():
                e(f's_lshl_b32 s{sT+1}, s2, 2'); e(f's_add_u32 s{sT+1}, s{sT+1}, s{sW}'); e(f's_cmp_eq_u32 s{sT+1}, 128'); e('s_cbranch_scc1 L_epoch'); e('L_epoch_ret:')
                k.begin_tail(); e('L_epoch:')
                for i in range(4): e(f'v_mov_b32 v{B[7]+i}, s{sN+i}')
                e(f's_mov_b32 s{sT+1}, {WS_EP}'); e('s_mov_b64 exec, 1'); e(f'buffer_store_dwordx4 {vr(B[7],4)}, off, {sr(sWS,4)}, s{sT+1} sc1'); e('s_mov_b64 exec, -1'); e('s_branch L_epoch_ret')
                k.end_tail()
            k.call(ep, 's', 32)
    vh1 = vT1
    if half == 0: ws.force(-1); ws.cs_on = 2; k.seg(999, 999*OPT['perG'])
    k.wait(lg='xw'); e('s_barrier')
    stamp(f'B{half}.end')
    if stop(f'B{half}', 61440): return True
    hvo = lambda T: vh1 if T else vL16
    ACC1 = lambda T, u: B[2*T + u]
    def bread(i):
        q = i % 28
        def f():
            k.ds(f'ds_read_b128 {vr(BR(i),4)}, v{vb} offset:{L_X + (i//28)*toff + 2*q*us}', f'B{i}')
        return Op('ds', 4, f)
    k.depth += 1; bread(0)(); bread(1)(); k.depth -= 1
    def stats_ops(T):
        SB = lambda j: B[6] + 4*(j % 2); s1, s2, lo, hi = B[6] + 8, B[6] + 9, B[6] + 10, B[6] + 12
        rd = lambda j: k.ds(f'ds_read_b128 {vr(SB(j),4)}, v{vs} offset:{L_X + T*toff + 8*j*us}', f'S{T}{j}')
        ops = rec(lambda: (rd(0), rd(1))) + [None, None]
        def body():
            for j in range(1 if OPT['nostats'] else 7):
                k.wait(lg=f'S{T}{j}')
                for m in range(4):
                    l_, h_ = lo + m % 2, hi + m % 2
                    e(f'v_lshlrev_b32 v{l_}, 16, v{SB(j)+m}'); e(f'v_and_b32 v{h_}, s{sFF}, v{SB(j)+m}')
                    if m == 3 and j + 2 < 7: rd(j + 2)
                    if j == 0 and m == 0: e(f'v_add_f32 v{s1}, v{l_}, v{h_}'); e(f'v_mul_f32 v{s2}, v{l_}, v{l_}'); e(f'v_fmac_f32 v{s2}, v{h_}, v{h_}')
                    else: e(f'v_add_f32 v{s1}, v{s1}, v{l_}'); e(f'v_fmac_f32 v{s2}, v{l_}, v{l_}'); e(f'v_add_f32 v{s1}, v{s1}, v{h_}'); e(f'v_fmac_f32 v{s2}, v{h_}, v{h_}')
        ops += rec(body)
        for c in ('quad_perm:[1,0,3,2]', 'quad_perm:[2,3,0,1]', 'row_half_mirror'):
            ops += rec(lambda: [e('s_nop 0')] + [e(f'v_add_f32_dpp v{r}, v{r}, v{r} {c} row_mask:0xf bank_mask:0xf') for r in (s1, s2)])
        ops += rec(lambda: (e(f'v_mul_f32 v{s1}, {fl(-1.0/448)}, v{s1}'), e(f'v_mul_f32 v{lo}, v{s1}, v{s1}'), e(f'v_fmamk_f32 v{s2}, v{s2}, {fl(-1.0/448)}, v{lo}'),
                e(f'v_min_f32 v{s2}, 0, v{s2}'), e(f'v_sub_f32 v{s2}, {fl(1e-5)}, v{s2}'), e(f'v_rsq_f32 v{s2}, v{s2}'))) + [None]
        ops += rec(lambda: k.ds(f'ds_write_b64 v{vh}, {vr(s1,2)} offset:{L_ST + 256*T}', 'stw')) + [None, None]
        ops += rec(lambda: (k.wait(lg='stw'), e('s_barrier'), k.ds(f'ds_read_b32 v{t}, v{vst} offset:{L_ST + 256*T}', 'm'))) + [None, None, None]
        ops += rec(lambda: (k.wait(lg='m'), e(f'v_cndmask_b32 v{t}, 0, v{t}, {sr(sMK,2)}'), e(f'v_cvt_pk_bf16_f32 v{MFR}, v{t}, v{t}'),
                e(f'v_and_b32 v{t+1}, s{sFF}, v{MFR}'), e(f'v_sub_f32 v{t}, v{t}, v{t+1}'), e(f'v_cvt_pk_bf16_f32 v{MFR+1}, v{t}, 0')))
        return ops
    OWN = [B[4], B[6]]
    def bump(c): k.bg_next = max(k.bg_next, k.clk - 40) + c
    def ownfix(T):
        if half == 0:
            for i in range(4): e(f'v_xor_b32 v{OWN[T]+4*i+3}, s{sMK+2}, v{OWN[T]+4*i+3}')
    def epi1(T):
        ng = '-' if half else ''
        for u in range(2):
            for be in range(2):
                d = OWN[T] + 8*u + 4*be; a = ACC1(T, u) + 8*be
                for m in range(4):
                    ng = '-' if (half or m == 3) else ''; e(f'v_cvt_pk_bf16_f32 v{d+m}, {ng}v{a+2*m}, {ng}v{a+2*m+1}')
                for m in range(4): e(f'v_pk_max_u16 v{d+m}, v{d+m}, s{sMK+2}' if (half or m == 3) else f'v_pk_max_i16 v{d+m}, v{d+m}, 0')
                if OPT['noh'] & (4 << T): continue
                k.call(lambda d=d, u=u, be=be: (k.vmem(f'buffer_store_dwordx4 {vr(d,4)}, v{hvo(T)}, {sr(sWS,4)}, s{sHS} offen offset:{1024*(2*u+be)} sc1', 'hst'), bump(96)), 'vm', 24)
    HB = {(0, 0): B[4], (0, 1): B[0], (0, 2): B[1], (0, 3): B[7], (0, 4): B[4], (0, 5): B[0], (0, 6): B[1],
          (1, 0): B[6], (1, 1): B[7], (1, 2): B[4], (1, 3): B[6], (1, 4): B[7], (1, 5): B[4], (1, 6): B[6]}
    inflight = []
    def hload(T, jp, i, track=True):
        def f():
            if OPT['noh'] & 1: return
            k.vmem(f'buffer_load_dwordx4 {vr(HB[T,jp]+4*i,4)}, v{hvo(T)}, {sr(sWS,4)}, s{sHS+jp} offen offset:{1024*i} sc1', f'h{T}{jp}{i}')
            if track: inflight.append((T, jp, i)); bump(OPT['perH'] if len(inflight) > 12 else 60)
        return Op('vm', 4, f)
    prevuse = {(0, 4): (0, 0), (0, 5): (0, 1), (0, 6): (0, 2), (1, 1): (0, 3), (1, 2): (0, 4), (1, 3): (1, 0), (1, 4): (1, 1), (1, 5): (1, 2), (1, 6): (1, 3)}
    order = [(0, 1), (0, 2), (0, 3), (0, 4), (0, 5), (1, 1), (0, 6)] + [(1, j) for j in range(2, 7)] if OPT['hord'] else [(T, j) for T in range(2) for j in range(1, 7)]
    hq = []
    for T, jp in order:
        for i in range(4):
            rdy = OPT['hq_slot' if half else 'hq0'] if T == 0 else 116 + OPT['t1_slot']
            if (T, jp) in prevuse: pT, pj = prevuse[T, jp]; rdy = max(rdy, 116 + 56*pT + 8*pj + 2*i + 1)
            hq.append((rdy, 116 + 56*T + 8*jp - OPT['hdl'] - 2*(3 - i), T, jp, i))
    def hpace(slot):
        def f():
            if not hq or OPT['noh'] & 1: return
            due = min(x[1] for x in hq[:8]) <= slot
            wfirst = half == 0 and ws.sent < 56 and ws.use(ws.sent) - OPT['lead'] <= hq[0][1]
            if hq[0][0] <= slot and ((k.clk >= k.bg_next and not wfirst) or due):
                x = hq.pop(0); hload(*x[2:])()
                if OPT['verbose'] > 2: print(f'; h{x[2:]} at slot {slot} use {116 + 56*x[2] + 8*x[3]}', file=sys.stderr)
        return Op('vm', 0, f)
    def g1_slots(T):
        sl = []
        for n in range(28):
            i = 28*T + n
            for u in range(2):
                A = ACC1(T, u)
                def mf(A=A, n=n, u=u, i=i):
                    k.wait(lg=f'B{i}')
                    if half == 0 and T == 0: assert ws.done > n; k.wait(lg=f'tr{n}')
                    e(f'v_mfma_f32_32x32x16_bf16 {vr(A,16)}, {w1f(n,u)}, {vr(BR(i),4)}, {vr(A,16) if n else 0}')
                pre = [bread(i + 2)] if (u == 0 and i + 2 < 56) else []
                if u == 0 and n % 7 == 0: pre.append(Op('s', 0, lambda n=n: ls(f'c{half}.{T}{n//7}')))
                if half == 0 and u == 1: pre.append(Op('ds', 0, lambda n=n: ws.force(58*T + 2*n + 1)))
                sl.append([[Op('mfma', 8, mf)], pre, []])
        return sl
    def corr(T): return [[rec(lambda: e(f'v_mfma_f32_32x32x8_bf16 {vr(ACC1(T,u),16)}, {vr(vCS+2*u,2)}, {vr(MFR,2)}, {vr(ACC1(T,u),16)}')), [], []] for u in range(2)]
    st0 = stats_ops(0); st1 = stats_ops(1)
    sl = g1_slots(0)
    res = [rec(lambda: k.ds(f'ds_read_b128 {vr(vR+4*T,4)}, v{vres} offset:{L_X + T*toff}', 'res')) for T in range(2)]
    k.slots(sl, st0[:1] + rec(more) + st0[1:2] + st0[4:18] + res[0] + st0[18:43] + res[1] + st0[43:], 54)
    if half == 0:
        k.depth += 1; ws.cs_on = 0; k.bg_flush(); log('cs left'); ws.cs_flush(); assert ws.nc == 56 and ws.nd <= 43; cs_finish(); ws.dmax = 45; k.depth -= 1
    log('g1(0) done')
    if OPT['fine'] & 2: stamp(f'C{half}.g10')
    sl = corr(0) + g1_slots(1)
    for n in range(len(sl)): sl[n][1].append(hpace(56 + n))
    q = st1[:OPT['e0']] + rec(lambda: epi1(0)) + st1[OPT['e0']:OPT['e0']+12] + rec(lambda: ownfix(0)) + st1[OPT['e0']+12:] + rec(lambda: e(f'v_add_u32 v{vh1}, {7*16384}, v{vL16}'))
    if half == 0: sl[OPT['hq0'] - 57][1] += rec(lambda: cnt_load(vT1 + 1))
    k.slots(sl, q, 57)
    k.slots(corr(1))
    stamp(f'C{half}.g1')
    k.depth += 1; epi1(1); k.depth -= 1
    if OPT['fine'] & 4: stamp(f'C{half}.epi'); k.wait(vm='h023'); stamp(f'C{half}.h02'); k.wait(vm='all'); stamp(f'C{half}.ack')
    if stop(f'C{half}'): return True
    ACC2 = lambda T, v: (B[2 + v] if T == 0 else B[v])
    ORD = [[(kk, v) for kk in range(28) for v in range(2)] for T in range(2)]
    ORD[1] = ORD[1][:48] + [(kk, v) for v in range(2) for kk in range(24, 28)]
    CUR = [0]
    AR = lambda kk, v: B[5] + 4*(ORD[CUR[0]].index((kk, v)) % 4)
    def aread(kk, v, h2):
        so = ((28 + kk) % NSLOT) * 2048
        def f():
            assert ws.sent > 28 + kk; k.wait(vm=f'w{28+kk}')
            k.ds(f'ds_read_b64_tr_b16 {vr(AR(kk,v)+2*h2,2)}, v{vT2+v} offset:{so + 1024*h2}', f'A{kk}{v}')
        return Op('ds', 4, f)
    tc = vb
    def hcheck(T, jp):
        R = HB[T, jp]
        def part(i):
            r = R + 4*i
            e(f'v_xor_b32 v{r+3}, s{sMK+2}, v{r+3}')
            e(f'v_or3_b32 v{tc}, v{r}, v{r+1}, v{tc}' if i else f'v_or_b32 v{tc}, v{r}, v{r+1}'); e(f'v_or3_b32 v{tc}, v{r+2}, v{r+3}, v{tc}')
        def fin(): e(f'v_and_b32 v{tc}, s{sMK+2}, v{tc}'); e(f'v_cmp_ne_u32 vcc, 0, v{tc}')
        def chk():
            if half == 0: [part(i) for i in range(4)]; fin()
            else: e(f'v_bitop3_b32 v{tc}, v{R}, v{R+4}, v{R+8} bitop3:0x80'); e(f'v_and_b32 v{tc}, v{tc}, v{R+12}'); e(f'v_cmp_le_i32 vcc, 0, v{tc}')
        def br():
            todo = [x for x in inflight if (x[:2] == (T, jp) if OPT['hsel'] else x[:2] >= (T, jp))]
            retry_site(chk, lambda: [hload(*x, track=False)() for x in todo], f'h{half}_{T}{jp}')
        def w(i):
            assert (T, jp, i) in inflight, (T, jp, i); k.wait(vm=f'h{T}{jp}{i}')
        o = [[] for _ in range(8)]
        if half: o[6] = [Op('v', 16, lambda: (w(3), chk()))]
        else:
            for i in range(4): o[2 + i] = [Op('v', 16, lambda i=i: (w(i), part(i)))]
            o[6] = [Op('v', 8, fin)]
        o[7] = [Op('s', 20, br)]
        return o
    RS = 1088; vrr, vo, vrwb = vs, vh, vT1 + 1
    def g2addr():
        tau, cc = B[5], B[5] + 1
        if half == 0: e(f'v_and_b32 v{tau}, 7, v{vL}'); e(f'v_lshrrev_b32 v{cc}, 3, v{vL}')
        else: e(f'v_lshrrev_b32 v{tau}, 3, v{vL}'); e(f'v_and_b32 v{cc}, 7, v{vL}')
        e(f's_lshl_b32 s{sT}, s{sW}, 3'); e(f'v_add_u32 v{tau}, s{sT}, v{tau}')
        e(f'v_mul_u32_u24 v{vrr}, {RS}, v{cc}'); e(f'v_lshl_add_u32 v{vrr}, v{tau}, 4, v{vrr}')
        e(f'v_lshlrev_b32 v{vst}, 3, v{tau}')
        if half == 0:
            rowaddr(1, vo, tau, cc + 1); e(f'v_lshl_add_u32 v{vo}, v{cc}, 8, v{vo}')
            for T in range(2):
                e(f's_mul_i32 s{sMK+4+T}, s{sRB if T else sP}, 28672'); e(f's_lshl_b32 s{sT}, s{sG}, 11'); e(f's_add_u32 s{sMK+4+T}, s{sMK+4+T}, s{sT}'); e(f's_add_u32 s{sMK+4+T}, s{sMK+4+T}, {WS_X2}')
        else:
            e(f'v_mul_u32_u24 v{vo}, 57344, v{tau}'); e(f'v_lshl_add_u32 v{vo}, v{cc}, 4, v{vo}')
            for T in range(2):
                e(f's_mul_i32 s{sMK+4+T}, s{sRB if T else sP}, 896'); e(f's_lshl_b32 s{sT}, s{sG}, 7'); e(f's_add_u32 s{sMK+4+T}, s{sMK+4+T}, s{sT}')
        e(f's_mul_i32 s{sT}, s{sW}, {8*RS}'); e(f'v_add_u32 v{vrwb}, s{sT}, v{vL16}')
        e('s_barrier')
    def g2more():
        if half == 0:
            e(f's_lshr_b32 s{sT}, s{sW}, 1'); e(f's_lshl_b32 s{sT}, s{sT}, 5'); e(f's_add_u32 s{sT}, s{sT}, s{sP}'); e(f's_lshl_b32 s{sT}, s{sT}, 1')
            e(f's_and_b32 s{sT+1}, s{sW}, 1'); e(f's_add_u32 s{sT}, s{sT}, s{sT+1}'); e(f's_lshl_b32 s49, s{sT}, 10'); e(f's_add_u32 s49, s49, {WS_SS}')
            e(f's_mul_i32 s{sT}, s{sT}, 14336'); e(f's_add_u32 s{sT}, s{sT}, {WS_X2}'); e(f's_lshl_b32 s{sT+1}, s{sG}, 11')
            for b in range(7):
                if b: e(f's_add_u32 s{sT+1}, s{sT+1}, 2048'); e(f's_sub_u32 s{sT+2}, s{sT+1}, 14336'); e(f's_min_u32 s{sT+1}, s{sT+1}, s{sT+2}')
                e(f's_add_u32 s{SX[b]}, s{sT}, s{sT+1}')
            for T in range(2):
                e(f's_lshl_b32 s{sT}, s{sRB if T else sP}, 11'); e(f's_lshr_b32 s{sT+1}, s{sW}, 1'); e(f's_lshl_b32 s{sT+1}, s{sT+1}, 10'); e(f's_add_u32 s{sT}, s{sT}, s{sT+1}')
                e(f's_and_b32 s{sT+1}, s{sW}, 1'); e(f's_lshl_b32 s{sT+1}, s{sT+1}, 7'); e(f's_add_u32 s{sT}, s{sT}, s{sT+1}')
                e(f's_lshr_b32 s{sT+1}, s{sG}, 1'); e(f's_lshl_b32 s{sT+1}, s{sT+1}, 8'); e(f's_add_u32 s{sT}, s{sT}, s{sT+1}')
                e(f's_and_b32 s{sT+1}, s{sG}, 1'); e(f's_lshl_b32 s{sT+1}, s{sT+1}, 3'); e(f's_add_u32 s{sT}, s{sT}, s{sT+1}'); e(f's_add_u32 s{sMK+6+T}, s{sT}, {WS_SS}')
    rr = vSb
    rwr = lambda T, c: k.ds(f'ds_write_b128 v{vrwb}, {vr(ACC2(T, c >> 2) + 4*(c & 3), 4)} offset:{L_RED + RS*c}', 'rw')
    rrd = lambda T: k.ds(f'ds_read_b32 v{rr}, v{vst} offset:{L_ST + 4 + 256*T}', 'rw')
    def red_final(T, PB, pk):
        x = vR + 4*T; ops = []
        for pw in range(4):
            ops += rec(lambda: [k.ds(f'ds_read_b128 {vr(PB+8*pw+4*h,4)}, v{vrr} offset:{L_RED + 8*RS*pw + 512*h}', f'p{pw}') for h in range(2)]) + [None]
        XT = B[7] if pk else None
        def body():
            if pk:
                k.wait(lg='p1')
                for n in range(0, 8, 2): e(f'v_pk_add_f32 {vr(PB+n,2)}, {vr(PB+n,2)}, {vr(PB+8+n,2)}')
                k.wait(lg='p3')
                for n in range(0, 8, 2): e(f'v_pk_add_f32 {vr(PB+16+n,2)}, {vr(PB+16+n,2)}, {vr(PB+24+n,2)}')
                for n in range(0, 8, 2): e(f'v_pk_add_f32 {vr(PB+n,2)}, {vr(PB+n,2)}, {vr(PB+16+n,2)}')
                ng = ' neg_lo:[1,0,0] neg_hi:[1,0,0]' if half else ''
                for n in range(0, 8, 2): e(f'v_pk_fma_f32 {vr(PB+n,2)}, {vr(PB+n,2)}, {vr(rr-1,2)}, {vr(XT+n,2)} op_sel:[0,1,0]{ng}')
            else:
                for pw in range(1, 4):
                    k.wait(lg=f'p{pw}')
                    for n in range(8): e(f'v_add_f32 v{PB+n}, v{PB+n}, v{PB+8*pw+n}')
                for n in range(8): e(f'v_and_b32 v{PB+8+n}, s{sFF}, v{x + n//2}' if n & 1 else f'v_lshlrev_b32 v{PB+8+n}, 16, v{x + n//2}')
                for n in range(8): e(f'v_fma_f32 v{PB+n}, {"-" if half else ""}v{rr}, v{PB+n}, v{PB+8+n}')
            for m in range(4): e(f'v_cvt_pk_bf16_f32 v{x+m}, v{PB+2*m}, v{PB+2*m+1}')
            if half == 0:
                k.vmem(f'buffer_store_dwordx4 {vr(x,4)}, v{vo}, {sr(sWS,4)}, s{sMK+4+T} offen sc1', 'xst')
                a, b, c = PB + 16, PB + 17, PB + 18
                e(f'v_add_f32 v{a}, v{PB}, v{PB+1}'); e(f'v_mul_f32 v{b}, v{PB}, v{PB}'); e(f'v_fmac_f32 v{b}, v{PB+1}, v{PB+1}')
                for n in range(2, 8): e(f'v_add_f32 v{a}, v{a}, v{PB+n}'); e(f'v_fmac_f32 v{b}, v{PB+n}, v{PB+n}')
                e(f'v_and_b32 v{c}, 0x70, v{vL16}'); e(f'v_lshrrev_b32 v{c+1}, 5, v{vL}')
                e(f'v_permlane32_swap_b32 v{a}, v{b}'); e(f'v_add_f32 v{a}, v{a}, v{b}'); e(f'v_mov_b32 v{b}, v{a}'); e(f'v_lshl_add_u32 v{c}, v{c+1}, 2, v{c}')
                e(f'v_permlane16_swap_b32 v{a}, v{b}'); e(f'v_add_f32 v{a}, v{a}, v{b}')
                e(f'v_add_f32_dpp v{a}, v{a}, v{a} row_ror:8 row_mask:0xf bank_mask:0xf')
                k.call(lambda: (e('s_mov_b32 exec_lo, 0xff\ns_mov_b32 exec_hi, 0xff'), k.vmem(f'buffer_store_dword v{a}, v{c}, {sr(sWS,4)}, s{sMK+6+T} offen sc1', 'xst'), e('s_mov_b64 exec, -1')), 's', 16)
            else: k.vmem(f'buffer_store_dwordx4 {vr(x,4)}, v{vo}, {sr(sOUT,4)}, s{sMK+4+T} offen' + (' sc1' if OPT['outsc'] >> T & 1 else ''), 'xst')
        return ops + [None] + rec(body)
    for T in range(2):
        sl = []; CUR[0] = T
        for pos, (kk, v) in enumerate(ORD[T]):
            jp, i = kk >> 2, kk & 3
            if True:
                A = ACC2(T, v); wr = w2reg(kk, v)
                def mf(A=A, wr=wr, kk=kk, v=v, jp=jp, i=i):
                    if wr is None: k.wait(lg=f'A{kk}{v}')
                    elif half == 0 and T == 0:
                        if kk == 0: ws.ensure(29)
                        assert ws.done > 28 + kk; k.wait(lg=f'tr{28+kk}')
                    a = rn(wr, 4) if wr else vr(AR(kk, v), 4)
                    e(f'v_mfma_f32_32x32x16_bf16 {vr(A,16)}, {a}, {vr(HB[T,jp]+4*i,4)}, {vr(A,16) if kk else 0}')
                pre, post = [], []
                if i == 0 and v == 0: pre.append(Op('s', 0, lambda jp=jp, T=T: ls(f'g{half}.{T}{jp}')))
                if half == 0 and T == 0 and v == 0: pre.append(Op('ds', 0, lambda kk=kk: ws.force(116 + 2*kk)))
                if pos + 4 < 56 and ORD[T][pos + 4][0] >= 17: pre += [aread(*ORD[T][pos + 4], 0), aread(*ORD[T][pos + 4], 1)]
                pre.append(hpace(116 + 56*T + 2*kk + v))
                if jp < 6 and not OPT['noh'] & 2: post += hcheck(T, jp + 1)[2*i + v]
                sl.append([[Op('mfma', 8, mf)], pre, post])
        if T == 0: k.slots(sl[:26], rec(lambda: (ownfix(1), half or cnt_check(vT1 + 1), g2addr())), 24); k.slots(sl[26:], rec(g2more), 28)
        else:
            k.bg_flush(); assert half or ws.ni == 56
            q = [None, None]
            q += rec(lambda: rrd(0))
            for c in range(8): q += rec(lambda: rwr(0, c)) + [None, None]
            q += rec(lambda: (k.wait(lg='rw'), e('s_barrier'))) + red_final(0, B[2], False) + [None] + rec(lambda: (e('s_barrier'), rrd(1)))
            x = vR + 4
            un = rec(lambda: [e(f'v_and_b32 v{B[7]+n}, s{sFF}, v{x + n//2}' if n & 1 else f'v_lshlrev_b32 v{B[7]+n}, 16, v{x + n//2}') for n in range(8)])
            sl[52][2] += un[:5]; sl[53][2] += un[5:]; sl[54][2] += rec(lambda: rwr(1, 0)); sl[55][2] += rec(lambda: rwr(1, 1))
            k.slots(sl, q, 51)
        log(f'g2({T}) done')
        if OPT['fine'] & 2 and T == 0: stamp(f'D{half}.g20')
    stamp(f'D{half}.g2')
    for c in range(2, 8): rwr(1, c)
    ls(f'd{half}.w'); k.wait(lg='all'); e('s_barrier'); ls(f'd{half}.b')
    k.run(red_final(1, B[2], True))
    stamp(f'D{half}.st')
    k.refill = None
    return False

def only_stream():
    srds((sX0, sW1, sW2, sWS)); e(f's_lshl_b32 s49, s3, 2'); e(f's_add_u32 s49, s49, s{sW}')
    e(f'v_lshlrev_b32 v17, 7, v{vL}'); e(f's_mul_i32 s{sIL}, s49, {14*128}')
    e('s_waitcnt lgkmcnt(0)'); copy_ptrs(True); copy_ptrs(False)
    e(f's_mov_b32 s{sTS}, s50'); nts[0] = 1; tsn.append('start'); e(f's_mov_b32 s{sRETRY}, 20000')
    e('s_mov_b64 exec, 0x3fff')
    if OPT['touch'] & 2: k.vmem(f'buffer_load_dword v19, v17, {sr(sW1,4)}, s{sIL} offen', 'touch')
    if OPT['touch'] & 4: k.vmem(f'buffer_load_dword v19, v17, {sr(sW2,4)}, s{sIL} offen', 'touch')
    e('s_mov_b64 exec, -1')
    stream_setup(); late_setup(); warm(0, 1); warm(1, 5)
    if OPT['touch'] & 8: k.wait(vm='touch')
    stamp('go'); ws.limit = 56; ws.lag = 9
    while ws.ni < 56 or ws.nd < 45:
        n = ws.nd; ws.refill(); k.bg_flush()
        if ws.nd != n and ws.nd % 7 == 0: stamp(f'nd{ws.nd}')
    k.wait(vm='all'); stamp('end'); finish_stamps(); e('s_endpgm')
def main():
    prologue()
    if OPT['only']: return only_stream()
    for half in range(2):
        HALF[0] = half
        phA(half)
        if stop(f'A{half}'): return
        phB(half)
        if ffn(half): return
        if stop(f'D{half}'): return
    finish_stamps()
    e('s_endpgm')
main()
k.tail.append('L_end:')
k.tail.append('s_endpgm')
txt, nops = finish(k, OPT['grid'], 256, LDS_SZ, verbose=OPT['verbose'] > 1, pads=PADS if OPT['pads'] else None)
print(txt)
print(f'; wait states added: {nops}; stamps: {",".join(tsn)}')
```

```python
import re
KN = "interleave_layers__spectral_fnet__dense_activation_relu__prompt_kernel"

def vr(a, n=1): return f'v{a}' if n == 1 else f'v[{a}:{a+n-1}]'
def ar(a, n=1): return f'a{a}' if n == 1 else f'a[{a}:{a+n-1}]'
def sr(a, n=1): return f's{a}' if n == 1 else f's[{a}:{a+n-1}]'

def icost(line):
    op = line.split()[0]
    if line.endswith(':') or line.startswith('.'): return 'lab', 0
    if op.startswith('v_mfma'): return 'mfma', 8
    if op.startswith(('v_exp', 'v_log', 'v_rcp', 'v_rsq', 'v_sqrt', 'v_sin', 'v_cos', 'v_swap', 'v_permlane')): return 'v', 8
    if op.startswith('v_'): return 'v', 4
    if op == 'ds_write_b128': return 'ds', 24
    if op == 'ds_write_b64': return 'ds', 12
    if op.startswith('ds_'): return 'ds', 4
    if op == 'buffer_store_dwordx4': return 'vm', 24
    if op == 's_barrier': return 's', 12
    if op.startswith(('buffer_', 'global_')): return 'vm', 4
    if op.startswith('s_cbranch'): return 's', 20
    return 's', 4
class Op:
    def __init__(s, kind, cost, fn, ta=0): s.kind, s.cost, s.fn, s.ta = kind, cost, fn, ta
    def __call__(s): s.fn()
class K:
    def __init__(self):
        self.out = []
        self.tail = []
        self.vm = []; self.lg = []
        self.nlab = 0
        self.recq = None; self.depth = 0
        self.clk = 0; self.mfma_free = 0; self.last = ''
        self.bg = []; self.bg_next = 0; self.bg_period = None; self.refill = None; self.quota = 999; self.clump = 0; self.in_bg = False; self.in_tail = False
    def _emit(self, s):
        for line in s.split('\n'):
            line = line.strip()
            if not line: continue
            self.out.append(line)
            if self.in_tail: continue
            kind, c = icost(line)
            if kind == 'mfma':
                self.clk = max(self.clk, self.mfma_free); self.mfma_free = self.clk + (32 if '32x32' in line else 16)
            elif line.startswith(('v_dot', 'v_pk_add_f32', 'v_pk_mul_f32', 'v_pk_fma_f32')): self.clk = max(self.clk, self.mfma_free + 12 if self.mfma_free > self.clk else 0)
            if kind in ('ds', 'vm') and self.last == 'v': c += 8
            self.clk += c
            if kind != 'lab': self.last = kind
    def _do(self, s, fn):
        if self.recq is not None:
            lines = [l.strip() for l in s.split('\n') if l.strip()]
            self.recq.append(Op(icost(lines[0])[0], sum(icost(l)[1] for l in lines), fn))
        else:
            fn(); self.tick()
    def e(self, s): self._do(s, lambda: self._emit(s))
    __call__ = e
    def vmem(self, s, tag=None): self._do(s, lambda: (self._emit(s), self.vm.append(tag)))
    def ds(self, s, tag=None): self._do(s, lambda: (self._emit(s), self.lg.append(tag)))
    def wait(self, vm=None, lg=None):
        if self.recq is not None: self.recq.append(Op('w', 0, lambda: self._wait(vm, lg)))
        else: self._wait(vm, lg)
    def call(self, fn, kind='s', cost=4):
        def run():
            self.depth += 1; fn(); self.depth -= 1
        if self.recq is not None: self.recq.append(Op(kind, cost, run))
        else: run(); self.tick()
    def rec(self, fn):
        save = self.recq; self.recq = []; fn(); q = self.recq; self.recq = save; return q
    def run(self, ops):
        for o in ops:
            if o is None: continue
            if self.recq is not None: self.recq.append(o)
            else: o(); self.tick()
    def lab(self, base='L'):
        self.nlab += 1
        return f'{base}_{self.nlab}'
    def tick(self):
        if self.depth or self.in_bg or self.in_tail or self.bg_period is None: return
        if not self.clump:
            if self.bg_due(): self.bg_step()
            return
        if not self.bg and self.refill: self.refill()
        if not self.bg or self.quota <= 0 or self.clk < self.bg_next: return
        if self.last == 'v' and self.clk < self.bg_next + self.clump: return
        n = 0
        while True:
            if not self.bg and self.refill: self.refill()
            if not self.bg or (self.bg[0].ta and (n >= 2 or self.quota <= 0)): break
            n += self.bg[0].ta; self.bg_step()
    def bg_due(self):
        if self.bg_period is None: return False
        if not self.bg and self.refill: self.refill()
        return bool(self.bg) and (self.bg[0].ta == 0 or (self.clk >= self.bg_next and self.quota > 0))
    def bg_flush(self):
        while self.bg: self.bg_step()
    def bg_step(self):
        o = self.bg.pop(0); self.in_bg = True; o(); self.in_bg = False
        if o.ta: self.bg_next = max(self.bg_next, self.clk - 100 - self.clump) + (self.bg_period or 72) * o.ta; self.quota -= 1
    def seg(self, count, cycles, delay=0):
        self.quota = count; self.bg_period = max(1, cycles // max(1, count)); self.bg_next = self.clk + delay
    def burst(self, count):
        while count > 0:
            if not self.bg and self.refill: self.refill()
            if not self.bg: break
            count -= self.bg[0].ta; self.bg_step()
    def idle(self, cycles):
        end = self.clk + cycles
        while self.bg_period is not None:
            if not self.bg and self.refill: self.refill()
            if not self.bg: break
            if self.bg[0].ta and self.bg_next > end: break
            if self.bg[0].ta: self.clk = max(self.clk, self.bg_next - 200)
            if self.clk >= end: break
            self.bg_step()
        self.clk = max(self.clk, end)
    def slots(self, sl, q=None, deadline=None, nbg=2, res0=4):
        q = list(q or []); head = []; self.depth += 1
        deadline = len(sl) if deadline is None else deadline; credit = 0
        for i, (mf, pre, post) in enumerate(sl):
            for o in mf: o()
            for o in list(pre) + head: o()
            head = []
            n = 0
            while n < nbg and self.bg_due(): self.bg_step(); n += 1
            left = deadline - i
            brk = sum(1 for o in q if o is None)
            share = sum(o.cost for o in q if o) / max(1, left - brk * 0.5) if left > 0 else 1e9
            res = res0 + sum(o.cost for o in post); used = 0
            while q:
                o = q[0]
                if o is None:
                    q.pop(0)
                    if left > 0: break
                    continue
                if o.kind in ('ds', 'vm') and self.last == 'v' and left > 1 and i + 1 < len(sl):
                    if head and len(head) >= 2: break
                    head.append(q.pop(0)); used += o.cost; continue
                if o.kind == 'w' and head: break
                if self.clk + o.cost > self.mfma_free - res and used + o.cost / 2 > share + credit:
                    if o.cost > (16 if res0 else 8) and used == 0 and len(post) == 0: pass
                    else: break
                q.pop(0); o(); used += o.cost
            credit = max(0, credit + share - used) if q and q[0] is not None and q[0].cost > 16 else 0
            for o in post: o()
        for o in head + q:
            if o: o()
        self.depth -= 1
    def weave(self, mem, fill, gap):
        fill = list(fill); self.depth += 1
        for o in mem:
            o(); t = self.clk + gap
            while fill and self.clk < t: fill.pop(0)()
        self.depth -= 1
        return fill
    def _n_after(self, q, tag):
        idx = [i for i, t in enumerate(q) if t == tag]
        return None if not idx else len(q) - 1 - idx[-1]
    def _wait(self, vm=None, lg=None):
        parts = []
        if vm is not None:
            n = 0 if vm == 'all' else self._n_after(self.vm, vm)
            if n is not None and (self.vm or vm == 'all'):
                n = min(n, 63); parts.append(f'vmcnt({n})'); self.vm = self.vm[len(self.vm) - n:] if n else []
        if lg is not None:
            n = 0 if lg == 'all' else self._n_after(self.lg, lg)
            if n is not None and (self.lg or lg == 'all'):
                n = min(n, 15); parts.append(f'lgkmcnt({n})'); self.lg = self.lg[len(self.lg) - n:] if n else []
        if parts: self._emit('s_waitcnt ' + ' '.join(parts))
    def begin_tail(self):
        assert self.recq is None
        self._save = (self.out, list(self.vm), list(self.lg)); self.out = self.tail; self.in_tail = True
    def end_tail(self):
        self.out, self.vm, self.lg = self._save; self.in_tail = False

_REG = re.compile(r'^(-|\|)?(abs\()?([vas])(\d+|\[(\d+):(\d+)\])\)?\|?$')
def regs(op):
    op = op.strip()
    if op in ('vcc', 'vcc_lo', 'vcc_hi'): return {('s', 'vcc')}
    if op in ('exec', 'exec_lo', 'exec_hi'): return {('s', 'exec')}
    if op == 'm0': return {('s', 'm0')}
    m = _REG.match(op)
    if not m: return set()
    k = m.group(3)
    if m.group(5) is not None: return {(k, i) for i in range(int(m.group(5)), int(m.group(6)) + 1)}
    return {(k, int(m.group(4)))}
TRANS = ('v_exp_', 'v_log_', 'v_rcp_', 'v_rsq_', 'v_sqrt_', 'v_sin_', 'v_cos_')
class I:
    def __init__(s, text):
        s.text = text
        t = text.split(';')[0].strip()
        s.label = t.endswith(':') or t.startswith('.')
        s.op = t.split()[0] if t else ''
        rest = t[len(s.op):].strip()
        ops = [o.strip() for o in re.split(r',\s*(?![^\[]*\])', rest)] if rest else []
        if ops:
            last = ops[-1].split()
            s.mods = last[1:]; ops[-1] = last[0] if last else ''
        else: s.mods = []
        s.ops = ops
        R = [regs(o) for o in ops]
        U = lambda l: set().union(*l) if l else set()
        s.w = set(); s.r = set(); s.kind = 'other'; s.passes = 0; s.A = s.C = set(); s.data = set()
        op = s.op
        if s.label: s.kind = 'label'
        elif op.startswith('v_mfma'):
            s.kind = 'mfma'; s.w = R[0]; s.A = R[1] | R[2]; s.C = R[3]; s.r = s.A | s.C
            s.passes = 8 if '32x32' in op else 4
        elif op.startswith('v_'):
            s.kind = 'valu'; s.w = R[0]; s.r = U(R[1:])
            if op.startswith(('v_fmac', 'v_dot2c', 'v_writelane', 'v_pk_fmac')) or 'dpp' in op or any(m.startswith(('row_', 'quad_perm')) for m in s.mods): s.r |= R[0]
            if op.startswith(('v_swap', 'v_permlane')): s.w = R[0] | R[1]; s.r = R[0] | R[1]
            if op.startswith(('v_add_co', 'v_sub_co', 'v_addc_co', 'v_subb_co')): s.w = R[0] | R[1]; s.r = U(R[2:])
            if op.startswith('v_cmpx'): s.w |= {('s', 'exec')}
        elif op.startswith('ds_'):
            s.kind = 'ds'
            if op.startswith(('ds_read', 'ds_bpermute', 'ds_permute', 'ds_swizzle')): s.w = R[0]; s.r = U(R[1:])
            else: s.r = U(R)
        elif op.startswith(('buffer_', 'global_')):
            s.kind = 'vmem'
            if 'lds' in s.mods: s.r = U(R) | {('s', 'm0')}
            elif 'load' in op: s.w = R[0]; s.r = U(R[1:])
            else:
                s.r = U(R)
                if op.endswith(('x3', 'x4')): s.data = R[0] if op.startswith('buffer_') else R[1]
        elif op.startswith('s_'):
            s.kind = 'salu'
            if op.startswith(('s_cmp', 's_bitcmp', 's_cbranch', 's_branch', 's_waitcnt', 's_nop', 's_barrier', 's_endpgm', 's_sleep', 's_setprio')): s.r = U(R)
            else:
                s.w = R[0] if R else set(); s.r = U(R[1:])
                if 'saveexec' in op: s.w |= {('s', 'exec')}
        s.states = int(ops[0]) + 1 if op == 's_nop' else (0 if s.label else 1)
        s.dpp = 'dpp' in op or any(m.startswith(('row_', 'quad_perm', 'wave_')) for m in s.mods)
def need(p, c):
    n = 0
    vec = lambda S: {x for x in S if x[0] in 'va'}
    sc = lambda S: {x for x in S if x[0] == 's'}
    if p.kind == 'valu':
        wv, ws = vec(p.w), sc(p.w)
        if c.kind == 'mfma' and wv & c.r: n = max(n, 3 if p.op.startswith('v_dot') else 2)
        if c.kind == 'mfma' and ('s', 'exec') in ws: n = max(n, 4)
        if c.kind == 'valu':
            if c.op.startswith(('v_readfirstlane', 'v_readlane')) and wv & c.r: n = max(n, 1)
            if c.op.startswith('v_permlane') and wv & c.r: n = max(n, 2)
            if c.dpp and wv & c.r: n = max(n, 2)
            if p.op.startswith(TRANS) and wv & c.r and not c.op.startswith(TRANS): n = max(n, 1)
            if ws & c.r: n = max(n, 4 if c.op.startswith(('v_readlane', 'v_writelane')) else 2)
            if c.op.startswith('v_cndmask') and ('s', 'vcc') in ws: n = max(n, 2)
        if p.op.startswith('v_dot') and c.kind in ('valu', 'ds', 'vmem') and wv & (c.r | c.w):
            same_c = c.op == p.op and not (wv & (regs(c.ops[1]) | regs(c.ops[2])))
            if not same_c: n = max(n, 3)
        if c.kind == 'vmem' and ws & c.r: n = max(n, 5)
        if c.kind == 'salu' and ws & c.r and not c.op.startswith('s_cbranch'): n = max(n, 1)
    if p.kind == 'mfma':
        big = {4: 8, 8: 12}[p.passes]
        if c.kind == 'mfma':
            if p.w & c.A: n = max(n, big)
            if p.w & c.C and not (p.w == c.C and p.passes == c.passes): n = max(n, big - 2)
            if p.w & c.w and not (p.w == c.w and p.passes == c.passes): n = max(n, big - 2)
        elif c.kind in ('valu', 'ds', 'vmem'):
            if p.w & (c.r | c.w): n = max(n, big)
            if c.kind == 'valu' and p.C & c.w: n = max(n, p.passes - 1)
    if p.kind == 'salu':
        if ('s', 'm0') in p.w and ('s', 'm0') in c.r and c.kind in ('vmem', 'valu'): n = max(n, 1)
    if p.kind == 'vmem' and p.data and c.kind in ('valu', 'ds', 'vmem', 'mfma') and p.data & c.w: n = max(n, 2)
    return n
def fix_hazards(lines, verbose=False):
    out = []; added = 0
    for text in lines:
        c = I(text)
        if c.kind != 'label':
            dist = 0; lack = 0; why = None
            for p in reversed(out):
                if dist >= 14: break
                if p.op in ('s_branch', 's_endpgm'): break
                k = need(p, c) - dist
                if k > lack: lack, why = k, p
                dist += p.states
            if lack > 0:
                out.append(I(f's_nop {lack-1}')); added += lack
                if verbose: print(f'; nop {lack}: [{why.text}] -> [{c.text}]')
        out.append(c)
    return [i.text for i in out], added

def _wrap(lines, grid, block, lds, vgpr, accum, sgpr, header):
    fmt = lambda l: l if l.endswith(':') or l.startswith('.') else '    ' + l
    s = header + f'; @launch grid=({grid},1,1) block=({block},1,1) lds={lds}\n'
    s += f'.amdgcn_target "amdgcn-amd-amdhsa--gfx950"\n.text\n.globl {KN}\n.p2align 12\n.p2align 8\n.type {KN},@function\n{KN}:\n'
    s += '\n'.join(fmt(l) for l in lines) + '\n'
    s += f'''.section .rodata,"a"
.p2align 6
.amdhsa_kernel {KN}
  .amdhsa_next_free_vgpr {vgpr}
  .amdhsa_next_free_sgpr {sgpr}
  .amdhsa_accum_offset {accum}
  .amdhsa_group_segment_fixed_size 0
  .amdhsa_kernarg_size 88
  .amdhsa_user_sgpr_count 2
  .amdhsa_user_sgpr_kernarg_segment_ptr 1
  .amdhsa_system_sgpr_workgroup_id_x 1
  .amdhsa_float_denorm_mode_32 3
.end_amdhsa_kernel
'''
    return s
def sizes(text):
    import subprocess, tempfile, os
    d = tempfile.mkdtemp(); open(d + '/a.s', 'w').write(text)
    r = subprocess.run(['clang', '-x', 'assembler', '-target', 'amdgcn-amd-amdhsa', '-mcpu=gfx950', '-c', d + '/a.s', '-o', d + '/a.o'], capture_output=True, text=True)
    assert r.returncode == 0, r.stderr[:2000]
    o = subprocess.run(['llvm-objdump', '-d', '--mcpu=gfx950', d + '/a.o'], capture_output=True, text=True).stdout
    return [4 * len(m.group(1).split()) for m in re.finditer(r'// [0-9A-F]{12}: ((?:[0-9A-F]{8} ?)+)', o)]
ENTRY_OFF = 0x300
def finish(k, grid, block, lds, vgpr=512, accum=256, sgpr=102, header='', verbose=False, pads=None):
    main, n1 = fix_hazards(k.out, verbose)
    tail, n2 = fix_hazards(k.tail, False)
    lines = main + tail
    if pads:
        MAXP = 16
        islab = lambda l: l.endswith(':') or l.startswith('.')
        sz = sizes(_wrap(lines + [f'L_pad{p}:' for p in range(1, MAXP + 1)], grid, block, lds, vgpr, accum, sgpr, header))
        assert len(sz) == sum(1 for l in lines if not islab(l)), (len(sz), len(lines))
        npages = (ENTRY_OFF + sum(sz) + 8 * MAXP) // 4096
        out = []; addr = ENTRY_OFF; page = 0; it = iter(sz); made = set(); ez = 0
        for l in lines:
            if ez == 1 and l.startswith('L_ret'): ez = 2
            if not islab(l):
                if addr // 4096 > page and not ez:
                    page = addr // 4096
                    out += [f'L_pad{page}:', f's_cbranch_execz {pads(page)}']; addr += 4; made.add(page)
                addr += next(it)
                if l == 's_mov_b64 exec, 0': ez = 1
                elif ez == 2: assert l == 's_mov_b64 exec, -1'; ez = 0
            out.append(l)
        def resolve(lab):
            while lab.startswith('L_pad') and int(lab[5:]) not in made: lab = pads(int(lab[5:]))
            return lab
        lines = [re.sub(r'L_pad\d+$', lambda m: resolve(m.group(0)), l) for l in out]
    return _wrap(lines, grid, block, lds, vgpr, accum, sgpr, header), n1
```

```python
import sys, struct, re
from kasm import *

OPT = dict(ts=0, stop='', verbose=0, hq_slot=93, t1_grp=4, grid=256, lag=8, perA=96, perB=96, perG=90, perH=76, rot=0, touch=1, pads=1, hpre=17, nx=8, nA=16, dA=60, nT=2, nK=20, nU=10, nE=10, nU0=0, nS=0, late=1250, xack=0, uack=1, ud=500, outsc=0, xd=800, wt=0, usel=1, hsel=1, hl=14, hB0=0, hB1=0, v2=1, pP=84, wG1=22, wG2=50, hG2=10, ssp=5, rt=0, clump=80, nbgA=1, nbgG=2, l2first=2, cntlate=0, pS=92, pA=92, pT=92, pK=92, pU=92, pE=92, n0=11, xs0=4, fillslot=6, e0=14, t1_slot=26, hord=0, hdl=14, lead=18, rot2=0, only=0, hq0=98,
           idleU=500, nostats=0, nofill=0, nocnt=0, fine=0, noh=0)
for a in sys.argv[1:]:
    key, val = a.split('=')
    OPT[key] = val if key in ('stop', 'amp', 'ls') else int(val)
AMP = OPT.get('amp')
if AMP: OPT['ts'] = 1
TS, STOP = OPT['ts'], OPT['stop']
TSI = 's_memtime' if TS == 2 else 's_memrealtime'

S, D, F = 2048, 448, 1792
XB = S * D * 2
WS_U1, WS_U2, WS_X2, WS_H = 0, XB, 2 * XB, 3 * XB
WS_SS = WS_H + S * F * 2
WS_EP = WS_SS + 131072
WS_END = WS_EP + 64
WS_TS = 0x1000000
WS_DBG = 0x1100000
L_X = 0; L_RED = 28672; L_H = 0; L_ST = 64512
L_M = 65536; L_WA = L_M + 8192; WA_SZ = 22528
L_C = lambda half: 57344 if half else L_M
LDS_SZ = L_WA + 4 * WA_SZ
assert LDS_SZ <= 163840
NSLOT = 11
sX0, sW1, sW2, sOUT, sWS = 8, 12, 16, 20, 24
sW, sG, sP, sRB, sRETRY, sWA, sSO, sLO, sHI, sCI = 32, 33, 34, 35, 36, 37, 38, 39, 40, 41
sT = 42
sBG = 48
sMK = 52
sHS = 60
sIM, sIL = 67, 68
sFF = 69
sUO = 4
sRD = 96
sN = 28
sTS = 70
sDBG = 92
sRC = 100
sRO = 101
vL, vL16, vCS, vSa, vSb, vT1, vT2, vA = 0, 1, 2, 6, 7, 8, 10, 12
B = [16 + 16 * i for i in range(8)]; vR = 144
vCA, vSEL, vX = 240, 248, 252
def w1f(n, u): return ar(8 * n + 4 * u, 4)
def w2reg(kk, v):
    if kk < 4: return ('a', 224 + 8 * kk + 4 * v)
    if kk < 17: return ('v', 152 + 8 * (kk - 4) + 4 * v)
    return None
def rn(t, n): return ar(t[1], n) if t[0] == 'a' else vr(t[1], n)
fl = lambda x: '0x%08x' % struct.unpack('<I', struct.pack('<f', x))[0]

k = K(); e = k.e; rec = k.rec; k.clump = OPT['clump']
nts = [0]; tsn = []
def log(msg):
    if OPT['verbose']: print(f'; [{k.clk}] {msg} ni={ws.ni} nd={ws.nd} cs={ws.nc}', file=sys.stderr)
LS = OPT.get('ls')
def ls(name):
    if TS and LS and re.fullmatch(LS, name):
        i = nts[0]; nts[0] += 1; tsn.append(name); assert i < 11
        k._emit(f'{TSI} s[{sTS+2*i}:{sTS+2*i+1}]')
def stamp(name):
    log(name)
    if LS: return ls(name)
    if not TS or (AMP and name != AMP) or ('half' in OPT and name[1] == str(1 - OPT['half']) and name != 'D0.st'): return
    i = nts[0]; nts[0] += 1; tsn.append(name); assert i < 22
    k.wait(lg='all')
    e(f'{TSI} s[50:51]\ns_waitcnt lgkmcnt(0)\ns_mov_b32 s{sTS+i}, s50')
def finish_stamps():
    if not TS: return
    if AMP:
        e('s_cmp_lg_u32 s2, 100'); e('s_cbranch_scc1 L_exit')
        e(f's_sub_u32 s44, s{sTS+1}, s{sTS}'); e('s_min_u32 s44, s44, 10000'); e('s_mul_i32 s44, s44, 20')
        e('s_memrealtime s[50:51]'); e('s_waitcnt lgkmcnt(0)'); e('s_add_u32 s44, s44, s50')
        e('L_amp:'); e('s_memrealtime s[50:51]'); e('s_waitcnt lgkmcnt(0)'); e('s_sub_u32 s45, s50, s44'); e('s_cmp_lt_i32 s45, 0'); e('s_cbranch_scc1 L_amp')
        return
    e('v_mov_b32 v16, 0')
    e('s_waitcnt lgkmcnt(0)')
    for i in range(nts[0]): e(f'v_writelane_b32 v16, s{sTS + (2*i if LS and not k.in_tail else i)}, {i}')
    e(f'v_writelane_b32 v16, s{sRETRY}, 63'); e(f'v_writelane_b32 v16, s{sRC}, 62')
    e(f's_lshl_b32 s{sT}, s2, 2'); e(f's_add_u32 s{sT}, s{sT}, s{sW}'); e(f's_lshl_b32 s{sT}, s{sT}, 8'); e(f's_add_u32 s{sT}, s{sT}, {WS_TS}')
    e(f'v_lshlrev_b32 v17, 2, v{vL}')
    e(f'buffer_store_dword v16, v17, {sr(sWS,4)}, s{sT} offen')
def stop(name, dump_lds=0):
    if STOP != name: return False
    k.bg_period = None
    k.wait(vm='all', lg='all'); e('s_barrier')
    if dump_lds:
        e(f's_lshl_b32 s{sT}, s{sW}, 10'); e(f'v_add_u32 v20, s{sT}, v{vL16}')
        e(f's_lshl_b32 s{sT}, s2, 16'); e(f's_add_u32 s{sT}, s{sT}, {WS_DBG}')
        for i in range(dump_lds // 4096):
            e(f'ds_read_b128 v[16:19], v20'); e('s_waitcnt lgkmcnt(0)')
            e(f'buffer_store_dwordx4 v[16:19], v20, {sr(sWS,4)}, s{sT} offen'); e('s_nop 1'); e('v_add_u32 v20, 4096, v20')
    finish_stamps(); e('s_endpgm')
    return True

RCLS = {'cnt': 0, 'U0': 1, 'h0': 2, 'x2': 3, 'img': 4, 'U1': 5, 'h1': 6}
def retry_site(check, reload, name, br='s_cbranch_vccnz', after=None):
    def f():
        slow, ok = k.lab('slow_' + name), k.lab('ok_' + name)
        e(f'{br} {slow}'); e(f'{ok}:')
        k.begin_tail()
        e(f'{slow}:')
        e(f's_cmp_eq_u32 s{sRETRY}, 0'); e(f's_cbranch_scc1 {ok}'); e(f's_sub_u32 s{sRETRY}, s{sRETRY}, 1')
        if TS: e(f's_add_u32 s{sRC}, s{sRC}, {1 << 4*RCLS[name.split("_")[0]]}')
        reload(); k.wait(vm='all', lg='all'); check(); k.wait(vm='all', lg='all')
        e(f'{br} {slow}')
        if after: after()
        e('s_nop 1'); e(f's_branch {ok}')
        k.end_tail()
    k.call(f, 's', 20)
def cnt_load(reg): k.vmem(f'buffer_load_dword v{reg}, off, {sr(sDBG,4)}, 0 sc1', 'cnt')
def cnt_check(reg):
    chk = lambda: e(f'v_readfirstlane_b32 s49, v{reg}\ns_nop 1\ns_cmp_lt_u32 s49, 32')
    k.call(lambda: (k.wait(vm='cnt'), chk(), retry_site(chk, lambda: (e('s_sleep 16'), cnt_load(reg)), 'cnt_0', 's_cbranch_scc1')), 'v', 40)
def warm(site, first):
    def f():
        if OPT['pads']:
            e('s_mov_b64 exec, 0')
            for w in range(3): e(f's_cmp_eq_u32 s{sW}, {w}'); e(f's_cbranch_scc1 L_pad{first+w}')
            e(f's_branch L_pad{first+3}')
        elif site == 0: e('s_branch L_ret0')
        if site == 0: k.in_tail = True; helper(); k.in_tail = False
        e(f'L_ret{site}:'); e('s_mov_b64 exec, -1'); k.clk += 200
    k.call(f, 's', 250)
PADS = lambda p: 'L_ret0' if p <= 4 else (f'L_pad{p+4}' if p <= 12 else 'L_ret1')

class Stream:
    def __init__(s): s.ni = 0; s.nd = 0; s.nc = 0; s.limit = 4; s.lag = OPT['lag']
    def issue_ops(s):
        n = s.ni; s.ni += 1; ops = []
        if n == 28: ops += [Op(o.kind, o.cost, o.fn) for o in rec(lambda: src_off(896))]
        srd = sr(sW1 if n < 28 else sW2, 4)
        def a():
            if n >= NSLOT: assert s.done > n - NSLOT; k.wait(lg=f'tr{n-NSLOT}')
            elif n >= 4: k.wait(lg=f'xr{n-4}')
            e(f's_add_u32 m0, s{sWA}, {(n % NSLOT)*2048}')
            if n < 28:
                if n: e(f's_add_u32 s{sSO}, s{sSO}, {16*3584}')
            else:
                if (n - 28) % 4: e(f's_add_u32 s{sSO}, s{sSO}, {16*896}')
                else:
                    e(f's_mul_i32 s{sBG}, s{sP}, {2*7*16384}\ns_sub_u32 s{sSO}, s{sHS + (n-28)//4}, s{sBG}\ns_sub_u32 s{sSO}, s{sSO}, {WS_H}\ns_mul_i32 s{sSO}, s{sSO}, 14\ns_lshl_b32 s{sBG}, s{sG}, 7\ns_add_u32 s{sSO}, s{sSO}, s{sBG}')
            k.vmem(f'buffer_load_dwordx4 v{vSa}, {srd}, s{sSO} offen lds', f'wa{n}')
        def b(): k.vmem(f'buffer_load_dwordx4 v{vSb}, {srd}, s{sSO} offen offset:1024 lds', f'w{n}'); s.sent = n + 1
        return ops + [Op('s', 12, a, 1), Op('vm', 4, b, 1)]
    def drain_ops(s):
        n = s.nd; s.nd += 1
        so = (n % NSLOT) * 2048
        def rd(u, h2):
            def f():
                assert s.sent > n; k.wait(vm=f'w{n}')
                if n < 28: dst, ad, off = ar(8*n + 4*u + 2*h2, 2), vT1 + u, so + 512*h2
                else:
                    t = w2reg(n - 28, u); dst, ad, off = rn((t[0], t[1] + 2*h2), 2), vT2 + u, so + 1024*h2
                k.ds(f'ds_read_b64_tr_b16 {dst}, v{ad} offset:{off}', f'tr{n}')
                if u and h2: s.done = n + 1
            return Op('ds', 4, f)
        return [rd(0, 0), rd(0, 1), rd(1, 0), rd(1, 1)]
    done = 0; sent = 0
    cs_on = 0; dmax = 45
    def mix(s, ops):
        out = []; n = s.cs_on
        for o in ops:
            out.append(o)
            if n > 0 and s.nc < 2*min(28, s.done - 1 if s.done < 29 else 28): out.append(s.cs_op()); n -= 1
        return out
    def refill(s):
        if s.nd < s.dmax and (s.ni - s.nd > s.lag or (s.ni == 56 and s.nd < s.ni)): k.bg += s.mix(s.drain_ops())
        elif s.ni < min(56, s.limit) and s.ni - NSLOT < s.nd: k.bg += s.mix(s.issue_ops())
    def drain_landed(s, keep):
        while s.nd < min(45, s.ni - keep): k.bg += s.drain_ops()
    def ensure(s, n):
        n = min(n, 55)
        while (s.done <= n if n < 45 else (s.ni <= n or k.bg)):
            if not k.bg:
                if s.ni <= n and s.ni - NSLOT < s.nd: k.bg += s.issue_ops()
                else: k.bg += s.drain_ops()
            k.bg_step()
    use = staticmethod(lambda n: 2*n if n < 28 else 116 + 2*(n - 28))
    def force(s, slot):
        if s.sent < s.ni and s.use(s.sent) <= slot + OPT['lead']: k.bg_flush()
        while s.ni < 56 and s.use(s.ni) <= slot + OPT['lead']:
            k.bg_flush()
            if s.ni - NSLOT >= s.nd: k.bg += s.drain_ops()
            k.bg += s.issue_ops(); k.bg_flush()
        n = max([-1] + [i for i in range(45) if s.use(i) <= slot + 4])
        if n >= 0: s.ensure(n)
    def cs_op(s):
        n, u = s.nc >> 1, s.nc & 1; s.nc += 1
        def g():
            assert s.done > n; k.wait(lg=f'tr{n}')
            acc = vr(vCA + 4*u, 4)
            e(f'v_mfma_f32_16x16x32_bf16 {acc}, {vr(vSEL,4)}, {w1f(n, u)}, {acc if n else 0}')
        return Op('mfma', 16, g)
    def cs_flush(s, maxn=99, behind=0):
        while s.nc < 2*min(28, s.done - behind) and maxn > 0: k.run([s.cs_op()]); maxn -= 1
ws = Stream()
def src_off(stride):
    e(f'v_lshrrev_b32 v{vSa}, 3, v{vL}'); e(f'v_lshrrev_b32 v{vSb}, 2, v{vL}'); e(f'v_and_b32 v{vSb}, 4, v{vSb}')
    e(f'v_xor_b32 v{vSb}, v{vSb}, v{vL}'); e(f'v_and_b32 v{vSb}, 7, v{vSb}'); e(f'v_mul_u32_u24 v{vSa}, {stride}, v{vSa}')
    e(f'v_lshl_add_u32 v{vSa}, v{vSb}, 4, v{vSa}'); e(f'v_add_u32 v{vSb}, {8*stride-1024}, v{vSa}')
def cs_finish():
    for u in range(2):
        c = vCA + 4*u; t = c + 1; d = vCS + 2*u
        e(f'v_cvt_pk_bf16_f32 v{t}, v{c}, v{c}'); e(f'v_and_b32 v{t+1}, s{sFF}, v{t}'); e(f'v_sub_f32 v{t+2}, v{c}, v{t+1}')
        e(f'v_cvt_pk_bf16_f32 v{d}, v{t+1}, v{t+2}'); e(f'v_and_b32 v{d+1}, 0xffff, v{t}')
def stream_setup():
    src_off(3584)
    rot = OPT['rot']
    e(f's_lshl_b32 s{sSO}, s{sG}, 2'); e(f's_add_u32 s{sSO}, s{sSO}, s{sW}'); e(f's_lshl_b32 s{sSO}, s{sSO}, 7')
    t = B[1]
    e(f'v_bfe_u32 v{t}, v{vL}, 2, 2'); e(f'v_bfe_u32 v{t+1}, v{vL}, 3, 1'); e(f'v_bfe_u32 v{t+2}, v{vL}, 4, 1'); e(f'v_and_b32 v{t+3}, 3, v{vL}')
    e(f'v_lshlrev_b32 v{t}, 7, v{t}'); e(f'v_lshl_add_u32 v{t}, v{t+1}, 6, v{t}'); e(f'v_lshl_add_u32 v{t}, v{t+2}, 5, v{t}'); e(f'v_lshl_add_u32 v{t}, v{t+3}, 3, v{t}')
    e(f'v_add_u32 v{t}, s{sWA}, v{t}'); e(f'v_lshrrev_b32 v{t+1}, 5, v{vL}')
    e(f'v_lshl_add_u32 v{vT1}, v{t+1}, 10, v{t}'); e(f'v_lshl_add_u32 v{vT2}, v{t+1}, 9, v{t}')
    e(f'v_xor_b32 v{vT1+1}, 64, v{vT1}'); e(f'v_xor_b32 v{vT2+1}, 64, v{vT2}')
def late_setup():
    t = vSEL
    e(f'v_lshrrev_b32 v{t}, 2, v{vL}'); e(f'v_lshrrev_b32 v{t+1}, 4, v{vL}'); e(f'v_xor_b32 v{t}, v{t}, v{t+1}'); e(f'v_and_b32 v{t}, 1, v{t}')
    e(f'v_add_u32 v{t}, -1, v{t}'); e(f'v_and_b32 v{t}, 0x3f803f80, v{t}')
    for i in range(1, 4): e(f'v_mov_b32 v{t+i}, v{t}')
    e(f's_mul_i32 s{sT}, s{sP}, {2*7*16384}'); e(f's_lshl_b32 s{sT+1}, s{sW}, 12'); e(f's_add_u32 s{sT}, s{sT}, s{sT+1}'); e(f's_add_u32 s{sT}, s{sT}, {WS_H}')
    e({0: f's_mov_b32 s{sT+3}, 1', 1: f's_add_u32 s{sT+3}, s{sCI}, 1', 2: f's_and_b32 s{sT+3}, s2, 3\ns_add_u32 s{sT+3}, s{sT+3}, 1'}[OPT['rot2']]); e(f's_mov_b32 s{sT+1}, s{sG}')
    for jp in range(7):
        if jp: e(f's_add_u32 s{sT+1}, s{sT+1}, s{sT+3}'); e(f's_sub_u32 s{sT+2}, s{sT+1}, 7'); e(f's_min_u32 s{sT+1}, s{sT+1}, s{sT+2}')
        e(f's_lshl_b32 s{sT+2}, s{sT+1}, 14'); e(f's_add_u32 s{sHS+jp}, s{sT}, s{sT+2}')

def prologue():
    e('s_load_dwordx2 s[8:9], s[0:1], 0'); e('s_load_dwordx4 s[4:7], s[0:1], 48')
    e('s_load_dwordx2 s[20:21], s[0:1], 64'); e('s_load_dwordx2 s[24:25], s[0:1], 80'); e(f's_load_dwordx2 {sr(sDBG,2)}, s[0:1], 72')
    e('s_getpc_b64 s[46:47]'); e('L_pc:')
    e('v_lshrrev_b32 v1, 6, v0'); e('v_and_b32 v0, 63, v0'); e('s_bfe_u32 s3, s2, 0x50003'); e(f'v_readfirstlane_b32 s{sW}, v1')
    e('v_lshl_add_u32 v2, s3, 2, v1'); e('v_lshl_add_u32 v2, v0, 7, v2'); e('v_lshlrev_b32 v2, 7, v2'); e('v_min_u32 v2, L_end-L_pc, v2')
    e('s_mov_b64 exec, 7'); k.vmem('global_load_dword v3, v2, s[46:47]', 'touch'); e('s_mov_b64 exec, -1')
    e(f'v_lshlrev_b32 v{vL16}, 4, v0')
    e('s_sub_u32 s3, s2, 32'); e('s_cmp_ge_u32 s3, 224'); e('s_cbranch_scc1 L_helper')
    if TS: e(f'{TSI} s[50:51]'); e(f's_mov_b32 s{sRC}, 0')
    e(f's_lshr_b32 s{sT}, s3, 3'); e(f's_mul_i32 s{sCI}, s{sT}, 37'); e(f's_lshr_b32 s{sCI}, s{sCI}, 8')
    e(f's_mul_i32 s{sG}, s{sCI}, 7'); e(f's_sub_u32 s{sG}, s{sT}, s{sG}')
    e(f's_and_b32 s{sP}, s3, 7'); e(f's_lshl_b32 s{sP}, s{sP}, 1'); e(f's_lshr_b32 s{sT}, s{sCI}, 1'); e(f's_add_u32 s{sP}, s{sP}, s{sT}')
    e(f's_sub_u32 s{sT}, 32, s{sP}'); e(f's_cmp_eq_u32 s{sP}, 0'); e(f's_cselect_b32 s{sT}, 16, s{sT}')
    e(f's_bitcmp1_b32 s{sCI}, 0'); e(f's_cselect_b32 s{sP}, s{sT}, s{sP}')
    e(f's_mul_i32 s{sWA}, s{sW}, {WA_SZ}'); e(f's_add_u32 s{sWA}, s{sWA}, {L_WA}')
def srds(which):
    for r, n in ((sX0, XB), (sW1, D*F*2), (sW2, D*F*2), (sOUT, XB), (sWS, 0x2000000 if (TS or STOP) else WS_END), (sDBG, 256)):
        if r in which: e(f's_mov_b32 s{r+2}, {n}'); e(f's_mov_b32 s{r+3}, 0x20000')
def copy_ptrs(first):
    if first: e(f's_mov_b32 s{sW1}, s4'); e(f's_mov_b32 s{sW1+1}, s5')
    else:
        e(f's_mov_b32 s{sW2}, s6'); e(f's_mov_b32 s{sW2+1}, s7')

def helper():
    e('L_helper:')
    e('s_cmp_ge_u32 s2, 32'); e('s_cbranch_scc1 L_exit')
    srds((sW1, sW2, sWS, sDBG))
    NL = OPT['hl']; NQ = 98 // NL; assert NL * NQ == 98
    e(f's_lshl_b32 s{sT}, s2, 2'); e(f's_add_u32 s{sT}, s{sT}, s{sW}'); e(f's_mul_i32 s{sT+2}, s{sT}, {NL*128}'); e(f'v_lshlrev_b32 v2, 7, v{vL}')
    e('s_waitcnt lgkmcnt(0)'); copy_ptrs(True); copy_ptrs(False)
    hs = [0]
    def hstamp(w=None):
        if TS and not AMP:
            if w is not None: e(f's_waitcnt vmcnt({w})')
            e(f'{TSI} s[50:51]\ns_waitcnt lgkmcnt(0)\ns_mov_b32 s{sTS+hs[0]}, s50'); hs[0] += 1
    if OPT['hpre'] & 4: e('s_waitcnt vmcnt(0)')
    hstamp()
    if OPT['hpre'] & 1:
        e(f's_mov_b32 exec_lo, {((1 << NL) - 1) & 0xffffffff:#x}'); e(f's_mov_b32 exec_hi, {((1 << NL) - 1) >> 32:#x}')
        for r in ((sW2,) if OPT['hpre'] & 8 else (sW1, sW2)):
            l = k.lab('touch'); e(f's_mov_b32 s{sT}, s{sT+2}'); e(f's_mov_b32 s{sT+1}, {NQ}'); e(f'{l}:')
            e(f'buffer_load_dword v8, v2, {sr(r,4)}, s{sT} offen'); e(f's_add_u32 s{sT}, s{sT}, {128*NL*128}'); e('s_barrier')
            e(f's_sub_u32 s{sT+1}, s{sT+1}, 1'); e(f's_cmp_lg_u32 s{sT+1}, 0'); e(f's_cbranch_scc1 {l}')
        e('s_mov_b64 exec, -1')
        hstamp(NQ); hstamp(0)
    def fills():
        for i in range(4): e(f'v_mov_b32 v{12+i}, -1')
        e(f's_lshl_b32 s{sT}, s{sW}, 10'); e(f'v_add_u32 v10, s{sT}, v{vL16}'); e('v_mov_b32 v11, 1')
        e(f's_lshl_b32 s{sT}, s2, 12'); e(f's_add_u32 s{sT}, s{sT}, {WS_SS}'); e(f'buffer_store_dwordx4 v[12:15], v10, {sr(sWS,4)}, s{sT} offen sc1')
        e(f's_mul_i32 s{sT}, s2, {2*XB//32}'); e(f's_add_u32 s{sT}, s{sT}, {WS_U2}'); e(f's_mov_b32 s{sT+1}, 14')
        e('L_fill:')
        for j in range(2): e(f'buffer_store_dwordx4 v[12:15], v10, {sr(sWS,4)}, s{sT} offen sc1'); e(f's_add_u32 s{sT}, s{sT}, 4096')
        e(f's_sub_u32 s{sT+1}, s{sT+1}, 1'); e(f's_cmp_lg_u32 s{sT+1}, 0'); e('s_cbranch_scc1 L_fill')
        e('s_waitcnt vmcnt(0)'); e('s_barrier')
        e(f's_cmp_lg_u32 s{sW}, 0'); e('s_cbranch_scc1 L_nosig')
        e('s_mov_b64 exec, 1'); e(f'buffer_atomic_add v11, off, {sr(sDBG,4)}, 0 sc1'); e('s_mov_b64 exec, -1')
        e('L_nosig:'); hstamp()
    if not OPT['hpre'] & 16: fills()
    if OPT['hpre'] & 2:
        e(f'v_min_u32 v5, 55, v{vL}'); e('v_lshrrev_b32 v6, 3, v5'); e('v_and_b32 v5, 7, v5')
        e(f's_lshr_b32 s{sT}, s2, 3'); e(f's_lshl_b32 s{sT}, s{sT}, 3'); e(f's_add_u32 s{sT}, s{sT}, s{sW}'); e(f's_lshl_b32 s{sT}, s{sT}, 3')
        e(f'v_add_u32 v5, s{sT}, v5'); e('v_mul_u32_u24 v5, 896, v5'); e(f'v_mul_u32_u24 v6, {256*896+128}, v6'); e(f'v_add3_u32 v5, v5, v6, 0')
        e(f'v_add_u32 v5, {(OPT["l2first"]-1)*256*896}, v5'); e(f's_mov_b32 s{sT}, {32*896}'); e(f's_mov_b32 s{sT+1}, {7-OPT["l2first"]}')
        e('L_hl2:')
        e(f'v_add_u32 v5, {256*896}, v5'); e(f'v_subrev_u32 v6, {F*896}, v5'); e('v_min_u32 v5, v5, v6')
        e(f'buffer_load_dword v8, v5, {sr(sW2,4)}, 0 offen'); e(f'buffer_load_dword v8, v5, {sr(sW2,4)}, s{sT} offen')
        e(f's_sub_u32 s{sT+1}, s{sT+1}, 1'); e(f's_cmp_lg_u32 s{sT+1}, 0'); e('s_cbranch_scc1 L_hl2')
        hstamp(0)
    if OPT['hpre'] & 16: fills()
    if TS and not AMP:
        n = nts[0]; nts[0] = 8; finish_stamps(); nts[0] = n
    e('L_exit:'); e('s_endpgm')

HALF = [0]
def gen_H():
    ef, a0, tc, q8 = 72, 73, 74, 75
    P0, P1, PK = 76, 84, 92
    e(f'v_and_b32 v{ef}, 15, v{vL}'); e(f's_and_b32 s{sT}, s{sW}, 1'); e(f's_lshl_b32 s{sT+1}, s{sG}, 5'); e(f's_add_u32 s{sT}, s{sT}, s{sT+1}')
    e(f'v_lshl_add_u32 v{ef}, v{ef}, 1, s{sT}'); e(f'v_mov_b32 v{a0}, 224'); e(f'v_cmp_eq_u32 vcc, 0, v{ef}')
    e(f'v_lshrrev_b32 v{q8}, 4, v{vL}'); e(f's_lshl_b32 s{sT+1}, s{sT+1}, 1'); e(f'v_lshl_add_u32 v{q8}, v{q8}, 3, s{sT+1}')
    e(f'v_cndmask_b32 v{ef}, v{ef}, v{a0}, vcc'); e(f'v_cvt_f32_u32 v{q8}, v{q8}'); e(f'v_cvt_f32_u32 v{ef}, v{ef}')
    e(f's_cmp_ge_u32 s{sW}, 2\ns_cselect_b32 s{sT}, {fl(-112.0)}, 0')
    e(f'v_fma_f32 v{a0}, v{q8}, v{ef}, s{sT}'); e(f'v_mul_f32 v{ef}, {fl(1.0/448)}, v{ef}'); e(f'v_mul_f32 v{q8}, {fl(1.0/448)}, v{a0}')
    e(f'v_rndne_f32 v{q8}, v{q8}'); e(f'v_fmamk_f32 v{a0}, v{q8}, {fl(-448.0)}, v{a0}'); e(f'v_mul_f32 v{a0}, {fl(1.0/448)}, v{a0}')
    e(f'v_mul_f32 v{tc}, {fl(32.0)}, v{ef}'); e(f'v_cos_f32 v{tc}, v{tc}')
    e(f's_mul_i32 s{sT}, s{sW}, {7*1024}'); e(f's_add_u32 s{sT}, s{sT}, {L_H}'); e(f'v_add_u32 v{q8}, s{sT}, v{vL16}')
    e(f'v_add_f32 v{tc}, v{tc}, v{tc}')
    for kap in range(7):
        cur, prv = (P0, P1) if kap % 2 == 0 else (P1, P0)
        if HALF[0]: ls(f'H.{kap}')
        if kap < 2:
            for jj in range(8): e(f'v_fmamk_f32 v{cur+jj}, v{ef}, {fl(32.0*kap+jj)}, v{a0}')
            for jj in range(8): e(f'v_cos_f32 v{cur+jj}, v{cur+jj}')
        else:
            for jj in range(0, 8, 2): e(f'v_pk_fma_f32 {vr(cur+jj,2)}, {vr(tc,2)}, {vr(prv+jj,2)}, {vr(cur+jj,2)} op_sel_hi:[0,1,1] neg_lo:[0,0,1] neg_hi:[0,0,1]')
        pk = PK + 4*(kap % 2)
        for m in range(4): e(f'v_cvt_pk_bf16_f32 v{pk+m}, v{cur+2*m}, v{cur+2*m+1}')
        k.ds(f'ds_write_b128 v{q8}, {vr(pk,4)} offset:{1024*kap}', 'Hw')
def gen_F(dst):
    mf, a0, t = 100, 101, 102
    T = 120
    e(f'v_bfe_u32 v{mf}, v{vL}, 1, 3'); e(f's_lshl_b32 s{sT}, s{sW}, 3'); e(f'v_add_u32 v{mf}, s{sT}, v{mf}')
    e(f'v_and_b32 v{t}, 1, v{vL}'); e(f'v_cvt_f32_u32 v{a0}, v{t}'); e(f'v_cmp_eq_u32 vcc, 0, v{mf}')
    e(f'v_lshlrev_b32 v{t}, 5, v{t}'); e(f'v_mul_f32 v{a0}, {fl(-0.25)}, v{a0}')
    e(f'v_cndmask_b32 v{mf}, v{mf}, v{t}, vcc'); e(f'v_cndmask_b32 v{a0}, v{a0}, 0, vcc')
    e(f'v_bfe_i32 v{t+1}, v{mf}, 0, 1'); e(f'v_cvt_f32_u32 v{mf}, v{mf}'); e(f'v_and_b32 v{t}, 48, v{vL}'); e(f'v_cvt_f32_u32 v{t}, v{t}'); e(f'v_and_b32 v{t+1}, 0x80008000, v{t+1}')
    e(f'v_mul_f32 v{mf}, {fl(1.0/128)}, v{mf}'); e(f'v_fma_f32 v{a0}, v{t}, v{mf}, v{a0}')
    for k1 in range(2):
        for jj in range(4): e(f'v_fmamk_f32 v{T+4*k1+jj}, v{mf}, {fl(2.0*k1 + 4.0*jj)}, v{a0}')
    for i in range(8): e(f'v_cos_f32 v{T+i}, v{T+i}')
    for k1 in range(2):
        for m in range(2): e(f'v_cvt_pk_f16_f32 v{dst+4*k1+m}, v{T+4*k1+2*m}, v{T+4*k1+2*m+1}')
    for k1 in range(2):
        for m in range(2): e(f'v_xor_b32 v{dst+4*k1+2+m}, v{dst+4*k1+m}, v{t+1}')
def gen_M(t0):
    j, s2f, ad = t0, t0 + 1, t0 + 2
    e(f'v_and_b32 v{j}, 31, v{vL}'); e(f'v_lshlrev_b32 v{j}, 6, v{j}')
    S2 = t0 + 36
    e(f'v_lshrrev_b32 v{s2f}, 5, v{vL}'); e(f's_add_u32 s{sT}, s{sW}, s{sG}'); e(f's_and_b32 s{sT}, s{sT}, 3'); e(f's_lshl_b32 s{sT}, s{sT}, 2')
    for jj in range(4):
        if jj: e(f's_add_u32 s{sT}, s{sT}, 1')
        e(f's_lshl_b32 s{sT+1}, s{sT}, 1'); e(f's_sub_u32 s{sT+1}, 32, s{sT+1}')
        if jj == 0: e(f's_cmp_eq_u32 s{sT}, 0\ns_cselect_b32 s{sT+1}, 16, s{sT+1}')
        e(f'v_mul_u32_u24 v{S2+jj}, s{sT+1}, v{s2f}'); e(f'v_add_u32 v{S2+jj}, s{sT}, v{S2+jj}'); e(f'v_cvt_f32_u32 v{S2+jj}, v{S2+jj}')
    e(f's_lshl_b32 s{sT}, s{sW}, 10'); e(f's_add_u32 s{sT}, s{sT}, {L_M}'); e(f'v_add_u32 v{ad}, s{sT}, v{vL16}')
    e(f's_cmp_eq_u32 s{sP}, 0\ns_cselect_b32 s{sT}, {fl(0.25)}, 0')
    for pq in range(2):
        T = t0 + 4 + 16*pq
        tf, a0 = T + 12, T + 13
        e(f'v_add_u32 v{tf}, s{sRB if pq else sP}, v{j}'); e(f'v_cvt_f32_u32 v{tf}, v{tf}'); e(f'v_mul_f32 v{tf}, {fl(1.0/2048)}, v{tf}')
        for jj in range(4): e(f'v_fma_f32 v{T+jj}, v{tf}, v{S2+jj}, s{sT}' if pq else f'v_mul_f32 v{T+jj}, v{tf}, v{S2+jj}')
        for jj in range(4): e(f'v_sin_f32 v{T+4+jj}, v{T+jj}')
        for jj in range(4): e(f'v_cos_f32 v{T+jj}, v{T+jj}')
        for jj in range(4): e(f'v_cvt_pk_f16_f32 v{T+8+jj}, v{T+jj}, v{T+4+jj}')
        k.ds(f'ds_write_b128 v{ad}, {vr(T+8,4)} offset:{4096*pq}', 'Mw')

def img_ops(half, T):
    ops = []; rho = sRB if T else sP
    if half == 0:
        for r in range(8):
            def f(r=r):
                if r == 0: e(f's_lshl_b32 s{sIM}, s{sW}, 9\ns_add_u32 s{sIM}, s{sIM}, s{rho}\ns_mul_i32 s{sIM}, s{sIM}, 896\ns_mul_i32 s{sIL}, s{sW}, {8*912}')
                else: e(f's_add_u32 s{sIM}, s{sIM}, 57344')
                e(f's_add_u32 m0, s{sIL}, {L_X + 912*(32*T + r)}'); e('s_mov_b32 exec_hi, 0x00ffffff')
                k.vmem(f'buffer_load_dwordx4 v{vL16}, {sr(sX0,4)}, s{sIM} offen lds', f'img{T}'); e('s_mov_b32 exec_hi, -1')
            ops.append(Op('s', 20, f, 1))
    else:
        for i in range(7):
            def f(i=i):
                if i == 0: e(f's_mul_i32 s{sIL}, s{sW}, 7168\ns_add_u32 m0, s{sIL}, {L_X + 28672*T}\ns_mul_i32 s{sIM}, s{rho}, 28672\ns_add_u32 s{sIM}, s{sIM}, s{sIL}\ns_add_u32 s{sIM}, s{sIM}, {WS_X2}')
                if i == 4: e(f's_add_u32 m0, m0, 4096\ns_add_u32 s{sIM}, s{sIM}, 4096')
                k.vmem(f'buffer_load_dwordx4 v{vL16}, {sr(sWS,4)}, s{sIM} offen offset:{1024*(i%4)} sc1 lds', f'img{T}')
            ops.append(Op('s' if i % 4 == 0 else 'vm', 4, f, 1))
    return ops

XF = lambda kap: 16 + 4 * kap
BORD = [0, 3, 4, 1, 5, 2, 6]
SX = [0, 1, 3, 4, 5, 6, 7]
def x2_loads(first):
    for kp in range(first, 7):
        for kap in (kp, kp + 7):
            k.vmem(f'buffer_load_dwordx4 {vr(XF(kap),4)}, v{vL16}, {sr(sWS,4)}, s{SX[kap//2]} offen offset:{1024*(kap%2)} sc1', f'x{kap}')
def phA(half):
    aT = [72, 76, 84, 88]; aHi = {1: 80, 3: 92}; aS, aG = 96, 100
    HR = [104, 120]; ones = 136; Ff = 140; t = 148
    vx, vh, vtr, vu, vcw, k1 = vA, vL16, vA + 2, vA + 3, 150, 151
    lc = L_C(half)
    def misc():
        if half == 0:
            for i in range(4): e(f'v_mov_b32 v{ones+i}, 0x3f803f80')
            mk = [0x1000010000100001, 0x2000020000200002, 0x4000040000400004, 0x8000080000800008]
            for i in range(4): e(f's_mov_b32 s{sMK+2*i}, {mk[i] & 0xffffffff:#x}'); e(f's_mov_b32 s{sMK+2*i+1}, {mk[i] >> 32:#x}')
        else: e(f's_mov_b32 s{sMK}, -1'); e(f's_mov_b32 s{sMK+1}, 0xffff')
        e(f'v_and_b32 v{t}, 15, v{vL}'); e(f'v_lshrrev_b32 v{t+1}, 4, v{vL}'); e(f'v_lshlrev_b32 v{vcw}, 5, v{t}'); e(f'v_lshl_add_u32 v{vcw}, v{t+1}, 3, v{vcw}')
        e(f's_lshl_b32 s{sT}, s{sW}, 9'); e(f's_add_u32 s{sT}, s{sT}, {lc}'); e(f'v_add_u32 v{vcw}, s{sT}, v{vcw}')
        e(f's_lshl_b32 s{sT}, s{sW}, 2'); e(f'v_add_u32 v{vu}, s{sT}, v{t+1}'); e(f'v_cmp_eq_u32 vcc, 0, v{vu}')
        e(f'v_mul_u32_u24 v{vu}, {2*57344}, v{vu}'); e(f'v_lshl_add_u32 v{vu}, v{t}, 4, v{vu}'); e(f'v_cndmask_b32 v{k1}, -1.0, 0, vcc')
        e(f's_and_b32 s{sT+4}, s2, 7'); e(f's_lshl_b32 s{sT+4}, s{sT+4}, 2'); e(f's_add_u32 s{sT+4}, s{sT+4}, s{sCI}'); e(f's_mul_i32 s{sT+4}, s{sT+4}, 7'); e(f's_add_u32 s{sT+4}, s{sT+4}, s{sG}'); e(f's_lshl_b32 s{sT+4}, s{sT+4}, 8'); e(f's_add_u32 s{sT+4}, s{sT+4}, {WS_U2 if half else WS_U1}')
        e(f's_add_u32 s{sT+5}, s{sT+4}, 57344'); e(f'v_lshlrev_b32 v{vtr}, 3, v{vL}'); e(f'v_add_u32 v{vtr}, {lc}, v{vtr}')
    hread = lambda kp: rec(lambda: [k.ds(f'ds_read_b128 {vr(HR[kp%2]+4*tl,4)}, v{vh} offset:{L_H + (7*tl+kp)*1024}', f'H{kp}{tl}') for tl in (1, 3, 0, 2)])
    st_load = lambda: k.vmem(f'buffer_load_dwordx4 {vr(ones,4)}, v{vL16}, {sr(sWS,4)}, s49 offen sc1', 'ss')
    if half == 0:
        va, vb = vX, vX + 1
        srds((sX0,))
        e(f'v_lshrrev_b32 v{va}, 3, v{vL}'); e(f'v_lshrrev_b32 v{vb}, 4, v{vL}'); e(f'v_xor_b32 v{vb}, v{vb}, v{vL}'); e(f'v_and_b32 v{vb}, 7, v{vb}')
        e(f'v_mul_u32_u24 v{va}, 57344, v{va}'); e(f'v_lshl_add_u32 v{va}, v{vb}, 4, v{va}')
        e(f'v_xor_b32 v{vb}, 64, v{va}'); e(f'v_add_u32 v{vb}, {8*57344-1024}, v{vb}')
        e(f's_lshr_b32 s{sT}, s{sW}, 1'); e(f's_lshl_b32 s{sT}, s{sT}, 5'); e(f's_add_u32 s{sT}, s{sT}, s{sP}')
        e(f's_and_b32 s{sT+1}, s{sW}, 1'); e(f's_lshl_b32 s{sT+1}, s{sT+1}, 10'); e(f's_add_u32 s{sT}, s{sT}, s{sT+1}'); e(f's_mul_i32 s3, s{sT}, 896')
        e(f's_lshl_b32 s{sIM}, s{sG}, 7')
        def xdma(i):
            b = BORD[i]
            def a():
                if b: e(f's_add_u32 s{sBG}, s{sIM}, {128*b}\ns_sub_u32 s{sIL}, s{sBG}, 896\ns_min_u32 s{sBG}, s{sBG}, s{sIL}')
                e(f's_add_u32 m0, s{sWA}, {8192 + 2048*i}\ns_add_u32 s{sBG}, s3, s{sBG if b else sIM}')
                if i == 0:
                    if OPT['rt']:
                        e(f'v_lshl_add_u32 v4, s{sG}, 4, v{vL}'); e('v_mul_u32_u24 v5, 37, v4'); e('v_lshrrev_b32 v5, 8, v5') if False else None
                        e('v_mul_u32_u24 v5, 9363, v4'); e('v_lshrrev_b32 v5, 16, v5'); e(f'v_mul_u32_u24 v5, {57344-896}, v5'); e('v_lshl_add_u32 v4, v4, 7, v5')
                    e('s_waitcnt lgkmcnt(0)')
                    if TS: e(f's_mov_b32 s{sTS}, s50'); nts[0] = 1; tsn.append('start')
                    if OPT['rt']: e('s_mov_b64 exec, 0xffff'); k.vmem(f'buffer_load_dword v5, v4, {sr(sX0,4)}, s3 offen', 'touch'); e('s_mov_b64 exec, -1')
                k.vmem(f'buffer_load_dwordx4 v{va}, {sr(sX0,4)}, s{sBG} offen lds', f'xa{b}')
            return [Op('s', 24, a), Op('vm', 4, lambda: k.vmem(f'buffer_load_dwordx4 v{vb}, {sr(sX0,4)}, s{sBG} offen offset:1024 lds', f'xb{b}'))]
        xs = []
        for i in range(7): xs += xdma(i)
        k.run(xs[:4]); t0 = k.clk
        if OPT['fine'] & 1: stamp('iss')
        def rest():
            gen_H()
            if not OPT['wt']: copy_ptrs(True); srds((sW1,))
            copy_ptrs(False); srds((sW2, sOUT, sWS, sDBG))
            e(f's_sub_u32 s{sRB}, 64, s{sP}'); e(f's_cmp_eq_u32 s{sP}, 0\ns_cselect_b32 s{sRB}, 32, s{sRB}')
            e(f's_mov_b32 s{sRETRY}, 20000'); e(f's_mov_b32 s{sLO}, 0x3f80'); e(f's_mov_b32 s{sHI}, 0x3f800000'); e(f's_mov_b32 s{sFF}, 0xffff0000')
            warm(0, 1)
            misc()
            e(f'v_lshrrev_b32 v{vx}, 1, v{t}'); e(f'v_xor_b32 v{vx}, v{vx}, v{t+1}'); e(f'v_lshlrev_b32 v{t}, 7, v{t}'); e(f'v_lshl_add_u32 v{t}, v{vx}, 4, v{t}')
            e(f's_add_u32 s{sT}, s{sWA}, 8192'); e(f'v_add_u32 v{vx}, s{sT}, v{t}'); e(f'v_xor_b32 v{vx+1}, 64, v{vx}')
            stream_setup(); gen_F(Ff)
            e(f'v_mov_b32 v{vX+2}, 0x10001')
        nx = OPT['nx']
        if OPT['wt']:
            copy_ptrs(True); srds((sW1,)); e(f's_sub_u32 s{sT}, s2, 32'); e(f's_lshl_b32 s{sT}, s{sT}, 2'); e(f's_add_u32 s{sT}, s{sT}, s{sW}'); e(f's_mul_i32 s{sT}, s{sT}, {14*128}')
            e(f'v_lshlrev_b32 v4, 7, v{vL}'); e('s_mov_b64 exec, 0x3fff'); k.vmem(f'buffer_load_dword v5, v4, {sr(sW1,4)}, s{sT} offen', 'touch'); e('s_mov_b64 exec, -1')
        if OPT.get('xprobe'):
            k.run(xs[4:nx]); ls('p.i'); k.wait(vm='xb0'); ls('p.0'); k.wait(vm='xb3'); ls('p.1'); k.run(xs[nx:]); k.wait(vm='xb1'); ls('p.3'); k.wait(vm='xb6'); ls('p.6'); xs = xs[:4]
        fill = k.weave(xs[4:nx], rec(rest), 64)
        while fill and k.clk < t0 + OPT['late']: fill.pop(0)()
        epl = Op('s', 16, lambda: (e(f's_mov_b32 s{sBG}, {WS_EP}'), e('s_mov_b64 exec, 1'), k.vmem(f'buffer_load_dwordx4 {vr(vSEL,4)}, off, {sr(sWS,4)}, s{sBG} sc1', 'ep'), e('s_mov_b64 exec, -1')), 1)
        k.bg += [Op(o.kind, o.cost, o.fn, 1) for o in xs[nx:]] + [epl] + img_ops(0, 1)
        k.seg(999, 999*OPT['pS'])
        k.run(fill)
        while len(k.bg) > 8: k.bg_step()
        k.refill = ws.refill
        k.wait(lg='Hw'); e('s_barrier')
        k.run(hread(0))
    else:
        t0 = k.clk
        fill = rec(lambda: (gen_H(), misc(), k.wait(lg='Hw'), e('s_barrier'), k.run(hread(0)), gen_F(Ff)))
        while fill and k.clk < t0 + OPT['xd']: fill.pop(0)()
        if OPT['xack']: k.wait(vm='xst')
        stamp('A1.ack')
        ld = rec(lambda: x2_loads(0)); ld = ld[:OPT['ssp']] + rec(st_load) + ld[OPT['ssp']:]
        k.run(ld[:4])
        k.run(k.weave(ld[4:11], fill, 60))
        later = ld[11:] + img_ops(1, 1)
    stamp(f'A{half}.consts')
    def xread(i):
        b = BORD[i]
        def g(h):
            k.wait(vm=f'xb{b}'); k.ds(f'ds_read_b128 {vr(XF(2*b+h),4)}, v{vx+h} offset:{2048*i}', f'xr{i}')
            if h: ws.limit = 5 + i if i < 6 else 56
        return [Op('ds', 8, lambda: g(0)), Op('ds', 4, lambda: g(1))]
    def xchk(k0, k1_, ss=False):
        d = ones
        def chk():
            r = [XF(x) for kp in range(k0, k1_ + 1) for x in (kp, kp + 7)]
            if ss:
                e(f'v_cndmask_b32 v{d+2}, 0, v{d+2}, {sr(sMK,2)}'); e(f'v_cndmask_b32 v{d+3}, 0, v{d+3}, {sr(sMK,2)}'); r += [d, d + 1, d + 2, d + 3]
            e(f'v_max_u32 v{t+1}, v{r[0]}, v{r[1]}')
            for i in range(2, len(r), 2): e(f'v_max3_u32 v{t+1}, v{t+1}, v{r[i]}, v{r[i+1]}')
            e(f'v_cmp_eq_u32 vcc, -1, v{t+1}')
        return rec(lambda: (k.wait(vm=f'x{k1_+7}'), chk(), retry_site(chk, lambda: (x2_loads(k0), k0 <= 2 and st_load()), f'x2_{k0}')))
    k.depth += 1
    if half == 0: k.run(xread(0) + xread(1))
    else: k.run(xchk(0, 1))
    k.depth -= 1
    def rstd():
        e(f'v_fmamk_f32 v{t}, v{t}, {fl(-1.0/448)}, v{aS}')
        e(f'v_min_f32 v{t}, 0, v{t}'); e(f'v_sub_f32 v{t}, {fl(1e-5)}, v{t}'); e(f'v_rsq_f32 v{t}, v{t}')
    def scale(tl, pk):
        a = aT[tl]
        if pk:
            if tl in aHi:
                for r in (0, 2): e(f'v_pk_add_f32 {vr(a+r,2)}, {vr(a+r,2)}, {vr(aHi[tl]+r,2)} neg_lo:[0,1] neg_hi:[0,1]')
            for r in (0, 2): e(f'v_pk_mul_f32 {vr(a+r,2)}, {vr(a+r,2)}, {vr(t,2)} op_sel_hi:[1,0]')
        else:
            for r in range(4): e(f'v_sub_f32 v{a+r}, v{a+r}, v{aHi[tl]+r}')
            for r in range(4): e(f'v_mul_f32 v{a+r}, v{a+r}, v{t}')
        for m in range(2): e(f'v_cvt_pk_f16_f32 v{a+m}, v{a+2*m}, v{a+2*m+1}')
        k.ds(f'ds_write_b64 v{vcw}, {vr(a,2)} offset:{2048*tl}', 'cw')
    sl = []; o0 = 0 if half else 4
    for kp in range(7):
        lo, hi = vr(XF(kp), 4), vr(XF(kp+7), 4)
        c = lambda a: vr(a, 4) if kp else '0'
        mm = lambda d, a, b, cc: f'v_mfma_f32_16x16x32_bf16 {vr(d,4)}, {a}, {b}, {cc}'
        ms = [] if half else [mm(aS, vr(ones, 4), lo, c(aS)), mm(aG, lo, lo, c(aG)), mm(aS, vr(ones, 4), hi, vr(aS, 4)), mm(aG, hi, hi, vr(aG, 4))]
        ms += [mm(aT[tl], vr(HR[kp%2]+4*tl, 4), lo, c(aT[tl])) for tl in (1, 3, 0, 2)]
        ms += [mm(aHi[tl], vr(HR[kp%2]+4*tl, 4), hi, c(aHi[tl])) if tl in aHi else mm(aT[tl], vr(HR[kp%2]+4*tl, 4), hi, vr(aT[tl], 4)) for tl in (1, 3, 0, 2)]
        if kp == 6: ms = ms[:o0] + [ms[o0 + i] for i in (0, 4, 1, 5, 2, 6, 3, 7)]
        cur = [[rec(lambda m=m: e(m)), [], []] for m in ms]; cur[0][1].append(Op('s', 0, lambda kp=kp: ls(f'a{half}.{kp}')))
        if half == 0: cur[0][0] = rec(lambda: k.wait(lg=f'xr{min(kp+1, 6)}')) + cur[0][0]
        if half == 0: cur[o0][0] = rec(lambda: k.wait(lg=f'H{kp}2')) + cur[o0][0]
        else:
            cur[0][0] = rec(lambda: k.wait(lg=f'H{kp}3')) + cur[0][0]; i2 = 4 if kp == 6 else 2; cur[i2][0] = rec(lambda: k.wait(lg=f'H{kp}2')) + cur[i2][0]
        if kp < 6:
            for i, o in enumerate(hread(kp + 1)): cur[o0 + i][1].append(o)
            if half == 0 and kp < 5:
                for i, o in enumerate(xread(kp + 2)): cur[2 + i][1].append(o)
        sl += cur
    if half == 0:
        k.bg_period = OPT['pA']
        ep = rec(lambda: (k.wait(vm='ep'), [e(f'v_readfirstlane_b32 s{sN+i}, v{vSEL+i}') for i in range(4)], [e(f's_not_b32 s{sN+i}, s{sN+i}') for i in range(4)]))
        for i, o in enumerate(ep): sl[68 + i][2].append(o)
        def stats():
            e(f'v_cndmask_b32 v{t}, 0, v{aG}, {sr(sMK,2)}')
            for r in range(1, 4): e(f'v_cndmask_b32 v{t}, v{t}, v{aG+r}, {sr(sMK+2*r,2)}')
            e(f'v_mul_f32 v{aS}, {fl(1.0/448)}, v{aS}')
            for sw in ('16', '32'):
                e(f'v_mov_b32 v{t+1}, v{t}')
                if sw == '16': e(f'v_mul_f32 v{aS}, v{aS}, v{aS}')
                e(f'v_permlane{sw}_swap_b32 v{t}, v{t+1}'); e(f'v_add_f32 v{t}, v{t}, v{t+1}')
            rstd()
        k.slots(sl[:80], nbg=OPT['nbgA'])
        if OPT['fine'] & 1: stamp(f'A{half}.mf')
        k.bg_period = OPT['pT']
        st = rec(stats)
        for i in range(80, 84): sl[i][2] += st[:2]; st = st[2:]
        k.slots(sl[80:], nbg=0)
        k.run(st)
    else:
        d = ones
        for at, o in (((12, 12, 12, 13, 13, 14, 14, 14, 15), xchk(2, 3, True)), ((29, 29, 30, 30, 31), xchk(4, 5)), ((46, 46, 47, 47), xchk(6, 6))):
            assert len(at) == len(o)
            for i, x in zip(at, o): sl[i][2].append(x)
        for i, x in zip((4, 5, 6, 7, 20, 21, 22, 23, 36, 37, 38), later): sl[i][1].append(x)
        def sums():
            e(f'v_add_f32 v{d}, v{d}, v{d+2}'); e(f'v_add_f32 v{d+1}, v{d+1}, v{d+3}'); e(f'v_permlane32_swap_b32 v{d}, v{d+1}'); e(f'v_add_f32 v{d}, v{d}, v{d+1}')
            e(f'v_mov_b32 v{d+1}, v{d}'); e(f'v_permlane16_swap_b32 v{d}, v{d+1}'); e(f'v_add_f32 v{aS}, v{d}, v{d+1}')
            e(f'v_mov_b32 v{t}, v{aS}'); e(f'v_permlane32_swap_b32 v{aS}, v{t}')
            e(f'v_mul_f32 v{aS}, {fl(1.0/448)}, v{aS}'); e(f'v_mul_f32 v{aS}, v{aS}, v{aS}'); rstd()
        idx = [16, 17, 19, 24, 25, 27, 28, 32, 34, 39, 40, 41, 42, 43, 44]
        for i, x in zip(idx, rec(sums)): sl[i][2].append(x)
        sc = rec(lambda: scale(1, False)); sl[53][2] += sc[:3]; sl[54][2] += sc[3:6]; sl[55][2] += sc[6:]
        k.slots(sl, nbg=1)
        if OPT['fine'] & 1: stamp(f'A{half}.mf')
    for tl in ((3, 0, 2) if half else (1, 3, 0, 2)): scale(tl, True)
    k.wait(lg='cw'); e('s_barrier')
    stamp(f'A{half}.hdft')
    cf = lambda tl, k1_: 72 + 8*tl + 4*k1_
    k.depth += 1
    so = [(0, 0), (2, 0), (0, 1), (2, 1), (1, 0), (3, 0), (1, 1), (3, 1)]
    for tl, k1_ in so:
        for h2 in range(2): k.ds(f'ds_read_b64_tr_b16 {vr(cf(tl,k1_)+2*h2,2)}, v{vtr} offset:{2048*tl + 1024*k1_ + 512*h2}', f'c{tl}{k1_}')
    if half == 0: k.burst(OPT['nS'])
    else: k.bg_flush()
    Dt = lambda tl: 104 + 4*tl
    def smf(tl, k1_):
        k.wait(lg=f'c{tl}{k1_}')
        e(f'v_mfma_f32_16x16x32_f16 {vr(Dt(tl),4)}, {vr(Ff+4*k1_,4)}, {vr(cf(tl,k1_),4)}, {vr(Dt(tl),4) if k1_ else 0}')
    def bfly(pp, u):
        kk1 = f'v{k1}' if pp == 0 else '-1.0'; nk1 = f'-v{k1}' if pp == 0 else '1.0'
        CA, SA, CB, SB = Dt(u) + 2*pp, Dt(u) + 2*pp + 1, Dt(2+u) + 2*pp, Dt(2+u) + 2*pp + 1
        o = 120 + 8*pp + 4*u
        e(f'v_fma_f32 v{o}, {kk1}, v{SB}, v{CA}'); e(f'v_fma_f32 v{o+1}, {kk1}, v{SA}, -v{CB}')
        e(f'v_fma_f32 v{o+2}, {nk1}, v{CA}, v{SB}'); e(f'v_fma_f32 v{o+3}, {kk1}, v{CB}, v{SA}')
        for m in range(2): e(f'v_cvt_pk_f16_f32 v{72+4*pp+2*u+m}, v{o+2*m}, v{o+2*m+1}')
        if half == 0:
            for m in range(2): e(f'v_bfi_b32 v{72+4*pp+2*u+m}, v{vX+2}, s{sN+2*u+m}, v{72+4*pp+2*u+m}')
    for x in so: smf(*x)
    if half == 0: e('s_barrier')
    bfly(0, 0); bfly(1, 0)
    for pp in range(2):
        bfly(pp, 1)
        k.vmem(f'buffer_store_dwordx4 {vr(72+4*pp,4)}, v{vu}, {sr(sWS,4)}, s{sT+4+pp} offen sc1', 'Ust')
    k.depth -= 1
    stamp(f'A{half}.ust')

def US(half): return 16 if half == 0 else 256
def TOFF(half): return 32 * 912 if half == 0 else 28672
def rowaddr(half, dst, j, t):
    if half == 0: e(f'v_mul_u32_u24 v{dst}, 912, v{j}')
    else:
        e(f'v_lshrrev_b32 v{t}, 4, v{j}'); e(f'v_mul_u32_u24 v{t}, 14336, v{t}'); e(f'v_and_b32 v{dst}, 15, v{j}'); e(f'v_lshl_add_u32 v{dst}, v{dst}, 4, v{t}')
def phB(half):
    us = US(half); RAW = lambda kap: 16 + 16*kap; ACC = lambda u, pq: 80 + 32*pq + 16*u; MF = 144
    vu, vd, vmP, vmQ = vA, vA + 1, vA + 2, vA + 3
    vu2, vm, tc, vbn = (vSa, vSb, vT1, vT1 + 1) if half else (vX, vX + 1, vX + 2, vX + 3)
    t = 88; t0 = k.clk
    save = k.refill
    if half == 0: k.burst(4); k.seg(OPT['nK'], OPT['pK']*OPT['nK'], 300)
    def tile0():
        e(f's_cmp_ge_u32 s{sW}, 2'); e(f's_cbranch_scc1 L_t0_{half}')
        bs = 128 if half == 0 else 2048
        if half == 0:
            e(f'v_and_b32 v{t}, 15, v{vL}'); e(f'v_lshl_add_u32 v{t}, s{sW}, 4, v{t}'); e(f'v_mul_u32_u24 v{t}, 912, v{t}')
            e(f'v_and_b32 v{t+1}, 48, v{vL}'); e(f'v_add_u32 v{t}, v{t}, v{t+1}')
        else: e(f's_mul_i32 s{sT}, s{sW}, 14336'); e(f'v_add_u32 v{t}, s{sT}, v{vL16}')
        e(f's_mul_i32 s{sT}, s{sG}, {bs}')
        for b in range(7):
            if b: e(f's_add_u32 s{sT}, s{sT}, {bs}'); e(f's_sub_u32 s{sT+1}, s{sT}, {7*bs}'); e(f's_min_u32 s{sT}, s{sT}, s{sT+1}')
            e(f'v_add_u32 v{t+1}, s{sT}, v{t}')
            for h in range(2): e(f'ds_write_b128 v{t+1}, {vr(XF(2*b+h),4)} offset:{L_X + h*bs//2}')
        e(f'L_t0_{half}:')
    k.call(tile0); ls(f'b{half}.t0')
    if half == 0: late_setup(); ws.cs_on = 4; ws.dmax = 39
    e(f'v_bfe_u32 v{t}, v{vL}, 2, 1'); e(f'v_bfe_u32 v{t+1}, v{vL}, 3, 2'); e(f'v_and_b32 v{t+2}, 3, v{vL}')
    e(f'v_lshl_add_u32 v{t+1}, v{t}, 2, v{t+1}'); e(f'v_lshl_add_u32 v{t+1}, v{t+1}, 2, v{t+2}'); e(f's_mul_i32 s{sT+2}, s{sW}, 448')
    e(f'v_lshl_add_u32 v{t+1}, v{t+1}, 4, s{sT+2}'); e(f'v_subrev_u32 v{t}, 1792, v{t+1}'); e(f'v_min_u32 v{t+1}, v{t}, v{t+1}')
    e(f'v_lshrrev_b32 v{t+2}, 5, v{vL}'); e(f'v_mul_u32_u24 v{t}, 1792, v{t+2}'); e(f'v_add_u32 v{vu}, v{t}, v{t+1}'); e(f'v_add_u32 v{vu2}, 7168, v{vu}')
    e(f's_mul_i32 s{sT}, s{sP}, 57344'); e(f's_add_u32 s{sT}, s{sT}, {WS_U2 if half else WS_U1}')
    for i in range(4): e(f's_add_u32 s{sT+1}, s{sG}, {i}'); e(f's_and_b32 s{sT+1}, s{sT+1}, 3'); e(f's_mul_i32 s{sT+1}, s{sT+1}, 14336'); e(f's_add_u32 s{sUO+i}, s{sT}, s{sT+1}')
    def adr():
        j, a = t + 3, t + 4
        e(f'v_and_b32 v{j}, 31, v{vL}'); e(f's_mul_i32 s{sT}, s{sW}, 7'); e(f'v_lshl_add_u32 v{a}, v{t+2}, 2, s{sT}')
        rowaddr(half, vd, j, t); e(f'v_mul_u32_u24 v{t+1}, {us}, v{a}'); e(f'v_add_u32 v{vd}, v{vd}, v{t+1}')
        e(f'v_sub_u32 v{a}, {52*us}, v{t+1}')
        e(f's_cmp_eq_u32 s{sP}, 0\ns_cselect_b32 s{sT}, 32, 63\ns_cselect_b32 s{sT+1}, 31, 63\ns_cselect_b32 s{sT+2}, 63, 31')
        e(f'v_sub_u32 v{t+5}, s{sT}, v{j}'); e(f'v_and_b32 v{t+5}, s{sT+1}, v{t+5}'); rowaddr(half, vmP, t + 5, t); e(f'v_add_u32 v{vmP}, v{vmP}, v{a}')
        e(f'v_sub_u32 v{t+5}, s{sT+2}, v{j}'); rowaddr(half, vmQ, t + 5, t); e(f'v_add_u32 v{vmQ}, v{vmQ}, v{a}')
        e(f's_cmp_eq_u32 s{sW}, 0\ns_cselect_b32 s{sMK}, 0, -1'); e(f's_mov_b32 s{sMK+1}, -1')
        e(f'v_add_u32 v{vm}, {L_M}, v{vL16}')
        e(f's_mul_i32 s{sT}, s{sW}, {7*us}'); e(f'v_mul_u32_u24 v{t+2}, {3*us}, v{t+2}'); e(f'v_subrev_u32 v{vbn}, s{sT}, v{vd}'); e(f'v_sub_u32 v{vbn}, v{vbn}, v{t+2}')
    if half == 0:
        adr(); gen_M(96); e(f's_mov_b32 s{sMK+2}, 0xfffefffe')
        warm(1, 5)
        k.burst(k.quota)
    else:
        def ichk():
            e(f's_mul_i32 s{sT}, s{sW}, 7168'); e(f'v_add_u32 v{t}, s{sT}, v{vL16}')
            for i in range(7): k.ds(f'ds_read_b32 v{t+2+i}, v{t} offset:{L_X + 28672 + 1024*i}', 'ic')
            k.wait(lg='all')
            for i in range(3): e(f'v_max3_u32 v{t+2}, v{t+2}, v{t+3+2*i}, v{t+4+2*i}')
            e(f'v_cmp_eq_u32 vcc, -1, v{t+2}')
    k.refill = None; k.bg_flush()
    if OPT['uack']: k.wait(vm='Ust')
    stamp(f'B{half}.ack')
    def uloads(first, last=4):
        for kap in range(first, last):
            for jj in range(4):
                k.vmem(f'buffer_load_dwordx4 {vr(RAW(kap)+4*jj,4)}, v{vu if jj < 2 else vu2}, {sr(sWS,4)}, s{sUO+kap} offen offset:{3584*(jj%2)} sc1', f'U{kap}{jj}')
    ld = rec(lambda: uloads(0))
    n0 = OPT['n0']
    if half == 0:
        fill = []
        while ws.nd < min(ws.dmax, ws.ni): fill += ws.drain_ops()
        for o in ld[:n0]:
            k.run([o] + fill[:4]); fill = fill[4:]; ws.cs_flush(2, 1)
        k.run(fill)
        k.wait(vm='img1', lg='all'); e('s_barrier')
    else:
        k.run(ld[:4])
        k.run(k.weave(ld[4:n0], rec(lambda: (adr(), k.wait(vm='img1'), ichk())), 56))
        retry_site(ichk, lambda: k.run(img_ops(1, 1)), 'img')
        e('s_barrier')
    mread = lambda kap, pq: k.ds(f'ds_read_b128 {vr(MF+4*pq,4)}, v{vm} offset:{4096*pq + 1024*kap}', f'M{pq}')
    mread(0, 0); mread(0, 1)
    if half == 0: ws.cs_flush(); ws.cs_on = 0; ws.lag = 99
    rest = ld[n0:]
    XU = lambda pq, b, mir: RAW(2*pq + (b >> 1)) + 8*(b & 1) + 4*mir
    def xread(pq, b):
        k.ds(f'ds_read_b128 {vr(XU(pq,b,0),4)}, v{vd} offset:{L_X + pq*TOFF(half) + b*us}', f'xd{pq}{b}')
        k.ds(f'ds_read_b128 {vr(XU(pq,b,1),4)}, v{vmQ if pq else vmP} offset:{L_X + (3-b)*us}', f'xm{pq}{b}')
    def uchk(kap):
        R = RAW(kap)
        if half: e(f'v_max3_u32 v{tc}, v{R}, v{R+4}, v{R+8}'); e(f'v_max_u32 v{tc}, v{tc}, v{R+12}'); e(f'v_cmp_eq_u32 vcc, -1, v{tc}')
        else:
            e(f'v_xor_b32 v{tc}, s{sN}, v{R}')
            for i in range(1, 16): e(f'v_bitop3_b32 v{tc}, v{tc}, v{R+i}, s{sN + i%4} bitop3:0xf6')
            e(f'v_and_b32 v{tc}, 0x10001, v{tc}'); e(f'v_cmp_ne_u32 vcc, 0, v{tc}')
    def ureload(kap):
        if half == 0 or not OPT['usel']: return uloads(kap)
        uloads(kap, kap + 1)
        if kap < 3: e('s_waitcnt vmcnt(4)')
        for k2 in range(kap + 1, 4):
            l = k.lab('have'); uchk(k2); e(f's_cbranch_vccz {l}'); uloads(k2, k2 + 1); e(f'{l}:')
    for kap in range(4):
        R = RAW(kap)
        ls(f'b{half}.w{kap}')
        sw = lambda i, jx, R=R: e(f'v_swap_b32 v{R+4*i+jx}, v{R+4*jx+i}')
        if half:
            for jj in range(4):
                k.wait(vm=f'U{kap}{jj}')
                if kap == 0: k.run(rest[:2 if jj == 3 else 1]); rest = rest[2 if jj == 3 else 1:]
                if jj == 3: assert not rest; ls(f'b{half}.u{kap}')
                e(f'v_max_u32 v{tc}, v{tc}, v{R+4*jj}' if jj else f'v_mov_b32 v{tc}, v{R}')
                if jj == 3: e(f'v_cmp_eq_u32 vcc, -1, v{tc}'); sw(0, 3)
                else:
                    for i in range(jj): sw(i, jj)
            retry_site(lambda kap=kap: uchk(kap), lambda kap=kap: ureload(kap), f'U{half}_{kap}', after=lambda sw=sw: (sw(0, 1), sw(0, 2), sw(1, 2), sw(0, 3)))
        else:
            k.wait(vm=f'U{kap}3'); ls(f'b{half}.u{kap}')
            if kap == 0: k.run(rest); k.refill = save; k.seg(999, 999*OPT['pU'], 300)
            uchk(kap); retry_site(lambda kap=kap: uchk(kap), lambda kap=kap: ureload(kap), f'U{half}_{kap}')
        if kap == 3: stamp(f'B{half}.Uin')
        SP = R if half else 208 + 16*(kap & 1)
        def mf(u, pq):
            A = ACC(u, pq); e(f'v_mfma_f32_32x32x16_f16 {vr(A,16)}, {vr(SP+4*(2*u+pq),4)}, {vr(MF+4*pq,4)}, {vr(A,16) if kap else 0}')
        if half:
            k.wait(lg='M0')
            mf(0, 0); sw(2, 3); sw(1, 3); k.wait(lg='M1'); mf(1, 0)
            if kap < 3: mread(kap + 1, 0)
            mf(0, 1); mf(1, 1)
        else:
            assert ws.nd <= 39
            mv = lambda d: [e(f'v_and_b32 v{SP+4*d+jj}, s{sMK+2}, v{R+4*jj+d}') for jj in range(4)]
            mv(0); mv(2); k.wait(lg='M0'); mf(0, 0); mv(1); mf(1, 0)
            if kap < 3: mread(kap + 1, 0)
            mv(3); k.wait(lg='M1'); mf(0, 1); mf(1, 1)
        if kap < 3: mread(kap + 1, 1)
        xread(kap >> 1, 2*(kap & 1)); xread(kap >> 1, 2*(kap & 1) + 1)
    if half == 0: ws.lag = OPT['lag']; ws.dmax = 43; k.bg_period = OPT['pE']
    T = MF
    sel = lambda hi: f's{sHI if hi else sLO}'
    for pq in range(2):
        Y = lambda b, n: ACC(n & 1, pq) + 4*b + (n >> 1)
        e(f'v_mov_b32 v{vu}, v{Y(0,0)}'); e(f'v_cndmask_b32 v{Y(0,0)}, 0, v{Y(0,0)}, {sr(sMK,2)}')
        for b in range(4):
            if b == 3: k.depth += 1; e('s_mov_b32 exec_hi, 0')
            xd, xm = XU(pq, b, 0), XU(pq, b, 1); ls(f'e{half}.{pq}{b}')
            k.wait(lg=f'xm{pq}{b}')
            for n in range(8): e(f'v_dot2_f32_bf16 v{T+n}, v{xd + (n >> 1)}, {sel(n & 1)}, v{Y(b,n)}')
            e(f'v_dot2_f32_bf16 v{Y(b,0)}, v{xm}, {sel(0)}, v{Y(b+1,0) if b < 3 else tc}')
            for m in range(4): e(f'v_cvt_pk_bf16_f32 v{xd+m}, v{T+2*m}, v{T+2*m+1}')
            k.ds(f'ds_write_b128 v{vd}, {vr(xd,4)} offset:{L_X + pq*TOFF(half) + b*us}', 'xw')
            for m in range(1, 8): e(f'v_dot2c_f32_bf16 v{Y(b,8-m)}, {sel(m & 1)}, v{xm + (m >> 1)}')
            if b == 0: e(f'v_permlane32_swap_b32 v{vu}, v{tc}')
            for m in range(4): e(f'v_cvt_pk_bf16_f32 v{xm+m}, v{Y(b,(8-2*m)%8)}, v{Y(b,7-2*m)}')
            k.ds(f'ds_write_b128 v{vmQ if pq else vmP}, {vr(xm,4)} offset:{L_X + (3-b)*us}', 'xw')
        e('s_mov_b32 exec_hi, -1'); k.depth -= 1

def ffn(half):
    us = US(half); toff = TOFF(half); ls(f'e{half}.x')
    vb, vs, vst, vh = vA, vA + 1, vA + 2, vA + 3
    BR = lambda i: B[5] + 4*(i % 3); MFR = B[5] + 12; t = B[5] + 14
    vres = B[4]
    assert not OPT['rot']
    e(f'v_mov_b32 v{vb}, v{vT1 + 1 if half else vX + 3}')
    def adr0():
        e(f'v_lshrrev_b32 v{t}, 3, v{vL}'); e(f's_lshl_b32 s{sT}, s{sW}, 3'); e(f'v_add_u32 v{t}, s{sT}, v{t}'); rowaddr(half, vs, t, t + 1)
        e(f'v_lshlrev_b32 v{vh}, 3, v{t}')
        e(f'v_and_b32 v{t}, 7, v{vL}'); e(f'v_lshl_add_u32 v{vs}, v{t}, {us.bit_length()-1}, v{vs}')
    adr0()
    def more():
        e(f's_mul_i32 s{sT+1}, s{sG}, {8*us}')
        if half == 0:
            e(f'v_and_b32 v{t}, 7, v{vL}'); e(f'v_add_u32 v{t}, s{sT}, v{t}'); rowaddr(half, vres, t, t + 1)
            e(f'v_lshrrev_b32 v{t}, 3, v{vL}'); e(f'v_lshl_add_u32 v{vres}, v{t}, 4, v{vres}'); e(f'v_add_u32 v{vres}, s{sT+1}, v{vres}')
        else: e(f'v_add_u32 v{vres}, s{sT+1}, v{vs}')
        e(f'v_and_b32 v{vst}, 31, v{vL}'); e(f'v_lshlrev_b32 v{vst}, 3, v{vst}')
        e(f's_mov_b32 s{sMK}, -1'); e(f's_mov_b32 s{sMK+1}, 0'); e(f's_mov_b32 s{sMK+2}, 0x80008000')
        if half == 0:
            def ep():
                e(f's_lshl_b32 s{sT+1}, s2, 2'); e(f's_add_u32 s{sT+1}, s{sT+1}, s{sW}'); e(f's_cmp_eq_u32 s{sT+1}, 128'); e('s_cbranch_scc1 L_epoch'); e('L_epoch_ret:')
                k.begin_tail(); e('L_epoch:')
                for i in range(4): e(f'v_mov_b32 v{B[7]+8+i}, s{sN+i}')
                e(f's_mov_b32 s{sT+1}, {WS_EP}'); e('s_mov_b64 exec, 1'); e(f'buffer_store_dwordx4 {vr(B[7]+8,4)}, off, {sr(sWS,4)}, s{sT+1} sc1'); e('s_mov_b64 exec, -1'); e('s_branch L_epoch_ret')
                k.end_tail()
            k.call(ep, 's', 32)
    vh1 = vT1
    V2 = OPT['v2'] and half == 0
    if half == 0 and not V2: ws.force(-1); ws.cs_on = 2; k.seg(999, 999*OPT['perG'])
    k.wait(lg='xw'); e('s_barrier')
    stamp(f'B{half}.end')
    if stop(f'B{half}', 61440): return True
    hvo = lambda T: vh1 if T else vL16
    MF2 = [MFR, B[6] if V2 else MFR]
    resrd = lambda T: k.ds(f'ds_read_b128 {vr(vR+4*T,4)}, v{vres} offset:{L_X + T*toff}', 'res')
    if V2:
        k.bg_period = OPT['pP']
        SX_ = lambda T, j: B[0] + 28*T + 4*j; A_ = B[7]
        k.depth += 1
        for T in range(2):
            for j in range(7): k.ds(f'ds_read_b128 {vr(SX_(T,j),4)}, v{vs} offset:{L_X + T*toff + 8*j*us}', f'S{T}{j}')
        k.depth -= 1
        more(); resrd(0); resrd(1); e(f's_mov_b32 s{sT+2}, 0x3f803f80')
        for T in range(2):
            for j in range(7):
                k.wait(lg=f'S{T}{j}')
                for m in range(4):
                    x = SX_(T, j) + m
                    if j == 0 and m == 0: e(f'v_dot2_f32_bf16 v{A_+2*T}, v{x}, s{sT+2}, 0'); e(f'v_dot2_f32_bf16 v{A_+2*T+1}, v{x}, v{x}, 0')
                    else: e(f'v_dot2c_f32_bf16 v{A_+2*T}, s{sT+2}, v{x}'); e(f'v_dot2c_f32_bf16 v{A_+2*T+1}, v{x}, v{x}')
        for c in ('quad_perm:[1,0,3,2]', 'quad_perm:[2,3,0,1]', 'row_half_mirror'):
            for r in range(4): e(f'v_add_f32_dpp v{A_+r}, v{A_+r}, v{A_+r} {c} row_mask:0xf bank_mask:0xf')
        for T in range(2):
            s1, s2, lo = A_ + 2*T, A_ + 2*T + 1, A_ + 4
            e(f'v_mul_f32 v{s1}, {fl(-1.0/448)}, v{s1}'); e(f'v_mul_f32 v{lo}, v{s1}, v{s1}'); e(f'v_fmamk_f32 v{s2}, v{s2}, {fl(-1.0/448)}, v{lo}')
            e(f'v_min_f32 v{s2}, 0, v{s2}'); e(f'v_sub_f32 v{s2}, {fl(1e-5)}, v{s2}'); e(f'v_rsq_f32 v{s2}, v{s2}')
        e('s_nop 0')
        for T in range(2): k.ds(f'ds_write_b64 v{vh}, {vr(A_+2*T,2)} offset:{L_ST + 256*T}', 'stw')
        ls('s.0'); ws.cs_on = 4; ws.cs_flush()
        while ws.sent < OPT['wG1']: k.burst(1)
        ws.force(-1); ws.cs_on = 2; k.seg(999, 999*OPT['perG']); ls('s.1')
    def mfrags():
        ops = rec(lambda: (k.wait(lg='stw'), e('s_barrier'), [k.ds(f'ds_read_b32 v{B[7]+T}, v{vst} offset:{L_ST + 256*T}', 'm') for T in range(2)])) + [None, None, None]
        for T in range(2):
            m, d = B[7] + T, MF2[T]
            ops += rec(lambda: (k.wait(lg='m'), e(f'v_cndmask_b32 v{m}, 0, v{m}, {sr(sMK,2)}'), e(f'v_cvt_pk_bf16_f32 v{d}, v{m}, v{m}'),
                    e(f'v_and_b32 v{t}, s{sFF}, v{d}'), e(f'v_sub_f32 v{m}, v{m}, v{t}'), e(f'v_cvt_pk_bf16_f32 v{d+1}, v{m}, 0')))
        return ops
    ACC1 = lambda T, u: B[2*T + u]
    def bread(i):
        q = i % 28
        def f():
            k.ds(f'ds_read_b128 {vr(BR(i),4)}, v{vb} offset:{L_X + (i//28)*toff + 2*q*us}', f'B{i}')
        return Op('ds', 4, f)
    k.depth += 1; bread(0)(); bread(1)(); k.depth -= 1
    def stats_ops(T):
        SB = lambda j: B[6] + 4*(j % 2); s1, s2, lo, hi = B[6] + 8, B[6] + 9, B[6] + 10, B[6] + 12
        rd = lambda j: k.ds(f'ds_read_b128 {vr(SB(j),4)}, v{vs} offset:{L_X + T*toff + 8*j*us}', f'S{T}{j}')
        ops = rec(lambda: (rd(0), rd(1))) + [None, None]
        def body():
            for j in range(1 if OPT['nostats'] else 7):
                k.wait(lg=f'S{T}{j}')
                for m in range(4):
                    l_, h_ = lo + m % 2, hi + m % 2
                    e(f'v_lshlrev_b32 v{l_}, 16, v{SB(j)+m}'); e(f'v_and_b32 v{h_}, s{sFF}, v{SB(j)+m}')
                    if m == 3 and j + 2 < 7: rd(j + 2)
                    if j == 0 and m == 0: e(f'v_add_f32 v{s1}, v{l_}, v{h_}'); e(f'v_mul_f32 v{s2}, v{l_}, v{l_}'); e(f'v_fmac_f32 v{s2}, v{h_}, v{h_}')
                    else: e(f'v_add_f32 v{s1}, v{s1}, v{l_}'); e(f'v_fmac_f32 v{s2}, v{l_}, v{l_}'); e(f'v_add_f32 v{s1}, v{s1}, v{h_}'); e(f'v_fmac_f32 v{s2}, v{h_}, v{h_}')
        ops += rec(body)
        for c in ('quad_perm:[1,0,3,2]', 'quad_perm:[2,3,0,1]', 'row_half_mirror'):
            ops += rec(lambda: [e('s_nop 0')] + [e(f'v_add_f32_dpp v{r}, v{r}, v{r} {c} row_mask:0xf bank_mask:0xf') for r in (s1, s2)])
        ops += rec(lambda: (e(f'v_mul_f32 v{s1}, {fl(-1.0/448)}, v{s1}'), e(f'v_mul_f32 v{lo}, v{s1}, v{s1}'), e(f'v_fmamk_f32 v{s2}, v{s2}, {fl(-1.0/448)}, v{lo}'),
                e(f'v_min_f32 v{s2}, 0, v{s2}'), e(f'v_sub_f32 v{s2}, {fl(1e-5)}, v{s2}'), e(f'v_rsq_f32 v{s2}, v{s2}'))) + [None]
        ops += rec(lambda: k.ds(f'ds_write_b64 v{vh}, {vr(s1,2)} offset:{L_ST + 256*T}', 'stw')) + [None, None]
        ops += rec(lambda: (k.wait(lg='stw'), e('s_barrier'), k.ds(f'ds_read_b32 v{t}, v{vst} offset:{L_ST + 256*T}', 'm'))) + [None, None, None]
        ops += rec(lambda: (k.wait(lg='m'), e(f'v_cndmask_b32 v{t}, 0, v{t}, {sr(sMK,2)}'), e(f'v_cvt_pk_bf16_f32 v{MFR}, v{t}, v{t}'),
                e(f'v_and_b32 v{t+1}, s{sFF}, v{MFR}'), e(f'v_sub_f32 v{t}, v{t}, v{t+1}'), e(f'v_cvt_pk_bf16_f32 v{MFR+1}, v{t}, 0')))
        return ops
    OWN = [B[4], B[6]]
    def bump(c): k.bg_next = max(k.bg_next, k.clk - 40) + c
    def ownfix(T):
        if half == 0:
            for i in range(4): e(f'v_xor_b32 v{OWN[T]+4*i+3}, s{sMK+2}, v{OWN[T]+4*i+3}')
    def epi1(T):
        ng = '-' if half else ''
        for u in range(2):
            for be in range(2):
                d = OWN[T] + 8*u + 4*be; a = ACC1(T, u) + 8*be
                for m in range(4):
                    ng = '-' if (half or m == 3) else ''; e(f'v_cvt_pk_bf16_f32 v{d+m}, {ng}v{a+2*m}, {ng}v{a+2*m+1}')
                for m in range(4): e(f'v_pk_max_u16 v{d+m}, v{d+m}, s{sMK+2}' if (half or m == 3) else f'v_pk_max_i16 v{d+m}, v{d+m}, 0')
                if OPT['noh'] & (4 << T): continue
                k.call(lambda d=d, u=u, be=be: (k.vmem(f'buffer_store_dwordx4 {vr(d,4)}, v{hvo(T)}, {sr(sWS,4)}, s{sHS} offen offset:{1024*(2*u+be)} sc1', 'hst'), bump(96)), 'vm', 24)
    HB = {(0, 0): B[4], (0, 1): B[0], (0, 2): B[1], (0, 3): B[7], (0, 4): B[4], (0, 5): B[0], (0, 6): B[1],
          (1, 0): B[6], (1, 1): B[7], (1, 2): B[4], (1, 3): B[6], (1, 4): B[7], (1, 5): B[4], (1, 6): B[6]}
    inflight = []
    def hload(T, jp, i, track=True):
        def f():
            if OPT['noh'] & 1: return
            k.vmem(f'buffer_load_dwordx4 {vr(HB[T,jp]+4*i,4)}, v{hvo(T)}, {sr(sWS,4)}, s{sHS+jp} offen offset:{1024*i} sc1', f'h{T}{jp}{i}')
            if track: inflight.append((T, jp, i)); bump(OPT['perH'] if len(inflight) > 12 else 60)
        return Op('vm', 4, f)
    prevuse = {(0, 4): (0, 0), (0, 5): (0, 1), (0, 6): (0, 2), (1, 1): (0, 3), (1, 2): (0, 4), (1, 3): (1, 0), (1, 4): (1, 1), (1, 5): (1, 2), (1, 6): (1, 3)}
    order = [(0, 1), (0, 2), (0, 3), (0, 4), (0, 5), (1, 1), (0, 6)] + [(1, j) for j in range(2, 7)] if OPT['hord'] else [(T, j) for T in range(2) for j in range(1, 7)]
    hq = []
    for T, jp in order:
        for i in range(4):
            rdy = OPT['hq_slot' if half else 'hq0'] if T == 0 else 116 + OPT['t1_slot']
            if (T, jp) in prevuse: pT, pj = prevuse[T, jp]; rdy = max(rdy, 116 + 56*pT + 8*pj + 2*i + 1)
            hq.append((rdy, 116 + 56*T + 8*jp - OPT['hdl'] - 2*(3 - i), T, jp, i))
    def hpace(slot):
        def f():
            if not hq or OPT['noh'] & 1: return
            due = min(x[1] for x in hq[:8]) <= slot
            wfirst = half == 0 and ws.sent < 56 and ws.use(ws.sent) - OPT['lead'] <= hq[0][1]
            if V2 and slot < 116: wfirst = ws.sent < OPT['wG2']; due = False
            if hq[0][0] <= slot and ((k.clk >= k.bg_next and not wfirst) or due):
                x = hq.pop(0); hload(*x[2:])()
                if OPT['verbose'] > 2: print(f'; h{x[2:]} at slot {slot} use {116 + 56*x[2] + 8*x[3]}', file=sys.stderr)
        return Op('vm', 0, f)
    def g1_slots(T):
        sl = []
        for n in range(28):
            i = 28*T + n
            for u in range(2):
                A = ACC1(T, u)
                def mf(A=A, n=n, u=u, i=i):
                    k.wait(lg=f'B{i}')
                    if half == 0 and T == 0: assert ws.done > n; k.wait(lg=f'tr{n}')
                    e(f'v_mfma_f32_32x32x16_bf16 {vr(A,16)}, {w1f(n,u)}, {vr(BR(i),4)}, {vr(A,16) if n else 0}')
                pre = [bread(i + 2)] if (u == 0 and i + 2 < 56) else []
                if u == 0 and n % 7 == 0: pre.append(Op('s', 0, lambda n=n: ls(f'c{half}.{T}{n//7}')))
                if half == 0 and u == 1: pre.append(Op('ds', 0, lambda n=n: ws.force(58*T + 2*n + 1)))
                sl.append([[Op('mfma', 8, mf)], pre, []])
        return sl
    def corr(T): return [[rec(lambda: e(f'v_mfma_f32_32x32x8_bf16 {vr(ACC1(T,u),16)}, {vr(vCS+2*u,2)}, {vr(MF2[T],2)}, {vr(ACC1(T,u),16)}')), [], []] for u in range(2)]
    st0 = stats_ops(0); st1 = stats_ops(1)
    sl = g1_slots(0)
    res = [rec(lambda: k.ds(f'ds_read_b128 {vr(vR+4*T,4)}, v{vres} offset:{L_X + T*toff}', 'res')) for T in range(2)]
    nbg = 4 if V2 else OPT['nbgG']
    k.slots(sl, mfrags() if V2 else st0[:1] + rec(more) + st0[1:2] + st0[4:18] + res[0] + st0[18:43] + res[1] + st0[43:], 54, nbg=nbg)
    if half == 0:
        k.depth += 1; ws.cs_on = 0; k.bg_flush(); log('cs left'); ws.cs_flush(); assert ws.nc == 56 and ws.nd <= 43; cs_finish(); ws.dmax = 45; k.depth -= 1
    log('g1(0) done')
    if OPT['fine'] & 2: stamp(f'C{half}.g10')
    sl = corr(0) + g1_slots(1)
    for n in range(len(sl)): sl[n][1].append(hpace(56 + n))
    q = st1[:OPT['e0']] + rec(lambda: epi1(0)) + st1[OPT['e0']:OPT['e0']+12] + rec(lambda: ownfix(0)) + st1[OPT['e0']+12:] + rec(lambda: e(f'v_add_u32 v{vh1}, {7*16384}, v{vL16}'))
    if V2: q = rec(lambda: e('s_nop 4')) + [None] + rec(lambda: e('s_nop 4')) + [None] + rec(lambda: epi1(0)) + [None, None] + rec(lambda: (ownfix(0), e(f'v_add_u32 v{vh1}, {7*16384}, v{vL16}')))
    if half == 0: sl[OPT['hq0'] - 57][1] += rec(lambda: cnt_load(vT1 + 1))
    k.slots(sl, q, 18 if V2 else 57, nbg=nbg)
    k.slots(corr(1))
    stamp(f'C{half}.g1')
    k.depth += 1
    while len(inflight) < OPT['hB%d' % half]: hload(*hq.pop(0)[2:])()
    epi1(1)
    if V2:
        ls('s.2')
        while ws.sent < OPT['wG2']: k.burst(1)
        while len(inflight) < OPT['hG2']: hload(*hq.pop(0)[2:])()
        k.bg_next = k.clk; ls('s.3')
    k.depth -= 1
    if OPT['fine'] & 4: stamp(f'C{half}.epi'); k.wait(vm='h023'); stamp(f'C{half}.h02'); k.wait(vm='all'); stamp(f'C{half}.ack')
    if stop(f'C{half}'): return True
    ACC2 = lambda T, v: (B[2 + v] if T == 0 else B[v])
    ORD = [[(kk, v) for kk in range(28) for v in range(2)] for T in range(2)]
    ORD[1] = ORD[1][:48] + [(kk, v) for v in range(2) for kk in range(24, 28)]
    CUR = [0]
    AR = lambda kk, v: B[5] + 4*(ORD[CUR[0]].index((kk, v)) % 4)
    def aread(kk, v, h2):
        so = ((28 + kk) % NSLOT) * 2048
        def f():
            assert ws.sent > 28 + kk; k.wait(vm=f'w{28+kk}')
            k.ds(f'ds_read_b64_tr_b16 {vr(AR(kk,v)+2*h2,2)}, v{vT2+v} offset:{so + 1024*h2}', f'A{kk}{v}')
        return Op('ds', 4, f)
    tc = vb
    def hcheck(T, jp):
        R = HB[T, jp]
        def part(i):
            r = R + 4*i
            e(f'v_xor_b32 v{r+3}, s{sMK+2}, v{r+3}')
            e(f'v_or3_b32 v{tc}, v{r}, v{r+1}, v{tc}' if i else f'v_or_b32 v{tc}, v{r}, v{r+1}'); e(f'v_or3_b32 v{tc}, v{r+2}, v{r+3}, v{tc}')
        def fin(): e(f'v_and_b32 v{tc}, s{sMK+2}, v{tc}'); e(f'v_cmp_ne_u32 vcc, 0, v{tc}')
        def chk():
            if half == 0: [part(i) for i in range(4)]; fin()
            else: e(f'v_bitop3_b32 v{tc}, v{R}, v{R+4}, v{R+8} bitop3:0x80'); e(f'v_and_b32 v{tc}, v{tc}, v{R+12}'); e(f'v_cmp_le_i32 vcc, 0, v{tc}')
        def br():
            todo = [x for x in inflight if (x[:2] == (T, jp) if OPT['hsel'] else x[:2] >= (T, jp))]
            retry_site(chk, lambda: [hload(*x, track=False)() for x in todo], f'h{half}_{T}{jp}')
        def w(i):
            assert (T, jp, i) in inflight, (T, jp, i); k.wait(vm=f'h{T}{jp}{i}')
        o = [[] for _ in range(8)]
        if half: o[6] = [Op('v', 16, lambda: (w(3), chk()))]
        else:
            for i in range(4): o[2 + i] = [Op('v', 16, lambda i=i: (w(i), part(i)))]
            o[6] = [Op('v', 8, fin)]
        o[7] = [Op('s', 20, br)]
        return o
    RS = 1088; vrr, vo, vrwb = vs, vh, vT1 + 1
    def g2addr():
        tau, cc = B[5], B[5] + 1
        if half == 0: e(f'v_and_b32 v{tau}, 7, v{vL}'); e(f'v_lshrrev_b32 v{cc}, 3, v{vL}')
        else: e(f'v_lshrrev_b32 v{tau}, 3, v{vL}'); e(f'v_and_b32 v{cc}, 7, v{vL}')
        e(f's_lshl_b32 s{sT}, s{sW}, 3'); e(f'v_add_u32 v{tau}, s{sT}, v{tau}')
        e(f'v_mul_u32_u24 v{vrr}, {RS}, v{cc}'); e(f'v_lshl_add_u32 v{vrr}, v{tau}, 4, v{vrr}')
        e(f'v_lshlrev_b32 v{vst}, 3, v{tau}')
        if half == 0:
            rowaddr(1, vo, tau, cc + 1); e(f'v_lshl_add_u32 v{vo}, v{cc}, 8, v{vo}')
            for T in range(2):
                e(f's_mul_i32 s{sMK+4+T}, s{sRB if T else sP}, 28672'); e(f's_lshl_b32 s{sT}, s{sG}, 11'); e(f's_add_u32 s{sMK+4+T}, s{sMK+4+T}, s{sT}'); e(f's_add_u32 s{sMK+4+T}, s{sMK+4+T}, {WS_X2}')
        else:
            e(f'v_mul_u32_u24 v{vo}, 57344, v{tau}'); e(f'v_lshl_add_u32 v{vo}, v{cc}, 4, v{vo}')
            for T in range(2):
                e(f's_mul_i32 s{sMK+4+T}, s{sRB if T else sP}, 896'); e(f's_lshl_b32 s{sT}, s{sG}, 7'); e(f's_add_u32 s{sMK+4+T}, s{sMK+4+T}, s{sT}')
        e(f's_mul_i32 s{sT}, s{sW}, {8*RS}'); e(f'v_add_u32 v{vrwb}, s{sT}, v{vL16}')
        e('s_barrier')
    def g2more():
        if half == 0:
            e(f's_lshr_b32 s{sT}, s{sW}, 1'); e(f's_lshl_b32 s{sT}, s{sT}, 5'); e(f's_add_u32 s{sT}, s{sT}, s{sP}'); e(f's_lshl_b32 s{sT}, s{sT}, 1')
            e(f's_and_b32 s{sT+1}, s{sW}, 1'); e(f's_add_u32 s{sT}, s{sT}, s{sT+1}'); e(f's_lshl_b32 s49, s{sT}, 10'); e(f's_add_u32 s49, s49, {WS_SS}')
            e(f's_mul_i32 s{sT}, s{sT}, 14336'); e(f's_add_u32 s{sT}, s{sT}, {WS_X2}'); e(f's_lshl_b32 s{sT+1}, s{sG}, 11')
            for b in range(7):
                if b: e(f's_add_u32 s{sT+1}, s{sT+1}, 2048'); e(f's_sub_u32 s{sT+2}, s{sT+1}, 14336'); e(f's_min_u32 s{sT+1}, s{sT+1}, s{sT+2}')
                e(f's_add_u32 s{SX[b]}, s{sT}, s{sT+1}')
            for T in range(2):
                e(f's_lshl_b32 s{sT}, s{sRB if T else sP}, 11'); e(f's_lshr_b32 s{sT+1}, s{sW}, 1'); e(f's_lshl_b32 s{sT+1}, s{sT+1}, 10'); e(f's_add_u32 s{sT}, s{sT}, s{sT+1}')
                e(f's_and_b32 s{sT+1}, s{sW}, 1'); e(f's_lshl_b32 s{sT+1}, s{sT+1}, 7'); e(f's_add_u32 s{sT}, s{sT}, s{sT+1}')
                e(f's_lshr_b32 s{sT+1}, s{sG}, 1'); e(f's_lshl_b32 s{sT+1}, s{sT+1}, 8'); e(f's_add_u32 s{sT}, s{sT}, s{sT+1}')
                e(f's_and_b32 s{sT+1}, s{sG}, 1'); e(f's_lshl_b32 s{sT+1}, s{sT+1}, 3'); e(f's_add_u32 s{sT}, s{sT}, s{sT+1}'); e(f's_add_u32 s{sMK+6+T}, s{sT}, {WS_SS}')
    rr = vSb
    rwr = lambda T, c: k.ds(f'ds_write_b128 v{vrwb}, {vr(ACC2(T, c >> 2) + 4*(c & 3), 4)} offset:{L_RED + RS*c}', 'rw')
    rrd = lambda T: k.ds(f'ds_read_b32 v{rr}, v{vst} offset:{L_ST + 4 + 256*T}', 'rw')
    def red_final(T, PB, pk):
        x = vR + 4*T; ops = []
        for pw in range(4):
            ops += rec(lambda: [k.ds(f'ds_read_b128 {vr(PB+8*pw+4*h,4)}, v{vrr} offset:{L_RED + 8*RS*pw + 512*h}', f'p{pw}') for h in range(2)]) + [None]
        XT = B[7] if pk else None
        def body():
            if pk:
                k.wait(lg='p1')
                for n in range(0, 8, 2): e(f'v_pk_add_f32 {vr(PB+n,2)}, {vr(PB+n,2)}, {vr(PB+8+n,2)}')
                k.wait(lg='p3')
                for n in range(0, 8, 2): e(f'v_pk_add_f32 {vr(PB+16+n,2)}, {vr(PB+16+n,2)}, {vr(PB+24+n,2)}')
                for n in range(0, 8, 2): e(f'v_pk_add_f32 {vr(PB+n,2)}, {vr(PB+n,2)}, {vr(PB+16+n,2)}')
                ng = ' neg_lo:[1,0,0] neg_hi:[1,0,0]' if half else ''
                for n in range(0, 8, 2): e(f'v_pk_fma_f32 {vr(PB+n,2)}, {vr(PB+n,2)}, {vr(rr-1,2)}, {vr(XT+n,2)} op_sel:[0,1,0]{ng}')
            else:
                for pw in range(1, 4):
                    k.wait(lg=f'p{pw}')
                    for n in range(8): e(f'v_add_f32 v{PB+n}, v{PB+n}, v{PB+8*pw+n}')
                for n in range(8): e(f'v_and_b32 v{PB+8+n}, s{sFF}, v{x + n//2}' if n & 1 else f'v_lshlrev_b32 v{PB+8+n}, 16, v{x + n//2}')
                for n in range(8): e(f'v_fma_f32 v{PB+n}, {"-" if half else ""}v{rr}, v{PB+n}, v{PB+8+n}')
            for m in range(4): e(f'v_cvt_pk_bf16_f32 v{x+m}, v{PB+2*m}, v{PB+2*m+1}')
            if half == 0:
                k.vmem(f'buffer_store_dwordx4 {vr(x,4)}, v{vo}, {sr(sWS,4)}, s{sMK+4+T} offen sc1', 'xst')
                a, b, c = PB + 16, PB + 17, PB + 18
                e(f'v_add_f32 v{a}, v{PB}, v{PB+1}'); e(f'v_mul_f32 v{b}, v{PB}, v{PB}'); e(f'v_fmac_f32 v{b}, v{PB+1}, v{PB+1}')
                for n in range(2, 8): e(f'v_add_f32 v{a}, v{a}, v{PB+n}'); e(f'v_fmac_f32 v{b}, v{PB+n}, v{PB+n}')
                e(f'v_and_b32 v{c}, 0x70, v{vL16}'); e(f'v_lshrrev_b32 v{c+1}, 5, v{vL}')
                e(f'v_permlane32_swap_b32 v{a}, v{b}'); e(f'v_add_f32 v{a}, v{a}, v{b}'); e(f'v_mov_b32 v{b}, v{a}'); e(f'v_lshl_add_u32 v{c}, v{c+1}, 2, v{c}')
                e(f'v_permlane16_swap_b32 v{a}, v{b}'); e(f'v_add_f32 v{a}, v{a}, v{b}')
                e(f'v_add_f32_dpp v{a}, v{a}, v{a} row_ror:8 row_mask:0xf bank_mask:0xf')
                k.call(lambda: (e('s_mov_b32 exec_lo, 0xff\ns_mov_b32 exec_hi, 0xff'), k.vmem(f'buffer_store_dword v{a}, v{c}, {sr(sWS,4)}, s{sMK+6+T} offen sc1', 'xst'), e('s_mov_b64 exec, -1')), 's', 16)
            else: k.vmem(f'buffer_store_dwordx4 {vr(x,4)}, v{vo}, {sr(sOUT,4)}, s{sMK+4+T} offen' + (' sc1' if OPT['outsc'] >> T & 1 else ''), 'xst')
        return ops + [None] + rec(body)
    for T in range(2):
        sl = []; CUR[0] = T
        for pos, (kk, v) in enumerate(ORD[T]):
            jp, i = kk >> 2, kk & 3
            if True:
                A = ACC2(T, v); wr = w2reg(kk, v)
                def mf(A=A, wr=wr, kk=kk, v=v, jp=jp, i=i):
                    if wr is None: k.wait(lg=f'A{kk}{v}')
                    elif half == 0 and T == 0:
                        if kk == 0: ws.ensure(29)
                        assert ws.done > 28 + kk; k.wait(lg=f'tr{28+kk}')
                    a = rn(wr, 4) if wr else vr(AR(kk, v), 4)
                    e(f'v_mfma_f32_32x32x16_bf16 {vr(A,16)}, {a}, {vr(HB[T,jp]+4*i,4)}, {vr(A,16) if kk else 0}')
                pre, post = [], []
                if i == 0 and v == 0: pre.append(Op('s', 0, lambda jp=jp, T=T: ls(f'g{half}.{T}{jp}')))
                if half == 0 and T == 0 and v == 0: pre.append(Op('ds', 0, lambda kk=kk: ws.force(116 + 2*kk)))
                if pos + 4 < 56 and ORD[T][pos + 4][0] >= 17: pre += [aread(*ORD[T][pos + 4], 0), aread(*ORD[T][pos + 4], 1)]
                pre.append(hpace(116 + 56*T + 2*kk + v))
                if jp < 6 and not OPT['noh'] & 2: post += hcheck(T, jp + 1)[2*i + v]
                sl.append([[Op('mfma', 8, mf)], pre, post])
        if T == 0: k.slots(sl[:26], rec(lambda: (half or cnt_check(vT1 + 1), g2addr(), ownfix(1))), 24); k.slots(sl[26:], rec(g2more), 28)
        else:
            k.bg_flush(); assert half or ws.ni == 56
            q = [None, None]
            q += rec(lambda: rrd(0))
            for c in range(8): q += rec(lambda: rwr(0, c)) + [None, None]
            q += rec(lambda: (k.wait(lg='rw'), e('s_barrier'))) + red_final(0, B[2], False) + [None] + rec(lambda: (e('s_barrier'), rrd(1)))
            x = vR + 4
            un = rec(lambda: [e(f'v_and_b32 v{B[7]+n}, s{sFF}, v{x + n//2}' if n & 1 else f'v_lshlrev_b32 v{B[7]+n}, 16, v{x + n//2}') for n in range(8)])
            sl[52][2] += un[:5]; sl[53][2] += un[5:]; sl[54][2] += rec(lambda: rwr(1, 0)); sl[55][2] += rec(lambda: rwr(1, 1))
            k.slots(sl, q, 51)
        log(f'g2({T}) done')
        if OPT['fine'] & 2 and T == 0: stamp(f'D{half}.g20')
    stamp(f'D{half}.g2')
    for c in range(2, 8): rwr(1, c)
    ls(f'd{half}.w'); k.wait(lg='all'); e('s_barrier'); ls(f'd{half}.b')
    k.run(red_final(1, B[2], True))
    stamp(f'D{half}.st')
    k.refill = None
    return False

def only_stream():
    srds((sX0, sW1, sW2, sWS)); e(f's_lshl_b32 s49, s3, 2'); e(f's_add_u32 s49, s49, s{sW}')
    e(f'v_lshlrev_b32 v17, 7, v{vL}'); e(f's_mul_i32 s{sIL}, s49, {14*128}')
    e('s_waitcnt lgkmcnt(0)'); copy_ptrs(True); copy_ptrs(False)
    e(f's_mov_b32 s{sTS}, s50'); nts[0] = 1; tsn.append('start'); e(f's_mov_b32 s{sRETRY}, 20000')
    e('s_mov_b64 exec, 0x3fff')
    if OPT['touch'] & 2: k.vmem(f'buffer_load_dword v19, v17, {sr(sW1,4)}, s{sIL} offen', 'touch')
    if OPT['touch'] & 4: k.vmem(f'buffer_load_dword v19, v17, {sr(sW2,4)}, s{sIL} offen', 'touch')
    e('s_mov_b64 exec, -1')
    stream_setup(); late_setup(); warm(0, 1); warm(1, 5)
    if OPT['touch'] & 8: k.wait(vm='touch')
    stamp('go'); ws.limit = 56; ws.lag = 9
    while ws.ni < 56 or ws.nd < 45:
        n = ws.nd; ws.refill(); k.bg_flush()
        if ws.nd != n and ws.nd % 7 == 0: stamp(f'nd{ws.nd}')
    k.wait(vm='all'); stamp('end'); finish_stamps(); e('s_endpgm')
def main():
    prologue()
    if OPT['only']: return only_stream()
    for half in range(2):
        HALF[0] = half
        phA(half)
        if stop(f'A{half}'): return
        phB(half)
        if ffn(half): return
        if stop(f'D{half}'): return
    finish_stamps()
    e('s_endpgm')
main()
k.tail.append('L_end:')
k.tail.append('s_endpgm')
txt, nops = finish(k, OPT['grid'], 256, LDS_SZ, verbose=OPT['verbose'] > 1, pads=PADS if OPT['pads'] else None)
print(txt)
print(f'; wait states added: {nops}; stamps: {",".join(tsn)}')
```

```python
import sys, struct, re
from kasm import *

OPT = dict(ts=0, stop='', verbose=0, hq_slot=93, t1_grp=4, grid=256, lag=10, perA=96, perB=96, perG=72, perH=76, rot=0, touch=1, pads=1, hpre=17, nx=8, nA=4, dA=60, nT=2, nK=36, nU=10, nE=10, nU0=0, nS=0, late=1250, xack=0, uack=1, ud=500, outsc=0, xd=800, wt=0, usel=1, hsel=1, hl=14, l2k=28, css=9, hB0=0, hB1=0, v2=0, w2t=3, imgb=0, wsc='sc1', pP=84, wG1=22, wG2=50, hG2=10, ssp=5, rt=0, clump=80, nbgA=1, nbgG=2, l2first=2, cntlate=0, pS=92, pA=70, pT=92, pK=92, pU=92, pE=92, n0=11, xs0=4, fillslot=6, e0=14, t1_slot=26, hord=0, hdl=14, lead=18, rot2=0, only=0, hq0=98,
           idleU=500, nostats=0, nofill=0, nocnt=0, fine=0, noh=0)
for a in sys.argv[1:]:
    key, val = a.split('=')
    OPT[key] = val if key in ('stop', 'amp', 'ls') else int(val)
AMP = OPT.get('amp')
if AMP: OPT['ts'] = 1
TS, STOP = OPT['ts'], OPT['stop']
TSI = 's_memtime' if TS == 2 else 's_memrealtime'

S, D, F = 2048, 448, 1792
XB = S * D * 2
WS_U1, WS_U2, WS_X2, WS_H = 0, XB, 2 * XB, 3 * XB
WS_SS = WS_H + S * F * 2
WS_WF = WS_SS + 131072
WS_CS = WS_WF + D * F * 2
WS_FL = WS_CS + 16384
WS_EP = WS_FL + 4096
WS_END = WS_EP + 64
WS_TS = 0x1000000
WS_DBG = 0x1100000
L_X = 0; L_RED = 28672; L_H = 0; L_ST = 64512
L_M = 65536; L_WA = L_M + 8192; WA_SZ = 22528
L_C = lambda half: 57344 if half else L_M
LDS_SZ = L_WA + 4 * WA_SZ
assert LDS_SZ <= 163840
NSLOT = 11
sX0, sW1, sW2, sOUT, sWS = 8, 12, 16, 20, 24
sW, sG, sP, sRB, sRETRY, sWA, sSO, sLO, sHI, sCI = 32, 33, 34, 35, 36, 37, 38, 39, 40, 41
sT = 42
sBG = 48
sMK = 52
sHS = 60
sIM, sIL = 67, 68
sFF = 69
sUO = 4
sRD = 96
sN = 28
sTS = 70
sDBG = 92
sRC = 100
sRO = 101
vL, vL16, vCS, vSa, vSb, vT1, vT2, vA = 0, 1, 2, 6, 7, 8, 10, 12
B = [16 + 16 * i for i in range(8)]; vR = 144
vCA, vSEL, vX = 240, 248, 252
def w1f(n, u): return ar(8 * n + 4 * u, 4)
def w2reg(kk, v):
    if kk < 4: return ('a', 224 + 8 * kk + 4 * v)
    if kk < 17: return ('v', 152 + 8 * (kk - 4) + 4 * v)
    return None
def rn(t, n): return ar(t[1], n) if t[0] == 'a' else vr(t[1], n)
fl = lambda x: '0x%08x' % struct.unpack('<I', struct.pack('<f', x))[0]

k = K(); e = k.e; rec = k.rec; k.clump = OPT['clump']
nts = [0]; tsn = []
def log(msg):
    if OPT['verbose']: print(f'; [{k.clk}] {msg} ni={ws.ni} nd={ws.nd} cs={ws.nc}', file=sys.stderr)
LS = OPT.get('ls')
def ls(name):
    if TS and LS and re.fullmatch(LS, name):
        i = nts[0]; nts[0] += 1; tsn.append(name); assert i < 11
        k._emit(f'{TSI} s[{sTS+2*i}:{sTS+2*i+1}]')
def stamp(name):
    log(name)
    if LS: return ls(name)
    if not TS or (AMP and name != AMP) or ('half' in OPT and name[1] == str(1 - OPT['half']) and name != 'D0.st'): return
    i = nts[0]; nts[0] += 1; tsn.append(name); assert i < 22
    k.wait(lg='all')
    e(f'{TSI} s[50:51]\ns_waitcnt lgkmcnt(0)\ns_mov_b32 s{sTS+i}, s50')
def finish_stamps():
    if not TS: return
    if AMP:
        e('s_cmp_lg_u32 s2, 100'); e('s_cbranch_scc1 L_exit')
        e(f's_sub_u32 s44, s{sTS+1}, s{sTS}'); e('s_min_u32 s44, s44, 10000'); e('s_mul_i32 s44, s44, 20')
        e('s_memrealtime s[50:51]'); e('s_waitcnt lgkmcnt(0)'); e('s_add_u32 s44, s44, s50')
        e('L_amp:'); e('s_memrealtime s[50:51]'); e('s_waitcnt lgkmcnt(0)'); e('s_sub_u32 s45, s50, s44'); e('s_cmp_lt_i32 s45, 0'); e('s_cbranch_scc1 L_amp')
        return
    e('v_mov_b32 v16, 0')
    e('s_waitcnt lgkmcnt(0)')
    for i in range(nts[0]): e(f'v_writelane_b32 v16, s{sTS + (2*i if LS and not k.in_tail else i)}, {i}')
    e(f'v_writelane_b32 v16, s{sRETRY}, 63'); e(f'v_writelane_b32 v16, s{sRC}, 62')
    e(f's_lshl_b32 s{sT}, s2, 2'); e(f's_add_u32 s{sT}, s{sT}, s{sW}'); e(f's_lshl_b32 s{sT}, s{sT}, 8'); e(f's_add_u32 s{sT}, s{sT}, {WS_TS}')
    e(f'v_lshlrev_b32 v17, 2, v{vL}')
    e(f'buffer_store_dword v16, v17, {sr(sWS,4)}, s{sT} offen')
def stop(name, dump_lds=0):
    if STOP != name: return False
    k.bg_period = None
    k.wait(vm='all', lg='all'); e('s_barrier')
    if dump_lds:
        e(f's_lshl_b32 s{sT}, s{sW}, 10'); e(f'v_add_u32 v20, s{sT}, v{vL16}')
        e(f's_lshl_b32 s{sT}, s2, 16'); e(f's_add_u32 s{sT}, s{sT}, {WS_DBG}')
        for i in range(dump_lds // 4096):
            e(f'ds_read_b128 v[16:19], v20'); e('s_waitcnt lgkmcnt(0)')
            e(f'buffer_store_dwordx4 v[16:19], v20, {sr(sWS,4)}, s{sT} offen'); e('s_nop 1'); e('v_add_u32 v20, 4096, v20')
    finish_stamps(); e('s_endpgm')
    return True

RCLS = {'cnt': 0, 'U0': 1, 'h0': 2, 'x2': 3, 'img': 4, 'U1': 5, 'h1': 6}
def retry_site(check, reload, name, br='s_cbranch_vccnz', after=None):
    def f():
        slow, ok = k.lab('slow_' + name), k.lab('ok_' + name)
        e(f'{br} {slow}'); e(f'{ok}:')
        k.begin_tail()
        e(f'{slow}:')
        e(f's_cmp_eq_u32 s{sRETRY}, 0'); e(f's_cbranch_scc1 {ok}'); e(f's_sub_u32 s{sRETRY}, s{sRETRY}, 1')
        if TS: e(f's_add_u32 s{sRC}, s{sRC}, {1 << 4*RCLS[name.split("_")[0]]}')
        reload(); k.wait(vm='all', lg='all'); check(); k.wait(vm='all', lg='all')
        e(f'{br} {slow}')
        if after: after()
        e('s_nop 1'); e(f's_branch {ok}')
        k.end_tail()
    k.call(f, 's', 20)
def cnt_load(reg, i): k.vmem(f'buffer_load_dword v{reg}, off, {sr(sDBG,4)}, 0 offset:{128*i} sc1', f'cnt{i}')
def cnt_check(reg, i):
    chk = lambda: e(f'v_readfirstlane_b32 s49, v{reg}\ns_nop 1\ns_cmp_lt_u32 s49, {(28, 32)[i]}')
    k.call(lambda: (k.wait(vm=f'cnt{i}'), chk(), retry_site(chk, lambda: (e('s_sleep 8'), cnt_load(reg, i)), f'cnt_{i}', 's_cbranch_scc1')), 'v', 40)
def flag_load():
    def f():
        e(f'v_min_u32 v{vCS}, 6, v{vL}'); e(f's_lshl_b32 s49, s{sW}, 7'); e(f'v_lshlrev_b32 v{vCS}, 9, v{vCS}'); e(f's_add_u32 s49, s49, {WS_FL}')
        e('s_mov_b64 exec, 0x7f'); k.vmem(f'buffer_load_dword v{vCS+1}, v{vCS}, {sr(sWS,4)}, s49 offen sc1', 'flag'); e('s_mov_b64 exec, -1')
    k.call(f, 'v', 28)
def flag_check():
    chk = lambda: e(f'v_cmp_ne_u32 vcc, s{sN}, v{vCS+1}\ns_nop 0\ns_and_b64 vcc, vcc, 0x7f')
    k.call(lambda: (k.wait(vm='flag'), chk(), retry_site(chk, lambda: (e('s_sleep 4'), flag_load()), 'cnt_f', 's_cbranch_scc1')), 'v', 36)
def cs_load():
    def f():
        e(f's_lshl_b32 s49, s{sG}, 2\ns_add_u32 s49, s49, s{sW}\ns_lshl_b32 s49, s49, 9\ns_add_u32 s49, s49, {WS_CS}\nv_and_b32 v{vT2+1}, 0x1f0, v{vL16}')
        k.vmem(f'buffer_load_dwordx4 {vr(vCS,4)}, v{vT2+1}, {sr(sWS,4)}, s49 offen sc1', 'cs')
    k.call(f, 's', 24)
def cs_check():
    def chk(): e(f'v_xor_b32 v{vT2+1}, s{sN+1}, v{vCS+1}'); e(f'v_bitop3_b32 v{vT2+1}, v{vT2+1}, v{vCS+3}, s{sN+3} bitop3:0xf6'); e(f'v_cmp_lt_u32 vcc, 0xffff, v{vT2+1}')
    k.wait(vm='cs'); chk(); retry_site(chk, lambda: (e('s_sleep 4'), cs_load()), 'cnt_c')
    e(f'v_and_b32 v{vCS+1}, 0xffff, v{vCS+1}'); e(f'v_and_b32 v{vCS+3}, 0xffff, v{vCS+3}')
def warm(site, first):
    def f():
        if OPT['pads']:
            e('s_mov_b64 exec, 0')
            for w in range(3): e(f's_cmp_eq_u32 s{sW}, {w}'); e(f's_cbranch_scc1 L_pad{first+w}')
            e(f's_branch L_pad{first+3}')
        elif site == 0: e('s_branch L_ret0')
        if site == 0: k.in_tail = True; helper(); k.in_tail = False
        e(f'L_ret{site}:'); e('s_mov_b64 exec, -1'); k.clk += 200
    k.call(f, 's', 250)
PADS = lambda p: 'L_ret0' if p <= 4 else (f'L_pad{p+2}' if p <= 14 else 'L_ret1')

class Stream:
    def __init__(s): s.ni = 0; s.nd = 0; s.nc = 56; s.limit = 4; s.lag = OPT['lag']
    def issue_ops(s):
        n = s.ni; s.ni += 1
        if n >= 28:
            kk = n - 28
            def ld(v):
                if v == 0 and kk == 0: e(f's_lshl_b32 s{sSO}, s{sG}, 2\ns_add_u32 s{sSO}, s{sSO}, s{sW}\ns_mul_i32 s{sSO}, s{sSO}, {28*2048}\ns_add_u32 s{sSO}, s{sSO}, {WS_WF}')
                if v == 0 and kk == 17: assert s.done == 28; k.wait(lg='tr27')
                if v == 0 and (kk == 17 or kk > 17 and kk % 2 == 0): e(f's_add_u32 m0, s{sWA}, {(kk - kk % 2 - 17)*2048}')
                if v == 0 and kk and kk % 2 == 0: e(f's_add_u32 s{sSO}, s{sSO}, 4096')
                t = w2reg(kk, v); off = 2048*(kk % 2) + 1024*v; tag = f'w{n}' if v else f'wa{n}'
                if t: k.vmem(f'buffer_load_dwordx4 {rn(t,4)}, v{vL16}, {sr(sWS,4)}, s{sSO} offen offset:{off} sc1', tag)
                else: k.vmem(f'buffer_load_dwordx4 v{vL16}, {sr(sWS,4)}, s{sSO} offen offset:{off} sc1 lds', tag)
                if v: s.sent = n + 1
            return [Op('vm', 8, lambda: ld(0), 1), Op('vm', 4, lambda: ld(1), 1)]
        srd = sr(sW1, 4)
        def a():
            if n >= NSLOT: assert s.done > n - NSLOT; k.wait(lg=f'tr{n-NSLOT}')
            elif n >= 4: k.wait(lg=f'xr{n-4}')
            e(f's_add_u32 m0, s{sWA}, {(n % NSLOT)*2048}')
            if n: e(f's_add_u32 s{sSO}, s{sSO}, {16*3584}')
            if n and n % 7 == 0 and OPT['rot']: e(f's_sub_u32 s{sBG}, s{sSO}, {D*3584}\ns_min_u32 s{sSO}, s{sSO}, s{sBG}')
            k.vmem(f'buffer_load_dwordx4 v{vSa}, {srd}, s{sSO} offen lds', f'wa{n}')
        def b(): k.vmem(f'buffer_load_dwordx4 v{vSb}, {srd}, s{sSO} offen offset:1024 lds', f'w{n}'); s.sent = n + 1
        return [Op('s', 12, a, 1), Op('vm', 4, b, 1)]
    def drain_ops(s):
        n = s.nd; s.nd += 1
        so = (n % NSLOT) * 2048
        def rd(u, h2):
            def f():
                assert s.sent > n; k.wait(vm=f'w{n}')
                if n < 28: dst, ad, off = ar(8*n + 4*u + 2*h2, 2), vT1 + u, so + 512*h2
                else:
                    t = w2reg(n - 28, u); dst, ad, off = rn((t[0], t[1] + 2*h2), 2), vT2 + u, so + 1024*h2
                k.ds(f'ds_read_b64_tr_b16 {dst}, v{ad} offset:{off}', f'tr{n}')
                if u and h2: s.done = n + 1
            return Op('ds', 4, f)
        return [rd(0, 0), rd(0, 1), rd(1, 0), rd(1, 1)]
    done = 0; sent = 0
    cs_on = 0; dmax = 28
    def free(s, n): return n - NSLOT < s.nd if n < 28 else (n < 45 or s.nd == 28)
    def refill(s):
        can = s.ni < min(56, s.limit) and s.free(s.ni)
        if s.nd < min(28, s.ni) and s.lag < 99 and (s.ni - s.nd > s.lag or (not can and s.ni >= 28)): k.bg += s.drain_ops()
        elif can: k.bg += s.issue_ops()
    def ensure(s, n):
        while s.done <= n:
            if not k.bg:
                if s.ni <= n and s.free(s.ni): k.bg += s.issue_ops()
                else: k.bg += s.drain_ops()
            k.bg_step()
    use = staticmethod(lambda n: 2*n if n < 28 else 116 + 2*(n - 28))
    def force(s, slot):
        if s.sent < s.ni and s.use(s.sent) <= slot + OPT['lead']: k.bg_flush()
        while s.ni < 56 and s.use(s.ni) <= slot + OPT['lead']:
            k.bg_flush()
            while not s.free(s.ni): k.bg += s.drain_ops()
            k.bg += s.issue_ops(); k.bg_flush()
        n = max([-1] + [i for i in range(28) if s.use(i) <= slot + 4])
        if n >= 0: s.ensure(n)
    def cs_op(s):
        n, u = s.nc >> 1, s.nc & 1; s.nc += 1
        def g():
            assert s.done > n; k.wait(lg=f'tr{n}')
            acc = vr(vCA + 4*u, 4)
            e(f'v_mfma_f32_16x16x32_bf16 {acc}, {vr(vSEL,4)}, {w1f(n, u)}, {acc if n else 0}')
        return Op('mfma', 16, g)
    def cs_flush(s, maxn=99, behind=0):
        while s.nc < 2*min(28, s.done - behind) and maxn > 0: k.run([s.cs_op()]); maxn -= 1
ws = Stream()
def src_off(stride):
    e(f'v_lshrrev_b32 v{vSa}, 3, v{vL}'); e(f'v_lshrrev_b32 v{vSb}, 2, v{vL}'); e(f'v_and_b32 v{vSb}, 4, v{vSb}')
    e(f'v_xor_b32 v{vSb}, v{vSb}, v{vL}'); e(f'v_and_b32 v{vSb}, 7, v{vSb}'); e(f'v_mul_u32_u24 v{vSa}, {stride}, v{vSa}')
    e(f'v_lshl_add_u32 v{vSa}, v{vSb}, 4, v{vSa}'); e(f'v_add_u32 v{vSb}, {8*stride-1024}, v{vSa}')
def tr_addr(dst, sh, t):
    e(f'v_bfe_u32 v{t}, v{vL}, 2, 2'); e(f'v_bfe_u32 v{t+1}, v{vL}, 3, 1'); e(f'v_bfe_u32 v{t+2}, v{vL}, 4, 1'); e(f'v_and_b32 v{t+3}, 3, v{vL}')
    e(f'v_lshlrev_b32 v{t}, 7, v{t}'); e(f'v_lshl_add_u32 v{t}, v{t+1}, 6, v{t}'); e(f'v_lshl_add_u32 v{t}, v{t+2}, 5, v{t}'); e(f'v_lshl_add_u32 v{t}, v{t+3}, 3, v{t}')
    e(f'v_add_u32 v{t}, s{sWA}, v{t}'); e(f'v_lshrrev_b32 v{t+1}, 5, v{vL}')
    e(f'v_lshl_add_u32 v{dst}, v{t+1}, {sh}, v{t}'); e(f'v_xor_b32 v{dst+1}, 64, v{dst}')
def stream_setup():
    src_off(3584)
    rot = OPT['rot']
    e(f's_lshl_b32 s{sSO}, s{sG}, 2'); e(f's_add_u32 s{sSO}, s{sSO}, s{sW}'); e(f's_lshl_b32 s{sSO}, s{sSO}, 7')
    if rot:
        e(f's_and_b32 s{sRO}, s2, 3' if rot == 3 else f's_add_u32 s{sRO}, s2, s{sW}\ns_and_b32 s{sRO}, s{sRO}, 3'); e(f's_mul_i32 s{sT}, s{sRO}, {7*16*3584}'); e(f's_add_u32 s{sSO}, s{sSO}, s{sT}')
    tr_addr(vT1, 10, B[1]); e(f'v_add_u32 v{vT2}, s{sWA}, v{vL16}')
def late_setup():
    e(f's_mul_i32 s{sT}, s{sP}, {2*7*16384}'); e(f's_lshl_b32 s{sT+1}, s{sW}, 12'); e(f's_add_u32 s{sT}, s{sT}, s{sT+1}'); e(f's_add_u32 s{sT}, s{sT}, {WS_H}')
    e({0: f's_mov_b32 s{sT+3}, 1', 1: f's_add_u32 s{sT+3}, s{sCI}, 1', 2: f's_and_b32 s{sT+3}, s2, 3\ns_add_u32 s{sT+3}, s{sT+3}, 1'}[OPT['rot2']]); e(f's_mov_b32 s{sT+1}, s{sG}')
    for jp in range(7):
        if jp: e(f's_add_u32 s{sT+1}, s{sT+1}, s{sT+3}'); e(f's_sub_u32 s{sT+2}, s{sT+1}, 7'); e(f's_min_u32 s{sT+1}, s{sT+1}, s{sT+2}')
        e(f's_lshl_b32 s{sT+2}, s{sT+1}, 14'); e(f's_add_u32 s{sHS+jp}, s{sT}, s{sT+2}')

def prologue():
    e('s_load_dwordx2 s[8:9], s[0:1], 0'); e('s_load_dwordx4 s[4:7], s[0:1], 48')
    e('s_load_dwordx2 s[20:21], s[0:1], 64'); e('s_load_dwordx2 s[24:25], s[0:1], 80'); e(f's_load_dwordx2 {sr(sDBG,2)}, s[0:1], 72')
    e('s_getpc_b64 s[46:47]'); e('L_pc:')
    e('v_lshrrev_b32 v1, 6, v0'); e('v_and_b32 v0, 63, v0'); e('s_bfe_u32 s3, s2, 0x50003'); e(f'v_readfirstlane_b32 s{sW}, v1')
    e('v_lshl_add_u32 v2, s3, 2, v1'); e('v_lshl_add_u32 v2, v0, 7, v2'); e('v_lshlrev_b32 v2, 7, v2'); e('v_min_u32 v2, L_end-L_pc, v2')
    e('s_mov_b64 exec, 7'); k.vmem('global_load_dword v3, v2, s[46:47]', 'touch'); e('s_mov_b64 exec, -1')
    e(f'v_lshlrev_b32 v{vL16}, 4, v0')
    e('s_sub_u32 s3, s2, 32'); e('s_cmp_ge_u32 s3, 224'); e('s_cbranch_scc1 L_helper')
    if TS: e(f'{TSI} s[50:51]'); e(f's_mov_b32 s{sRC}, 0')
    e(f's_lshr_b32 s{sT}, s3, 3'); e(f's_mul_i32 s{sCI}, s{sT}, 37'); e(f's_lshr_b32 s{sCI}, s{sCI}, 8')
    e(f's_mul_i32 s{sG}, s{sCI}, 7'); e(f's_sub_u32 s{sG}, s{sT}, s{sG}')
    e(f's_and_b32 s{sP}, s3, 7'); e(f's_lshl_b32 s{sP}, s{sP}, 1'); e(f's_lshr_b32 s{sT}, s{sCI}, 1'); e(f's_add_u32 s{sP}, s{sP}, s{sT}')
    e(f's_sub_u32 s{sT}, 32, s{sP}'); e(f's_cmp_eq_u32 s{sP}, 0'); e(f's_cselect_b32 s{sT}, 16, s{sT}')
    e(f's_bitcmp1_b32 s{sCI}, 0'); e(f's_cselect_b32 s{sP}, s{sT}, s{sP}')
    e(f's_mul_i32 s{sWA}, s{sW}, {WA_SZ}'); e(f's_add_u32 s{sWA}, s{sWA}, {L_WA}')
def srds(which):
    for r, n in ((sX0, XB), (sW1, D*F*2), (sW2, D*F*2), (sOUT, XB), (sWS, 0x2000000 if (TS or STOP) else WS_END), (sDBG, 256)):
        if r in which: e(f's_mov_b32 s{r+2}, {n}'); e(f's_mov_b32 s{r+3}, 0x20000')
def copy_ptrs(first):
    if first: e(f's_mov_b32 s{sW1}, s4'); e(f's_mov_b32 s{sW1+1}, s5')
    else:
        e(f's_mov_b32 s{sW2}, s6'); e(f's_mov_b32 s{sW2+1}, s7')

def helper():
    e('L_helper:')
    e('s_cmp_ge_u32 s2, 32'); e('s_cbranch_scc1 L_exit')
    srds((sW1, sW2, sWS, sDBG))
    e(f's_mul_i32 s{sWA}, s{sW}, {WA_SZ}'); e(f's_add_u32 s{sWA}, s{sWA}, {L_WA}'); src_off(896)
    e(f's_lshl_b32 s{sT}, s2, 2'); e(f's_add_u32 s{sT}, s{sT}, s{sW}'); e(f's_mul_i32 s{sT}, s{sT}, {16*896}'); e(f's_mov_b32 s{sT+1}, {WS_EP}')
    e('s_waitcnt lgkmcnt(0)'); copy_ptrs(True); copy_ptrs(False)
    hs = [0]
    def hstamp(w=None):
        if TS and not AMP:
            if w is not None: e(f's_waitcnt vmcnt({w})')
            e(f'{TSI} s[50:51]\ns_waitcnt lgkmcnt(0)\ns_mov_b32 s{sTS+hs[0]}, s50'); hs[0] += 1
    hstamp()
    if TS:
        for i in range(1, 4): e(f's_mov_b32 s{sTS+i}, s50')
    e('s_cmp_ge_u32 s2, 28'); e('s_cbranch_scc1 L_hfill2')
    e(f'buffer_load_dwordx4 v[140:143], off, {sr(sWS,4)}, s{sT+1} sc1')
    for g in range(7):
        e(f's_add_u32 m0, s{sWA}, {2048*g}')
        if g: e(f's_add_u32 s{sT}, s{sT}, 128')
        e(f'buffer_load_dwordx4 v{vSa}, {sr(sW2,4)}, s{sT} offen lds'); e(f'buffer_load_dwordx4 v{vSb}, {sr(sW2,4)}, s{sT} offen offset:1024 lds')
    e('s_branch L_helper2')
    save = k.out; k.out = k.tail
    e('L_helper2:')
    tr_addr(vT2, 9, 12)
    e(f's_and_b32 s{sT}, s2, 3'); e(f's_mul_i32 s{sT}, s{sT}, 28'); e(f's_add_u32 s{sT}, s{sT}, s{sW}'); e(f's_lshl_b32 s{sT}, s{sT}, 11'); e(f's_add_u32 s{sT}, s{sT}, {WS_WF}')
    e(f's_lshr_b32 s{sT+1}, s2, 2'); e(f's_mov_b32 s{sT+4}, 0x80008000')
    e(f'v_lshrrev_b32 v2, 3, v{vL}'); e(f'v_lshl_add_u32 v2, s{sW}, 3, v2'); e('v_mul_u32_u24 v4, 3584, v2'); e(f'v_and_b32 v8, 0x70, v{vL16}'); e('v_add_u32 v4, v4, v8')
    for g in range(7):
        e(f's_waitcnt vmcnt({12 - 2*g})')
        for v in range(2):
            for h2 in range(2): e(f'ds_read_b64_tr_b16 {vr(80+8*g+4*v+2*h2,2)}, v{vT2+v} offset:{2048*g + 1024*h2}')
    e('v_not_b32 v5, v140'); e('s_waitcnt lgkmcnt(0)'); hstamp()
    for g in range(7):
        if g: e(f's_sub_u32 s{sT+1}, s{sT+1}, 1'); e(f's_min_u32 s{sT+1}, s{sT+1}, 6'); e(f's_add_u32 s{sT}, s{sT}, {4*28*2048}')
        e(f's_lshl_b32 s{sT+2}, s{sT+1}, 13'); e(f's_add_u32 s{sT+2}, s{sT+2}, s{sT}')
        for v in range(2):
            r = 80 + 8*g + 4*v; e(f'v_xor_b32 v{r+3}, s{sT+4}, v{r+3}'); e(f'buffer_store_dwordx4 {vr(r,4)}, v{vL16}, {sr(sWS,4)}, s{sT+2} offen offset:{1024*v} sc1')
    e(f's_lshl_b32 s{sT}, s2, 7'); e(f's_add_u32 s{sT+1}, s{sT}, {WS_FL}')
    e(f's_mov_b32 s{sLO}, 0x3f80'); e(f's_mov_b32 s{sHI}, 0x3f800000')
    for i in range(8): e(f'v_mov_b32 v{72+i}, 0')
    e('s_waitcnt vmcnt(0)'); e('s_barrier')
    e(f's_cmp_lg_u32 s{sW}, 0'); e('s_cbranch_scc1 L_hsig')
    e('s_mov_b64 exec, 1'); e(f'buffer_store_dword v5, off, {sr(sWS,4)}, s{sT+1} sc1'); e('s_mov_b64 exec, -1')
    e('L_hsig:'); hstamp()
    for i in range(14): e(f'buffer_load_dwordx4 {vr(16+4*i,4)}, v4, {sr(sW1,4)}, s{sT} offen'); e(f's_add_u32 s{sT}, s{sT}, {32*3584}')
    for i in range(14):
        e(f's_waitcnt vmcnt({13 - i})')
        for n in range(8): e(f'v_dot2c_f32_bf16 v{72+n}, s{sHI if n & 1 else sLO}, v{16+4*i+n//2}')
    e('v_lshlrev_b32 v2, 8, v2'); e('v_lshl_add_u32 v2, v8, 1, v2'); e(f'v_lshlrev_b32 v4, 2, v{vL}')
    e('ds_write_b128 v2, v[72:75]'); e('ds_write_b128 v2, v[76:79] offset:16'); e('s_waitcnt lgkmcnt(0)'); e('s_barrier')
    e(f's_cmp_lg_u32 s{sW}, 0'); e('s_cbranch_scc1 L_hnocs')
    for i in range(16): e(f'ds_read2st64_b32 {vr(16+2*i,2)}, v4 offset0:{2*i} offset1:{2*i+1}')
    e(f'v_and_b32 v8, 0x1f0, v{vL16}'); e(f'v_lshrrev_b32 v2, 5, v{vL}'); e('v_lshl_add_u32 v8, v2, 3, v8'); e(f's_lshl_b32 s{sT}, s2, 9'); e(f's_add_u32 s{sT}, s{sT}, {WS_CS}')
    e('v_cmp_eq_u32 vcc, 0, v2'); e('v_cndmask_b32 v5, v143, v141, vcc'); e('v_not_b32 v5, v5')
    e('s_waitcnt lgkmcnt(0)')
    for st in (16, 8, 4, 2, 1):
        for i in range(st): e(f'v_add_f32 v{16+i}, v{16+i}, v{16+st+i}')
    e('v_cvt_pk_bf16_f32 v17, v16, v16'); e('v_and_b32 v18, 0xffff0000, v17'); e('v_sub_f32 v19, v16, v18'); e('v_cvt_pk_bf16_f32 v20, v18, v19')
    e(f's_mov_b32 s{sT+1}, 0xffff'); e(f'v_bfi_b32 v21, s{sT+1}, v17, v5')
    e(f'buffer_store_dwordx2 v[20:21], v8, {sr(sWS,4)}, s{sT} offen sc1')
    e('L_hnocs:'); hstamp()
    e('L_hfill:')
    def fills():
        e('L_hfill2:')
        for i in range(4): e(f'v_mov_b32 v{12+i}, -1')
        e(f's_lshl_b32 s{sT}, s{sW}, 10'); e(f'v_add_u32 v10, s{sT}, v{vL16}'); e('v_mov_b32 v11, 1')
        e(f's_lshl_b32 s{sT}, s2, 12'); e(f's_add_u32 s{sT}, s{sT}, {WS_SS}'); e(f'buffer_store_dwordx4 v[12:15], v10, {sr(sWS,4)}, s{sT} offen sc1')
        e(f's_mul_i32 s{sT}, s2, {2*XB//32}'); e(f's_add_u32 s{sT}, s{sT}, {WS_U2}'); e(f's_mov_b32 s{sT+1}, {1 if OPT["nofill"] else 14}')
        e('L_fill:')
        for j in range(2): e(f'buffer_store_dwordx4 v[12:15], v10, {sr(sWS,4)}, s{sT} offen sc1'); e(f's_add_u32 s{sT}, s{sT}, 4096')
        e(f's_sub_u32 s{sT+1}, s{sT+1}, 1'); e(f's_cmp_lg_u32 s{sT+1}, 0'); e('s_cbranch_scc1 L_fill')
        e('s_waitcnt vmcnt(0)'); e('s_barrier')
        e(f's_cmp_lg_u32 s{sW}, 0'); e('s_cbranch_scc1 L_nosig')
        e('s_mov_b64 exec, 1'); e(f'buffer_atomic_add v11, off, {sr(sDBG,4)}, 0 offset:128 sc1'); e('s_mov_b64 exec, -1')
        e('L_nosig:'); hstamp()
    if OPT['l2k'] < 28:
        k0 = OPT['l2k']; nst = (28 - k0) // 2
        e(f's_lshr_b32 s{sT}, s2, 3'); e(f's_lshl_b32 s{sT}, s{sT}, 2'); e(f's_add_u32 s{sT}, s{sT}, s{sW}'); e(f's_lshl_b32 s{sT}, s{sT}, 8'); e(f's_add_u32 s{sT}, s{sT}, {WS_WF + 2048*k0}')
        e(f'v_min_u32 v2, 55, v{vL}'); e('v_lshrrev_b32 v4, 1, v2'); e('v_and_b32 v2, 1, v2'); e(f'v_mul_u32_u24 v4, {28*2048}, v4'); e('v_lshl_add_u32 v4, v2, 7, v4'); e(f's_mov_b32 s{sT+1}, {nst}')
        e('L_l2:'); e(f'buffer_load_dword v8, v4, {sr(sWS,4)}, s{sT} offen sc1'); e(f's_add_u32 s{sT}, s{sT}, 4096')
        e(f's_sub_u32 s{sT+1}, s{sT+1}, 1'); e(f's_cmp_lg_u32 s{sT+1}, 0'); e('s_cbranch_scc1 L_l2'); hstamp(0)
    fills()
    if TS and not AMP:
        n = nts[0]; nts[0] = 8; finish_stamps(); nts[0] = n
    e('L_exit:'); e('s_endpgm')
    k.out = save

HALF = [0]
def gen_H():
    ef, a0, tc, q8 = 72, 73, 74, 75
    P0, P1, PK = 76, 84, 92
    e(f'v_and_b32 v{ef}, 15, v{vL}'); e(f's_and_b32 s{sT}, s{sW}, 1'); e(f's_lshl_b32 s{sT+1}, s{sG}, 5'); e(f's_add_u32 s{sT}, s{sT}, s{sT+1}')
    e(f'v_lshl_add_u32 v{ef}, v{ef}, 1, s{sT}'); e(f'v_mov_b32 v{a0}, 224'); e(f'v_cmp_eq_u32 vcc, 0, v{ef}')
    e(f'v_lshrrev_b32 v{q8}, 4, v{vL}'); e(f's_lshl_b32 s{sT+1}, s{sT+1}, 1'); e(f'v_lshl_add_u32 v{q8}, v{q8}, 3, s{sT+1}')
    e(f'v_cndmask_b32 v{ef}, v{ef}, v{a0}, vcc'); e(f'v_cvt_f32_u32 v{q8}, v{q8}'); e(f'v_cvt_f32_u32 v{ef}, v{ef}')
    e(f's_cmp_ge_u32 s{sW}, 2\ns_cselect_b32 s{sT}, {fl(-112.0)}, 0')
    e(f'v_fma_f32 v{a0}, v{q8}, v{ef}, s{sT}'); e(f'v_mul_f32 v{ef}, {fl(1.0/448)}, v{ef}'); e(f'v_mul_f32 v{q8}, {fl(1.0/448)}, v{a0}')
    e(f'v_rndne_f32 v{q8}, v{q8}'); e(f'v_fmamk_f32 v{a0}, v{q8}, {fl(-448.0)}, v{a0}'); e(f'v_mul_f32 v{a0}, {fl(1.0/448)}, v{a0}')
    e(f'v_mul_f32 v{tc}, {fl(32.0)}, v{ef}'); e(f'v_cos_f32 v{tc}, v{tc}')
    e(f's_mul_i32 s{sT}, s{sW}, {7*1024}'); e(f's_add_u32 s{sT}, s{sT}, {L_H}'); e(f'v_add_u32 v{q8}, s{sT}, v{vL16}')
    e(f'v_add_f32 v{tc}, v{tc}, v{tc}')
    for kap in range(7):
        cur, prv = (P0, P1) if kap % 2 == 0 else (P1, P0)
        if HALF[0]: ls(f'H.{kap}')
        if kap < 2:
            for jj in range(8): e(f'v_fmamk_f32 v{cur+jj}, v{ef}, {fl(32.0*kap+jj)}, v{a0}')
            for jj in range(8): e(f'v_cos_f32 v{cur+jj}, v{cur+jj}')
        else:
            for jj in range(0, 8, 2): e(f'v_pk_fma_f32 {vr(cur+jj,2)}, {vr(tc,2)}, {vr(prv+jj,2)}, {vr(cur+jj,2)} op_sel_hi:[0,1,1] neg_lo:[0,0,1] neg_hi:[0,0,1]')
        pk = PK + 4*(kap % 2)
        for m in range(4): e(f'v_cvt_pk_bf16_f32 v{pk+m}, v{cur+2*m}, v{cur+2*m+1}')
        k.ds(f'ds_write_b128 v{q8}, {vr(pk,4)} offset:{1024*kap}', 'Hw')
def gen_F(dst):
    mf, a0, t = 100, 101, 102
    T = 120
    e(f'v_bfe_u32 v{mf}, v{vL}, 1, 3'); e(f's_lshl_b32 s{sT}, s{sW}, 3'); e(f'v_add_u32 v{mf}, s{sT}, v{mf}')
    e(f'v_and_b32 v{t}, 1, v{vL}'); e(f'v_cvt_f32_u32 v{a0}, v{t}'); e(f'v_cmp_eq_u32 vcc, 0, v{mf}')
    e(f'v_lshlrev_b32 v{t}, 5, v{t}'); e(f'v_mul_f32 v{a0}, {fl(-0.25)}, v{a0}')
    e(f'v_cndmask_b32 v{mf}, v{mf}, v{t}, vcc'); e(f'v_cndmask_b32 v{a0}, v{a0}, 0, vcc')
    e(f'v_bfe_i32 v{t+1}, v{mf}, 0, 1'); e(f'v_cvt_f32_u32 v{mf}, v{mf}'); e(f'v_and_b32 v{t}, 48, v{vL}'); e(f'v_cvt_f32_u32 v{t}, v{t}'); e(f'v_and_b32 v{t+1}, 0x80008000, v{t+1}')
    e(f'v_mul_f32 v{mf}, {fl(1.0/128)}, v{mf}'); e(f'v_fma_f32 v{a0}, v{t}, v{mf}, v{a0}')
    for k1 in range(2):
        for jj in range(4): e(f'v_fmamk_f32 v{T+4*k1+jj}, v{mf}, {fl(2.0*k1 + 4.0*jj)}, v{a0}')
    for i in range(8): e(f'v_cos_f32 v{T+i}, v{T+i}')
    for k1 in range(2):
        for m in range(2): e(f'v_cvt_pk_f16_f32 v{dst+4*k1+m}, v{T+4*k1+2*m}, v{T+4*k1+2*m+1}')
    for k1 in range(2):
        for m in range(2): e(f'v_xor_b32 v{dst+4*k1+2+m}, v{dst+4*k1+m}, v{t+1}')
def gen_M(t0):
    j, s2f, ad = t0, t0 + 1, t0 + 2
    e(f'v_and_b32 v{j}, 31, v{vL}'); e(f'v_lshlrev_b32 v{j}, 6, v{j}')
    S2 = t0 + 36
    e(f'v_lshrrev_b32 v{s2f}, 5, v{vL}'); e(f's_add_u32 s{sT}, s{sW}, s{sG}'); e(f's_and_b32 s{sT}, s{sT}, 3'); e(f's_lshl_b32 s{sT}, s{sT}, 2')
    for jj in range(4):
        if jj: e(f's_add_u32 s{sT}, s{sT}, 1')
        e(f's_lshl_b32 s{sT+1}, s{sT}, 1'); e(f's_sub_u32 s{sT+1}, 32, s{sT+1}')
        if jj == 0: e(f's_cmp_eq_u32 s{sT}, 0\ns_cselect_b32 s{sT+1}, 16, s{sT+1}')
        e(f'v_mul_u32_u24 v{S2+jj}, s{sT+1}, v{s2f}'); e(f'v_add_u32 v{S2+jj}, s{sT}, v{S2+jj}'); e(f'v_cvt_f32_u32 v{S2+jj}, v{S2+jj}')
    e(f's_lshl_b32 s{sT}, s{sW}, 10'); e(f's_add_u32 s{sT}, s{sT}, {L_M}'); e(f'v_add_u32 v{ad}, s{sT}, v{vL16}')
    e(f's_cmp_eq_u32 s{sP}, 0\ns_cselect_b32 s{sT}, {fl(0.25)}, 0')
    for pq in range(2):
        T = t0 + 4 + 16*pq
        tf, a0 = T + 12, T + 13
        e(f'v_add_u32 v{tf}, s{sRB if pq else sP}, v{j}'); e(f'v_cvt_f32_u32 v{tf}, v{tf}'); e(f'v_mul_f32 v{tf}, {fl(1.0/2048)}, v{tf}')
        for jj in range(4): e(f'v_fma_f32 v{T+jj}, v{tf}, v{S2+jj}, s{sT}' if pq else f'v_mul_f32 v{T+jj}, v{tf}, v{S2+jj}')
        for jj in range(4): e(f'v_sin_f32 v{T+4+jj}, v{T+jj}')
        for jj in range(4): e(f'v_cos_f32 v{T+jj}, v{T+jj}')
        for jj in range(4): e(f'v_cvt_pk_f16_f32 v{T+8+jj}, v{T+jj}, v{T+4+jj}')
        k.ds(f'ds_write_b128 v{ad}, {vr(T+8,4)} offset:{4096*pq}', 'Mw')

def img_ops(half, T):
    ops = []; rho = sRB if T else sP
    if half == 0:
        for r in range(8):
            def f(r=r):
                if r == 0: e(f's_lshl_b32 s{sIM}, s{sW}, 9\ns_add_u32 s{sIM}, s{sIM}, s{rho}\ns_mul_i32 s{sIM}, s{sIM}, 896\ns_mul_i32 s{sIL}, s{sW}, {8*912}')
                else: e(f's_add_u32 s{sIM}, s{sIM}, 57344')
                e(f's_add_u32 m0, s{sIL}, {L_X + 912*(32*T + r)}'); e('s_mov_b32 exec_hi, 0x00ffffff')
                k.vmem(f'buffer_load_dwordx4 v{vL16}, {sr(sX0,4)}, s{sIM} offen lds', f'img{T}'); e('s_mov_b32 exec_hi, -1')
            ops.append(Op('s', 20, f, 1))
    else:
        for i in range(7):
            def f(i=i):
                if i == 0: e(f's_mul_i32 s{sIL}, s{sW}, 7168\ns_add_u32 m0, s{sIL}, {L_X + 28672*T}\ns_mul_i32 s{sIM}, s{rho}, 28672\ns_add_u32 s{sIM}, s{sIM}, s{sIL}\ns_add_u32 s{sIM}, s{sIM}, {WS_X2}')
                if i == 4: e(f's_add_u32 m0, m0, 4096\ns_add_u32 s{sIM}, s{sIM}, 4096')
                k.vmem(f'buffer_load_dwordx4 v{vL16}, {sr(sWS,4)}, s{sIM} offen offset:{1024*(i%4)} sc1 lds', f'img{T}')
            ops.append(Op('s' if i % 4 == 0 else 'vm', 4, f, 1))
    return ops

XF = lambda kap: 16 + 4 * kap
BORD = [0, 3, 4, 1, 5, 2, 6]
IMG_LATE = []
SX = [0, 1, 3, 4, 5, 6, 7]
def x2_loads(first):
    for kp in range(first, 7):
        for kap in (kp, kp + 7):
            k.vmem(f'buffer_load_dwordx4 {vr(XF(kap),4)}, v{vL16}, {sr(sWS,4)}, s{SX[kap//2]} offen offset:{1024*(kap%2)} sc1', f'x{kap}')
def phA(half):
    aT = [72, 76, 84, 88]; aHi = {1: 80, 3: 92}; aS, aG = 96, 100
    HR = [104, 120]; ones = 136; Ff = 140; t = 148
    vx, vh, vtr, vu, vcw, k1 = vA, vL16, vA + 2, vA + 3, 150, 151
    lc = L_C(half)
    def misc():
        if half == 0:
            for i in range(4): e(f'v_mov_b32 v{ones+i}, 0x3f803f80')
            mk = [0x1000010000100001, 0x2000020000200002, 0x4000040000400004, 0x8000080000800008]
            for i in range(4): e(f's_mov_b32 s{sMK+2*i}, {mk[i] & 0xffffffff:#x}'); e(f's_mov_b32 s{sMK+2*i+1}, {mk[i] >> 32:#x}')
        else: e(f's_mov_b32 s{sMK}, -1'); e(f's_mov_b32 s{sMK+1}, 0xffff')
        e(f'v_and_b32 v{t}, 15, v{vL}'); e(f'v_lshrrev_b32 v{t+1}, 4, v{vL}'); e(f'v_lshlrev_b32 v{vcw}, 5, v{t}'); e(f'v_lshl_add_u32 v{vcw}, v{t+1}, 3, v{vcw}')
        e(f's_lshl_b32 s{sT}, s{sW}, 9'); e(f's_add_u32 s{sT}, s{sT}, {lc}'); e(f'v_add_u32 v{vcw}, s{sT}, v{vcw}')
        e(f's_lshl_b32 s{sT}, s{sW}, 2'); e(f'v_add_u32 v{vu}, s{sT}, v{t+1}'); e(f'v_cmp_eq_u32 vcc, 0, v{vu}')
        e(f'v_mul_u32_u24 v{vu}, {2*57344}, v{vu}'); e(f'v_lshl_add_u32 v{vu}, v{t}, 4, v{vu}'); e(f'v_cndmask_b32 v{k1}, -1.0, 0, vcc')
        e(f's_and_b32 s{sT+4}, s2, 7'); e(f's_lshl_b32 s{sT+4}, s{sT+4}, 2'); e(f's_add_u32 s{sT+4}, s{sT+4}, s{sCI}'); e(f's_mul_i32 s{sT+4}, s{sT+4}, 7'); e(f's_add_u32 s{sT+4}, s{sT+4}, s{sG}'); e(f's_lshl_b32 s{sT+4}, s{sT+4}, 8'); e(f's_add_u32 s{sT+4}, s{sT+4}, {WS_U2 if half else WS_U1}')
        e(f's_add_u32 s{sT+5}, s{sT+4}, 57344'); e(f'v_lshlrev_b32 v{vtr}, 3, v{vL}'); e(f'v_add_u32 v{vtr}, {lc}, v{vtr}')
    hread = lambda kp: rec(lambda: [k.ds(f'ds_read_b128 {vr(HR[kp%2]+4*tl,4)}, v{vh} offset:{L_H + (7*tl+kp)*1024}', f'H{kp}{tl}') for tl in (1, 3, 0, 2)])
    st_load = lambda: k.vmem(f'buffer_load_dwordx4 {vr(ones,4)}, v{vL16}, {sr(sWS,4)}, s49 offen sc1', 'ss')
    if half == 0:
        va, vb = vX, vX + 1
        srds((sX0,))
        e(f'v_lshrrev_b32 v{va}, 3, v{vL}'); e(f'v_lshrrev_b32 v{vb}, 4, v{vL}'); e(f'v_xor_b32 v{vb}, v{vb}, v{vL}'); e(f'v_and_b32 v{vb}, 7, v{vb}')
        e(f'v_mul_u32_u24 v{va}, 57344, v{va}'); e(f'v_lshl_add_u32 v{va}, v{vb}, 4, v{va}')
        e(f'v_xor_b32 v{vb}, 64, v{va}'); e(f'v_add_u32 v{vb}, {8*57344-1024}, v{vb}')
        e(f's_lshr_b32 s{sT}, s{sW}, 1'); e(f's_lshl_b32 s{sT}, s{sT}, 5'); e(f's_add_u32 s{sT}, s{sT}, s{sP}')
        e(f's_and_b32 s{sT+1}, s{sW}, 1'); e(f's_lshl_b32 s{sT+1}, s{sT+1}, 10'); e(f's_add_u32 s{sT}, s{sT}, s{sT+1}'); e(f's_mul_i32 s3, s{sT}, 896')
        e(f's_lshl_b32 s{sIM}, s{sG}, 7')
        def xdma(i):
            b = BORD[i]
            def a():
                if b: e(f's_add_u32 s{sBG}, s{sIM}, {128*b}\ns_sub_u32 s{sIL}, s{sBG}, 896\ns_min_u32 s{sBG}, s{sBG}, s{sIL}')
                e(f's_add_u32 m0, s{sWA}, {8192 + 2048*i}\ns_add_u32 s{sBG}, s3, s{sBG if b else sIM}')
                if i == 0:
                    if OPT['rt']:
                        e(f'v_lshl_add_u32 v4, s{sG}, 4, v{vL}'); e('v_mul_u32_u24 v5, 37, v4'); e('v_lshrrev_b32 v5, 8, v5') if False else None
                        e('v_mul_u32_u24 v5, 9363, v4'); e('v_lshrrev_b32 v5, 16, v5'); e(f'v_mul_u32_u24 v5, {57344-896}, v5'); e('v_lshl_add_u32 v4, v4, 7, v5')
                    e('s_waitcnt lgkmcnt(0)')
                    if TS: e(f's_mov_b32 s{sTS}, s50'); nts[0] = 1; tsn.append('start')
                    if OPT['rt']: e('s_mov_b64 exec, 0xffff'); k.vmem(f'buffer_load_dword v5, v4, {sr(sX0,4)}, s3 offen', 'touch'); e('s_mov_b64 exec, -1')
                k.vmem(f'buffer_load_dwordx4 v{va}, {sr(sX0,4)}, s{sBG} offen lds', f'xa{b}')
            return [Op('s', 24, a), Op('vm', 4, lambda: k.vmem(f'buffer_load_dwordx4 v{vb}, {sr(sX0,4)}, s{sBG} offen offset:1024 lds', f'xb{b}'))]
        xs = []
        for i in range(7): xs += xdma(i)
        k.run(xs[:4]); t0 = k.clk
        if OPT['fine'] & 1: stamp('iss')
        def rest():
            gen_H()
            if not OPT['wt']: copy_ptrs(True); srds((sW1,))
            copy_ptrs(False); srds((sW2, sOUT, sWS, sDBG))
            e(f's_sub_u32 s{sRB}, 64, s{sP}'); e(f's_cmp_eq_u32 s{sP}, 0\ns_cselect_b32 s{sRB}, 32, s{sRB}')
            e(f's_mov_b32 s{sRETRY}, 20000'); e(f's_mov_b32 s{sLO}, 0x3f80'); e(f's_mov_b32 s{sHI}, 0x3f800000'); e(f's_mov_b32 s{sFF}, 0xffff0000')
            warm(0, 1)
            misc()
            e(f'v_lshrrev_b32 v{vx}, 1, v{t}'); e(f'v_xor_b32 v{vx}, v{vx}, v{t+1}'); e(f'v_lshlrev_b32 v{t}, 7, v{t}'); e(f'v_lshl_add_u32 v{t}, v{vx}, 4, v{t}')
            e(f's_add_u32 s{sT}, s{sWA}, 8192'); e(f'v_add_u32 v{vx}, s{sT}, v{t}'); e(f'v_xor_b32 v{vx+1}, 64, v{vx}')
            stream_setup(); gen_F(Ff)
            e(f'v_mov_b32 v{vX+2}, 0x10001')
        nx = OPT['nx']
        if OPT['wt']:
            copy_ptrs(True); srds((sW1,)); e(f's_sub_u32 s{sT}, s2, 32'); e(f's_lshl_b32 s{sT}, s{sT}, 2'); e(f's_add_u32 s{sT}, s{sT}, s{sW}'); e(f's_mul_i32 s{sT}, s{sT}, {14*128}')
            e(f'v_lshlrev_b32 v4, 7, v{vL}'); e('s_mov_b64 exec, 0x3fff'); k.vmem(f'buffer_load_dword v5, v4, {sr(sW1,4)}, s{sT} offen', 'touch'); e('s_mov_b64 exec, -1')
        if OPT.get('xprobe'):
            k.run(xs[4:nx]); ls('p.i'); k.wait(vm='xb0'); ls('p.0'); k.wait(vm='xb3'); ls('p.1'); k.run(xs[nx:]); k.wait(vm='xb1'); ls('p.3'); k.wait(vm='xb6'); ls('p.6'); xs = xs[:4]
        fill = k.weave(xs[4:nx], rec(rest), 64)
        while fill and k.clk < t0 + OPT['late']: fill.pop(0)()
        epl = Op('s', 16, lambda: (e(f's_mov_b32 s{sBG}, {WS_EP}'), e('s_mov_b64 exec, 1'), k.vmem(f'buffer_load_dwordx4 {vr(vSEL,4)}, off, {sr(sWS,4)}, s{sBG} sc1', 'ep'), e('s_mov_b64 exec, -1')), 1)
        k.bg += [Op(o.kind, o.cost, o.fn, 1) for o in xs[nx:]] + [epl]
        def touch():
            e(f's_sub_u32 s{sBG}, s2, 32\ns_lshl_b32 s{sBG}, s{sBG}, 2\ns_add_u32 s{sBG}, s{sBG}, s{sW}\ns_mul_i32 s{sBG}, s{sBG}, {14*128}\nv_lshlrev_b32 v4, 7, v{vL}\ns_mov_b64 exec, 0x3fff')
            if OPT['w2t'] & 2: k.vmem(f'buffer_load_dword v5, v4, {sr(sW1,4)}, s{sBG} offen', 'touch')
            if OPT['w2t'] & 1: k.vmem(f'buffer_load_dword v2, v4, {sr(sW2,4)}, s{sBG} offen', 'touch')
            e('s_mov_b64 exec, -1')
        im = img_ops(0, 1); nb = OPT['imgb']; IMG_LATE[:] = im[nb:]
        after = im[:nb] + ([Op('s', 36, touch, 1)] if OPT['w2t'] else []); k.bg += after
        k.seg(999, 999*OPT['pS'])
        k.run(fill)
        while len(k.bg) > len(after): k.bg_step()
        k.quota = len(k.bg) + OPT['nA']
        k.refill = ws.refill
        k.wait(lg='Hw'); e('s_barrier')
        k.run(hread(0))
    else:
        t0 = k.clk
        fill = rec(lambda: (gen_H(), misc(), k.wait(lg='Hw'), e('s_barrier'), k.run(hread(0)), gen_F(Ff)))
        while fill and k.clk < t0 + OPT['xd']: fill.pop(0)()
        if OPT['xack']: k.wait(vm='xst')
        stamp('A1.ack')
        ld = rec(lambda: x2_loads(0)); ld = ld[:OPT['ssp']] + rec(st_load) + ld[OPT['ssp']:]
        k.run(ld[:4])
        k.run(k.weave(ld[4:11], fill, 60))
        later = ld[11:] + img_ops(1, 1)
    stamp(f'A{half}.consts')
    def xread(i):
        b = BORD[i]
        def g(h):
            k.wait(vm=f'xb{b}'); k.ds(f'ds_read_b128 {vr(XF(2*b+h),4)}, v{vx+h} offset:{2048*i}', f'xr{i}')
            if h: ws.limit = 5 + i if i < 6 else 28
        return [Op('ds', 8, lambda: g(0)), Op('ds', 4, lambda: g(1))]
    def xchk(k0, k1_, ss=False):
        d = ones
        def chk():
            r = [XF(x) for kp in range(k0, k1_ + 1) for x in (kp, kp + 7)]
            if ss:
                e(f'v_cndmask_b32 v{d+2}, 0, v{d+2}, {sr(sMK,2)}'); e(f'v_cndmask_b32 v{d+3}, 0, v{d+3}, {sr(sMK,2)}'); r += [d, d + 1, d + 2, d + 3]
            e(f'v_max_u32 v{t+1}, v{r[0]}, v{r[1]}')
            for i in range(2, len(r), 2): e(f'v_max3_u32 v{t+1}, v{t+1}, v{r[i]}, v{r[i+1]}')
            e(f'v_cmp_eq_u32 vcc, -1, v{t+1}')
        return rec(lambda: (k.wait(vm=f'x{k1_+7}'), chk(), retry_site(chk, lambda: (x2_loads(k0), k0 <= 2 and st_load()), f'x2_{k0}')))
    k.depth += 1
    if half == 0: k.run(xread(0) + xread(1))
    else: k.run(xchk(0, 1))
    k.depth -= 1
    def rstd():
        e(f'v_fmamk_f32 v{t}, v{t}, {fl(-1.0/448)}, v{aS}')
        e(f'v_min_f32 v{t}, 0, v{t}'); e(f'v_sub_f32 v{t}, {fl(1e-5)}, v{t}'); e(f'v_rsq_f32 v{t}, v{t}')
    def scale(tl, pk):
        a = aT[tl]
        if pk:
            if tl in aHi:
                for r in (0, 2): e(f'v_pk_add_f32 {vr(a+r,2)}, {vr(a+r,2)}, {vr(aHi[tl]+r,2)} neg_lo:[0,1] neg_hi:[0,1]')
            for r in (0, 2): e(f'v_pk_mul_f32 {vr(a+r,2)}, {vr(a+r,2)}, {vr(t,2)} op_sel_hi:[1,0]')
        else:
            for r in range(4): e(f'v_sub_f32 v{a+r}, v{a+r}, v{aHi[tl]+r}')
            for r in range(4): e(f'v_mul_f32 v{a+r}, v{a+r}, v{t}')
        for m in range(2): e(f'v_cvt_pk_f16_f32 v{a+m}, v{a+2*m}, v{a+2*m+1}')
        k.ds(f'ds_write_b64 v{vcw}, {vr(a,2)} offset:{2048*tl}', 'cw')
    sl = []; o0 = 0 if half else 4
    for kp in range(7):
        lo, hi = vr(XF(kp), 4), vr(XF(kp+7), 4)
        c = lambda a: vr(a, 4) if kp else '0'
        mm = lambda d, a, b, cc: f'v_mfma_f32_16x16x32_bf16 {vr(d,4)}, {a}, {b}, {cc}'
        ms = [] if half else [mm(aS, vr(ones, 4), lo, c(aS)), mm(aG, lo, lo, c(aG)), mm(aS, vr(ones, 4), hi, vr(aS, 4)), mm(aG, hi, hi, vr(aG, 4))]
        ms += [mm(aT[tl], vr(HR[kp%2]+4*tl, 4), lo, c(aT[tl])) for tl in (1, 3, 0, 2)]
        ms += [mm(aHi[tl], vr(HR[kp%2]+4*tl, 4), hi, c(aHi[tl])) if tl in aHi else mm(aT[tl], vr(HR[kp%2]+4*tl, 4), hi, vr(aT[tl], 4)) for tl in (1, 3, 0, 2)]
        if kp == 6: ms = ms[:o0] + [ms[o0 + i] for i in (0, 4, 1, 5, 2, 6, 3, 7)]
        cur = [[rec(lambda m=m: e(m)), [], []] for m in ms]; cur[0][1].append(Op('s', 0, lambda kp=kp: ls(f'a{half}.{kp}')))
        if half == 0: cur[0][0] = rec(lambda: k.wait(lg=f'xr{min(kp+1, 6)}')) + cur[0][0]
        if half == 0: cur[o0][0] = rec(lambda: k.wait(lg=f'H{kp}2')) + cur[o0][0]
        else:
            cur[0][0] = rec(lambda: k.wait(lg=f'H{kp}3')) + cur[0][0]; i2 = 4 if kp == 6 else 2; cur[i2][0] = rec(lambda: k.wait(lg=f'H{kp}2')) + cur[i2][0]
        if kp < 6:
            for i, o in enumerate(hread(kp + 1)): cur[o0 + i][1].append(o)
            if half == 0 and kp < 5:
                for i, o in enumerate(xread(kp + 2)): cur[2 + i][1].append(o)
        sl += cur
    if half == 0:
        k.bg_period = OPT['pA']
        ep = rec(lambda: (k.wait(vm='ep'), [e(f'v_readfirstlane_b32 s{sN+i}, v{vSEL+i}') for i in range(4)], [e(f's_not_b32 s{sN+i}, s{sN+i}') for i in range(4)]))
        for i, o in enumerate(ep): sl[68 + i][2].append(o)
        def stats():
            e(f'v_cndmask_b32 v{t}, 0, v{aG}, {sr(sMK,2)}')
            for r in range(1, 4): e(f'v_cndmask_b32 v{t}, v{t}, v{aG+r}, {sr(sMK+2*r,2)}')
            e(f'v_mul_f32 v{aS}, {fl(1.0/448)}, v{aS}')
            for sw in ('16', '32'):
                e(f'v_mov_b32 v{t+1}, v{t}')
                if sw == '16': e(f'v_mul_f32 v{aS}, v{aS}, v{aS}')
                e(f'v_permlane{sw}_swap_b32 v{t}, v{t+1}'); e(f'v_add_f32 v{t}, v{t}, v{t+1}')
            rstd()
        k.slots(sl[:80], nbg=OPT['nbgA'])
        if OPT['fine'] & 1: stamp(f'A{half}.mf')
        k.bg_period = OPT['pT']
        st = rec(stats)
        for i in range(80, 84): sl[i][2] += st[:2]; st = st[2:]
        k.slots(sl[80:], nbg=0)
        k.run(st)
    else:
        d = ones
        for at, o in (((12, 12, 12, 13, 13, 14, 14, 14, 15), xchk(2, 3, True)), ((29, 29, 30, 30, 31), xchk(4, 5)), ((46, 46, 47, 47), xchk(6, 6))):
            assert len(at) == len(o)
            for i, x in zip(at, o): sl[i][2].append(x)
        for i, x in zip((4, 5, 6, 7, 20, 21, 22, 23, 36, 37, 38), later): sl[i][1].append(x)
        def sums():
            e(f'v_add_f32 v{d}, v{d}, v{d+2}'); e(f'v_add_f32 v{d+1}, v{d+1}, v{d+3}'); e(f'v_permlane32_swap_b32 v{d}, v{d+1}'); e(f'v_add_f32 v{d}, v{d}, v{d+1}')
            e(f'v_mov_b32 v{d+1}, v{d}'); e(f'v_permlane16_swap_b32 v{d}, v{d+1}'); e(f'v_add_f32 v{aS}, v{d}, v{d+1}')
            e(f'v_mov_b32 v{t}, v{aS}'); e(f'v_permlane32_swap_b32 v{aS}, v{t}')
            e(f'v_mul_f32 v{aS}, {fl(1.0/448)}, v{aS}'); e(f'v_mul_f32 v{aS}, v{aS}, v{aS}'); rstd()
        idx = [16, 17, 19, 24, 25, 27, 28, 32, 34, 39, 40, 41, 42, 43, 44]
        for i, x in zip(idx, rec(sums)): sl[i][2].append(x)
        sc = rec(lambda: scale(1, False)); sl[53][2] += sc[:3]; sl[54][2] += sc[3:6]; sl[55][2] += sc[6:]
        k.slots(sl, nbg=1)
        if OPT['fine'] & 1: stamp(f'A{half}.mf')
    for tl in ((3, 0, 2) if half else (1, 3, 0, 2)): scale(tl, True)
    k.wait(lg='cw'); e('s_barrier')
    stamp(f'A{half}.hdft')
    cf = lambda tl, k1_: 72 + 8*tl + 4*k1_
    k.depth += 1
    so = [(0, 0), (2, 0), (0, 1), (2, 1), (1, 0), (3, 0), (1, 1), (3, 1)]
    for tl, k1_ in so:
        for h2 in range(2): k.ds(f'ds_read_b64_tr_b16 {vr(cf(tl,k1_)+2*h2,2)}, v{vtr} offset:{2048*tl + 1024*k1_ + 512*h2}', f'c{tl}{k1_}')
    if half == 0: k.burst(OPT['nS'])
    else: k.bg_flush()
    Dt = lambda tl: 104 + 4*tl
    def smf(tl, k1_):
        k.wait(lg=f'c{tl}{k1_}')
        e(f'v_mfma_f32_16x16x32_f16 {vr(Dt(tl),4)}, {vr(Ff+4*k1_,4)}, {vr(cf(tl,k1_),4)}, {vr(Dt(tl),4) if k1_ else 0}')
    def bfly(pp, u):
        kk1 = f'v{k1}' if pp == 0 else '-1.0'; nk1 = f'-v{k1}' if pp == 0 else '1.0'
        CA, SA, CB, SB = Dt(u) + 2*pp, Dt(u) + 2*pp + 1, Dt(2+u) + 2*pp, Dt(2+u) + 2*pp + 1
        o = 120 + 8*pp + 4*u
        e(f'v_fma_f32 v{o}, {kk1}, v{SB}, v{CA}'); e(f'v_fma_f32 v{o+1}, {kk1}, v{SA}, -v{CB}')
        e(f'v_fma_f32 v{o+2}, {nk1}, v{CA}, v{SB}'); e(f'v_fma_f32 v{o+3}, {kk1}, v{CB}, v{SA}')
        for m in range(2): e(f'v_cvt_pk_f16_f32 v{72+4*pp+2*u+m}, v{o+2*m}, v{o+2*m+1}')
        if half == 0:
            for m in range(2): e(f'v_bfi_b32 v{72+4*pp+2*u+m}, v{vX+2}, s{sN+2*u+m}, v{72+4*pp+2*u+m}')
    for x in so: smf(*x)
    if half == 0: e('s_barrier')
    bfly(0, 0); bfly(1, 0)
    for pp in range(2):
        bfly(pp, 1)
        k.vmem(f'buffer_store_dwordx4 {vr(72+4*pp,4)}, v{vu}, {sr(sWS,4)}, s{sT+4+pp} offen sc1', 'Ust')
    k.depth -= 1
    stamp(f'A{half}.ust')

def US(half): return 16 if half == 0 else 256
def TOFF(half): return 32 * 912 if half == 0 else 28672
def rowaddr(half, dst, j, t):
    if half == 0: e(f'v_mul_u32_u24 v{dst}, 912, v{j}')
    else:
        e(f'v_lshrrev_b32 v{t}, 4, v{j}'); e(f'v_mul_u32_u24 v{t}, 14336, v{t}'); e(f'v_and_b32 v{dst}, 15, v{j}'); e(f'v_lshl_add_u32 v{dst}, v{dst}, 4, v{t}')
def phB(half):
    us = US(half); RAW = lambda kap: 16 + 16*kap; ACC = lambda u, pq: 80 + 32*pq + 16*u; MF = 144
    vu, vd, vmP, vmQ = vA, vA + 1, vA + 2, vA + 3
    vu2, vm, tc, vbn = (vSa, vSb, vT1, vT1 + 1) if half else (vX, vX + 1, vX + 2, vX + 3)
    t = 88; t0 = k.clk
    save = k.refill
    if half == 0: k.bg += IMG_LATE; k.burst(4); k.seg(OPT['nK'], OPT['pK']*OPT['nK'], 300)
    def tile0():
        e(f's_cmp_ge_u32 s{sW}, 2'); e(f's_cbranch_scc1 L_t0w' if half == 0 and OPT['pads'] else f's_cbranch_scc1 L_t0_{half}')
        if half == 0 and OPT['pads']:
            k.begin_tail(); e('L_t0w:'); e('s_mov_b64 exec, 0'); e(f's_cmp_eq_u32 s{sW}, 2'); e('s_cbranch_scc1 L_pad5'); e('s_branch L_pad6')
            e('L_ret1:'); e('s_mov_b64 exec, -1'); e('s_branch L_t0_0'); k.end_tail()
        bs = 128 if half == 0 else 2048
        if half == 0:
            e(f'v_and_b32 v{t}, 15, v{vL}'); e(f'v_lshl_add_u32 v{t}, s{sW}, 4, v{t}'); e(f'v_mul_u32_u24 v{t}, 912, v{t}')
            e(f'v_and_b32 v{t+1}, 48, v{vL}'); e(f'v_add_u32 v{t}, v{t}, v{t+1}')
        else: e(f's_mul_i32 s{sT}, s{sW}, 14336'); e(f'v_add_u32 v{t}, s{sT}, v{vL16}')
        e(f's_mul_i32 s{sT}, s{sG}, {bs}')
        for b in range(7):
            if b: e(f's_add_u32 s{sT}, s{sT}, {bs}'); e(f's_sub_u32 s{sT+1}, s{sT}, {7*bs}'); e(f's_min_u32 s{sT}, s{sT}, s{sT+1}')
            e(f'v_add_u32 v{t+1}, s{sT}, v{t}')
            for h in range(2): e(f'ds_write_b128 v{t+1}, {vr(XF(2*b+h),4)} offset:{L_X + h*bs//2}')
        e(f'L_t0_{half}:')
    k.call(tile0); ls(f'b{half}.t0')
    if half == 0: late_setup()
    e(f'v_bfe_u32 v{t}, v{vL}, 2, 1'); e(f'v_bfe_u32 v{t+1}, v{vL}, 3, 2'); e(f'v_and_b32 v{t+2}, 3, v{vL}')
    e(f'v_lshl_add_u32 v{t+1}, v{t}, 2, v{t+1}'); e(f'v_lshl_add_u32 v{t+1}, v{t+1}, 2, v{t+2}'); e(f's_mul_i32 s{sT+2}, s{sW}, 448')
    e(f'v_lshl_add_u32 v{t+1}, v{t+1}, 4, s{sT+2}'); e(f'v_subrev_u32 v{t}, 1792, v{t+1}'); e(f'v_min_u32 v{t+1}, v{t}, v{t+1}')
    e(f'v_lshrrev_b32 v{t+2}, 5, v{vL}'); e(f'v_mul_u32_u24 v{t}, 1792, v{t+2}'); e(f'v_add_u32 v{vu}, v{t}, v{t+1}'); e(f'v_add_u32 v{vu2}, 7168, v{vu}')
    e(f's_mul_i32 s{sT}, s{sP}, 57344'); e(f's_add_u32 s{sT}, s{sT}, {WS_U2 if half else WS_U1}')
    for i in range(4): e(f's_add_u32 s{sT+1}, s{sG}, {i}'); e(f's_and_b32 s{sT+1}, s{sT+1}, 3'); e(f's_mul_i32 s{sT+1}, s{sT+1}, 14336'); e(f's_add_u32 s{sUO+i}, s{sT}, s{sT+1}')
    def adr():
        j, a = t + 3, t + 4
        e(f'v_and_b32 v{j}, 31, v{vL}'); e(f's_mul_i32 s{sT}, s{sW}, 7'); e(f'v_lshl_add_u32 v{a}, v{t+2}, 2, s{sT}')
        rowaddr(half, vd, j, t); e(f'v_mul_u32_u24 v{t+1}, {us}, v{a}'); e(f'v_add_u32 v{vd}, v{vd}, v{t+1}')
        e(f'v_sub_u32 v{a}, {52*us}, v{t+1}')
        e(f's_cmp_eq_u32 s{sP}, 0\ns_cselect_b32 s{sT}, 32, 63\ns_cselect_b32 s{sT+1}, 31, 63\ns_cselect_b32 s{sT+2}, 63, 31')
        e(f'v_sub_u32 v{t+5}, s{sT}, v{j}'); e(f'v_and_b32 v{t+5}, s{sT+1}, v{t+5}'); rowaddr(half, vmP, t + 5, t); e(f'v_add_u32 v{vmP}, v{vmP}, v{a}')
        e(f'v_sub_u32 v{t+5}, s{sT+2}, v{j}'); rowaddr(half, vmQ, t + 5, t); e(f'v_add_u32 v{vmQ}, v{vmQ}, v{a}')
        e(f's_cmp_eq_u32 s{sW}, 0\ns_cselect_b32 s{sMK}, 0, -1'); e(f's_mov_b32 s{sMK+1}, -1')
        e(f'v_add_u32 v{vm}, {L_M}, v{vL16}')
        e(f's_mul_i32 s{sT}, s{sW}, {7*us}'); e(f'v_mul_u32_u24 v{t+2}, {3*us}, v{t+2}'); e(f'v_subrev_u32 v{vbn}, s{sT}, v{vd}'); e(f'v_sub_u32 v{vbn}, v{vbn}, v{t+2}')
        if OPT['rot']:
            e(f's_mul_i32 s{sT}, s{sRO}, {14*us}'); e(f'v_add_u32 v{vbn}, s{sT}, v{vbn}'); e(f's_mov_b32 s{sT}, {14*us}')
            for q in range(4): e(f's_cmp_eq_u32 s{sRO}, {3-q}\ns_cselect_b32 s{sRD+q}, {-42*us}, s{sT}')
    if half == 0:
        adr(); gen_M(96); e(f's_mov_b32 s{sMK+2}, 0xfffefffe')
        k.burst(k.quota)
    else:
        def ichk():
            e(f's_mul_i32 s{sT}, s{sW}, 7168'); e(f'v_add_u32 v{t}, s{sT}, v{vL16}')
            for i in range(7): k.ds(f'ds_read_b32 v{t+2+i}, v{t} offset:{L_X + 28672 + 1024*i}', 'ic')
            k.wait(lg='all')
            for i in range(3): e(f'v_max3_u32 v{t+2}, v{t+2}, v{t+3+2*i}, v{t+4+2*i}')
            e(f'v_cmp_eq_u32 vcc, -1, v{t+2}')
    k.refill = None; k.bg_flush()
    if OPT['uack']: k.wait(vm='Ust')
    stamp(f'B{half}.ack')
    def uloads(first, last=4):
        for kap in range(first, last):
            for jj in range(4):
                k.vmem(f'buffer_load_dwordx4 {vr(RAW(kap)+4*jj,4)}, v{vu if jj < 2 else vu2}, {sr(sWS,4)}, s{sUO+kap} offen offset:{3584*(jj%2)} sc1', f'U{kap}{jj}')
    ld = rec(lambda: uloads(0))
    n0 = OPT['n0']
    if half == 0:
        fill = []
        while ws.nd < min(ws.dmax, ws.ni): fill += ws.drain_ops()
        for o in ld[:n0]:
            k.run([o] + fill[:4]); fill = fill[4:]; ws.cs_flush(2, 1)
        k.run(fill)
        k.wait(vm='img1', lg='all'); e('s_barrier')
    else:
        k.run(ld[:4])
        k.run(k.weave(ld[4:n0], rec(lambda: (adr(), k.wait(vm='img1'), ichk())), 56))
        retry_site(ichk, lambda: k.run(img_ops(1, 1)), 'img')
        e('s_barrier')
    mread = lambda kap, pq: k.ds(f'ds_read_b128 {vr(MF+4*pq,4)}, v{vm} offset:{4096*pq + 1024*kap}', f'M{pq}')
    mread(0, 0); mread(0, 1)
    if half == 0: ws.cs_flush(); ws.cs_on = 0; ws.lag = 99
    rest = ld[n0:]
    XU = lambda pq, b, mir: RAW(2*pq + (b >> 1)) + 8*(b & 1) + 4*mir
    def xread(pq, b):
        k.ds(f'ds_read_b128 {vr(XU(pq,b,0),4)}, v{vd} offset:{L_X + pq*TOFF(half) + b*us}', f'xd{pq}{b}')
        k.ds(f'ds_read_b128 {vr(XU(pq,b,1),4)}, v{vmQ if pq else vmP} offset:{L_X + (3-b)*us}', f'xm{pq}{b}')
    def uchk(kap):
        R = RAW(kap)
        if half: e(f'v_max3_u32 v{tc}, v{R}, v{R+4}, v{R+8}'); e(f'v_max_u32 v{tc}, v{tc}, v{R+12}'); e(f'v_cmp_eq_u32 vcc, -1, v{tc}')
        else:
            e(f'v_xor_b32 v{tc}, s{sN}, v{R}')
            for i in range(1, 16): e(f'v_bitop3_b32 v{tc}, v{tc}, v{R+i}, s{sN + i%4} bitop3:0xf6')
            e(f'v_and_b32 v{tc}, 0x10001, v{tc}'); e(f'v_cmp_ne_u32 vcc, 0, v{tc}')
    def ureload(kap):
        if half == 0 or not OPT['usel']: return uloads(kap)
        uloads(kap, kap + 1)
        if kap < 3: e('s_waitcnt vmcnt(4)')
        for k2 in range(kap + 1, 4):
            l = k.lab('have'); uchk(k2); e(f's_cbranch_vccz {l}'); uloads(k2, k2 + 1); e(f'{l}:')
    for kap in range(4):
        R = RAW(kap)
        ls(f'b{half}.w{kap}')
        sw = lambda i, jx, R=R: e(f'v_swap_b32 v{R+4*i+jx}, v{R+4*jx+i}')
        if half:
            for jj in range(4):
                k.wait(vm=f'U{kap}{jj}')
                if kap == 0: k.run(rest[:2 if jj == 3 else 1]); rest = rest[2 if jj == 3 else 1:]
                if jj == 3: assert not rest; ls(f'b{half}.u{kap}')
                e(f'v_max_u32 v{tc}, v{tc}, v{R+4*jj}' if jj else f'v_mov_b32 v{tc}, v{R}')
                if jj == 3: e(f'v_cmp_eq_u32 vcc, -1, v{tc}'); sw(0, 3)
                else:
                    for i in range(jj): sw(i, jj)
            retry_site(lambda kap=kap: uchk(kap), lambda kap=kap: ureload(kap), f'U{half}_{kap}', after=lambda sw=sw: (sw(0, 1), sw(0, 2), sw(1, 2), sw(0, 3)))
        else:
            k.wait(vm=f'U{kap}3'); ls(f'b{half}.u{kap}')
            if kap == 0: k.run(rest); flag_load(); k.refill = save; k.seg(999, 999*OPT['pU'], 300)
            uchk(kap); retry_site(lambda kap=kap: uchk(kap), lambda kap=kap: ureload(kap), f'U{half}_{kap}')
        if kap == 3: stamp(f'B{half}.Uin')
        SP = R if half else 220 + 16*(kap & 1)
        def mf(u, pq):
            A = ACC(u, pq); e(f'v_mfma_f32_32x32x16_f16 {vr(A,16)}, {vr(SP+4*(2*u+pq),4)}, {vr(MF+4*pq,4)}, {vr(A,16) if kap else 0}')
        if half:
            k.wait(lg='M0')
            mf(0, 0); sw(2, 3); sw(1, 3); k.wait(lg='M1'); mf(1, 0)
            if kap < 3: mread(kap + 1, 0)
            mf(0, 1); mf(1, 1)
        else:
            assert ws.ni <= 40
            mv = lambda d: [e(f'v_and_b32 v{SP+4*d+jj}, s{sMK+2}, v{R+4*jj+d}') for jj in range(4)]
            mv(0); mv(2); k.wait(lg='M0'); mf(0, 0); mv(1); mf(1, 0)
            if kap < 3: mread(kap + 1, 0)
            mv(3); k.wait(lg='M1'); mf(0, 1); mf(1, 1)
        if kap < 3: mread(kap + 1, 1)
        xread(kap >> 1, 2*(kap & 1)); xread(kap >> 1, 2*(kap & 1) + 1)
    if half == 0:
        flag_check()
        ws.lag = OPT['lag']; ws.limit = 44; k.bg_period = OPT['pE']
    T = MF
    sel = lambda hi: f's{sHI if hi else sLO}'
    for pq in range(2):
        Y = lambda b, n: ACC(n & 1, pq) + 4*b + (n >> 1)
        e(f'v_mov_b32 v{vu}, v{Y(0,0)}'); e(f'v_cndmask_b32 v{Y(0,0)}, 0, v{Y(0,0)}, {sr(sMK,2)}')
        for b in range(4):
            if b == 3: k.depth += 1; e('s_mov_b32 exec_hi, 0')
            xd, xm = XU(pq, b, 0), XU(pq, b, 1); ls(f'e{half}.{pq}{b}')
            k.wait(lg=f'xm{pq}{b}')
            for n in range(8): e(f'v_dot2_f32_bf16 v{T+n}, v{xd + (n >> 1)}, {sel(n & 1)}, v{Y(b,n)}')
            e(f'v_dot2_f32_bf16 v{Y(b,0)}, v{xm}, {sel(0)}, v{Y(b+1,0) if b < 3 else tc}')
            for m in range(4): e(f'v_cvt_pk_bf16_f32 v{xd+m}, v{T+2*m}, v{T+2*m+1}')
            k.ds(f'ds_write_b128 v{vd}, {vr(xd,4)} offset:{L_X + pq*TOFF(half) + b*us}', 'xw')
            for m in range(1, 8): e(f'v_dot2c_f32_bf16 v{Y(b,8-m)}, {sel(m & 1)}, v{xm + (m >> 1)}')
            if b == 0: e(f'v_permlane32_swap_b32 v{vu}, v{tc}')
            for m in range(4): e(f'v_cvt_pk_bf16_f32 v{xm+m}, v{Y(b,(8-2*m)%8)}, v{Y(b,7-2*m)}')
            k.ds(f'ds_write_b128 v{vmQ if pq else vmP}, {vr(xm,4)} offset:{L_X + (3-b)*us}', 'xw')
        e('s_mov_b32 exec_hi, -1'); k.depth -= 1

def ffn(half):
    us = US(half); toff = TOFF(half); ls(f'e{half}.x')
    vb, vs, vst, vh = vA, vA + 1, vA + 2, vA + 3
    BR = lambda i: B[5] + 4*(i % 3); MFR = B[5] + 12; t = B[5] + 14
    vres = B[4]
    e(f'v_mov_b32 v{vb}, v{vT1 + 1 if half else vX + 3}')
    def adr0():
        e(f'v_lshrrev_b32 v{t}, 3, v{vL}'); e(f's_lshl_b32 s{sT}, s{sW}, 3'); e(f'v_add_u32 v{t}, s{sT}, v{t}'); rowaddr(half, vs, t, t + 1)
        e(f'v_lshlrev_b32 v{vh}, 3, v{t}')
        e(f'v_and_b32 v{t}, 7, v{vL}'); e(f'v_lshl_add_u32 v{vs}, v{t}, {us.bit_length()-1}, v{vs}')
    adr0()
    def more():
        e(f's_mul_i32 s{sT+1}, s{sG}, {8*us}')
        if half == 0:
            e(f'v_and_b32 v{t}, 7, v{vL}'); e(f'v_add_u32 v{t}, s{sT}, v{t}'); rowaddr(half, vres, t, t + 1)
            e(f'v_lshrrev_b32 v{t}, 3, v{vL}'); e(f'v_lshl_add_u32 v{vres}, v{t}, 4, v{vres}'); e(f'v_add_u32 v{vres}, s{sT+1}, v{vres}')
        else: e(f'v_add_u32 v{vres}, s{sT+1}, v{vs}')
        e(f'v_and_b32 v{vst}, 31, v{vL}'); e(f'v_lshlrev_b32 v{vst}, 3, v{vst}')
        e(f's_mov_b32 s{sMK}, -1'); e(f's_mov_b32 s{sMK+1}, 0'); e(f's_mov_b32 s{sMK+2}, 0x80008000')
        if half == 0:
            def ep():
                e(f's_lshl_b32 s{sT+1}, s2, 2'); e(f's_add_u32 s{sT+1}, s{sT+1}, s{sW}'); e(f's_cmp_eq_u32 s{sT+1}, 128'); e('s_cbranch_scc1 L_epoch'); e('L_epoch_ret:')
                k.begin_tail(); e('L_epoch:')
                for i in range(4): e(f'v_mov_b32 v{B[7]+8+i}, s{sN+i}')
                e(f's_mov_b32 s{sT+1}, {WS_EP}'); e('s_mov_b64 exec, 1'); e(f'buffer_store_dwordx4 {vr(B[7]+8,4)}, off, {sr(sWS,4)}, s{sT+1} sc1'); e('s_mov_b64 exec, -1'); e('s_branch L_epoch_ret')
                k.end_tail()
            k.call(ep, 's', 32)
    vh1 = vT1
    V2 = OPT['v2'] and half == 0
    if half == 0: ws.limit = 56
    if half == 0 and not V2: ws.force(-1); k.seg(999, 999*OPT['perG'])
    k.wait(lg='xw'); e('s_barrier')
    stamp(f'B{half}.end')
    if stop(f'B{half}', 61440): return True
    hvo = lambda T: vh1 if T else vL16
    MF2 = [MFR, B[6] if V2 else MFR]
    resrd = lambda T: k.ds(f'ds_read_b128 {vr(vR+4*T,4)}, v{vres} offset:{L_X + T*toff}', 'res')
    if V2:
        k.bg_period = OPT['pP']
        SX_ = lambda T, j: B[0] + 28*T + 4*j; A_ = B[7]
        k.depth += 1
        for T in range(2):
            for j in range(7): k.ds(f'ds_read_b128 {vr(SX_(T,j),4)}, v{vs} offset:{L_X + T*toff + 8*j*us}', f'S{T}{j}')
        k.depth -= 1
        more(); resrd(0); resrd(1); e(f's_mov_b32 s{sT+2}, 0x3f803f80')
        for T in range(2):
            for j in range(7):
                k.wait(lg=f'S{T}{j}')
                for m in range(4):
                    x = SX_(T, j) + m
                    if j == 0 and m == 0: e(f'v_dot2_f32_bf16 v{A_+2*T}, v{x}, s{sT+2}, 0'); e(f'v_dot2_f32_bf16 v{A_+2*T+1}, v{x}, v{x}, 0')
                    else: e(f'v_dot2c_f32_bf16 v{A_+2*T}, s{sT+2}, v{x}'); e(f'v_dot2c_f32_bf16 v{A_+2*T+1}, v{x}, v{x}')
        for c in ('quad_perm:[1,0,3,2]', 'quad_perm:[2,3,0,1]', 'row_half_mirror'):
            for r in range(4): e(f'v_add_f32_dpp v{A_+r}, v{A_+r}, v{A_+r} {c} row_mask:0xf bank_mask:0xf')
        for T in range(2):
            s1, s2, lo = A_ + 2*T, A_ + 2*T + 1, A_ + 4
            e(f'v_mul_f32 v{s1}, {fl(-1.0/448)}, v{s1}'); e(f'v_mul_f32 v{lo}, v{s1}, v{s1}'); e(f'v_fmamk_f32 v{s2}, v{s2}, {fl(-1.0/448)}, v{lo}')
            e(f'v_min_f32 v{s2}, 0, v{s2}'); e(f'v_sub_f32 v{s2}, {fl(1e-5)}, v{s2}'); e(f'v_rsq_f32 v{s2}, v{s2}')
        e('s_nop 0')
        for T in range(2): k.ds(f'ds_write_b64 v{vh}, {vr(A_+2*T,2)} offset:{L_ST + 256*T}', 'stw')
        ls('s.0'); ws.cs_on = 4; ws.cs_flush()
        while ws.sent < OPT['wG1']: k.burst(1)
        ws.force(-1); ws.cs_on = 2; k.seg(999, 999*OPT['perG']); ls('s.1')
    def mfrags():
        ops = rec(lambda: (k.wait(lg='stw'), e('s_barrier'), [k.ds(f'ds_read_b32 v{B[7]+T}, v{vst} offset:{L_ST + 256*T}', 'm') for T in range(2)])) + [None, None, None]
        for T in range(2):
            m, d = B[7] + T, MF2[T]
            ops += rec(lambda: (k.wait(lg='m'), e(f'v_cndmask_b32 v{m}, 0, v{m}, {sr(sMK,2)}'), e(f'v_cvt_pk_bf16_f32 v{d}, v{m}, v{m}'),
                    e(f'v_and_b32 v{t}, s{sFF}, v{d}'), e(f'v_sub_f32 v{m}, v{m}, v{t}'), e(f'v_cvt_pk_bf16_f32 v{d+1}, v{m}, 0')))
        return ops
    ACC1 = lambda T, u: B[2*T + u]
    def bread(i):
        q = i % 28
        def f():
            k.ds(f'ds_read_b128 {vr(BR(i),4)}, v{vb} offset:{L_X + (i//28)*toff + 2*(q % 7 if OPT["rot"] else q)*us}', f'B{i}')
            if OPT['rot'] and q % 7 == 6 and i < 55: e(f'v_add_u32 v{vb}, s{sRD + q//7}, v{vb}')
        return Op('ds', 4, f)
    k.depth += 1; bread(0)(); bread(1)(); k.depth -= 1
    def stats_ops(T):
        SB = lambda j: B[6] + 4*(j % 2); s1, s2, lo, hi = B[6] + 8, B[6] + 9, B[6] + 10, B[6] + 12
        rd = lambda j: k.ds(f'ds_read_b128 {vr(SB(j),4)}, v{vs} offset:{L_X + T*toff + 8*j*us}', f'S{T}{j}')
        ops = rec(lambda: (rd(0), rd(1))) + [None, None]
        def body():
            for j in range(1 if OPT['nostats'] else 7):
                k.wait(lg=f'S{T}{j}')
                for m in range(4):
                    l_, h_ = lo + m % 2, hi + m % 2
                    e(f'v_lshlrev_b32 v{l_}, 16, v{SB(j)+m}'); e(f'v_and_b32 v{h_}, s{sFF}, v{SB(j)+m}')
                    if m == 3 and j + 2 < 7: rd(j + 2)
                    if j == 0 and m == 0: e(f'v_add_f32 v{s1}, v{l_}, v{h_}'); e(f'v_mul_f32 v{s2}, v{l_}, v{l_}'); e(f'v_fmac_f32 v{s2}, v{h_}, v{h_}')
                    else: e(f'v_add_f32 v{s1}, v{s1}, v{l_}'); e(f'v_fmac_f32 v{s2}, v{l_}, v{l_}'); e(f'v_add_f32 v{s1}, v{s1}, v{h_}'); e(f'v_fmac_f32 v{s2}, v{h_}, v{h_}')
        ops += rec(body)
        for c in ('quad_perm:[1,0,3,2]', 'quad_perm:[2,3,0,1]', 'row_half_mirror'):
            ops += rec(lambda: [e('s_nop 0')] + [e(f'v_add_f32_dpp v{r}, v{r}, v{r} {c} row_mask:0xf bank_mask:0xf') for r in (s1, s2)])
        ops += rec(lambda: (e(f'v_mul_f32 v{s1}, {fl(-1.0/448)}, v{s1}'), e(f'v_mul_f32 v{lo}, v{s1}, v{s1}'), e(f'v_fmamk_f32 v{s2}, v{s2}, {fl(-1.0/448)}, v{lo}'),
                e(f'v_min_f32 v{s2}, 0, v{s2}'), e(f'v_sub_f32 v{s2}, {fl(1e-5)}, v{s2}'), e(f'v_rsq_f32 v{s2}, v{s2}'))) + [None]
        ops += rec(lambda: k.ds(f'ds_write_b64 v{vh}, {vr(s1,2)} offset:{L_ST + 256*T}', 'stw')) + [None, None]
        ops += rec(lambda: (k.wait(lg='stw'), e('s_barrier'), k.ds(f'ds_read_b32 v{t}, v{vst} offset:{L_ST + 256*T}', 'm'))) + [None, None, None]
        ops += rec(lambda: (k.wait(lg='m'), e(f'v_cndmask_b32 v{t}, 0, v{t}, {sr(sMK,2)}'), e(f'v_cvt_pk_bf16_f32 v{MFR}, v{t}, v{t}'),
                e(f'v_and_b32 v{t+1}, s{sFF}, v{MFR}'), e(f'v_sub_f32 v{t}, v{t}, v{t+1}'), e(f'v_cvt_pk_bf16_f32 v{MFR+1}, v{t}, 0')))
        return ops
    OWN = [B[4], B[6]]
    def bump(c): k.bg_next = max(k.bg_next, k.clk - 40) + c
    ownfix = lambda T: None
    def epi1(T):
        ng = '-' if half else ''
        for u in range(2):
            for be in range(2):
                d = OWN[T] + 8*u + 4*be; a = ACC1(T, u) + 8*be
                for m in range(4):
                    ng = '-' if (half != (m == 3)) else ''; e(f'v_cvt_pk_bf16_f32 v{d+m}, {ng}v{a+2*m}, {ng}v{a+2*m+1}')
                for m in range(4): e(f'v_pk_max_u16 v{d+m}, v{d+m}, s{sMK+2}' if (half != (m == 3)) else f'v_pk_max_i16 v{d+m}, v{d+m}, 0')
                if OPT['noh'] & (4 << T): continue
                k.call(lambda d=d, u=u, be=be: (k.vmem(f'buffer_store_dwordx4 {vr(d,4)}, v{hvo(T)}, {sr(sWS,4)}, s{sHS} offen offset:{1024*(2*u+be)} sc1', 'hst'), bump(96)), 'vm', 24)
    HB = {(0, 0): B[4], (0, 1): B[0], (0, 2): B[1], (0, 3): B[7], (0, 4): B[4], (0, 5): B[0], (0, 6): B[1],
          (1, 0): B[6], (1, 1): B[7], (1, 2): B[4], (1, 3): B[6], (1, 4): B[7], (1, 5): B[4], (1, 6): B[6]}
    inflight = []
    def hload(T, jp, i, track=True):
        def f():
            if OPT['noh'] & 1: return
            k.vmem(f'buffer_load_dwordx4 {vr(HB[T,jp]+4*i,4)}, v{hvo(T)}, {sr(sWS,4)}, s{sHS+jp} offen offset:{1024*i} sc1', f'h{T}{jp}{i}')
            if track: inflight.append((T, jp, i)); bump(OPT['perH'] if len(inflight) > 12 else 60)
        return Op('vm', 4, f)
    prevuse = {(0, 4): (0, 0), (0, 5): (0, 1), (0, 6): (0, 2), (1, 1): (0, 3), (1, 2): (0, 4), (1, 3): (1, 0), (1, 4): (1, 1), (1, 5): (1, 2), (1, 6): (1, 3)}
    order = [(0, 1), (0, 2), (0, 3), (0, 4), (0, 5), (1, 1), (0, 6)] + [(1, j) for j in range(2, 7)] if OPT['hord'] else [(T, j) for T in range(2) for j in range(1, 7)]
    hq = []
    for T, jp in order:
        for i in range(4):
            rdy = OPT['hq_slot' if half else 'hq0'] if T == 0 else 116 + OPT['t1_slot']
            if (T, jp) in prevuse: pT, pj = prevuse[T, jp]; rdy = max(rdy, 116 + 56*pT + 8*pj + 2*i + 1)
            hq.append((rdy, 116 + 56*T + 8*jp - OPT['hdl'] - 2*(3 - i), T, jp, i))
    def hpace(slot):
        def f():
            if not hq or OPT['noh'] & 1: return
            due = min(x[1] for x in hq[:8]) <= slot
            wfirst = half == 0 and ws.sent < 56 and ws.use(ws.sent) - OPT['lead'] <= hq[0][1]
            if V2 and slot < 116: wfirst = ws.sent < OPT['wG2']; due = False
            if hq[0][0] <= slot and ((k.clk >= k.bg_next and not wfirst) or due):
                x = hq.pop(0)
                if half == 0 and OPT['cntlate'] and x[2:] == (1, 1, 0): cnt_load(vT2 + 1, 1)
                hload(*x[2:])()
                if OPT['verbose'] > 2: print(f'; h{x[2:]} at slot {slot} use {116 + 56*x[2] + 8*x[3]}', file=sys.stderr)
        return Op('vm', 0, f)
    def g1_slots(T):
        sl = []
        for n in range(28):
            i = 28*T + n
            for u in range(2):
                A = ACC1(T, u)
                def mf(A=A, n=n, u=u, i=i):
                    k.wait(lg=f'B{i}')
                    if half == 0 and T == 0: assert ws.done > n; k.wait(lg=f'tr{n}')
                    e(f'v_mfma_f32_32x32x16_bf16 {vr(A,16)}, {w1f(n,u)}, {vr(BR(i),4)}, {vr(A,16) if n else 0}')
                pre = [bread(i + 2)] if (u == 0 and i + 2 < 56) else []
                if u == 0 and n % 7 == 0: pre.append(Op('s', 0, lambda n=n: ls(f'c{half}.{T}{n//7}')))
                if half == 0 and u == 1: pre.append(Op('ds', 0, lambda n=n: ws.force(58*T + 2*n + 1)))
                sl.append([[Op('mfma', 8, mf)], pre, []])
        return sl
    def corr(T): return [[rec(lambda: e(f'v_mfma_f32_32x32x8_bf16 {vr(ACC1(T,u),16)}, {vr(vCS+2*u,2)}, {vr(MF2[T],2)}, {vr(ACC1(T,u),16)}')), [], []] for u in range(2)]
    st0 = stats_ops(0); st1 = stats_ops(1)
    sl = g1_slots(0)
    res = [rec(lambda: k.ds(f'ds_read_b128 {vr(vR+4*T,4)}, v{vres} offset:{L_X + T*toff}', 'res')) for T in range(2)]
    nbg = 4 if V2 else OPT['nbgG']
    if half == 0:
        sl[OPT['css']][1] += rec(cs_load); o = rec(cs_check)
        sl[51][2] += o[:4]; sl[53][2] += o[4:5]; sl[54][2] += o[5:]
    k.slots(sl, mfrags() if V2 else st0[:1] + rec(more) + st0[1:2] + st0[4:18] + res[0] + st0[18:43] + res[1] + st0[43:], 54, nbg=nbg)
    log('g1(0) done')
    if OPT['fine'] & 2: stamp(f'C{half}.g10')
    sl = corr(0) + g1_slots(1)
    for n in range(len(sl)): sl[n][1].append(hpace(56 + n))
    q = st1[:OPT['e0']] + rec(lambda: epi1(0)) + st1[OPT['e0']:OPT['e0']+12] + rec(lambda: ownfix(0)) + st1[OPT['e0']+12:] + rec(lambda: e(f'v_add_u32 v{vh1}, {7*16384}, v{vL16}'))
    if V2: q = rec(lambda: e('s_nop 4')) + [None] + rec(lambda: e('s_nop 4')) + [None] + rec(lambda: epi1(0)) + [None, None] + rec(lambda: (ownfix(0), e(f'v_add_u32 v{vh1}, {7*16384}, v{vL16}')))
    if half == 0 and not OPT['cntlate']: sl[OPT['hq0'] - 57][1] += rec(lambda: cnt_load(vT1 + 1, 1))
    k.slots(sl, q, 18 if V2 else 57, nbg=nbg)
    k.slots(corr(1))
    stamp(f'C{half}.g1')
    k.depth += 1
    while len(inflight) < OPT['hB%d' % half]: hload(*hq.pop(0)[2:])()
    epi1(1)
    if V2:
        ls('s.2')
        while ws.sent < OPT['wG2']: k.burst(1)
        while len(inflight) < OPT['hG2']: hload(*hq.pop(0)[2:])()
        k.bg_next = k.clk; ls('s.3')
    k.depth -= 1
    if OPT['fine'] & 4: stamp(f'C{half}.epi'); k.wait(vm='h023'); stamp(f'C{half}.h02'); k.wait(vm='all'); stamp(f'C{half}.ack')
    if stop(f'C{half}'): return True
    ACC2 = lambda T, v: (B[2 + v] if T == 0 else B[v])
    ORD = [[(kk, v) for kk in range(28) for v in range(2)] for T in range(2)]
    ORD[1] = ORD[1][:48] + [(kk, v) for v in range(2) for kk in range(24, 28)]
    CUR = [0]
    AR = lambda kk, v: B[5] + 4*(ORD[CUR[0]].index((kk, v)) % 4)
    def aread(kk, v):
        def f():
            assert ws.sent > 28 + kk; k.wait(vm=f'w{28+kk}')
            k.ds(f'ds_read_b128 {vr(AR(kk,v),4)}, v{vT2} offset:{2048*(kk-17) + 1024*v}', f'A{kk}{v}')
        return Op('ds', 4, f)
    tc = vb
    def hcheck(T, jp):
        R = HB[T, jp]
        def part(i):
            r = R + 4*i
            e(f'v_or3_b32 v{tc}, v{r}, v{r+1}, v{tc}' if i else f'v_or_b32 v{tc}, v{r}, v{r+1}'); e(f'v_bitop3_b32 v{tc}, v{tc}, v{r+2}, v{r+3} bitop3:0xfd')
        def fin(): e(f'v_and_b32 v{tc}, s{sMK+2}, v{tc}'); e(f'v_cmp_ne_u32 vcc, 0, v{tc}')
        def chk():
            if half == 0: [part(i) for i in range(4)]; fin()
            else: e(f'v_bitop3_b32 v{tc}, v{R}, v{R+4}, v{R+8} bitop3:0x80'); e(f'v_and_b32 v{tc}, v{tc}, v{R+12}'); e(f'v_cmp_le_i32 vcc, 0, v{tc}')
        def br():
            todo = [x for x in inflight if (x[:2] == (T, jp) if OPT['hsel'] else x[:2] >= (T, jp))]
            retry_site(chk, lambda: [hload(*x, track=False)() for x in todo], f'h{half}_{T}{jp}')
        def w(i):
            assert (T, jp, i) in inflight, (T, jp, i); k.wait(vm=f'h{T}{jp}{i}')
        o = [[] for _ in range(8)]
        if half: o[6] = [Op('v', 16, lambda: (w(3), chk()))]
        else:
            o[4] = [Op('v', 20, lambda: (w(1), part(0), part(1)))]; o[5] = [Op('v', 12, lambda: (w(2), part(2)))]; o[6] = [Op('v', 20, lambda: (w(3), part(3), fin()))]
        o[7] = [Op('s', 20, br)]
        return o
    RS = 1088; vrr, vo, vrwb = vs, vh, vT1 + 1
    def g2addr():
        tau, cc = B[5], B[5] + 1
        if half == 0: e(f'v_and_b32 v{tau}, 7, v{vL}'); e(f'v_lshrrev_b32 v{cc}, 3, v{vL}')
        else: e(f'v_lshrrev_b32 v{tau}, 3, v{vL}'); e(f'v_and_b32 v{cc}, 7, v{vL}')
        e(f's_lshl_b32 s{sT}, s{sW}, 3'); e(f'v_add_u32 v{tau}, s{sT}, v{tau}')
        e(f'v_mul_u32_u24 v{vrr}, {RS}, v{cc}'); e(f'v_lshl_add_u32 v{vrr}, v{tau}, 4, v{vrr}')
        e(f'v_lshlrev_b32 v{vst}, 3, v{tau}')
        if half == 0:
            rowaddr(1, vo, tau, cc + 1); e(f'v_lshl_add_u32 v{vo}, v{cc}, 8, v{vo}')
            for T in range(2):
                e(f's_mul_i32 s{sMK+4+T}, s{sRB if T else sP}, 28672'); e(f's_lshl_b32 s{sT}, s{sG}, 11'); e(f's_add_u32 s{sMK+4+T}, s{sMK+4+T}, s{sT}'); e(f's_add_u32 s{sMK+4+T}, s{sMK+4+T}, {WS_X2}')
        else:
            e(f'v_mul_u32_u24 v{vo}, 57344, v{tau}'); e(f'v_lshl_add_u32 v{vo}, v{cc}, 4, v{vo}')
            for T in range(2):
                e(f's_mul_i32 s{sMK+4+T}, s{sRB if T else sP}, 896'); e(f's_lshl_b32 s{sT}, s{sG}, 7'); e(f's_add_u32 s{sMK+4+T}, s{sMK+4+T}, s{sT}')
        e(f's_mul_i32 s{sT}, s{sW}, {8*RS}'); e(f'v_add_u32 v{vrwb}, s{sT}, v{vL16}')
        e('s_barrier')
    def g2more():
        if half == 0:
            e(f's_lshr_b32 s{sT}, s{sW}, 1'); e(f's_lshl_b32 s{sT}, s{sT}, 5'); e(f's_add_u32 s{sT}, s{sT}, s{sP}'); e(f's_lshl_b32 s{sT}, s{sT}, 1')
            e(f's_and_b32 s{sT+1}, s{sW}, 1'); e(f's_add_u32 s{sT}, s{sT}, s{sT+1}'); e(f's_lshl_b32 s49, s{sT}, 10'); e(f's_add_u32 s49, s49, {WS_SS}')
            e(f's_mul_i32 s{sT}, s{sT}, 14336'); e(f's_add_u32 s{sT}, s{sT}, {WS_X2}'); e(f's_lshl_b32 s{sT+1}, s{sG}, 11')
            for b in range(7):
                if b: e(f's_add_u32 s{sT+1}, s{sT+1}, 2048'); e(f's_sub_u32 s{sT+2}, s{sT+1}, 14336'); e(f's_min_u32 s{sT+1}, s{sT+1}, s{sT+2}')
                e(f's_add_u32 s{SX[b]}, s{sT}, s{sT+1}')
            for T in range(2):
                e(f's_lshl_b32 s{sT}, s{sRB if T else sP}, 11'); e(f's_lshr_b32 s{sT+1}, s{sW}, 1'); e(f's_lshl_b32 s{sT+1}, s{sT+1}, 10'); e(f's_add_u32 s{sT}, s{sT}, s{sT+1}')
                e(f's_and_b32 s{sT+1}, s{sW}, 1'); e(f's_lshl_b32 s{sT+1}, s{sT+1}, 7'); e(f's_add_u32 s{sT}, s{sT}, s{sT+1}')
                e(f's_lshr_b32 s{sT+1}, s{sG}, 1'); e(f's_lshl_b32 s{sT+1}, s{sT+1}, 8'); e(f's_add_u32 s{sT}, s{sT}, s{sT+1}')
                e(f's_and_b32 s{sT+1}, s{sG}, 1'); e(f's_lshl_b32 s{sT+1}, s{sT+1}, 3'); e(f's_add_u32 s{sT}, s{sT}, s{sT+1}'); e(f's_add_u32 s{sMK+6+T}, s{sT}, {WS_SS}')
    rr = vSb
    rwr = lambda T, c: k.ds(f'ds_write_b128 v{vrwb}, {vr(ACC2(T, c >> 2) + 4*(c & 3), 4)} offset:{L_RED + RS*c}', 'rw')
    rrd = lambda T: k.ds(f'ds_read_b32 v{rr}, v{vst} offset:{L_ST + 4 + 256*T}', 'rw')
    def red_final(T, PB, pk):
        x = vR + 4*T; ops = []
        for pw in range(4):
            ops += rec(lambda: [k.ds(f'ds_read_b128 {vr(PB+8*pw+4*h,4)}, v{vrr} offset:{L_RED + 8*RS*pw + 512*h}', f'p{pw}') for h in range(2)]) + [None]
        XT = B[7] if pk else None
        def body():
            if pk:
                k.wait(lg='p1')
                for n in range(0, 8, 2): e(f'v_pk_add_f32 {vr(PB+n,2)}, {vr(PB+n,2)}, {vr(PB+8+n,2)}')
                k.wait(lg='p3')
                for n in range(0, 8, 2): e(f'v_pk_add_f32 {vr(PB+16+n,2)}, {vr(PB+16+n,2)}, {vr(PB+24+n,2)}')
                for n in range(0, 8, 2): e(f'v_pk_add_f32 {vr(PB+n,2)}, {vr(PB+n,2)}, {vr(PB+16+n,2)}')
                ng = ' neg_lo:[1,0,0] neg_hi:[1,0,0]' if half else ''
                for n in range(0, 8, 2): e(f'v_pk_fma_f32 {vr(PB+n,2)}, {vr(PB+n,2)}, {vr(rr-1,2)}, {vr(XT+n,2)} op_sel:[0,1,0]{ng}')
            else:
                for pw in range(1, 4):
                    k.wait(lg=f'p{pw}')
                    for n in range(8): e(f'v_add_f32 v{PB+n}, v{PB+n}, v{PB+8*pw+n}')
                for n in range(8): e(f'v_and_b32 v{PB+8+n}, s{sFF}, v{x + n//2}' if n & 1 else f'v_lshlrev_b32 v{PB+8+n}, 16, v{x + n//2}')
                for n in range(8): e(f'v_fma_f32 v{PB+n}, {"-" if half else ""}v{rr}, v{PB+n}, v{PB+8+n}')
            for m in range(4): e(f'v_cvt_pk_bf16_f32 v{x+m}, v{PB+2*m}, v{PB+2*m+1}')
            if half == 0:
                k.vmem(f'buffer_store_dwordx4 {vr(x,4)}, v{vo}, {sr(sWS,4)}, s{sMK+4+T} offen sc1', 'xst')
                a, b, c = PB + 16, PB + 17, PB + 18
                e(f'v_add_f32 v{a}, v{PB}, v{PB+1}'); e(f'v_mul_f32 v{b}, v{PB}, v{PB}'); e(f'v_fmac_f32 v{b}, v{PB+1}, v{PB+1}')
                for n in range(2, 8): e(f'v_add_f32 v{a}, v{a}, v{PB+n}'); e(f'v_fmac_f32 v{b}, v{PB+n}, v{PB+n}')
                e(f'v_and_b32 v{c}, 0x70, v{vL16}'); e(f'v_lshrrev_b32 v{c+1}, 5, v{vL}')
                e(f'v_permlane32_swap_b32 v{a}, v{b}'); e(f'v_add_f32 v{a}, v{a}, v{b}'); e(f'v_mov_b32 v{b}, v{a}'); e(f'v_lshl_add_u32 v{c}, v{c+1}, 2, v{c}')
                e(f'v_permlane16_swap_b32 v{a}, v{b}'); e(f'v_add_f32 v{a}, v{a}, v{b}')
                e(f'v_add_f32_dpp v{a}, v{a}, v{a} row_ror:8 row_mask:0xf bank_mask:0xf')
                k.call(lambda: (e('s_mov_b32 exec_lo, 0xff\ns_mov_b32 exec_hi, 0xff'), k.vmem(f'buffer_store_dword v{a}, v{c}, {sr(sWS,4)}, s{sMK+6+T} offen sc1', 'xst'), e('s_mov_b64 exec, -1')), 's', 16)
            else: k.vmem(f'buffer_store_dwordx4 {vr(x,4)}, v{vo}, {sr(sOUT,4)}, s{sMK+4+T} offen' + (' sc1' if OPT['outsc'] >> T & 1 else ''), 'xst')
        return ops + [None] + rec(body)
    for T in range(2):
        sl = []; CUR[0] = T
        for pos, (kk, v) in enumerate(ORD[T]):
            jp, i = kk >> 2, kk & 3
            if True:
                A = ACC2(T, v); wr = w2reg(kk, v)
                def mf(A=A, wr=wr, kk=kk, v=v, jp=jp, i=i):
                    if wr is None: k.wait(lg=f'A{kk}{v}')
                    elif half == 0 and T == 0:
                        assert ws.sent > 28 + kk; k.wait(vm=f'w{28+kk}')
                    a = rn(wr, 4) if wr else vr(AR(kk, v), 4)
                    e(f'v_mfma_f32_32x32x16_bf16 {vr(A,16)}, {a}, {vr(HB[T,jp]+4*i,4)}, {vr(A,16) if kk else 0}')
                pre, post = [], []
                if i == 0 and v == 0: pre.append(Op('s', 0, lambda jp=jp, T=T: ls(f'g{half}.{T}{jp}')))
                if half == 0 and T == 0 and v == 0: pre.append(Op('ds', 0, lambda kk=kk: ws.force(116 + 2*kk)))
                if pos + 4 < 56 and ORD[T][pos + 4][0] >= 17: pre.append(aread(*ORD[T][pos + 4]))
                pre.append(hpace(116 + 56*T + 2*kk + v))
                if jp < 6 and not OPT['noh'] & 2: post += hcheck(T, jp + 1)[2*i + v]
                sl.append([[Op('mfma', 8, mf)], pre, post])
        if T == 0: k.slots(sl[:26], rec(lambda: (half or OPT['cntlate'] or cnt_check(vT1 + 1, 1), g2addr())), 24); k.slots(sl[26:], rec(g2more), 28)
        else:
            k.bg_flush(); assert half or ws.ni == 56
            q = [None, None]
            q += rec(lambda: rrd(0))
            if half == 0 and OPT['cntlate']: sl[9][2] += rec(lambda: (e(f's_mov_b32 s{sIM}, s49'), cnt_check(vT2 + 1, 1), e(f's_mov_b32 s49, s{sIM}')))
            for c in range(8): q += rec(lambda: rwr(0, c)) + [None, None]
            q += rec(lambda: (k.wait(lg='rw'), e('s_barrier'))) + red_final(0, B[2], False) + [None] + rec(lambda: (e('s_barrier'), rrd(1)))
            x = vR + 4
            un = rec(lambda: [e(f'v_and_b32 v{B[7]+n}, s{sFF}, v{x + n//2}' if n & 1 else f'v_lshlrev_b32 v{B[7]+n}, 16, v{x + n//2}') for n in range(8)])
            sl[52][2] += un[:5]; sl[53][2] += un[5:]; sl[54][2] += rec(lambda: rwr(1, 0)); sl[55][2] += rec(lambda: rwr(1, 1))
            k.slots(sl, q, 51)
        log(f'g2({T}) done')
        if OPT['fine'] & 2 and T == 0: stamp(f'D{half}.g20')
    stamp(f'D{half}.g2')
    for c in range(2, 8): rwr(1, c)
    ls(f'd{half}.w'); k.wait(lg='all'); e('s_barrier'); ls(f'd{half}.b')
    k.run(red_final(1, B[2], True))
    stamp(f'D{half}.st')
    k.refill = None
    return False

def only_stream():
    srds((sX0, sW1, sW2, sWS)); e(f's_lshl_b32 s49, s3, 2'); e(f's_add_u32 s49, s49, s{sW}')
    e(f'v_lshlrev_b32 v17, 7, v{vL}'); e(f's_mul_i32 s{sIL}, s49, {14*128}')
    e('s_waitcnt lgkmcnt(0)'); copy_ptrs(True); copy_ptrs(False)
    e(f's_mov_b32 s{sTS}, s50'); nts[0] = 1; tsn.append('start'); e(f's_mov_b32 s{sRETRY}, 20000')
    e('s_mov_b64 exec, 0x3fff')
    if OPT['touch'] & 2: k.vmem(f'buffer_load_dword v19, v17, {sr(sW1,4)}, s{sIL} offen', 'touch')
    if OPT['touch'] & 4: k.vmem(f'buffer_load_dword v19, v17, {sr(sW2,4)}, s{sIL} offen', 'touch')
    e('s_mov_b64 exec, -1')
    stream_setup(); late_setup(); warm(0, 1); warm(1, 5)
    if OPT['touch'] & 8: k.wait(vm='touch')
    stamp('go'); ws.limit = 56; ws.lag = 9
    while ws.ni < 56 or ws.nd < 45:
        n = ws.nd; ws.refill(); k.bg_flush()
        if ws.nd != n and ws.nd % 7 == 0: stamp(f'nd{ws.nd}')
    k.wait(vm='all'); stamp('end'); finish_stamps(); e('s_endpgm')
def main():
    prologue()
    if OPT['only']: return only_stream()
    for half in range(2):
        HALF[0] = half
        phA(half)
        if stop(f'A{half}'): return
        phB(half)
        if ffn(half): return
        if stop(f'D{half}'): return
    finish_stamps()
    e('s_endpgm')
main()
k.tail.append('L_end:')
k.tail.append('s_endpgm')
txt, nops = finish(k, OPT['grid'], 256, LDS_SZ, verbose=OPT['verbose'] > 1, pads=PADS if OPT['pads'] else None)
print(txt)
print(f'; wait states added: {nops}; stamps: {",".join(tsn)}')
```

```python
import sys, struct, re
from kasm import *

OPT = dict(ts=0, stop='', verbose=0, hq_slot=90, t1_grp=4, grid=256, lag=9, perA=96, perB=96, perG=72, perH=70, rot=0, touch=1, pads=1, hpre=17, nx=8, nA=99, dA=60, nT=2, nK=24, nU=10, nE=10, nU0=0, nS=0, late=1250, xack=0, uack=1, ud=500, outsc=0, xd=860, wt=0, usel=1, hsel=1, hl=14, stag=1, hack=1, ta=2, fl=3, fc=2, ja=3, fl2=10, fc2=11, l2k=28, css=19, hB0=12, hB1=0, v2=0, w2t=0, imgb=8, wsc='sc1', pP=84, wG1=22, wG2=50, hG2=10, ssp=5, rt=0, clump=80, nbgA=1, nbgG=2, l2first=2, cntlate=1, pS=92, pA=92, pT=92, pK=92, pU=92, pE=92, n0=11, xs0=4, fillslot=6, e0=14, t1_slot=26, hord=0, hdl=14, lead=18, rot2=0, only=0, hq0=100,
           idleU=500, nostats=0, nofill=0, nocnt=0, fine=0, noh=0)
for a in sys.argv[1:]:
    key, val = a.split('=')
    OPT[key] = val if key in ('stop', 'amp', 'ls') else int(val)
AMP = OPT.get('amp')
if AMP: OPT['ts'] = 1
TS, STOP = OPT['ts'], OPT['stop']
TSI = 's_memtime' if TS == 2 else 's_memrealtime'

S, D, F = 2048, 448, 1792
XB = S * D * 2
WS_U1, WS_U2, WS_X2, WS_H = 0, XB, 2 * XB, 3 * XB
WS_SS = WS_H + S * F * 2
WS_WF = WS_SS + 131072
WS_CS = WS_WF + D * F * 2
WS_FL = WS_CS + 16384
WS_EP = WS_FL + 12288
WS_END = WS_EP + 64
WS_TS = 0x1000000
WS_DBG = 0x1100000
L_X = 0; L_RED = 28672; L_H = 0; L_ST = 64512
L_M = 65536; L_WA = L_M + 8192; WA_SZ = 22528
L_C = lambda half: 57344 if half else L_M
LDS_SZ = L_WA + 4 * WA_SZ
assert LDS_SZ <= 163840
NSLOT = 11
sX0, sW1, sW2, sOUT, sWS = 8, 12, 16, 20, 24
sW, sG, sP, sRB, sRETRY, sWA, sSO, sLO, sHI, sCI = 32, 33, 34, 35, 36, 37, 38, 39, 40, 41
sT = 42
sBG = 48
sMK = 52
sHS = 60
sIM, sIL = 67, 68
sFF = 69
sUO = 4
sRD = 96
sN = 28
sTS = 70
sDBG = 92
sRC = 100
sRO = 101
vL, vL16, vCS, vSa, vSb, vT1, vT2, vA = 0, 1, 2, 6, 7, 8, 10, 12
B = [16 + 16 * i for i in range(8)]; vR = 144
vCA, vSEL, vX = 240, 248, 252
def w1f(n, u): return ar(8 * n + 4 * u, 4)
def w2reg(kk, v):
    if kk < 4: return ('a', 224 + 8 * kk + 4 * v)
    if kk < 17: return ('v', 152 + 8 * (kk - 4) + 4 * v)
    return None
def rn(t, n): return ar(t[1], n) if t[0] == 'a' else vr(t[1], n)
fl = lambda x: '0x%08x' % struct.unpack('<I', struct.pack('<f', x))[0]

k = K(); e = k.e; rec = k.rec; k.clump = OPT['clump']
nts = [0]; tsn = []
def log(msg):
    if OPT['verbose']: print(f'; [{k.clk}] {msg} ni={ws.ni} nd={ws.nd} cs={ws.nc}', file=sys.stderr)
LS = OPT.get('ls')
def ls(name):
    if TS and LS and re.fullmatch(LS, name):
        i = nts[0]; nts[0] += 1; tsn.append(name); assert i < 11
        k._emit(f'{TSI} s[{sTS+2*i}:{sTS+2*i+1}]')
def stamp(name):
    log(name)
    if LS: return ls(name)
    if not TS or (AMP and name != AMP) or ('half' in OPT and name[1] == str(1 - OPT['half']) and name != 'D0.st'): return
    i = nts[0]; nts[0] += 1; tsn.append(name); assert i < 22
    k.wait(lg='all')
    e(f'{TSI} s[50:51]\ns_waitcnt lgkmcnt(0)\ns_mov_b32 s{sTS+i}, s50')
def finish_stamps():
    if not TS: return
    if AMP:
        e('s_cmp_lg_u32 s2, 100'); e('s_cbranch_scc1 L_exit')
        e(f's_sub_u32 s44, s{sTS+1}, s{sTS}'); e('s_min_u32 s44, s44, 10000'); e('s_mul_i32 s44, s44, 20')
        e('s_memrealtime s[50:51]'); e('s_waitcnt lgkmcnt(0)'); e('s_add_u32 s44, s44, s50')
        e('L_amp:'); e('s_memrealtime s[50:51]'); e('s_waitcnt lgkmcnt(0)'); e('s_sub_u32 s45, s50, s44'); e('s_cmp_lt_i32 s45, 0'); e('s_cbranch_scc1 L_amp')
        return
    e('v_mov_b32 v16, 0')
    e('s_waitcnt lgkmcnt(0)')
    for i in range(nts[0]): e(f'v_writelane_b32 v16, s{sTS + (2*i if LS and not k.in_tail else i)}, {i}')
    e(f'v_writelane_b32 v16, s{sRETRY}, 63'); e(f'v_writelane_b32 v16, s{sRC}, 62')
    e(f's_lshl_b32 s{sT}, s2, 2'); e(f's_add_u32 s{sT}, s{sT}, s{sW}'); e(f's_lshl_b32 s{sT}, s{sT}, 8'); e(f's_add_u32 s{sT}, s{sT}, {WS_TS}')
    e(f'v_lshlrev_b32 v17, 2, v{vL}')
    e(f'buffer_store_dword v16, v17, {sr(sWS,4)}, s{sT} offen')
def stop(name, dump_lds=0):
    if STOP != name: return False
    k.bg_period = None
    k.wait(vm='all', lg='all'); e('s_barrier')
    if dump_lds:
        e(f's_lshl_b32 s{sT}, s{sW}, 10'); e(f'v_add_u32 v20, s{sT}, v{vL16}')
        e(f's_lshl_b32 s{sT}, s2, 16'); e(f's_add_u32 s{sT}, s{sT}, {WS_DBG}')
        for i in range(dump_lds // 4096):
            e(f'ds_read_b128 v[16:19], v20'); e('s_waitcnt lgkmcnt(0)')
            e(f'buffer_store_dwordx4 v[16:19], v20, {sr(sWS,4)}, s{sT} offen'); e('s_nop 1'); e('v_add_u32 v20, 4096, v20')
    finish_stamps(); e('s_endpgm')
    return True

RCLS = {'cnt': 0, 'U0': 1, 'h0': 2, 'x2': 3, 'img': 4, 'U1': 5, 'h1': 6}
def retry_site(check, reload, name, br='s_cbranch_vccnz', after=None):
    def f():
        slow, ok = k.lab('slow_' + name), k.lab('ok_' + name)
        e(f'{br} {slow}'); e(f'{ok}:')
        k.begin_tail()
        e(f'{slow}:')
        e(f's_cmp_eq_u32 s{sRETRY}, 0'); e(f's_cbranch_scc1 {ok}'); e(f's_sub_u32 s{sRETRY}, s{sRETRY}, 1')
        if TS: e(f's_add_u32 s{sRC}, s{sRC}, {1 << 4*RCLS[name.split("_")[0]]}')
        reload(); k.wait(vm='all', lg='all'); check(); k.wait(vm='all', lg='all')
        e(f'{br} {slow}')
        if after: after()
        e('s_nop 1'); e(f's_branch {ok}')
        k.end_tail()
    k.call(f, 's', 20)
def cnt_load(reg, i=1):
    def f():
        e(f'v_lshlrev_b32 v{reg}, 7, v{vL}'); e(f's_lshl_b32 s{sBG}, s{sW}, 10'); e(f's_add_u32 s{sBG}, s{sBG}, {WS_FL + 8192}')
        e('s_mov_b64 exec, 0xff'); k.vmem(f'buffer_load_dword v{reg}, v{reg}, {sr(sWS,4)}, s{sBG} offen sc1', 'cnt'); e('s_mov_b64 exec, -1')
    k.call(f, 'v', 24)
def cnt_check(reg, i=1):
    chk = lambda: e(f'v_cmp_ne_u32 {sr(sT+4,2)}, s{sN}, v{reg}\ns_nop 0\ns_and_b32 s{sT+4}, s{sT+4}, 0xff')
    k.call(lambda: (k.wait(vm='cnt'), chk(), retry_site(chk, lambda: (e('s_sleep 4'), cnt_load(reg)), 'cnt_1', 's_cbranch_scc1'), CHECKED.append(1)), 'v', 36)
CHECKED = []
def flag_load(i=0):
    def f():
        e(f'v_min_u32 v{vCS}, 6, v{vL}'); e(f's_lshl_b32 s49, s{sW}, 7'); e(f'v_lshlrev_b32 v{vCS}, 9, v{vCS}'); e(f's_add_u32 s49, s49, {WS_FL + 4096*i}')
        e('s_mov_b64 exec, 0x7f'); k.vmem(f'buffer_load_dword v{vCS+1}, v{vCS}, {sr(sWS,4)}, s49 offen sc1', 'flag'); e('s_mov_b64 exec, -1')
    k.call(f, 'v', 28)
def flag_check(i=0):
    chk = lambda: e(f'v_cmp_ne_u32 vcc, s{sN}, v{vCS+1}\ns_nop 0\ns_and_b64 vcc, vcc, 0x7f')
    k.call(lambda: (k.wait(vm='flag'), chk(), retry_site(chk, lambda: (e('s_sleep 4'), flag_load(i)), 'cnt_f', 's_cbranch_scc1')), 'v', 36)
def cs_load():
    def f():
        e(f's_lshl_b32 s49, s{sG}, 2\ns_add_u32 s49, s49, s{sW}\ns_lshl_b32 s49, s49, 9\ns_add_u32 s49, s49, {WS_CS}\nv_and_b32 v{vT2+1}, 0x1f0, v{vL16}')
        k.vmem(f'buffer_load_dwordx4 {vr(vCS,4)}, v{vT2+1}, {sr(sWS,4)}, s49 offen sc1', 'cs')
    k.call(f, 's', 24)
def cs_check():
    def chk(): e(f'v_xor_b32 v{vT2+1}, s{sN+1}, v{vCS+1}'); e(f'v_bitop3_b32 v{vT2+1}, v{vT2+1}, v{vCS+3}, s{sN+3} bitop3:0xf6'); e(f'v_cmp_lt_u32 vcc, 0xffff, v{vT2+1}')
    k.wait(vm='cs'); chk(); retry_site(chk, lambda: (e('s_sleep 4'), cs_load()), 'cnt_c')
    e(f'v_and_b32 v{vCS+1}, 0xffff, v{vCS+1}'); e(f'v_and_b32 v{vCS+3}, 0xffff, v{vCS+3}')
def warm(site, first):
    def f():
        if OPT['pads']:
            e('s_mov_b64 exec, 0')
            for w in range(3): e(f's_cmp_eq_u32 s{sW}, {w}'); e(f's_cbranch_scc1 L_pad{first+w}')
            e(f's_branch L_pad{first+3}')
        elif site == 0: e('s_branch L_ret0')
        if site == 0: k.in_tail = True; helper(); k.in_tail = False
        e(f'L_ret{site}:'); e('s_mov_b64 exec, -1'); k.clk += 200
    k.call(f, 's', 250)
PADS = lambda p: 'L_ret0' if p <= 4 else f'L_pad{p+2}' if p <= 6 else 'L_ret1' if p <= 8 else f'L_pad{p+2}' if p <= 14 else 'L_ret2'

class Stream:
    def __init__(s): s.ni = 0; s.nd = 0; s.nc = 56; s.limit = 4; s.lag = OPT['lag']
    def issue_ops(s):
        n = s.ni; s.ni += 1
        if n >= 28:
            kk = n - 28
            def ld(v):
                if v == 0 and kk == 0: e(f's_lshl_b32 s{sSO}, s{sG}, 2\ns_add_u32 s{sSO}, s{sSO}, s{sW}\ns_mul_i32 s{sSO}, s{sSO}, {28*2048}\ns_add_u32 s{sSO}, s{sSO}, {WS_WF}')
                if v == 0 and kk == 17: assert s.done == 28; k.wait(lg='tr27')
                if v == 0 and (kk == 17 or kk > 17 and kk % 2 == 0): e(f's_add_u32 m0, s{sWA}, {(kk - kk % 2 - 17)*2048}')
                if v == 0 and kk and kk % 2 == 0: e(f's_add_u32 s{sSO}, s{sSO}, 4096')
                t = w2reg(kk, v); off = 2048*(kk % 2) + 1024*v; tag = f'w{n}' if v else f'wa{n}'
                if t: k.vmem(f'buffer_load_dwordx4 {rn(t,4)}, v{vL16}, {sr(sWS,4)}, s{sSO} offen offset:{off} sc1', tag)
                else: k.vmem(f'buffer_load_dwordx4 v{vL16}, {sr(sWS,4)}, s{sSO} offen offset:{off} sc1 lds', tag)
                if v: s.sent = n + 1
            return [Op('vm', 8, lambda: ld(0), 1), Op('vm', 4, lambda: ld(1), 1)]
        srd = sr(sW1, 4)
        def a():
            if n >= NSLOT: assert s.done > n - NSLOT; k.wait(lg=f'tr{n-NSLOT}')
            elif n >= 4: k.wait(lg=f'xr{n-4}')
            e(f's_add_u32 m0, s{sWA}, {(n % NSLOT)*2048}')
            if n: e(f's_add_u32 s{sSO}, s{sSO}, {16*3584}')
            if n and n % 7 == 0 and OPT['rot']: e(f's_sub_u32 s{sBG}, s{sSO}, {D*3584}\ns_min_u32 s{sSO}, s{sSO}, s{sBG}')
            k.vmem(f'buffer_load_dwordx4 v{vSa}, {srd}, s{sSO} offen lds', f'wa{n}')
        def b(): k.vmem(f'buffer_load_dwordx4 v{vSb}, {srd}, s{sSO} offen offset:1024 lds', f'w{n}'); s.sent = n + 1
        return [Op('s', 12, a, 1), Op('vm', 4, b, 1)]
    def drain_ops(s):
        n = s.nd; s.nd += 1
        so = (n % NSLOT) * 2048
        def rd(u, h2):
            def f():
                assert s.sent > n; k.wait(vm=f'w{n}')
                if n < 28: dst, ad, off = ar(8*n + 4*u + 2*h2, 2), vT1 + u, so + 512*h2
                else:
                    t = w2reg(n - 28, u); dst, ad, off = rn((t[0], t[1] + 2*h2), 2), vT2 + u, so + 1024*h2
                k.ds(f'ds_read_b64_tr_b16 {dst}, v{ad} offset:{off}', f'tr{n}')
                if u and h2: s.done = n + 1
            return Op('ds', 4, f)
        return [rd(0, 0), rd(0, 1), rd(1, 0), rd(1, 1)]
    done = 0; sent = 0
    cs_on = 0; dmax = 28
    def free(s, n): return n - NSLOT < s.nd if n < 28 else (n < 45 or s.nd == 28)
    def refill(s):
        can = s.ni < min(56, s.limit) and s.free(s.ni)
        if s.nd < min(28, s.ni) and s.lag < 99 and (s.ni - s.nd > s.lag or (not can and s.ni >= 28)): k.bg += s.drain_ops()
        elif can: k.bg += s.issue_ops()
    def ensure(s, n):
        while s.done <= n:
            if not k.bg:
                if s.ni <= n and s.free(s.ni): k.bg += s.issue_ops()
                else: k.bg += s.drain_ops()
            k.bg_step()
    use = staticmethod(lambda n: 2*n if n < 28 else 116 + 2*(n - 28))
    def force(s, slot):
        if s.sent < s.ni and s.use(s.sent) <= slot + OPT['lead']: k.bg_flush()
        while s.ni < 56 and s.use(s.ni) <= slot + OPT['lead']:
            k.bg_flush()
            while not s.free(s.ni): k.bg += s.drain_ops()
            k.bg += s.issue_ops(); k.bg_flush()
        n = max([-1] + [i for i in range(28) if s.use(i) <= slot + 4])
        if n >= 0: s.ensure(n)
    def cs_op(s):
        n, u = s.nc >> 1, s.nc & 1; s.nc += 1
        def g():
            assert s.done > n; k.wait(lg=f'tr{n}')
            acc = vr(vCA + 4*u, 4)
            e(f'v_mfma_f32_16x16x32_bf16 {acc}, {vr(vSEL,4)}, {w1f(n, u)}, {acc if n else 0}')
        return Op('mfma', 16, g)
    def cs_flush(s, maxn=99, behind=0):
        while s.nc < 2*min(28, s.done - behind) and maxn > 0: k.run([s.cs_op()]); maxn -= 1
ws = Stream()
def src_off(stride):
    e(f'v_lshrrev_b32 v{vSa}, 3, v{vL}'); e(f'v_lshrrev_b32 v{vSb}, 2, v{vL}'); e(f'v_and_b32 v{vSb}, 4, v{vSb}')
    e(f'v_xor_b32 v{vSb}, v{vSb}, v{vL}'); e(f'v_and_b32 v{vSb}, 7, v{vSb}'); e(f'v_mul_u32_u24 v{vSa}, {stride}, v{vSa}')
    e(f'v_lshl_add_u32 v{vSa}, v{vSb}, 4, v{vSa}'); e(f'v_add_u32 v{vSb}, {8*stride-1024}, v{vSa}')
def tr_addr(dst, sh, t):
    e(f'v_bfe_u32 v{t}, v{vL}, 2, 2'); e(f'v_bfe_u32 v{t+1}, v{vL}, 3, 1'); e(f'v_bfe_u32 v{t+2}, v{vL}, 4, 1'); e(f'v_and_b32 v{t+3}, 3, v{vL}')
    e(f'v_lshlrev_b32 v{t}, 7, v{t}'); e(f'v_lshl_add_u32 v{t}, v{t+1}, 6, v{t}'); e(f'v_lshl_add_u32 v{t}, v{t+2}, 5, v{t}'); e(f'v_lshl_add_u32 v{t}, v{t+3}, 3, v{t}')
    e(f'v_add_u32 v{t}, s{sWA}, v{t}'); e(f'v_lshrrev_b32 v{t+1}, 5, v{vL}')
    e(f'v_lshl_add_u32 v{dst}, v{t+1}, {sh}, v{t}'); e(f'v_xor_b32 v{dst+1}, 64, v{dst}')
def stream_setup():
    src_off(3584)
    rot = OPT['rot']
    e(f's_lshl_b32 s{sSO}, s{sG}, 2'); e(f's_add_u32 s{sSO}, s{sSO}, s{sW}'); e(f's_lshl_b32 s{sSO}, s{sSO}, 7')
    if rot:
        e(f's_and_b32 s{sRO}, s2, 3' if rot == 3 else f's_add_u32 s{sRO}, s2, s{sW}\ns_and_b32 s{sRO}, s{sRO}, 3'); e(f's_mul_i32 s{sT}, s{sRO}, {7*16*3584}'); e(f's_add_u32 s{sSO}, s{sSO}, s{sT}')
    tr_addr(vT1, 10, B[1]); e(f'v_add_u32 v{vT2}, s{sWA}, v{vL16}')
def late_setup():
    e(f's_mul_i32 s{sT}, s{sP}, {2*7*16384}'); e(f's_lshl_b32 s{sT+1}, s{sW}, 12'); e(f's_add_u32 s{sT}, s{sT}, s{sT+1}'); e(f's_add_u32 s{sT}, s{sT}, {WS_H}')
    e({0: f's_mov_b32 s{sT+3}, 1', 1: f's_add_u32 s{sT+3}, s{sCI}, 1', 2: f's_and_b32 s{sT+3}, s2, 3\ns_add_u32 s{sT+3}, s{sT+3}, 1'}[OPT['rot2']]); e(f's_mov_b32 s{sT+1}, s{sG}')
    for jp in range(7):
        if jp: e(f's_add_u32 s{sT+1}, s{sT+1}, s{sT+3}'); e(f's_sub_u32 s{sT+2}, s{sT+1}, 7'); e(f's_min_u32 s{sT+1}, s{sT+1}, s{sT+2}')
        e(f's_lshl_b32 s{sT+2}, s{sT+1}, 14'); e(f's_add_u32 s{sHS+jp}, s{sT}, s{sT+2}')

def prologue():
    e('s_load_dwordx2 s[8:9], s[0:1], 0'); e('s_load_dwordx4 s[4:7], s[0:1], 48')
    e('s_load_dwordx2 s[20:21], s[0:1], 64'); e('s_load_dwordx2 s[24:25], s[0:1], 80')
    e('s_getpc_b64 s[46:47]'); e('L_pc:')
    e('v_lshrrev_b32 v1, 6, v0'); e('v_and_b32 v0, 63, v0'); e('s_bfe_u32 s3, s2, 0x50003'); e(f'v_readfirstlane_b32 s{sW}, v1')
    e('v_lshl_add_u32 v2, s3, 2, v1'); e('v_lshl_add_u32 v2, v0, 7, v2'); e('v_lshlrev_b32 v2, 7, v2'); e('v_min_u32 v2, L_end-L_pc, v2')
    e('s_mov_b64 exec, 7'); k.vmem('global_load_dword v3, v2, s[46:47]', 'touch'); e('s_mov_b64 exec, -1')
    e(f'v_lshlrev_b32 v{vL16}, 4, v0')
    e('s_sub_u32 s3, s2, 32'); e('s_cmp_ge_u32 s3, 224'); e('s_cbranch_scc1 L_helper')
    if TS: e(f'{TSI} s[50:51]'); e(f's_mov_b32 s{sRC}, 0')
    e(f's_lshr_b32 s{sT}, s3, 3'); e(f's_mul_i32 s{sCI}, s{sT}, 37'); e(f's_lshr_b32 s{sCI}, s{sCI}, 8')
    e(f's_mul_i32 s{sG}, s{sCI}, 7'); e(f's_sub_u32 s{sG}, s{sT}, s{sG}')
    e(f's_and_b32 s{sP}, s3, 7'); e(f's_lshl_b32 s{sP}, s{sP}, 1'); e(f's_lshr_b32 s{sT}, s{sCI}, 1'); e(f's_add_u32 s{sP}, s{sP}, s{sT}')
    e(f's_sub_u32 s{sT}, 32, s{sP}'); e(f's_cmp_eq_u32 s{sP}, 0'); e(f's_cselect_b32 s{sT}, 16, s{sT}')
    e(f's_bitcmp1_b32 s{sCI}, 0'); e(f's_cselect_b32 s{sP}, s{sT}, s{sP}')
    e(f's_mul_i32 s{sWA}, s{sW}, {WA_SZ}'); e(f's_add_u32 s{sWA}, s{sWA}, {L_WA}')
def srds(which):
    for r, n in ((sX0, XB), (sW1, D*F*2), (sW2, D*F*2), (sOUT, XB), (sWS, 0x2000000 if (TS or STOP) else WS_END)):
        if r in which: e(f's_mov_b32 s{r+2}, {n}'); e(f's_mov_b32 s{r+3}, 0x20000')
def copy_ptrs(first):
    if first: e(f's_mov_b32 s{sW1}, s4'); e(f's_mov_b32 s{sW1+1}, s5')
    else:
        e(f's_mov_b32 s{sW2}, s6'); e(f's_mov_b32 s{sW2+1}, s7')

def helper():
    e('L_helper:')
    e('s_cmp_ge_u32 s2, 32'); e('s_cbranch_scc1 L_exit')
    srds((sW1, sW2, sWS))
    e(f's_mul_i32 s{sWA}, s{sW}, {WA_SZ}'); e(f's_add_u32 s{sWA}, s{sWA}, {L_WA}'); src_off(896)
    e(f's_lshl_b32 s{sT}, s2, 2'); e(f's_add_u32 s{sT}, s{sT}, s{sW}'); e(f's_mul_i32 s{sT+3}, s{sT}, {14*128}'); e(f's_mul_i32 s{sT}, s{sT}, {16*896}'); e(f's_mov_b32 s{sT+1}, {WS_EP}'); e(f'v_lshlrev_b32 v9, 7, v{vL}')
    e('s_waitcnt lgkmcnt(0)'); copy_ptrs(True); copy_ptrs(False)
    hs = [0]
    def hstamp(w=None):
        if TS and not AMP:
            if w is not None: e(f's_waitcnt vmcnt({w})')
            e(f'{TSI} s[50:51]\ns_waitcnt lgkmcnt(0)\ns_mov_b32 s{sTS+hs[0]}, s50'); hs[0] += 1
    hstamp()
    if TS:
        for i in range(1, 4): e(f's_mov_b32 s{sTS+i}, s50')
    def touch(n):
        e('s_mov_b64 exec, 0x3fff')
        for i in range(n): e(f'buffer_load_dword v144, v9, {sr(sW1,4)}, s{sT+3} offen'); e(f's_add_u32 s{sT+3}, s{sT+3}, {128*14*128}'); e('s_barrier')
        e('s_mov_b64 exec, -1')
    TA = OPT['ta']; touch(TA)
    e(f'buffer_load_dwordx4 v[140:143], off, {sr(sWS,4)}, s{sT+1} sc1')
    e('s_cmp_ge_u32 s2, 28'); e('s_cbranch_scc1 L_hrest')
    e(f's_lshr_b32 s{sT+1}, s2, 2')
    for j in range(7):
        if j: e(f's_sub_u32 s{sT+1}, s{sT+1}, 1'); e(f's_min_u32 s{sT+1}, s{sT+1}, 6')
        e(f's_add_u32 m0, s{sWA}, {2048*j}'); e(f's_lshl_b32 s{sT+2}, s{sT+1}, 7'); e(f's_add_u32 s{sT+2}, s{sT+2}, s{sT}')
        e(f'buffer_load_dwordx4 v{vSa}, {sr(sW2,4)}, s{sT+2} offen lds'); e(f'buffer_load_dwordx4 v{vSb}, {sr(sW2,4)}, s{sT+2} offen offset:1024 lds')
    e('s_branch L_helper2')
    save = k.out; k.out = k.tail
    e('L_hrest:'); touch(7 - TA)
    e(f's_sub_u32 s{sT}, s2, 28'); e(f's_mul_i32 s{sT}, s{sT}, {XB//4}'); e(f's_add_u32 s{sT}, s{sT}, {WS_U2}'); e(f's_mov_b32 s{sT+1}, {XB//4//8192}'); e('s_branch L_hfill2')
    e('L_helper2:'); touch(7 - TA)
    tr_addr(vT2, 9, 12)
    e(f's_and_b32 s{sT}, s2, 3'); e(f's_mul_i32 s{sT}, s{sT}, 28'); e(f's_add_u32 s{sT}, s{sT}, s{sW}'); e(f's_lshl_b32 s{sT}, s{sT}, 11'); e(f's_add_u32 s{sT}, s{sT}, {WS_WF}')
    e(f's_lshr_b32 s{sT+1}, s2, 2'); e(f's_mov_b32 s{sT+4}, 0x80008000')
    e(f'v_lshrrev_b32 v2, 3, v{vL}'); e(f'v_lshl_add_u32 v2, s{sW}, 3, v2'); e('v_mul_u32_u24 v4, 3584, v2'); e(f'v_and_b32 v8, 0x70, v{vL16}'); e('v_add_u32 v4, v4, v8')
    JA = OPT['ja']
    e(f's_lshl_b32 s{sT+5}, s2, 7'); e(f's_add_u32 s{sT+5}, s{sT+5}, {WS_FL}')
    def reads(j0, j1, younger):
        for j in range(j0, j1):
            e(f's_waitcnt vmcnt({12 - 2*j + 7 - TA + younger})')
            for v in range(2):
                for h2 in range(2): e(f'ds_read_b64_tr_b16 {vr(80+8*j+4*v+2*h2,2)}, v{vT2+v} offset:{2048*j + 1024*h2}')
        e('s_waitcnt lgkmcnt(0)')
    def stores(j0, j1):
        for j in range(j0, j1):
            if j: e(f's_sub_u32 s{sT+1}, s{sT+1}, 1'); e(f's_min_u32 s{sT+1}, s{sT+1}, 6'); e(f's_add_u32 s{sT}, s{sT}, 8192')
            e(f's_mul_i32 s{sT+2}, s{sT+1}, {4*28*2048}'); e(f's_add_u32 s{sT+2}, s{sT+2}, s{sT}')
            for v in range(2):
                r = 80 + 8*j + 4*v; e(f'v_xor_b32 v{r+3}, s{sT+4}, v{r+3}'); e(f'buffer_store_dwordx4 {vr(r,4)}, v{vL16}, {sr(sWS,4)}, s{sT+2} offen offset:{1024*v} sc1')
    def flag(i):
        e('s_waitcnt vmcnt(0)'); e('s_barrier'); e(f's_cmp_lg_u32 s{sW}, 0'); e(f's_cbranch_scc1 L_hsig{i}')
        e(f'v_lshlrev_b32 v145, 2, v{vL}'); e('s_mov_b32 exec_hi, 0'); e(f'buffer_store_dword v5, v145, {sr(sWS,4)}, s{sT+5} offen sc1'); e('s_mov_b32 exec_hi, -1')
        e(f'L_hsig{i}:'); e(f's_add_u32 s{sT+5}, s{sT+5}, 4096'); hstamp()
    reads(0, JA, 0); e('v_not_b32 v5, v140'); stores(0, JA); reads(JA, 7, 2*JA); flag(0); stores(JA, 7)
    e(f's_mov_b32 s{sLO}, 0x3f80'); e(f's_mov_b32 s{sHI}, 0x3f800000'); e(f's_lshl_b32 s{sT}, s2, 7')
    for i in range(8): e(f'v_mov_b32 v{72+i}, 0')
    flag(1)
    for i in range(14): e(f'buffer_load_dwordx4 {vr(16+4*i,4)}, v4, {sr(sW1,4)}, s{sT} offen'); e(f's_add_u32 s{sT}, s{sT}, {32*3584}')
    for i in range(14):
        e(f's_waitcnt vmcnt({13 - i})')
        for n in range(8): e(f'v_dot2c_f32_bf16 v{72+n}, s{sHI if n & 1 else sLO}, v{16+4*i+n//2}')
    e('v_lshlrev_b32 v2, 8, v2'); e('v_lshl_add_u32 v2, v8, 1, v2'); e(f'v_lshlrev_b32 v4, 2, v{vL}')
    e('ds_write_b128 v2, v[72:75]'); e('ds_write_b128 v2, v[76:79] offset:16'); e('s_waitcnt lgkmcnt(0)'); e('s_barrier')
    e(f's_cmp_lg_u32 s{sW}, 0'); e('s_cbranch_scc1 L_hnocs')
    for i in range(16): e(f'ds_read2st64_b32 {vr(16+2*i,2)}, v4 offset0:{2*i} offset1:{2*i+1}')
    e(f'v_and_b32 v8, 0x1f0, v{vL16}'); e(f'v_lshrrev_b32 v2, 5, v{vL}'); e('v_lshl_add_u32 v8, v2, 3, v8'); e(f's_lshl_b32 s{sT}, s2, 9'); e(f's_add_u32 s{sT}, s{sT}, {WS_CS}')
    e('v_cmp_eq_u32 vcc, 0, v2'); e('v_cndmask_b32 v5, v143, v141, vcc'); e('v_not_b32 v5, v5')
    e('s_waitcnt lgkmcnt(0)')
    for st in (16, 8, 4, 2, 1):
        for i in range(st): e(f'v_add_f32 v{16+i}, v{16+i}, v{16+st+i}')
    e('v_cvt_pk_bf16_f32 v17, v16, v16'); e('v_and_b32 v18, 0xffff0000, v17'); e('v_sub_f32 v19, v16, v18'); e('v_cvt_pk_bf16_f32 v20, v18, v19')
    e(f's_mov_b32 s{sT+1}, 0xffff'); e(f'v_bfi_b32 v21, s{sT+1}, v17, v5')
    e(f'buffer_store_dwordx2 v[20:21], v8, {sr(sWS,4)}, s{sT} offen sc1')
    e('L_hnocs:'); hstamp()
    e('L_hfill:')
    def fills():
        e(f's_lshl_b32 s{sT}, s2, 16'); e(f's_add_u32 s{sT}, s{sT}, {WS_X2}'); e(f's_mov_b32 s{sT+1}, {XB//28//8192}')
        e('L_hfill2:')
        if OPT['nofill']: e(f's_mov_b32 s{sT+1}, 1')
        for i in range(4): e(f'v_mov_b32 v{12+i}, -1')
        e(f's_lshl_b32 s{sT+2}, s{sW}, 10'); e(f'v_add_u32 v10, s{sT+2}, v{vL16}')
        e(f's_lshl_b32 s{sT+2}, s2, 12'); e(f's_add_u32 s{sT+2}, s{sT+2}, {WS_SS}'); e(f'buffer_store_dwordx4 v[12:15], v10, {sr(sWS,4)}, s{sT+2} offen sc1')
        e('L_fill:')
        for j in range(2): e(f'buffer_store_dwordx4 v[12:15], v10, {sr(sWS,4)}, s{sT} offen sc1'); e(f's_add_u32 s{sT}, s{sT}, 4096')
        e(f's_sub_u32 s{sT+1}, s{sT+1}, 1'); e(f's_cmp_lg_u32 s{sT+1}, 0'); e('s_cbranch_scc1 L_fill')
        e(f's_lshl_b32 s{sT+5}, s2, 7'); e(f's_add_u32 s{sT+5}, s{sT+5}, {WS_FL + 8192}'); e('s_waitcnt vmcnt(0)'); e('v_not_b32 v5, v140')
        flag(2)
    if OPT['l2k'] < 28:
        k0 = OPT['l2k']; nst = (28 - k0) // 2
        e(f's_lshr_b32 s{sT}, s2, 3'); e(f's_lshl_b32 s{sT}, s{sT}, 2'); e(f's_add_u32 s{sT}, s{sT}, s{sW}'); e(f's_lshl_b32 s{sT}, s{sT}, 8'); e(f's_add_u32 s{sT}, s{sT}, {WS_WF + 2048*k0}')
        e(f'v_min_u32 v2, 55, v{vL}'); e('v_lshrrev_b32 v4, 1, v2'); e('v_and_b32 v2, 1, v2'); e(f'v_mul_u32_u24 v4, {28*2048}, v4'); e('v_lshl_add_u32 v4, v2, 7, v4'); e(f's_mov_b32 s{sT+1}, {nst}')
        e('L_l2:'); e(f'buffer_load_dword v8, v4, {sr(sWS,4)}, s{sT} offen sc1'); e(f's_add_u32 s{sT}, s{sT}, 4096')
        e(f's_sub_u32 s{sT+1}, s{sT+1}, 1'); e(f's_cmp_lg_u32 s{sT+1}, 0'); e('s_cbranch_scc1 L_l2'); hstamp(0)
    fills()
    if TS and not AMP:
        n = nts[0]; nts[0] = 8; finish_stamps(); nts[0] = n
    e('L_exit:'); e('s_endpgm')
    k.out = save

HALF = [0]
def gen_H():
    ef, a0, tc, q8 = 72, 73, 74, 75
    P0, P1, PK = 76, 84, 92
    e(f'v_and_b32 v{ef}, 15, v{vL}'); e(f's_and_b32 s{sT}, s{sW}, 1'); e(f's_lshl_b32 s{sT+1}, s{sG}, 5'); e(f's_add_u32 s{sT}, s{sT}, s{sT+1}')
    e(f'v_lshl_add_u32 v{ef}, v{ef}, 1, s{sT}'); e(f'v_mov_b32 v{a0}, 224'); e(f'v_cmp_eq_u32 vcc, 0, v{ef}')
    e(f'v_lshrrev_b32 v{q8}, 4, v{vL}'); e(f's_lshl_b32 s{sT+1}, s{sT+1}, 1'); e(f'v_lshl_add_u32 v{q8}, v{q8}, 3, s{sT+1}')
    e(f'v_cndmask_b32 v{ef}, v{ef}, v{a0}, vcc'); e(f'v_cvt_f32_u32 v{q8}, v{q8}'); e(f'v_cvt_f32_u32 v{ef}, v{ef}')
    e(f's_cmp_ge_u32 s{sW}, 2\ns_cselect_b32 s{sT}, {fl(-112.0)}, 0')
    e(f'v_fma_f32 v{a0}, v{q8}, v{ef}, s{sT}'); e(f'v_mul_f32 v{ef}, {fl(1.0/448)}, v{ef}'); e(f'v_mul_f32 v{q8}, {fl(1.0/448)}, v{a0}')
    e(f'v_rndne_f32 v{q8}, v{q8}'); e(f'v_fmamk_f32 v{a0}, v{q8}, {fl(-448.0)}, v{a0}'); e(f'v_mul_f32 v{a0}, {fl(1.0/448)}, v{a0}')
    e(f'v_mul_f32 v{tc}, {fl(32.0)}, v{ef}'); e(f'v_cos_f32 v{tc}, v{tc}')
    e(f's_mul_i32 s{sT}, s{sW}, {7*1024}'); e(f's_add_u32 s{sT}, s{sT}, {L_H}'); e(f'v_add_u32 v{q8}, s{sT}, v{vL16}')
    e(f'v_add_f32 v{tc}, v{tc}, v{tc}')
    for kap in range(7):
        cur, prv = (P0, P1) if kap % 2 == 0 else (P1, P0)
        if HALF[0]: ls(f'H.{kap}')
        if kap < 2:
            for jj in range(8): e(f'v_fmamk_f32 v{cur+jj}, v{ef}, {fl(32.0*kap+jj)}, v{a0}')
            for jj in range(8): e(f'v_cos_f32 v{cur+jj}, v{cur+jj}')
        else:
            for jj in range(0, 8, 2): e(f'v_pk_fma_f32 {vr(cur+jj,2)}, {vr(tc,2)}, {vr(prv+jj,2)}, {vr(cur+jj,2)} op_sel_hi:[0,1,1] neg_lo:[0,0,1] neg_hi:[0,0,1]')
        pk = PK + 4*(kap % 2)
        for m in range(4): e(f'v_cvt_pk_bf16_f32 v{pk+m}, v{cur+2*m}, v{cur+2*m+1}')
        k.ds(f'ds_write_b128 v{q8}, {vr(pk,4)} offset:{1024*kap}', 'Hw')
def gen_F(dst):
    mf, a0, t = 100, 101, 102
    T = 120
    e(f'v_bfe_u32 v{mf}, v{vL}, 1, 3'); e(f's_lshl_b32 s{sT}, s{sW}, 3'); e(f'v_add_u32 v{mf}, s{sT}, v{mf}')
    e(f'v_and_b32 v{t}, 1, v{vL}'); e(f'v_cvt_f32_u32 v{a0}, v{t}'); e(f'v_cmp_eq_u32 vcc, 0, v{mf}')
    e(f'v_lshlrev_b32 v{t}, 5, v{t}'); e(f'v_mul_f32 v{a0}, {fl(-0.25)}, v{a0}')
    e(f'v_cndmask_b32 v{mf}, v{mf}, v{t}, vcc'); e(f'v_cndmask_b32 v{a0}, v{a0}, 0, vcc')
    e(f'v_bfe_i32 v{t+1}, v{mf}, 0, 1'); e(f'v_cvt_f32_u32 v{mf}, v{mf}'); e(f'v_and_b32 v{t}, 48, v{vL}'); e(f'v_cvt_f32_u32 v{t}, v{t}'); e(f'v_and_b32 v{t+1}, 0x80008000, v{t+1}')
    e(f'v_mul_f32 v{mf}, {fl(1.0/128)}, v{mf}'); e(f'v_fma_f32 v{a0}, v{t}, v{mf}, v{a0}')
    for k1 in range(2):
        for jj in range(4): e(f'v_fmamk_f32 v{T+4*k1+jj}, v{mf}, {fl(2.0*k1 + 4.0*jj)}, v{a0}')
    for i in range(8): e(f'v_cos_f32 v{T+i}, v{T+i}')
    for k1 in range(2):
        for m in range(2): e(f'v_cvt_pk_f16_f32 v{dst+4*k1+m}, v{T+4*k1+2*m}, v{T+4*k1+2*m+1}')
    for k1 in range(2):
        for m in range(2): e(f'v_xor_b32 v{dst+4*k1+2+m}, v{dst+4*k1+m}, v{t+1}')
def gen_M(t0):
    j, s2f, ad = t0, t0 + 1, t0 + 2
    e(f'v_and_b32 v{j}, 31, v{vL}'); e(f'v_lshlrev_b32 v{j}, 6, v{j}')
    S2 = t0 + 36
    e(f'v_lshrrev_b32 v{s2f}, 5, v{vL}'); e(f's_add_u32 s{sT}, s{sW}, s{sG}'); e(f's_and_b32 s{sT}, s{sT}, 3'); e(f's_lshl_b32 s{sT}, s{sT}, 2')
    for jj in range(4):
        if jj: e(f's_add_u32 s{sT}, s{sT}, 1')
        e(f's_lshl_b32 s{sT+1}, s{sT}, 1'); e(f's_sub_u32 s{sT+1}, 32, s{sT+1}')
        if jj == 0: e(f's_cmp_eq_u32 s{sT}, 0\ns_cselect_b32 s{sT+1}, 16, s{sT+1}')
        e(f'v_mul_u32_u24 v{S2+jj}, s{sT+1}, v{s2f}'); e(f'v_add_u32 v{S2+jj}, s{sT}, v{S2+jj}'); e(f'v_cvt_f32_u32 v{S2+jj}, v{S2+jj}')
    e(f's_lshl_b32 s{sT}, s{sW}, 10'); e(f's_add_u32 s{sT}, s{sT}, {L_M}'); e(f'v_add_u32 v{ad}, s{sT}, v{vL16}')
    e(f's_cmp_eq_u32 s{sP}, 0\ns_cselect_b32 s{sT}, {fl(0.25)}, 0')
    for pq in range(2):
        T = t0 + 4 + 16*pq
        tf, a0 = T + 12, T + 13
        e(f'v_add_u32 v{tf}, s{sRB if pq else sP}, v{j}'); e(f'v_cvt_f32_u32 v{tf}, v{tf}'); e(f'v_mul_f32 v{tf}, {fl(1.0/2048)}, v{tf}')
        for jj in range(4): e(f'v_fma_f32 v{T+jj}, v{tf}, v{S2+jj}, s{sT}' if pq else f'v_mul_f32 v{T+jj}, v{tf}, v{S2+jj}')
        for jj in range(4): e(f'v_sin_f32 v{T+4+jj}, v{T+jj}')
        for jj in range(4): e(f'v_cos_f32 v{T+jj}, v{T+jj}')
        for jj in range(4): e(f'v_cvt_pk_f16_f32 v{T+8+jj}, v{T+jj}, v{T+4+jj}')
        k.ds(f'ds_write_b128 v{ad}, {vr(T+8,4)} offset:{4096*pq}', 'Mw')

def img_ops(half, T):
    ops = []; rho = sRB if T else sP
    if half == 0:
        for r in range(8):
            def f(r=r):
                if r == 0: e(f's_lshl_b32 s{sIM}, s{sW}, 9\ns_add_u32 s{sIM}, s{sIM}, s{rho}\ns_mul_i32 s{sIM}, s{sIM}, 896\ns_mul_i32 s{sIL}, s{sW}, {8*912}')
                else: e(f's_add_u32 s{sIM}, s{sIM}, 57344')
                e(f's_add_u32 m0, s{sIL}, {L_X + 912*(32*T + r)}'); e('s_mov_b32 exec_hi, 0x00ffffff')
                k.vmem(f'buffer_load_dwordx4 v{vL16}, {sr(sX0,4)}, s{sIM} offen lds', f'img{T}'); e('s_mov_b32 exec_hi, -1')
            ops.append(Op('s', 20, f, 1))
    else:
        for i in range(7):
            def f(i=i):
                if i == 0: e(f's_mul_i32 s{sIL}, s{sW}, 7168\ns_add_u32 m0, s{sIL}, {L_X + 28672*T}\ns_mul_i32 s{sIM}, s{rho}, 28672\ns_add_u32 s{sIM}, s{sIM}, s{sIL}\ns_add_u32 s{sIM}, s{sIM}, {WS_X2}')
                if i == 4: e(f's_add_u32 m0, m0, 4096\ns_add_u32 s{sIM}, s{sIM}, 4096')
                k.vmem(f'buffer_load_dwordx4 v{vL16}, {sr(sWS,4)}, s{sIM} offen offset:{1024*(i%4)} sc1 lds', f'img{T}')
            ops.append(Op('s' if i % 4 == 0 else 'vm', 4, f, 1))
    return ops

XF = lambda kap: 16 + 4 * kap
BORD = [0, 3, 4, 1, 5, 2, 6]
IMG_LATE = []; ADR = []
SX = [0, 1, 3, 4, 5, 6, 7]
def x2_loads(first):
    for kp in range(first, 7):
        for kap in (kp, kp + 7):
            k.vmem(f'buffer_load_dwordx4 {vr(XF(kap),4)}, v{vL16}, {sr(sWS,4)}, s{SX[kap//2]} offen offset:{1024*(kap%2)} sc1', f'x{kap}')
def phA(half):
    aT = [72, 76, 84, 88]; aHi = {1: 80, 3: 92}; aS, aG = 96, 100
    HR = [104, 120]; ones = 136; Ff = 140; t = 148
    vx, vh, vtr, vu, vcw, k1 = vA, vL16, vA + 2, vA + 3, 150, 151
    lc = L_C(half)
    def misc():
        if half == 0:
            for i in range(4): e(f'v_mov_b32 v{ones+i}, 0x3f803f80')
            mk = [0x1000010000100001, 0x2000020000200002, 0x4000040000400004, 0x8000080000800008]
            for i in range(4): e(f's_mov_b32 s{sMK+2*i}, {mk[i] & 0xffffffff:#x}'); e(f's_mov_b32 s{sMK+2*i+1}, {mk[i] >> 32:#x}')
        else: e(f's_mov_b32 s{sMK}, -1'); e(f's_mov_b32 s{sMK+1}, 0xffff')
        e(f'v_and_b32 v{t}, 15, v{vL}'); e(f'v_lshrrev_b32 v{t+1}, 4, v{vL}'); e(f'v_lshlrev_b32 v{vcw}, 5, v{t}'); e(f'v_lshl_add_u32 v{vcw}, v{t+1}, 3, v{vcw}')
        e(f's_lshl_b32 s{sT}, s{sW}, 9'); e(f's_add_u32 s{sT}, s{sT}, {lc}'); e(f'v_add_u32 v{vcw}, s{sT}, v{vcw}')
        e(f's_lshl_b32 s{sT}, s{sW}, 2'); e(f'v_add_u32 v{vu}, s{sT}, v{t+1}'); e(f'v_cmp_eq_u32 vcc, 0, v{vu}')
        e(f'v_mul_u32_u24 v{vu}, {2*57344}, v{vu}'); e(f'v_lshl_add_u32 v{vu}, v{t}, 4, v{vu}'); e(f'v_cndmask_b32 v{k1}, -1.0, 0, vcc')
        e(f's_and_b32 s{sT+4}, s2, 7'); e(f's_lshl_b32 s{sT+4}, s{sT+4}, 2'); e(f's_add_u32 s{sT+4}, s{sT+4}, s{sCI}'); e(f's_mul_i32 s{sT+4}, s{sT+4}, 7'); e(f's_add_u32 s{sT+4}, s{sT+4}, s{sG}'); e(f's_lshl_b32 s{sT+4}, s{sT+4}, 8'); e(f's_add_u32 s{sT+4}, s{sT+4}, {WS_U2 if half else WS_U1}')
        e(f's_add_u32 s{sT+5}, s{sT+4}, 57344'); e(f'v_lshlrev_b32 v{vtr}, 3, v{vL}'); e(f'v_add_u32 v{vtr}, {lc}, v{vtr}')
    hread = lambda kp: rec(lambda: [k.ds(f'ds_read_b128 {vr(HR[kp%2]+4*tl,4)}, v{vh} offset:{L_H + (7*tl+kp)*1024}', f'H{kp}{tl}') for tl in (1, 3, 0, 2)])
    st_load = lambda: k.vmem(f'buffer_load_dwordx4 {vr(ones,4)}, v{vL16}, {sr(sWS,4)}, s49 offen sc1', 'ss')
    if half == 0:
        va, vb = vX, vX + 1
        srds((sX0,))
        e(f'v_lshrrev_b32 v{va}, 3, v{vL}'); e(f'v_lshrrev_b32 v{vb}, 4, v{vL}'); e(f'v_xor_b32 v{vb}, v{vb}, v{vL}'); e(f'v_and_b32 v{vb}, 7, v{vb}')
        e(f'v_mul_u32_u24 v{va}, 57344, v{va}'); e(f'v_lshl_add_u32 v{va}, v{vb}, 4, v{va}')
        e(f'v_xor_b32 v{vb}, 64, v{va}'); e(f'v_add_u32 v{vb}, {8*57344-1024}, v{vb}')
        e(f's_lshr_b32 s{sT}, s{sW}, 1'); e(f's_lshl_b32 s{sT}, s{sT}, 5'); e(f's_add_u32 s{sT}, s{sT}, s{sP}')
        e(f's_and_b32 s{sT+1}, s{sW}, 1'); e(f's_lshl_b32 s{sT+1}, s{sT+1}, 10'); e(f's_add_u32 s{sT}, s{sT}, s{sT+1}'); e(f's_mul_i32 s3, s{sT}, 896')
        e(f's_lshl_b32 s{sIM}, s{sG}, 7')
        def xdma(i):
            b = BORD[i]
            def a():
                if b: e(f's_add_u32 s{sBG}, s{sIM}, {128*b}\ns_sub_u32 s{sIL}, s{sBG}, 896\ns_min_u32 s{sBG}, s{sBG}, s{sIL}')
                e(f's_add_u32 m0, s{sWA}, {8192 + 2048*i}\ns_add_u32 s{sBG}, s3, s{sBG if b else sIM}')
                if i == 0:
                    if OPT['rt']:
                        e(f'v_lshl_add_u32 v4, s{sG}, 4, v{vL}'); e('v_mul_u32_u24 v5, 37, v4'); e('v_lshrrev_b32 v5, 8, v5') if False else None
                        e('v_mul_u32_u24 v5, 9363, v4'); e('v_lshrrev_b32 v5, 16, v5'); e(f'v_mul_u32_u24 v5, {57344-896}, v5'); e('v_lshl_add_u32 v4, v4, 7, v5')
                    e('s_waitcnt lgkmcnt(0)')
                    if TS: e(f's_mov_b32 s{sTS}, s50'); nts[0] = 1; tsn.append('start')
                    if OPT['rt']: e('s_mov_b64 exec, 0xffff'); k.vmem(f'buffer_load_dword v5, v4, {sr(sX0,4)}, s3 offen', 'touch'); e('s_mov_b64 exec, -1')
                k.vmem(f'buffer_load_dwordx4 v{va}, {sr(sX0,4)}, s{sBG} offen lds', f'xa{b}')
            return [Op('s', 24, a), Op('vm', 4, lambda: k.vmem(f'buffer_load_dwordx4 v{vb}, {sr(sX0,4)}, s{sBG} offen offset:1024 lds', f'xb{b}'))]
        xs = []
        for i in range(7): xs += xdma(i)
        k.run(xs[:4]); t0 = k.clk
        if OPT['fine'] & 1: stamp('iss')
        def rest():
            gen_H()
            if not OPT['wt']: copy_ptrs(True); srds((sW1,))
            copy_ptrs(False); srds((sW2, sOUT, sWS))
            e(f's_sub_u32 s{sRB}, 64, s{sP}'); e(f's_cmp_eq_u32 s{sP}, 0\ns_cselect_b32 s{sRB}, 32, s{sRB}')
            e(f's_mov_b32 s{sRETRY}, 20000'); e(f's_mov_b32 s{sLO}, 0x3f80'); e(f's_mov_b32 s{sHI}, 0x3f800000'); e(f's_mov_b32 s{sFF}, 0xffff0000')
            warm(0, 1)
            misc()
            e(f'v_lshrrev_b32 v{vx}, 1, v{t}'); e(f'v_xor_b32 v{vx}, v{vx}, v{t+1}'); e(f'v_lshlrev_b32 v{t}, 7, v{t}'); e(f'v_lshl_add_u32 v{t}, v{vx}, 4, v{t}')
            e(f's_add_u32 s{sT}, s{sWA}, 8192'); e(f'v_add_u32 v{vx}, s{sT}, v{t}'); e(f'v_xor_b32 v{vx+1}, 64, v{vx}')
            stream_setup(); gen_F(Ff)
            e(f'v_mov_b32 v{vX+2}, 0x10001')
        nx = OPT['nx']
        if OPT['wt']:
            copy_ptrs(True); srds((sW1,)); e(f's_sub_u32 s{sT}, s2, 32'); e(f's_lshl_b32 s{sT}, s{sT}, 2'); e(f's_add_u32 s{sT}, s{sT}, s{sW}'); e(f's_mul_i32 s{sT}, s{sT}, {14*128}')
            e(f'v_lshlrev_b32 v4, 7, v{vL}'); e('s_mov_b64 exec, 0x3fff'); k.vmem(f'buffer_load_dword v5, v4, {sr(sW1,4)}, s{sT} offen', 'touch'); e('s_mov_b64 exec, -1')
        if OPT.get('xprobe'):
            k.run(xs[4:nx]); ls('p.i'); k.wait(vm='xb0'); ls('p.0'); k.wait(vm='xb3'); ls('p.1'); k.run(xs[nx:]); k.wait(vm='xb1'); ls('p.3'); k.wait(vm='xb6'); ls('p.6'); xs = xs[:4]
        fill = k.weave(xs[4:nx], rec(rest), 64)
        while fill and k.clk < t0 + OPT['late']: fill.pop(0)()
        epl = Op('s', 16, lambda: (e(f's_mov_b32 s{sBG}, {WS_EP}'), e('s_mov_b64 exec, 1'), k.vmem(f'buffer_load_dwordx4 {vr(vSEL,4)}, off, {sr(sWS,4)}, s{sBG} sc1', 'ep'), e('s_mov_b64 exec, -1')), 1)
        k.bg += [Op(o.kind, o.cost, o.fn, 1) for o in xs[nx:]] + [epl]
        def touch():
            e(f's_sub_u32 s{sBG}, s2, 32\ns_lshl_b32 s{sBG}, s{sBG}, 2\ns_add_u32 s{sBG}, s{sBG}, s{sW}\ns_mul_i32 s{sBG}, s{sBG}, {14*128}\nv_lshlrev_b32 v4, 7, v{vL}\ns_mov_b64 exec, 0x3fff')
            if OPT['w2t'] & 2: k.vmem(f'buffer_load_dword v5, v4, {sr(sW1,4)}, s{sBG} offen', 'touch')
            if OPT['w2t'] & 1: k.vmem(f'buffer_load_dword v2, v4, {sr(sW2,4)}, s{sBG} offen', 'touch')
            e('s_mov_b64 exec, -1')
        im = img_ops(0, 1); nb = OPT['imgb']; IMG_LATE[:] = im[nb:]
        after = im[:nb] + ([Op('s', 36, touch, 1)] if OPT['w2t'] else []); k.bg += after
        k.seg(999, 999*OPT['pS'])
        k.run(fill)
        while len(k.bg) > len(after): k.bg_step()
        k.quota = len(k.bg) + OPT['nA']
        k.refill = ws.refill
        k.wait(lg='Hw'); e('s_barrier')
        k.run(hread(0))
    else:
        t0 = k.clk
        fill = rec(lambda: (gen_H(), misc(), k.wait(lg='Hw'), e('s_barrier'), k.run(hread(0)), gen_F(Ff)))
        while fill and k.clk < t0 + OPT['xd']: fill.pop(0)()
        if OPT['xack']: k.wait(vm='xst')
        stamp('A1.ack')
        ld = rec(lambda: x2_loads(0)); ld = ld[:OPT['ssp']] + rec(st_load) + ld[OPT['ssp']:]
        k.run(ld[:4])
        k.run(k.weave(ld[4:11], fill, 60))
        later = ld[11:] + img_ops(1, 1)
    stamp(f'A{half}.consts')
    def xread(i):
        b = BORD[i]
        def g(h):
            k.wait(vm=f'xb{b}'); k.ds(f'ds_read_b128 {vr(XF(2*b+h),4)}, v{vx+h} offset:{2048*i}', f'xr{i}')
            if h: ws.limit = 5 + i if i < 6 else 28
        return [Op('ds', 8, lambda: g(0)), Op('ds', 4, lambda: g(1))]
    def xchk(k0, k1_, ss=False):
        d = ones
        def chk():
            r = [XF(x) for kp in range(k0, k1_ + 1) for x in (kp, kp + 7)]
            if ss:
                e(f'v_cndmask_b32 v{d+2}, 0, v{d+2}, {sr(sMK,2)}'); e(f'v_cndmask_b32 v{d+3}, 0, v{d+3}, {sr(sMK,2)}'); r += [d, d + 1, d + 2, d + 3]
            e(f'v_max_u32 v{t+1}, v{r[0]}, v{r[1]}')
            for i in range(2, len(r), 2): e(f'v_max3_u32 v{t+1}, v{t+1}, v{r[i]}, v{r[i+1]}')
            e(f'v_cmp_eq_u32 vcc, -1, v{t+1}')
        return rec(lambda: (k.wait(vm=f'x{k1_+7}'), chk(), retry_site(chk, lambda: (x2_loads(k0), k0 <= 2 and st_load()), f'x2_{k0}')))
    k.depth += 1
    if half == 0: k.run(xread(0) + xread(1))
    else: k.run(xchk(0, 1))
    k.depth -= 1
    def rstd():
        e(f'v_fmamk_f32 v{t}, v{t}, {fl(-1.0/448)}, v{aS}')
        e(f'v_min_f32 v{t}, 0, v{t}'); e(f'v_sub_f32 v{t}, {fl(1e-5)}, v{t}'); e(f'v_rsq_f32 v{t}, v{t}')
    def scale(tl, pk):
        a = aT[tl]
        if pk:
            if tl in aHi:
                for r in (0, 2): e(f'v_pk_add_f32 {vr(a+r,2)}, {vr(a+r,2)}, {vr(aHi[tl]+r,2)} neg_lo:[0,1] neg_hi:[0,1]')
            for r in (0, 2): e(f'v_pk_mul_f32 {vr(a+r,2)}, {vr(a+r,2)}, {vr(t,2)} op_sel_hi:[1,0]')
        else:
            for r in range(4): e(f'v_sub_f32 v{a+r}, v{a+r}, v{aHi[tl]+r}')
            for r in range(4): e(f'v_mul_f32 v{a+r}, v{a+r}, v{t}')
        for m in range(2): e(f'v_cvt_pk_f16_f32 v{a+m}, v{a+2*m}, v{a+2*m+1}')
        k.ds(f'ds_write_b64 v{vcw}, {vr(a,2)} offset:{2048*tl}', 'cw')
    sl = []; o0 = 0 if half else 4
    for kp in range(7):
        lo, hi = vr(XF(kp), 4), vr(XF(kp+7), 4)
        c = lambda a: vr(a, 4) if kp else '0'
        mm = lambda d, a, b, cc: f'v_mfma_f32_16x16x32_bf16 {vr(d,4)}, {a}, {b}, {cc}'
        ms = [] if half else [mm(aS, vr(ones, 4), lo, c(aS)), mm(aG, lo, lo, c(aG)), mm(aS, vr(ones, 4), hi, vr(aS, 4)), mm(aG, hi, hi, vr(aG, 4))]
        ms += [mm(aT[tl], vr(HR[kp%2]+4*tl, 4), lo, c(aT[tl])) for tl in (1, 3, 0, 2)]
        ms += [mm(aHi[tl], vr(HR[kp%2]+4*tl, 4), hi, c(aHi[tl])) if tl in aHi else mm(aT[tl], vr(HR[kp%2]+4*tl, 4), hi, vr(aT[tl], 4)) for tl in (1, 3, 0, 2)]
        if kp == 6: ms = ms[:o0] + [ms[o0 + i] for i in (0, 4, 1, 5, 2, 6, 3, 7)]
        cur = [[rec(lambda m=m: e(m)), [], []] for m in ms]; cur[0][1].append(Op('s', 0, lambda kp=kp: ls(f'a{half}.{kp}')))
        if half == 0: cur[0][0] = rec(lambda: k.wait(lg=f'xr{min(kp+1, 6)}')) + cur[0][0]
        if half == 0: cur[o0][0] = rec(lambda: k.wait(lg=f'H{kp}2')) + cur[o0][0]
        else:
            cur[0][0] = rec(lambda: k.wait(lg=f'H{kp}3')) + cur[0][0]; i2 = 4 if kp == 6 else 2; cur[i2][0] = rec(lambda: k.wait(lg=f'H{kp}2')) + cur[i2][0]
        if kp < 6:
            for i, o in enumerate(hread(kp + 1)): cur[o0 + i][1].append(o)
            if half == 0 and kp < 5:
                for i, o in enumerate(xread(kp + 2)): cur[2 + i][1].append(o)
        sl += cur
    if half == 0:
        k.bg_period = OPT['pA']
        ep = rec(lambda: (k.wait(vm='ep'), [e(f'v_readfirstlane_b32 s{sN+i}, v{vSEL+i}') for i in range(4)], [e(f's_not_b32 s{sN+i}, s{sN+i}') for i in range(4)]))
        for i, o in enumerate(ep): sl[68 + i][2].append(o)
        def stats():
            e(f'v_cndmask_b32 v{t}, 0, v{aG}, {sr(sMK,2)}')
            for r in range(1, 4): e(f'v_cndmask_b32 v{t}, v{t}, v{aG+r}, {sr(sMK+2*r,2)}')
            e(f'v_mul_f32 v{aS}, {fl(1.0/448)}, v{aS}')
            for sw in ('16', '32'):
                e(f'v_mov_b32 v{t+1}, v{t}')
                if sw == '16': e(f'v_mul_f32 v{aS}, v{aS}, v{aS}')
                e(f'v_permlane{sw}_swap_b32 v{t}, v{t+1}'); e(f'v_add_f32 v{t}, v{t}, v{t+1}')
            rstd()
        k.slots(sl[:80], nbg=OPT['nbgA'])
        if OPT['fine'] & 1: stamp(f'A{half}.mf')
        k.bg_period = OPT['pT']
        st = rec(stats)
        for i in range(80, 84): sl[i][2] += st[:2]; st = st[2:]
        k.slots(sl[80:], nbg=0)
        k.run(st)
    else:
        d = ones
        for at, o in (((12, 12, 12, 13, 13, 14, 14, 14, 15), xchk(2, 3, True)), ((29, 29, 30, 30, 31), xchk(4, 5)), ((46, 46, 47, 47), xchk(6, 6))):
            assert len(at) == len(o)
            for i, x in zip(at, o): sl[i][2].append(x)
        for i, x in zip((4, 5, 6, 7, 20, 21, 22, 23, 36, 37, 38), later): sl[i][1].append(x)
        def sums():
            e(f'v_add_f32 v{d}, v{d}, v{d+2}'); e(f'v_add_f32 v{d+1}, v{d+1}, v{d+3}'); e(f'v_permlane32_swap_b32 v{d}, v{d+1}'); e(f'v_add_f32 v{d}, v{d}, v{d+1}')
            e(f'v_mov_b32 v{d+1}, v{d}'); e(f'v_permlane16_swap_b32 v{d}, v{d+1}'); e(f'v_add_f32 v{aS}, v{d}, v{d+1}')
            e(f'v_mov_b32 v{t}, v{aS}'); e(f'v_permlane32_swap_b32 v{aS}, v{t}')
            e(f'v_mul_f32 v{aS}, {fl(1.0/448)}, v{aS}'); e(f'v_mul_f32 v{aS}, v{aS}, v{aS}'); rstd()
        idx = [16, 17, 19, 24, 25, 27, 28, 32, 34, 39, 40, 41, 42, 43, 44]
        for i, x in zip(idx, rec(sums)): sl[i][2].append(x)
        sc = rec(lambda: scale(1, False)); sl[53][2] += sc[:3]; sl[54][2] += sc[3:6]; sl[55][2] += sc[6:]
        k.slots(sl, nbg=1)
        if OPT['fine'] & 1: stamp(f'A{half}.mf')
    for tl in ((3, 0, 2) if half else (1, 3, 0, 2)): scale(tl, True)
    k.wait(lg='cw'); e('s_barrier')
    stamp(f'A{half}.hdft')
    cf = lambda tl, k1_: 72 + 8*tl + 4*k1_
    k.depth += 1
    so = [(0, 0), (2, 0), (0, 1), (2, 1), (1, 0), (3, 0), (1, 1), (3, 1)]
    for tl, k1_ in so:
        for h2 in range(2): k.ds(f'ds_read_b64_tr_b16 {vr(cf(tl,k1_)+2*h2,2)}, v{vtr} offset:{2048*tl + 1024*k1_ + 512*h2}', f'c{tl}{k1_}')
    if half == 0: k.burst(OPT['nS'])
    else: k.bg_flush()
    Dt = lambda tl: 104 + 4*tl
    def smf(tl, k1_):
        k.wait(lg=f'c{tl}{k1_}')
        e(f'v_mfma_f32_16x16x32_f16 {vr(Dt(tl),4)}, {vr(Ff+4*k1_,4)}, {vr(cf(tl,k1_),4)}, {vr(Dt(tl),4) if k1_ else 0}')
    def bfly(pp, u):
        kk1 = f'v{k1}' if pp == 0 else '-1.0'; nk1 = f'-v{k1}' if pp == 0 else '1.0'
        CA, SA, CB, SB = Dt(u) + 2*pp, Dt(u) + 2*pp + 1, Dt(2+u) + 2*pp, Dt(2+u) + 2*pp + 1
        o = 120 + 8*pp + 4*u
        e(f'v_fma_f32 v{o}, {kk1}, v{SB}, v{CA}'); e(f'v_fma_f32 v{o+1}, {kk1}, v{SA}, -v{CB}')
        e(f'v_fma_f32 v{o+2}, {nk1}, v{CA}, v{SB}'); e(f'v_fma_f32 v{o+3}, {kk1}, v{CB}, v{SA}')
        for m in range(2): e(f'v_cvt_pk_f16_f32 v{72+4*pp+2*u+m}, v{o+2*m}, v{o+2*m+1}')
        if half == 0:
            for m in range(2): e(f'v_bfi_b32 v{72+4*pp+2*u+m}, v{vX+2}, s{sN+2*u+m}, v{72+4*pp+2*u+m}')
    for x in so: smf(*x)
    if half == 0: e('s_barrier')
    bfly(0, 0); bfly(1, 0)
    for pp in range(2):
        bfly(pp, 1)
        k.vmem(f'buffer_store_dwordx4 {vr(72+4*pp,4)}, v{vu}, {sr(sWS,4)}, s{sT+4+pp} offen sc1', 'Ust')
    k.depth -= 1
    stamp(f'A{half}.ust')

def US(half): return 16 if half == 0 else 256
def TOFF(half): return 32 * 912 if half == 0 else 28672
def rowaddr(half, dst, j, t):
    if half == 0: e(f'v_mul_u32_u24 v{dst}, 912, v{j}')
    else:
        e(f'v_lshrrev_b32 v{t}, 4, v{j}'); e(f'v_mul_u32_u24 v{t}, 14336, v{t}'); e(f'v_and_b32 v{dst}, 15, v{j}'); e(f'v_lshl_add_u32 v{dst}, v{dst}, 4, v{t}')
def phB(half):
    us = US(half); RAW = lambda kap: 16 + 16*kap; ACC = lambda u, pq: 80 + 32*pq + 16*u; MF = 144
    vu, vd, vmP, vmQ = vA, vA + 1, vA + 2, vA + 3
    vu2, vm, tc, vbn = (vSa, vSb, vT1, vT1 + 1) if half else (vX, vX + 1, vX + 2, vX + 3)
    t = 88; t0 = k.clk
    save = k.refill
    if half == 0: k.bg += IMG_LATE; k.burst(4); k.seg(OPT['nK'], OPT['pK']*OPT['nK'], 300)
    def tile0():
        if OPT['pads']:
            e(f's_cmp_lt_u32 s{sW}, 2'); e(f's_cbranch_scc1 L_t0_{half}')
            e('s_mov_b64 exec, 0'); e(f's_cmp_eq_u32 s{sW}, 2'); e(f's_cbranch_scc1 L_pad{5 + 4*half}'); e(f's_branch L_pad{6 + 4*half}'); e(f'L_t0_{half}:')
        else: e(f's_cmp_ge_u32 s{sW}, 2'); e(f's_cbranch_scc1 L_ret{1 + half}')
        bs = 128 if half == 0 else 2048
        if half == 0:
            e(f'v_and_b32 v{t}, 15, v{vL}'); e(f'v_lshl_add_u32 v{t}, s{sW}, 4, v{t}'); e(f'v_mul_u32_u24 v{t}, 912, v{t}')
            e(f'v_and_b32 v{t+1}, 48, v{vL}'); e(f'v_add_u32 v{t}, v{t}, v{t+1}')
        else: e(f's_mul_i32 s{sT}, s{sW}, 14336'); e(f'v_add_u32 v{t}, s{sT}, v{vL16}')
        e(f's_mul_i32 s{sT}, s{sG}, {bs}')
        for b in range(7):
            if b: e(f's_add_u32 s{sT}, s{sT}, {bs}'); e(f's_sub_u32 s{sT+1}, s{sT}, {7*bs}'); e(f's_min_u32 s{sT}, s{sT}, s{sT+1}')
            e(f'v_add_u32 v{t+1}, s{sT}, v{t}')
            for h in range(2): e(f'ds_write_b128 v{t+1}, {vr(XF(2*b+h),4)} offset:{L_X + h*bs//2}')
        e(f'L_ret{1 + half}:'); e('s_mov_b64 exec, -1')
    k.call(tile0); ls(f'b{half}.t0')
    if half == 0: late_setup()
    e(f'v_bfe_u32 v{t}, v{vL}, 2, 1'); e(f'v_bfe_u32 v{t+1}, v{vL}, 3, 2'); e(f'v_and_b32 v{t+2}, 3, v{vL}')
    e(f'v_lshl_add_u32 v{t+1}, v{t}, 2, v{t+1}'); e(f'v_lshl_add_u32 v{t+1}, v{t+1}, 2, v{t+2}'); e(f's_mul_i32 s{sT+2}, s{sW}, 448')
    e(f'v_lshl_add_u32 v{t+1}, v{t+1}, 4, s{sT+2}'); e(f'v_subrev_u32 v{t}, 1792, v{t+1}'); e(f'v_min_u32 v{t+1}, v{t}, v{t+1}')
    e(f'v_lshrrev_b32 v{t+2}, 5, v{vL}'); e(f'v_mul_u32_u24 v{t}, 1792, v{t+2}'); e(f'v_add_u32 v{vu}, v{t}, v{t+1}'); e(f'v_add_u32 v{vu2}, 7168, v{vu}')
    e(f's_mul_i32 s{sT}, s{sP}, 57344'); e(f's_add_u32 s{sT}, s{sT}, {WS_U2 if half else WS_U1}')
    for i in range(4): e(f's_add_u32 s{sT+1}, s{sG}, {i}'); e(f's_and_b32 s{sT+1}, s{sT+1}, 3'); e(f's_mul_i32 s{sT+1}, s{sT+1}, 14336'); e(f's_add_u32 s{sUO+i}, s{sT}, s{sT+1}')
    def adr():
        j, a = t + 3, t + 4
        e(f'v_and_b32 v{j}, 31, v{vL}'); e(f's_mul_i32 s{sT}, s{sW}, 7'); e(f'v_lshl_add_u32 v{a}, v{t+2}, 2, s{sT}')
        rowaddr(half, vd, j, t); e(f'v_mul_u32_u24 v{t+1}, {us}, v{a}'); e(f'v_add_u32 v{vd}, v{vd}, v{t+1}')
        e(f'v_sub_u32 v{a}, {52*us}, v{t+1}')
        e(f's_cmp_eq_u32 s{sP}, 0\ns_cselect_b32 s{sT}, 32, 63\ns_cselect_b32 s{sT+1}, 31, 63\ns_cselect_b32 s{sT+2}, 63, 31')
        e(f'v_sub_u32 v{t+5}, s{sT}, v{j}'); e(f'v_and_b32 v{t+5}, s{sT+1}, v{t+5}'); rowaddr(half, vmP, t + 5, t); e(f'v_add_u32 v{vmP}, v{vmP}, v{a}')
        e(f'v_sub_u32 v{t+5}, s{sT+2}, v{j}'); rowaddr(half, vmQ, t + 5, t); e(f'v_add_u32 v{vmQ}, v{vmQ}, v{a}')
        e(f's_cmp_eq_u32 s{sW}, 0\ns_cselect_b32 s{sMK}, 0, -1'); e(f's_mov_b32 s{sMK+1}, -1')
        e(f'v_add_u32 v{vm}, {L_M}, v{vL16}')
        e(f's_mul_i32 s{sT}, s{sW}, {7*us}'); e(f'v_mul_u32_u24 v{t+2}, {3*us}, v{t+2}'); e(f'v_subrev_u32 v{vbn}, s{sT}, v{vd}'); e(f'v_sub_u32 v{vbn}, v{vbn}, v{t+2}')
        if OPT['rot']:
            e(f's_mul_i32 s{sT}, s{sRO}, {14*us}'); e(f'v_add_u32 v{vbn}, s{sT}, v{vbn}'); e(f's_mov_b32 s{sT}, {14*us}')
            for q in range(4): e(f's_cmp_eq_u32 s{sRO}, {3-q}\ns_cselect_b32 s{sRD+q}, {-42*us}, s{sT}')
    if half == 0:
        adr(); gen_M(96); e(f's_mov_b32 s{sMK+2}, 0xfffefffe')
        k.burst(k.quota)
    else:
        def ichk():
            e(f's_mul_i32 s{sT}, s{sW}, 7168'); e(f'v_add_u32 v{t}, s{sT}, v{vL16}')
            for i in range(7): k.ds(f'ds_read_b32 v{t+2+i}, v{t} offset:{L_X + 28672 + 1024*i}', 'ic')
            k.wait(lg='all')
            for i in range(3): e(f'v_max3_u32 v{t+2}, v{t+2}, v{t+3+2*i}, v{t+4+2*i}')
            e(f'v_cmp_eq_u32 vcc, -1, v{t+2}')
    k.refill = None; k.bg_flush()
    if OPT['uack']: k.wait(vm='Ust')
    stamp(f'B{half}.ack')
    def uloads(first, last=4):
        for kap in range(first, last):
            for jj in range(4):
                k.vmem(f'buffer_load_dwordx4 {vr(RAW(kap)+4*jj,4)}, v{vu if jj < 2 else vu2}, {sr(sWS,4)}, s{sUO+kap} offen offset:{3584*(jj%2)} sc1', f'U{kap}{jj}')
    ld = rec(lambda: uloads(0))
    n0 = OPT['n0']
    if half == 0:
        fill = []
        while ws.nd < min(ws.dmax, ws.ni): fill += ws.drain_ops()
        for o in ld[:n0]:
            k.run([o] + fill[:4]); fill = fill[4:]; ws.cs_flush(2, 1)
        k.run(fill)
        k.wait(vm='img1', lg='all'); e('s_barrier')
    else:
        k.run(ld[:4])
        k.run(k.weave(ld[4:n0], rec(lambda: (adr(), k.wait(vm='img1'), ichk())), 56))
        retry_site(ichk, lambda: k.run(img_ops(1, 1)), 'img')
        e('s_barrier')
    mread = lambda kap, pq: k.ds(f'ds_read_b128 {vr(MF+4*pq,4)}, v{vm} offset:{4096*pq + 1024*kap}', f'M{pq}')
    mread(0, 0); mread(0, 1)
    if half == 0: ws.cs_flush(); ws.cs_on = 0; ws.lag = 99
    rest = ld[n0:]
    XU = lambda pq, b, mir: RAW(2*pq + (b >> 1)) + 8*(b & 1) + 4*mir
    def xread(pq, b):
        k.ds(f'ds_read_b128 {vr(XU(pq,b,0),4)}, v{vd} offset:{L_X + pq*TOFF(half) + b*us}', f'xd{pq}{b}')
        k.ds(f'ds_read_b128 {vr(XU(pq,b,1),4)}, v{vmQ if pq else vmP} offset:{L_X + (3-b)*us}', f'xm{pq}{b}')
    def uchk(kap):
        R = RAW(kap)
        if half: e(f'v_max3_u32 v{tc}, v{R}, v{R+4}, v{R+8}'); e(f'v_max_u32 v{tc}, v{tc}, v{R+12}'); e(f'v_cmp_eq_u32 vcc, -1, v{tc}')
        else:
            e(f'v_xor_b32 v{tc}, s{sN}, v{R}')
            for i in range(1, 16): e(f'v_bitop3_b32 v{tc}, v{tc}, v{R+i}, s{sN + i%4} bitop3:0xf6')
            e(f'v_and_b32 v{tc}, 0x10001, v{tc}'); e(f'v_cmp_ne_u32 vcc, 0, v{tc}')
    def ureload(kap):
        if half == 0 or not OPT['usel']: return uloads(kap)
        uloads(kap, kap + 1)
        if kap < 3: e('s_waitcnt vmcnt(4)')
        for k2 in range(kap + 1, 4):
            l = k.lab('have'); uchk(k2); e(f's_cbranch_vccz {l}'); uloads(k2, k2 + 1); e(f'{l}:')
    for kap in range(4):
        R = RAW(kap)
        ls(f'b{half}.w{kap}')
        sw = lambda i, jx, R=R: e(f'v_swap_b32 v{R+4*i+jx}, v{R+4*jx+i}')
        if half:
            for jj in range(4):
                k.wait(vm=f'U{kap}{jj}')
                if kap == 0: k.run(rest[:2 if jj == 3 else 1]); rest = rest[2 if jj == 3 else 1:]
                if jj == 3: assert not rest; ls(f'b{half}.u{kap}')
                e(f'v_max_u32 v{tc}, v{tc}, v{R+4*jj}' if jj else f'v_mov_b32 v{tc}, v{R}')
                if jj == 3: e(f'v_cmp_eq_u32 vcc, -1, v{tc}'); sw(0, 3)
                else:
                    for i in range(jj): sw(i, jj)
            retry_site(lambda kap=kap: uchk(kap), lambda kap=kap: ureload(kap), f'U{half}_{kap}', after=lambda sw=sw: (sw(0, 1), sw(0, 2), sw(1, 2), sw(0, 3)))
        else:
            k.wait(vm=f'U{kap}3'); ls(f'b{half}.u{kap}')
            if kap == 0: k.run(rest); k.refill = save; k.seg(999, 999*OPT['pU'], 300)
            uchk(kap); retry_site(lambda kap=kap: uchk(kap), lambda kap=kap: ureload(kap), f'U{half}_{kap}')
        if kap == 3: stamp(f'B{half}.Uin')
        SP = R if half else 220 + 16*(kap & 1)
        def mf(u, pq):
            A = ACC(u, pq); e(f'v_mfma_f32_32x32x16_f16 {vr(A,16)}, {vr(SP+4*(2*u+pq),4)}, {vr(MF+4*pq,4)}, {vr(A,16) if kap else 0}')
        if half:
            k.wait(lg='M0')
            mf(0, 0); sw(2, 3); sw(1, 3); k.wait(lg='M1'); mf(1, 0)
            if kap < 3: mread(kap + 1, 0)
            mf(0, 1); mf(1, 1)
        else:
            assert ws.ni <= 40
            mv = lambda d: [e(f'v_and_b32 v{SP+4*d+jj}, s{sMK+2}, v{R+4*jj+d}') for jj in range(4)]
            mv(0); mv(2); k.wait(lg='M0'); mf(0, 0); mv(1); mf(1, 0)
            if kap < 3: mread(kap + 1, 0)
            mv(3); k.wait(lg='M1'); mf(0, 1); mf(1, 1)
        if kap < 3: mread(kap + 1, 1)
        if half == 0 and kap == OPT['fl']: flag_load()
        xread(kap >> 1, 2*(kap & 1)); xread(kap >> 1, 2*(kap & 1) + 1)
    if half == 0:
        ws.lag = OPT['lag']; k.bg_period = OPT['pE']
    ADR[:] = [vu2, vm]
    e(f'v_lshrrev_b32 v{vm}, 3, v{vL}'); e(f'v_lshl_add_u32 v{vm}, s{sW}, 3, v{vm}'); rowaddr(half, vu2, vm, tc)
    e(f'v_and_b32 v{tc}, 7, v{vL}'); e(f'v_lshl_add_u32 v{vu2}, v{tc}, {us.bit_length()-1}, v{vu2}'); e(f'v_lshlrev_b32 v{vm}, 3, v{vm}'); e(f's_lshl_b32 s{sT}, s{sW}, 3')
    T = MF
    sel = lambda hi: f's{sHI if hi else sLO}'
    for pq in range(2):
        Y = lambda b, n: ACC(n & 1, pq) + 4*b + (n >> 1)
        e(f'v_mov_b32 v{vu}, v{Y(0,0)}'); e(f'v_cndmask_b32 v{Y(0,0)}, 0, v{Y(0,0)}, {sr(sMK,2)}')
        for b in range(4):
            if b == 3: k.depth += 1; e('s_mov_b32 exec_hi, 0')
            xd, xm = XU(pq, b, 0), XU(pq, b, 1); ls(f'e{half}.{pq}{b}')
            if half == 0 and 4 + 3*pq + b == OPT['fl'] and b < 3: flag_load()
            if half == 0 and 3*pq + b == OPT['fc'] and b < 3: flag_check(); ws.limit = min(44, 28 + 4*OPT['ja'])
            if half == 0 and 4 + 3*pq + b == OPT['fl2'] and b < 3: flag_load(1)
            k.wait(lg=f'xm{pq}{b}')
            for n in range(8): e(f'v_dot2_f32_bf16 v{T+n}, v{xd + (n >> 1)}, {sel(n & 1)}, v{Y(b,n)}')
            e(f'v_dot2_f32_bf16 v{Y(b,0)}, v{xm}, {sel(0)}, v{Y(b+1,0) if b < 3 else tc}')
            for m in range(4): e(f'v_cvt_pk_bf16_f32 v{xd+m}, v{T+2*m}, v{T+2*m+1}')
            k.ds(f'ds_write_b128 v{vd}, {vr(xd,4)} offset:{L_X + pq*TOFF(half) + b*us}', 'xw')
            for m in range(1, 8): e(f'v_dot2c_f32_bf16 v{Y(b,8-m)}, {sel(m & 1)}, v{xm + (m >> 1)}')
            if b == 0: e(f'v_permlane32_swap_b32 v{vu}, v{tc}')
            for m in range(4): e(f'v_cvt_pk_bf16_f32 v{xm+m}, v{Y(b,(8-2*m)%8)}, v{Y(b,7-2*m)}')
            k.ds(f'ds_write_b128 v{vmQ if pq else vmP}, {vr(xm,4)} offset:{L_X + (3-b)*us}', 'xw')
        e('s_mov_b32 exec_hi, -1'); k.depth -= 1

def ffn(half):
    us = US(half); toff = TOFF(half); ls(f'e{half}.x')
    vb, vs, vst, vh = vA, vA + 1, vA + 2, vA + 3
    BR = lambda i: B[5] + 4*(i % 3); MFR = B[5] + 12; t = B[5] + 14
    vres = B[4]
    e(f'v_mov_b32 v{vb}, v{vT1 + 1 if half else vX + 3}')
    def adr0():
        e(f'v_lshrrev_b32 v{t}, 3, v{vL}'); e(f's_lshl_b32 s{sT}, s{sW}, 3'); e(f'v_add_u32 v{t}, s{sT}, v{t}'); rowaddr(half, vs, t, t + 1)
        e(f'v_lshlrev_b32 v{vh}, 3, v{t}')
        e(f'v_and_b32 v{t}, 7, v{vL}'); e(f'v_lshl_add_u32 v{vs}, v{t}, {us.bit_length()-1}, v{vs}')
    e(f'v_mov_b32 v{vs}, v{ADR[0]}'); e(f'v_mov_b32 v{vh}, v{ADR[1]}')
    def more():
        e(f's_mul_i32 s{sT+1}, s{sG}, {8*us}')
        if half == 0:
            e(f'v_and_b32 v{t}, 7, v{vL}'); e(f'v_add_u32 v{t}, s{sT}, v{t}'); rowaddr(half, vres, t, t + 1)
            e(f'v_lshrrev_b32 v{t}, 3, v{vL}'); e(f'v_lshl_add_u32 v{vres}, v{t}, 4, v{vres}'); e(f'v_add_u32 v{vres}, s{sT+1}, v{vres}')
        else: e(f'v_add_u32 v{vres}, s{sT+1}, v{vs}')
        e(f'v_and_b32 v{vst}, 31, v{vL}'); e(f'v_lshlrev_b32 v{vst}, 3, v{vst}')
        e(f's_mov_b32 s{sMK}, -1'); e(f's_mov_b32 s{sMK+1}, 0'); e(f's_mov_b32 s{sMK+2}, 0x80008000')
    def epoch():
        def ep():
            e(f's_lshl_b32 s{sT+4}, s2, 2'); e(f's_add_u32 s{sT+4}, s{sT+4}, s{sW}'); e(f's_cmp_eq_u32 s{sT+4}, 128'); e('s_cbranch_scc1 L_epoch'); e('L_epoch_ret:')
            k.begin_tail(); e('L_epoch:')
            for i in range(4): e(f'v_mov_b32 v{B[5]+i}, s{sN+i}')
            e(f's_mov_b32 s{sT+4}, {WS_EP}'); e('s_mov_b64 exec, 1'); e(f'buffer_store_dwordx4 {vr(B[5],4)}, off, {sr(sWS,4)}, s{sT+4} sc1'); e('s_mov_b64 exec, -1'); e('s_branch L_epoch_ret')
            k.end_tail()
        k.call(ep, 's', 32)
    vh1 = vT1
    if half == 0:
        if OPT['fl2'] == 10: flag_load(1)
    if half == 0: ws.force(-1); k.seg(999, 999*OPT['perG'])
    k.wait(lg='xw'); e('s_barrier')
    stamp(f'B{half}.end')
    if stop(f'B{half}', 61440): return True
    hvo = lambda T: vh1 if T else vL16
    MF2 = [MFR, MFR]
    resrd = lambda T: k.ds(f'ds_read_b128 {vr(vR+4*T,4)}, v{vres} offset:{L_X + T*toff}', 'res')
    ACC1 = lambda T, u: B[2*T + u]
    def bread(i):
        q = i % 28
        def f():
            k.ds(f'ds_read_b128 {vr(BR(i),4)}, v{vb} offset:{L_X + (i//28)*toff + 2*(q % 7 if OPT["rot"] else q)*us}', f'B{i}')
            if OPT['rot'] and q % 7 == 6 and i < 55: e(f'v_add_u32 v{vb}, s{sRD + q//7}, v{vb}')
        return Op('ds', 4, f)
    k.depth += 1; bread(0)(); bread(1)(); k.depth -= 1
    def stats_ops(T):
        SB = lambda j: B[6] + 4*(j % 2); s1, s2, lo, hi = B[6] + 8, B[6] + 9, B[6] + 10, B[6] + 12
        rd = lambda j: k.ds(f'ds_read_b128 {vr(SB(j),4)}, v{vs} offset:{L_X + T*toff + 8*j*us}', f'S{T}{j}')
        ops = rec(lambda: (rd(0), rd(1))) + [None, None]
        def body():
            for j in range(1 if OPT['nostats'] else 7):
                k.wait(lg=f'S{T}{j}')
                for m in range(4):
                    l_, h_ = lo + m % 2, hi + m % 2
                    e(f'v_lshlrev_b32 v{l_}, 16, v{SB(j)+m}'); e(f'v_and_b32 v{h_}, s{sFF}, v{SB(j)+m}')
                    if m == 3 and j + 2 < 7: rd(j + 2)
                    if j == 0 and m == 0: e(f'v_add_f32 v{s1}, v{l_}, v{h_}'); e(f'v_mul_f32 v{s2}, v{l_}, v{l_}'); e(f'v_fmac_f32 v{s2}, v{h_}, v{h_}')
                    else: e(f'v_add_f32 v{s1}, v{s1}, v{l_}'); e(f'v_fmac_f32 v{s2}, v{l_}, v{l_}'); e(f'v_add_f32 v{s1}, v{s1}, v{h_}'); e(f'v_fmac_f32 v{s2}, v{h_}, v{h_}')
        ops += rec(body)
        for c in ('quad_perm:[1,0,3,2]', 'quad_perm:[2,3,0,1]', 'row_half_mirror'):
            ops += rec(lambda: [e('s_nop 0')] + [e(f'v_add_f32_dpp v{r}, v{r}, v{r} {c} row_mask:0xf bank_mask:0xf') for r in (s1, s2)])
        ops += rec(lambda: (e(f'v_mul_f32 v{s1}, {fl(-1.0/448)}, v{s1}'), e(f'v_mul_f32 v{lo}, v{s1}, v{s1}'), e(f'v_fmamk_f32 v{s2}, v{s2}, {fl(-1.0/448)}, v{lo}'),
                e(f'v_min_f32 v{s2}, 0, v{s2}'), e(f'v_sub_f32 v{s2}, {fl(1e-5)}, v{s2}'), e(f'v_rsq_f32 v{s2}, v{s2}'))) + [None]
        ops += rec(lambda: k.ds(f'ds_write_b64 v{vh}, {vr(s1,2)} offset:{L_ST + 256*T}', 'stw')) + [None, None]
        ops += rec(lambda: (k.wait(lg='stw'), e('s_barrier'), k.ds(f'ds_read_b32 v{t}, v{vst} offset:{L_ST + 256*T}', 'm'))) + [None, None, None]
        ops += rec(lambda: (k.wait(lg='m'), e(f'v_cndmask_b32 v{t}, 0, v{t}, {sr(sMK,2)}'), e(f'v_cvt_pk_bf16_f32 v{MFR}, v{t}, v{t}'),
                e(f'v_and_b32 v{t+1}, s{sFF}, v{MFR}'), e(f'v_sub_f32 v{t}, v{t}, v{t+1}'), e(f'v_cvt_pk_bf16_f32 v{MFR+1}, v{t}, 0')))
        return ops
    OWN = [B[4], B[6]]
    def bump(c): k.bg_next = max(k.bg_next, k.clk - 40) + c
    ownfix = lambda T: None
    def epi1(T):
        ng = '-' if half else ''
        for u in range(2):
            for be in range(2):
                d = OWN[T] + 8*u + 4*be; a = ACC1(T, u) + 8*be
                for m in range(4):
                    ng = '-' if (half != (m == 3)) else ''; e(f'v_cvt_pk_bf16_f32 v{d+m}, {ng}v{a+2*m}, {ng}v{a+2*m+1}')
                for m in range(4): e(f'v_pk_max_u16 v{d+m}, v{d+m}, s{sMK+2}' if (half != (m == 3)) else f'v_pk_max_i16 v{d+m}, v{d+m}, 0')
                if OPT['noh'] & (4 << T): continue
                k.call(lambda d=d, u=u, be=be: (k.vmem(f'buffer_store_dwordx4 {vr(d,4)}, v{hvo(T)}, {sr(sWS,4)}, s{sHS} offen offset:{1024*(2*u+be)} sc1', 'hst'), bump(96)), 'vm', 24)
    HB = {(0, 0): B[4], (0, 1): B[0], (0, 2): B[1], (0, 3): B[7], (0, 4): B[4], (0, 5): B[0], (0, 6): B[1],
          (1, 0): B[6], (1, 1): B[7], (1, 2): B[4], (1, 3): B[6], (1, 4): B[7], (1, 5): B[4], (1, 6): B[6]}
    inflight = []
    def hload(T, jp, i, track=True):
        def f():
            if OPT['noh'] & 1: return
            k.vmem(f'buffer_load_dwordx4 {vr(HB[T,jp]+4*i,4)}, v{hvo(T)}, {sr(sWS,4)}, s{sHS+jp} offen offset:{1024*i} sc1', f'h{T}{jp}{i}')
            if track: inflight.append((T, jp, i)); bump(OPT['perH'] if len(inflight) > 12 else 60)
        return Op('vm', 4, f)
    prevuse = {(0, 4): (0, 0), (0, 5): (0, 1), (0, 6): (0, 2), (1, 1): (0, 3), (1, 2): (0, 4), (1, 3): (1, 0), (1, 4): (1, 1), (1, 5): (1, 2), (1, 6): (1, 3)}
    order = [(0, 1), (0, 2), (0, 3), (0, 4), (0, 5), (1, 1), (0, 6)] + [(1, j) for j in range(2, 7)] if OPT['hord'] else [(T, j) for T in range(2) for j in range(1, 7)]
    hq = []
    for T, jp in order:
        for i in range(4):
            rdy = OPT['hq_slot' if half else 'hq0'] if T == 0 else 116 + OPT['t1_slot']
            if (T, jp) in prevuse: pT, pj = prevuse[T, jp]; rdy = max(rdy, 116 + 56*pT + 8*pj + 2*i + 1)
            hq.append((rdy, 116 + 56*T + 8*jp - OPT['hdl'] - 2*(3 - i), T, jp, i))
    def hpace(slot):
        def f():
            if not hq or OPT['noh'] & 1: return
            due = min(x[1] for x in hq[:8]) <= slot
            wfirst = half == 0 and ws.sent < 56 and ws.use(ws.sent) - OPT['lead'] <= hq[0][1]
            if hq[0][0] <= slot and ((k.clk >= k.bg_next and not wfirst) or due):
                x = hq.pop(0)
                if x[3:] == (1, 0) and OPT['hack'] >> (2*half + x[2]) & 1: k.wait(vm='hst')
                if half == 0 and OPT['cntlate'] and x[2:] == (1, 1, 0): cnt_load(vT2 + 1, 1)
                hload(*x[2:])()
                if OPT['verbose'] > 2: print(f'; h{x[2:]} at slot {slot} use {116 + 56*x[2] + 8*x[3]}', file=sys.stderr)
        return Op('vm', 0, f)
    def g1_slots(T):
        sl = []
        for n in range(28):
            i = 28*T + n
            for u in range(2):
                A = ACC1(T, u)
                def mf(A=A, n=n, u=u, i=i):
                    k.wait(lg=f'B{i}')
                    if half == 0 and T == 0: assert ws.done > n; k.wait(lg=f'tr{n}')
                    e(f'v_mfma_f32_32x32x16_bf16 {vr(A,16)}, {w1f(n,u)}, {vr(BR(i),4)}, {vr(A,16) if n else 0}')
                pre = [bread(i + 2)] if (u == 0 and i + 2 < 56) else []
                if u == 0 and n % 7 == 0: pre.append(Op('s', 0, lambda n=n: ls(f'c{half}.{T}{n//7}')))
                if half == 0 and u == 1: pre.append(Op('ds', 0, lambda n=n: ws.force(58*T + 2*n + 1)))
                sl.append([[Op('mfma', 8, mf)], pre, []])
        return sl
    def corr(T): return [[rec(lambda: e(f'v_mfma_f32_32x32x8_bf16 {vr(ACC1(T,u),16)}, {vr(vCS+2*u,2)}, {vr(MF2[T],2)}, {vr(ACC1(T,u),16)}')), [], []] for u in range(2)]
    st0 = stats_ops(0); st1 = stats_ops(1)
    sl = g1_slots(0)
    res = [rec(lambda: k.ds(f'ds_read_b128 {vr(vR+4*T,4)}, v{vres} offset:{L_X + T*toff}', 'res')) for T in range(2)]
    nbg = OPT['nbgG']; STAG = OPT['stag']
    if half == 0:
        assert OPT['fc2'] < OPT['css']
        sl[OPT['fc2']][2] += rec(lambda: flag_check(1)) + [Op('s', 0, lambda: setattr(ws, 'limit', 56))]
        sl[OPT['css']][1] += rec(cs_load); o = rec(cs_check)
        sl[45][2] += o[:4]; sl[47][2] += o[4:5]; sl[49][2] += o[5:]
    q0 = st0[:1] + rec(more) + st0[1:2] + st0[4:18] + res[0] + st0[18:43] + res[1] + st0[43:]
    if STAG:
        mv = [sl[i][1].pop(0) for i in (52, 54)]; sl[51][1].insert(0, mv[0]); sl[53][1].insert(0, mv[1])
        tb = [sl[51], sl[53], sl[55]]; sl = sl[:50] + [sl[50], sl[52], sl[54]]
    k.slots(sl, q0, 52 if STAG else 54, nbg=nbg)
    log('g1(0) done')
    if OPT['fine'] & 2: stamp(f'C{half}.g10')
    c0 = corr(0); ep0 = rec(lambda: epi1(0)); nop = lambda n: rec(lambda: e(f's_nop {n}'))
    tail1 = st1[26:] + rec(lambda: e(f'v_add_u32 v{vh1}, {7*16384}, v{vL16}'))
    if STAG:
        k.slots([c0[0]] + tb[:2], st1[:1] + nop(3) + [None] + st1[1:2] + nop(2) + [None] + ep0[:5], nbg=0)
        sl = [tb[2], c0[1]] + g1_slots(1)
        q = ep0[5:18] + st1[4:9] + ep0[18:] + st1[9:26] + tail1
    else:
        sl = c0 + g1_slots(1)
        q = st1[:14] + ep0 + st1[14:26] + tail1
    for n in range(len(sl)): sl[n][1].append(hpace(56 + n))
    if half == 0 and not OPT['cntlate']: sl[OPT['hq0'] - 57][1] += rec(lambda: cnt_load(vT1 + 1, 1))
    k.slots(sl, q, 57, nbg=nbg)
    k.slots(corr(1))
    stamp(f'C{half}.g1')
    k.depth += 1
    while len(inflight) < OPT['hB%d' % half]: hload(*hq.pop(0)[2:])()
    epi1(1)
    k.depth -= 1
    if OPT['fine'] & 4: stamp(f'C{half}.epi'); k.wait(vm='h023'); stamp(f'C{half}.h02'); k.wait(vm='all'); stamp(f'C{half}.ack')
    if stop(f'C{half}'): return True
    ACC2 = lambda T, v: (B[2 + v] if T == 0 else B[v])
    ORD = [[(kk, v) for kk in range(28) for v in range(2)] for T in range(2)]
    ORD[1] = ORD[1][:48] + [(kk, v) for v in range(2) for kk in range(24, 28)]
    CUR = [0]
    AR = lambda kk, v: B[5] + 4*(ORD[CUR[0]].index((kk, v)) % 4)
    def aread(kk, v):
        def f():
            assert ws.sent > 28 + kk; k.wait(vm=f'w{28+kk}')
            k.ds(f'ds_read_b128 {vr(AR(kk,v),4)}, v{vT2} offset:{2048*(kk-17) + 1024*v}', f'A{kk}{v}')
        return Op('ds', 4, f)
    tc = vb
    def hcheck(T, jp):
        R = HB[T, jp]
        def part(i):
            r = R + 4*i
            e(f'v_or3_b32 v{tc}, v{r}, v{r+1}, v{tc}' if i else f'v_or_b32 v{tc}, v{r}, v{r+1}'); e(f'v_bitop3_b32 v{tc}, v{tc}, v{r+2}, v{r+3} bitop3:0xfd')
        def fin(): e(f'v_and_b32 v{tc}, s{sMK+2}, v{tc}'); e(f'v_cmp_ne_u32 vcc, 0, v{tc}')
        def chk():
            if half == 0: [part(i) for i in range(4)]; fin()
            else: e(f'v_bitop3_b32 v{tc}, v{R}, v{R+4}, v{R+8} bitop3:0x80'); e(f'v_and_b32 v{tc}, v{tc}, v{R+12}'); e(f'v_cmp_le_i32 vcc, 0, v{tc}')
        def br():
            todo = [x for x in inflight if (x[:2] == (T, jp) if OPT['hsel'] else x[:2] >= (T, jp))]
            retry_site(chk, lambda: [hload(*x, track=False)() for x in todo], f'h{half}_{T}{jp}')
        def w(i):
            assert (T, jp, i) in inflight, (T, jp, i); k.wait(vm=f'h{T}{jp}{i}')
        o = [[] for _ in range(8)]
        if half: o[6] = [Op('v', 16, lambda: (w(3), chk()))]
        else:
            o[4] = [Op('v', 20, lambda: (w(1), part(0), part(1)))]; o[5] = [Op('v', 12, lambda: (w(2), part(2)))]; o[6] = [Op('v', 20, lambda: (w(3), part(3), fin()))]
        o[7] = [Op('s', 20, br)]
        return o
    RS = 1088; vrr, vo, vrwb = vs, vh, vT1 + 1
    def g2addr():
        tau, cc = B[5], B[5] + 1
        if half == 0: e(f'v_and_b32 v{tau}, 7, v{vL}'); e(f'v_lshrrev_b32 v{cc}, 3, v{vL}')
        else: e(f'v_lshrrev_b32 v{tau}, 3, v{vL}'); e(f'v_and_b32 v{cc}, 7, v{vL}')
        e(f's_lshl_b32 s{sT}, s{sW}, 3'); e(f'v_add_u32 v{tau}, s{sT}, v{tau}')
        e(f'v_mul_u32_u24 v{vrr}, {RS}, v{cc}'); e(f'v_lshl_add_u32 v{vrr}, v{tau}, 4, v{vrr}')
        if half == 0: e(f'v_bfe_i32 v{cc+1}, v{cc}, 0, 1'); e(f'v_lshl_add_u32 v{vrr}, v{cc+1}, 6, v{vrr}')
        e(f'v_lshlrev_b32 v{vst}, 3, v{tau}')
        if half == 0:
            rowaddr(1, vo, tau, cc + 1); e(f'v_lshl_add_u32 v{vo}, v{cc}, 8, v{vo}')
            for T in range(2):
                e(f's_mul_i32 s{sMK+4+T}, s{sRB if T else sP}, 28672'); e(f's_lshl_b32 s{sT}, s{sG}, 11'); e(f's_add_u32 s{sMK+4+T}, s{sMK+4+T}, s{sT}'); e(f's_add_u32 s{sMK+4+T}, s{sMK+4+T}, {WS_X2}')
        else:
            e(f'v_mul_u32_u24 v{vo}, 57344, v{tau}'); e(f'v_lshl_add_u32 v{vo}, v{cc}, 4, v{vo}')
            for T in range(2):
                e(f's_mul_i32 s{sMK+4+T}, s{sRB if T else sP}, 896'); e(f's_lshl_b32 s{sT}, s{sG}, 7'); e(f's_add_u32 s{sMK+4+T}, s{sMK+4+T}, s{sT}')
        e(f's_mul_i32 s{sT}, s{sW}, {8*RS}'); e(f'v_add_u32 v{vrwb}, s{sT}, v{vL16}')
        e('s_barrier')
    def g2more():
        if half == 0:
            e(f's_lshr_b32 s{sT}, s{sW}, 1'); e(f's_lshl_b32 s{sT}, s{sT}, 5'); e(f's_add_u32 s{sT}, s{sT}, s{sP}'); e(f's_lshl_b32 s{sT}, s{sT}, 1')
            e(f's_and_b32 s{sT+1}, s{sW}, 1'); e(f's_add_u32 s{sT}, s{sT}, s{sT+1}'); e(f's_lshl_b32 s49, s{sT}, 10'); e(f's_add_u32 s49, s49, {WS_SS}')
            e(f's_mul_i32 s{sT}, s{sT}, 14336'); e(f's_add_u32 s{sT}, s{sT}, {WS_X2}'); e(f's_lshl_b32 s{sT+1}, s{sG}, 11')
            for b in range(7):
                if b: e(f's_add_u32 s{sT+1}, s{sT+1}, 2048'); e(f's_sub_u32 s{sT+2}, s{sT+1}, 14336'); e(f's_min_u32 s{sT+1}, s{sT+1}, s{sT+2}')
                e(f's_add_u32 s{SX[b]}, s{sT}, s{sT+1}')
            for T in range(2):
                e(f's_lshl_b32 s{sT}, s{sRB if T else sP}, 11'); e(f's_lshr_b32 s{sT+1}, s{sW}, 1'); e(f's_lshl_b32 s{sT+1}, s{sT+1}, 10'); e(f's_add_u32 s{sT}, s{sT}, s{sT+1}')
                e(f's_and_b32 s{sT+1}, s{sW}, 1'); e(f's_lshl_b32 s{sT+1}, s{sT+1}, 7'); e(f's_add_u32 s{sT}, s{sT}, s{sT+1}')
                e(f's_lshr_b32 s{sT+1}, s{sG}, 1'); e(f's_lshl_b32 s{sT+1}, s{sT+1}, 8'); e(f's_add_u32 s{sT}, s{sT}, s{sT+1}')
                e(f's_and_b32 s{sT+1}, s{sG}, 1'); e(f's_lshl_b32 s{sT+1}, s{sT+1}, 3'); e(f's_add_u32 s{sT}, s{sT}, s{sT+1}'); e(f's_add_u32 s{sMK+6+T}, s{sT}, {WS_SS}')
    rr = vSb
    rwr = lambda T, c: k.ds(f'ds_write_b128 v{vrwb}, {vr(ACC2(T, c >> 2) + 4*(c & 3), 4)} offset:{L_RED + RS*c - (0 if half else 64*(c & 1))}', 'rw')
    rrd = lambda T: k.ds(f'ds_read_b32 v{rr}, v{vst} offset:{L_ST + 4 + 256*T}', 'rw')
    def red_final(T, PB, pk):
        x = vR + 4*T; ops = []
        for pw in range(4):
            ops += rec(lambda: [k.ds(f'ds_read_b128 {vr(PB+8*pw+4*h,4)}, v{vrr} offset:{L_RED + 8*RS*pw + 512*h}', f'p{pw}') for h in range(2)]) + [None]
        XT = B[7] if pk else None
        def body():
            if pk:
                k.wait(lg='p1')
                for n in range(0, 8, 2): e(f'v_pk_add_f32 {vr(PB+n,2)}, {vr(PB+n,2)}, {vr(PB+8+n,2)}')
                k.wait(lg='p3')
                for n in range(0, 8, 2): e(f'v_pk_add_f32 {vr(PB+16+n,2)}, {vr(PB+16+n,2)}, {vr(PB+24+n,2)}')
                for n in range(0, 8, 2): e(f'v_pk_add_f32 {vr(PB+n,2)}, {vr(PB+n,2)}, {vr(PB+16+n,2)}')
                ng = ' neg_lo:[1,0,0] neg_hi:[1,0,0]' if half else ''
                for n in range(0, 8, 2): e(f'v_pk_fma_f32 {vr(PB+n,2)}, {vr(PB+n,2)}, {vr(rr-1,2)}, {vr(XT+n,2)} op_sel:[0,1,0]{ng}')
            else:
                for pw in range(1, 4):
                    k.wait(lg=f'p{pw}')
                    for n in range(8): e(f'v_add_f32 v{PB+n}, v{PB+n}, v{PB+8*pw+n}')
                for n in range(8): e(f'v_and_b32 v{PB+8+n}, s{sFF}, v{x + n//2}' if n & 1 else f'v_lshlrev_b32 v{PB+8+n}, 16, v{x + n//2}')
                for n in range(8): e(f'v_fma_f32 v{PB+n}, {"-" if half else ""}v{rr}, v{PB+n}, v{PB+8+n}')
            for m in range(4): e(f'v_cvt_pk_bf16_f32 v{x+m}, v{PB+2*m}, v{PB+2*m+1}')
            if half == 0:
                k.vmem(f'buffer_store_dwordx4 {vr(x,4)}, v{vo}, {sr(sWS,4)}, s{sMK+4+T} offen sc1', 'xst')
                a, b, c = PB + 16, PB + 17, PB + 18
                e(f'v_add_f32 v{a}, v{PB}, v{PB+1}'); e(f'v_mul_f32 v{b}, v{PB}, v{PB}'); e(f'v_fmac_f32 v{b}, v{PB+1}, v{PB+1}')
                for n in range(2, 8): e(f'v_add_f32 v{a}, v{a}, v{PB+n}'); e(f'v_fmac_f32 v{b}, v{PB+n}, v{PB+n}')
                e(f'v_and_b32 v{c}, 0x70, v{vL16}'); e(f'v_lshrrev_b32 v{c+1}, 5, v{vL}')
                e(f'v_permlane32_swap_b32 v{a}, v{b}'); e(f'v_add_f32 v{a}, v{a}, v{b}'); e(f'v_mov_b32 v{b}, v{a}'); e(f'v_lshl_add_u32 v{c}, v{c+1}, 2, v{c}')
                e(f'v_permlane16_swap_b32 v{a}, v{b}'); e(f'v_add_f32 v{a}, v{a}, v{b}')
                e(f'v_add_f32_dpp v{a}, v{a}, v{a} row_ror:8 row_mask:0xf bank_mask:0xf')
                k.call(lambda: (e('s_mov_b32 exec_lo, 0xff\ns_mov_b32 exec_hi, 0xff'), k.vmem(f'buffer_store_dword v{a}, v{c}, {sr(sWS,4)}, s{sMK+6+T} offen sc1', 'xst'), e('s_mov_b64 exec, -1')), 's', 16)
            else: k.vmem(f'buffer_store_dwordx4 {vr(x,4)}, v{vo}, {sr(sOUT,4)}, s{sMK+4+T} offen' + (' sc1' if OPT['outsc'] >> T & 1 else ''), 'xst')
        return ops + [None] + rec(body)
    for T in range(2):
        sl = []; CUR[0] = T
        for pos, (kk, v) in enumerate(ORD[T]):
            jp, i = kk >> 2, kk & 3
            if True:
                A = ACC2(T, v); wr = w2reg(kk, v)
                def mf(A=A, wr=wr, kk=kk, v=v, jp=jp, i=i):
                    if wr is None: k.wait(lg=f'A{kk}{v}')
                    elif half == 0 and T == 0:
                        assert ws.sent > 28 + kk; k.wait(vm=f'w{28+kk}')
                    a = rn(wr, 4) if wr else vr(AR(kk, v), 4)
                    e(f'v_mfma_f32_32x32x16_bf16 {vr(A,16)}, {a}, {vr(HB[T,jp]+4*i,4)}, {vr(A,16) if kk else 0}')
                pre, post = [], []
                if i == 0 and v == 0: pre.append(Op('s', 0, lambda jp=jp, T=T: ls(f'g{half}.{T}{jp}')))
                if half == 0 and T == 0 and v == 0: pre.append(Op('ds', 0, lambda kk=kk: ws.force(116 + 2*kk)))
                if pos + 4 < 56 and ORD[T][pos + 4][0] >= 17: pre.append(aread(*ORD[T][pos + 4]))
                pre.append(hpace(116 + 56*T + 2*kk + v))
                if jp < 6 and not OPT['noh'] & 2: post += hcheck(T, jp + 1)[2*i + v]
                sl.append([[Op('mfma', 8, mf)], pre, post])
        if T == 0: k.slots(sl[:26], rec(lambda: (half or OPT['cntlate'] or cnt_check(vT1 + 1, 1), g2addr())), 24); k.slots(sl[26:], rec(g2more), 28)
        else:
            k.bg_flush(); assert half or ws.ni == 56
            q = [None, None]
            q += rec(lambda: rrd(0))
            if half == 0 and OPT['cntlate']: sl[9][2] += rec(lambda: cnt_check(vT2 + 1))
            for c in range(8): q += rec(lambda: rwr(0, c)) + [None, None]
            q += [Op('s', 0, lambda: CHECKED[0])] + rec(lambda: (k.wait(lg='rw'), e('s_barrier'))) + red_final(0, B[2], False) + [None] + rec(lambda: (e('s_barrier'), rrd(1)))
            x = vR + 4
            un = rec(lambda: [e(f'v_and_b32 v{B[7]+n}, s{sFF}, v{x + n//2}' if n & 1 else f'v_lshlrev_b32 v{B[7]+n}, 16, v{x + n//2}') for n in range(8)])
            sl[52][2] += un[:5]; sl[53][2] += un[5:]; sl[54][2] += rec(lambda: rwr(1, 0)); sl[55][2] += rec(lambda: rwr(1, 1))
            k.slots(sl, q, 51)
        log(f'g2({T}) done')
        if OPT['fine'] & 2 and T == 0: stamp(f'D{half}.g20')
    stamp(f'D{half}.g2')
    for c in range(2, 8): rwr(1, c)
    ls(f'd{half}.w'); k.wait(lg='all'); e('s_barrier'); ls(f'd{half}.b')
    k.run(red_final(1, B[2], True))
    stamp(f'D{half}.st')
    if half == 0: epoch()
    k.refill = None
    return False

def only_stream():
    srds((sX0, sW1, sW2, sWS)); e(f's_lshl_b32 s49, s3, 2'); e(f's_add_u32 s49, s49, s{sW}')
    e(f'v_lshlrev_b32 v17, 7, v{vL}'); e(f's_mul_i32 s{sIL}, s49, {14*128}')
    e('s_waitcnt lgkmcnt(0)'); copy_ptrs(True); copy_ptrs(False)
    e(f's_mov_b32 s{sTS}, s50'); nts[0] = 1; tsn.append('start'); e(f's_mov_b32 s{sRETRY}, 20000')
    e('s_mov_b64 exec, 0x3fff')
    if OPT['touch'] & 2: k.vmem(f'buffer_load_dword v19, v17, {sr(sW1,4)}, s{sIL} offen', 'touch')
    if OPT['touch'] & 4: k.vmem(f'buffer_load_dword v19, v17, {sr(sW2,4)}, s{sIL} offen', 'touch')
    e('s_mov_b64 exec, -1')
    stream_setup(); late_setup(); warm(0, 1); warm(1, 5)
    if OPT['touch'] & 8: k.wait(vm='touch')
    stamp('go'); ws.limit = 56; ws.lag = 9
    while ws.ni < 56 or ws.nd < 45:
        n = ws.nd; ws.refill(); k.bg_flush()
        if ws.nd != n and ws.nd % 7 == 0: stamp(f'nd{ws.nd}')
    k.wait(vm='all'); stamp('end'); finish_stamps(); e('s_endpgm')
def main():
    prologue()
    if OPT['only']: return only_stream()
    for half in range(2):
        HALF[0] = half
        phA(half)
        if stop(f'A{half}'): return
        phB(half)
        if ffn(half): return
        if stop(f'D{half}'): return
    finish_stamps()
    e('s_endpgm')
main()
k.tail.append('L_end:')
k.tail.append('s_endpgm')
txt, nops = finish(k, OPT['grid'], 256, LDS_SZ, verbose=OPT['verbose'] > 1, pads=PADS if OPT['pads'] else None)
print(txt)
print(f'; wait states added: {nops}; stamps: {",".join(tsn)}')
```

```python
import sys, struct, re
from kasm import *

OPT = dict(ts=0, stop='', verbose=0, hq_slot=90, t1_grp=4, grid=256, lag=9, perA=96, perB=96, perG=72, perH=70, rot=0, touch=1, pads=1, hpre=17, nx=8, nA=99, dA=60, nT=2, nK=26, nU=10, nE=10, nU0=0, nS=0, late=750, xack=0, uack=1, ud=500, outsc=0, xd=860, wt=0, usel=1, hsel=1, hl=14, np=2, ho=1, trim=1, je=3, stag=1, hack=1, ta=7, fl=-1, fc=-1, ja=3, fl2=2, fc2=2, fl3=5, fc3=7, sp=1, l2k=28, css=19, hB0=12, hB1=0, v2=0, w2t=0, imgb=8, wsc='sc1', pP=84, wG1=22, wG2=50, hG2=10, ssp=5, rt=0, clump=80, nbgA=1, nbgG=2, l2first=2, cntlate=1, pS=64, pA=78, pT=84, pK=76, pU=74, pE=74, n0=11, xs0=4, fillslot=6, e0=14, t1_slot=26, hord=0, hdl=14, lead=18, rot2=0, only=0, hq0=97,
           idleU=500, nostats=0, nofill=0, nocnt=0, fine=0, noh=0)
for a in sys.argv[1:]:
    key, val = a.split('=')
    OPT[key] = val if key in ('stop', 'amp', 'ls') else int(val)
AMP = OPT.get('amp')
if AMP: OPT['ts'] = 1
TS, STOP = OPT['ts'], OPT['stop']
TSI = 's_memtime' if TS == 2 else 's_memrealtime'

S, D, F = 2048, 448, 1792
XB = S * D * 2
WS_U1, WS_U2, WS_X2, WS_H = 0, XB, 2 * XB, 3 * XB
WS_SS = WS_H + S * F * 2
NR = 28 - 4*OPT['np']
WFS = (56 - NR) * 2048
WS_WF = WS_SS + 131072
WS_CS = WS_WF + 28 * WFS
WS_FL = WS_CS + 16384
WS_EP = WS_FL + 16384
WS_END = WS_EP + 64
WS_TS = 0x1000000
WS_DBG = 0x1100000
L_X = 0; L_RED = 28672; L_H = 0; L_ST = 64512
L_M = 65536; L_WA = L_M + 8192; WA_SZ = 22528
L_C = lambda half: 57344 if half else L_M
LDS_SZ = L_WA + 4 * WA_SZ
assert LDS_SZ <= 163840
NSLOT = 11
sX0, sW1, sW2, sOUT, sWS = 8, 12, 16, 20, 24
sW, sG, sP, sRB, sRETRY, sWA, sSO, sLO, sHI, sCI = 32, 33, 34, 35, 36, 37, 38, 39, 40, 41
sT = 42
sBG = 48
sMK = 52
sHS = 60
sIM, sIL = 67, 68
sFF = 69
sUO = 4
sRD = 96
sN = 28
sTS = 70
sDBG = 92
sRC = 100
sRO = 101
vL, vL16, vCS, vSa, vSb, vT1, vT2, vA = 0, 1, 2, 6, 7, 8, 10, 12
B = [16 + 16 * i for i in range(8)]; vR = 144
vCA, vSEL, vX = 240, 248, 252
def w1f(n, u): return ar(8 * n + 4 * u, 4)
def w2reg(kk, v):
    if kk < 4: return ('a', 224 + 8 * kk + 4 * v)
    if kk < 17: return ('v', 152 + 8 * (kk - 4) + 4 * v)
    return None
def rn(t, n): return ar(t[1], n) if t[0] == 'a' else vr(t[1], n)
fl = lambda x: '0x%08x' % struct.unpack('<I', struct.pack('<f', x))[0]

k = K(); e = k.e; rec = k.rec; k.clump = OPT['clump']
nts = [0]; tsn = []
def log(msg):
    if OPT['verbose']: print(f'; [{k.clk}] {msg} ni={ws.ni} nd={ws.nd} cs={ws.nc}', file=sys.stderr)
LS = OPT.get('ls')
def ls(name):
    if TS and LS and re.fullmatch(LS, name):
        i = nts[0]; nts[0] += 1; tsn.append(name); assert i < 11
        k._emit(f'{TSI} s[{sTS+2*i}:{sTS+2*i+1}]')
def stamp(name):
    log(name)
    if LS: return ls(name)
    if not TS or (AMP and name != AMP) or ('half' in OPT and name[1] == str(1 - OPT['half']) and name != 'D0.st'): return
    i = nts[0]; nts[0] += 1; tsn.append(name); assert i < 22
    k.wait(lg='all')
    e(f'{TSI} s[50:51]\ns_waitcnt lgkmcnt(0)\ns_mov_b32 s{sTS+i}, s50')
def finish_stamps():
    if not TS: return
    if AMP:
        if AMP[0] == 'H' and not k.in_tail: return
        if AMP[0] == 'R': e(f's_bfe_u32 s{sTS+1}, s{sRC}, {0x40000 + 4*int(AMP[1])}'); e(f's_mul_i32 s{sTS+1}, s{sTS+1}, 100'); e(f's_mov_b32 s{sTS}, 0')
        if not OPT.get('ampall'): e('s_cmp_lg_u32 s2, 100'); e('s_cbranch_scc1 L_exit')
        e(f's_sub_u32 s44, s{sTS+1}, s{sTS}'); e('s_min_u32 s44, s44, 10000'); e('s_mul_i32 s44, s44, 20')
        e('s_memrealtime s[50:51]'); e('s_waitcnt lgkmcnt(0)'); e('s_add_u32 s44, s44, s50')
        e('L_amp:'); e('s_memrealtime s[50:51]'); e('s_waitcnt lgkmcnt(0)'); e('s_sub_u32 s45, s50, s44'); e('s_cmp_lt_i32 s45, 0'); e('s_cbranch_scc1 L_amp')
        return
    e('v_mov_b32 v16, 0')
    e('s_waitcnt lgkmcnt(0)')
    for i in range(nts[0]): e(f'v_writelane_b32 v16, s{sTS + (2*i if LS and not k.in_tail else i)}, {i}')
    e(f'v_writelane_b32 v16, s{sRETRY}, 63'); e(f'v_writelane_b32 v16, s{sRC}, 62')
    e(f's_lshl_b32 s{sT}, s2, 2'); e(f's_add_u32 s{sT}, s{sT}, s{sW}'); e(f's_lshl_b32 s{sT}, s{sT}, 8'); e(f's_add_u32 s{sT}, s{sT}, {WS_TS}')
    e(f'v_lshlrev_b32 v17, 2, v{vL}')
    e(f'buffer_store_dword v16, v17, {sr(sWS,4)}, s{sT} offen')
def stop(name, dump_lds=0):
    if STOP != name: return False
    k.bg_period = None
    k.wait(vm='all', lg='all'); e('s_barrier')
    if dump_lds:
        e(f's_lshl_b32 s{sT}, s{sW}, 10'); e(f'v_add_u32 v20, s{sT}, v{vL16}')
        e(f's_lshl_b32 s{sT}, s2, 16'); e(f's_add_u32 s{sT}, s{sT}, {WS_DBG}')
        for i in range(dump_lds // 4096):
            e(f'ds_read_b128 v[16:19], v20'); e('s_waitcnt lgkmcnt(0)')
            e(f'buffer_store_dwordx4 v[16:19], v20, {sr(sWS,4)}, s{sT} offen'); e('s_nop 1'); e('v_add_u32 v20, 4096, v20')
    finish_stamps(); e('s_endpgm')
    return True

RCLS = {'cnt': 0, 'U0': 1, 'h0': 2, 'x2': 3, 'img': 4, 'U1': 5, 'h1': 6}
def retry_site(check, reload, name, br='s_cbranch_vccnz', after=None):
    def f():
        slow, ok = k.lab('slow_' + name), k.lab('ok_' + name)
        e(f'{br} {slow}'); e(f'{ok}:')
        k.begin_tail()
        e(f'{slow}:')
        e(f's_cmp_eq_u32 s{sRETRY}, 0'); e(f's_cbranch_scc1 {ok}'); e(f's_sub_u32 s{sRETRY}, s{sRETRY}, 1')
        if TS: e(f's_add_u32 s{sRC}, s{sRC}, {1 << 4*RCLS[name.split("_")[0]]}')
        reload(); k.wait(vm='all', lg='all'); check(); k.wait(vm='all', lg='all')
        e(f'{br} {slow}')
        if after: after()
        e('s_nop 1'); e(f's_branch {ok}')
        k.end_tail()
    k.call(f, 's', 20)
def cnt_load(reg, i=1):
    def f():
        e(f'v_lshlrev_b32 v{reg}, 7, v{vL}'); e(f's_lshl_b32 s{sBG}, s{sW}, 10'); e(f's_add_u32 s{sBG}, s{sBG}, {WS_FL + 12288}')
        e('s_mov_b64 exec, 0xff'); k.vmem(f'buffer_load_dword v{reg}, v{reg}, {sr(sWS,4)}, s{sBG} offen sc1', 'cnt'); e('s_mov_b64 exec, -1')
    k.call(f, 'v', 24)
def cnt_check(reg, i=1):
    chk = lambda: e(f'v_cmp_ne_u32 {sr(sT+4,2)}, s{sN}, v{reg}\ns_nop 0\ns_and_b32 s{sT+4}, s{sT+4}, 0xff')
    k.call(lambda: (k.wait(vm='cnt'), chk(), retry_site(chk, lambda: (e('s_sleep 4'), cnt_load(reg)), 'cnt_1', 's_cbranch_scc1'), CHECKED.append(1)), 'v', 36)
CHECKED = []
def flag_load(i=0):
    def f():
        e(f's_lshl_b32 s49, s{sW}, 7'); e(f'v_lshlrev_b32 v{vCS}, 9, v{vL}' if i else f'v_lshlrev_b32 v{vCS}, 9, s{sG}'); e(f's_add_u32 s49, s49, {WS_FL + 4096*i}')
        e(f's_mov_b64 exec, {0x7f if i else 1}'); k.vmem(f'buffer_load_dword v{vCS+1}, v{vCS}, {sr(sWS,4)}, s49 offen sc1', 'flag'); e('s_mov_b64 exec, -1')
    k.call(f, 'v', 24)
def flag_check(i=0):
    chk = lambda: e(f'v_cmp_ne_u32 vcc, s{sN}, v{vCS+1}\ns_nop 0\ns_and_b64 vcc, vcc, {0x7f if i else 1}')
    k.call(lambda: (k.wait(vm='flag'), chk(), retry_site(chk, lambda: (e('s_sleep 4'), flag_load(i)), 'cnt_f', 's_cbranch_scc1')), 'v', 36)
def cs_load():
    def f():
        e(f's_lshl_b32 s49, s{sG}, 2\ns_add_u32 s49, s49, s{sW}\ns_lshl_b32 s49, s49, 9\ns_add_u32 s49, s49, {WS_CS}\nv_and_b32 v{vT2+1}, 0x1f0, v{vL16}')
        k.vmem(f'buffer_load_dwordx4 {vr(vCS,4)}, v{vT2+1}, {sr(sWS,4)}, s49 offen sc1', 'cs')
    k.call(f, 's', 24)
def warm(site, first):
    def f():
        if OPT['pads']:
            e('s_mov_b64 exec, 0')
            for w in range(3): e(f's_cmp_eq_u32 s{sW}, {w}'); e(f's_cbranch_scc1 L_pad{first+w}')
            e(f's_branch L_pad{first+3}')
        elif site == 0: e('s_branch L_ret0')
        if site == 0: k.in_tail = True; helper(); k.in_tail = False
        e(f'L_ret{site}:'); e('s_mov_b64 exec, -1'); k.clk += 200
    k.call(f, 's', 250)
PADS = lambda p: 'L_ret0' if p <= 4 else f'L_pad{p+2}' if p <= 6 else 'L_ret1' if p <= 8 else f'L_pad{p+2}' if p <= 14 else 'L_ret2'

class Stream:
    def __init__(s): s.ni = 0; s.nd = 0; s.nc = 56; s.limit = 4; s.lag = OPT['lag']
    def issue_ops(s):
        n = s.ni; s.ni += 1
        if n >= NR:
            kk = n - 28
            def ld(v):
                if v == 0 and n == NR: e(f's_lshl_b32 s{sSO}, s{sG}, 2\ns_add_u32 s{sSO}, s{sSO}, s{sW}\ns_mul_i32 s{sSO}, s{sSO}, {WFS}\ns_add_u32 s{sSO}, s{sSO}, {WS_WF}')
                if v == 0 and kk == 17: assert s.done == NR; k.wait(lg=f'tr{NR-1}')
                if v == 0 and (kk == 17 or kk > 17 and kk % 2 == 0): e(f's_add_u32 m0, s{sWA}, {(kk - kk % 2 - 17)*2048}')
                if v == 0 and n > NR and n % 2 == 0: e(f's_add_u32 s{sSO}, s{sSO}, 4096')
                t = w2reg(kk, v) if kk >= 0 else ('a', 8*n + 4*v); off = 2048*(n % 2) + 1024*v; tag = f'w{n}' if v else f'wa{n}'
                if t: k.vmem(f'buffer_load_dwordx4 {rn(t,4)}, v{vL16}, {sr(sWS,4)}, s{sSO} offen offset:{off} sc1', tag)
                else: k.vmem(f'buffer_load_dwordx4 v{vL16}, {sr(sWS,4)}, s{sSO} offen offset:{off} sc1 lds', tag)
                if v: s.sent = n + 1
            return [Op('vm', 8, lambda: ld(0), 1), Op('vm', 4, lambda: ld(1), 1)]
        srd = sr(sW1, 4)
        def a():
            if n >= NSLOT: assert s.done > n - NSLOT; k.wait(lg=f'tr{n-NSLOT}')
            elif n >= 4: k.wait(lg=f'xr{n-4}')
            e(f's_add_u32 m0, s{sWA}, {(n % NSLOT)*2048}')
            if n: e(f's_add_u32 s{sSO}, s{sSO}, {16*3584}')
            if n and n % 7 == 0 and OPT['rot']: e(f's_sub_u32 s{sBG}, s{sSO}, {D*3584}\ns_min_u32 s{sSO}, s{sSO}, s{sBG}')
            k.vmem(f'buffer_load_dwordx4 v{vSa}, {srd}, s{sSO} offen lds', f'wa{n}')
        def b(): k.vmem(f'buffer_load_dwordx4 v{vSb}, {srd}, s{sSO} offen offset:1024 lds', f'w{n}'); s.sent = n + 1
        return [Op('s', 12, a, 1), Op('vm', 4, b, 1)]
    def drain_ops(s):
        n = s.nd; s.nd += 1
        so = (n % NSLOT) * 2048
        def rd(u, h2):
            def f():
                assert s.sent > n; k.wait(vm=f'w{n}')
                if n < 28: dst, ad, off = ar(8*n + 4*u + 2*h2, 2), vT1 + u, so + 512*h2
                else:
                    t = w2reg(n - 28, u); dst, ad, off = rn((t[0], t[1] + 2*h2), 2), vT2 + u, so + 1024*h2
                k.ds(f'ds_read_b64_tr_b16 {dst}, v{ad} offset:{off}', f'tr{n}')
                if u and h2: s.done = n + 1
            return Op('ds', 4, f)
        return [rd(0, 0), rd(0, 1), rd(1, 0), rd(1, 1)]
    done = 0; sent = 0
    cs_on = 0; dmax = NR
    def free(s, n): return n - NSLOT < s.nd if n < NR else (n < 45 or s.nd == NR)
    def refill(s):
        can = s.ni < min(56, s.limit) and s.free(s.ni)
        if s.nd < min(NR, s.ni) and s.lag < 99 and (s.ni - s.nd > s.lag or (not can and s.ni > NR)): k.bg += s.drain_ops()
        elif can: k.bg += s.issue_ops()
    def ensure(s, n):
        while s.done <= n:
            if not k.bg:
                if s.ni <= n and s.free(s.ni): k.bg += s.issue_ops()
                else: k.bg += s.drain_ops()
            k.bg_step()
    use = staticmethod(lambda n: 2*n if n < 28 else 116 + 2*(n - 28))
    def force(s, slot):
        if s.sent < s.ni and s.use(s.sent) <= slot + OPT['lead']: k.bg_flush()
        while s.ni < 56 and s.use(s.ni) <= slot + OPT['lead']:
            k.bg_flush()
            while not s.free(s.ni): k.bg += s.drain_ops()
            k.bg += s.issue_ops(); k.bg_flush()
        n = max([-1] + [i for i in range(NR) if s.use(i) <= slot + 4])
        if n >= 0: s.ensure(n)
    def cs_op(s):
        n, u = s.nc >> 1, s.nc & 1; s.nc += 1
        def g():
            assert s.done > n; k.wait(lg=f'tr{n}')
            acc = vr(vCA + 4*u, 4)
            e(f'v_mfma_f32_16x16x32_bf16 {acc}, {vr(vSEL,4)}, {w1f(n, u)}, {acc if n else 0}')
        return Op('mfma', 16, g)
    def cs_flush(s, maxn=99, behind=0):
        while s.nc < 2*min(28, s.done - behind) and maxn > 0: k.run([s.cs_op()]); maxn -= 1
ws = Stream()
def src_off(stride):
    e(f'v_lshrrev_b32 v{vSa}, 3, v{vL}'); e(f'v_lshrrev_b32 v{vSb}, 2, v{vL}'); e(f'v_and_b32 v{vSb}, 4, v{vSb}')
    e(f'v_xor_b32 v{vSb}, v{vSb}, v{vL}'); e(f'v_and_b32 v{vSb}, 7, v{vSb}'); e(f'v_mul_u32_u24 v{vSa}, {stride}, v{vSa}')
    e(f'v_lshl_add_u32 v{vSa}, v{vSb}, 4, v{vSa}'); e(f'v_add_u32 v{vSb}, {8*stride-1024}, v{vSa}')
def tr_addr(dst, sh, t):
    e(f'v_bfe_u32 v{t}, v{vL}, 2, 2'); e(f'v_bfe_u32 v{t+1}, v{vL}, 3, 1'); e(f'v_bfe_u32 v{t+2}, v{vL}, 4, 1'); e(f'v_and_b32 v{t+3}, 3, v{vL}')
    e(f'v_lshlrev_b32 v{t}, 7, v{t}'); e(f'v_lshl_add_u32 v{t}, v{t+1}, 6, v{t}'); e(f'v_lshl_add_u32 v{t}, v{t+2}, 5, v{t}'); e(f'v_lshl_add_u32 v{t}, v{t+3}, 3, v{t}')
    e(f'v_add_u32 v{t}, s{sWA}, v{t}'); e(f'v_lshrrev_b32 v{t+1}, 5, v{vL}')
    e(f'v_lshl_add_u32 v{dst}, v{t+1}, {sh}, v{t}'); e(f'v_xor_b32 v{dst+1}, 64, v{dst}')
def stream_setup():
    src_off(3584)
    rot = OPT['rot']
    e(f's_lshl_b32 s{sSO}, s{sG}, 2'); e(f's_add_u32 s{sSO}, s{sSO}, s{sW}'); e(f's_lshl_b32 s{sSO}, s{sSO}, 7')
    if rot:
        e(f's_and_b32 s{sRO}, s2, 3' if rot == 3 else f's_add_u32 s{sRO}, s2, s{sW}\ns_and_b32 s{sRO}, s{sRO}, 3'); e(f's_mul_i32 s{sT}, s{sRO}, {7*16*3584}'); e(f's_add_u32 s{sSO}, s{sSO}, s{sT}')
def stream_setup2(t):
    tr_addr(vT1, 10, t); e(f'v_add_u32 v{vT2}, s{sWA}, v{vL16}')
def late_setup():
    e(f's_mul_i32 s{sT}, s{sP}, {2*7*16384}'); e(f's_lshl_b32 s{sT+1}, s{sW}, 12'); e(f's_add_u32 s{sT}, s{sT}, s{sT+1}'); e(f's_add_u32 s{sT}, s{sT}, {WS_H}')
    e({0: f's_mov_b32 s{sT+3}, 1', 1: f's_add_u32 s{sT+3}, s{sCI}, 1', 2: f's_and_b32 s{sT+3}, s2, 3\ns_add_u32 s{sT+3}, s{sT+3}, 1'}[OPT['rot2']]); e(f's_mov_b32 s{sT+1}, s{sG}')
    for jp in range(7):
        if jp: e(f's_add_u32 s{sT+1}, s{sT+1}, s{sT+3}'); e(f's_sub_u32 s{sT+2}, s{sT+1}, 7'); e(f's_min_u32 s{sT+1}, s{sT+1}, s{sT+2}')
        e(f's_lshl_b32 s{sT+2}, s{sT+1}, 14'); e(f's_add_u32 s{sHS+jp}, s{sT}, s{sT+2}')

def prologue():
    e('s_load_dwordx2 s[8:9], s[0:1], 0'); e('s_load_dwordx4 s[4:7], s[0:1], 48')
    e('s_load_dwordx2 s[20:21], s[0:1], 64'); e('s_load_dwordx2 s[24:25], s[0:1], 80')
    e('s_getpc_b64 s[46:47]'); e('L_pc:')
    e('v_lshrrev_b32 v1, 6, v0'); e('v_and_b32 v0, 63, v0'); e('s_bfe_u32 s3, s2, 0x50003'); e(f'v_readfirstlane_b32 s{sW}, v1')
    e('v_lshl_add_u32 v2, s3, 2, v1'); e('v_lshl_add_u32 v2, v0, 7, v2'); e('v_lshlrev_b32 v2, 7, v2'); e('v_min_u32 v2, L_end-L_pc, v2')
    e('s_mov_b64 exec, 7'); k.vmem('global_load_dword v3, v2, s[46:47]', 'touch'); e('s_mov_b64 exec, -1')
    e(f'v_lshlrev_b32 v{vL16}, 4, v0')
    e('s_sub_u32 s3, s2, 32'); e('s_cmp_ge_u32 s3, 224'); e('s_cbranch_scc1 L_helper')
    if TS: e(f'{TSI} s[50:51]'); e(f's_mov_b32 s{sRC}, 0')
    e(f's_lshr_b32 s{sT}, s3, 3'); e(f's_mul_i32 s{sCI}, s{sT}, 37'); e(f's_lshr_b32 s{sCI}, s{sCI}, 8')
    e(f's_mul_i32 s{sG}, s{sCI}, 7'); e(f's_sub_u32 s{sG}, s{sT}, s{sG}')
    e(f's_and_b32 s{sP}, s3, 7'); e(f's_lshl_b32 s{sP}, s{sP}, 1'); e(f's_lshr_b32 s{sT}, s{sCI}, 1'); e(f's_add_u32 s{sP}, s{sP}, s{sT}')
    e(f's_sub_u32 s{sT}, 32, s{sP}'); e(f's_cmp_eq_u32 s{sP}, 0'); e(f's_cselect_b32 s{sT}, 16, s{sT}')
    e(f's_bitcmp1_b32 s{sCI}, 0'); e(f's_cselect_b32 s{sP}, s{sT}, s{sP}')
    e(f's_mul_i32 s{sWA}, s{sW}, {WA_SZ}'); e(f's_add_u32 s{sWA}, s{sWA}, {L_WA}')
def srds(which):
    for r, n in ((sX0, XB), (sW1, D*F*2), (sW2, D*F*2), (sOUT, XB), (sWS, 0x2000000 if (TS or STOP) else WS_END)):
        if r in which: e(f's_mov_b32 s{r+2}, {n}'); e(f's_mov_b32 s{r+3}, 0x20000')
def copy_ptrs(first):
    if first: e(f's_mov_b32 s{sW1}, s4'); e(f's_mov_b32 s{sW1+1}, s5')
    else:
        e(f's_mov_b32 s{sW2}, s6'); e(f's_mov_b32 s{sW2+1}, s7')

def helper():
    e('L_helper:')
    e('s_cmp_ge_u32 s2, 32'); e('s_cbranch_scc1 L_exit')
    srds((sW1, sW2, sWS))
    src_off(3584); e(f's_mul_i32 s{sIL}, s{sW}, 14336'); e(f's_mul_i32 s{sIM}, s{sW}, {16*3584}'); e(f's_lshl_b32 s{sT}, s2, 7'); e(f's_add_u32 s{sIM}, s{sIM}, s{sT}'); e(f's_mov_b32 s{sT+1}, {WS_EP}')
    e('s_waitcnt lgkmcnt(0)'); copy_ptrs(True); copy_ptrs(False)
    hs = [0]
    def hstamp(w=None):
        if TS and not AMP:
            if w is not None: e(f's_waitcnt vmcnt({w})')
            e(f'{TSI} s[50:51]\ns_waitcnt lgkmcnt(0)\ns_mov_b32 s{sTS+hs[0]}, s50'); hs[0] += 1
        elif AMP and AMP[0] == 'H':
            if hs[0] in (0, int(AMP[1])): e(f'{TSI} s[50:51]\ns_waitcnt lgkmcnt(0)\ns_mov_b32 s{sTS + (hs[0] > 0)}, s50')
            hs[0] += 1
    hstamp()
    if TS:
        for i in range(1, 5): e(f's_mov_b32 s{sTS+i}, s50')
    e(f'buffer_load_dwordx4 v[140:143], off, {sr(sWS,4)}, s{sT+1} sc1')
    e('s_cmp_ge_u32 s2, 28'); e('s_cbranch_scc1 L_hrest')
    for i in range(7):
        e(f's_add_u32 m0, s{sIL}, {2048*i}')
        if i: e(f's_add_u32 s{sIM}, s{sIM}, {64*3584}')
        e(f'buffer_load_dwordx4 v{vSa}, {sr(sW1,4)}, s{sIM} offen lds'); e(f'buffer_load_dwordx4 v{vSb}, {sr(sW1,4)}, s{sIM} offen offset:1024 lds')
    e('s_branch L_helper2')
    save = k.out; k.out = k.tail
    e('L_hrest:')
    if OPT['sp']:
        e(f's_sub_u32 s{sT}, s2, 28'); e(f's_lshl_b32 s{sT}, s{sT}, 2'); e(f's_add_u32 s{sT}, s{sT}, s{sW}'); e(f's_mul_i32 s{sT}, s{sT}, 112'); e(f'v_min_u32 v2, 55, v{vL}')
        for j in range(OPT['sp']):
            for hh in range(2):
                e(f'v_add_u32 v4, s{sT}, v2'); e(f'v_add_u32 v4, {56*hh}, v4'); e('v_lshrrev_b32 v8, 8, v4'); e(f'v_add_u32 v8, {1 + j}, v8'); e('v_subrev_u32 v9, 7, v8'); e('v_min_u32 v8, v8, v9')
                e('v_mul_u32_u24 v4, 896, v4'); e('v_lshl_add_u32 v4, v8, 7, v4'); e(f'buffer_load_dword v144, v4, {sr(sW2,4)}, 0 offen')
    e(f's_sub_u32 s{sT}, s2, 28'); e(f's_mul_i32 s{sT}, s{sT}, {XB//4}'); e(f's_add_u32 s{sT}, s{sT}, {WS_U2}'); e(f's_mov_b32 s{sT+1}, {XB//4//8192}'); e('s_waitcnt vmcnt(0)'); e('s_branch L_hfill2')
    e('L_helper2:')
    src_off(896); e(f's_mov_b32 s{sWA}, s{sIL}'); tr_addr(vT1, 10, 12)
    e(f's_mul_i32 s{sWA}, s{sW}, {WA_SZ}'); e(f's_add_u32 s{sWA}, s{sWA}, {L_WA}'); tr_addr(vT2, 9, 12)
    e(f's_lshl_b32 s{sT}, s2, 2'); e(f's_add_u32 s{sT}, s{sT}, s{sW}'); e(f's_mul_i32 s{sT}, s{sT}, {16*896}'); e(f's_lshr_b32 s{sT+1}, s2, 2')
    e(f's_mov_b32 s{sIM}, s{sT}'); e(f's_mov_b32 s{sIL}, s{sT+1}')
    def d2(j0, j1):
        for j in range(j0, j1):
            if j: e(f's_sub_u32 s{sIL}, s{sIL}, 1'); e(f's_min_u32 s{sIL}, s{sIL}, 6')
            e(f's_add_u32 m0, s{sWA}, {2048*j}'); e(f's_lshl_b32 s{sT+2}, s{sIL}, 7'); e(f's_add_u32 s{sT+2}, s{sT+2}, s{sIM}')
            e(f'buffer_load_dwordx4 v{vSa}, {sr(sW2,4)}, s{sT+2} offen lds'); e(f'buffer_load_dwordx4 v{vSb}, {sr(sW2,4)}, s{sT+2} offen offset:1024 lds')
    JE = OPT['je']; d2(0, JE)
    e(f's_waitcnt vmcnt({2*JE})')
    for i in range(7):
        for u in range(2):
            for h2 in range(2): e(f'ds_read_b64_tr_b16 {vr(16+8*i+4*u+2*h2,2)}, v{vT1+u} offset:{2048*i + 512*h2}')
    e(f's_mul_i32 s{sT}, s2, {WFS}'); e(f's_lshl_b32 s{sT+1}, s{sW}, 11'); e(f's_add_u32 s{sT}, s{sT}, s{sT+1}'); e(f's_add_u32 s{sT}, s{sT}, {WS_WF}')
    e(f's_mov_b32 s{sT+4}, 0x3f803f80'); e('v_mov_b32 v72, 0'); e('v_mov_b32 v73, 0'); e('s_waitcnt lgkmcnt(0)')
    NP = OPT['np']
    for i in range(7 - NP, 7):
        for u in range(2): e(f'buffer_store_dwordx4 {vr(16+8*i+4*u,4)}, v{vL16}, {sr(sWS,4)}, s{sT} offen offset:{1024*u} sc1')
        e(f's_add_u32 s{sT}, s{sT}, 8192')
    for i in range(7):
        for m in range(4):
            for u in range(2): e(f'v_dot2c_f32_bf16 v{72+u}, s{sT+4}, v{16+8*i+4*u+m}')
    e(f'v_lshlrev_b32 v4, 2, v{vL}'); e(f'v_add_u32 v4, {L_M}, v4'); e(f's_lshl_b32 s{sT}, s{sW}, 8'); e(f'v_add_u32 v2, s{sT}, v4')
    e('v_permlane32_swap_b32 v72, v73'); e('v_add_f32 v72, v72, v73'); e('ds_write_b32 v2, v72'); e('s_waitcnt lgkmcnt(0)'); e('s_barrier')
    e('ds_read2st64_b32 v[72:73], v4 offset0:0 offset1:1'); e('ds_read2st64_b32 v[74:75], v4 offset0:2 offset1:3')
    e(f'v_and_b32 v76, 0x1f0, v{vL16}'); e(f'v_lshrrev_b32 v2, 5, v{vL}'); e('v_lshl_add_u32 v76, v2, 3, v76'); e(f's_lshl_b32 s{sT}, s2, 9'); e(f's_add_u32 s{sT}, s{sT}, {WS_CS}')
    e('s_waitcnt lgkmcnt(0)'); e('v_add_f32 v72, v72, v73'); e('v_add_f32 v74, v74, v75'); e('v_add_f32 v72, v72, v74')
    e('v_cvt_pk_bf16_f32 v73, v72, v72'); e('v_and_b32 v74, 0xffff0000, v73'); e('v_sub_f32 v75, v72, v74'); e('v_cvt_pk_bf16_f32 v78, v74, v75'); e('v_and_b32 v79, 0xffff, v73')
    e(f's_cmp_lg_u32 s{sW}, 0'); e('s_cbranch_scc1 L_hnocs')
    e(f'buffer_store_dwordx2 v[78:79], v76, {sr(sWS,4)}, s{sT} offen sc1')
    e('L_hnocs:')
    e(f's_and_b32 s{sT}, s2, 3'); e(f's_mul_i32 s{sT}, s{sT}, {WFS}'); e(f's_lshl_b32 s{sT+1}, s{sW}, 11'); e(f's_add_u32 s{sT}, s{sT}, s{sT+1}'); e(f's_add_u32 s{sT}, s{sT}, {WS_WF + 8192*NP}')
    e(f's_lshr_b32 s{sT+1}, s2, 2'); e(f's_mov_b32 s{sT+4}, 0x80008000')
    JA = OPT['ja']
    e(f's_lshl_b32 s{sT+5}, s2, 7'); e(f's_add_u32 s{sT+5}, s{sT+5}, {WS_FL}')
    def reads(j0, j1, younger):
        for j in range(j0, j1):
            e(f's_waitcnt vmcnt({12 - 2*j + younger})')
            for v in range(2):
                for h2 in range(2): e(f'ds_read_b64_tr_b16 {vr(80+8*j+4*v+2*h2,2)}, v{vT2+v} offset:{2048*j + 1024*h2}')
        e('s_waitcnt lgkmcnt(0)')
    def stores(j0, j1):
        for j in range(j0, j1):
            if j: e(f's_sub_u32 s{sT+1}, s{sT+1}, 1'); e(f's_min_u32 s{sT+1}, s{sT+1}, 6'); e(f's_add_u32 s{sT}, s{sT}, 8192')
            e(f's_mul_i32 s{sT+2}, s{sT+1}, {4*WFS}'); e(f's_add_u32 s{sT+2}, s{sT+2}, s{sT}')
            for v in range(2):
                r = 80 + 8*j + 4*v; e(f'v_xor_b32 v{r+3}, s{sT+4}, v{r+3}'); e(f'buffer_store_dwordx4 {vr(r,4)}, v{vL16}, {sr(sWS,4)}, s{sT+2} offen offset:{1024*v} sc1')
    def flag(i, n=0):
        e(f's_waitcnt vmcnt({n})'); e('s_barrier'); e(f's_cmp_lg_u32 s{sW}, 0'); e(f's_cbranch_scc1 L_hsig{i}')
        e(f'v_lshlrev_b32 v145, 2, v{vL}'); e('s_mov_b32 exec_hi, 0'); e(f'buffer_store_dword v5, v145, {sr(sWS,4)}, s{sT+5} offen sc1'); e('s_mov_b32 exec_hi, -1')
        e(f'L_hsig{i}:'); e(f's_add_u32 s{sT+5}, s{sT+5}, 4096'); hstamp()
    e('v_not_b32 v5, v140'); flag(0)
    if OPT['ho'] == 0: d2(JE, 7); reads(0, JA, 0); stores(0, JA); reads(JA, 7, 2*JA); flag(1); stores(JA, 7)
    else:
        assert JA <= JE; reads(0, JA, 20); stores(0, JA); d2(JE, 7); flag(1, 2*(7 - JE)); reads(JA, 7, 0); stores(JA, 7)
    flag(2)
    def fills():
        e(f's_lshl_b32 s{sT}, s2, 16'); e(f's_add_u32 s{sT}, s{sT}, {WS_X2}'); e(f's_mov_b32 s{sT+1}, {XB//28//8192}')
        e('L_hfill2:')
        if OPT['nofill']: e(f's_mov_b32 s{sT+1}, 1')
        for i in range(4): e(f'v_mov_b32 v{12+i}, -1')
        e(f's_lshl_b32 s{sT+2}, s{sW}, 10'); e(f'v_add_u32 v10, s{sT+2}, v{vL16}')
        e(f's_lshl_b32 s{sT+2}, s2, 12'); e(f's_add_u32 s{sT+2}, s{sT+2}, {WS_SS}'); e(f'buffer_store_dwordx4 v[12:15], v10, {sr(sWS,4)}, s{sT+2} offen sc1')
        e('L_fill:')
        for j in range(2): e(f'buffer_store_dwordx4 v[12:15], v10, {sr(sWS,4)}, s{sT} offen sc1'); e(f's_add_u32 s{sT}, s{sT}, 4096')
        e(f's_sub_u32 s{sT+1}, s{sT+1}, 1'); e(f's_cmp_lg_u32 s{sT+1}, 0'); e('s_cbranch_scc1 L_fill')
        e(f's_lshl_b32 s{sT+5}, s2, 7'); e(f's_add_u32 s{sT+5}, s{sT+5}, {WS_FL + 12288}'); e('s_waitcnt vmcnt(0)'); e('v_not_b32 v5, v140')
        flag(3)
    if OPT['l2k'] < 28:
        k0 = OPT['l2k']
        e('s_cmp_ge_u32 s2, 24'); e('s_cbranch_scc1 L_hfill')
        e(f'v_min_u32 v2, 27, v{vL}'); e('v_lshlrev_b32 v2, 7, v2'); e(f's_mov_b32 s{sT}, {WS_FL + 4096}'); e(f's_mov_b32 s{sT+1}, 8')
        e('L_l2w:'); e(f'buffer_load_dword v4, v2, {sr(sWS,4)}, s{sT} offen sc1'); e(f's_sub_u32 s{sT+1}, s{sT+1}, 1'); e('s_cbranch_scc1 L_hfill')
        e('s_waitcnt vmcnt(0)'); e('v_cmp_ne_u32 vcc, v4, v5'); e('s_cbranch_vccnz L_l2w')
        e(f's_lshr_b32 s{sT}, s2, 3'); e(f's_lshl_b32 s{sT}, s{sT}, 2'); e(f's_add_u32 s{sT}, s{sT}, s{sW}'); e(f's_mul_i32 s{sT}, s{sT}, 38')
        e(f'v_min_u32 v2, 37, v{vL}'); e(f'v_add_u32 v2, s{sT}, v2'); e('v_min_u32 v2, 447, v2'); e('v_lshrrev_b32 v4, 4, v2'); e('v_and_b32 v2, 15, v2')
        e(f'v_mul_u32_u24 v4, {WFS}, v4'); e('v_lshl_add_u32 v4, v2, 7, v4'); e(f's_mov_b32 s{sT}, {WS_WF + 8192*NP + 2048*k0}'); e(f's_mov_b32 s{sT+1}, {28 - k0}')
        e('s_mov_b32 exec_hi, 0x3f')
        e('L_l2:'); e(f'buffer_load_dword v8, v4, {sr(sWS,4)}, s{sT} offen sc1'); e(f's_add_u32 s{sT}, s{sT}, 2048')
        e(f's_sub_u32 s{sT+1}, s{sT+1}, 1'); e(f's_cmp_lg_u32 s{sT+1}, 0'); e('s_cbranch_scc1 L_l2'); e('s_mov_b32 exec_hi, -1'); hstamp(0)
        e('L_hfill:')
    fills()
    if TS and (not AMP or AMP[0] == 'H'):
        n = nts[0]; nts[0] = 8; finish_stamps(); nts[0] = n
    e('L_exit:'); e('s_endpgm')
    k.out = save

HALF = [0]
def gen_H():
    ef, a0, tc, q8 = 72, 73, 74, 75
    P0, P1, PK = 76, 84, 92
    e(f'v_and_b32 v{ef}, 15, v{vL}'); e(f's_and_b32 s{sT}, s{sW}, 1'); e(f's_lshl_b32 s{sT+1}, s{sG}, 5'); e(f's_add_u32 s{sT}, s{sT}, s{sT+1}')
    e(f'v_lshl_add_u32 v{ef}, v{ef}, 1, s{sT}'); e(f'v_mov_b32 v{a0}, 224'); e(f'v_cmp_eq_u32 vcc, 0, v{ef}')
    e(f'v_lshrrev_b32 v{q8}, 4, v{vL}'); e(f's_lshl_b32 s{sT+1}, s{sT+1}, 1'); e(f'v_lshl_add_u32 v{q8}, v{q8}, 3, s{sT+1}')
    e(f'v_cndmask_b32 v{ef}, v{ef}, v{a0}, vcc'); e(f'v_cvt_f32_u32 v{q8}, v{q8}'); e(f'v_cvt_f32_u32 v{ef}, v{ef}')
    e(f's_cmp_ge_u32 s{sW}, 2\ns_cselect_b32 s{sT}, {fl(-112.0)}, 0')
    e(f'v_fma_f32 v{a0}, v{q8}, v{ef}, s{sT}'); e(f'v_mul_f32 v{ef}, {fl(1.0/448)}, v{ef}'); e(f'v_mul_f32 v{q8}, {fl(1.0/448)}, v{a0}')
    e(f'v_rndne_f32 v{q8}, v{q8}'); e(f'v_fmamk_f32 v{a0}, v{q8}, {fl(-448.0)}, v{a0}'); e(f'v_mul_f32 v{a0}, {fl(1.0/448)}, v{a0}')
    e(f'v_mul_f32 v{tc}, {fl(32.0)}, v{ef}'); e(f'v_cos_f32 v{tc}, v{tc}')
    e(f's_mul_i32 s{sT}, s{sW}, {7*1024}'); e(f's_add_u32 s{sT}, s{sT}, {L_H}'); e(f'v_add_u32 v{q8}, s{sT}, v{vL16}')
    e(f'v_add_f32 v{tc}, v{tc}, v{tc}')
    for kap in range(7):
        cur, prv = (P0, P1) if kap % 2 == 0 else (P1, P0)
        if HALF[0]: ls(f'H.{kap}')
        if kap < 2:
            for jj in range(8): e(f'v_fmamk_f32 v{cur+jj}, v{ef}, {fl(32.0*kap+jj)}, v{a0}')
            for jj in range(8): e(f'v_cos_f32 v{cur+jj}, v{cur+jj}')
        else:
            for jj in range(0, 8, 2): e(f'v_pk_fma_f32 {vr(cur+jj,2)}, {vr(tc,2)}, {vr(prv+jj,2)}, {vr(cur+jj,2)} op_sel_hi:[0,1,1] neg_lo:[0,0,1] neg_hi:[0,0,1]')
        pk = PK + 4*(kap % 2)
        for m in range(4): e(f'v_cvt_pk_bf16_f32 v{pk+m}, v{cur+2*m}, v{cur+2*m+1}')
        k.ds(f'ds_write_b128 v{q8}, {vr(pk,4)} offset:{1024*kap}', 'Hw')
def gen_F(dst, tb=100, T=120):
    mf, a0, t = tb, tb + 1, tb + 2
    e(f'v_bfe_u32 v{mf}, v{vL}, 1, 3'); e(f's_lshl_b32 s{sT}, s{sW}, 3'); e(f'v_add_u32 v{mf}, s{sT}, v{mf}')
    e(f'v_and_b32 v{t}, 1, v{vL}'); e(f'v_cvt_f32_u32 v{a0}, v{t}'); e(f'v_cmp_eq_u32 vcc, 0, v{mf}')
    e(f'v_lshlrev_b32 v{t}, 5, v{t}'); e(f'v_mul_f32 v{a0}, {fl(-0.25)}, v{a0}')
    e(f'v_cndmask_b32 v{mf}, v{mf}, v{t}, vcc'); e(f'v_cndmask_b32 v{a0}, v{a0}, 0, vcc')
    e(f'v_bfe_i32 v{t+1}, v{mf}, 0, 1'); e(f'v_cvt_f32_u32 v{mf}, v{mf}'); e(f'v_and_b32 v{t}, 48, v{vL}'); e(f'v_cvt_f32_u32 v{t}, v{t}'); e(f'v_and_b32 v{t+1}, 0x80008000, v{t+1}')
    e(f'v_mul_f32 v{mf}, {fl(1.0/128)}, v{mf}'); e(f'v_fma_f32 v{a0}, v{t}, v{mf}, v{a0}')
    for k1 in range(2):
        for jj in range(4): e(f'v_fmamk_f32 v{T+4*k1+jj}, v{mf}, {fl(2.0*k1 + 4.0*jj)}, v{a0}')
    for i in range(8): e(f'v_cos_f32 v{T+i}, v{T+i}')
    for k1 in range(2):
        for m in range(2): e(f'v_cvt_pk_f16_f32 v{dst+4*k1+m}, v{T+4*k1+2*m}, v{T+4*k1+2*m+1}')
    for k1 in range(2):
        for m in range(2): e(f'v_xor_b32 v{dst+4*k1+2+m}, v{dst+4*k1+m}, v{t+1}')
def gen_M(t0):
    j, s2f, ad = t0, t0 + 1, t0 + 2
    e(f'v_and_b32 v{j}, 31, v{vL}'); e(f'v_lshlrev_b32 v{j}, 6, v{j}')
    S2 = t0 + 36
    e(f'v_lshrrev_b32 v{s2f}, 5, v{vL}'); e(f's_add_u32 s{sT}, s{sW}, s{sG}'); e(f's_and_b32 s{sT}, s{sT}, 3'); e(f's_lshl_b32 s{sT}, s{sT}, 2')
    for jj in range(4):
        if jj: e(f's_add_u32 s{sT}, s{sT}, 1')
        e(f's_lshl_b32 s{sT+1}, s{sT}, 1'); e(f's_sub_u32 s{sT+1}, 32, s{sT+1}')
        if jj == 0: e(f's_cmp_eq_u32 s{sT}, 0\ns_cselect_b32 s{sT+1}, 16, s{sT+1}')
        e(f'v_mul_u32_u24 v{S2+jj}, s{sT+1}, v{s2f}'); e(f'v_add_u32 v{S2+jj}, s{sT}, v{S2+jj}'); e(f'v_cvt_f32_u32 v{S2+jj}, v{S2+jj}')
    e(f's_lshl_b32 s{sT}, s{sW}, 10'); e(f's_add_u32 s{sT}, s{sT}, {L_M}'); e(f'v_add_u32 v{ad}, s{sT}, v{vL16}')
    e(f's_cmp_eq_u32 s{sP}, 0\ns_cselect_b32 s{sT}, {fl(0.25)}, 0')
    for pq in range(2):
        T = t0 + 4 + 16*pq
        tf, a0 = T + 12, T + 13
        e(f'v_add_u32 v{tf}, s{sRB if pq else sP}, v{j}'); e(f'v_cvt_f32_u32 v{tf}, v{tf}'); e(f'v_mul_f32 v{tf}, {fl(1.0/2048)}, v{tf}')
        for jj in range(4): e(f'v_fma_f32 v{T+jj}, v{tf}, v{S2+jj}, s{sT}' if pq else f'v_mul_f32 v{T+jj}, v{tf}, v{S2+jj}')
        for jj in range(4): e(f'v_sin_f32 v{T+4+jj}, v{T+jj}')
        for jj in range(4): e(f'v_cos_f32 v{T+jj}, v{T+jj}')
        for jj in range(4): e(f'v_cvt_pk_f16_f32 v{T+8+jj}, v{T+jj}, v{T+4+jj}')
        k.ds(f'ds_write_b128 v{ad}, {vr(T+8,4)} offset:{4096*pq}', 'Mw')

def img_ops(half, T):
    ops = []; rho = sRB if T else sP
    if half == 0:
        for r in range(8):
            def f(r=r):
                if r == 0: e(f's_lshl_b32 s{sIM}, s{sW}, 9\ns_add_u32 s{sIM}, s{sIM}, s{rho}\ns_mul_i32 s{sIM}, s{sIM}, 896\ns_mul_i32 s{sIL}, s{sW}, {8*912}')
                else: e(f's_add_u32 s{sIM}, s{sIM}, 57344')
                e(f's_add_u32 m0, s{sIL}, {L_X + 912*(32*T + r)}'); e('s_mov_b32 exec_hi, 0x00ffffff')
                k.vmem(f'buffer_load_dwordx4 v{vL16}, {sr(sX0,4)}, s{sIM} offen lds', f'img{T}'); e('s_mov_b32 exec_hi, -1')
            ops.append(Op('s', 20, f, 1))
    else:
        for i in range(7):
            def f(i=i):
                if i == 0: e(f's_mul_i32 s{sIL}, s{sW}, 7168\ns_add_u32 m0, s{sIL}, {L_X + 28672*T}\ns_mul_i32 s{sIM}, s{rho}, 28672\ns_add_u32 s{sIM}, s{sIM}, s{sIL}\ns_add_u32 s{sIM}, s{sIM}, {WS_X2}')
                if i == 4: e(f's_add_u32 m0, m0, 4096\ns_add_u32 s{sIM}, s{sIM}, 4096')
                k.vmem(f'buffer_load_dwordx4 v{vL16}, {sr(sWS,4)}, s{sIM} offen offset:{1024*(i%4)} sc1 lds', f'img{T}')
            ops.append(Op('s' if i % 4 == 0 else 'vm', 4, f, 1))
    return ops

XF = lambda kap: 16 + 4 * kap
BORD = [0, 3, 4, 1, 5, 2, 6]
IMG_LATE = []; ADR = []
SX = [0, 1, 3, 4, 5, 6, 7]
def x2_loads(first):
    for kp in range(first, 7):
        for kap in (kp, kp + 7):
            k.vmem(f'buffer_load_dwordx4 {vr(XF(kap),4)}, v{vL16}, {sr(sWS,4)}, s{SX[kap//2]} offen offset:{1024*(kap%2)} sc1', f'x{kap}')
def phA(half):
    aT = [72, 76, 84, 88]; aHi = {1: 80, 3: 92}; aS, aG = 96, 100
    HR = [104, 120]; ones = 136; Ff = 140; t = 148
    vx, vh, vtr, vu, vcw, k1 = vA, vL16, vA + 2, vA + 3, 150, 151
    lc = L_C(half)
    def misc():
        if half == 0:
            mk = [0x1000010000100001, 0x2000020000200002, 0x4000040000400004, 0x8000080000800008]
            for i in range(4): e(f's_mov_b32 s{sMK+2*i}, {mk[i] & 0xffffffff:#x}'); e(f's_mov_b32 s{sMK+2*i+1}, {mk[i] >> 32:#x}')
        else: e(f's_mov_b32 s{sMK}, -1'); e(f's_mov_b32 s{sMK+1}, 0xffff')
        e(f'v_and_b32 v{t}, 15, v{vL}'); e(f'v_lshrrev_b32 v{t+1}, 4, v{vL}'); e(f'v_lshlrev_b32 v{vcw}, 5, v{t}'); e(f'v_lshl_add_u32 v{vcw}, v{t+1}, 3, v{vcw}')
        e(f's_lshl_b32 s{sT}, s{sW}, 9'); e(f's_add_u32 s{sT}, s{sT}, {lc}'); e(f'v_add_u32 v{vcw}, s{sT}, v{vcw}')
        e(f's_lshl_b32 s{sT}, s{sW}, 2'); e(f'v_add_u32 v{vu}, s{sT}, v{t+1}'); e(f'v_cmp_eq_u32 vcc, 0, v{vu}')
        e(f'v_mul_u32_u24 v{vu}, {2*57344}, v{vu}'); e(f'v_lshl_add_u32 v{vu}, v{t}, 4, v{vu}'); e(f'v_cndmask_b32 v{k1}, -1.0, 0, vcc')
        e(f's_and_b32 s{sT+4}, s2, 7'); e(f's_lshl_b32 s{sT+4}, s{sT+4}, 2'); e(f's_add_u32 s{sT+4}, s{sT+4}, s{sCI}'); e(f's_mul_i32 s{sT+4}, s{sT+4}, 7'); e(f's_add_u32 s{sT+4}, s{sT+4}, s{sG}'); e(f's_lshl_b32 s{sT+4}, s{sT+4}, 8'); e(f's_add_u32 s{sT+4}, s{sT+4}, {WS_U2 if half else WS_U1}')
        e(f's_add_u32 s{sT+5}, s{sT+4}, 57344'); e(f'v_lshlrev_b32 v{vtr}, 3, v{vL}'); e(f'v_add_u32 v{vtr}, {lc}, v{vtr}')
    hread = lambda kp: rec(lambda: [k.ds(f'ds_read_b128 {vr(HR[kp%2]+4*tl,4)}, v{vh} offset:{L_H + (7*tl+kp)*1024}', f'H{kp}{tl}') for tl in (1, 3, 0, 2)])
    st_load = lambda: k.vmem(f'buffer_load_dwordx4 {vr(ones,4)}, v{vL16}, {sr(sWS,4)}, s49 offen sc1', 'ss')
    if half == 0:
        va, vb = vX, vX + 1
        srds((sX0,))
        e(f'v_lshrrev_b32 v{va}, 3, v{vL}'); e(f'v_lshrrev_b32 v{vb}, 4, v{vL}'); e(f'v_xor_b32 v{vb}, v{vb}, v{vL}'); e(f'v_and_b32 v{vb}, 7, v{vb}')
        e(f'v_mul_u32_u24 v{va}, 57344, v{va}'); e(f'v_lshl_add_u32 v{va}, v{vb}, 4, v{va}')
        e(f'v_xor_b32 v{vb}, 64, v{va}'); e(f'v_add_u32 v{vb}, {8*57344-1024}, v{vb}')
        e(f's_lshr_b32 s{sT}, s{sW}, 1'); e(f's_lshl_b32 s{sT}, s{sT}, 5'); e(f's_add_u32 s{sT}, s{sT}, s{sP}')
        e(f's_and_b32 s{sT+1}, s{sW}, 1'); e(f's_lshl_b32 s{sT+1}, s{sT+1}, 10'); e(f's_add_u32 s{sT}, s{sT}, s{sT+1}'); e(f's_mul_i32 s3, s{sT}, 896')
        e(f's_lshl_b32 s{sIM}, s{sG}, 7')
        def xdma(i):
            b = BORD[i]
            def a():
                if b: e(f's_add_u32 s{sBG}, s{sIM}, {128*b}\ns_sub_u32 s{sIL}, s{sBG}, 896\ns_min_u32 s{sBG}, s{sBG}, s{sIL}')
                e(f's_add_u32 m0, s{sWA}, {8192 + 2048*i}\ns_add_u32 s{sBG}, s3, s{sBG if b else sIM}')
                if i == 0:
                    if OPT['rt']:
                        e(f'v_lshl_add_u32 v4, s{sG}, 4, v{vL}'); e('v_mul_u32_u24 v5, 37, v4'); e('v_lshrrev_b32 v5, 8, v5') if False else None
                        e('v_mul_u32_u24 v5, 9363, v4'); e('v_lshrrev_b32 v5, 16, v5'); e(f'v_mul_u32_u24 v5, {57344-896}, v5'); e('v_lshl_add_u32 v4, v4, 7, v5')
                    e('s_waitcnt lgkmcnt(0)')
                    if TS: e(f's_mov_b32 s{sTS}, s50'); nts[0] = 1; tsn.append('start')
                    if OPT['rt']: e('s_mov_b64 exec, 0xffff'); k.vmem(f'buffer_load_dword v5, v4, {sr(sX0,4)}, s3 offen', 'touch'); e('s_mov_b64 exec, -1')
                k.vmem(f'buffer_load_dwordx4 v{va}, {sr(sX0,4)}, s{sBG} offen lds', f'xa{b}')
            return [Op('s', 24, a), Op('vm', 4, lambda: k.vmem(f'buffer_load_dwordx4 v{vb}, {sr(sX0,4)}, s{sBG} offen offset:1024 lds', f'xb{b}'))]
        xs = []
        for i in range(7): xs += xdma(i)
        k.run(xs[:4]); t0 = k.clk
        if OPT['fine'] & 1: stamp('iss')
        def rest():
            copy_ptrs(True); srds((sW1, sWS)); e(f's_sub_u32 s{sRB}, 64, s{sP}'); e(f's_cmp_eq_u32 s{sP}, 0\ns_cselect_b32 s{sRB}, 32, s{sRB}')
            gen_H()
            for i in range(4): e(f'v_mov_b32 v{ones+i}, 0x3f803f80')
            e(f'v_and_b32 v{t}, 15, v{vL}'); e(f'v_lshrrev_b32 v{t+1}, 4, v{vL}')
            e(f'v_lshrrev_b32 v{vx}, 1, v{t}'); e(f'v_xor_b32 v{vx}, v{vx}, v{t+1}'); e(f'v_lshlrev_b32 v{t}, 7, v{t}'); e(f'v_lshl_add_u32 v{t}, v{vx}, 4, v{t}')
            e(f's_add_u32 s{sT}, s{sWA}, 8192'); e(f'v_add_u32 v{vx}, s{sT}, v{t}'); e(f'v_xor_b32 v{vx+1}, 64, v{vx}')
            stream_setup()
            if OPT['trim'] < 2: warm(0, 1)
            if not OPT['trim']: rest2()
        def rest2():
            stream_setup2(152); copy_ptrs(False); srds((sW2, sOUT))
            e(f's_mov_b32 s{sRETRY}, 20000'); e(f's_mov_b32 s{sLO}, 0x3f80'); e(f's_mov_b32 s{sHI}, 0x3f800000'); e(f's_mov_b32 s{sFF}, 0xffff0000')
            misc(); gen_F(Ff, 152, 156); e(f'v_mov_b32 v{vX+2}, 0x10001')
        nx = OPT['nx']
        if OPT.get('xprobe'):
            k.run(xs[4:nx]); ls('p.i'); k.wait(vm='xb0'); ls('p.0'); k.wait(vm='xb3'); ls('p.1'); k.run(xs[nx:]); k.wait(vm='xb1'); ls('p.3'); k.wait(vm='xb6'); ls('p.6'); xs = xs[:4]
        fill = k.weave(xs[4:nx], rec(rest), 64)
        while fill and k.clk < t0 + OPT['late']: fill.pop(0)()
        epl = Op('s', 16, lambda: (e(f's_mov_b32 s{sBG}, {WS_EP}'), e('s_mov_b64 exec, 1'), k.vmem(f'buffer_load_dwordx4 {vr(vSEL,4)}, off, {sr(sWS,4)}, s{sBG} sc1', 'ep'), e('s_mov_b64 exec, -1')), 1)
        k.bg += [Op(o.kind, o.cost, o.fn, 1) for o in xs[nx:]] + [epl]
        def touch():
            e(f's_sub_u32 s{sBG}, s2, 32\ns_lshl_b32 s{sBG}, s{sBG}, 2\ns_add_u32 s{sBG}, s{sBG}, s{sW}\ns_mul_i32 s{sBG}, s{sBG}, {14*128}\nv_lshlrev_b32 v4, 7, v{vL}\ns_mov_b64 exec, 0x3fff')
            if OPT['w2t'] & 2: k.vmem(f'buffer_load_dword v5, v4, {sr(sW1,4)}, s{sBG} offen', 'touch')
            if OPT['w2t'] & 1: k.vmem(f'buffer_load_dword v2, v4, {sr(sW2,4)}, s{sBG} offen', 'touch')
            e('s_mov_b64 exec, -1')
        im = img_ops(0, 1); nb = OPT['imgb']; IMG_LATE[:] = im[nb:]
        after = im[:nb] + ([Op('s', 36, touch, 1)] if OPT['w2t'] else []); k.bg += after
        k.seg(999, 999*OPT['pS'])
        k.run(fill)
        while len(k.bg) > len(after): k.bg_step()
        if OPT['trim'] == 2: warm(0, 1)
        k.quota = len(k.bg) + OPT['nA']
        k.refill = ws.refill
        k.wait(lg='Hw'); e('s_barrier')
        k.run(hread(0))
    else:
        t0 = k.clk
        fill = rec(lambda: (gen_H(), misc(), k.wait(lg='Hw'), e('s_barrier'), k.run(hread(0)), gen_F(Ff)))
        while fill and k.clk < t0 + OPT['xd']: fill.pop(0)()
        if OPT['xack']: k.wait(vm='xst')
        stamp('A1.ack')
        ld = rec(lambda: x2_loads(0)); ld = ld[:OPT['ssp']] + rec(st_load) + ld[OPT['ssp']:]
        k.run(ld[:4])
        k.run(k.weave(ld[4:11], fill, 60))
        later = ld[11:] + img_ops(1, 1)
    stamp(f'A{half}.consts')
    def xread(i):
        b = BORD[i]
        def g(h):
            k.wait(vm=f'xb{b}'); k.ds(f'ds_read_b128 {vr(XF(2*b+h),4)}, v{vx+h} offset:{2048*i}', f'xr{i}')
            if h: ws.limit = 5 + i if i < 6 else NR
        return [Op('ds', 8, lambda: g(0)), Op('ds', 4, lambda: g(1))]
    def xchk(k0, k1_, ss=False):
        d = ones
        def chk():
            r = [XF(x) for kp in range(k0, k1_ + 1) for x in (kp, kp + 7)]
            if ss:
                e(f'v_cndmask_b32 v{d+2}, 0, v{d+2}, {sr(sMK,2)}'); e(f'v_cndmask_b32 v{d+3}, 0, v{d+3}, {sr(sMK,2)}'); r += [d, d + 1, d + 2, d + 3]
            e(f'v_max_u32 v{t+1}, v{r[0]}, v{r[1]}')
            for i in range(2, len(r), 2): e(f'v_max3_u32 v{t+1}, v{t+1}, v{r[i]}, v{r[i+1]}')
            e(f'v_cmp_eq_u32 vcc, -1, v{t+1}')
        return rec(lambda: (k.wait(vm=f'x{k1_+7}'), chk(), retry_site(chk, lambda: (x2_loads(k0), k0 <= 2 and st_load()), f'x2_{k0}')))
    k.depth += 1
    if half == 0: k.run(xread(0) + xread(1))
    else: k.run(xchk(0, 1))
    k.depth -= 1
    def rstd():
        e(f'v_fmamk_f32 v{t}, v{t}, {fl(-1.0/448)}, v{aS}')
        e(f'v_min_f32 v{t}, 0, v{t}'); e(f'v_sub_f32 v{t}, {fl(1e-5)}, v{t}'); e(f'v_rsq_f32 v{t}, v{t}')
    def scale(tl, pk):
        a = aT[tl]
        if pk:
            if tl in aHi:
                for r in (0, 2): e(f'v_pk_add_f32 {vr(a+r,2)}, {vr(a+r,2)}, {vr(aHi[tl]+r,2)} neg_lo:[0,1] neg_hi:[0,1]')
            for r in (0, 2): e(f'v_pk_mul_f32 {vr(a+r,2)}, {vr(a+r,2)}, {vr(t,2)} op_sel_hi:[1,0]')
        else:
            for r in range(4): e(f'v_sub_f32 v{a+r}, v{a+r}, v{aHi[tl]+r}')
            for r in range(4): e(f'v_mul_f32 v{a+r}, v{a+r}, v{t}')
        for m in range(2): e(f'v_cvt_pk_f16_f32 v{a+m}, v{a+2*m}, v{a+2*m+1}')
        k.ds(f'ds_write_b64 v{vcw}, {vr(a,2)} offset:{2048*tl}', 'cw')
    sl = []; o0 = 0 if half else 4
    for kp in range(7):
        lo, hi = vr(XF(kp), 4), vr(XF(kp+7), 4)
        c = lambda a: vr(a, 4) if kp else '0'
        mm = lambda d, a, b, cc: f'v_mfma_f32_16x16x32_bf16 {vr(d,4)}, {a}, {b}, {cc}'
        ms = [] if half else [mm(aS, vr(ones, 4), lo, c(aS)), mm(aG, lo, lo, c(aG)), mm(aS, vr(ones, 4), hi, vr(aS, 4)), mm(aG, hi, hi, vr(aG, 4))]
        ms += [mm(aT[tl], vr(HR[kp%2]+4*tl, 4), lo, c(aT[tl])) for tl in (1, 3, 0, 2)]
        ms += [mm(aHi[tl], vr(HR[kp%2]+4*tl, 4), hi, c(aHi[tl])) if tl in aHi else mm(aT[tl], vr(HR[kp%2]+4*tl, 4), hi, vr(aT[tl], 4)) for tl in (1, 3, 0, 2)]
        if kp == 6: ms = ms[:o0] + [ms[o0 + i] for i in (0, 4, 1, 5, 2, 6, 3, 7)]
        cur = [[rec(lambda m=m: e(m)), [], []] for m in ms]; cur[0][1].append(Op('s', 0, lambda kp=kp: ls(f'a{half}.{kp}')))
        if half == 0: cur[0][0] = rec(lambda: k.wait(lg=f'xr{min(kp+1, 6)}')) + cur[0][0]
        if half == 0: cur[o0][0] = rec(lambda: k.wait(lg=f'H{kp}2')) + cur[o0][0]
        else:
            cur[0][0] = rec(lambda: k.wait(lg=f'H{kp}3')) + cur[0][0]; i2 = 4 if kp == 6 else 2; cur[i2][0] = rec(lambda: k.wait(lg=f'H{kp}2')) + cur[i2][0]
        if kp < 6:
            for i, o in enumerate(hread(kp + 1)): cur[o0 + i][1].append(o)
            if half == 0 and kp < 5:
                for i, o in enumerate(xread(kp + 2)): cur[2 + i][1].append(o)
        sl += cur
    if half == 0:
        k.bg_period = OPT['pA']
        ep = rec(lambda: (k.wait(vm='ep'), [e(f'v_readfirstlane_b32 s{sN+i}, v{vSEL+i}') for i in range(4)], [e(f's_not_b32 s{sN+i}, s{sN+i}') for i in range(4)]))
        for i, o in enumerate(ep): sl[68 + i][2].append(o)
        def stats():
            e(f'v_cndmask_b32 v{t}, 0, v{aG}, {sr(sMK,2)}')
            for r in range(1, 4): e(f'v_cndmask_b32 v{t}, v{t}, v{aG+r}, {sr(sMK+2*r,2)}')
            e(f'v_mul_f32 v{aS}, {fl(1.0/448)}, v{aS}')
            for sw in ('16', '32'):
                e(f'v_mov_b32 v{t+1}, v{t}')
                if sw == '16': e(f'v_mul_f32 v{aS}, v{aS}, v{aS}')
                e(f'v_permlane{sw}_swap_b32 v{t}, v{t+1}'); e(f'v_add_f32 v{t}, v{t}, v{t+1}')
            rstd()
        k.slots(sl[:80], rec(rest2) if OPT['trim'] else [], 78, nbg=OPT['nbgA'], res0=0)
        if OPT['fine'] & 1: stamp(f'A{half}.mf')
        k.bg_period = OPT['pT']
        st = rec(stats)
        for i in range(80, 84): sl[i][2] += st[:2]; st = st[2:]
        k.slots(sl[80:], nbg=0)
        k.run(st)
    else:
        d = ones
        for at, o in (((12, 12, 12, 13, 13, 14, 14, 14, 15), xchk(2, 3, True)), ((29, 29, 30, 30, 31), xchk(4, 5)), ((46, 46, 47, 47), xchk(6, 6))):
            assert len(at) == len(o)
            for i, x in zip(at, o): sl[i][2].append(x)
        for i, x in zip((4, 5, 6, 7, 20, 21, 22, 23, 36, 37, 38), later): sl[i][1].append(x)
        def sums():
            e(f'v_add_f32 v{d}, v{d}, v{d+2}'); e(f'v_add_f32 v{d+1}, v{d+1}, v{d+3}'); e(f'v_permlane32_swap_b32 v{d}, v{d+1}'); e(f'v_add_f32 v{d}, v{d}, v{d+1}')
            e(f'v_mov_b32 v{d+1}, v{d}'); e(f'v_permlane16_swap_b32 v{d}, v{d+1}'); e(f'v_add_f32 v{aS}, v{d}, v{d+1}')
            e(f'v_mov_b32 v{t}, v{aS}'); e(f'v_permlane32_swap_b32 v{aS}, v{t}')
            e(f'v_mul_f32 v{aS}, {fl(1.0/448)}, v{aS}'); e(f'v_mul_f32 v{aS}, v{aS}, v{aS}'); rstd()
        idx = [16, 17, 19, 24, 25, 27, 28, 32, 34, 39, 40, 41, 42, 43, 44]
        for i, x in zip(idx, rec(sums)): sl[i][2].append(x)
        sc = rec(lambda: scale(1, False)); sl[53][2] += sc[:3]; sl[54][2] += sc[3:6]; sl[55][2] += sc[6:]
        k.slots(sl, nbg=1)
        if OPT['fine'] & 1: stamp(f'A{half}.mf')
    for tl in ((3, 0, 2) if half else (1, 3, 0, 2)): scale(tl, True)
    k.wait(lg='cw'); e('s_barrier')
    stamp(f'A{half}.hdft')
    cf = lambda tl, k1_: 72 + 8*tl + 4*k1_
    k.depth += 1
    so = [(0, 0), (2, 0), (0, 1), (2, 1), (1, 0), (3, 0), (1, 1), (3, 1)]
    for tl, k1_ in so:
        for h2 in range(2): k.ds(f'ds_read_b64_tr_b16 {vr(cf(tl,k1_)+2*h2,2)}, v{vtr} offset:{2048*tl + 1024*k1_ + 512*h2}', f'c{tl}{k1_}')
    if half == 0: k.burst(OPT['nS'])
    else: k.bg_flush()
    Dt = lambda tl: 104 + 4*tl
    def smf(tl, k1_):
        k.wait(lg=f'c{tl}{k1_}')
        e(f'v_mfma_f32_16x16x32_f16 {vr(Dt(tl),4)}, {vr(Ff+4*k1_,4)}, {vr(cf(tl,k1_),4)}, {vr(Dt(tl),4) if k1_ else 0}')
    def bfly(pp, u):
        kk1 = f'v{k1}' if pp == 0 else '-1.0'; nk1 = f'-v{k1}' if pp == 0 else '1.0'
        CA, SA, CB, SB = Dt(u) + 2*pp, Dt(u) + 2*pp + 1, Dt(2+u) + 2*pp, Dt(2+u) + 2*pp + 1
        o = 120 + 8*pp + 4*u
        e(f'v_fma_f32 v{o}, {kk1}, v{SB}, v{CA}'); e(f'v_fma_f32 v{o+1}, {kk1}, v{SA}, -v{CB}')
        e(f'v_fma_f32 v{o+2}, {nk1}, v{CA}, v{SB}'); e(f'v_fma_f32 v{o+3}, {kk1}, v{CB}, v{SA}')
        for m in range(2): e(f'v_cvt_pk_f16_f32 v{72+4*pp+2*u+m}, v{o+2*m}, v{o+2*m+1}')
        if half == 0:
            for m in range(2): e(f'v_bfi_b32 v{72+4*pp+2*u+m}, v{vX+2}, s{sN+2*u+m}, v{72+4*pp+2*u+m}')
    for x in so: smf(*x)
    if half == 0: e('s_barrier')
    bfly(0, 0); bfly(1, 0)
    for pp in range(2):
        bfly(pp, 1)
        k.vmem(f'buffer_store_dwordx4 {vr(72+4*pp,4)}, v{vu}, {sr(sWS,4)}, s{sT+4+pp} offen sc1', 'Ust')
    k.depth -= 1
    stamp(f'A{half}.ust')

def US(half): return 16 if half == 0 else 256
def TOFF(half): return 32 * 912 if half == 0 else 28672
def rowaddr(half, dst, j, t):
    if half == 0: e(f'v_mul_u32_u24 v{dst}, 912, v{j}')
    else:
        e(f'v_lshrrev_b32 v{t}, 4, v{j}'); e(f'v_mul_u32_u24 v{t}, 14336, v{t}'); e(f'v_and_b32 v{dst}, 15, v{j}'); e(f'v_lshl_add_u32 v{dst}, v{dst}, 4, v{t}')
def phB(half):
    us = US(half); RAW = lambda kap: 16 + 16*kap; ACC = lambda u, pq: 80 + 32*pq + 16*u; MF = 144
    vu, vd, vmP, vmQ = vA, vA + 1, vA + 2, vA + 3
    vu2, vm, tc, vbn = (vSa, vSb, vT1, vT1 + 1) if half else (vX, vX + 1, vX + 2, vX + 3)
    t = 88; t0 = k.clk
    save = k.refill
    if half == 0: k.bg += IMG_LATE; k.burst(4); k.seg(OPT['nK'], OPT['pK']*OPT['nK'], 300)
    def tile0():
        if OPT['pads']:
            e(f's_cmp_lt_u32 s{sW}, 2'); e(f's_cbranch_scc1 L_t0_{half}')
            e('s_mov_b64 exec, 0'); e(f's_cmp_eq_u32 s{sW}, 2'); e(f's_cbranch_scc1 L_pad{5 + 4*half}'); e(f's_branch L_pad{6 + 4*half}'); e(f'L_t0_{half}:')
        else: e(f's_cmp_ge_u32 s{sW}, 2'); e(f's_cbranch_scc1 L_ret{1 + half}')
        bs = 128 if half == 0 else 2048
        if half == 0:
            e(f'v_and_b32 v{t}, 15, v{vL}'); e(f'v_lshl_add_u32 v{t}, s{sW}, 4, v{t}'); e(f'v_mul_u32_u24 v{t}, 912, v{t}')
            e(f'v_and_b32 v{t+1}, 48, v{vL}'); e(f'v_add_u32 v{t}, v{t}, v{t+1}')
        else: e(f's_mul_i32 s{sT}, s{sW}, 14336'); e(f'v_add_u32 v{t}, s{sT}, v{vL16}')
        e(f's_mul_i32 s{sT}, s{sG}, {bs}')
        for b in range(7):
            if b: e(f's_add_u32 s{sT}, s{sT}, {bs}'); e(f's_sub_u32 s{sT+1}, s{sT}, {7*bs}'); e(f's_min_u32 s{sT}, s{sT}, s{sT+1}')
            e(f'v_add_u32 v{t+1}, s{sT}, v{t}')
            for h in range(2): e(f'ds_write_b128 v{t+1}, {vr(XF(2*b+h),4)} offset:{L_X + h*bs//2}')
        e(f'L_ret{1 + half}:'); e('s_mov_b64 exec, -1')
    k.call(tile0); ls(f'b{half}.t0')
    if half == 0: late_setup()
    e(f'v_bfe_u32 v{t}, v{vL}, 2, 1'); e(f'v_bfe_u32 v{t+1}, v{vL}, 3, 2'); e(f'v_and_b32 v{t+2}, 3, v{vL}')
    e(f'v_lshl_add_u32 v{t+1}, v{t}, 2, v{t+1}'); e(f'v_lshl_add_u32 v{t+1}, v{t+1}, 2, v{t+2}'); e(f's_mul_i32 s{sT+2}, s{sW}, 448')
    e(f'v_lshl_add_u32 v{t+1}, v{t+1}, 4, s{sT+2}'); e(f'v_subrev_u32 v{t}, 1792, v{t+1}'); e(f'v_min_u32 v{t+1}, v{t}, v{t+1}')
    e(f'v_lshrrev_b32 v{t+2}, 5, v{vL}'); e(f'v_mul_u32_u24 v{t}, 1792, v{t+2}'); e(f'v_add_u32 v{vu}, v{t}, v{t+1}'); e(f'v_add_u32 v{vu2}, 7168, v{vu}')
    e(f's_mul_i32 s{sT}, s{sP}, 57344'); e(f's_add_u32 s{sT}, s{sT}, {WS_U2 if half else WS_U1}')
    for i in range(4): e(f's_add_u32 s{sT+1}, s{sG}, {i}'); e(f's_and_b32 s{sT+1}, s{sT+1}, 3'); e(f's_mul_i32 s{sT+1}, s{sT+1}, 14336'); e(f's_add_u32 s{sUO+i}, s{sT}, s{sT+1}')
    def adr():
        j, a = t + 3, t + 4
        e(f'v_and_b32 v{j}, 31, v{vL}'); e(f's_mul_i32 s{sT}, s{sW}, 7'); e(f'v_lshl_add_u32 v{a}, v{t+2}, 2, s{sT}')
        rowaddr(half, vd, j, t); e(f'v_mul_u32_u24 v{t+1}, {us}, v{a}'); e(f'v_add_u32 v{vd}, v{vd}, v{t+1}')
        e(f'v_sub_u32 v{a}, {52*us}, v{t+1}')
        e(f's_cmp_eq_u32 s{sP}, 0\ns_cselect_b32 s{sT}, 32, 63\ns_cselect_b32 s{sT+1}, 31, 63\ns_cselect_b32 s{sT+2}, 63, 31')
        e(f'v_sub_u32 v{t+5}, s{sT}, v{j}'); e(f'v_and_b32 v{t+5}, s{sT+1}, v{t+5}'); rowaddr(half, vmP, t + 5, t); e(f'v_add_u32 v{vmP}, v{vmP}, v{a}')
        e(f'v_sub_u32 v{t+5}, s{sT+2}, v{j}'); rowaddr(half, vmQ, t + 5, t); e(f'v_add_u32 v{vmQ}, v{vmQ}, v{a}')
        e(f's_cmp_eq_u32 s{sW}, 0\ns_cselect_b32 s{sMK}, 0, -1'); e(f's_mov_b32 s{sMK+1}, -1')
        e(f'v_add_u32 v{vm}, {L_M}, v{vL16}')
        e(f's_mul_i32 s{sT}, s{sW}, {7*us}'); e(f'v_mul_u32_u24 v{t+2}, {3*us}, v{t+2}'); e(f'v_subrev_u32 v{vbn}, s{sT}, v{vd}'); e(f'v_sub_u32 v{vbn}, v{vbn}, v{t+2}')
        if OPT['rot']:
            e(f's_mul_i32 s{sT}, s{sRO}, {14*us}'); e(f'v_add_u32 v{vbn}, s{sT}, v{vbn}'); e(f's_mov_b32 s{sT}, {14*us}')
            for q in range(4): e(f's_cmp_eq_u32 s{sRO}, {3-q}\ns_cselect_b32 s{sRD+q}, {-42*us}, s{sT}')
    if half == 0:
        adr(); gen_M(96); e(f's_mov_b32 s{sMK+2}, 0xfffefffe')
        k.burst(k.quota)
    else:
        def ichk():
            e(f's_mul_i32 s{sT}, s{sW}, 7168'); e(f'v_add_u32 v{t}, s{sT}, v{vL16}')
            for i in range(7): k.ds(f'ds_read_b32 v{t+2+i}, v{t} offset:{L_X + 28672 + 1024*i}', 'ic')
            k.wait(lg='all')
            for i in range(3): e(f'v_max3_u32 v{t+2}, v{t+2}, v{t+3+2*i}, v{t+4+2*i}')
            e(f'v_cmp_eq_u32 vcc, -1, v{t+2}')
    k.refill = None; k.bg_flush()
    if OPT['uack']: k.wait(vm='Ust')
    stamp(f'B{half}.ack')
    def uloads(first, last=4):
        for kap in range(first, last):
            for jj in range(4):
                k.vmem(f'buffer_load_dwordx4 {vr(RAW(kap)+4*jj,4)}, v{vu if jj < 2 else vu2}, {sr(sWS,4)}, s{sUO+kap} offen offset:{3584*(jj%2)} sc1', f'U{kap}{jj}')
    ld = rec(lambda: uloads(0))
    n0 = OPT['n0']
    if half == 0:
        if OPT['fl'] < 0: flag_load()
        fill = []
        while ws.nd < min(ws.dmax, ws.ni): fill += ws.drain_ops()
        for o in ld[:n0]:
            k.run([o] + fill[:4]); fill = fill[4:]; ws.cs_flush(2, 1)
        k.run(fill)
        k.wait(vm='img1', lg='all'); e('s_barrier')
    else:
        k.run(ld[:4])
        k.run(k.weave(ld[4:n0], rec(lambda: (adr(), k.wait(vm='img1'), ichk())), 56))
        retry_site(ichk, lambda: k.run(img_ops(1, 1)), 'img')
        e('s_barrier')
    mread = lambda kap, pq: k.ds(f'ds_read_b128 {vr(MF+4*pq,4)}, v{vm} offset:{4096*pq + 1024*kap}', f'M{pq}')
    mread(0, 0); mread(0, 1)
    if half == 0: ws.cs_flush(); ws.cs_on = 0; ws.lag = 99
    rest = ld[n0:]
    XU = lambda pq, b, mir: RAW(2*pq + (b >> 1)) + 8*(b & 1) + 4*mir
    def xread(pq, b):
        k.ds(f'ds_read_b128 {vr(XU(pq,b,0),4)}, v{vd} offset:{L_X + pq*TOFF(half) + b*us}', f'xd{pq}{b}')
        k.ds(f'ds_read_b128 {vr(XU(pq,b,1),4)}, v{vmQ if pq else vmP} offset:{L_X + (3-b)*us}', f'xm{pq}{b}')
    def uchk(kap):
        R = RAW(kap)
        if half: e(f'v_max3_u32 v{tc}, v{R}, v{R+4}, v{R+8}'); e(f'v_max_u32 v{tc}, v{tc}, v{R+12}'); e(f'v_cmp_eq_u32 vcc, -1, v{tc}')
        else:
            e(f'v_xor_b32 v{tc}, s{sN}, v{R}')
            for i in range(1, 16): e(f'v_bitop3_b32 v{tc}, v{tc}, v{R+i}, s{sN + i%4} bitop3:0xf6')
            e(f'v_and_b32 v{tc}, 0x10001, v{tc}'); e(f'v_cmp_ne_u32 vcc, 0, v{tc}')
    def ureload(kap):
        if half == 0 or not OPT['usel']: return uloads(kap)
        uloads(kap, kap + 1)
        if kap < 3: e('s_waitcnt vmcnt(4)')
        for k2 in range(kap + 1, 4):
            l = k.lab('have'); uchk(k2); e(f's_cbranch_vccz {l}'); uloads(k2, k2 + 1); e(f'{l}:')
    for kap in range(4):
        R = RAW(kap)
        ls(f'b{half}.w{kap}')
        sw = lambda i, jx, R=R: e(f'v_swap_b32 v{R+4*i+jx}, v{R+4*jx+i}')
        if half:
            for jj in range(4):
                k.wait(vm=f'U{kap}{jj}')
                if kap == 0: k.run(rest[:2 if jj == 3 else 1]); rest = rest[2 if jj == 3 else 1:]
                if jj == 3: assert not rest; ls(f'b{half}.u{kap}')
                e(f'v_max_u32 v{tc}, v{tc}, v{R+4*jj}' if jj else f'v_mov_b32 v{tc}, v{R}')
                if jj == 3: e(f'v_cmp_eq_u32 vcc, -1, v{tc}'); sw(0, 3)
                else:
                    for i in range(jj): sw(i, jj)
            retry_site(lambda kap=kap: uchk(kap), lambda kap=kap: ureload(kap), f'U{half}_{kap}', after=lambda sw=sw: (sw(0, 1), sw(0, 2), sw(1, 2), sw(0, 3)))
        else:
            k.wait(vm=f'U{kap}3'); ls(f'b{half}.u{kap}')
            if kap == 0: k.run(rest); k.refill = save; k.seg(999, 999*OPT['pU'], 300)
            if kap + OPT['fc'] == -1: flag_check(); ws.limit = 28
            uchk(kap); retry_site(lambda kap=kap: uchk(kap), lambda kap=kap: ureload(kap), f'U{half}_{kap}')
        if kap == 3: stamp(f'B{half}.Uin')
        SP = R if half else 220 + 16*(kap & 1)
        def mf(u, pq):
            A = ACC(u, pq); e(f'v_mfma_f32_32x32x16_f16 {vr(A,16)}, {vr(SP+4*(2*u+pq),4)}, {vr(MF+4*pq,4)}, {vr(A,16) if kap else 0}')
        if half:
            k.wait(lg='M0')
            mf(0, 0); sw(2, 3); sw(1, 3); k.wait(lg='M1'); mf(1, 0)
            if kap < 3: mread(kap + 1, 0)
            mf(0, 1); mf(1, 1)
        else:
            assert ws.ni <= 40
            mv = lambda d: [e(f'v_and_b32 v{SP+4*d+jj}, s{sMK+2}, v{R+4*jj+d}') for jj in range(4)]
            mv(0); mv(2); k.wait(lg='M0'); mf(0, 0); mv(1); mf(1, 0)
            if kap < 3: mread(kap + 1, 0)
            mv(3); k.wait(lg='M1'); mf(0, 1); mf(1, 1)
        if kap < 3: mread(kap + 1, 1)
        if half == 0 and kap == OPT['fl2']: flag_load(1)
        xread(kap >> 1, 2*(kap & 1)); xread(kap >> 1, 2*(kap & 1) + 1)
    if half == 0:
        ws.lag = OPT['lag']; k.bg_period = OPT['pE']
    ADR[:] = [vu2, vm]
    e(f'v_lshrrev_b32 v{vm}, 3, v{vL}'); e(f'v_lshl_add_u32 v{vm}, s{sW}, 3, v{vm}'); rowaddr(half, vu2, vm, tc)
    e(f'v_and_b32 v{tc}, 7, v{vL}'); e(f'v_lshl_add_u32 v{vu2}, v{tc}, {us.bit_length()-1}, v{vu2}'); e(f'v_lshlrev_b32 v{vm}, 3, v{vm}'); e(f's_lshl_b32 s{sT}, s{sW}, 3')
    T = MF
    sel = lambda hi: f's{sHI if hi else sLO}'
    for pq in range(2):
        Y = lambda b, n: ACC(n & 1, pq) + 4*b + (n >> 1)
        e(f'v_mov_b32 v{vu}, v{Y(0,0)}'); e(f'v_cndmask_b32 v{Y(0,0)}, 0, v{Y(0,0)}, {sr(sMK,2)}')
        for b in range(4):
            if b == 3: k.depth += 1; e('s_mov_b32 exec_hi, 0')
            xd, xm = XU(pq, b, 0), XU(pq, b, 1); ls(f'e{half}.{pq}{b}')
            if half == 0 and 4 + 3*pq + b == OPT['fl2'] and b < 3: flag_load(1)
            if half == 0 and 3*pq + b == OPT['fc2'] and b < 3: flag_check(1); ws.limit = min(44, 28 + 4*OPT['ja'])
            if half == 0 and 3*pq + b == OPT['fl3'] and b < 3: assert ws.limit > 28; flag_load(2)
            k.wait(lg=f'xm{pq}{b}')
            for n in range(8): e(f'v_dot2_f32_bf16 v{T+n}, v{xd + (n >> 1)}, {sel(n & 1)}, v{Y(b,n)}')
            e(f'v_dot2_f32_bf16 v{Y(b,0)}, v{xm}, {sel(0)}, v{Y(b+1,0) if b < 3 else tc}')
            for m in range(4): e(f'v_cvt_pk_bf16_f32 v{xd+m}, v{T+2*m}, v{T+2*m+1}')
            k.ds(f'ds_write_b128 v{vd}, {vr(xd,4)} offset:{L_X + pq*TOFF(half) + b*us}', 'xw')
            for m in range(1, 8): e(f'v_dot2c_f32_bf16 v{Y(b,8-m)}, {sel(m & 1)}, v{xm + (m >> 1)}')
            if b == 0: e(f'v_permlane32_swap_b32 v{vu}, v{tc}')
            for m in range(4): e(f'v_cvt_pk_bf16_f32 v{xm+m}, v{Y(b,(8-2*m)%8)}, v{Y(b,7-2*m)}')
            k.ds(f'ds_write_b128 v{vmQ if pq else vmP}, {vr(xm,4)} offset:{L_X + (3-b)*us}', 'xw')
        e('s_mov_b32 exec_hi, -1'); k.depth -= 1

def ffn(half):
    us = US(half); toff = TOFF(half); ls(f'e{half}.x')
    vb, vs, vst, vh = vA, vA + 1, vA + 2, vA + 3
    BR = lambda i: B[5] + 4*(i % 3); MFR = B[5] + 12; t = B[5] + 14
    vres = B[4]
    e(f'v_mov_b32 v{vb}, v{vT1 + 1 if half else vX + 3}')
    def adr0():
        e(f'v_lshrrev_b32 v{t}, 3, v{vL}'); e(f's_lshl_b32 s{sT}, s{sW}, 3'); e(f'v_add_u32 v{t}, s{sT}, v{t}'); rowaddr(half, vs, t, t + 1)
        e(f'v_lshlrev_b32 v{vh}, 3, v{t}')
        e(f'v_and_b32 v{t}, 7, v{vL}'); e(f'v_lshl_add_u32 v{vs}, v{t}, {us.bit_length()-1}, v{vs}')
    e(f'v_mov_b32 v{vs}, v{ADR[0]}'); e(f'v_mov_b32 v{vh}, v{ADR[1]}')
    def more():
        e(f's_mul_i32 s{sT+1}, s{sG}, {8*us}')
        if half == 0:
            e(f'v_and_b32 v{t}, 7, v{vL}'); e(f'v_add_u32 v{t}, s{sT}, v{t}'); rowaddr(half, vres, t, t + 1)
            e(f'v_lshrrev_b32 v{t}, 3, v{vL}'); e(f'v_lshl_add_u32 v{vres}, v{t}, 4, v{vres}'); e(f'v_add_u32 v{vres}, s{sT+1}, v{vres}')
        else: e(f'v_add_u32 v{vres}, s{sT+1}, v{vs}')
        e(f'v_and_b32 v{vst}, 31, v{vL}'); e(f'v_lshlrev_b32 v{vst}, 3, v{vst}')
        e(f's_mov_b32 s{sMK}, -1'); e(f's_mov_b32 s{sMK+1}, 0'); e(f's_mov_b32 s{sMK+2}, 0x80008000')
    def epoch():
        def ep():
            e(f's_lshl_b32 s{sT+4}, s2, 2'); e(f's_add_u32 s{sT+4}, s{sT+4}, s{sW}'); e(f's_cmp_eq_u32 s{sT+4}, 128'); e('s_cbranch_scc1 L_epoch'); e('L_epoch_ret:')
            k.begin_tail(); e('L_epoch:')
            for i in range(4): e(f'v_mov_b32 v{B[5]+i}, s{sN+i}')
            e(f's_mov_b32 s{sT+4}, {WS_EP}'); e('s_mov_b64 exec, 1'); e(f'buffer_store_dwordx4 {vr(B[5],4)}, off, {sr(sWS,4)}, s{sT+4} sc1'); e('s_mov_b64 exec, -1'); e('s_branch L_epoch_ret')
            k.end_tail()
        k.call(ep, 's', 32)
    vh1 = vT1
    if half == 0:
        assert ws.limit > 28
        if OPT['fl3'] == 6: flag_load(2)
    if half == 0: ws.force(-1); k.seg(999, 999*OPT['perG'])
    k.wait(lg='xw'); e('s_barrier')
    stamp(f'B{half}.end')
    if stop(f'B{half}', 61440): return True
    hvo = lambda T: vh1 if T else vL16
    MF2 = [MFR, MFR]
    resrd = lambda T: k.ds(f'ds_read_b128 {vr(vR+4*T,4)}, v{vres} offset:{L_X + T*toff}', 'res')
    ACC1 = lambda T, u: B[2*T + u]
    def bread(i):
        q = i % 28
        def f():
            k.ds(f'ds_read_b128 {vr(BR(i),4)}, v{vb} offset:{L_X + (i//28)*toff + 2*(q % 7 if OPT["rot"] else q)*us}', f'B{i}')
            if OPT['rot'] and q % 7 == 6 and i < 55: e(f'v_add_u32 v{vb}, s{sRD + q//7}, v{vb}')
        return Op('ds', 4, f)
    k.depth += 1; bread(0)(); bread(1)(); k.depth -= 1
    def stats_ops(T):
        SB = lambda j: B[6] + 4*(j % 2); s1, s2, lo, hi = B[6] + 8, B[6] + 9, B[6] + 10, B[6] + 12
        rd = lambda j: k.ds(f'ds_read_b128 {vr(SB(j),4)}, v{vs} offset:{L_X + T*toff + 8*j*us}', f'S{T}{j}')
        ops = rec(lambda: (rd(0), rd(1))) + [None, None]
        def body():
            for j in range(1 if OPT['nostats'] else 7):
                k.wait(lg=f'S{T}{j}')
                for m in range(4):
                    l_, h_ = lo + m % 2, hi + m % 2
                    e(f'v_lshlrev_b32 v{l_}, 16, v{SB(j)+m}'); e(f'v_and_b32 v{h_}, s{sFF}, v{SB(j)+m}')
                    if m == 3 and j + 2 < 7: rd(j + 2)
                    if j == 0 and m == 0: e(f'v_add_f32 v{s1}, v{l_}, v{h_}'); e(f'v_mul_f32 v{s2}, v{l_}, v{l_}'); e(f'v_fmac_f32 v{s2}, v{h_}, v{h_}')
                    else: e(f'v_add_f32 v{s1}, v{s1}, v{l_}'); e(f'v_fmac_f32 v{s2}, v{l_}, v{l_}'); e(f'v_add_f32 v{s1}, v{s1}, v{h_}'); e(f'v_fmac_f32 v{s2}, v{h_}, v{h_}')
        ops += rec(body)
        for c in ('quad_perm:[1,0,3,2]', 'quad_perm:[2,3,0,1]', 'row_half_mirror'):
            ops += rec(lambda: [e('s_nop 0')] + [e(f'v_add_f32_dpp v{r}, v{r}, v{r} {c} row_mask:0xf bank_mask:0xf') for r in (s1, s2)])
        ops += rec(lambda: (e(f'v_mul_f32 v{s1}, {fl(-1.0/448)}, v{s1}'), e(f'v_mul_f32 v{lo}, v{s1}, v{s1}'), e(f'v_fmamk_f32 v{s2}, v{s2}, {fl(-1.0/448)}, v{lo}'),
                e(f'v_min_f32 v{s2}, 0, v{s2}'), e(f'v_sub_f32 v{s2}, {fl(1e-5)}, v{s2}'), e(f'v_rsq_f32 v{s2}, v{s2}'))) + [None]
        ops += rec(lambda: k.ds(f'ds_write_b64 v{vh}, {vr(s1,2)} offset:{L_ST + 256*T}', 'stw')) + [None, None]
        ops += rec(lambda: (k.wait(lg='stw'), e('s_barrier'), k.ds(f'ds_read_b32 v{t}, v{vst} offset:{L_ST + 256*T}', 'm'))) + [None, None, None]
        ops += rec(lambda: (k.wait(lg='m'), e(f'v_cndmask_b32 v{t}, 0, v{t}, {sr(sMK,2)}'), e(f'v_cvt_pk_bf16_f32 v{MFR}, v{t}, v{t}'),
                e(f'v_and_b32 v{t+1}, s{sFF}, v{MFR}'), e(f'v_sub_f32 v{t}, v{t}, v{t+1}'), e(f'v_cvt_pk_bf16_f32 v{MFR+1}, v{t}, 0')))
        return ops
    OWN = [B[4], B[6]]
    def bump(c): k.bg_next = max(k.bg_next, k.clk - 40) + c
    ownfix = lambda T: None
    def epi1(T):
        ng = '-' if half else ''
        for u in range(2):
            for be in range(2):
                d = OWN[T] + 8*u + 4*be; a = ACC1(T, u) + 8*be
                for m in range(4):
                    ng = '-' if (half != (m == 3)) else ''; e(f'v_cvt_pk_bf16_f32 v{d+m}, {ng}v{a+2*m}, {ng}v{a+2*m+1}')
                for m in range(4): e(f'v_pk_max_u16 v{d+m}, v{d+m}, s{sMK+2}' if (half != (m == 3)) else f'v_pk_max_i16 v{d+m}, v{d+m}, 0')
                if OPT['noh'] & (4 << T): continue
                k.call(lambda d=d, u=u, be=be: (k.vmem(f'buffer_store_dwordx4 {vr(d,4)}, v{hvo(T)}, {sr(sWS,4)}, s{sHS} offen offset:{1024*(2*u+be)} sc1', 'hst'), bump(96)), 'vm', 24)
    HB = {(0, 0): B[4], (0, 1): B[0], (0, 2): B[1], (0, 3): B[7], (0, 4): B[4], (0, 5): B[0], (0, 6): B[1],
          (1, 0): B[6], (1, 1): B[7], (1, 2): B[4], (1, 3): B[6], (1, 4): B[7], (1, 5): B[4], (1, 6): B[6]}
    inflight = []
    def hload(T, jp, i, track=True):
        def f():
            if OPT['noh'] & 1: return
            k.vmem(f'buffer_load_dwordx4 {vr(HB[T,jp]+4*i,4)}, v{hvo(T)}, {sr(sWS,4)}, s{sHS+jp} offen offset:{1024*i} sc1', f'h{T}{jp}{i}')
            if track: inflight.append((T, jp, i)); bump(OPT['perH'] if len(inflight) > 12 else 60)
        return Op('vm', 4, f)
    prevuse = {(0, 4): (0, 0), (0, 5): (0, 1), (0, 6): (0, 2), (1, 1): (0, 3), (1, 2): (0, 4), (1, 3): (1, 0), (1, 4): (1, 1), (1, 5): (1, 2), (1, 6): (1, 3)}
    order = [(0, 1), (0, 2), (0, 3), (0, 4), (0, 5), (1, 1), (0, 6)] + [(1, j) for j in range(2, 7)] if OPT['hord'] else [(T, j) for T in range(2) for j in range(1, 7)]
    hq = []
    for T, jp in order:
        for i in range(4):
            rdy = OPT['hq_slot' if half else 'hq0'] if T == 0 else 116 + OPT['t1_slot']
            if (T, jp) in prevuse: pT, pj = prevuse[T, jp]; rdy = max(rdy, 116 + 56*pT + 8*pj + 2*i + 1)
            hq.append((rdy, 116 + 56*T + 8*jp - OPT['hdl'] - 2*(3 - i), T, jp, i))
    def hpace(slot):
        def f():
            if not hq or OPT['noh'] & 1: return
            due = min(x[1] for x in hq[:8]) <= slot
            wfirst = half == 0 and ws.sent < 56 and ws.use(ws.sent) - OPT['lead'] <= hq[0][1]
            if hq[0][0] <= slot and ((k.clk >= k.bg_next and not wfirst) or due):
                x = hq.pop(0)
                if x[3:] == (1, 0) and OPT['hack'] >> (2*half + x[2]) & 1: k.wait(vm='hst')
                if half == 0 and OPT['cntlate'] and x[2:] == (1, 1, 0): cnt_load(vT2 + 1, 1)
                hload(*x[2:])()
                if OPT['verbose'] > 2: print(f'; h{x[2:]} at slot {slot} use {116 + 56*x[2] + 8*x[3]}', file=sys.stderr)
        return Op('vm', 0, f)
    def g1_slots(T):
        sl = []
        for n in range(28):
            i = 28*T + n
            for u in range(2):
                A = ACC1(T, u)
                def mf(A=A, n=n, u=u, i=i):
                    k.wait(lg=f'B{i}')
                    if half == 0 and T == 0:
                        if n < NR: assert ws.done > n; k.wait(lg=f'tr{n}')
                        else: assert ws.sent > n; k.wait(vm=f'w{n}')
                    e(f'v_mfma_f32_32x32x16_bf16 {vr(A,16)}, {w1f(n,u)}, {vr(BR(i),4)}, {vr(A,16) if n else 0}')
                pre = [bread(i + 2)] if (u == 0 and i + 2 < 56) else []
                if u == 0 and n % 7 == 0: pre.append(Op('s', 0, lambda n=n: ls(f'c{half}.{T}{n//7}')))
                if half == 0 and u == 1: pre.append(Op('ds', 0, lambda n=n: ws.force(58*T + 2*n + 1)))
                sl.append([[Op('mfma', 8, mf)], pre, []])
        return sl
    def corr(T): return [[rec(lambda: e(f'v_mfma_f32_32x32x8_bf16 {vr(ACC1(T,u),16)}, {vr(vCS+2*u,2)}, {vr(MF2[T],2)}, {vr(ACC1(T,u),16)}')), [], []] for u in range(2)]
    st0 = stats_ops(0); st1 = stats_ops(1)
    sl = g1_slots(0)
    res = [rec(lambda: k.ds(f'ds_read_b128 {vr(vR+4*T,4)}, v{vres} offset:{L_X + T*toff}', 'res')) for T in range(2)]
    nbg = OPT['nbgG']; STAG = OPT['stag']
    if half == 0:
        assert OPT['fc3'] < OPT['css']
        sl[OPT['fc3']][2] += rec(lambda: flag_check(2)) + [Op('s', 0, lambda: setattr(ws, 'limit', 56))]
        sl[OPT['css']][1] += rec(cs_load); sl[49][2] += rec(lambda: k.wait(vm='cs'))
    q0 = st0[:1] + rec(more) + st0[1:2] + st0[4:18] + res[0] + st0[18:43] + res[1] + st0[43:]
    if STAG:
        mv = [sl[i][1].pop(0) for i in (52, 54)]; sl[51][1].insert(0, mv[0]); sl[53][1].insert(0, mv[1])
        tb = [sl[51], sl[53], sl[55]]; sl = sl[:50] + [sl[50], sl[52], sl[54]]
    k.slots(sl, q0, 52 if STAG else 54, nbg=nbg)
    log('g1(0) done')
    if OPT['fine'] & 2: stamp(f'C{half}.g10')
    c0 = corr(0); ep0 = rec(lambda: epi1(0)); nop = lambda n: rec(lambda: e(f's_nop {n}'))
    tail1 = st1[26:] + rec(lambda: e(f'v_add_u32 v{vh1}, {7*16384}, v{vL16}'))
    if STAG:
        k.slots([c0[0]] + tb[:2], st1[:1] + nop(3) + [None] + st1[1:2] + nop(2) + [None] + ep0[:5], nbg=0)
        sl = [tb[2], c0[1]] + g1_slots(1)
        q = ep0[5:18] + st1[4:9] + ep0[18:] + st1[9:26] + tail1
    else:
        sl = c0 + g1_slots(1)
        q = st1[:14] + ep0 + st1[14:26] + tail1
    for n in range(len(sl)): sl[n][1].append(hpace(56 + n))
    if half == 0 and not OPT['cntlate']: sl[OPT['hq0'] - 57][1] += rec(lambda: cnt_load(vT1 + 1, 1))
    k.slots(sl, q, 57, nbg=nbg)
    k.slots(corr(1))
    stamp(f'C{half}.g1')
    k.depth += 1
    while len(inflight) < OPT['hB%d' % half]: hload(*hq.pop(0)[2:])()
    epi1(1)
    k.depth -= 1
    if OPT['fine'] & 4: stamp(f'C{half}.epi'); k.wait(vm='h023'); stamp(f'C{half}.h02'); k.wait(vm='all'); stamp(f'C{half}.ack')
    if stop(f'C{half}'): return True
    ACC2 = lambda T, v: (B[2 + v] if T == 0 else B[v])
    ORD = [[(kk, v) for kk in range(28) for v in range(2)] for T in range(2)]
    ORD[1] = ORD[1][:48] + [(kk, v) for v in range(2) for kk in range(24, 28)]
    CUR = [0]
    AR = lambda kk, v: B[5] + 4*(ORD[CUR[0]].index((kk, v)) % 4)
    def aread(kk, v):
        def f():
            assert ws.sent > 28 + kk; k.wait(vm=f'w{28+kk}')
            k.ds(f'ds_read_b128 {vr(AR(kk,v),4)}, v{vT2} offset:{2048*(kk-17) + 1024*v}', f'A{kk}{v}')
        return Op('ds', 4, f)
    tc = vb
    def hcheck(T, jp):
        R = HB[T, jp]
        def part(i):
            r = R + 4*i
            e(f'v_or3_b32 v{tc}, v{r}, v{r+1}, v{tc}' if i else f'v_or_b32 v{tc}, v{r}, v{r+1}'); e(f'v_bitop3_b32 v{tc}, v{tc}, v{r+2}, v{r+3} bitop3:0xfd')
        def fin(): e(f'v_and_b32 v{tc}, s{sMK+2}, v{tc}'); e(f'v_cmp_ne_u32 vcc, 0, v{tc}')
        def chk():
            if half == 0: [part(i) for i in range(4)]; fin()
            else: e(f'v_bitop3_b32 v{tc}, v{R}, v{R+4}, v{R+8} bitop3:0x80'); e(f'v_and_b32 v{tc}, v{tc}, v{R+12}'); e(f'v_cmp_le_i32 vcc, 0, v{tc}')
        def br():
            todo = [x for x in inflight if (x[:2] == (T, jp) if OPT['hsel'] else x[:2] >= (T, jp))]
            retry_site(chk, lambda: [hload(*x, track=False)() for x in todo], f'h{half}_{T}{jp}')
        def w(i):
            assert (T, jp, i) in inflight, (T, jp, i); k.wait(vm=f'h{T}{jp}{i}')
        o = [[] for _ in range(8)]
        if half: o[6] = [Op('v', 16, lambda: (w(3), chk()))]
        else:
            o[4] = [Op('v', 20, lambda: (w(1), part(0), part(1)))]; o[5] = [Op('v', 12, lambda: (w(2), part(2)))]; o[6] = [Op('v', 20, lambda: (w(3), part(3), fin()))]
        o[7] = [Op('s', 20, br)]
        return o
    RS = 1088; vrr, vo, vrwb = vs, vh, vT1 + 1
    def g2addr():
        tau, cc = B[5], B[5] + 1
        if half == 0: e(f'v_and_b32 v{tau}, 7, v{vL}'); e(f'v_lshrrev_b32 v{cc}, 3, v{vL}')
        else: e(f'v_lshrrev_b32 v{tau}, 3, v{vL}'); e(f'v_and_b32 v{cc}, 7, v{vL}')
        e(f's_lshl_b32 s{sT}, s{sW}, 3'); e(f'v_add_u32 v{tau}, s{sT}, v{tau}')
        e(f'v_mul_u32_u24 v{vrr}, {RS}, v{cc}'); e(f'v_lshl_add_u32 v{vrr}, v{tau}, 4, v{vrr}')
        if half == 0: e(f'v_bfe_i32 v{cc+1}, v{cc}, 0, 1'); e(f'v_lshl_add_u32 v{vrr}, v{cc+1}, 6, v{vrr}')
        e(f'v_lshlrev_b32 v{vst}, 3, v{tau}')
        if half == 0:
            rowaddr(1, vo, tau, cc + 1); e(f'v_lshl_add_u32 v{vo}, v{cc}, 8, v{vo}')
            for T in range(2):
                e(f's_mul_i32 s{sMK+4+T}, s{sRB if T else sP}, 28672'); e(f's_lshl_b32 s{sT}, s{sG}, 11'); e(f's_add_u32 s{sMK+4+T}, s{sMK+4+T}, s{sT}'); e(f's_add_u32 s{sMK+4+T}, s{sMK+4+T}, {WS_X2}')
        else:
            e(f'v_mul_u32_u24 v{vo}, 57344, v{tau}'); e(f'v_lshl_add_u32 v{vo}, v{cc}, 4, v{vo}')
            for T in range(2):
                e(f's_mul_i32 s{sMK+4+T}, s{sRB if T else sP}, 896'); e(f's_lshl_b32 s{sT}, s{sG}, 7'); e(f's_add_u32 s{sMK+4+T}, s{sMK+4+T}, s{sT}')
        e(f's_mul_i32 s{sT}, s{sW}, {8*RS}'); e(f'v_add_u32 v{vrwb}, s{sT}, v{vL16}')
        e('s_barrier')
    def g2more():
        if half == 0:
            e(f's_lshr_b32 s{sT}, s{sW}, 1'); e(f's_lshl_b32 s{sT}, s{sT}, 5'); e(f's_add_u32 s{sT}, s{sT}, s{sP}'); e(f's_lshl_b32 s{sT}, s{sT}, 1')
            e(f's_and_b32 s{sT+1}, s{sW}, 1'); e(f's_add_u32 s{sT}, s{sT}, s{sT+1}'); e(f's_lshl_b32 s49, s{sT}, 10'); e(f's_add_u32 s49, s49, {WS_SS}')
            e(f's_mul_i32 s{sT}, s{sT}, 14336'); e(f's_add_u32 s{sT}, s{sT}, {WS_X2}'); e(f's_lshl_b32 s{sT+1}, s{sG}, 11')
            for b in range(7):
                if b: e(f's_add_u32 s{sT+1}, s{sT+1}, 2048'); e(f's_sub_u32 s{sT+2}, s{sT+1}, 14336'); e(f's_min_u32 s{sT+1}, s{sT+1}, s{sT+2}')
                e(f's_add_u32 s{SX[b]}, s{sT}, s{sT+1}')
            for T in range(2):
                e(f's_lshl_b32 s{sT}, s{sRB if T else sP}, 11'); e(f's_lshr_b32 s{sT+1}, s{sW}, 1'); e(f's_lshl_b32 s{sT+1}, s{sT+1}, 10'); e(f's_add_u32 s{sT}, s{sT}, s{sT+1}')
                e(f's_and_b32 s{sT+1}, s{sW}, 1'); e(f's_lshl_b32 s{sT+1}, s{sT+1}, 7'); e(f's_add_u32 s{sT}, s{sT}, s{sT+1}')
                e(f's_lshr_b32 s{sT+1}, s{sG}, 1'); e(f's_lshl_b32 s{sT+1}, s{sT+1}, 8'); e(f's_add_u32 s{sT}, s{sT}, s{sT+1}')
                e(f's_and_b32 s{sT+1}, s{sG}, 1'); e(f's_lshl_b32 s{sT+1}, s{sT+1}, 3'); e(f's_add_u32 s{sT}, s{sT}, s{sT+1}'); e(f's_add_u32 s{sMK+6+T}, s{sT}, {WS_SS}')
    rr = vSb
    rwr = lambda T, c: k.ds(f'ds_write_b128 v{vrwb}, {vr(ACC2(T, c >> 2) + 4*(c & 3), 4)} offset:{L_RED + RS*c - (0 if half else 64*(c & 1))}', 'rw')
    rrd = lambda T: k.ds(f'ds_read_b32 v{rr}, v{vst} offset:{L_ST + 4 + 256*T}', 'rw')
    def red_final(T, PB, pk):
        x = vR + 4*T; ops = []
        for pw in range(4):
            ops += rec(lambda: [k.ds(f'ds_read_b128 {vr(PB+8*pw+4*h,4)}, v{vrr} offset:{L_RED + 8*RS*pw + 512*h}', f'p{pw}') for h in range(2)]) + [None]
        XT = B[7] if pk else None
        def body():
            if pk:
                k.wait(lg='p1')
                for n in range(0, 8, 2): e(f'v_pk_add_f32 {vr(PB+n,2)}, {vr(PB+n,2)}, {vr(PB+8+n,2)}')
                k.wait(lg='p3')
                for n in range(0, 8, 2): e(f'v_pk_add_f32 {vr(PB+16+n,2)}, {vr(PB+16+n,2)}, {vr(PB+24+n,2)}')
                for n in range(0, 8, 2): e(f'v_pk_add_f32 {vr(PB+n,2)}, {vr(PB+n,2)}, {vr(PB+16+n,2)}')
                ng = ' neg_lo:[1,0,0] neg_hi:[1,0,0]' if half else ''
                for n in range(0, 8, 2): e(f'v_pk_fma_f32 {vr(PB+n,2)}, {vr(PB+n,2)}, {vr(rr-1,2)}, {vr(XT+n,2)} op_sel:[0,1,0]{ng}')
            else:
                for pw in range(1, 4):
                    k.wait(lg=f'p{pw}')
                    for n in range(8): e(f'v_add_f32 v{PB+n}, v{PB+n}, v{PB+8*pw+n}')
                for n in range(8): e(f'v_and_b32 v{PB+8+n}, s{sFF}, v{x + n//2}' if n & 1 else f'v_lshlrev_b32 v{PB+8+n}, 16, v{x + n//2}')
                for n in range(8): e(f'v_fma_f32 v{PB+n}, {"-" if half else ""}v{rr}, v{PB+n}, v{PB+8+n}')
            for m in range(4): e(f'v_cvt_pk_bf16_f32 v{x+m}, v{PB+2*m}, v{PB+2*m+1}')
            if half == 0:
                k.vmem(f'buffer_store_dwordx4 {vr(x,4)}, v{vo}, {sr(sWS,4)}, s{sMK+4+T} offen sc1', 'xst')
                a, b, c = PB + 16, PB + 17, PB + 18
                e(f'v_add_f32 v{a}, v{PB}, v{PB+1}'); e(f'v_mul_f32 v{b}, v{PB}, v{PB}'); e(f'v_fmac_f32 v{b}, v{PB+1}, v{PB+1}')
                for n in range(2, 8): e(f'v_add_f32 v{a}, v{a}, v{PB+n}'); e(f'v_fmac_f32 v{b}, v{PB+n}, v{PB+n}')
                e(f'v_and_b32 v{c}, 0x70, v{vL16}'); e(f'v_lshrrev_b32 v{c+1}, 5, v{vL}')
                e(f'v_permlane32_swap_b32 v{a}, v{b}'); e(f'v_add_f32 v{a}, v{a}, v{b}'); e(f'v_mov_b32 v{b}, v{a}'); e(f'v_lshl_add_u32 v{c}, v{c+1}, 2, v{c}')
                e(f'v_permlane16_swap_b32 v{a}, v{b}'); e(f'v_add_f32 v{a}, v{a}, v{b}')
                e(f'v_add_f32_dpp v{a}, v{a}, v{a} row_ror:8 row_mask:0xf bank_mask:0xf')
                k.call(lambda: (e('s_mov_b32 exec_lo, 0xff\ns_mov_b32 exec_hi, 0xff'), k.vmem(f'buffer_store_dword v{a}, v{c}, {sr(sWS,4)}, s{sMK+6+T} offen sc1', 'xst'), e('s_mov_b64 exec, -1')), 's', 16)
            else: k.vmem(f'buffer_store_dwordx4 {vr(x,4)}, v{vo}, {sr(sOUT,4)}, s{sMK+4+T} offen' + (' sc1' if OPT['outsc'] >> T & 1 else ''), 'xst')
        return ops + [None] + rec(body)
    for T in range(2):
        sl = []; CUR[0] = T
        for pos, (kk, v) in enumerate(ORD[T]):
            jp, i = kk >> 2, kk & 3
            if True:
                A = ACC2(T, v); wr = w2reg(kk, v)
                def mf(A=A, wr=wr, kk=kk, v=v, jp=jp, i=i):
                    if wr is None: k.wait(lg=f'A{kk}{v}')
                    elif half == 0 and T == 0:
                        assert ws.sent > 28 + kk; k.wait(vm=f'w{28+kk}')
                    a = rn(wr, 4) if wr else vr(AR(kk, v), 4)
                    e(f'v_mfma_f32_32x32x16_bf16 {vr(A,16)}, {a}, {vr(HB[T,jp]+4*i,4)}, {vr(A,16) if kk else 0}')
                pre, post = [], []
                if i == 0 and v == 0: pre.append(Op('s', 0, lambda jp=jp, T=T: ls(f'g{half}.{T}{jp}')))
                if half == 0 and T == 0 and v == 0: pre.append(Op('ds', 0, lambda kk=kk: ws.force(116 + 2*kk)))
                if pos + 4 < 56 and ORD[T][pos + 4][0] >= 17: pre.append(aread(*ORD[T][pos + 4]))
                pre.append(hpace(116 + 56*T + 2*kk + v))
                if jp < 6 and not OPT['noh'] & 2: post += hcheck(T, jp + 1)[2*i + v]
                sl.append([[Op('mfma', 8, mf)], pre, post])
        if T == 0: k.slots(sl[:26], rec(lambda: (half or OPT['cntlate'] or cnt_check(vT1 + 1, 1), g2addr())), 24); k.slots(sl[26:], rec(g2more), 28)
        else:
            k.bg_flush(); assert half or ws.ni == 56
            q = [None, None]
            q += rec(lambda: rrd(0))
            if half == 0 and OPT['cntlate']: sl[9][2] += rec(lambda: cnt_check(vT2 + 1))
            for c in range(8): q += rec(lambda: rwr(0, c)) + [None, None]
            q += [Op('s', 0, lambda: CHECKED[0])] + rec(lambda: (k.wait(lg='rw'), e('s_barrier'))) + red_final(0, B[2], False) + [None] + rec(lambda: (e('s_barrier'), rrd(1)))
            x = vR + 4
            un = rec(lambda: [e(f'v_and_b32 v{B[7]+n}, s{sFF}, v{x + n//2}' if n & 1 else f'v_lshlrev_b32 v{B[7]+n}, 16, v{x + n//2}') for n in range(8)])
            sl[52][2] += un[:5]; sl[53][2] += un[5:]; sl[54][2] += rec(lambda: rwr(1, 0)); sl[55][2] += rec(lambda: rwr(1, 1))
            k.slots(sl, q, 51)
        log(f'g2({T}) done')
        if OPT['fine'] & 2 and T == 0: stamp(f'D{half}.g20')
    stamp(f'D{half}.g2')
    for c in range(2, 8): rwr(1, c)
    ls(f'd{half}.w'); k.wait(lg='all'); e('s_barrier'); ls(f'd{half}.b')
    k.run(red_final(1, B[2], True))
    stamp(f'D{half}.st')
    if half == 0: epoch()
    k.refill = None
    return False

def only_stream():
    srds((sX0, sW1, sW2, sWS)); e(f's_lshl_b32 s49, s3, 2'); e(f's_add_u32 s49, s49, s{sW}')
    e(f'v_lshlrev_b32 v17, 7, v{vL}'); e(f's_mul_i32 s{sIL}, s49, {14*128}')
    e('s_waitcnt lgkmcnt(0)'); copy_ptrs(True); copy_ptrs(False)
    e(f's_mov_b32 s{sTS}, s50'); nts[0] = 1; tsn.append('start'); e(f's_mov_b32 s{sRETRY}, 20000')
    e('s_mov_b64 exec, 0x3fff')
    if OPT['touch'] & 2: k.vmem(f'buffer_load_dword v19, v17, {sr(sW1,4)}, s{sIL} offen', 'touch')
    if OPT['touch'] & 4: k.vmem(f'buffer_load_dword v19, v17, {sr(sW2,4)}, s{sIL} offen', 'touch')
    e('s_mov_b64 exec, -1')
    stream_setup(); late_setup(); warm(0, 1); warm(1, 5)
    if OPT['touch'] & 8: k.wait(vm='touch')
    stamp('go'); ws.limit = 56; ws.lag = 9
    while ws.ni < 56 or ws.nd < 45:
        n = ws.nd; ws.refill(); k.bg_flush()
        if ws.nd != n and ws.nd % 7 == 0: stamp(f'nd{ws.nd}')
    k.wait(vm='all'); stamp('end'); finish_stamps(); e('s_endpgm')
def main():
    prologue()
    if OPT['only']: return only_stream()
    for half in range(2):
        HALF[0] = half
        phA(half)
        if stop(f'A{half}'): return
        phB(half)
        if ffn(half): return
        if stop(f'D{half}'): return
    finish_stamps()
    e('s_endpgm')
main()
k.tail.append('L_end:')
k.tail.append('s_endpgm')
txt, nops = finish(k, OPT['grid'], 256, LDS_SZ, verbose=OPT['verbose'] > 1, pads=PADS if OPT['pads'] else None)
print(txt)
print(f'; wait states added: {nops}; stamps: {",".join(tsn)}')
```

```python
import sys, struct, re
from kasm import *

OPT = dict(ts=0, stop='', verbose=0, hq_slot=90, t1_grp=4, grid=256, lag=7, perA=96, perB=96, perG=67, perH=70, rot=0, touch=1, pads=1, hpre=17, nx=8, nA=99, dA=60, nT=2, nK=26, nU=10, nE=10, nU0=0, nS=0, late=750, xack=0, uack=1, ud=500, outsc=0, xd=860, wt=0, usel=1, hsel=1, hl=14, np=2, sb=100, nB=4, csw=1, mrg=1, fb=12, ho=1, trim=1, je=3, stag=1, hack=1, ta=7, fl=-1, fc=-1, ja=3, fl2=2, fc2=2, fl3=10, fc3=21, sp=1, l2k=28, css=23, hB0=12, hB1=0, v2=0, w2t=0, imgb=8, wsc='sc1', pP=84, wG1=22, wG2=50, hG2=10, ssp=5, rt=0, clump=80, nbgA=1, nbgG=2, l2first=2, cntlate=1, pS=64, pA=72, pT=84, pK=76, pU=76, pE=80, n0=11, xs0=4, fillslot=6, e0=14, t1_slot=26, hord=0, hdl=14, lead=18, rot2=0, only=0, hq0=94,
           idleU=500, nostats=0, nofill=0, nocnt=0, fine=0, noh=0)
for a in sys.argv[1:]:
    key, val = a.split('=')
    OPT[key] = val if key in ('stop', 'amp', 'ls') else int(val)
AMP = OPT.get('amp')
if AMP: OPT['ts'] = 1
TS, STOP = OPT['ts'], OPT['stop']
TSI = 's_memtime' if TS == 2 else 's_memrealtime'

S, D, F = 2048, 448, 1792
XB = S * D * 2
WS_U1, WS_U2, WS_X2, WS_H = 0, XB, 2 * XB, 3 * XB
WS_SS = WS_H + S * F * 2
NR = 28 - 4*OPT['np']
WFS = (56 - NR) * 2048
WS_WF = WS_SS + 131072
WS_CS = WS_WF + 28 * WFS
WS_FL = WS_CS + 16384
WS_EP = WS_FL + 16384
WS_END = WS_EP + 64
WS_TS = 0x1000000
WS_DBG = 0x1100000
L_X = 0; L_RED = 28672; L_H = 0; L_ST = 64512
L_M = 65536; L_WA = L_M + 8192; WA_SZ = 22528
L_C = lambda half: 57344 if half else L_M
LDS_SZ = L_WA + 4 * WA_SZ
assert LDS_SZ <= 163840
NSLOT = 11
sX0, sW1, sW2, sOUT, sWS = 8, 12, 16, 20, 24
sW, sG, sP, sRB, sRETRY, sWA, sSO, sLO, sHI, sCI = 32, 33, 34, 35, 36, 37, 38, 39, 40, 41
sT = 42
sBG = 48
sMK = 52
sHS = 60
sIM, sIL = 67, 68
sFF = 69
sUO = 4
sRD = 96
sN = 28
sTS = 70
sDBG = 92
sRC = 100
sRO = 101
vL, vL16, vCS, vSa, vSb, vT1, vT2, vA = 0, 1, 2, 6, 7, 8, 10, 12
B = [16 + 16 * i for i in range(8)]; vR = 144
vCA, vSEL, vX = 240, 248, 252
def w1f(n, u): return ar(8 * n + 4 * u, 4)
def w2reg(kk, v):
    if kk < 4: return ('a', 224 + 8 * kk + 4 * v)
    if kk < 17: return ('v', 152 + 8 * (kk - 4) + 4 * v)
    return None
def rn(t, n): return ar(t[1], n) if t[0] == 'a' else vr(t[1], n)
fl = lambda x: '0x%08x' % struct.unpack('<I', struct.pack('<f', x))[0]

k = K(); e = k.e; rec = k.rec; k.clump = OPT['clump']
nts = [0]; tsn = []
def log(msg):
    if OPT['verbose']: print(f'; [{k.clk}] {msg} ni={ws.ni} nd={ws.nd} cs={ws.nc}', file=sys.stderr)
LS = OPT.get('ls')
def ls(name):
    if TS and LS and re.fullmatch(LS, name):
        i = nts[0]; nts[0] += 1; tsn.append(name); assert i < 11
        k._emit(f'{TSI} s[{sTS+2*i}:{sTS+2*i+1}]')
def stamp(name):
    log(name)
    if LS: return ls(name)
    if not TS or (AMP and name != AMP) or ('half' in OPT and name[1] == str(1 - OPT['half']) and name != 'D0.st'): return
    i = nts[0]; nts[0] += 1; tsn.append(name); assert i < 22
    k.wait(lg='all')
    e(f'{TSI} s[50:51]\ns_waitcnt lgkmcnt(0)\ns_mov_b32 s{sTS+i}, s50')
def finish_stamps():
    if not TS: return
    if AMP:
        if AMP[0] == 'H' and not k.in_tail: return
        if AMP[0] == 'R': e(f's_bfe_u32 s{sTS+1}, s{sRC}, {0x40000 + 4*int(AMP[1])}'); e(f's_mul_i32 s{sTS+1}, s{sTS+1}, 100'); e(f's_mov_b32 s{sTS}, 0')
        if not OPT.get('ampall'): e('s_cmp_lg_u32 s2, 100'); e('s_cbranch_scc1 L_exit')
        e(f's_sub_u32 s44, s{sTS+1}, s{sTS}'); e('s_min_u32 s44, s44, 10000'); e('s_mul_i32 s44, s44, 20')
        e('s_memrealtime s[50:51]'); e('s_waitcnt lgkmcnt(0)'); e('s_add_u32 s44, s44, s50')
        e('L_amp:'); e('s_memrealtime s[50:51]'); e('s_waitcnt lgkmcnt(0)'); e('s_sub_u32 s45, s50, s44'); e('s_cmp_lt_i32 s45, 0'); e('s_cbranch_scc1 L_amp')
        return
    e('v_mov_b32 v16, 0')
    e('s_waitcnt lgkmcnt(0)')
    for i in range(nts[0]): e(f'v_writelane_b32 v16, s{sTS + (2*i if LS and not k.in_tail else i)}, {i}')
    e(f'v_writelane_b32 v16, s{sRETRY}, 63'); e(f'v_writelane_b32 v16, s{sRC}, 62')
    e(f's_lshl_b32 s{sT}, s2, 2'); e(f's_add_u32 s{sT}, s{sT}, s{sW}'); e(f's_lshl_b32 s{sT}, s{sT}, 8'); e(f's_add_u32 s{sT}, s{sT}, {WS_TS}')
    e(f'v_lshlrev_b32 v17, 2, v{vL}')
    e(f'buffer_store_dword v16, v17, {sr(sWS,4)}, s{sT} offen')
def stop(name, dump_lds=0):
    if STOP != name: return False
    k.bg_period = None
    k.wait(vm='all', lg='all'); e('s_barrier')
    if dump_lds:
        e(f's_lshl_b32 s{sT}, s{sW}, 10'); e(f'v_add_u32 v20, s{sT}, v{vL16}')
        e(f's_lshl_b32 s{sT}, s2, 16'); e(f's_add_u32 s{sT}, s{sT}, {WS_DBG}')
        for i in range(dump_lds // 4096):
            e(f'ds_read_b128 v[16:19], v20'); e('s_waitcnt lgkmcnt(0)')
            e(f'buffer_store_dwordx4 v[16:19], v20, {sr(sWS,4)}, s{sT} offen'); e('s_nop 1'); e('v_add_u32 v20, 4096, v20')
    finish_stamps(); e('s_endpgm')
    return True

RCLS = {'f0': 0 if 'rf' not in OPT or OPT['rf'] == 0 else 7, 'f1': 0 if 'rf' not in OPT or OPT['rf'] == 1 else 7, 'f2': 0 if 'rf' not in OPT or OPT['rf'] == 2 else 7, 'cnt': 0 if 'rf' not in OPT or OPT['rf'] == 3 else 7, 'U0': 1, 'h0': 2, 'x2': 3, 'img': 4, 'U1': 5, 'h1': 6}
def retry_site(check, reload, name, br='s_cbranch_vccnz', after=None):
    def f():
        slow, ok = k.lab('slow_' + name), k.lab('ok_' + name)
        e(f'{br} {slow}'); e(f'{ok}:')
        k.begin_tail()
        e(f'{slow}:')
        e(f's_cmp_eq_u32 s{sRETRY}, 0'); e(f's_cbranch_scc1 {ok}'); e(f's_sub_u32 s{sRETRY}, s{sRETRY}, 1')
        if TS: e(f's_add_u32 s{sRC}, s{sRC}, {1 << 4*RCLS[name.split("_")[0]]}')
        reload(); k.wait(vm='all', lg='all'); check(); k.wait(vm='all', lg='all')
        e(f'{br} {slow}')
        if after: after()
        e('s_nop 1'); e(f's_branch {ok}')
        k.end_tail()
    k.call(f, 's', 20)
def cnt_load(reg, i=1):
    def f():
        e(f'v_lshlrev_b32 v{reg}, 7, v{vL}'); e(f's_lshl_b32 s{sBG}, s{sW}, 10'); e(f's_add_u32 s{sBG}, s{sBG}, {WS_FL + 12288}')
        e('s_mov_b64 exec, 0xff'); k.vmem(f'buffer_load_dword v{reg}, v{reg}, {sr(sWS,4)}, s{sBG} offen sc1', 'cnt'); e('s_mov_b64 exec, -1')
    k.call(f, 'v', 24)
def cnt_check(reg, i=1):
    chk = lambda: e(f'v_cmp_ne_u32 {sr(sT+4,2)}, s{sN}, v{reg}\ns_nop 0\ns_and_b32 s{sT+4}, s{sT+4}, 0xff')
    k.call(lambda: (k.wait(vm='cnt'), chk(), retry_site(chk, lambda: cnt_load(reg), 'cnt_1', 's_cbranch_scc1'), CHECKED.append(1)), 'v', 36)
CHECKED = []
def flag_load(i=0):
    def f():
        e(f's_lshl_b32 s49, s{sW}, 7'); e(f'v_lshlrev_b32 v{vCS}, 9, v{vL}' if i else f'v_lshlrev_b32 v{vCS}, 9, s{sG}'); e(f's_add_u32 s49, s49, {WS_FL + 4096*i}')
        e(f's_mov_b64 exec, {0x7f if i else 1}'); k.vmem(f'buffer_load_dword v{vCS+1}, v{vCS}, {sr(sWS,4)}, s49 offen sc1', 'flag'); e('s_mov_b64 exec, -1')
    k.call(f, 'v', 24)
def flag_check(i=0):
    chk = lambda: e(f'v_cmp_ne_u32 vcc, s{sN}, v{vCS+1}\ns_nop 0\ns_and_b64 vcc, vcc, {0x7f if i else 1}')
    k.call(lambda: (k.wait(vm='flag'), chk(), retry_site(chk, lambda: flag_load(i), f'f{i}_x', 's_cbranch_scc1')), 'v', 36)
def cs_load():
    def f():
        e(f's_lshl_b32 s49, s{sG}, 2\ns_add_u32 s49, s49, s{sW}\ns_lshl_b32 s49, s49, 9\ns_add_u32 s49, s49, {WS_CS}\nv_and_b32 v{vSa}, 0x1f0, v{vL16}')
        assert ws.sent >= NR; k.vmem(f'buffer_load_dwordx4 {vr(vCS,4)}, v{vSa}, {sr(sWS,4)}, s49 offen sc1', 'cs')
    k.call(f, 's', 24)
def warm(site, first):
    def f():
        if OPT['pads']:
            e('s_mov_b64 exec, 0')
            for w in range(3): e(f's_cmp_eq_u32 s{sW}, {w}'); e(f's_cbranch_scc1 L_pad{first+w}')
            e(f's_branch L_pad{first+3}')
        elif site == 0: e('s_branch L_ret0')
        if site == 0: k.in_tail = True; helper(); k.in_tail = False
        e(f'L_ret{site}:'); e('s_mov_b64 exec, -1'); k.clk += 200
    k.call(f, 's', 250)
PADS = lambda p: 'L_ret0' if p <= 4 else f'L_pad{p+2}' if p <= 6 else 'L_ret1' if p <= 8 else f'L_pad{p+2}' if p <= 14 else 'L_ret2'

class Stream:
    def __init__(s): s.ni = 0; s.nd = 0; s.nc = 56; s.limit = 4; s.lag = 99
    def issue_ops(s):
        n = s.ni; s.ni += 1
        if n >= NR:
            kk = n - 28
            def ld(v):
                if v == 0 and n == NR: e(f's_lshl_b32 s{sSO}, s{sG}, 2\ns_add_u32 s{sSO}, s{sSO}, s{sW}\ns_mul_i32 s{sSO}, s{sSO}, {WFS}\ns_add_u32 s{sSO}, s{sSO}, {WS_WF}')
                if v == 0 and kk == 17: assert s.done == NR; k.wait(lg=f'tr{NR-1}')
                if v == 0 and (kk == 17 or kk > 17 and kk % 2 == 0): e(f's_add_u32 m0, s{sWA}, {(kk - kk % 2 - 17)*2048}')
                if v == 0 and n > NR and n % 2 == 0: e(f's_add_u32 s{sSO}, s{sSO}, 4096')
                t = w2reg(kk, v) if kk >= 0 else ('a', 8*n + 4*v); off = 2048*(n % 2) + 1024*v; tag = f'w{n}' if v else f'wa{n}'
                if t: k.vmem(f'buffer_load_dwordx4 {rn(t,4)}, v{vL16}, {sr(sWS,4)}, s{sSO} offen offset:{off} sc1', tag)
                else: k.vmem(f'buffer_load_dwordx4 v{vL16}, {sr(sWS,4)}, s{sSO} offen offset:{off} sc1 lds', tag)
                if v: s.sent = n + 1
            return [Op('vm', 8, lambda: ld(0), 1), Op('vm', 4, lambda: ld(1), 1)]
        srd = sr(sW1, 4)
        def a():
            if n >= NSLOT: assert s.done > n - NSLOT; k.wait(lg=f'tr{n-NSLOT}')
            elif n >= 4: k.wait(lg=f'xr{n-4}')
            e(f's_add_u32 m0, s{sWA}, {(n % NSLOT)*2048}')
            if n: e(f's_add_u32 s{sSO}, s{sSO}, {16*3584}')
            if n and n % 7 == 0 and OPT['rot']: e(f's_sub_u32 s{sBG}, s{sSO}, {D*3584}\ns_min_u32 s{sSO}, s{sSO}, s{sBG}')
            k.vmem(f'buffer_load_dwordx4 v{vSa}, {srd}, s{sSO} offen lds', f'wa{n}')
        def b(): k.vmem(f'buffer_load_dwordx4 v{vSb}, {srd}, s{sSO} offen offset:1024 lds', f'w{n}'); s.sent = n + 1
        return [Op('s', 12, a, 1), Op('vm', 4, b, 1)]
    def drain_ops(s):
        n = s.nd; s.nd += 1
        so = (n % NSLOT) * 2048
        def rd(u, h2):
            def f():
                assert s.sent > n; k.wait(vm=f'w{n}')
                if n < 28: dst, ad, off = ar(8*n + 4*u + 2*h2, 2), vT1 + u, so + 512*h2
                else:
                    t = w2reg(n - 28, u); dst, ad, off = rn((t[0], t[1] + 2*h2), 2), vT2 + u, so + 1024*h2
                k.ds(f'ds_read_b64_tr_b16 {dst}, v{ad} offset:{off}', f'tr{n}')
                if u and h2: s.done = n + 1
            return Op('ds', 4, f)
        return [rd(0, 0), rd(0, 1), rd(1, 0), rd(1, 1)]
    done = 0; sent = 0
    cs_on = 0; dmax = NR
    def free(s, n): return n - NSLOT < s.nd if n < NR else (n < 45 or s.nd == NR)
    def refill(s):
        can = s.ni < min(56, s.limit) and s.free(s.ni)
        if s.nd < min(NR, s.ni) and s.lag < 99 and (s.ni - s.nd > s.lag or (not can and s.ni > NR)): k.bg += s.drain_ops()
        elif can: k.bg += s.issue_ops()
    def ensure(s, n):
        while s.done <= n:
            if not k.bg:
                if s.ni <= n and s.free(s.ni): k.bg += s.issue_ops()
                else: k.bg += s.drain_ops()
            k.bg_step()
    use = staticmethod(lambda n: 2*n if n < 28 else 116 + 2*(n - 28))
    def force(s, slot):
        if s.sent < s.ni and s.use(s.sent) <= slot + OPT['lead']: k.bg_flush()
        while s.ni < 56 and s.use(s.ni) <= slot + OPT['lead']:
            k.bg_flush()
            while not s.free(s.ni): k.bg += s.drain_ops()
            k.bg += s.issue_ops(); k.bg_flush()
        n = max([-1] + [i for i in range(NR) if s.use(i) <= slot + 4])
        if n >= 0: s.ensure(n)
    def cs_op(s):
        n, u = s.nc >> 1, s.nc & 1; s.nc += 1
        def g():
            assert s.done > n; k.wait(lg=f'tr{n}')
            acc = vr(vCA + 4*u, 4)
            e(f'v_mfma_f32_16x16x32_bf16 {acc}, {vr(vSEL,4)}, {w1f(n, u)}, {acc if n else 0}')
        return Op('mfma', 16, g)
    def cs_flush(s, maxn=99, behind=0):
        while s.nc < 2*min(28, s.done - behind) and maxn > 0: k.run([s.cs_op()]); maxn -= 1
ws = Stream()
def src_off(stride):
    e(f'v_lshrrev_b32 v{vSa}, 3, v{vL}'); e(f'v_lshrrev_b32 v{vSb}, 2, v{vL}'); e(f'v_and_b32 v{vSb}, 4, v{vSb}')
    e(f'v_xor_b32 v{vSb}, v{vSb}, v{vL}'); e(f'v_and_b32 v{vSb}, 7, v{vSb}'); e(f'v_mul_u32_u24 v{vSa}, {stride}, v{vSa}')
    e(f'v_lshl_add_u32 v{vSa}, v{vSb}, 4, v{vSa}'); e(f'v_add_u32 v{vSb}, {8*stride-1024}, v{vSa}')
def tr_addr(dst, sh, t):
    e(f'v_bfe_u32 v{t}, v{vL}, 2, 2'); e(f'v_bfe_u32 v{t+1}, v{vL}, 3, 1'); e(f'v_bfe_u32 v{t+2}, v{vL}, 4, 1'); e(f'v_and_b32 v{t+3}, 3, v{vL}')
    e(f'v_lshlrev_b32 v{t}, 7, v{t}'); e(f'v_lshl_add_u32 v{t}, v{t+1}, 6, v{t}'); e(f'v_lshl_add_u32 v{t}, v{t+2}, 5, v{t}'); e(f'v_lshl_add_u32 v{t}, v{t+3}, 3, v{t}')
    e(f'v_add_u32 v{t}, s{sWA}, v{t}'); e(f'v_lshrrev_b32 v{t+1}, 5, v{vL}')
    e(f'v_lshl_add_u32 v{dst}, v{t+1}, {sh}, v{t}'); e(f'v_xor_b32 v{dst+1}, 64, v{dst}')
def stream_setup():
    src_off(3584)
    rot = OPT['rot']
    e(f's_lshl_b32 s{sSO}, s{sG}, 2'); e(f's_add_u32 s{sSO}, s{sSO}, s{sW}'); e(f's_lshl_b32 s{sSO}, s{sSO}, 7')
    if rot:
        e(f's_and_b32 s{sRO}, s2, 3' if rot == 3 else f's_add_u32 s{sRO}, s2, s{sW}\ns_and_b32 s{sRO}, s{sRO}, 3'); e(f's_mul_i32 s{sT}, s{sRO}, {7*16*3584}'); e(f's_add_u32 s{sSO}, s{sSO}, s{sT}')
def stream_setup2(t):
    tr_addr(vT1, 10, t); e(f'v_add_u32 v{vT2}, s{sWA}, v{vL16}')
def late_setup():
    e(f's_mul_i32 s{sT}, s{sP}, {2*7*16384}'); e(f's_lshl_b32 s{sT+1}, s{sW}, 12'); e(f's_add_u32 s{sT}, s{sT}, s{sT+1}'); e(f's_add_u32 s{sT}, s{sT}, {WS_H}')
    e({0: f's_mov_b32 s{sT+3}, 1', 1: f's_add_u32 s{sT+3}, s{sCI}, 1', 2: f's_and_b32 s{sT+3}, s2, 3\ns_add_u32 s{sT+3}, s{sT+3}, 1'}[OPT['rot2']]); e(f's_mov_b32 s{sT+1}, s{sG}')
    for jp in range(7):
        if jp: e(f's_add_u32 s{sT+1}, s{sT+1}, s{sT+3}'); e(f's_sub_u32 s{sT+2}, s{sT+1}, 7'); e(f's_min_u32 s{sT+1}, s{sT+1}, s{sT+2}')
        e(f's_lshl_b32 s{sT+2}, s{sT+1}, 14'); e(f's_add_u32 s{sHS+jp}, s{sT}, s{sT+2}')

def prologue():
    e('s_load_dwordx2 s[8:9], s[0:1], 0'); e('s_load_dwordx4 s[4:7], s[0:1], 48')
    e('s_load_dwordx2 s[20:21], s[0:1], 64'); e('s_load_dwordx2 s[24:25], s[0:1], 80')
    e('s_getpc_b64 s[46:47]'); e('L_pc:')
    e('v_lshrrev_b32 v1, 6, v0'); e('v_and_b32 v0, 63, v0'); e('s_bfe_u32 s3, s2, 0x50003'); e(f'v_readfirstlane_b32 s{sW}, v1')
    e('v_lshl_add_u32 v2, s3, 2, v1'); e('v_lshl_add_u32 v2, v0, 7, v2'); e('v_lshlrev_b32 v2, 7, v2'); e('v_min_u32 v2, L_end-L_pc, v2')
    e('s_mov_b64 exec, 7'); k.vmem('global_load_dword v3, v2, s[46:47]', 'touch'); e('s_mov_b64 exec, -1')
    e(f'v_lshlrev_b32 v{vL16}, 4, v0')
    e('s_sub_u32 s3, s2, 32'); e('s_cmp_ge_u32 s3, 224'); e('s_cbranch_scc1 L_helper')
    if TS: e(f'{TSI} s[50:51]'); e(f's_mov_b32 s{sRC}, 0')
    e(f's_lshr_b32 s{sT}, s3, 3'); e(f's_mul_i32 s{sCI}, s{sT}, 37'); e(f's_lshr_b32 s{sCI}, s{sCI}, 8')
    e(f's_mul_i32 s{sG}, s{sCI}, 7'); e(f's_sub_u32 s{sG}, s{sT}, s{sG}')
    e(f's_and_b32 s{sP}, s3, 7'); e(f's_lshl_b32 s{sP}, s{sP}, 1'); e(f's_lshr_b32 s{sT}, s{sCI}, 1'); e(f's_add_u32 s{sP}, s{sP}, s{sT}')
    e(f's_sub_u32 s{sT}, 32, s{sP}'); e(f's_cmp_eq_u32 s{sP}, 0'); e(f's_cselect_b32 s{sT}, 16, s{sT}')
    e(f's_bitcmp1_b32 s{sCI}, 0'); e(f's_cselect_b32 s{sP}, s{sT}, s{sP}')
    e(f's_mul_i32 s{sWA}, s{sW}, {WA_SZ}'); e(f's_add_u32 s{sWA}, s{sWA}, {L_WA}')
def srds(which):
    for r, n in ((sX0, XB), (sW1, D*F*2), (sW2, D*F*2), (sOUT, XB), (sWS, 0x2000000 if (TS or STOP) else WS_END)):
        if r in which: e(f's_mov_b32 s{r+2}, {n}'); e(f's_mov_b32 s{r+3}, 0x20000')
def copy_ptrs(first):
    if first: e(f's_mov_b32 s{sW1}, s4'); e(f's_mov_b32 s{sW1+1}, s5')
    else:
        e(f's_mov_b32 s{sW2}, s6'); e(f's_mov_b32 s{sW2+1}, s7')

def helper():
    e('L_helper:')
    e('s_cmp_ge_u32 s2, 32'); e('s_cbranch_scc1 L_exit')
    srds((sW1, sW2, sWS))
    src_off(3584); e(f's_mul_i32 s{sIL}, s{sW}, 14336'); e(f's_mul_i32 s{sIM}, s{sW}, {16*3584}'); e(f's_lshl_b32 s{sT}, s2, 7'); e(f's_add_u32 s{sIM}, s{sIM}, s{sT}'); e(f's_mov_b32 s{sT+1}, {WS_EP}')
    e('s_waitcnt lgkmcnt(0)'); copy_ptrs(True); copy_ptrs(False)
    hs = [0]
    def hstamp(w=None):
        if TS and not AMP:
            if w is not None: e(f's_waitcnt vmcnt({w})')
            e(f'{TSI} s[50:51]\ns_waitcnt lgkmcnt(0)\ns_mov_b32 s{sTS+hs[0]}, s50'); hs[0] += 1
        elif AMP and AMP[0] == 'H':
            if hs[0] in (0, int(AMP[1])): e(f'{TSI} s[50:51]\ns_waitcnt lgkmcnt(0)\ns_mov_b32 s{sTS + (hs[0] > 0)}, s50')
            hs[0] += 1
    hstamp()
    if TS:
        for i in range(1, 5): e(f's_mov_b32 s{sTS+i}, s50')
    e(f'buffer_load_dwordx4 v[140:143], off, {sr(sWS,4)}, s{sT+1} sc1')
    e('s_cmp_ge_u32 s2, 28'); e('s_cbranch_scc1 L_hrest')
    for i in range(7):
        e(f's_add_u32 m0, s{sIL}, {2048*i}')
        if i: e(f's_add_u32 s{sIM}, s{sIM}, {64*3584}')
        e(f'buffer_load_dwordx4 v{vSa}, {sr(sW1,4)}, s{sIM} offen lds'); e(f'buffer_load_dwordx4 v{vSb}, {sr(sW1,4)}, s{sIM} offen offset:1024 lds')
    e('s_branch L_helper2')
    save = k.out; k.out = k.tail
    FB = OPT['fb']; FA = 112 - 7*FB; assert (4*FA + 28*FB)*8192 == 2*XB
    e('L_hrest:')
    if OPT['sp']:
        e(f's_sub_u32 s{sT}, s2, 28'); e(f's_lshl_b32 s{sT}, s{sT}, 2'); e(f's_add_u32 s{sT}, s{sT}, s{sW}'); e(f's_mul_i32 s{sT}, s{sT}, 112'); e(f'v_min_u32 v2, 55, v{vL}')
        for j in range(OPT['sp']):
            for hh in range(2):
                e(f'v_add_u32 v4, s{sT}, v2'); e(f'v_add_u32 v4, {56*hh}, v4'); e('v_lshrrev_b32 v8, 8, v4'); e(f'v_add_u32 v8, {1 + j}, v8'); e('v_subrev_u32 v9, 7, v8'); e('v_min_u32 v8, v8, v9')
                e('v_mul_u32_u24 v4, 896, v4'); e('v_lshl_add_u32 v4, v8, 7, v4'); e(f'buffer_load_dword v144, v4, {sr(sW2,4)}, 0 offen')
    e(f's_sub_u32 s{sT}, s2, 28'); e(f's_mul_i32 s{sT}, s{sT}, {FA*8192}'); e(f's_add_u32 s{sT}, s{sT}, {WS_U2}'); e(f's_mov_b32 s{sT+1}, {FA}'); e('s_waitcnt vmcnt(0)'); e('s_branch L_hfill2')
    e('L_helper2:')
    src_off(896); e(f's_mov_b32 s{sWA}, s{sIL}'); tr_addr(vT1, 10, 12)
    e(f's_mul_i32 s{sWA}, s{sW}, {WA_SZ}'); e(f's_add_u32 s{sWA}, s{sWA}, {L_WA}'); tr_addr(vT2, 9, 12)
    e(f's_lshl_b32 s{sT}, s2, 2'); e(f's_add_u32 s{sT}, s{sT}, s{sW}'); e(f's_mul_i32 s{sT}, s{sT}, {16*896}'); e(f's_lshr_b32 s{sT+1}, s2, 2')
    e(f's_mov_b32 s{sIM}, s{sT}'); e(f's_mov_b32 s{sIL}, s{sT+1}')
    def d2(j0, j1):
        for j in range(j0, j1):
            if j: e(f's_sub_u32 s{sIL}, s{sIL}, 1'); e(f's_min_u32 s{sIL}, s{sIL}, 6')
            e(f's_add_u32 m0, s{sWA}, {2048*j}'); e(f's_lshl_b32 s{sT+2}, s{sIL}, 7'); e(f's_add_u32 s{sT+2}, s{sT+2}, s{sIM}')
            e(f'buffer_load_dwordx4 v{vSa}, {sr(sW2,4)}, s{sT+2} offen lds'); e(f'buffer_load_dwordx4 v{vSb}, {sr(sW2,4)}, s{sT+2} offen offset:1024 lds')
    JE = OPT['je']; d2(0, JE)
    e(f's_waitcnt vmcnt({2*JE})')
    for i in range(7):
        for u in range(2):
            for h2 in range(2): e(f'ds_read_b64_tr_b16 {vr(16+8*i+4*u+2*h2,2)}, v{vT1+u} offset:{2048*i + 512*h2}')
    e(f's_mul_i32 s{sT}, s2, {WFS}'); e(f's_lshl_b32 s{sT+1}, s{sW}, 11'); e(f's_add_u32 s{sT}, s{sT}, s{sT+1}'); e(f's_add_u32 s{sT}, s{sT}, {WS_WF}')
    e(f's_mov_b32 s{sT+4}, 0x3f803f80'); e('v_mov_b32 v72, 0'); e('v_mov_b32 v73, 0'); e('s_waitcnt lgkmcnt(0)')
    NP = OPT['np']
    for i in range(7 - NP, 7):
        for u in range(2): e(f'buffer_store_dwordx4 {vr(16+8*i+4*u,4)}, v{vL16}, {sr(sWS,4)}, s{sT} offen offset:{1024*u} sc1')
        e(f's_add_u32 s{sT}, s{sT}, 8192')
    for i in range(7):
        for m in range(4):
            for u in range(2): e(f'v_dot2c_f32_bf16 v{72+u}, s{sT+4}, v{16+8*i+4*u+m}')
    e(f'v_lshlrev_b32 v4, 2, v{vL}'); e(f'v_add_u32 v4, {L_M}, v4'); e(f's_lshl_b32 s{sT}, s{sW}, 8'); e(f'v_add_u32 v2, s{sT}, v4')
    e('v_permlane32_swap_b32 v72, v73'); e('v_add_f32 v72, v72, v73'); e('ds_write_b32 v2, v72'); e('s_waitcnt lgkmcnt(0)'); e('s_barrier')
    e('ds_read2st64_b32 v[72:73], v4 offset0:0 offset1:1'); e('ds_read2st64_b32 v[74:75], v4 offset0:2 offset1:3')
    e(f'v_and_b32 v76, 0x1f0, v{vL16}'); e(f'v_lshrrev_b32 v2, 5, v{vL}'); e('v_lshl_add_u32 v76, v2, 3, v76'); e(f's_lshl_b32 s{sT}, s2, 9'); e(f's_add_u32 s{sT}, s{sT}, {WS_CS}')
    e('s_waitcnt lgkmcnt(0)'); e('v_add_f32 v72, v72, v73'); e('v_add_f32 v74, v74, v75'); e('v_add_f32 v72, v72, v74')
    e('v_cvt_pk_bf16_f32 v73, v72, v72'); e('v_and_b32 v74, 0xffff0000, v73'); e('v_sub_f32 v75, v72, v74'); e('v_cvt_pk_bf16_f32 v78, v74, v75'); e('v_and_b32 v79, 0xffff, v73')
    e(f's_cmp_lg_u32 s{sW}, 0'); e('s_cbranch_scc1 L_hnocs')
    e(f'buffer_store_dwordx2 v[78:79], v76, {sr(sWS,4)}, s{sT} offen sc1')
    e('L_hnocs:')
    e(f's_and_b32 s{sT}, s2, 3'); e(f's_mul_i32 s{sT}, s{sT}, {WFS}'); e(f's_lshl_b32 s{sT+1}, s{sW}, 11'); e(f's_add_u32 s{sT}, s{sT}, s{sT+1}'); e(f's_add_u32 s{sT}, s{sT}, {WS_WF + 8192*NP}')
    e(f's_lshr_b32 s{sT+1}, s2, 2'); e(f's_mov_b32 s{sT+4}, 0x80008000')
    JA = OPT['ja']
    e(f's_lshl_b32 s{sT+5}, s2, 7'); e(f's_add_u32 s{sT+5}, s{sT+5}, {WS_FL}')
    def reads(j0, j1, younger):
        for j in range(j0, j1):
            e(f's_waitcnt vmcnt({12 - 2*j + younger})')
            for v in range(2):
                for h2 in range(2): e(f'ds_read_b64_tr_b16 {vr(80+8*j+4*v+2*h2,2)}, v{vT2+v} offset:{2048*j + 1024*h2}')
        e('s_waitcnt lgkmcnt(0)')
    def stores(j0, j1):
        for j in range(j0, j1):
            if j: e(f's_sub_u32 s{sT+1}, s{sT+1}, 1'); e(f's_min_u32 s{sT+1}, s{sT+1}, 6'); e(f's_add_u32 s{sT}, s{sT}, 8192')
            e(f's_mul_i32 s{sT+2}, s{sT+1}, {4*WFS}'); e(f's_add_u32 s{sT+2}, s{sT+2}, s{sT}')
            for v in range(2):
                r = 80 + 8*j + 4*v; e(f'v_xor_b32 v{r+3}, s{sT+4}, v{r+3}'); e(f'buffer_store_dwordx4 {vr(r,4)}, v{vL16}, {sr(sWS,4)}, s{sT+2} offen offset:{1024*v} sc1')
    def flag(i, n=0):
        e(f's_waitcnt vmcnt({n})'); e('s_barrier'); e(f's_cmp_lg_u32 s{sW}, 0'); e(f's_cbranch_scc1 L_hsig{i}')
        e(f'v_lshlrev_b32 v145, 2, v{vL}'); e('s_mov_b32 exec_hi, 0'); e(f'buffer_store_dword v5, v145, {sr(sWS,4)}, s{sT+5} offen sc1'); e('s_mov_b32 exec_hi, -1')
        e(f'L_hsig{i}:'); e(f's_add_u32 s{sT+5}, s{sT+5}, 4096'); hstamp()
    e('v_not_b32 v5, v140'); flag(0)
    if OPT['ho'] == 0: d2(JE, 7); reads(0, JA, 0); stores(0, JA); reads(JA, 7, 2*JA); flag(1); stores(JA, 7)
    else:
        assert JA <= JE; reads(0, JA, 20); stores(0, JA); d2(JE, 7); flag(1, 2*(7 - JE)); reads(JA, 7, 0); stores(JA, 7)
    flag(2)
    def fills():
        e(f's_mul_i32 s{sT}, s2, {FB*8192}'); e(f's_add_u32 s{sT}, s{sT}, {WS_U2 + 4*FA*8192}'); e(f's_mov_b32 s{sT+1}, {FB}')
        e('L_hfill2:')
        if OPT['nofill']: e(f's_mov_b32 s{sT+1}, 1')
        for i in range(4): e(f'v_mov_b32 v{12+i}, -1')
        e(f's_lshl_b32 s{sT+2}, s{sW}, 10'); e(f'v_add_u32 v10, s{sT+2}, v{vL16}')
        e(f's_lshl_b32 s{sT+2}, s2, 12'); e(f's_add_u32 s{sT+2}, s{sT+2}, {WS_SS}'); e(f'buffer_store_dwordx4 v[12:15], v10, {sr(sWS,4)}, s{sT+2} offen sc1')
        e('L_fill:')
        for j in range(2): e(f'buffer_store_dwordx4 v[12:15], v10, {sr(sWS,4)}, s{sT} offen sc1'); e(f's_add_u32 s{sT}, s{sT}, 4096')
        e(f's_sub_u32 s{sT+1}, s{sT+1}, 1'); e(f's_cmp_lg_u32 s{sT+1}, 0'); e('s_cbranch_scc1 L_fill')
        e(f's_lshl_b32 s{sT+5}, s2, 7'); e(f's_add_u32 s{sT+5}, s{sT+5}, {WS_FL + 12288}'); e('s_waitcnt vmcnt(0)'); e('v_not_b32 v5, v140')
        flag(3)
    if OPT['l2k'] < 28:
        k0 = OPT['l2k']
        e('s_cmp_ge_u32 s2, 24'); e('s_cbranch_scc1 L_hfill')
        e(f'v_min_u32 v2, 27, v{vL}'); e('v_lshlrev_b32 v2, 7, v2'); e(f's_mov_b32 s{sT}, {WS_FL + 4096}'); e(f's_mov_b32 s{sT+1}, 8')
        e('L_l2w:'); e(f'buffer_load_dword v4, v2, {sr(sWS,4)}, s{sT} offen sc1'); e(f's_sub_u32 s{sT+1}, s{sT+1}, 1'); e('s_cbranch_scc1 L_hfill')
        e('s_waitcnt vmcnt(0)'); e('v_cmp_ne_u32 vcc, v4, v5'); e('s_cbranch_vccnz L_l2w')
        e(f's_lshr_b32 s{sT}, s2, 3'); e(f's_lshl_b32 s{sT}, s{sT}, 2'); e(f's_add_u32 s{sT}, s{sT}, s{sW}'); e(f's_mul_i32 s{sT}, s{sT}, 38')
        e(f'v_min_u32 v2, 37, v{vL}'); e(f'v_add_u32 v2, s{sT}, v2'); e('v_min_u32 v2, 447, v2'); e('v_lshrrev_b32 v4, 4, v2'); e('v_and_b32 v2, 15, v2')
        e(f'v_mul_u32_u24 v4, {WFS}, v4'); e('v_lshl_add_u32 v4, v2, 7, v4'); e(f's_mov_b32 s{sT}, {WS_WF + 8192*NP + 2048*k0}'); e(f's_mov_b32 s{sT+1}, {28 - k0}')
        e('s_mov_b32 exec_hi, 0x3f')
        e('L_l2:'); e(f'buffer_load_dword v8, v4, {sr(sWS,4)}, s{sT} offen sc1'); e(f's_add_u32 s{sT}, s{sT}, 2048')
        e(f's_sub_u32 s{sT+1}, s{sT+1}, 1'); e(f's_cmp_lg_u32 s{sT+1}, 0'); e('s_cbranch_scc1 L_l2'); e('s_mov_b32 exec_hi, -1'); hstamp(0)
        e('L_hfill:')
    fills()
    if TS and (not AMP or AMP[0] == 'H'):
        n = nts[0]; nts[0] = 8; finish_stamps(); nts[0] = n
    e('L_exit:'); e('s_endpgm')
    k.out = save

HALF = [0]
def gen_H():
    ef, a0, tc, q8 = 72, 73, 74, 75
    P0, P1, PK = 76, 84, 92
    e(f'v_and_b32 v{ef}, 15, v{vL}'); e(f's_and_b32 s{sT}, s{sW}, 1'); e(f's_lshl_b32 s{sT+1}, s{sG}, 5'); e(f's_add_u32 s{sT}, s{sT}, s{sT+1}')
    e(f'v_lshl_add_u32 v{ef}, v{ef}, 1, s{sT}'); e(f'v_mov_b32 v{a0}, 224'); e(f'v_cmp_eq_u32 vcc, 0, v{ef}')
    e(f'v_lshrrev_b32 v{q8}, 4, v{vL}'); e(f's_lshl_b32 s{sT+1}, s{sT+1}, 1'); e(f'v_lshl_add_u32 v{q8}, v{q8}, 3, s{sT+1}')
    e(f'v_cndmask_b32 v{ef}, v{ef}, v{a0}, vcc'); e(f'v_cvt_f32_u32 v{q8}, v{q8}'); e(f'v_cvt_f32_u32 v{ef}, v{ef}')
    e(f's_cmp_ge_u32 s{sW}, 2\ns_cselect_b32 s{sT}, {fl(-112.0)}, 0')
    e(f'v_fma_f32 v{a0}, v{q8}, v{ef}, s{sT}'); e(f'v_mul_f32 v{ef}, {fl(1.0/448)}, v{ef}'); e(f'v_mul_f32 v{q8}, {fl(1.0/448)}, v{a0}')
    e(f'v_rndne_f32 v{q8}, v{q8}'); e(f'v_fmamk_f32 v{a0}, v{q8}, {fl(-448.0)}, v{a0}'); e(f'v_mul_f32 v{a0}, {fl(1.0/448)}, v{a0}')
    e(f'v_mul_f32 v{tc}, {fl(32.0)}, v{ef}'); e(f'v_cos_f32 v{tc}, v{tc}')
    e(f's_mul_i32 s{sT}, s{sW}, {7*1024}'); e(f's_add_u32 s{sT}, s{sT}, {L_H}'); e(f'v_add_u32 v{q8}, s{sT}, v{vL16}')
    e(f'v_add_f32 v{tc}, v{tc}, v{tc}')
    for kap in range(7):
        cur, prv = (P0, P1) if kap % 2 == 0 else (P1, P0)
        if HALF[0]: ls(f'H.{kap}')
        if kap < 2:
            for jj in range(8): e(f'v_fmamk_f32 v{cur+jj}, v{ef}, {fl(32.0*kap+jj)}, v{a0}')
            for jj in range(8): e(f'v_cos_f32 v{cur+jj}, v{cur+jj}')
        else:
            for jj in range(0, 8, 2): e(f'v_pk_fma_f32 {vr(cur+jj,2)}, {vr(tc,2)}, {vr(prv+jj,2)}, {vr(cur+jj,2)} op_sel_hi:[0,1,1] neg_lo:[0,0,1] neg_hi:[0,0,1]')
        pk = PK + 4*(kap % 2)
        for m in range(4): e(f'v_cvt_pk_bf16_f32 v{pk+m}, v{cur+2*m}, v{cur+2*m+1}')
        k.ds(f'ds_write_b128 v{q8}, {vr(pk,4)} offset:{1024*kap}', 'Hw')
def gen_F(dst, tb=100, T=120):
    mf, a0, t = tb, tb + 1, tb + 2
    e(f'v_bfe_u32 v{mf}, v{vL}, 1, 3'); e(f's_lshl_b32 s{sT}, s{sW}, 3'); e(f'v_add_u32 v{mf}, s{sT}, v{mf}')
    e(f'v_and_b32 v{t}, 1, v{vL}'); e(f'v_cvt_f32_u32 v{a0}, v{t}'); e(f'v_cmp_eq_u32 vcc, 0, v{mf}')
    e(f'v_lshlrev_b32 v{t}, 5, v{t}'); e(f'v_mul_f32 v{a0}, {fl(-0.25)}, v{a0}')
    e(f'v_cndmask_b32 v{mf}, v{mf}, v{t}, vcc'); e(f'v_cndmask_b32 v{a0}, v{a0}, 0, vcc')
    e(f'v_bfe_i32 v{t+1}, v{mf}, 0, 1'); e(f'v_cvt_f32_u32 v{mf}, v{mf}'); e(f'v_and_b32 v{t}, 48, v{vL}'); e(f'v_cvt_f32_u32 v{t}, v{t}'); e(f'v_and_b32 v{t+1}, 0x80008000, v{t+1}')
    e(f'v_mul_f32 v{mf}, {fl(1.0/128)}, v{mf}'); e(f'v_fma_f32 v{a0}, v{t}, v{mf}, v{a0}')
    for k1 in range(2):
        for jj in range(4): e(f'v_fmamk_f32 v{T+4*k1+jj}, v{mf}, {fl(2.0*k1 + 4.0*jj)}, v{a0}')
    for i in range(8): e(f'v_cos_f32 v{T+i}, v{T+i}')
    for k1 in range(2):
        for m in range(2): e(f'v_cvt_pk_f16_f32 v{dst+4*k1+m}, v{T+4*k1+2*m}, v{T+4*k1+2*m+1}')
    for k1 in range(2):
        for m in range(2): e(f'v_xor_b32 v{dst+4*k1+2+m}, v{dst+4*k1+m}, v{t+1}')
def gen_M(t0):
    j, s2f, ad = t0, t0 + 1, t0 + 2
    e(f'v_and_b32 v{j}, 31, v{vL}'); e(f'v_lshlrev_b32 v{j}, 6, v{j}')
    S2 = t0 + 36
    e(f'v_lshrrev_b32 v{s2f}, 5, v{vL}'); e(f's_add_u32 s{sT}, s{sW}, s{sG}'); e(f's_and_b32 s{sT}, s{sT}, 3'); e(f's_lshl_b32 s{sT}, s{sT}, 2')
    for jj in range(4):
        if jj: e(f's_add_u32 s{sT}, s{sT}, 1')
        e(f's_lshl_b32 s{sT+1}, s{sT}, 1'); e(f's_sub_u32 s{sT+1}, 32, s{sT+1}')
        if jj == 0: e(f's_cmp_eq_u32 s{sT}, 0\ns_cselect_b32 s{sT+1}, 16, s{sT+1}')
        e(f'v_mul_u32_u24 v{S2+jj}, s{sT+1}, v{s2f}'); e(f'v_add_u32 v{S2+jj}, s{sT}, v{S2+jj}'); e(f'v_cvt_f32_u32 v{S2+jj}, v{S2+jj}')
    e(f's_lshl_b32 s{sT}, s{sW}, 10'); e(f's_add_u32 s{sT}, s{sT}, {L_M}'); e(f'v_add_u32 v{ad}, s{sT}, v{vL16}')
    e(f's_cmp_eq_u32 s{sP}, 0\ns_cselect_b32 s{sT}, {fl(0.25)}, 0')
    for pq in range(2):
        T = t0 + 4 + 16*pq
        tf, a0 = T + 12, T + 13
        e(f'v_add_u32 v{tf}, s{sRB if pq else sP}, v{j}'); e(f'v_cvt_f32_u32 v{tf}, v{tf}'); e(f'v_mul_f32 v{tf}, {fl(1.0/2048)}, v{tf}')
        for jj in range(4): e(f'v_fma_f32 v{T+jj}, v{tf}, v{S2+jj}, s{sT}' if pq else f'v_mul_f32 v{T+jj}, v{tf}, v{S2+jj}')
        for jj in range(4): e(f'v_sin_f32 v{T+4+jj}, v{T+jj}')
        for jj in range(4): e(f'v_cos_f32 v{T+jj}, v{T+jj}')
        for jj in range(4): e(f'v_cvt_pk_f16_f32 v{T+8+jj}, v{T+jj}, v{T+4+jj}')
        k.ds(f'ds_write_b128 v{ad}, {vr(T+8,4)} offset:{4096*pq}', 'Mw')

def img_ops(half, T):
    ops = []; rho = sRB if T else sP
    if half == 0:
        for r in range(8):
            def f(r=r):
                if r == 0: e(f's_lshl_b32 s{sIM}, s{sW}, 9\ns_add_u32 s{sIM}, s{sIM}, s{rho}\ns_mul_i32 s{sIM}, s{sIM}, 896\ns_mul_i32 s{sIL}, s{sW}, {8*912}')
                else: e(f's_add_u32 s{sIM}, s{sIM}, 57344')
                e(f's_add_u32 m0, s{sIL}, {L_X + 912*(32*T + r)}'); e('s_mov_b32 exec_hi, 0x00ffffff')
                k.vmem(f'buffer_load_dwordx4 v{vL16}, {sr(sX0,4)}, s{sIM} offen lds', f'img{T}'); e('s_mov_b32 exec_hi, -1')
            ops.append(Op('s', 20, f, 1))
    else:
        for i in range(7):
            def f(i=i):
                if i == 0: e(f's_mul_i32 s{sIL}, s{sW}, 7168\ns_add_u32 m0, s{sIL}, {L_X + 28672*T}\ns_mul_i32 s{sIM}, s{rho}, 28672\ns_add_u32 s{sIM}, s{sIM}, s{sIL}\ns_add_u32 s{sIM}, s{sIM}, {WS_X2}')
                if i == 4: e(f's_add_u32 m0, m0, 4096\ns_add_u32 s{sIM}, s{sIM}, 4096')
                k.vmem(f'buffer_load_dwordx4 v{vL16}, {sr(sWS,4)}, s{sIM} offen offset:{1024*(i%4)} sc1 lds', f'img{T}')
            ops.append(Op('s' if i % 4 == 0 else 'vm', 4, f, 1))
    return ops

XF = lambda kap: 16 + 4 * kap
BORD = [0, 3, 4, 1, 5, 2, 6]
IMG_LATE = []; ADR = []
SX = [0, 1, 3, 4, 5, 6, 7]
def x2_loads(first):
    for kp in range(first, 7):
        for kap in (kp, kp + 7):
            k.vmem(f'buffer_load_dwordx4 {vr(XF(kap),4)}, v{vL16}, {sr(sWS,4)}, s{SX[kap//2]} offen offset:{1024*(kap%2)} sc1', f'x{kap}')
def phA(half):
    aT = [72, 76, 84, 88]; aHi = {1: 80, 3: 92}; aS, aG = 96, 100
    HR = [104, 120]; ones = 136; Ff = 140; t = 148
    vx, vh, vtr, vu, vcw, k1 = vA, vL16, vA + 2, vA + 3, 150, 151
    lc = L_C(half); vHS = vT2 + 1; aH = aG if half else 164
    def misc():
        if half == 0:
            mk = [0x1000010000100001, 0x2000020000200002, 0x4000040000400004, 0x8000080000800008]
            for i in range(4): e(f's_mov_b32 s{sMK+2*i}, {mk[i] & 0xffffffff:#x}'); e(f's_mov_b32 s{sMK+2*i+1}, {mk[i] >> 32:#x}')
        else: e(f's_mov_b32 s{sMK}, -1'); e(f's_mov_b32 s{sMK+1}, 0xffff')
        e(f'v_and_b32 v{t}, 15, v{vL}'); e(f'v_lshrrev_b32 v{t+1}, 4, v{vL}');
        if OPT['csw']: e(f'v_lshrrev_b32 v{vtr}, 2, v{t}'); e(f'v_xor_b32 v{vtr}, v{vtr}, v{t+1}'); e(f'v_lshlrev_b32 v{vcw}, 5, v{t}'); e(f'v_lshl_add_u32 v{vcw}, v{vtr}, 3, v{vcw}')
        else: e(f'v_lshlrev_b32 v{vcw}, 5, v{t}'); e(f'v_lshl_add_u32 v{vcw}, v{t+1}, 3, v{vcw}')
        e(f's_lshl_b32 s{sT}, s{sW}, 9'); e(f's_add_u32 s{sT}, s{sT}, {lc}'); e(f'v_add_u32 v{vcw}, s{sT}, v{vcw}')
        e(f's_lshl_b32 s{sT}, s{sW}, 2'); e(f'v_add_u32 v{vu}, s{sT}, v{t+1}'); e(f'v_cmp_eq_u32 vcc, 0, v{vu}')
        e(f'v_mul_u32_u24 v{vu}, {2*57344}, v{vu}'); e(f'v_lshl_add_u32 v{vu}, v{t}, 4, v{vu}'); e(f'v_cndmask_b32 v{k1}, -1.0, 0, vcc')
        e(f's_and_b32 s{sT+4}, s2, 7'); e(f's_lshl_b32 s{sT+4}, s{sT+4}, 2'); e(f's_add_u32 s{sT+4}, s{sT+4}, s{sCI}'); e(f's_mul_i32 s{sT+4}, s{sT+4}, 7'); e(f's_add_u32 s{sT+4}, s{sT+4}, s{sG}'); e(f's_lshl_b32 s{sT+4}, s{sT+4}, 8'); e(f's_add_u32 s{sT+4}, s{sT+4}, {WS_U2 if half else WS_U1}')
        e(f's_add_u32 s{sT+5}, s{sT+4}, 57344'); e(f'v_xor_b32 v{vtr}, v{vL}, v{t+1}' if OPT['csw'] else f'v_mov_b32 v{vtr}, v{vL}'); e(f'v_lshlrev_b32 v{vtr}, 3, v{vtr}'); e(f'v_add_u32 v{vtr}, {lc}, v{vtr}')
    hread = lambda kp: rec(lambda: [k.ds(f'ds_read_b128 {vr(HR[kp%2]+4*tl,4)}, v{vh} offset:{L_H + (7*tl+kp)*1024}', f'H{kp}{tl}') for tl in (1, 3, 0, 2)])
    st_load = lambda: k.vmem(f'buffer_load_dwordx4 {vr(ones,4)}, v{vL16}, {sr(sWS,4)}, s49 offen sc1', 'ss')
    if half == 0:
        va, vb = vX, vX + 1
        srds((sX0,))
        e(f'v_lshrrev_b32 v{va}, 3, v{vL}'); e(f'v_lshrrev_b32 v{vb}, 4, v{vL}'); e(f'v_xor_b32 v{vb}, v{vb}, v{vL}'); e(f'v_and_b32 v{vb}, 7, v{vb}')
        e(f'v_mul_u32_u24 v{va}, 57344, v{va}'); e(f'v_lshl_add_u32 v{va}, v{vb}, 4, v{va}')
        e(f'v_xor_b32 v{vb}, 64, v{va}'); e(f'v_add_u32 v{vb}, {8*57344-1024}, v{vb}')
        e(f's_lshr_b32 s{sT}, s{sW}, 1'); e(f's_lshl_b32 s{sT}, s{sT}, 5'); e(f's_add_u32 s{sT}, s{sT}, s{sP}')
        e(f's_and_b32 s{sT+1}, s{sW}, 1'); e(f's_lshl_b32 s{sT+1}, s{sT+1}, 10'); e(f's_add_u32 s{sT}, s{sT}, s{sT+1}'); e(f's_mul_i32 s3, s{sT}, 896')
        e(f's_lshl_b32 s{sIM}, s{sG}, 7')
        def xdma(i):
            b = BORD[i]
            def a():
                if b: e(f's_add_u32 s{sBG}, s{sIM}, {128*b}\ns_sub_u32 s{sIL}, s{sBG}, 896\ns_min_u32 s{sBG}, s{sBG}, s{sIL}')
                e(f's_add_u32 m0, s{sWA}, {8192 + 2048*i}\ns_add_u32 s{sBG}, s3, s{sBG if b else sIM}')
                if i == 0:
                    if OPT['rt']:
                        e(f'v_lshl_add_u32 v4, s{sG}, 4, v{vL}'); e('v_mul_u32_u24 v5, 37, v4'); e('v_lshrrev_b32 v5, 8, v5') if False else None
                        e('v_mul_u32_u24 v5, 9363, v4'); e('v_lshrrev_b32 v5, 16, v5'); e(f'v_mul_u32_u24 v5, {57344-896}, v5'); e('v_lshl_add_u32 v4, v4, 7, v5')
                    e('s_waitcnt lgkmcnt(0)')
                    if TS: e(f's_mov_b32 s{sTS}, s50'); nts[0] = 1; tsn.append('start')
                    if OPT['rt']: e('s_mov_b64 exec, 0xffff'); k.vmem(f'buffer_load_dword v5, v4, {sr(sX0,4)}, s3 offen', 'touch'); e('s_mov_b64 exec, -1')
                k.vmem(f'buffer_load_dwordx4 v{va}, {sr(sX0,4)}, s{sBG} offen lds', f'xa{b}')
            return [Op('s', 24, a), Op('vm', 4, lambda: k.vmem(f'buffer_load_dwordx4 v{vb}, {sr(sX0,4)}, s{sBG} offen offset:1024 lds', f'xb{b}'))]
        xs = []
        for i in range(7): xs += xdma(i)
        k.run(xs[:4]); t0 = k.clk
        if OPT['fine'] & 1: stamp('iss')
        def rest():
            copy_ptrs(True); srds((sW1, sWS)); e(f's_sub_u32 s{sRB}, 64, s{sP}'); e(f's_cmp_eq_u32 s{sP}, 0\ns_cselect_b32 s{sRB}, 32, s{sRB}')
            gen_H()
            for i in range(4): e(f'v_mov_b32 v{ones+i}, 0x3f803f80')
            e(f'v_and_b32 v{t}, 15, v{vL}'); e(f'v_lshrrev_b32 v{t+1}, 4, v{vL}')
            e(f'v_lshrrev_b32 v{vx}, 1, v{t}'); e(f'v_xor_b32 v{vx}, v{vx}, v{t+1}'); e(f'v_lshlrev_b32 v{t}, 7, v{t}'); e(f'v_lshl_add_u32 v{t}, v{vx}, 4, v{t}')
            e(f's_add_u32 s{sT}, s{sWA}, 8192'); e(f'v_add_u32 v{vx}, s{sT}, v{t}'); e(f'v_xor_b32 v{vx+1}, 64, v{vx}')
            stream_setup()
            if OPT['trim'] < 2: warm(0, 1)
            if not OPT['trim']: rest2()
        def rest2():
            stream_setup2(152); copy_ptrs(False); srds((sW2, sOUT))
            e(f's_mov_b32 s{sRETRY}, 20000'); e(f's_mov_b32 s{sLO}, 0x3f80'); e(f's_mov_b32 s{sHI}, 0x3f800000'); e(f's_mov_b32 s{sFF}, 0xffff0000')
            misc(); gen_F(Ff, 152, 156); e(f'v_mov_b32 v{vX+2}, 0x10001')
        nx = OPT['nx']
        if OPT.get('xprobe'):
            k.run(xs[4:nx]); ls('p.i'); k.wait(vm='xb0'); ls('p.0'); k.wait(vm='xb3'); ls('p.1'); k.run(xs[nx:]); k.wait(vm='xb1'); ls('p.3'); k.wait(vm='xb6'); ls('p.6'); xs = xs[:4]
        fill = k.weave(xs[4:nx], rec(rest), 64)
        while fill and k.clk < t0 + OPT['late']: fill.pop(0)()
        epl = Op('s', 16, lambda: (e(f's_mov_b32 s{sBG}, {WS_EP}'), e('s_mov_b64 exec, 1'), k.vmem(f'buffer_load_dwordx4 {vr(vSEL,4)}, off, {sr(sWS,4)}, s{sBG} sc1', 'ep'), e('s_mov_b64 exec, -1')), 1)
        k.bg += [Op(o.kind, o.cost, o.fn, 1) for o in xs[nx:]] + [epl]
        def touch():
            e(f's_sub_u32 s{sBG}, s2, 32\ns_lshl_b32 s{sBG}, s{sBG}, 2\ns_add_u32 s{sBG}, s{sBG}, s{sW}\ns_mul_i32 s{sBG}, s{sBG}, {14*128}\nv_lshlrev_b32 v4, 7, v{vL}\ns_mov_b64 exec, 0x3fff')
            if OPT['w2t'] & 2: k.vmem(f'buffer_load_dword v5, v4, {sr(sW1,4)}, s{sBG} offen', 'touch')
            if OPT['w2t'] & 1: k.vmem(f'buffer_load_dword v2, v4, {sr(sW2,4)}, s{sBG} offen', 'touch')
            e('s_mov_b64 exec, -1')
        im = img_ops(0, 1); nb = OPT['imgb']; IMG_LATE[:] = im[nb:]
        after = im[:nb] + ([Op('s', 36, touch, 1)] if OPT['w2t'] else []); k.bg += after
        k.seg(999, 999*OPT['pS'])
        k.run(fill)
        while len(k.bg) > len(after): k.bg_step()
        if OPT['trim'] == 2: warm(0, 1)
        k.quota = len(k.bg) + OPT['nA']
        k.refill = ws.refill
        k.wait(lg='Hw'); e('s_barrier')
        k.run(hread(0))
    else:
        t0 = k.clk
        fill = rec(lambda: (gen_H(), misc(), k.wait(lg='Hw'), e('s_barrier'), k.run(hread(0)), gen_F(Ff), e(f'v_mul_u32_u24 v{t+1}, 80, v{t+1}'), [k.ds(f'ds_bpermute_b32 v{aH+r}, v{t+1}, v{vHS} offset:{4*r}', 'hs') for r in range(4)]))
        while fill and k.clk < t0 + OPT['xd']: fill.pop(0)()
        if OPT['xack']: k.wait(vm='xst')
        stamp('A1.ack')
        ld = rec(lambda: x2_loads(0)); ld = ld[:OPT['ssp']] + rec(st_load) + ld[OPT['ssp']:]
        k.run(ld[:4])
        k.run(k.weave(ld[4:11], fill, 60))
        later = ld[11:] + img_ops(1, 1)
    stamp(f'A{half}.consts')
    def xread(i):
        b = BORD[i]
        def g(h):
            k.wait(vm=f'xb{b}'); k.ds(f'ds_read_b128 {vr(XF(2*b+h),4)}, v{vx+h} offset:{2048*i}', f'xr{i}')
            if h: ws.limit = 5 + i if i < 6 else NR
        return [Op('ds', 8, lambda: g(0)), Op('ds', 4, lambda: g(1))]
    def xchk(k0, k1_, ss=False):
        d = ones
        def chk():
            r = [XF(x) for kp in range(k0, k1_ + 1) for x in (kp, kp + 7)]
            if ss:
                e(f'v_cndmask_b32 v{d+2}, 0, v{d+2}, {sr(sMK,2)}'); e(f'v_cndmask_b32 v{d+3}, 0, v{d+3}, {sr(sMK,2)}'); r += [d, d + 1, d + 2, d + 3]
            e(f'v_max_u32 v{t+1}, v{r[0]}, v{r[1]}')
            for i in range(2, len(r), 2): e(f'v_max3_u32 v{t+1}, v{t+1}, v{r[i]}, v{r[i+1]}')
            e(f'v_cmp_eq_u32 vcc, -1, v{t+1}')
        return rec(lambda: (k.wait(vm=f'x{k1_+7}'), chk(), retry_site(chk, lambda: (x2_loads(k0), k0 <= 2 and st_load()), f'x2_{k0}')))
    k.depth += 1
    if half == 0: k.run(xread(0) + xread(1))
    else: k.run(xchk(0, 1))
    k.depth -= 1
    def rstd():
        e(f'v_fmamk_f32 v{t}, v{t}, {fl(-1.0/448)}, v{aS}')
        e(f'v_min_f32 v{t}, 0, v{t}'); e(f'v_sub_f32 v{t}, {fl(1e-5)}, v{t}'); e(f'v_rsq_f32 v{t}, v{t}')
    def scale(tl, pk):
        a = aT[tl]
        if pk:
            if tl == 0:
                for r in (0, 2): e(f'v_pk_fma_f32 {vr(a+r,2)}, {vr(aH+r,2)}, {vr(aS+2,2)}, {vr(a+r,2)} op_sel_hi:[1,0,1]')
            if tl in aHi:
                for r in (0, 2): e(f'v_pk_add_f32 {vr(a+r,2)}, {vr(a+r,2)}, {vr(aHi[tl]+r,2)} neg_lo:[0,1] neg_hi:[0,1]')
            for r in (0, 2): e(f'v_pk_mul_f32 {vr(a+r,2)}, {vr(a+r,2)}, {vr(t,2)} op_sel_hi:[1,0]')
        else:
            for r in range(4): e(f'v_sub_f32 v{a+r}, v{a+r}, v{aHi[tl]+r}')
            for r in range(4): e(f'v_mul_f32 v{a+r}, v{a+r}, v{t}')
        for m in range(2): e(f'v_cvt_pk_f16_f32 v{a+m}, v{a+2*m}, v{a+2*m+1}')
        k.ds(f'ds_write_b64 v{vcw}, {vr(a,2)} offset:{2048*tl}', 'cw')
    sl = []; o0 = 0 if half else 4
    for kp in range(7):
        lo, hi = vr(XF(kp), 4), vr(XF(kp+7), 4)
        c = lambda a: vr(a, 4) if kp else '0'
        mm = lambda d, a, b, cc: f'v_mfma_f32_16x16x32_bf16 {vr(d,4)}, {a}, {b}, {cc}'
        ms = [] if half else [mm(aS, vr(ones, 4), lo, c(aS)), mm(aG, lo, lo, c(aG)), mm(aS, vr(ones, 4), hi, vr(aS, 4)), mm(aG, hi, hi, vr(aG, 4))]
        ms += [mm(aT[tl], vr(HR[kp%2]+4*tl, 4), lo, c(aT[tl])) for tl in (1, 3, 0, 2)]
        ms += [mm(aHi[tl], vr(HR[kp%2]+4*tl, 4), hi, c(aHi[tl])) if tl in aHi else mm(aT[tl], vr(HR[kp%2]+4*tl, 4), hi, vr(aT[tl], 4)) for tl in (1, 3, 0, 2)]
        if kp == 6: ms = ms[:o0] + [ms[o0 + i] for i in (0, 4, 1, 5, 2, 6, 3, 7)]
        cur = [[rec(lambda m=m: e(m)), [], []] for m in ms]; cur[0][1].append(Op('s', 0, lambda kp=kp: ls(f'a{half}.{kp}')))
        if half == 0:
            cur[0][0] = rec(lambda: k.wait(lg=f'xr{min(kp+1, 6)}')) + cur[0][0]
            cur[o0][0] = rec(lambda: e(mm(aH, vr(HR[kp%2], 4), vr(ones, 4), c(aH)))) + cur[o0][0]
        if half == 0: cur[o0][0] = rec(lambda: k.wait(lg=f'H{kp}2')) + cur[o0][0]
        else:
            cur[0][0] = rec(lambda: k.wait(lg=f'H{kp}3')) + cur[0][0]; i2 = 4 if kp == 6 else 2; cur[i2][0] = rec(lambda: k.wait(lg=f'H{kp}2')) + cur[i2][0]
        if kp < 6:
            for i, o in enumerate(hread(kp + 1)): cur[o0 + i][1].append(o)
            if half == 0 and kp < 5:
                for i, o in enumerate(xread(kp + 2)): cur[2 + i][1].append(o)
        sl += cur
    if half == 0:
        k.bg_period = OPT['pA']
        ep = rec(lambda: (k.wait(vm='ep'), [e(f'v_readfirstlane_b32 s{sN+i}, v{vSEL+i}') for i in range(4)], [e(f's_not_b32 s{sN+i}, s{sN+i}') for i in range(4)]))
        for i, o in enumerate(ep): sl[68 + i][2].append(o)
        def stats():
            e(f'v_cndmask_b32 v{t}, 0, v{aG}, {sr(sMK,2)}')
            for r in range(1, 4): e(f'v_cndmask_b32 v{t}, v{t}, v{aG+r}, {sr(sMK+2*r,2)}')
            e(f'v_mul_f32 v{aS+2}, {fl(-2.0/448)}, v{aS}'); e(f'v_mul_f32 v{aS}, {fl(1.0/448)}, v{aS}')
            for sw in ('16', '32'):
                e(f'v_mov_b32 v{t+1}, v{t}')
                if sw == '16': e(f'v_mul_f32 v{aS}, v{aS}, v{aS}')
                e(f'v_permlane{sw}_swap_b32 v{t}, v{t+1}'); e(f'v_add_f32 v{t}, v{t}, v{t+1}')
            rstd()
        k.slots(sl[:80], rec(rest2) if OPT['trim'] else [], 78, nbg=OPT['nbgA'], res0=0)
        if OPT['fine'] & 1: stamp(f'A{half}.mf')
        k.bg_period = OPT['pT']
        st = rec(stats)
        for i in range(80, 84): sl[i][2] += st[:2]; st = st[2:]
        k.slots(sl[80:], nbg=0)
        k.run(st)
    else:
        d = ones
        for at, o in (((12, 12, 12, 13, 13, 14, 14, 14, 15), xchk(2, 3, True)), ((29, 29, 30, 30, 31), xchk(4, 5)), ((46, 46, 47, 47), xchk(6, 6))):
            assert len(at) == len(o)
            for i, x in zip(at, o): sl[i][2].append(x)
        for i, x in zip((4, 5, 6, 7, 20, 21, 22, 23, 36, 37, 38), later): sl[i][1].append(x)
        def sums():
            e(f'v_add_f32 v{d}, v{d}, v{d+2}'); e(f'v_add_f32 v{d+1}, v{d+1}, v{d+3}'); e(f'v_permlane32_swap_b32 v{d}, v{d+1}'); e(f'v_add_f32 v{d}, v{d}, v{d+1}')
            e(f'v_mov_b32 v{d+1}, v{d}'); e(f'v_permlane16_swap_b32 v{d}, v{d+1}'); e(f'v_add_f32 v{aS}, v{d}, v{d+1}')
            e(f'v_mov_b32 v{t}, v{aS}'); e(f'v_permlane32_swap_b32 v{aS}, v{t}')
            e(f'v_mul_f32 v{aS+2}, {fl(-2.0/448)}, v{aS}'); e(f'v_mul_f32 v{aS}, {fl(1.0/448)}, v{aS}'); e(f'v_mul_f32 v{aS}, v{aS}, v{aS}'); rstd()
        idx = [16, 17, 19, 24, 25, 27, 28, 32, 34, 35, 39, 40, 41, 42, 43, 44]
        for i, x in zip(idx, rec(sums)): sl[i][2].append(x)
        sc = rec(lambda: scale(1, False)); sl[53][2] += sc[:3]; sl[54][2] += sc[3:6]; sl[55][2] += sc[6:]
        k.slots(sl, nbg=1)
        if OPT['fine'] & 1: stamp(f'A{half}.mf')
    k.wait(lg='hs')
    for tl in ((3, 0, 2) if half else (1, 3, 0, 2)): scale(tl, True)
    k.wait(lg='cw'); e('s_barrier')
    stamp(f'A{half}.hdft')
    cf = lambda tl, k1_: 72 + 8*tl + 4*k1_
    k.depth += 1
    so = [(0, 0), (2, 0), (0, 1), (2, 1), (1, 0), (3, 0), (1, 1), (3, 1)]
    for tl, k1_ in so:
        for h2 in range(2): k.ds(f'ds_read_b64_tr_b16 {vr(cf(tl,k1_)+2*h2,2)}, v{vtr} offset:{2048*tl + 1024*k1_ + 512*h2}', f'c{tl}{k1_}')
    if half == 0:
        e(f'v_cndmask_b32 v{vHS}, 0, v{aH}, {sr(sMK,2)}')
        for r in range(1, 4): e(f'v_cndmask_b32 v{vHS}, v{vHS}, v{aH+r}, {sr(sMK+2*r,2)}')
        k.burst(OPT['nS'])
    else: k.bg_flush()
    Dt = lambda tl: 104 + 4*tl
    def smf(tl, k1_):
        k.wait(lg=f'c{tl}{k1_}')
        e(f'v_mfma_f32_16x16x32_f16 {vr(Dt(tl),4)}, {vr(Ff+4*k1_,4)}, {vr(cf(tl,k1_),4)}, {vr(Dt(tl),4) if k1_ else 0}')
    def bfly(pp, u):
        kk1 = f'v{k1}' if pp == 0 else '-1.0'; nk1 = f'-v{k1}' if pp == 0 else '1.0'
        CA, SA, CB, SB = Dt(u) + 2*pp, Dt(u) + 2*pp + 1, Dt(2+u) + 2*pp, Dt(2+u) + 2*pp + 1
        o = 120 + 8*pp + 4*u
        e(f'v_fma_f32 v{o}, {kk1}, v{SB}, v{CA}'); e(f'v_fma_f32 v{o+1}, {kk1}, v{SA}, -v{CB}')
        e(f'v_fma_f32 v{o+2}, {nk1}, v{CA}, v{SB}'); e(f'v_fma_f32 v{o+3}, {kk1}, v{CB}, v{SA}')
        for m in range(2): e(f'v_cvt_pk_f16_f32 v{72+4*pp+2*u+m}, v{o+2*m}, v{o+2*m+1}')
        if half == 0:
            for m in range(2): e(f'v_bfi_b32 v{72+4*pp+2*u+m}, v{vX+2}, s{sN+2*u+m}, v{72+4*pp+2*u+m}')
    for x in so: smf(*x)
    if half == 0: e('s_barrier')
    bfly(0, 0); bfly(1, 0)
    for pp in range(2):
        bfly(pp, 1)
        k.vmem(f'buffer_store_dwordx4 {vr(72+4*pp,4)}, v{vu}, {sr(sWS,4)}, s{sT+4+pp} offen sc1', 'Ust')
    k.depth -= 1
    stamp(f'A{half}.ust')

def US(half): return 16 if half == 0 else 256
def TOFF(half): return 32 * 912 if half == 0 else 28672
def rowaddr(half, dst, j, t):
    if half == 0: e(f'v_mul_u32_u24 v{dst}, 912, v{j}')
    else:
        e(f'v_lshrrev_b32 v{t}, 4, v{j}'); e(f'v_mul_u32_u24 v{t}, 14336, v{t}'); e(f'v_and_b32 v{dst}, 15, v{j}'); e(f'v_lshl_add_u32 v{dst}, v{dst}, 4, v{t}')
def phB(half):
    us = US(half); RAW = lambda kap: 16 + 16*kap; ACC = lambda u, pq: 80 + 32*pq + 16*u; MF = 144
    vu, vd, vmP, vmQ = vA, vA + 1, vA + 2, vA + 3
    vu2, vm, tc, vbn = (vSa, vSb, vT1, vT1 + 1) if half else (vX, vX + 1, vX + 2, vX + 3)
    t = 88; t0 = k.clk
    save = k.refill
    if half == 0: ws.lag = OPT['lag']; k.bg += IMG_LATE; k.burst(OPT['nB']); k.seg(OPT['nK'], OPT['pK']*OPT['nK'], 300)
    def tile0():
        if OPT['pads']:
            e(f's_cmp_lt_u32 s{sW}, 2'); e(f's_cbranch_scc1 L_t0_{half}')
            e('s_mov_b64 exec, 0'); e(f's_cmp_eq_u32 s{sW}, 2'); e(f's_cbranch_scc1 L_pad{5 + 4*half}'); e(f's_branch L_pad{6 + 4*half}'); e(f'L_t0_{half}:')
        else: e(f's_cmp_ge_u32 s{sW}, 2'); e(f's_cbranch_scc1 L_ret{1 + half}')
        bs = 128 if half == 0 else 2048
        if half == 0:
            e(f'v_and_b32 v{t}, 15, v{vL}'); e(f'v_lshl_add_u32 v{t}, s{sW}, 4, v{t}'); e(f'v_mul_u32_u24 v{t}, 912, v{t}')
            e(f'v_and_b32 v{t+1}, 48, v{vL}'); e(f'v_add_u32 v{t}, v{t}, v{t+1}')
        else: e(f's_mul_i32 s{sT}, s{sW}, 14336'); e(f'v_add_u32 v{t}, s{sT}, v{vL16}')
        e(f's_mul_i32 s{sT}, s{sG}, {bs}')
        for b in range(7):
            if b: e(f's_add_u32 s{sT}, s{sT}, {bs}'); e(f's_sub_u32 s{sT+1}, s{sT}, {7*bs}'); e(f's_min_u32 s{sT}, s{sT}, s{sT+1}')
            e(f'v_add_u32 v{t+1}, s{sT}, v{t}')
            for h in range(2): e(f'ds_write_b128 v{t+1}, {vr(XF(2*b+h),4)} offset:{L_X + h*bs//2}')
        e(f'L_ret{1 + half}:'); e('s_mov_b64 exec, -1')
    k.call(tile0); ls(f'b{half}.t0')
    if half == 0: late_setup()
    e(f'v_bfe_u32 v{t}, v{vL}, 2, 1'); e(f'v_bfe_u32 v{t+1}, v{vL}, 3, 2'); e(f'v_and_b32 v{t+2}, 3, v{vL}')
    e(f'v_lshl_add_u32 v{t+1}, v{t}, 2, v{t+1}'); e(f'v_lshl_add_u32 v{t+1}, v{t+1}, 2, v{t+2}'); e(f's_mul_i32 s{sT+2}, s{sW}, 448')
    e(f'v_lshl_add_u32 v{t+1}, v{t+1}, 4, s{sT+2}'); e(f'v_subrev_u32 v{t}, 1792, v{t+1}'); e(f'v_min_u32 v{t+1}, v{t}, v{t+1}')
    e(f'v_lshrrev_b32 v{t+2}, 5, v{vL}'); e(f'v_mul_u32_u24 v{t}, 1792, v{t+2}'); e(f'v_add_u32 v{vu}, v{t}, v{t+1}'); e(f'v_add_u32 v{vu2}, 7168, v{vu}')
    e(f's_mul_i32 s{sT}, s{sP}, 57344'); e(f's_add_u32 s{sT}, s{sT}, {WS_U2 if half else WS_U1}')
    for i in range(4): e(f's_add_u32 s{sT+1}, s{sG}, {i}'); e(f's_and_b32 s{sT+1}, s{sT+1}, 3'); e(f's_mul_i32 s{sT+1}, s{sT+1}, 14336'); e(f's_add_u32 s{sUO+i}, s{sT}, s{sT+1}')
    def adr():
        j, a = t + 3, t + 4
        e(f'v_and_b32 v{j}, 31, v{vL}'); e(f's_mul_i32 s{sT}, s{sW}, 7'); e(f'v_lshl_add_u32 v{a}, v{t+2}, 2, s{sT}')
        rowaddr(half, vd, j, t); e(f'v_mul_u32_u24 v{t+1}, {us}, v{a}'); e(f'v_add_u32 v{vd}, v{vd}, v{t+1}')
        e(f'v_sub_u32 v{a}, {52*us}, v{t+1}')
        e(f's_cmp_eq_u32 s{sP}, 0\ns_cselect_b32 s{sT}, 32, 63\ns_cselect_b32 s{sT+1}, 31, 63\ns_cselect_b32 s{sT+2}, 63, 31')
        e(f'v_sub_u32 v{t+5}, s{sT}, v{j}'); e(f'v_and_b32 v{t+5}, s{sT+1}, v{t+5}'); rowaddr(half, vmP, t + 5, t); e(f'v_add_u32 v{vmP}, v{vmP}, v{a}')
        e(f'v_sub_u32 v{t+5}, s{sT+2}, v{j}'); rowaddr(half, vmQ, t + 5, t); e(f'v_add_u32 v{vmQ}, v{vmQ}, v{a}')
        e(f's_cmp_eq_u32 s{sW}, 0\ns_cselect_b32 s{sMK}, 0, -1'); e(f's_mov_b32 s{sMK+1}, -1')
        e(f'v_add_u32 v{vm}, {L_M}, v{vL16}')
        e(f's_mul_i32 s{sT}, s{sW}, {7*us}'); e(f'v_mul_u32_u24 v{t+2}, {3*us}, v{t+2}'); e(f'v_subrev_u32 v{vbn}, s{sT}, v{vd}'); e(f'v_sub_u32 v{vbn}, v{vbn}, v{t+2}')
        if OPT['rot']:
            e(f's_mul_i32 s{sT}, s{sRO}, {14*us}'); e(f'v_add_u32 v{vbn}, s{sT}, v{vbn}'); e(f's_mov_b32 s{sT}, {14*us}')
            for q in range(4): e(f's_cmp_eq_u32 s{sRO}, {3-q}\ns_cselect_b32 s{sRD+q}, {-42*us}, s{sT}')
    if half == 0:
        setup = rec(lambda: (gen_M(96), adr(), e(f's_mov_b32 s{sMK+2}, 0xfffefffe'))); nb = len(setup)*OPT['sb']//100
        k.run(setup[:nb]); setup = setup[nb:]
        k.burst(k.quota)
    else:
        def ichk():
            e(f's_mul_i32 s{sT}, s{sW}, 7168'); e(f'v_add_u32 v{t}, s{sT}, v{vL16}')
            for i in range(7): k.ds(f'ds_read_b32 v{t+2+i}, v{t} offset:{L_X + 28672 + 1024*i}', 'ic')
            k.wait(lg='all')
            for i in range(3): e(f'v_max3_u32 v{t+2}, v{t+2}, v{t+3+2*i}, v{t+4+2*i}')
            e(f'v_cmp_eq_u32 vcc, -1, v{t+2}')
    k.refill = None; k.bg_flush()
    if OPT['uack']: k.wait(vm='Ust')
    stamp(f'B{half}.ack')
    def uloads(first, last=4):
        for kap in range(first, last):
            for jj in range(4):
                k.vmem(f'buffer_load_dwordx4 {vr(RAW(kap)+4*jj,4)}, v{vu if jj < 2 else vu2}, {sr(sWS,4)}, s{sUO+kap} offen offset:{3584*(jj%2)} sc1', f'U{kap}{jj}')
    ld = rec(lambda: uloads(0))
    n0 = OPT['n0']
    if half == 0:
        if OPT['fl'] < 0: flag_load()
        fill = []
        while ws.nd < min(ws.dmax, ws.ni): fill += ws.drain_ops()
        per = -(-len(setup) // n0)
        for o in ld[:n0]:
            k.run([o] + fill[:4] + setup[:per]); fill = fill[4:]; setup = setup[per:]
        k.run(fill)
        k.wait(vm='img1', lg='all'); e('s_barrier')
    else:
        k.run(ld[:4])
        k.run(k.weave(ld[4:n0], rec(lambda: (adr(), k.wait(vm='img1'), ichk())), 56))
        retry_site(ichk, lambda: k.run(img_ops(1, 1)), 'img')
        e('s_barrier')
    mread = lambda kap, pq: k.ds(f'ds_read_b128 {vr(MF+4*pq,4)}, v{vm} offset:{4096*pq + 1024*kap}', f'M{pq}')
    mread(0, 0); mread(0, 1)
    if half == 0: ws.cs_flush(); ws.cs_on = 0; ws.lag = 99
    rest = ld[n0:]
    XU = lambda pq, b, mir: RAW(2*pq + (b >> 1)) + 8*(b & 1) + 4*mir
    MRG = OPT['mrg']; vd3, vm3 = XU(0, 3, 0), XU(0, 3, 0) + 1
    def xadr(pq, b, mir):
        if MRG and b == 3: return (vm3, L_X) if mir else (vd3, L_X + 3*us)
        return (vmQ if pq else vmP, L_X + (3-b)*us) if mir else (vd, L_X + pq*TOFF(half) + b*us)
    def xread(pq, b):
        if MRG and (pq, b) == (0, 3):
            e(f'v_mov_b32 v{vd3}, v{vd}'); e(f'v_mov_b32 v{vm3}, v{vmP}')
            k.call(lambda: e(f's_mov_b32 exec_lo, 0\nv_add_u32 v{vd3}, {TOFF(half) - 4*us}, v{vd}\nv_add_u32 v{vm3}, {4*us}, v{vmQ}\ns_mov_b32 exec_lo, -1'), 's', 16)
            return
        for mir in range(2):
            a, o = xadr(pq, b, mir); k.ds(f'ds_read_b128 {vr(XU(pq,b,mir),4)}, v{a} offset:{o}', f'x{"dm"[mir]}{pq}{b}')
    def uchk(kap):
        R = RAW(kap)
        if half: e(f'v_max3_u32 v{tc}, v{R}, v{R+4}, v{R+8}'); e(f'v_max_u32 v{tc}, v{tc}, v{R+12}'); e(f'v_cmp_eq_u32 vcc, -1, v{tc}')
        else:
            e(f'v_xor_b32 v{tc}, s{sN}, v{R}')
            for i in range(1, 16): e(f'v_bitop3_b32 v{tc}, v{tc}, v{R+i}, s{sN + i%4} bitop3:0xf6')
            e(f'v_and_b32 v{tc}, 0x10001, v{tc}'); e(f'v_cmp_ne_u32 vcc, 0, v{tc}')
    def ureload(kap):
        if half == 0 or not OPT['usel']: return uloads(kap)
        uloads(kap, kap + 1)
        if kap < 3: e('s_waitcnt vmcnt(4)')
        for k2 in range(kap + 1, 4):
            l = k.lab('have'); uchk(k2); e(f's_cbranch_vccz {l}'); uloads(k2, k2 + 1); e(f'{l}:')
    for kap in range(4):
        R = RAW(kap)
        ls(f'b{half}.w{kap}')
        sw = lambda i, jx, R=R: e(f'v_swap_b32 v{R+4*i+jx}, v{R+4*jx+i}')
        if half:
            for jj in range(4):
                k.wait(vm=f'U{kap}{jj}')
                if kap == 0: k.run(rest[:2 if jj == 3 else 1]); rest = rest[2 if jj == 3 else 1:]
                if jj == 3: assert not rest; ls(f'b{half}.u{kap}')
                e(f'v_max_u32 v{tc}, v{tc}, v{R+4*jj}' if jj else f'v_mov_b32 v{tc}, v{R}')
                if jj == 3: e(f'v_cmp_eq_u32 vcc, -1, v{tc}'); sw(0, 3)
                else:
                    for i in range(jj): sw(i, jj)
            retry_site(lambda kap=kap: uchk(kap), lambda kap=kap: ureload(kap), f'U{half}_{kap}', after=lambda sw=sw: (sw(0, 1), sw(0, 2), sw(1, 2), sw(0, 3)))
        else:
            k.wait(vm=f'U{kap}3'); ls(f'b{half}.u{kap}')
            if kap == 0: k.run(rest); k.refill = save; k.seg(999, 999*OPT['pU'], 300)
            if kap + OPT['fc'] == -1: flag_check(); ws.limit = 28
            uchk(kap); retry_site(lambda kap=kap: uchk(kap), lambda kap=kap: ureload(kap), f'U{half}_{kap}')
        if kap == 3: stamp(f'B{half}.Uin')
        SP = R if half else 220 + 16*(kap & 1)
        def mf(u, pq):
            A = ACC(u, pq); e(f'v_mfma_f32_32x32x16_f16 {vr(A,16)}, {vr(SP+4*(2*u+pq),4)}, {vr(MF+4*pq,4)}, {vr(A,16) if kap else 0}')
        if half:
            k.wait(lg='M0')
            mf(0, 0); sw(2, 3); sw(1, 3); k.wait(lg='M1'); mf(1, 0)
            if kap < 3: mread(kap + 1, 0)
            mf(0, 1); mf(1, 1)
        else:
            assert ws.ni <= 40
            mv = lambda d: [e(f'v_and_b32 v{SP+4*d+jj}, s{sMK+2}, v{R+4*jj+d}') for jj in range(4)]
            mv(0); mv(2); k.wait(lg='M0'); mf(0, 0); mv(1); mf(1, 0)
            if kap < 3: mread(kap + 1, 0)
            mv(3); k.wait(lg='M1'); mf(0, 1); mf(1, 1)
        if kap < 3: mread(kap + 1, 1)
        if half == 0 and kap == OPT['fl2']: flag_load(1)
        xread(kap >> 1, 2*(kap & 1)); xread(kap >> 1, 2*(kap & 1) + 1)
    if half == 0:
        ws.lag = OPT['lag']; k.bg_period = OPT['pE']
    ADR[:] = [vu2, vm]
    e(f'v_lshrrev_b32 v{vm}, 3, v{vL}'); e(f'v_lshl_add_u32 v{vm}, s{sW}, 3, v{vm}'); rowaddr(half, vu2, vm, tc)
    e(f'v_and_b32 v{tc}, 7, v{vL}'); e(f'v_lshl_add_u32 v{vu2}, v{tc}, {us.bit_length()-1}, v{vu2}'); e(f'v_lshlrev_b32 v{vm}, 3, v{vm}'); e(f's_lshl_b32 s{sT}, s{sW}, 3')
    T = MF
    sel = lambda hi: f's{sHI if hi else sLO}'
    YY = lambda pq, b, n: ACC(n & 1, pq) + 4*b + (n >> 1)
    for pq in range(2):
        e(f'v_mov_b32 v{tc if MRG and pq else vu}, v{YY(pq,0,0)}'); e(f'v_cndmask_b32 v{YY(pq,0,0)}, 0, v{YY(pq,0,0)}, {sr(sMK,2)}')
        for b in range(4):
            if MRG and (pq, b) == (0, 3): continue
            Y = lambda b_, n: YY(0 if MRG and b == 3 else pq, b_, n)
            if b == 3 and not MRG: k.depth += 1; e('s_mov_b32 exec_hi, 0')
            xd, xm = XU(pq, b, 0), XU(pq, b, 1); ls(f'e{half}.{pq}{b}')
            if half == 0 and 4 + 3*pq + b == OPT['fl2'] and b < 3: flag_load(1)
            if half == 0 and 3*pq + b == OPT['fc2'] and b < 3: flag_check(1); ws.limit = min(44, 28 + 4*OPT['ja'])
            if half == 0 and 3*pq + b == OPT['fl3'] and b < 3: assert ws.limit > 28; flag_load(2)
            k.wait(lg=f'xm{pq}{b}')
            if MRG and b == 3:
                for n in range(8): e(f'v_permlane32_swap_b32 v{YY(0,3,n)}, v{YY(1,3,n)}')
            for n in range(8): e(f'v_dot2_f32_bf16 v{T+n}, v{xd + (n >> 1)}, {sel(n & 1)}, v{Y(b,n)}')
            e(f'v_dot2_f32_bf16 v{Y(b,0)}, v{xm}, {sel(0)}, v{Y(b+1,0) if b < 3 else tc}')
            for m in range(4): e(f'v_cvt_pk_bf16_f32 v{xd+m}, v{T+2*m}, v{T+2*m+1}')
            a, o = xadr(pq, b, 0); k.ds(f'ds_write_b128 v{a}, {vr(xd,4)} offset:{o}', 'xw')
            for m in range(1, 8): e(f'v_dot2c_f32_bf16 v{Y(b,8-m)}, {sel(m & 1)}, v{xm + (m >> 1)}')
            if b == 0 and (pq or not MRG): e(f'v_permlane32_swap_b32 v{vu}, v{tc}')
            for m in range(4): e(f'v_cvt_pk_bf16_f32 v{xm+m}, v{Y(b,(8-2*m)%8)}, v{Y(b,7-2*m)}')
            a, o = xadr(pq, b, 1); k.ds(f'ds_write_b128 v{a}, {vr(xm,4)} offset:{o}', 'xw')
        if not MRG: e('s_mov_b32 exec_hi, -1'); k.depth -= 1

def ffn(half):
    us = US(half); toff = TOFF(half); ls(f'e{half}.x')
    vb, vs, vst, vh = vA, vA + 1, vA + 2, vA + 3
    BR = lambda i: B[5] + 4*(i % 3); MFR = B[5] + 12; t = B[5] + 14
    vres = B[4]
    e(f'v_mov_b32 v{vb}, v{vT1 + 1 if half else vX + 3}')
    def adr0():
        e(f'v_lshrrev_b32 v{t}, 3, v{vL}'); e(f's_lshl_b32 s{sT}, s{sW}, 3'); e(f'v_add_u32 v{t}, s{sT}, v{t}'); rowaddr(half, vs, t, t + 1)
        e(f'v_lshlrev_b32 v{vh}, 3, v{t}')
        e(f'v_and_b32 v{t}, 7, v{vL}'); e(f'v_lshl_add_u32 v{vs}, v{t}, {us.bit_length()-1}, v{vs}')
    e(f'v_mov_b32 v{vs}, v{ADR[0]}'); e(f'v_mov_b32 v{vh}, v{ADR[1]}')
    def more():
        e(f's_mul_i32 s{sT+1}, s{sG}, {8*us}')
        if half == 0:
            e(f'v_and_b32 v{t}, 7, v{vL}'); e(f'v_add_u32 v{t}, s{sT}, v{t}'); rowaddr(half, vres, t, t + 1)
            e(f'v_lshrrev_b32 v{t}, 3, v{vL}'); e(f'v_lshl_add_u32 v{vres}, v{t}, 4, v{vres}'); e(f'v_add_u32 v{vres}, s{sT+1}, v{vres}')
        else: e(f'v_add_u32 v{vres}, s{sT+1}, v{vs}')
        e(f'v_and_b32 v{vst}, 31, v{vL}'); e(f'v_lshlrev_b32 v{vst}, 3, v{vst}')
        e(f's_mov_b32 s{sMK}, -1'); e(f's_mov_b32 s{sMK+1}, 0'); e(f's_mov_b32 s{sMK+2}, 0x80008000')
    def epoch():
        def ep():
            e(f's_lshl_b32 s{sT+4}, s2, 2'); e(f's_add_u32 s{sT+4}, s{sT+4}, s{sW}'); e(f's_cmp_eq_u32 s{sT+4}, 128'); e('s_cbranch_scc1 L_epoch'); e('L_epoch_ret:')
            k.begin_tail(); e('L_epoch:')
            for i in range(4): e(f'v_mov_b32 v{B[5]+i}, s{sN+i}')
            e(f's_mov_b32 s{sT+4}, {WS_EP}'); e('s_mov_b64 exec, 1'); e(f'buffer_store_dwordx4 {vr(B[5],4)}, off, {sr(sWS,4)}, s{sT+4} sc1'); e('s_mov_b64 exec, -1'); e('s_branch L_epoch_ret')
            k.end_tail()
        k.call(ep, 's', 32)
    vh1 = vT1
    if half == 0:
        assert ws.limit > 28
        if OPT['fl3'] == 6: flag_load(2)
    if half == 0: ws.force(-1); k.seg(999, 999*OPT['perG'])
    k.wait(lg='xw'); e('s_barrier')
    stamp(f'B{half}.end')
    if stop(f'B{half}', 61440): return True
    hvo = lambda T: vh1 if T else vL16
    MF2 = [MFR, MFR]
    resrd = lambda T: k.ds(f'ds_read_b128 {vr(vR+4*T,4)}, v{vres} offset:{L_X + T*toff}', 'res')
    ACC1 = lambda T, u: B[2*T + u]
    def bread(i):
        q = i % 28
        def f():
            k.ds(f'ds_read_b128 {vr(BR(i),4)}, v{vb} offset:{L_X + (i//28)*toff + 2*(q % 7 if OPT["rot"] else q)*us}', f'B{i}')
            if OPT['rot'] and q % 7 == 6 and i < 55: e(f'v_add_u32 v{vb}, s{sRD + q//7}, v{vb}')
        return Op('ds', 4, f)
    k.depth += 1; bread(0)(); bread(1)(); k.depth -= 1
    def stats_ops(T):
        SB = lambda j: B[6] + 4*(j % 2); s1, s2, lo, hi = B[6] + 8, B[6] + 9, B[6] + 10, B[6] + 12
        rd = lambda j: k.ds(f'ds_read_b128 {vr(SB(j),4)}, v{vs} offset:{L_X + T*toff + 8*j*us}', f'S{T}{j}')
        ops = rec(lambda: (rd(0), rd(1))) + [None, None]
        def body():
            for j in range(1 if OPT['nostats'] else 7):
                k.wait(lg=f'S{T}{j}')
                for m in range(4):
                    l_, h_ = lo + m % 2, hi + m % 2
                    e(f'v_lshlrev_b32 v{l_}, 16, v{SB(j)+m}'); e(f'v_and_b32 v{h_}, s{sFF}, v{SB(j)+m}')
                    if m == 3 and j + 2 < 7: rd(j + 2)
                    if j == 0 and m == 0: e(f'v_add_f32 v{s1}, v{l_}, v{h_}'); e(f'v_mul_f32 v{s2}, v{l_}, v{l_}'); e(f'v_fmac_f32 v{s2}, v{h_}, v{h_}')
                    else: e(f'v_add_f32 v{s1}, v{s1}, v{l_}'); e(f'v_fmac_f32 v{s2}, v{l_}, v{l_}'); e(f'v_add_f32 v{s1}, v{s1}, v{h_}'); e(f'v_fmac_f32 v{s2}, v{h_}, v{h_}')
        ops += rec(body)
        for c in ('quad_perm:[1,0,3,2]', 'quad_perm:[2,3,0,1]', 'row_half_mirror'):
            ops += rec(lambda: [e('s_nop 0')] + [e(f'v_add_f32_dpp v{r}, v{r}, v{r} {c} row_mask:0xf bank_mask:0xf') for r in (s1, s2)])
        ops += rec(lambda: (e(f'v_mul_f32 v{s1}, {fl(-1.0/448)}, v{s1}'), e(f'v_mul_f32 v{lo}, v{s1}, v{s1}'), e(f'v_fmamk_f32 v{s2}, v{s2}, {fl(-1.0/448)}, v{lo}'),
                e(f'v_min_f32 v{s2}, 0, v{s2}'), e(f'v_sub_f32 v{s2}, {fl(1e-5)}, v{s2}'), e(f'v_rsq_f32 v{s2}, v{s2}'))) + [None]
        ops += rec(lambda: k.ds(f'ds_write_b64 v{vh}, {vr(s1,2)} offset:{L_ST + 256*T}', 'stw')) + [None, None]
        ops += rec(lambda: (k.wait(lg='stw'), e('s_barrier'), k.ds(f'ds_read_b32 v{t}, v{vst} offset:{L_ST + 256*T}', 'm'))) + [None, None, None]
        ops += rec(lambda: (k.wait(lg='m'), e(f'v_cndmask_b32 v{t}, 0, v{t}, {sr(sMK,2)}'), e(f'v_cvt_pk_bf16_f32 v{MFR}, v{t}, v{t}'),
                e(f'v_and_b32 v{t+1}, s{sFF}, v{MFR}'), e(f'v_sub_f32 v{t}, v{t}, v{t+1}'), e(f'v_cvt_pk_bf16_f32 v{MFR+1}, v{t}, 0')))
        return ops
    OWN = [B[4], B[6]]
    def bump(c): k.bg_next = max(k.bg_next, k.clk - 40) + c
    ownfix = lambda T: None
    def epi1(T):
        ng = '-' if half else ''
        for u in range(2):
            for be in range(2):
                d = OWN[T] + 8*u + 4*be; a = ACC1(T, u) + 8*be
                for m in range(4):
                    ng = '-' if (half != (m == 3)) else ''; e(f'v_cvt_pk_bf16_f32 v{d+m}, {ng}v{a+2*m}, {ng}v{a+2*m+1}')
                for m in range(4): e(f'v_pk_max_u16 v{d+m}, v{d+m}, s{sMK+2}' if (half != (m == 3)) else f'v_pk_max_i16 v{d+m}, v{d+m}, 0')
                if OPT['noh'] & (4 << T): continue
                k.call(lambda d=d, u=u, be=be: (k.vmem(f'buffer_store_dwordx4 {vr(d,4)}, v{hvo(T)}, {sr(sWS,4)}, s{sHS} offen offset:{1024*(2*u+be)} sc1', 'hst'), bump(96)), 'vm', 24)
    HB = {(0, 0): B[4], (0, 1): B[0], (0, 2): B[1], (0, 3): B[7], (0, 4): B[4], (0, 5): B[0], (0, 6): B[1],
          (1, 0): B[6], (1, 1): B[7], (1, 2): B[4], (1, 3): B[6], (1, 4): B[7], (1, 5): B[4], (1, 6): B[6]}
    inflight = []
    def hload(T, jp, i, track=True):
        def f():
            if OPT['noh'] & 1: return
            k.vmem(f'buffer_load_dwordx4 {vr(HB[T,jp]+4*i,4)}, v{hvo(T)}, {sr(sWS,4)}, s{sHS+jp} offen offset:{1024*i} sc1', f'h{T}{jp}{i}')
            if track: inflight.append((T, jp, i)); bump(OPT['perH'] if len(inflight) > 12 else 60)
        return Op('vm', 4, f)
    prevuse = {(0, 4): (0, 0), (0, 5): (0, 1), (0, 6): (0, 2), (1, 1): (0, 3), (1, 2): (0, 4), (1, 3): (1, 0), (1, 4): (1, 1), (1, 5): (1, 2), (1, 6): (1, 3)}
    order = [(0, 1), (0, 2), (0, 3), (0, 4), (0, 5), (1, 1), (0, 6)] + [(1, j) for j in range(2, 7)] if OPT['hord'] else [(T, j) for T in range(2) for j in range(1, 7)]
    hq = []
    for T, jp in order:
        for i in range(4):
            rdy = OPT['hq_slot' if half else 'hq0'] if T == 0 else 116 + OPT['t1_slot']
            if (T, jp) in prevuse: pT, pj = prevuse[T, jp]; rdy = max(rdy, 116 + 56*pT + 8*pj + 2*i + 1)
            hq.append((rdy, 116 + 56*T + 8*jp - OPT['hdl'] - 2*(3 - i), T, jp, i))
    def hpace(slot):
        def f():
            if not hq or OPT['noh'] & 1: return
            due = min(x[1] for x in hq[:8]) <= slot
            wfirst = half == 0 and ws.sent < 56 and ws.use(ws.sent) - OPT['lead'] <= hq[0][1]
            if hq[0][0] <= slot and ((k.clk >= k.bg_next and not wfirst) or due):
                x = hq.pop(0)
                if x[3:] == (1, 0) and OPT['hack'] >> (2*half + x[2]) & 1: k.wait(vm='hst')
                if half == 0 and OPT['cntlate'] and x[2:] == (1, 1, 0): cnt_load(vSa)
                hload(*x[2:])()
                if OPT['verbose'] > 2: print(f'; h{x[2:]} at slot {slot} use {116 + 56*x[2] + 8*x[3]}', file=sys.stderr)
        return Op('vm', 0, f)
    def g1_slots(T):
        sl = []
        for n in range(28):
            i = 28*T + n
            for u in range(2):
                A = ACC1(T, u)
                def mf(A=A, n=n, u=u, i=i):
                    k.wait(lg=f'B{i}')
                    if half == 0 and T == 0:
                        if n < NR: assert ws.done > n; k.wait(lg=f'tr{n}')
                        else: assert ws.sent > n; k.wait(vm=f'w{n}')
                    e(f'v_mfma_f32_32x32x16_bf16 {vr(A,16)}, {w1f(n,u)}, {vr(BR(i),4)}, {vr(A,16) if n else 0}')
                pre = [bread(i + 2)] if (u == 0 and i + 2 < 56) else []
                if u == 0 and n % 7 == 0: pre.append(Op('s', 0, lambda n=n: ls(f'c{half}.{T}{n//7}')))
                if half == 0 and u == 1: pre.append(Op('ds', 0, lambda n=n: ws.force(58*T + 2*n + 1)))
                sl.append([[Op('mfma', 8, mf)], pre, []])
        return sl
    def corr(T): return [[rec(lambda: e(f'v_mfma_f32_32x32x8_bf16 {vr(ACC1(T,u),16)}, {vr(vCS+2*u,2)}, {vr(MF2[T],2)}, {vr(ACC1(T,u),16)}')), [], []] for u in range(2)]
    st0 = stats_ops(0); st1 = stats_ops(1)
    sl = g1_slots(0)
    res = [rec(lambda: k.ds(f'ds_read_b128 {vr(vR+4*T,4)}, v{vres} offset:{L_X + T*toff}', 'res')) for T in range(2)]
    nbg = OPT['nbgG']; STAG = OPT['stag']
    if half == 0:
        assert OPT['fc3'] < OPT['css']
        if OPT['fl3'] > 6: sl[OPT['fl3'] - 7][1] += rec(lambda: flag_load(2))
        sl[OPT['fc3']][2] += rec(lambda: flag_check(2)) + [Op('s', 0, lambda: setattr(ws, 'limit', 56))]
        sl[OPT['css']][1] += rec(cs_load); sl[49][2] += rec(lambda: k.wait(vm='cs'))
    q0 = st0[:1] + rec(more) + st0[1:2] + st0[4:18] + res[0] + st0[18:43] + res[1] + st0[43:]
    if STAG:
        mv = [sl[i][1].pop(0) for i in (52, 54)]; sl[51][1].insert(0, mv[0]); sl[53][1].insert(0, mv[1])
        tb = [sl[51], sl[53], sl[55]]; sl = sl[:50] + [sl[50], sl[52], sl[54]]
    k.slots(sl, q0, 52 if STAG else 54, nbg=nbg)
    log('g1(0) done')
    if OPT['fine'] & 2: stamp(f'C{half}.g10')
    c0 = corr(0); ep0 = rec(lambda: epi1(0)); nop = lambda n: rec(lambda: e(f's_nop {n}'))
    tail1 = st1[26:] + rec(lambda: e(f'v_add_u32 v{vh1}, {7*16384}, v{vL16}'))
    if STAG:
        k.slots([c0[0]] + tb[:2], st1[:1] + nop(3) + [None] + st1[1:2] + nop(2) + [None] + ep0[:5], nbg=0)
        sl = [tb[2], c0[1]] + g1_slots(1)
        q = ep0[5:18] + st1[4:9] + ep0[18:] + st1[9:26] + tail1
    else:
        sl = c0 + g1_slots(1)
        q = st1[:14] + ep0 + st1[14:26] + tail1
    for n in range(len(sl)): sl[n][1].append(hpace(56 + n))
    if half == 0 and not OPT['cntlate']: sl[OPT['hq0'] - 57][1] += rec(lambda: cnt_load(vT1 + 1, 1))
    k.slots(sl, q, 57, nbg=nbg)
    k.slots(corr(1))
    stamp(f'C{half}.g1')
    k.depth += 1
    while len(inflight) < OPT['hB%d' % half]: hload(*hq.pop(0)[2:])()
    epi1(1)
    k.depth -= 1
    if OPT['fine'] & 4: stamp(f'C{half}.epi'); k.wait(vm='h023'); stamp(f'C{half}.h02'); k.wait(vm='all'); stamp(f'C{half}.ack')
    if stop(f'C{half}'): return True
    ACC2 = lambda T, v: (B[2 + v] if T == 0 else B[v])
    ORD = [[(kk, v) for kk in range(28) for v in range(2)] for T in range(2)]
    ORD[1] = ORD[1][:48] + [(kk, v) for v in range(2) for kk in range(24, 28)]
    CUR = [0]
    AR = lambda kk, v: B[5] + 4*(ORD[CUR[0]].index((kk, v)) % 4)
    def aread(kk, v):
        def f():
            assert ws.sent > 28 + kk; k.wait(vm=f'w{28+kk}')
            k.ds(f'ds_read_b128 {vr(AR(kk,v),4)}, v{vT2} offset:{2048*(kk-17) + 1024*v}', f'A{kk}{v}')
        return Op('ds', 4, f)
    tc = vb
    def hcheck(T, jp):
        R = HB[T, jp]
        def part(i):
            r = R + 4*i
            e(f'v_or3_b32 v{tc}, v{r}, v{r+1}, v{tc}' if i else f'v_or_b32 v{tc}, v{r}, v{r+1}'); e(f'v_bitop3_b32 v{tc}, v{tc}, v{r+2}, v{r+3} bitop3:0xfd')
        def fin(): e(f'v_and_b32 v{tc}, s{sMK+2}, v{tc}'); e(f'v_cmp_ne_u32 vcc, 0, v{tc}')
        def chk():
            if half == 0: [part(i) for i in range(4)]; fin()
            else: e(f'v_bitop3_b32 v{tc}, v{R}, v{R+4}, v{R+8} bitop3:0x80'); e(f'v_and_b32 v{tc}, v{tc}, v{R+12}'); e(f'v_cmp_le_i32 vcc, 0, v{tc}')
        def br():
            todo = [x for x in inflight if (x[:2] == (T, jp) if OPT['hsel'] else x[:2] >= (T, jp))]
            retry_site(chk, lambda: [hload(*x, track=False)() for x in todo], f'h{half}_{T}{jp}')
        def w(i):
            assert (T, jp, i) in inflight, (T, jp, i); k.wait(vm=f'h{T}{jp}{i}')
        o = [[] for _ in range(8)]
        if half: o[6] = [Op('v', 16, lambda: (w(3), chk()))]
        else:
            o[4] = [Op('v', 20, lambda: (w(1), part(0), part(1)))]; o[5] = [Op('v', 12, lambda: (w(2), part(2)))]; o[6] = [Op('v', 20, lambda: (w(3), part(3), fin()))]
        o[7] = [Op('s', 20, br)]
        return o
    RS = 1088; vrr, vo, vrwb = vs, vh, vT1 + 1
    def g2addr():
        tau, cc = B[5], B[5] + 1
        if half == 0: e(f'v_and_b32 v{tau}, 7, v{vL}'); e(f'v_lshrrev_b32 v{cc}, 3, v{vL}')
        else: e(f'v_lshrrev_b32 v{tau}, 3, v{vL}'); e(f'v_and_b32 v{cc}, 7, v{vL}')
        e(f's_lshl_b32 s{sT}, s{sW}, 3'); e(f'v_add_u32 v{tau}, s{sT}, v{tau}')
        e(f'v_mul_u32_u24 v{vrr}, {RS}, v{cc}'); e(f'v_lshl_add_u32 v{vrr}, v{tau}, 4, v{vrr}')
        if half == 0: e(f'v_bfe_i32 v{cc+1}, v{cc}, 0, 1'); e(f'v_lshl_add_u32 v{vrr}, v{cc+1}, 6, v{vrr}')
        e(f'v_lshlrev_b32 v{vst}, 3, v{tau}')
        if half == 0:
            rowaddr(1, vo, tau, cc + 1); e(f'v_lshl_add_u32 v{vo}, v{cc}, 8, v{vo}')
            for T in range(2):
                e(f's_mul_i32 s{sMK+4+T}, s{sRB if T else sP}, 28672'); e(f's_lshl_b32 s{sT}, s{sG}, 11'); e(f's_add_u32 s{sMK+4+T}, s{sMK+4+T}, s{sT}'); e(f's_add_u32 s{sMK+4+T}, s{sMK+4+T}, {WS_X2}')
        else:
            e(f'v_mul_u32_u24 v{vo}, 57344, v{tau}'); e(f'v_lshl_add_u32 v{vo}, v{cc}, 4, v{vo}')
            for T in range(2):
                e(f's_mul_i32 s{sMK+4+T}, s{sRB if T else sP}, 896'); e(f's_lshl_b32 s{sT}, s{sG}, 7'); e(f's_add_u32 s{sMK+4+T}, s{sMK+4+T}, s{sT}')
        e(f's_mul_i32 s{sT}, s{sW}, {8*RS}'); e(f'v_add_u32 v{vrwb}, s{sT}, v{vL16}')
        e('s_barrier')
    def g2more():
        if half == 0:
            e(f's_lshr_b32 s{sT}, s{sW}, 1'); e(f's_lshl_b32 s{sT}, s{sT}, 5'); e(f's_add_u32 s{sT}, s{sT}, s{sP}'); e(f's_lshl_b32 s{sT}, s{sT}, 1')
            e(f's_and_b32 s{sT+1}, s{sW}, 1'); e(f's_add_u32 s{sT}, s{sT}, s{sT+1}'); e(f's_lshl_b32 s49, s{sT}, 10'); e(f's_add_u32 s49, s49, {WS_SS}')
            e(f's_mul_i32 s{sT}, s{sT}, 14336'); e(f's_add_u32 s{sT}, s{sT}, {WS_X2}'); e(f's_lshl_b32 s{sT+1}, s{sG}, 11')
            for b in range(7):
                if b: e(f's_add_u32 s{sT+1}, s{sT+1}, 2048'); e(f's_sub_u32 s{sT+2}, s{sT+1}, 14336'); e(f's_min_u32 s{sT+1}, s{sT+1}, s{sT+2}')
                e(f's_add_u32 s{SX[b]}, s{sT}, s{sT+1}')
            for T in range(2):
                e(f's_lshl_b32 s{sT}, s{sRB if T else sP}, 11'); e(f's_lshr_b32 s{sT+1}, s{sW}, 1'); e(f's_lshl_b32 s{sT+1}, s{sT+1}, 10'); e(f's_add_u32 s{sT}, s{sT}, s{sT+1}')
                e(f's_and_b32 s{sT+1}, s{sW}, 1'); e(f's_lshl_b32 s{sT+1}, s{sT+1}, 7'); e(f's_add_u32 s{sT}, s{sT}, s{sT+1}')
                e(f's_lshr_b32 s{sT+1}, s{sG}, 1'); e(f's_lshl_b32 s{sT+1}, s{sT+1}, 8'); e(f's_add_u32 s{sT}, s{sT}, s{sT+1}')
                e(f's_and_b32 s{sT+1}, s{sG}, 1'); e(f's_lshl_b32 s{sT+1}, s{sT+1}, 3'); e(f's_add_u32 s{sT}, s{sT}, s{sT+1}'); e(f's_add_u32 s{sMK+6+T}, s{sT}, {WS_SS}')
    rr = vSb
    rwr = lambda T, c: k.ds(f'ds_write_b128 v{vrwb}, {vr(ACC2(T, c >> 2) + 4*(c & 3), 4)} offset:{L_RED + RS*c - (0 if half else 64*(c & 1))}', 'rw')
    rrd = lambda T: k.ds(f'ds_read_b32 v{rr}, v{vst} offset:{L_ST + 4 + 256*T}', 'rw')
    def red_final(T, PB, pk):
        x = vR + 4*T; ops = []
        for pw in range(4):
            ops += rec(lambda: [k.ds(f'ds_read_b128 {vr(PB+8*pw+4*h,4)}, v{vrr} offset:{L_RED + 8*RS*pw + 512*h}', f'p{pw}') for h in range(2)]) + [None]
        XT = B[7] if pk else None
        def body():
            if pk:
                k.wait(lg='p1')
                for n in range(0, 8, 2): e(f'v_pk_add_f32 {vr(PB+n,2)}, {vr(PB+n,2)}, {vr(PB+8+n,2)}')
                k.wait(lg='p3')
                for n in range(0, 8, 2): e(f'v_pk_add_f32 {vr(PB+16+n,2)}, {vr(PB+16+n,2)}, {vr(PB+24+n,2)}')
                for n in range(0, 8, 2): e(f'v_pk_add_f32 {vr(PB+n,2)}, {vr(PB+n,2)}, {vr(PB+16+n,2)}')
                ng = ' neg_lo:[1,0,0] neg_hi:[1,0,0]' if half else ''
                for n in range(0, 8, 2): e(f'v_pk_fma_f32 {vr(PB+n,2)}, {vr(PB+n,2)}, {vr(rr-1,2)}, {vr(XT+n,2)} op_sel:[0,1,0]{ng}')
            else:
                for pw in range(1, 4):
                    k.wait(lg=f'p{pw}')
                    for n in range(8): e(f'v_add_f32 v{PB+n}, v{PB+n}, v{PB+8*pw+n}')
                for n in range(8): e(f'v_and_b32 v{PB+8+n}, s{sFF}, v{x + n//2}' if n & 1 else f'v_lshlrev_b32 v{PB+8+n}, 16, v{x + n//2}')
                for n in range(8): e(f'v_fma_f32 v{PB+n}, {"-" if half else ""}v{rr}, v{PB+n}, v{PB+8+n}')
            for m in range(4): e(f'v_cvt_pk_bf16_f32 v{x+m}, v{PB+2*m}, v{PB+2*m+1}')
            if half == 0:
                k.vmem(f'buffer_store_dwordx4 {vr(x,4)}, v{vo}, {sr(sWS,4)}, s{sMK+4+T} offen sc1', 'xst')
                a, b, c = PB + 16, PB + 17, PB + 18
                e(f'v_add_f32 v{a}, v{PB}, v{PB+1}'); e(f'v_mul_f32 v{b}, v{PB}, v{PB}'); e(f'v_fmac_f32 v{b}, v{PB+1}, v{PB+1}')
                for n in range(2, 8): e(f'v_add_f32 v{a}, v{a}, v{PB+n}'); e(f'v_fmac_f32 v{b}, v{PB+n}, v{PB+n}')
                e(f'v_and_b32 v{c}, 0x70, v{vL16}'); e(f'v_lshrrev_b32 v{c+1}, 5, v{vL}')
                e(f'v_permlane32_swap_b32 v{a}, v{b}'); e(f'v_add_f32 v{a}, v{a}, v{b}'); e(f'v_mov_b32 v{b}, v{a}'); e(f'v_lshl_add_u32 v{c}, v{c+1}, 2, v{c}')
                e(f'v_permlane16_swap_b32 v{a}, v{b}'); e(f'v_add_f32 v{a}, v{a}, v{b}')
                e(f'v_add_f32_dpp v{a}, v{a}, v{a} row_ror:8 row_mask:0xf bank_mask:0xf')
                k.call(lambda: (e('s_mov_b32 exec_lo, 0xff\ns_mov_b32 exec_hi, 0xff'), k.vmem(f'buffer_store_dword v{a}, v{c}, {sr(sWS,4)}, s{sMK+6+T} offen sc1', 'xst'), e('s_mov_b64 exec, -1')), 's', 16)
            else: k.vmem(f'buffer_store_dwordx4 {vr(x,4)}, v{vo}, {sr(sOUT,4)}, s{sMK+4+T} offen' + (' sc1' if OPT['outsc'] >> T & 1 else ''), 'xst')
        return ops + [None] + rec(body)
    for T in range(2):
        sl = []; CUR[0] = T
        for pos, (kk, v) in enumerate(ORD[T]):
            jp, i = kk >> 2, kk & 3
            if True:
                A = ACC2(T, v); wr = w2reg(kk, v)
                def mf(A=A, wr=wr, kk=kk, v=v, jp=jp, i=i):
                    if wr is None: k.wait(lg=f'A{kk}{v}')
                    elif half == 0 and T == 0:
                        assert ws.sent > 28 + kk; k.wait(vm=f'w{28+kk}')
                    a = rn(wr, 4) if wr else vr(AR(kk, v), 4)
                    e(f'v_mfma_f32_32x32x16_bf16 {vr(A,16)}, {a}, {vr(HB[T,jp]+4*i,4)}, {vr(A,16) if kk else 0}')
                pre, post = [], []
                if i == 0 and v == 0: pre.append(Op('s', 0, lambda jp=jp, T=T: ls(f'g{half}.{T}{jp}')))
                if half == 0 and T == 0 and v == 0: pre.append(Op('ds', 0, lambda kk=kk: ws.force(116 + 2*kk)))
                if pos + 4 < 56 and ORD[T][pos + 4][0] >= 17: pre.append(aread(*ORD[T][pos + 4]))
                pre.append(hpace(116 + 56*T + 2*kk + v))
                if jp < 6 and not OPT['noh'] & 2: post += hcheck(T, jp + 1)[2*i + v]
                sl.append([[Op('mfma', 8, mf)], pre, post])
        if T == 0: k.slots(sl[:26], rec(lambda: (half or OPT['cntlate'] or cnt_check(vT1 + 1, 1), g2addr())), 24); k.slots(sl[26:], rec(g2more), 28)
        else:
            k.bg_flush(); assert half or ws.ni == 56
            q = [None, None]
            q += rec(lambda: rrd(0))
            if half == 0 and OPT['cntlate']: sl[9][2] += rec(lambda: cnt_check(vSa))
            for c in range(8): q += rec(lambda: rwr(0, c)) + [None, None]
            q += [Op('s', 0, lambda: CHECKED[0])] + rec(lambda: (k.wait(lg='rw'), e('s_barrier'))) + red_final(0, B[2], False) + [None] + rec(lambda: (e('s_barrier'), rrd(1)))
            x = vR + 4
            un = rec(lambda: [e(f'v_and_b32 v{B[7]+n}, s{sFF}, v{x + n//2}' if n & 1 else f'v_lshlrev_b32 v{B[7]+n}, 16, v{x + n//2}') for n in range(8)])
            sl[52][2] += un[:5]; sl[53][2] += un[5:]; sl[54][2] += rec(lambda: rwr(1, 0)); sl[55][2] += rec(lambda: rwr(1, 1))
            k.slots(sl, q, 51)
        log(f'g2({T}) done')
        if OPT['fine'] & 2 and T == 0: stamp(f'D{half}.g20')
    stamp(f'D{half}.g2')
    for c in range(2, 8): rwr(1, c)
    ls(f'd{half}.w'); k.wait(lg='all'); e('s_barrier'); ls(f'd{half}.b')
    k.run(red_final(1, B[2], True))
    stamp(f'D{half}.st')
    if half == 0: epoch()
    k.refill = None
    return False

def only_stream():
    srds((sX0, sW1, sW2, sWS)); e(f's_lshl_b32 s49, s3, 2'); e(f's_add_u32 s49, s49, s{sW}')
    e(f'v_lshlrev_b32 v17, 7, v{vL}'); e(f's_mul_i32 s{sIL}, s49, {14*128}')
    e('s_waitcnt lgkmcnt(0)'); copy_ptrs(True); copy_ptrs(False)
    e(f's_mov_b32 s{sTS}, s50'); nts[0] = 1; tsn.append('start'); e(f's_mov_b32 s{sRETRY}, 20000')
    e('s_mov_b64 exec, 0x3fff')
    if OPT['touch'] & 2: k.vmem(f'buffer_load_dword v19, v17, {sr(sW1,4)}, s{sIL} offen', 'touch')
    if OPT['touch'] & 4: k.vmem(f'buffer_load_dword v19, v17, {sr(sW2,4)}, s{sIL} offen', 'touch')
    e('s_mov_b64 exec, -1')
    stream_setup(); late_setup(); warm(0, 1); warm(1, 5)
    if OPT['touch'] & 8: k.wait(vm='touch')
    stamp('go'); ws.limit = 56; ws.lag = 9
    while ws.ni < 56 or ws.nd < 45:
        n = ws.nd; ws.refill(); k.bg_flush()
        if ws.nd != n and ws.nd % 7 == 0: stamp(f'nd{ws.nd}')
    k.wait(vm='all'); stamp('end'); finish_stamps(); e('s_endpgm')
def main():
    prologue()
    if OPT['only']: return only_stream()
    for half in range(2):
        HALF[0] = half
        phA(half)
        if stop(f'A{half}'): return
        phB(half)
        if ffn(half): return
        if stop(f'D{half}'): return
    finish_stamps()
    e('s_endpgm')
main()
k.tail.append('L_end:')
k.tail.append('s_endpgm')

HEADER = """; Kernarg layout for this problem (88 bytes, ptrs only, base s[0:1]):
;   offset   0: d_in[0] A_x  shape=(1, 2048, 448) dtype=bfloat16 strides=(1835008, 896, 2) contiguous=True
;   offset   8: d_in[1] A_dft_seq_re  shape=(2048, 2048) dtype=bfloat16   (constant DFT table, regenerated in the kernel)
;   offset  16: d_in[2] A_dft_seq_im  shape=(2048, 2048) dtype=bfloat16   (constant)
;   offset  24: d_in[3] A_dft_hid_re  shape=(448, 448) dtype=bfloat16     (constant)
;   offset  32: d_in[4] A_dft_hid_im  shape=(448, 448) dtype=bfloat16     (constant)
;   offset  40: d_in[5] B_x  shape=(1, 2048, 448) dtype=bfloat16          (unused by the reference)
;   offset  48: d_in[6] B_w1  shape=(448, 1792) dtype=bfloat16 strides=(3584, 2) contiguous=True
;   offset  56: d_in[7] B_w2  shape=(1792, 448) dtype=bfloat16 strides=(896, 2) contiguous=True
;   offset  64: d_out     shape=(1, 2048, 448) dtype=bfloat16 (2 bytes/elem)
;
; One persistent launch, one workgroup (4 waves, 512 registers each, 160 KiB LDS) per CU. Written by my own generator script.
;  workers (workgroups 32..255) = 32 clusters x 7 members; a cluster owns 64 rows {t = +-p mod 64}, member g owns 256 columns
;   A: rows s = p mod 32: hidden DFT for 32 frequencies (the other half follows from the real input), LN applied to the result
;      (rstd * (x H - mean * colsum(H)); frequency 0 is 0 after LN), 64-point DFT over the rows      -> U (f16)
;   C: x w1 - mean * colsum(w1), relu                                                                -> h (bf16)
;  workgroups 0..31 put part of the weights into MFMA fragment order, take the column sums of w1 and lay down sentinels.
;  U of layer 1 and the flags of workgroups 0..31 carry a tag = ~(word left in d_ws), which only tells this launch's hand-offs
;  from older bytes; h carries a fixed sign pattern (opposite in the two layers); x2, its row sums and U of layer 2 replace sentinels.
"""
txt, nops = finish(k, OPT['grid'], 256, LDS_SZ, verbose=OPT['verbose'] > 1, pads=PADS if OPT['pads'] else None, header=HEADER)
print(txt)
if TS or OPT['verbose']: print(f'; wait states added: {nops}; stamps: {",".join(tsn)}')
```

```python
import sys, struct, re
from kasm import *

OPT = dict(ts=0, stop='', verbose=0, hq_slot=90, t1_grp=4, grid=256, lag=7, perA=96, perB=96, perG=67, perH=64, rot=0, touch=1, pads=1, hpre=17, nx=8, nA=99, dA=60, nT=2, nK=26, nU=10, nE=10, nU0=0, nS=0, late=750, xack=0, uack=1, ud=0, outsc=11, xd=860, wt=0, usel=1, hsel=1, hl=14, np=2, v8=3, upipe=1, sb=100, nB=4, csw=1, mrg=1, fb=12, ho=1, trim=1, je=3, stag=1, hack=1, ta=7, fl=-1, fc=-1, ja=3, fl2=2, fc2=2, fl3=10, fc3=21, sp=1, l2k=28, css=23, hB0=12, hB1=0, v2=0, w2t=0, imgb=8, wsc='sc1', pP=84, wG1=22, wG2=50, hG2=10, ssp=5, rt=0, clump=80, nbgA=1, nbgG=2, l2first=2, cntlate=1, pS=64, pA=72, pT=84, pK=76, pU=76, pE=80, n0=11, xs0=4, fillslot=6, e0=14, t1_slot=26, hord=0, hdl=18, lead=18, rot2=0, only=0, hq0=94,
           idleU=500, nostats=0, nofill=0, nocnt=0, fine=0, noh=0)
for a in sys.argv[1:]:
    key, val = a.split('=')
    OPT[key] = val if key in ('stop', 'amp', 'ls') else int(val)
AMP = OPT.get('amp')
if AMP: OPT['ts'] = 1
TS, STOP = OPT['ts'], OPT['stop']
TSI = 's_memtime' if TS == 2 else 's_memrealtime'

S, D, F = 2048, 448, 1792
XB = S * D * 2
WS_U1, WS_U2, WS_X2, WS_H = 0, XB, 2 * XB, 3 * XB
WS_SS = WS_H + S * F * 2
NR = 28 - 4*OPT['np']
WFS = (56 - NR) * 2048
WS_WF = WS_SS + 131072
WS_CS = WS_WF + 28 * WFS
WS_FL = WS_CS + 16384
WS_EP = WS_FL + 16384
WS_END = WS_EP + 64
WS_TS = 0x1000000
WS_DBG = 0x1100000
L_X = 0; L_RED = 28672; L_H = 0; L_ST = 64512
L_M = 65536; L_WA = L_M + 8192; WA_SZ = 22528
L_C = lambda half: 57344 if half else L_M
LDS_SZ = L_WA + 4 * WA_SZ
assert LDS_SZ <= 163840
NSLOT = 11
sX0, sW1, sW2, sOUT, sWS = 8, 12, 16, 20, 24
sW, sG, sP, sRB, sRETRY, sWA, sSO, sLO, sHI, sCI = 32, 33, 34, 35, 36, 37, 38, 39, 40, 41
sT = 42
sBG = 48
sMK = 52
sHS = 60
sIM, sIL = 67, 68
sFF = 69
sUO = 4
sRD = 96
sN = 28
sTS = 70
sDBG = 92
sRC = 100
sRO = 101
vL, vL16, vCS, vSa, vSb, vT1, vT2, vA = 0, 1, 2, 6, 7, 8, 10, 12
B = [16 + 16 * i for i in range(8)]; vR = 144
vCA, vSEL, vX = 240, 248, 252
def w1f(n, u): return ar(8 * n + 4 * u, 4)
def w2reg(kk, v):
    if kk < 4: return ('a', 224 + 8 * kk + 4 * v)
    if kk < 17: return ('v', 152 + 8 * (kk - 4) + 4 * v)
    return None
def rn(t, n): return ar(t[1], n) if t[0] == 'a' else vr(t[1], n)
fl = lambda x: '0x%08x' % struct.unpack('<I', struct.pack('<f', x))[0]

k = K(); e = k.e; rec = k.rec; k.clump = OPT['clump']
nts = [0]; tsn = []
def log(msg):
    if OPT['verbose']: print(f'; [{k.clk}] {msg} ni={ws.ni} nd={ws.nd} cs={ws.nc}', file=sys.stderr)
LS = OPT.get('ls')
def ls(name):
    if TS and LS and re.fullmatch(LS, name):
        i = nts[0]; nts[0] += 1; tsn.append(name); assert i < 11
        k._emit(f'{TSI} s[{sTS+2*i}:{sTS+2*i+1}]')
def stamp(name):
    log(name)
    if LS: return ls(name)
    if not TS or (AMP and name != AMP) or ('half' in OPT and name[1] == str(1 - OPT['half']) and name != 'D0.st'): return
    i = nts[0]; nts[0] += 1; tsn.append(name); assert i < 22
    k.wait(lg='all')
    e(f'{TSI} s[50:51]\ns_waitcnt lgkmcnt(0)\ns_mov_b32 s{sTS+i}, s50')
def finish_stamps():
    if not TS: return
    if AMP:
        if AMP[0] == 'H' and not k.in_tail: return
        if AMP[0] == 'R': e(f's_bfe_u32 s{sTS+1}, s{sRC}, {0x40000 + 4*int(AMP[1])}'); e(f's_mul_i32 s{sTS+1}, s{sTS+1}, 100'); e(f's_mov_b32 s{sTS}, 0')
        if not OPT.get('ampall'): e('s_cmp_lg_u32 s2, 100'); e('s_cbranch_scc1 L_exit')
        e(f's_sub_u32 s44, s{sTS+1}, s{sTS}'); e('s_min_u32 s44, s44, 10000'); e('s_mul_i32 s44, s44, 20')
        e('s_memrealtime s[50:51]'); e('s_waitcnt lgkmcnt(0)'); e('s_add_u32 s44, s44, s50')
        e('L_amp:'); e('s_memrealtime s[50:51]'); e('s_waitcnt lgkmcnt(0)'); e('s_sub_u32 s45, s50, s44'); e('s_cmp_lt_i32 s45, 0'); e('s_cbranch_scc1 L_amp')
        return
    e('v_mov_b32 v16, 0')
    e('s_waitcnt lgkmcnt(0)')
    for i in range(nts[0]): e(f'v_writelane_b32 v16, s{sTS + (2*i if LS and not k.in_tail else i)}, {i}')
    e(f'v_writelane_b32 v16, s{sRETRY}, 63'); e(f'v_writelane_b32 v16, s{sRC}, 62')
    e(f's_lshl_b32 s{sT}, s2, 2'); e(f's_add_u32 s{sT}, s{sT}, s{sW}'); e(f's_lshl_b32 s{sT}, s{sT}, 8'); e(f's_add_u32 s{sT}, s{sT}, {WS_TS}')
    e(f'v_lshlrev_b32 v17, 2, v{vL}')
    e(f'buffer_store_dword v16, v17, {sr(sWS,4)}, s{sT} offen')
def stop(name, dump_lds=0):
    if STOP != name: return False
    k.bg_period = None
    k.wait(vm='all', lg='all'); e('s_barrier')
    if dump_lds:
        e(f's_lshl_b32 s{sT}, s{sW}, 10'); e(f'v_add_u32 v20, s{sT}, v{vL16}')
        e(f's_lshl_b32 s{sT}, s2, 16'); e(f's_add_u32 s{sT}, s{sT}, {WS_DBG}')
        for i in range(dump_lds // 4096):
            e(f'ds_read_b128 v[16:19], v20'); e('s_waitcnt lgkmcnt(0)')
            e(f'buffer_store_dwordx4 v[16:19], v20, {sr(sWS,4)}, s{sT} offen'); e('s_nop 1'); e('v_add_u32 v20, 4096, v20')
    finish_stamps(); e('s_endpgm')
    return True

RCLS = {'f0': 0 if 'rf' not in OPT or OPT['rf'] == 0 else 7, 'f1': 0 if 'rf' not in OPT or OPT['rf'] == 1 else 7, 'f2': 0 if 'rf' not in OPT or OPT['rf'] == 2 else 7, 'cnt': 0 if 'rf' not in OPT or OPT['rf'] == 3 else 7, 'U0': 1, 'h0': 2, 'x2': 3, 'img': 4, 'U1': 5, 'h1': 6}
def retry_site(check, reload, name, br='s_cbranch_vccnz', after=None):
    def f():
        slow, ok = k.lab('slow_' + name), k.lab('ok_' + name)
        e(f'{br} {slow}'); e(f'{ok}:')
        k.begin_tail()
        e(f'{slow}:')
        e(f's_cmp_eq_u32 s{sRETRY}, 0'); e(f's_cbranch_scc1 {ok}'); e(f's_sub_u32 s{sRETRY}, s{sRETRY}, 1')
        if TS: e(f's_add_u32 s{sRC}, s{sRC}, {1 << 4*RCLS[name.split("_")[0]]}')
        reload(); k.wait(vm='all', lg='all'); check(); k.wait(vm='all', lg='all')
        e(f'{br} {slow}')
        if after: after()
        e('s_nop 1'); e(f's_branch {ok}')
        k.end_tail()
    k.call(f, 's', 20)
def cnt_load(reg, i=1):
    def f():
        e(f'v_lshlrev_b32 v{reg}, 7, v{vL}'); e(f's_lshl_b32 s{sBG}, s{sW}, 10'); e(f's_add_u32 s{sBG}, s{sBG}, {WS_FL + 12288}')
        e('s_mov_b64 exec, 0xff'); k.vmem(f'buffer_load_dword v{reg}, v{reg}, {sr(sWS,4)}, s{sBG} offen sc1', 'cnt'); e('s_mov_b64 exec, -1')
    k.call(f, 'v', 24)
def cnt_check(reg, i=1):
    chk = lambda: e(f'v_cmp_ne_u32 {sr(sT+4,2)}, s{sN}, v{reg}\ns_nop 0\ns_and_b32 s{sT+4}, s{sT+4}, 0xff')
    k.call(lambda: (k.wait(vm='cnt'), chk(), retry_site(chk, lambda: cnt_load(reg), 'cnt_1', 's_cbranch_scc1'), CHECKED.append(1)), 'v', 36)
CHECKED = []
def flag_load(i=0):
    def f():
        e(f's_lshl_b32 s49, s{sW}, 7'); e(f'v_lshlrev_b32 v{vCS}, 9, v{vL}' if i else f'v_lshlrev_b32 v{vCS}, 9, s{sG}'); e(f's_add_u32 s49, s49, {WS_FL + 4096*i}')
        e(f's_mov_b64 exec, {0x7f if i else 1}'); k.vmem(f'buffer_load_dword v{vCS+1}, v{vCS}, {sr(sWS,4)}, s49 offen sc1', 'flag'); e('s_mov_b64 exec, -1')
    k.call(f, 'v', 24)
def flag_check(i=0):
    chk = lambda: e(f'v_cmp_ne_u32 vcc, s{sN}, v{vCS+1}\ns_nop 0\ns_and_b64 vcc, vcc, {0x7f if i else 1}')
    k.call(lambda: (k.wait(vm='flag'), chk(), retry_site(chk, lambda: flag_load(i), f'f{i}_x', 's_cbranch_scc1')), 'v', 36)
def cs_load():
    def f():
        e(f's_lshl_b32 s49, s{sG}, 2\ns_add_u32 s49, s49, s{sW}\ns_lshl_b32 s49, s49, 9\ns_add_u32 s49, s49, {WS_CS}\nv_and_b32 v{vSa}, 0x1f0, v{vL16}')
        assert ws.sent >= NR; k.vmem(f'buffer_load_dwordx4 {vr(vCS,4)}, v{vSa}, {sr(sWS,4)}, s49 offen sc1', 'cs')
    k.call(f, 's', 24)
def warm(site, first):
    def f():
        if OPT['pads']:
            e('s_mov_b64 exec, 0')
            for w in range(3): e(f's_cmp_eq_u32 s{sW}, {w}'); e(f's_cbranch_scc1 L_pad{first+w}')
            e(f's_branch L_pad{first+3}')
        elif site == 0: e('s_branch L_ret0')
        if site == 0: k.in_tail = True; helper(); k.in_tail = False
        e(f'L_ret{site}:'); e('s_mov_b64 exec, -1'); k.clk += 200
    k.call(f, 's', 250)
PADS = lambda p: 'L_ret0' if p <= 4 else f'L_pad{p+2}' if p <= 6 else 'L_ret1' if p <= 8 else f'L_pad{p+2}' if p <= 14 else 'L_ret2'

class Stream:
    def __init__(s): s.ni = 0; s.nd = 0; s.nc = 56; s.limit = 4; s.lag = 99
    def issue_ops(s):
        n = s.ni; s.ni += 1
        if n >= NR:
            kk = n - 28
            def ld(v):
                if v == 0 and n == NR: e(f's_lshl_b32 s{sSO}, s{sG}, 2\ns_add_u32 s{sSO}, s{sSO}, s{sW}\ns_mul_i32 s{sSO}, s{sSO}, {WFS}\ns_add_u32 s{sSO}, s{sSO}, {WS_WF}')
                if v == 0 and kk == 17: assert s.done == NR; k.wait(lg=f'tr{NR-1}')
                if v == 0 and (kk == 17 or kk > 17 and kk % 2 == 0): e(f's_add_u32 m0, s{sWA}, {(kk - kk % 2 - 17)*2048}')
                if v == 0 and n > NR and n % 2 == 0: e(f's_add_u32 s{sSO}, s{sSO}, 4096')
                t = w2reg(kk, v) if kk >= 0 else ('a', 8*n + 4*v); off = 2048*(n % 2) + 1024*v; tag = f'w{n}' if v else f'wa{n}'
                if t: k.vmem(f'buffer_load_dwordx4 {rn(t,4)}, v{vL16}, {sr(sWS,4)}, s{sSO} offen offset:{off} sc1', tag)
                else: k.vmem(f'buffer_load_dwordx4 v{vL16}, {sr(sWS,4)}, s{sSO} offen offset:{off} sc1 lds', tag)
                if v: s.sent = n + 1
            return [Op('vm', 8, lambda: ld(0), 1), Op('vm', 4, lambda: ld(1), 1)]
        srd = sr(sW1, 4)
        def a():
            if n >= NSLOT: assert s.done > n - NSLOT; k.wait(lg=f'tr{n-NSLOT}')
            elif n >= 4: k.wait(lg=f'xr{n-4}')
            e(f's_add_u32 m0, s{sWA}, {(n % NSLOT)*2048}')
            if n: e(f's_add_u32 s{sSO}, s{sSO}, {16*3584}')
            if n and n % 7 == 0 and OPT['rot']: e(f's_sub_u32 s{sBG}, s{sSO}, {D*3584}\ns_min_u32 s{sSO}, s{sSO}, s{sBG}')
            k.vmem(f'buffer_load_dwordx4 v{vSa}, {srd}, s{sSO} offen lds', f'wa{n}')
        def b(): k.vmem(f'buffer_load_dwordx4 v{vSb}, {srd}, s{sSO} offen offset:1024 lds', f'w{n}'); s.sent = n + 1
        return [Op('s', 12, a, 1), Op('vm', 4, b, 1)]
    def drain_ops(s):
        n = s.nd; s.nd += 1
        so = (n % NSLOT) * 2048
        def rd(u, h2):
            def f():
                assert s.sent > n; k.wait(vm=f'w{n}')
                if n < 28: dst, ad, off = ar(8*n + 4*u + 2*h2, 2), vT1 + u, so + 512*h2
                else:
                    t = w2reg(n - 28, u); dst, ad, off = rn((t[0], t[1] + 2*h2), 2), vT2 + u, so + 1024*h2
                k.ds(f'ds_read_b64_tr_b16 {dst}, v{ad} offset:{off}', f'tr{n}')
                if u and h2: s.done = n + 1
            return Op('ds', 4, f)
        return [rd(0, 0), rd(0, 1), rd(1, 0), rd(1, 1)]
    done = 0; sent = 0
    cs_on = 0; dmax = NR
    def free(s, n): return n - NSLOT < s.nd if n < NR else (n < 45 or s.nd == NR)
    def refill(s):
        can = s.ni < min(56, s.limit) and s.free(s.ni)
        if s.nd < min(NR, s.ni) and s.lag < 99 and (s.ni - s.nd > s.lag or (not can and s.ni > NR)): k.bg += s.drain_ops()
        elif can: k.bg += s.issue_ops()
    def ensure(s, n):
        while s.done <= n:
            if not k.bg:
                if s.ni <= n and s.free(s.ni): k.bg += s.issue_ops()
                else: k.bg += s.drain_ops()
            k.bg_step()
    use = staticmethod(lambda n: 2*n if n < 28 else 116 + 2*(n - 28))
    def force(s, slot):
        if s.sent < s.ni and s.use(s.sent) <= slot + OPT['lead']: k.bg_flush()
        while s.ni < 56 and s.use(s.ni) <= slot + OPT['lead']:
            k.bg_flush()
            while not s.free(s.ni): k.bg += s.drain_ops()
            k.bg += s.issue_ops(); k.bg_flush()
        n = max([-1] + [i for i in range(NR) if s.use(i) <= slot + 4])
        if n >= 0: s.ensure(n)
    def cs_op(s):
        n, u = s.nc >> 1, s.nc & 1; s.nc += 1
        def g():
            assert s.done > n; k.wait(lg=f'tr{n}')
            acc = vr(vCA + 4*u, 4)
            e(f'v_mfma_f32_16x16x32_bf16 {acc}, {vr(vSEL,4)}, {w1f(n, u)}, {acc if n else 0}')
        return Op('mfma', 16, g)
    def cs_flush(s, maxn=99, behind=0):
        while s.nc < 2*min(28, s.done - behind) and maxn > 0: k.run([s.cs_op()]); maxn -= 1
ws = Stream()
def src_off(stride):
    e(f'v_lshrrev_b32 v{vSa}, 3, v{vL}'); e(f'v_lshrrev_b32 v{vSb}, 2, v{vL}'); e(f'v_and_b32 v{vSb}, 4, v{vSb}')
    e(f'v_xor_b32 v{vSb}, v{vSb}, v{vL}'); e(f'v_and_b32 v{vSb}, 7, v{vSb}'); e(f'v_mul_u32_u24 v{vSa}, {stride}, v{vSa}')
    e(f'v_lshl_add_u32 v{vSa}, v{vSb}, 4, v{vSa}'); e(f'v_add_u32 v{vSb}, {8*stride-1024}, v{vSa}')
def tr_addr(dst, sh, t):
    e(f'v_bfe_u32 v{t}, v{vL}, 2, 2'); e(f'v_bfe_u32 v{t+1}, v{vL}, 3, 1'); e(f'v_bfe_u32 v{t+2}, v{vL}, 4, 1'); e(f'v_and_b32 v{t+3}, 3, v{vL}')
    e(f'v_lshlrev_b32 v{t}, 7, v{t}'); e(f'v_lshl_add_u32 v{t}, v{t+1}, 6, v{t}'); e(f'v_lshl_add_u32 v{t}, v{t+2}, 5, v{t}'); e(f'v_lshl_add_u32 v{t}, v{t+3}, 3, v{t}')
    e(f'v_add_u32 v{t}, s{sWA}, v{t}'); e(f'v_lshrrev_b32 v{t+1}, 5, v{vL}')
    e(f'v_lshl_add_u32 v{dst}, v{t+1}, {sh}, v{t}'); e(f'v_xor_b32 v{dst+1}, 64, v{dst}')
def stream_setup():
    src_off(3584)
    rot = OPT['rot']
    e(f's_lshl_b32 s{sSO}, s{sG}, 2'); e(f's_add_u32 s{sSO}, s{sSO}, s{sW}'); e(f's_lshl_b32 s{sSO}, s{sSO}, 7')
    if rot:
        e(f's_and_b32 s{sRO}, s2, 3' if rot == 3 else f's_add_u32 s{sRO}, s2, s{sW}\ns_and_b32 s{sRO}, s{sRO}, 3'); e(f's_mul_i32 s{sT}, s{sRO}, {7*16*3584}'); e(f's_add_u32 s{sSO}, s{sSO}, s{sT}')
def stream_setup2(t):
    tr_addr(vT1, 10, t); e(f'v_add_u32 v{vT2}, s{sWA}, v{vL16}')
def late_setup():
    e(f's_mul_i32 s{sT}, s{sP}, {2*7*16384}'); e(f's_lshl_b32 s{sT+1}, s{sW}, 12'); e(f's_add_u32 s{sT}, s{sT}, s{sT+1}'); e(f's_add_u32 s{sT}, s{sT}, {WS_H}')
    e({0: f's_mov_b32 s{sT+3}, 1', 1: f's_add_u32 s{sT+3}, s{sCI}, 1', 2: f's_and_b32 s{sT+3}, s2, 3\ns_add_u32 s{sT+3}, s{sT+3}, 1'}[OPT['rot2']]); e(f's_mov_b32 s{sT+1}, s{sG}')
    for jp in range(7):
        if jp: e(f's_add_u32 s{sT+1}, s{sT+1}, s{sT+3}'); e(f's_sub_u32 s{sT+2}, s{sT+1}, 7'); e(f's_min_u32 s{sT+1}, s{sT+1}, s{sT+2}')
        e(f's_lshl_b32 s{sT+2}, s{sT+1}, 14'); e(f's_add_u32 s{sHS+jp}, s{sT}, s{sT+2}')

def prologue():
    e('s_load_dwordx2 s[8:9], s[0:1], 0'); e('s_load_dwordx4 s[4:7], s[0:1], 48')
    e('s_load_dwordx2 s[20:21], s[0:1], 64'); e('s_load_dwordx2 s[24:25], s[0:1], 80')
    e('s_getpc_b64 s[46:47]'); e('L_pc:')
    e('v_lshrrev_b32 v1, 6, v0'); e('v_and_b32 v0, 63, v0'); e('s_bfe_u32 s3, s2, 0x50003'); e(f'v_readfirstlane_b32 s{sW}, v1')
    e('v_lshl_add_u32 v2, s3, 2, v1'); e('v_lshl_add_u32 v2, v0, 7, v2'); e('v_lshlrev_b32 v2, 7, v2'); e('v_min_u32 v2, L_end-L_pc, v2')
    e('s_mov_b64 exec, 7'); k.vmem('global_load_dword v3, v2, s[46:47]', 'touch'); e('s_mov_b64 exec, -1')
    e(f'v_lshlrev_b32 v{vL16}, 4, v0')
    e('s_sub_u32 s3, s2, 32'); e('s_cmp_ge_u32 s3, 224'); e('s_cbranch_scc1 L_helper')
    if TS: e(f'{TSI} s[50:51]'); e(f's_mov_b32 s{sRC}, 0')
    e(f's_lshr_b32 s{sT}, s3, 3'); e(f's_mul_i32 s{sCI}, s{sT}, 37'); e(f's_lshr_b32 s{sCI}, s{sCI}, 8')
    e(f's_mul_i32 s{sG}, s{sCI}, 7'); e(f's_sub_u32 s{sG}, s{sT}, s{sG}')
    e(f's_and_b32 s{sP}, s3, 7'); e(f's_lshl_b32 s{sP}, s{sP}, 1'); e(f's_lshr_b32 s{sT}, s{sCI}, 1'); e(f's_add_u32 s{sP}, s{sP}, s{sT}')
    e(f's_sub_u32 s{sT}, 32, s{sP}'); e(f's_cmp_eq_u32 s{sP}, 0'); e(f's_cselect_b32 s{sT}, 16, s{sT}')
    e(f's_bitcmp1_b32 s{sCI}, 0'); e(f's_cselect_b32 s{sP}, s{sT}, s{sP}')
    e(f's_mul_i32 s{sWA}, s{sW}, {WA_SZ}'); e(f's_add_u32 s{sWA}, s{sWA}, {L_WA}')
def srds(which):
    for r, n in ((sX0, XB), (sW1, D*F*2), (sW2, D*F*2), (sOUT, XB), (sWS, 0x2000000 if (TS or STOP) else WS_END)):
        if r in which: e(f's_mov_b32 s{r+2}, {n}'); e(f's_mov_b32 s{r+3}, 0x20000')
def copy_ptrs(first):
    if first: e(f's_mov_b32 s{sW1}, s4'); e(f's_mov_b32 s{sW1+1}, s5')
    else:
        e(f's_mov_b32 s{sW2}, s6'); e(f's_mov_b32 s{sW2+1}, s7')

def helper():
    e('L_helper:')
    e('s_cmp_ge_u32 s2, 32'); e('s_cbranch_scc1 L_exit')
    srds((sW1, sW2, sWS))
    src_off(3584); e(f's_mul_i32 s{sIL}, s{sW}, 14336'); e(f's_mul_i32 s{sIM}, s{sW}, {16*3584}'); e(f's_lshl_b32 s{sT}, s2, 7'); e(f's_add_u32 s{sIM}, s{sIM}, s{sT}'); e(f's_mov_b32 s{sT+1}, {WS_EP}')
    e('s_waitcnt lgkmcnt(0)'); copy_ptrs(True); copy_ptrs(False)
    hs = [0]
    def hstamp(w=None):
        if TS and not AMP:
            if w is not None: e(f's_waitcnt vmcnt({w})')
            e(f'{TSI} s[50:51]\ns_waitcnt lgkmcnt(0)\ns_mov_b32 s{sTS+hs[0]}, s50'); hs[0] += 1
        elif AMP and AMP[0] == 'H':
            if hs[0] in (0, int(AMP[1])): e(f'{TSI} s[50:51]\ns_waitcnt lgkmcnt(0)\ns_mov_b32 s{sTS + (hs[0] > 0)}, s50')
            hs[0] += 1
    hstamp()
    if TS:
        for i in range(1, 5): e(f's_mov_b32 s{sTS+i}, s50')
    e(f'buffer_load_dwordx4 v[140:143], off, {sr(sWS,4)}, s{sT+1} sc1')
    e('s_cmp_ge_u32 s2, 28'); e('s_cbranch_scc1 L_hrest')
    for i in range(7):
        e(f's_add_u32 m0, s{sIL}, {2048*i}')
        if i: e(f's_add_u32 s{sIM}, s{sIM}, {64*3584}')
        e(f'buffer_load_dwordx4 v{vSa}, {sr(sW1,4)}, s{sIM} offen lds'); e(f'buffer_load_dwordx4 v{vSb}, {sr(sW1,4)}, s{sIM} offen offset:1024 lds')
    e('s_branch L_helper2')
    save = k.out; k.out = k.tail
    FB = OPT['fb']; FA = 112 - 7*FB; assert (4*FA + 28*FB)*8192 == 2*XB
    e('L_hrest:')
    if OPT['sp']:
        e(f's_sub_u32 s{sT}, s2, 28'); e(f's_lshl_b32 s{sT}, s{sT}, 2'); e(f's_add_u32 s{sT}, s{sT}, s{sW}'); e(f's_mul_i32 s{sT}, s{sT}, 112'); e(f'v_min_u32 v2, 55, v{vL}')
        for j in range(OPT['sp']):
            for hh in range(2):
                e(f'v_add_u32 v4, s{sT}, v2'); e(f'v_add_u32 v4, {56*hh}, v4'); e('v_lshrrev_b32 v8, 8, v4'); e(f'v_add_u32 v8, {1 + j}, v8'); e('v_subrev_u32 v9, 7, v8'); e('v_min_u32 v8, v8, v9')
                e('v_mul_u32_u24 v4, 896, v4'); e('v_lshl_add_u32 v4, v8, 7, v4'); e(f'buffer_load_dword v144, v4, {sr(sW2,4)}, 0 offen')
    e(f's_sub_u32 s{sT}, s2, 28'); e(f's_mul_i32 s{sT}, s{sT}, {FA*8192}'); e(f's_add_u32 s{sT}, s{sT}, {WS_U2}'); e(f's_mov_b32 s{sT+1}, {FA}'); e('s_waitcnt vmcnt(0)'); e('s_branch L_hfill2')
    e('L_helper2:')
    src_off(896); e(f's_mov_b32 s{sWA}, s{sIL}'); tr_addr(vT1, 10, 12)
    e(f's_mul_i32 s{sWA}, s{sW}, {WA_SZ}'); e(f's_add_u32 s{sWA}, s{sWA}, {L_WA}'); tr_addr(vT2, 9, 12)
    e(f's_lshl_b32 s{sT}, s2, 2'); e(f's_add_u32 s{sT}, s{sT}, s{sW}'); e(f's_mul_i32 s{sT}, s{sT}, {16*896}'); e(f's_lshr_b32 s{sT+1}, s2, 2')
    e(f's_mov_b32 s{sIM}, s{sT}'); e(f's_mov_b32 s{sIL}, s{sT+1}')
    def d2(j0, j1):
        for j in range(j0, j1):
            if j: e(f's_sub_u32 s{sIL}, s{sIL}, 1'); e(f's_min_u32 s{sIL}, s{sIL}, 6')
            e(f's_add_u32 m0, s{sWA}, {2048*j}'); e(f's_lshl_b32 s{sT+2}, s{sIL}, 7'); e(f's_add_u32 s{sT+2}, s{sT+2}, s{sIM}')
            e(f'buffer_load_dwordx4 v{vSa}, {sr(sW2,4)}, s{sT+2} offen lds'); e(f'buffer_load_dwordx4 v{vSb}, {sr(sW2,4)}, s{sT+2} offen offset:1024 lds')
    JE = OPT['je']; d2(0, JE)
    e(f's_waitcnt vmcnt({2*JE})')
    for i in range(7):
        for u in range(2):
            for h2 in range(2): e(f'ds_read_b64_tr_b16 {vr(16+8*i+4*u+2*h2,2)}, v{vT1+u} offset:{2048*i + 512*h2}')
    e(f's_mul_i32 s{sT}, s2, {WFS}'); e(f's_lshl_b32 s{sT+1}, s{sW}, 11'); e(f's_add_u32 s{sT}, s{sT}, s{sT+1}'); e(f's_add_u32 s{sT}, s{sT}, {WS_WF}')
    e(f's_mov_b32 s{sT+4}, 0x3f803f80'); e('v_mov_b32 v72, 0'); e('v_mov_b32 v73, 0'); e('s_waitcnt lgkmcnt(0)')
    NP = OPT['np']
    for i in range(7 - NP, 7):
        for u in range(2): e(f'buffer_store_dwordx4 {vr(16+8*i+4*u,4)}, v{vL16}, {sr(sWS,4)}, s{sT} offen offset:{1024*u} sc1')
        e(f's_add_u32 s{sT}, s{sT}, 8192')
    for i in range(7):
        for m in range(4):
            for u in range(2): e(f'v_dot2c_f32_bf16 v{72+u}, s{sT+4}, v{16+8*i+4*u+m}')
    e(f'v_lshlrev_b32 v4, 2, v{vL}'); e(f'v_add_u32 v4, {L_M}, v4'); e(f's_lshl_b32 s{sT}, s{sW}, 8'); e(f'v_add_u32 v2, s{sT}, v4')
    e('v_permlane32_swap_b32 v72, v73'); e('v_add_f32 v72, v72, v73'); e('ds_write_b32 v2, v72'); e('s_waitcnt lgkmcnt(0)'); e('s_barrier')
    e('ds_read2st64_b32 v[72:73], v4 offset0:0 offset1:1'); e('ds_read2st64_b32 v[74:75], v4 offset0:2 offset1:3')
    e(f'v_and_b32 v76, 0x1f0, v{vL16}'); e(f'v_lshrrev_b32 v2, 5, v{vL}'); e('v_lshl_add_u32 v76, v2, 3, v76'); e(f's_lshl_b32 s{sT}, s2, 9'); e(f's_add_u32 s{sT}, s{sT}, {WS_CS}')
    e('s_waitcnt lgkmcnt(0)'); e('v_add_f32 v72, v72, v73'); e('v_add_f32 v74, v74, v75'); e('v_add_f32 v72, v72, v74')
    e('v_cvt_pk_bf16_f32 v73, v72, v72'); e('v_and_b32 v74, 0xffff0000, v73'); e('v_sub_f32 v75, v72, v74'); e('v_cvt_pk_bf16_f32 v78, v74, v75'); e('v_and_b32 v79, 0xffff, v73')
    e(f's_cmp_lg_u32 s{sW}, 0'); e('s_cbranch_scc1 L_hnocs')
    e(f'buffer_store_dwordx2 v[78:79], v76, {sr(sWS,4)}, s{sT} offen sc1')
    e('L_hnocs:')
    e(f's_and_b32 s{sT}, s2, 3'); e(f's_mul_i32 s{sT}, s{sT}, {WFS}'); e(f's_lshl_b32 s{sT+1}, s{sW}, 11'); e(f's_add_u32 s{sT}, s{sT}, s{sT+1}'); e(f's_add_u32 s{sT}, s{sT}, {WS_WF + 8192*NP}')
    e(f's_lshr_b32 s{sT+1}, s2, 2'); e(f's_mov_b32 s{sT+4}, 0x80008000')
    JA = OPT['ja']
    e(f's_lshl_b32 s{sT+5}, s2, 7'); e(f's_add_u32 s{sT+5}, s{sT+5}, {WS_FL}')
    def reads(j0, j1, younger):
        for j in range(j0, j1):
            e(f's_waitcnt vmcnt({12 - 2*j + younger})')
            for v in range(2):
                for h2 in range(2): e(f'ds_read_b64_tr_b16 {vr(80+8*j+4*v+2*h2,2)}, v{vT2+v} offset:{2048*j + 1024*h2}')
        e('s_waitcnt lgkmcnt(0)')
    def stores(j0, j1):
        for j in range(j0, j1):
            if j: e(f's_sub_u32 s{sT+1}, s{sT+1}, 1'); e(f's_min_u32 s{sT+1}, s{sT+1}, 6'); e(f's_add_u32 s{sT}, s{sT}, 8192')
            e(f's_mul_i32 s{sT+2}, s{sT+1}, {4*WFS}'); e(f's_add_u32 s{sT+2}, s{sT+2}, s{sT}')
            for v in range(2):
                r = 80 + 8*j + 4*v; e(f'v_xor_b32 v{r+3}, s{sT+4}, v{r+3}'); e(f'buffer_store_dwordx4 {vr(r,4)}, v{vL16}, {sr(sWS,4)}, s{sT+2} offen offset:{1024*v} sc1')
    def flag(i, n=0):
        e(f's_waitcnt vmcnt({n})'); e('s_barrier'); e(f's_cmp_lg_u32 s{sW}, 0'); e(f's_cbranch_scc1 L_hsig{i}')
        e(f'v_lshlrev_b32 v145, 2, v{vL}'); e('s_mov_b32 exec_hi, 0'); e(f'buffer_store_dword v5, v145, {sr(sWS,4)}, s{sT+5} offen sc1'); e('s_mov_b32 exec_hi, -1')
        e(f'L_hsig{i}:'); e(f's_add_u32 s{sT+5}, s{sT+5}, 4096'); hstamp()
    e('v_not_b32 v5, v140'); flag(0)
    if OPT['ho'] == 0: d2(JE, 7); reads(0, JA, 0); stores(0, JA); reads(JA, 7, 2*JA); flag(1); stores(JA, 7)
    else:
        assert JA <= JE; reads(0, JA, 20); stores(0, JA); d2(JE, 7); flag(1, 2*(7 - JE)); reads(JA, 7, 0); stores(JA, 7)
    flag(2)
    def fills():
        e(f's_mul_i32 s{sT}, s2, {FB*8192}'); e(f's_add_u32 s{sT}, s{sT}, {WS_U2 + 4*FA*8192}'); e(f's_mov_b32 s{sT+1}, {FB}')
        e('L_hfill2:')
        if OPT['nofill']: e(f's_mov_b32 s{sT+1}, 1')
        for i in range(4): e(f'v_mov_b32 v{12+i}, -1')
        e(f's_lshl_b32 s{sT+2}, s{sW}, 10'); e(f'v_add_u32 v10, s{sT+2}, v{vL16}')
        e(f's_lshl_b32 s{sT+2}, s2, 12'); e(f's_add_u32 s{sT+2}, s{sT+2}, {WS_SS}'); e(f'buffer_store_dwordx4 v[12:15], v10, {sr(sWS,4)}, s{sT+2} offen sc1')
        e('L_fill:')
        for j in range(2): e(f'buffer_store_dwordx4 v[12:15], v10, {sr(sWS,4)}, s{sT} offen sc1'); e(f's_add_u32 s{sT}, s{sT}, 4096')
        e(f's_sub_u32 s{sT+1}, s{sT+1}, 1'); e(f's_cmp_lg_u32 s{sT+1}, 0'); e('s_cbranch_scc1 L_fill')
        e(f's_lshl_b32 s{sT+5}, s2, 7'); e(f's_add_u32 s{sT+5}, s{sT+5}, {WS_FL + 12288}'); e('s_waitcnt vmcnt(0)'); e('v_not_b32 v5, v140')
        flag(3)
    if OPT['l2k'] < 28:
        k0 = OPT['l2k']
        e('s_cmp_ge_u32 s2, 24'); e('s_cbranch_scc1 L_hfill')
        e(f'v_min_u32 v2, 27, v{vL}'); e('v_lshlrev_b32 v2, 7, v2'); e(f's_mov_b32 s{sT}, {WS_FL + 4096}'); e(f's_mov_b32 s{sT+1}, 8')
        e('L_l2w:'); e(f'buffer_load_dword v4, v2, {sr(sWS,4)}, s{sT} offen sc1'); e(f's_sub_u32 s{sT+1}, s{sT+1}, 1'); e('s_cbranch_scc1 L_hfill')
        e('s_waitcnt vmcnt(0)'); e('v_cmp_ne_u32 vcc, v4, v5'); e('s_cbranch_vccnz L_l2w')
        e(f's_lshr_b32 s{sT}, s2, 3'); e(f's_lshl_b32 s{sT}, s{sT}, 2'); e(f's_add_u32 s{sT}, s{sT}, s{sW}'); e(f's_mul_i32 s{sT}, s{sT}, 38')
        e(f'v_min_u32 v2, 37, v{vL}'); e(f'v_add_u32 v2, s{sT}, v2'); e('v_min_u32 v2, 447, v2'); e('v_lshrrev_b32 v4, 4, v2'); e('v_and_b32 v2, 15, v2')
        e(f'v_mul_u32_u24 v4, {WFS}, v4'); e('v_lshl_add_u32 v4, v2, 7, v4'); e(f's_mov_b32 s{sT}, {WS_WF + 8192*NP + 2048*k0}'); e(f's_mov_b32 s{sT+1}, {28 - k0}')
        e('s_mov_b32 exec_hi, 0x3f')
        e('L_l2:'); e(f'buffer_load_dword v8, v4, {sr(sWS,4)}, s{sT} offen sc1'); e(f's_add_u32 s{sT}, s{sT}, 2048')
        e(f's_sub_u32 s{sT+1}, s{sT+1}, 1'); e(f's_cmp_lg_u32 s{sT+1}, 0'); e('s_cbranch_scc1 L_l2'); e('s_mov_b32 exec_hi, -1'); hstamp(0)
        e('L_hfill:')
    fills()
    if TS and (not AMP or AMP[0] == 'H'):
        n = nts[0]; nts[0] = 8; finish_stamps(); nts[0] = n
    e('L_exit:'); e('s_endpgm')
    k.out = save

HALF = [0]
def gen_H():
    ef, a0, tc, q8 = 72, 73, 74, 75
    P0, P1, PK = 76, 84, 92
    e(f'v_and_b32 v{ef}, 15, v{vL}'); e(f's_and_b32 s{sT}, s{sW}, 1'); e(f's_lshl_b32 s{sT+1}, s{sG}, 5'); e(f's_add_u32 s{sT}, s{sT}, s{sT+1}')
    e(f'v_lshl_add_u32 v{ef}, v{ef}, 1, s{sT}'); e(f'v_mov_b32 v{a0}, 224'); e(f'v_cmp_eq_u32 vcc, 0, v{ef}')
    e(f'v_lshrrev_b32 v{q8}, 4, v{vL}'); e(f's_lshl_b32 s{sT+1}, s{sT+1}, 1'); e(f'v_lshl_add_u32 v{q8}, v{q8}, 3, s{sT+1}')
    e(f'v_cndmask_b32 v{ef}, v{ef}, v{a0}, vcc'); e(f'v_cvt_f32_u32 v{q8}, v{q8}'); e(f'v_cvt_f32_u32 v{ef}, v{ef}')
    e(f's_cmp_ge_u32 s{sW}, 2\ns_cselect_b32 s{sT}, {fl(-112.0)}, 0')
    e(f'v_fma_f32 v{a0}, v{q8}, v{ef}, s{sT}'); e(f'v_mul_f32 v{ef}, {fl(1.0/448)}, v{ef}'); e(f'v_mul_f32 v{q8}, {fl(1.0/448)}, v{a0}')
    e(f'v_rndne_f32 v{q8}, v{q8}'); e(f'v_fmamk_f32 v{a0}, v{q8}, {fl(-448.0)}, v{a0}'); e(f'v_mul_f32 v{a0}, {fl(1.0/448)}, v{a0}')
    e(f'v_mul_f32 v{tc}, {fl(32.0)}, v{ef}'); e(f'v_cos_f32 v{tc}, v{tc}')
    e(f's_mul_i32 s{sT}, s{sW}, {7*1024}'); e(f's_add_u32 s{sT}, s{sT}, {L_H}'); e(f'v_add_u32 v{q8}, s{sT}, v{vL16}')
    e(f'v_add_f32 v{tc}, v{tc}, v{tc}')
    for kap in range(7):
        cur, prv = (P0, P1) if kap % 2 == 0 else (P1, P0)
        if HALF[0]: ls(f'H.{kap}')
        if kap < 2:
            for jj in range(8): e(f'v_fmamk_f32 v{cur+jj}, v{ef}, {fl(32.0*kap+jj)}, v{a0}')
            for jj in range(8): e(f'v_cos_f32 v{cur+jj}, v{cur+jj}')
        else:
            for jj in range(0, 8, 2): e(f'v_pk_fma_f32 {vr(cur+jj,2)}, {vr(tc,2)}, {vr(prv+jj,2)}, {vr(cur+jj,2)} op_sel_hi:[0,1,1] neg_lo:[0,0,1] neg_hi:[0,0,1]')
        pk = PK + 4*(kap % 2)
        for m in range(4): e(f'v_cvt_pk_bf16_f32 v{pk+m}, v{cur+2*m}, v{cur+2*m+1}')
        k.ds(f'ds_write_b128 v{q8}, {vr(pk,4)} offset:{1024*kap}', 'Hw')
def gen_F(dst, tb=100, T=120):
    mf, a0, t = tb, tb + 1, tb + 2
    e(f'v_bfe_u32 v{mf}, v{vL}, 1, 3'); e(f's_lshl_b32 s{sT}, s{sW}, 3'); e(f'v_add_u32 v{mf}, s{sT}, v{mf}')
    e(f'v_and_b32 v{t}, 1, v{vL}'); e(f'v_cvt_f32_u32 v{a0}, v{t}'); e(f'v_cmp_eq_u32 vcc, 0, v{mf}')
    e(f'v_lshlrev_b32 v{t}, 5, v{t}'); e(f'v_mul_f32 v{a0}, {fl(-0.25)}, v{a0}')
    e(f'v_cndmask_b32 v{mf}, v{mf}, v{t}, vcc'); e(f'v_cndmask_b32 v{a0}, v{a0}, 0, vcc')
    e(f'v_bfe_i32 v{t+1}, v{mf}, 0, 1'); e(f'v_cvt_f32_u32 v{mf}, v{mf}'); e(f'v_and_b32 v{t}, 48, v{vL}'); e(f'v_cvt_f32_u32 v{t}, v{t}'); e(f'v_and_b32 v{t+1}, 0x80008000, v{t+1}')
    e(f'v_mul_f32 v{mf}, {fl(1.0/128)}, v{mf}'); e(f'v_fma_f32 v{a0}, v{t}, v{mf}, v{a0}')
    for k1 in range(2):
        for jj in range(4): e(f'v_fmamk_f32 v{T+4*k1+jj}, v{mf}, {fl(2.0*k1 + 4.0*jj)}, v{a0}')
    for i in range(8): e(f'v_cos_f32 v{T+i}, v{T+i}')
    for k1 in range(2):
        for m in range(2): e(f'v_cvt_pk_f16_f32 v{dst+4*k1+m}, v{T+4*k1+2*m}, v{T+4*k1+2*m+1}')
    for k1 in range(2):
        for m in range(2): e(f'v_xor_b32 v{dst+4*k1+2+m}, v{dst+4*k1+m}, v{t+1}')
def gen_M(t0):
    j, s2f, ad = t0, t0 + 1, t0 + 2
    e(f'v_and_b32 v{j}, 31, v{vL}'); e(f'v_lshlrev_b32 v{j}, 6, v{j}')
    S2 = t0 + 36
    e(f'v_lshrrev_b32 v{s2f}, 5, v{vL}'); e(f's_add_u32 s{sT}, s{sW}, s{sG}'); e(f's_and_b32 s{sT}, s{sT}, 3'); e(f's_lshl_b32 s{sT}, s{sT}, 2')
    for jj in range(4):
        if jj: e(f's_add_u32 s{sT}, s{sT}, 1')
        e(f's_lshl_b32 s{sT+1}, s{sT}, 1'); e(f's_sub_u32 s{sT+1}, 32, s{sT+1}')
        if jj == 0: e(f's_cmp_eq_u32 s{sT}, 0\ns_cselect_b32 s{sT+1}, 16, s{sT+1}')
        e(f'v_mul_u32_u24 v{S2+jj}, s{sT+1}, v{s2f}'); e(f'v_add_u32 v{S2+jj}, s{sT}, v{S2+jj}'); e(f'v_cvt_f32_u32 v{S2+jj}, v{S2+jj}')
    e(f's_lshl_b32 s{sT}, s{sW}, 10'); e(f's_add_u32 s{sT}, s{sT}, {L_M}'); e(f'v_add_u32 v{ad}, s{sT}, v{vL16}')
    e(f's_cmp_eq_u32 s{sP}, 0\ns_cselect_b32 s{sT}, {fl(0.25)}, 0')
    for pq in range(2):
        T = t0 + 4 + 16*pq
        tf, a0 = T + 12, T + 13
        e(f'v_add_u32 v{tf}, s{sRB if pq else sP}, v{j}'); e(f'v_cvt_f32_u32 v{tf}, v{tf}'); e(f'v_mul_f32 v{tf}, {fl(1.0/2048)}, v{tf}')
        for jj in range(4): e(f'v_fma_f32 v{T+jj}, v{tf}, v{S2+jj}, s{sT}' if pq else f'v_mul_f32 v{T+jj}, v{tf}, v{S2+jj}')
        for jj in range(4): e(f'v_sin_f32 v{T+4+jj}, v{T+jj}')
        for jj in range(4): e(f'v_cos_f32 v{T+jj}, v{T+jj}')
        for jj in range(4): e(f'v_cvt_pk_f16_f32 v{T+8+jj}, v{T+jj}, v{T+4+jj}')
        k.ds(f'ds_write_b128 v{ad}, {vr(T+8,4)} offset:{4096*pq}', 'Mw')

def img_ops(half, T):
    ops = []; rho = sRB if T else sP
    if half == 0:
        for r in range(8):
            def f(r=r):
                if r == 0: e(f's_lshl_b32 s{sIM}, s{sW}, 9\ns_add_u32 s{sIM}, s{sIM}, s{rho}\ns_mul_i32 s{sIM}, s{sIM}, 896\ns_mul_i32 s{sIL}, s{sW}, {8*912}')
                else: e(f's_add_u32 s{sIM}, s{sIM}, 57344')
                e(f's_add_u32 m0, s{sIL}, {L_X + 912*(32*T + r)}'); e('s_mov_b32 exec_hi, 0x00ffffff')
                k.vmem(f'buffer_load_dwordx4 v{vL16}, {sr(sX0,4)}, s{sIM} offen lds', f'img{T}'); e('s_mov_b32 exec_hi, -1')
            ops.append(Op('s', 20, f, 1))
    else:
        for i in range(7):
            def f(i=i):
                if i == 0: e(f's_mul_i32 s{sIL}, s{sW}, 7168\ns_add_u32 m0, s{sIL}, {L_X + 28672*T}\ns_mul_i32 s{sIM}, s{rho}, 28672\ns_add_u32 s{sIM}, s{sIM}, s{sIL}\ns_add_u32 s{sIM}, s{sIM}, {WS_X2}')
                if i == 4: e(f's_add_u32 m0, m0, 4096\ns_add_u32 s{sIM}, s{sIM}, 4096')
                k.vmem(f'buffer_load_dwordx4 v{vL16}, {sr(sWS,4)}, s{sIM} offen offset:{1024*(i%4)} sc1 lds', f'img{T}')
            ops.append(Op('s' if i % 4 == 0 else 'vm', 4, f, 1))
    return ops

XF = lambda kap: 16 + 4 * kap
BORD = [0, 3, 4, 1, 5, 2, 6]
IMG_LATE = []; ADR = []
SX = [0, 1, 3, 4, 5, 6, 7]
def x2_loads(first):
    for kp in range(first, 7):
        for kap in (kp, kp + 7):
            k.vmem(f'buffer_load_dwordx4 {vr(XF(kap),4)}, v{vL16}, {sr(sWS,4)}, s{SX[kap//2]} offen offset:{1024*(kap%2)} sc1', f'x{kap}')
def phA(half):
    aT = [72, 76, 84, 88]; aHi = {1: 80, 3: 92}; aS, aG = 96, 100
    HR = [104, 120]; ones = 136; Ff = 140; t = 148
    vx, vh, vtr, vu, vcw, k1 = vA, vL16, vA + 2, vA + 3, 150, 151
    lc = L_C(half); vHS = vT2 + 1; aH = aG if half else 164
    def misc():
        if half == 0:
            mk = [0x1000010000100001, 0x2000020000200002, 0x4000040000400004, 0x8000080000800008]
            for i in range(4): e(f's_mov_b32 s{sMK+2*i}, {mk[i] & 0xffffffff:#x}'); e(f's_mov_b32 s{sMK+2*i+1}, {mk[i] >> 32:#x}')
        else: e(f's_mov_b32 s{sMK}, -1'); e(f's_mov_b32 s{sMK+1}, 0xffff')
        e(f'v_and_b32 v{t}, 15, v{vL}'); e(f'v_lshrrev_b32 v{t+1}, 4, v{vL}');
        if OPT['csw']: e(f'v_lshrrev_b32 v{vtr}, 2, v{t}'); e(f'v_xor_b32 v{vtr}, v{vtr}, v{t+1}'); e(f'v_lshlrev_b32 v{vcw}, 5, v{t}'); e(f'v_lshl_add_u32 v{vcw}, v{vtr}, 3, v{vcw}')
        else: e(f'v_lshlrev_b32 v{vcw}, 5, v{t}'); e(f'v_lshl_add_u32 v{vcw}, v{t+1}, 3, v{vcw}')
        e(f's_lshl_b32 s{sT}, s{sW}, 9'); e(f's_add_u32 s{sT}, s{sT}, {lc}'); e(f'v_add_u32 v{vcw}, s{sT}, v{vcw}')
        e(f's_lshl_b32 s{sT}, s{sW}, 2'); e(f'v_add_u32 v{vu}, s{sT}, v{t+1}'); e(f'v_cmp_eq_u32 vcc, 0, v{vu}')
        e(f'v_mul_u32_u24 v{vu}, {2*57344}, v{vu}'); e(f'v_lshl_add_u32 v{vu}, v{t}, 4, v{vu}'); e(f'v_cndmask_b32 v{k1}, -1.0, 0, vcc')
        e(f's_and_b32 s{sT+4}, s2, 7'); e(f's_lshl_b32 s{sT+4}, s{sT+4}, 2'); e(f's_add_u32 s{sT+4}, s{sT+4}, s{sCI}'); e(f's_mul_i32 s{sT+4}, s{sT+4}, 7'); e(f's_add_u32 s{sT+4}, s{sT+4}, s{sG}'); e(f's_lshl_b32 s{sT+4}, s{sT+4}, 8'); e(f's_add_u32 s{sT+4}, s{sT+4}, {WS_U2 if half else WS_U1}')
        e(f's_add_u32 s{sT+5}, s{sT+4}, 57344'); e(f'v_xor_b32 v{vtr}, v{vL}, v{t+1}' if OPT['csw'] else f'v_mov_b32 v{vtr}, v{vL}'); e(f'v_lshlrev_b32 v{vtr}, 3, v{vtr}'); e(f'v_add_u32 v{vtr}, {lc}, v{vtr}')
    hread = lambda kp: rec(lambda: [k.ds(f'ds_read_b128 {vr(HR[kp%2]+4*tl,4)}, v{vh} offset:{L_H + (7*tl+kp)*1024}', f'H{kp}{tl}') for tl in (1, 3, 0, 2)])
    st_load = lambda: k.vmem(f'buffer_load_dwordx4 {vr(ones,4)}, v{vL16}, {sr(sWS,4)}, s49 offen sc1', 'ss')
    if half == 0:
        va, vb = vX, vX + 1
        srds((sX0,))
        e(f'v_lshrrev_b32 v{va}, 3, v{vL}'); e(f'v_lshrrev_b32 v{vb}, 4, v{vL}'); e(f'v_xor_b32 v{vb}, v{vb}, v{vL}'); e(f'v_and_b32 v{vb}, 7, v{vb}')
        e(f'v_mul_u32_u24 v{va}, 57344, v{va}'); e(f'v_lshl_add_u32 v{va}, v{vb}, 4, v{va}')
        e(f'v_xor_b32 v{vb}, 64, v{va}'); e(f'v_add_u32 v{vb}, {8*57344-1024}, v{vb}')
        e(f's_lshr_b32 s{sT}, s{sW}, 1'); e(f's_lshl_b32 s{sT}, s{sT}, 5'); e(f's_add_u32 s{sT}, s{sT}, s{sP}')
        e(f's_and_b32 s{sT+1}, s{sW}, 1'); e(f's_lshl_b32 s{sT+1}, s{sT+1}, 10'); e(f's_add_u32 s{sT}, s{sT}, s{sT+1}'); e(f's_mul_i32 s3, s{sT}, 896')
        e(f's_lshl_b32 s{sIM}, s{sG}, 7')
        def xdma(i):
            b = BORD[i]
            def a():
                if b: e(f's_add_u32 s{sBG}, s{sIM}, {128*b}\ns_sub_u32 s{sIL}, s{sBG}, 896\ns_min_u32 s{sBG}, s{sBG}, s{sIL}')
                e(f's_add_u32 m0, s{sWA}, {8192 + 2048*i}\ns_add_u32 s{sBG}, s3, s{sBG if b else sIM}')
                if i == 0:
                    if OPT['rt']:
                        e(f'v_lshl_add_u32 v4, s{sG}, 4, v{vL}'); e('v_mul_u32_u24 v5, 37, v4'); e('v_lshrrev_b32 v5, 8, v5') if False else None
                        e('v_mul_u32_u24 v5, 9363, v4'); e('v_lshrrev_b32 v5, 16, v5'); e(f'v_mul_u32_u24 v5, {57344-896}, v5'); e('v_lshl_add_u32 v4, v4, 7, v5')
                    e('s_waitcnt lgkmcnt(0)')
                    if TS: e(f's_mov_b32 s{sTS}, s50'); nts[0] = 1; tsn.append('start')
                    if OPT['rt']: e('s_mov_b64 exec, 0xffff'); k.vmem(f'buffer_load_dword v5, v4, {sr(sX0,4)}, s3 offen', 'touch'); e('s_mov_b64 exec, -1')
                k.vmem(f'buffer_load_dwordx4 v{va}, {sr(sX0,4)}, s{sBG} offen lds', f'xa{b}')
            return [Op('s', 24, a), Op('vm', 4, lambda: k.vmem(f'buffer_load_dwordx4 v{vb}, {sr(sX0,4)}, s{sBG} offen offset:1024 lds', f'xb{b}'))]
        xs = []
        for i in range(7): xs += xdma(i)
        k.run(xs[:4]); t0 = k.clk
        if OPT['fine'] & 1: stamp('iss')
        def rest():
            copy_ptrs(True); srds((sW1, sWS)); e(f's_sub_u32 s{sRB}, 64, s{sP}'); e(f's_cmp_eq_u32 s{sP}, 0\ns_cselect_b32 s{sRB}, 32, s{sRB}')
            gen_H()
            for i in range(4): e(f'v_mov_b32 v{ones+i}, 0x3f803f80')
            e(f'v_and_b32 v{t}, 15, v{vL}'); e(f'v_lshrrev_b32 v{t+1}, 4, v{vL}')
            e(f'v_lshrrev_b32 v{vx}, 1, v{t}'); e(f'v_xor_b32 v{vx}, v{vx}, v{t+1}'); e(f'v_lshlrev_b32 v{t}, 7, v{t}'); e(f'v_lshl_add_u32 v{t}, v{vx}, 4, v{t}')
            e(f's_add_u32 s{sT}, s{sWA}, 8192'); e(f'v_add_u32 v{vx}, s{sT}, v{t}'); e(f'v_xor_b32 v{vx+1}, 64, v{vx}')
            stream_setup()
            if OPT['trim'] < 2: warm(0, 1)
            if not OPT['trim']: rest2()
        def rest2():
            stream_setup2(152); copy_ptrs(False); srds((sW2, sOUT))
            e(f's_mov_b32 s{sRETRY}, 20000'); e(f's_mov_b32 s{sLO}, 0x3f80'); e(f's_mov_b32 s{sHI}, 0x3f800000'); e(f's_mov_b32 s{sFF}, 0xffff0000')
            misc(); gen_F(Ff, 152, 156); e(f'v_mov_b32 v{vX+2}, 0x10001')
        nx = OPT['nx']
        if OPT.get('xprobe'):
            k.run(xs[4:nx]); ls('p.i'); k.wait(vm='xb0'); ls('p.0'); k.wait(vm='xb3'); ls('p.1'); k.run(xs[nx:]); k.wait(vm='xb1'); ls('p.3'); k.wait(vm='xb6'); ls('p.6'); xs = xs[:4]
        fill = k.weave(xs[4:nx], rec(rest), 64)
        while fill and k.clk < t0 + OPT['late']: fill.pop(0)()
        epl = Op('s', 16, lambda: (e(f's_mov_b32 s{sBG}, {WS_EP}'), e('s_mov_b64 exec, 1'), k.vmem(f'buffer_load_dwordx4 {vr(vSEL,4)}, off, {sr(sWS,4)}, s{sBG} sc1', 'ep'), e('s_mov_b64 exec, -1')), 1)
        k.bg += [Op(o.kind, o.cost, o.fn, 1) for o in xs[nx:]] + [epl]
        def touch():
            e(f's_sub_u32 s{sBG}, s2, 32\ns_lshl_b32 s{sBG}, s{sBG}, 2\ns_add_u32 s{sBG}, s{sBG}, s{sW}\ns_mul_i32 s{sBG}, s{sBG}, {14*128}\nv_lshlrev_b32 v4, 7, v{vL}\ns_mov_b64 exec, 0x3fff')
            if OPT['w2t'] & 2: k.vmem(f'buffer_load_dword v5, v4, {sr(sW1,4)}, s{sBG} offen', 'touch')
            if OPT['w2t'] & 1: k.vmem(f'buffer_load_dword v2, v4, {sr(sW2,4)}, s{sBG} offen', 'touch')
            e('s_mov_b64 exec, -1')
        im = img_ops(0, 1); nb = OPT['imgb']; IMG_LATE[:] = im[nb:]
        after = im[:nb] + ([Op('s', 36, touch, 1)] if OPT['w2t'] else []); k.bg += after
        k.seg(999, 999*OPT['pS'])
        k.run(fill)
        while len(k.bg) > len(after): k.bg_step()
        if OPT['trim'] == 2: warm(0, 1)
        k.quota = len(k.bg) + OPT['nA']
        k.refill = ws.refill
        k.wait(lg='Hw'); e('s_barrier')
        k.run(hread(0))
    else:
        t0 = k.clk
        fill = rec(lambda: (gen_H(), misc(), k.wait(lg='Hw'), e('s_barrier'), k.run(hread(0)), gen_F(Ff), e(f'v_mul_u32_u24 v{t+1}, 80, v{t+1}'), [k.ds(f'ds_bpermute_b32 v{aH+r}, v{t+1}, v{vHS} offset:{4*r}', 'hs') for r in range(4)]))
        while fill and k.clk < t0 + OPT['xd']: fill.pop(0)()
        if OPT['xack']: k.wait(vm='xst')
        stamp('A1.ack')
        ld = rec(lambda: x2_loads(0)); ld = ld[:OPT['ssp']] + rec(st_load) + ld[OPT['ssp']:]
        k.run(ld[:4])
        k.run(k.weave(ld[4:11], fill, 60))
        later = ld[11:] + img_ops(1, 1)
    stamp(f'A{half}.consts')
    def xread(i):
        b = BORD[i]
        def g(h):
            k.wait(vm=f'xb{b}'); k.ds(f'ds_read_b128 {vr(XF(2*b+h),4)}, v{vx+h} offset:{2048*i}', f'xr{i}')
            if h: ws.limit = 5 + i if i < 6 else NR
        return [Op('ds', 8, lambda: g(0)), Op('ds', 4, lambda: g(1))]
    def xchk(k0, k1_, ss=False):
        d = ones
        def chk():
            r = [XF(x) for kp in range(k0, k1_ + 1) for x in (kp, kp + 7)]
            if ss:
                e(f'v_cndmask_b32 v{d+2}, 0, v{d+2}, {sr(sMK,2)}'); e(f'v_cndmask_b32 v{d+3}, 0, v{d+3}, {sr(sMK,2)}'); r += [d, d + 1, d + 2, d + 3]
            e(f'v_max_u32 v{t+1}, v{r[0]}, v{r[1]}')
            for i in range(2, len(r), 2): e(f'v_max3_u32 v{t+1}, v{t+1}, v{r[i]}, v{r[i+1]}')
            e(f'v_cmp_eq_u32 vcc, -1, v{t+1}')
        return rec(lambda: (k.wait(vm=f'x{k1_+7}'), chk(), retry_site(chk, lambda: (x2_loads(k0), k0 <= 2 and st_load()), f'x2_{k0}')))
    k.depth += 1
    if half == 0: k.run(xread(0) + xread(1))
    else: k.run(xchk(0, 1))
    k.depth -= 1
    def rstd():
        e(f'v_fmamk_f32 v{t}, v{t}, {fl(-1.0/448)}, v{aS}')
        e(f'v_min_f32 v{t}, 0, v{t}'); e(f'v_sub_f32 v{t}, {fl(1e-5)}, v{t}'); e(f'v_rsq_f32 v{t}, v{t}')
    def scale(tl, pk):
        a = aT[tl]
        if pk:
            if tl == 0:
                for r in (0, 2): e(f'v_pk_fma_f32 {vr(a+r,2)}, {vr(aH+r,2)}, {vr(aS+2,2)}, {vr(a+r,2)} op_sel_hi:[1,0,1]')
            if tl in aHi:
                for r in (0, 2): e(f'v_pk_add_f32 {vr(a+r,2)}, {vr(a+r,2)}, {vr(aHi[tl]+r,2)} neg_lo:[0,1] neg_hi:[0,1]')
            for r in (0, 2): e(f'v_pk_mul_f32 {vr(a+r,2)}, {vr(a+r,2)}, {vr(t,2)} op_sel_hi:[1,0]')
        else:
            for r in range(4): e(f'v_sub_f32 v{a+r}, v{a+r}, v{aHi[tl]+r}')
            for r in range(4): e(f'v_mul_f32 v{a+r}, v{a+r}, v{t}')
        for m in range(2): e(f'v_cvt_pk_f16_f32 v{a+m}, v{a+2*m}, v{a+2*m+1}')
        k.ds(f'ds_write_b64 v{vcw}, {vr(a,2)} offset:{2048*tl}', 'cw')
    sl = []; o0 = 0 if half else 4
    for kp in range(7):
        lo, hi = vr(XF(kp), 4), vr(XF(kp+7), 4)
        c = lambda a: vr(a, 4) if kp else '0'
        mm = lambda d, a, b, cc: f'v_mfma_f32_16x16x32_bf16 {vr(d,4)}, {a}, {b}, {cc}'
        ms = [] if half else [mm(aS, vr(ones, 4), lo, c(aS)), mm(aG, lo, lo, c(aG)), mm(aS, vr(ones, 4), hi, vr(aS, 4)), mm(aG, hi, hi, vr(aG, 4))]
        ms += [mm(aT[tl], vr(HR[kp%2]+4*tl, 4), lo, c(aT[tl])) for tl in (1, 3, 0, 2)]
        ms += [mm(aHi[tl], vr(HR[kp%2]+4*tl, 4), hi, c(aHi[tl])) if tl in aHi else mm(aT[tl], vr(HR[kp%2]+4*tl, 4), hi, vr(aT[tl], 4)) for tl in (1, 3, 0, 2)]
        if kp == 6: ms = ms[:o0] + [ms[o0 + i] for i in (0, 4, 1, 5, 2, 6, 3, 7)]
        cur = [[rec(lambda m=m: e(m)), [], []] for m in ms]; cur[0][1].append(Op('s', 0, lambda kp=kp: ls(f'a{half}.{kp}')))
        if half == 0:
            cur[0][0] = rec(lambda: k.wait(lg=f'xr{min(kp+1, 6)}')) + cur[0][0]
            cur[o0][0] = rec(lambda: e(mm(aH, vr(HR[kp%2], 4), vr(ones, 4), c(aH)))) + cur[o0][0]
        if half == 0: cur[o0][0] = rec(lambda: k.wait(lg=f'H{kp}2')) + cur[o0][0]
        else:
            cur[0][0] = rec(lambda: k.wait(lg=f'H{kp}3')) + cur[0][0]; i2 = 4 if kp == 6 else 2; cur[i2][0] = rec(lambda: k.wait(lg=f'H{kp}2')) + cur[i2][0]
        if kp < 6:
            for i, o in enumerate(hread(kp + 1)): cur[o0 + i][1].append(o)
            if half == 0 and kp < 5:
                for i, o in enumerate(xread(kp + 2)): cur[2 + i][1].append(o)
        sl += cur
    if half == 0:
        k.bg_period = OPT['pA']
        ep = rec(lambda: (k.wait(vm='ep'), [e(f'v_readfirstlane_b32 s{sN+i}, v{vSEL+i}') for i in range(4)], [e(f's_not_b32 s{sN+i}, s{sN+i}') for i in range(4)]))
        for i, o in enumerate(ep): sl[68 + i][2].append(o)
        def stats():
            e(f'v_cndmask_b32 v{t}, 0, v{aG}, {sr(sMK,2)}')
            for r in range(1, 4): e(f'v_cndmask_b32 v{t}, v{t}, v{aG+r}, {sr(sMK+2*r,2)}')
            e(f'v_mul_f32 v{aS+2}, {fl(-2.0/448)}, v{aS}'); e(f'v_mul_f32 v{aS}, {fl(1.0/448)}, v{aS}')
            for sw in ('16', '32'):
                e(f'v_mov_b32 v{t+1}, v{t}')
                if sw == '16': e(f'v_mul_f32 v{aS}, v{aS}, v{aS}')
                e(f'v_permlane{sw}_swap_b32 v{t}, v{t+1}'); e(f'v_add_f32 v{t}, v{t}, v{t+1}')
            rstd()
        k.slots(sl[:80], rec(rest2) if OPT['trim'] else [], 78, nbg=OPT['nbgA'], res0=0)
        if OPT['fine'] & 1: stamp(f'A{half}.mf')
        k.bg_period = OPT['pT']
        st = rec(stats)
        for i in range(80, 84): sl[i][2] += st[:2]; st = st[2:]
        k.slots(sl[80:], nbg=0)
        k.run(st)
    else:
        d = ones
        for at, o in (((12, 12, 12, 13, 13, 14, 14, 14, 15), xchk(2, 3, True)), ((29, 29, 30, 30, 31), xchk(4, 5)), ((46, 46, 47, 47), xchk(6, 6))):
            assert len(at) == len(o)
            for i, x in zip(at, o): sl[i][2].append(x)
        for i, x in zip((4, 5, 6, 7, 20, 21, 22, 23, 36, 37, 38), later): sl[i][1].append(x)
        def sums():
            e(f'v_add_f32 v{d}, v{d}, v{d+2}'); e(f'v_add_f32 v{d+1}, v{d+1}, v{d+3}'); e(f'v_permlane32_swap_b32 v{d}, v{d+1}'); e(f'v_add_f32 v{d}, v{d}, v{d+1}')
            e(f'v_mov_b32 v{d+1}, v{d}'); e(f'v_permlane16_swap_b32 v{d}, v{d+1}'); e(f'v_add_f32 v{aS}, v{d}, v{d+1}')
            e(f'v_mov_b32 v{t}, v{aS}'); e(f'v_permlane32_swap_b32 v{aS}, v{t}')
            e(f'v_mul_f32 v{aS+2}, {fl(-2.0/448)}, v{aS}'); e(f'v_mul_f32 v{aS}, {fl(1.0/448)}, v{aS}'); e(f'v_mul_f32 v{aS}, v{aS}, v{aS}'); rstd()
        idx = [16, 17, 19, 24, 25, 27, 28, 32, 34, 35, 39, 40, 41, 42, 43, 44]
        for i, x in zip(idx, rec(sums)): sl[i][2].append(x)
        sc = rec(lambda: scale(1, False)); sl[53][2] += sc[:3]; sl[54][2] += sc[3:6]; sl[55][2] += sc[6:]
        k.slots(sl, nbg=1)
        if OPT['fine'] & 1: stamp(f'A{half}.mf')
    k.wait(lg='hs')
    for tl in ((3, 0, 2) if half else (1, 3, 0, 2)): scale(tl, True)
    k.wait(lg='cw'); e('s_barrier')
    stamp(f'A{half}.hdft')
    cf = lambda tl, k1_: 72 + 8*tl + 4*k1_
    k.depth += 1
    so = [(0, 0), (2, 0), (0, 1), (2, 1), (1, 0), (3, 0), (1, 1), (3, 1)]
    for tl, k1_ in so:
        for h2 in range(2): k.ds(f'ds_read_b64_tr_b16 {vr(cf(tl,k1_)+2*h2,2)}, v{vtr} offset:{2048*tl + 1024*k1_ + 512*h2}', f'c{tl}{k1_}')
    if half == 0:
        e(f'v_cndmask_b32 v{vHS}, 0, v{aH}, {sr(sMK,2)}')
        for r in range(1, 4): e(f'v_cndmask_b32 v{vHS}, v{vHS}, v{aH+r}, {sr(sMK+2*r,2)}')
        k.burst(OPT['nS'])
    else: k.bg_flush()
    Dt = lambda tl: 104 + 4*tl
    def smf(tl, k1_):
        k.wait(lg=f'c{tl}{k1_}')
        e(f'v_mfma_f32_16x16x32_f16 {vr(Dt(tl),4)}, {vr(Ff+4*k1_,4)}, {vr(cf(tl,k1_),4)}, {vr(Dt(tl),4) if k1_ else 0}')
    def bfly(pp, u):
        kk1 = f'v{k1}' if pp == 0 else '-1.0'; nk1 = f'-v{k1}' if pp == 0 else '1.0'
        CA, SA, CB, SB = Dt(u) + 2*pp, Dt(u) + 2*pp + 1, Dt(2+u) + 2*pp, Dt(2+u) + 2*pp + 1
        o = 120 + 8*pp + 4*u
        e(f'v_fma_f32 v{o}, {kk1}, v{SB}, v{CA}'); e(f'v_fma_f32 v{o+1}, {kk1}, v{SA}, -v{CB}')
        e(f'v_fma_f32 v{o+2}, {nk1}, v{CA}, v{SB}'); e(f'v_fma_f32 v{o+3}, {kk1}, v{CB}, v{SA}')
        for m in range(2): e(f'v_cvt_pk_f16_f32 v{72+4*pp+2*u+m}, v{o+2*m}, v{o+2*m+1}')
        if half == 0:
            for m in range(2): e(f'v_bfi_b32 v{72+4*pp+2*u+m}, v{vX+2}, s{sN+2*u+m}, v{72+4*pp+2*u+m}')
    for x in so: smf(*x)
    if half == 0: e('s_barrier')
    bfly(0, 0); bfly(1, 0)
    for pp in range(2):
        bfly(pp, 1)
        k.vmem(f'buffer_store_dwordx4 {vr(72+4*pp,4)}, v{vu}, {sr(sWS,4)}, s{sT+4+pp} offen sc1', 'Ust')
    k.depth -= 1
    stamp(f'A{half}.ust')

def US(half): return 16 if half == 0 else 256
def TOFF(half): return 32 * 912 if half == 0 else 28672
def rowaddr(half, dst, j, t):
    if half == 0: e(f'v_mul_u32_u24 v{dst}, 912, v{j}')
    else:
        e(f'v_lshrrev_b32 v{t}, 4, v{j}'); e(f'v_mul_u32_u24 v{t}, 14336, v{t}'); e(f'v_and_b32 v{dst}, 15, v{j}'); e(f'v_lshl_add_u32 v{dst}, v{dst}, 4, v{t}')
def phB(half):
    us = US(half); RAW = lambda kap: 16 + 16*kap; ACC = lambda u, pq: 80 + 32*pq + 16*u; MF = 144
    vu, vd, vmP, vmQ = vA, vA + 1, vA + 2, vA + 3
    vu2, vm, tc, vbn = (vSa, vSb, vT1, vT1 + 1) if half else (vX, vX + 1, vX + 2, vX + 3)
    t = 88; t0 = k.clk
    save = k.refill
    if half == 0: ws.lag = OPT['lag']; k.bg += IMG_LATE; k.burst(OPT['nB']); k.seg(OPT['nK'], OPT['pK']*OPT['nK'], 300)
    def tile0():
        if OPT['pads']:
            e(f's_cmp_lt_u32 s{sW}, 2'); e(f's_cbranch_scc1 L_t0_{half}')
            e('s_mov_b64 exec, 0'); e(f's_cmp_eq_u32 s{sW}, 2'); e(f's_cbranch_scc1 L_pad{5 + 4*half}'); e(f's_branch L_pad{6 + 4*half}'); e(f'L_t0_{half}:')
        else: e(f's_cmp_ge_u32 s{sW}, 2'); e(f's_cbranch_scc1 L_ret{1 + half}')
        bs = 128 if half == 0 else 2048
        if half == 0:
            e(f'v_and_b32 v{t}, 15, v{vL}'); e(f'v_lshl_add_u32 v{t}, s{sW}, 4, v{t}'); e(f'v_mul_u32_u24 v{t}, 912, v{t}')
            e(f'v_and_b32 v{t+1}, 48, v{vL}'); e(f'v_add_u32 v{t}, v{t}, v{t+1}')
        else: e(f's_mul_i32 s{sT}, s{sW}, 14336'); e(f'v_add_u32 v{t}, s{sT}, v{vL16}')
        e(f's_mul_i32 s{sT}, s{sG}, {bs}')
        for b in range(7):
            if b: e(f's_add_u32 s{sT}, s{sT}, {bs}'); e(f's_sub_u32 s{sT+1}, s{sT}, {7*bs}'); e(f's_min_u32 s{sT}, s{sT}, s{sT+1}')
            e(f'v_add_u32 v{t+1}, s{sT}, v{t}')
            for h in range(2): e(f'ds_write_b128 v{t+1}, {vr(XF(2*b+h),4)} offset:{L_X + h*bs//2}')
        e(f'L_ret{1 + half}:'); e('s_mov_b64 exec, -1')
    k.call(tile0); ls(f'b{half}.t0')
    if half == 0: late_setup()
    e(f'v_bfe_u32 v{t}, v{vL}, 2, 1'); e(f'v_bfe_u32 v{t+1}, v{vL}, 3, 2'); e(f'v_and_b32 v{t+2}, 3, v{vL}')
    e(f'v_lshl_add_u32 v{t+1}, v{t}, 2, v{t+1}'); e(f'v_lshl_add_u32 v{t+1}, v{t+1}, 2, v{t+2}'); e(f's_mul_i32 s{sT+2}, s{sW}, 448')
    e(f'v_lshl_add_u32 v{t+1}, v{t+1}, 4, s{sT+2}'); e(f'v_subrev_u32 v{t}, 1792, v{t+1}'); e(f'v_min_u32 v{t+1}, v{t}, v{t+1}')
    e(f'v_lshrrev_b32 v{t+2}, 5, v{vL}'); e(f'v_mul_u32_u24 v{t}, 1792, v{t+2}'); e(f'v_add_u32 v{vu}, v{t}, v{t+1}'); e(f'v_add_u32 v{vu2}, 7168, v{vu}')
    e(f's_mul_i32 s{sT}, s{sP}, 57344'); e(f's_add_u32 s{sT}, s{sT}, {WS_U2 if half else WS_U1}')
    for i in range(4): e(f's_add_u32 s{sT+1}, s{sG}, {i}'); e(f's_and_b32 s{sT+1}, s{sT+1}, 3'); e(f's_mul_i32 s{sT+1}, s{sT+1}, 14336'); e(f's_add_u32 s{sUO+i}, s{sT}, s{sT+1}')
    def adr():
        j, a = t + 3, t + 4
        e(f'v_and_b32 v{j}, 31, v{vL}'); e(f's_mul_i32 s{sT}, s{sW}, 7'); e(f'v_lshl_add_u32 v{a}, v{t+2}, 2, s{sT}')
        rowaddr(half, vd, j, t); e(f'v_mul_u32_u24 v{t+1}, {us}, v{a}'); e(f'v_add_u32 v{vd}, v{vd}, v{t+1}')
        e(f'v_sub_u32 v{a}, {52*us}, v{t+1}')
        e(f's_cmp_eq_u32 s{sP}, 0\ns_cselect_b32 s{sT}, 32, 63\ns_cselect_b32 s{sT+1}, 31, 63\ns_cselect_b32 s{sT+2}, 63, 31')
        e(f'v_sub_u32 v{t+5}, s{sT}, v{j}'); e(f'v_and_b32 v{t+5}, s{sT+1}, v{t+5}'); rowaddr(half, vmP, t + 5, t); e(f'v_add_u32 v{vmP}, v{vmP}, v{a}')
        e(f'v_sub_u32 v{t+5}, s{sT+2}, v{j}'); rowaddr(half, vmQ, t + 5, t); e(f'v_add_u32 v{vmQ}, v{vmQ}, v{a}')
        e(f's_cmp_eq_u32 s{sW}, 0\ns_cselect_b32 s{sMK}, 0, -1'); e(f's_mov_b32 s{sMK+1}, -1')
        e(f'v_add_u32 v{vm}, {L_M}, v{vL16}')
        e(f's_mul_i32 s{sT}, s{sW}, {7*us}'); e(f'v_mul_u32_u24 v{t+2}, {3*us}, v{t+2}'); e(f'v_subrev_u32 v{vbn}, s{sT}, v{vd}'); e(f'v_sub_u32 v{vbn}, v{vbn}, v{t+2}')
        if OPT['rot']:
            e(f's_mul_i32 s{sT}, s{sRO}, {14*us}'); e(f'v_add_u32 v{vbn}, s{sT}, v{vbn}'); e(f's_mov_b32 s{sT}, {14*us}')
            for q in range(4): e(f's_cmp_eq_u32 s{sRO}, {3-q}\ns_cselect_b32 s{sRD+q}, {-42*us}, s{sT}')
    if half == 0:
        setup = rec(lambda: (gen_M(96), adr(), e(f's_mov_b32 s{sMK+2}, 0xfffefffe'))); nb = len(setup)*OPT['sb']//100
        k.run(setup[:nb]); setup = setup[nb:]
        k.burst(k.quota)
    else:
        def ichk():
            e(f's_mul_i32 s{sT}, s{sW}, 7168'); e(f'v_add_u32 v{t}, s{sT}, v{vL16}')
            for i in range(7): k.ds(f'ds_read_b32 v{t+2+i}, v{t} offset:{L_X + 28672 + 1024*i}', 'ic')
            k.wait(lg='all')
            for i in range(3): e(f'v_max3_u32 v{t+2}, v{t+2}, v{t+3+2*i}, v{t+4+2*i}')
            e(f'v_cmp_eq_u32 vcc, -1, v{t+2}')
    k.refill = None; k.bg_flush()
    if OPT['uack']: k.wait(vm='Ust')
    stamp(f'B{half}.ack')
    def uloads(first, last=4):
        for kap in range(first, last):
            for jj in range(4):
                k.vmem(f'buffer_load_dwordx4 {vr(RAW(kap)+4*jj,4)}, v{vu if jj < 2 else vu2}, {sr(sWS,4)}, s{sUO+kap} offen offset:{3584*(jj%2)} sc1', f'U{kap}{jj}')
    ld = rec(lambda: uloads(0))
    n0 = OPT['n0']
    if half == 0:
        if OPT['fl'] < 0: flag_load()
        fill = []
        while ws.nd < min(ws.dmax, ws.ni): fill += ws.drain_ops()
        per = -(-len(setup) // n0)
        for o in ld[:n0]:
            k.run([o] + fill[:4] + setup[:per]); fill = fill[4:]; setup = setup[per:]
        k.run(fill)
        k.wait(vm='img1', lg='all'); e('s_barrier')
    else:
        fill = rec(lambda: (adr(), k.wait(vm='img1'), ichk())); t1 = k.clk
        while fill and k.clk < t1 + OPT['ud']: fill.pop(0)()
        k.run(ld[:4])
        k.run(k.weave(ld[4:n0], fill, 56))
        retry_site(ichk, lambda: k.run(img_ops(1, 1)), 'img')
        e('s_barrier')
    mread = lambda kap, pq: k.ds(f'ds_read_b128 {vr(MF+4*pq,4)}, v{vm} offset:{4096*pq + 1024*kap}', f'M{pq}')
    mread(0, 0); mread(0, 1)
    if half == 0: ws.cs_flush(); ws.cs_on = 0; ws.lag = 99
    rest = ld[n0:]
    XU = lambda pq, b, mir: RAW(2*pq + (b >> 1)) + 8*(b & 1) + 4*mir
    MRG = OPT['mrg']; vd3, vm3 = XU(0, 3, 0), XU(0, 3, 0) + 1
    def xadr(pq, b, mir):
        if MRG and b == 3: return (vm3, L_X) if mir else (vd3, L_X + 3*us)
        return (vmQ if pq else vmP, L_X + (3-b)*us) if mir else (vd, L_X + pq*TOFF(half) + b*us)
    def xread(pq, b):
        if MRG and (pq, b) == (0, 3):
            e(f'v_mov_b32 v{vd3}, v{vd}'); e(f'v_mov_b32 v{vm3}, v{vmP}')
            k.call(lambda: e(f's_mov_b32 exec_lo, 0\nv_add_u32 v{vd3}, {TOFF(half) - 4*us}, v{vd}\nv_add_u32 v{vm3}, {4*us}, v{vmQ}\ns_mov_b32 exec_lo, -1'), 's', 16)
            return
        for mir in range(2):
            a, o = xadr(pq, b, mir); k.ds(f'ds_read_b128 {vr(XU(pq,b,mir),4)}, v{a} offset:{o}', f'x{"dm"[mir]}{pq}{b}')
    def uchk(kap):
        R = RAW(kap)
        if half: e(f'v_max3_u32 v{tc}, v{R}, v{R+4}, v{R+8}'); e(f'v_max_u32 v{tc}, v{tc}, v{R+12}'); e(f'v_cmp_eq_u32 vcc, -1, v{tc}')
        else:
            e(f'v_xor_b32 v{tc}, s{sN}, v{R}')
            for i in range(1, 16): e(f'v_bitop3_b32 v{tc}, v{tc}, v{R+i}, s{sN + i%4} bitop3:0xf6')
            e(f'v_and_b32 v{tc}, 0x10001, v{tc}'); e(f'v_cmp_ne_u32 vcc, 0, v{tc}')
    def ureload(kap):
        if half == 0 or not OPT['usel']: return uloads(kap)
        uloads(kap, kap + 1)
        if kap < 3: e('s_waitcnt vmcnt(4)')
        for k2 in range(kap + 1, 4):
            l = k.lab('have'); uchk(k2); e(f's_cbranch_vccz {l}'); uloads(k2, k2 + 1); e(f'{l}:')
    if half and OPT['upipe']:
        sw = lambda kap, i, jx: e(f'v_swap_b32 v{RAW(kap)+4*i+jx}, v{RAW(kap)+4*jx+i}')
        def step(kap, jj):
            if kap > 3: return
            R = RAW(kap); k.wait(vm=f'U{kap}{jj}')
            if kap == 0:
                for _ in range(2 if jj == 3 else 1): k.run([rest.pop(0)])
            if jj == 3: assert not rest; ls(f'b{half}.u{kap}')
            e(f'v_max_u32 v{tc}, v{tc}, v{R+4*jj}' if jj else f'v_mov_b32 v{tc}, v{R}')
            if jj < 3:
                for i in range(jj): sw(kap, i, jj)
            else:
                e(f'v_cmp_eq_u32 vcc, -1, v{tc}'); sw(kap, 0, 3)
                retry_site(lambda: uchk(kap), lambda: ureload(kap), f'U{half}_{kap}', after=lambda: (sw(kap, 0, 1), sw(kap, 0, 2), sw(kap, 1, 2), sw(kap, 0, 3)))
        def mf(kap, u, pq):
            A = ACC(u, pq); e(f'v_mfma_f32_32x32x16_f16 {vr(A,16)}, {vr(RAW(kap)+4*(2*u+pq),4)}, {vr(MF+4*pq,4)}, {vr(A,16) if kap else 0}')
        xr = lambda kap, i: kap >= 0 and xread(kap >> 1, 2*(kap & 1) + i)
        ls('b1.w0')
        for jj in range(4): step(0, jj)
        for kap in range(4):
            if kap == 3: stamp(f'B{half}.Uin')
            k.wait(lg='M0'); mf(kap, 0, 0); sw(kap, 2, 3); sw(kap, 1, 3); k.wait(lg='M1')
            mf(kap, 1, 0)
            if kap < 3: mread(kap + 1, 0)
            xr(kap - 1, 0); step(kap + 1, 0)
            mf(kap, 0, 1); xr(kap - 1, 1); step(kap + 1, 1)
            mf(kap, 1, 1)
            if kap < 3: mread(kap + 1, 1)
            step(kap + 1, 2); step(kap + 1, 3)
        xr(3, 0); xr(3, 1)
    for kap in range(0 if half and OPT['upipe'] else 4):
        R = RAW(kap)
        ls(f'b{half}.w{kap}')
        sw = lambda i, jx, R=R: e(f'v_swap_b32 v{R+4*i+jx}, v{R+4*jx+i}')
        if half:
            for jj in range(4):
                k.wait(vm=f'U{kap}{jj}')
                if kap == 0: k.run(rest[:2 if jj == 3 else 1]); rest = rest[2 if jj == 3 else 1:]
                if jj == 3: assert not rest; ls(f'b{half}.u{kap}')
                e(f'v_max_u32 v{tc}, v{tc}, v{R+4*jj}' if jj else f'v_mov_b32 v{tc}, v{R}')
                if jj == 3: e(f'v_cmp_eq_u32 vcc, -1, v{tc}'); sw(0, 3)
                else:
                    for i in range(jj): sw(i, jj)
            retry_site(lambda kap=kap: uchk(kap), lambda kap=kap: ureload(kap), f'U{half}_{kap}', after=lambda sw=sw: (sw(0, 1), sw(0, 2), sw(1, 2), sw(0, 3)))
        else:
            k.wait(vm=f'U{kap}3'); ls(f'b{half}.u{kap}')
            if kap == 0: k.run(rest); k.refill = save; k.seg(999, 999*OPT['pU'], 300)
            if kap + OPT['fc'] == -1: flag_check(); ws.limit = 28
            uchk(kap); retry_site(lambda kap=kap: uchk(kap), lambda kap=kap: ureload(kap), f'U{half}_{kap}')
        if kap == 3: stamp(f'B{half}.Uin')
        SP = R if half else 220 + 16*(kap & 1)
        def mf(u, pq):
            A = ACC(u, pq); e(f'v_mfma_f32_32x32x16_f16 {vr(A,16)}, {vr(SP+4*(2*u+pq),4)}, {vr(MF+4*pq,4)}, {vr(A,16) if kap else 0}')
        if half:
            k.wait(lg='M0')
            mf(0, 0); sw(2, 3); sw(1, 3); k.wait(lg='M1'); mf(1, 0)
            if kap < 3: mread(kap + 1, 0)
            mf(0, 1); mf(1, 1)
        else:
            assert ws.ni <= 40
            mv = lambda d: [e(f'v_and_b32 v{SP+4*d+jj}, s{sMK+2}, v{R+4*jj+d}') for jj in range(4)]
            mv(0); mv(2); k.wait(lg='M0'); mf(0, 0); mv(1); mf(1, 0)
            if kap < 3: mread(kap + 1, 0)
            mv(3); k.wait(lg='M1'); mf(0, 1); mf(1, 1)
        if kap < 3: mread(kap + 1, 1)
        if half == 0 and kap == OPT['fl2']: flag_load(1)
        xread(kap >> 1, 2*(kap & 1)); xread(kap >> 1, 2*(kap & 1) + 1)
    if half == 0:
        ws.lag = OPT['lag']; k.bg_period = OPT['pE']
    ADR[:] = [vu2, vm]
    e(f'v_lshrrev_b32 v{vm}, 3, v{vL}'); e(f'v_lshl_add_u32 v{vm}, s{sW}, 3, v{vm}'); rowaddr(half, vu2, vm, tc)
    e(f'v_and_b32 v{tc}, 7, v{vL}'); e(f'v_lshl_add_u32 v{vu2}, v{tc}, {us.bit_length()-1}, v{vu2}'); e(f'v_lshlrev_b32 v{vm}, 3, v{vm}'); e(f's_lshl_b32 s{sT}, s{sW}, 3')
    T = MF
    sel = lambda hi: f's{sHI if hi else sLO}'
    YY = lambda pq, b, n: ACC(n & 1, pq) + 4*b + (n >> 1)
    for pq in range(2):
        e(f'v_mov_b32 v{tc if MRG and pq else vu}, v{YY(pq,0,0)}'); e(f'v_cndmask_b32 v{YY(pq,0,0)}, 0, v{YY(pq,0,0)}, {sr(sMK,2)}')
        for b in range(4):
            if MRG and (pq, b) == (0, 3): continue
            Y = lambda b_, n: YY(0 if MRG and b == 3 else pq, b_, n)
            if b == 3 and not MRG: k.depth += 1; e('s_mov_b32 exec_hi, 0')
            xd, xm = XU(pq, b, 0), XU(pq, b, 1); ls(f'e{half}.{pq}{b}')
            if half == 0 and 4 + 3*pq + b == OPT['fl2'] and b < 3: flag_load(1)
            if half == 0 and 3*pq + b == OPT['fc2'] and b < 3: flag_check(1); ws.limit = min(44, 28 + 4*OPT['ja'])
            if half == 0 and 3*pq + b == OPT['fl3'] and b < 3: assert ws.limit > 28; flag_load(2)
            k.wait(lg=f'xm{pq}{b}')
            if MRG and b == 3:
                for n in range(8): e(f'v_permlane32_swap_b32 v{YY(0,3,n)}, v{YY(1,3,n)}')
            for n in range(8): e(f'v_dot2_f32_bf16 v{T+n}, v{xd + (n >> 1)}, {sel(n & 1)}, v{Y(b,n)}')
            e(f'v_dot2_f32_bf16 v{Y(b,0)}, v{xm}, {sel(0)}, v{Y(b+1,0) if b < 3 else tc}')
            for m in range(4): e(f'v_cvt_pk_bf16_f32 v{xd+m}, v{T+2*m}, v{T+2*m+1}')
            a, o = xadr(pq, b, 0); k.ds(f'ds_write_b128 v{a}, {vr(xd,4)} offset:{o}', 'xw')
            for m in range(1, 8): e(f'v_dot2c_f32_bf16 v{Y(b,8-m)}, {sel(m & 1)}, v{xm + (m >> 1)}')
            if b == 0 and (pq or not MRG): e(f'v_permlane32_swap_b32 v{vu}, v{tc}')
            for m in range(4): e(f'v_cvt_pk_bf16_f32 v{xm+m}, v{Y(b,(8-2*m)%8)}, v{Y(b,7-2*m)}')
            a, o = xadr(pq, b, 1); k.ds(f'ds_write_b128 v{a}, {vr(xm,4)} offset:{o}', 'xw')
        if not MRG: e('s_mov_b32 exec_hi, -1'); k.depth -= 1

def ffn(half):
    us = US(half); toff = TOFF(half); ls(f'e{half}.x')
    vb, vs, vst, vh = vA, vA + 1, vA + 2, vA + 3
    BR = lambda i: B[5] + 4*(i % 3); MFR = B[5] + 12; t = B[5] + 14
    vres = B[4]
    e(f'v_mov_b32 v{vb}, v{vT1 + 1 if half else vX + 3}')
    def adr0():
        e(f'v_lshrrev_b32 v{t}, 3, v{vL}'); e(f's_lshl_b32 s{sT}, s{sW}, 3'); e(f'v_add_u32 v{t}, s{sT}, v{t}'); rowaddr(half, vs, t, t + 1)
        e(f'v_lshlrev_b32 v{vh}, 3, v{t}')
        e(f'v_and_b32 v{t}, 7, v{vL}'); e(f'v_lshl_add_u32 v{vs}, v{t}, {us.bit_length()-1}, v{vs}')
    e(f'v_mov_b32 v{vs}, v{ADR[0]}'); e(f'v_mov_b32 v{vh}, v{ADR[1]}')
    def more():
        e(f's_mul_i32 s{sT+1}, s{sG}, {8*us}')
        if half == 0:
            e(f'v_and_b32 v{t}, 7, v{vL}'); e(f'v_add_u32 v{t}, s{sT}, v{t}'); rowaddr(half, vres, t, t + 1)
            e(f'v_lshrrev_b32 v{t}, 3, v{vL}'); e(f'v_lshl_add_u32 v{vres}, v{t}, 4, v{vres}'); e(f'v_add_u32 v{vres}, s{sT+1}, v{vres}')
        else: e(f'v_add_u32 v{vres}, s{sT+1}, v{vs}')
        e(f'v_and_b32 v{vst}, 31, v{vL}'); e(f'v_lshlrev_b32 v{vst}, 3, v{vst}')
        e(f's_mov_b32 s{sMK}, -1'); e(f's_mov_b32 s{sMK+1}, 0'); e(f's_mov_b32 s{sMK+2}, 0x80008000')
    def epoch():
        def ep():
            e(f's_lshl_b32 s{sT+4}, s2, 2'); e(f's_add_u32 s{sT+4}, s{sT+4}, s{sW}'); e(f's_cmp_eq_u32 s{sT+4}, 128'); e('s_cbranch_scc1 L_epoch'); e('L_epoch_ret:')
            k.begin_tail(); e('L_epoch:')
            for i in range(4): e(f'v_mov_b32 v{B[5]+i}, s{sN+i}')
            e(f's_mov_b32 s{sT+4}, {WS_EP}'); e('s_mov_b64 exec, 1'); e(f'buffer_store_dwordx4 {vr(B[5],4)}, off, {sr(sWS,4)}, s{sT+4} sc1'); e('s_mov_b64 exec, -1'); e('s_branch L_epoch_ret')
            k.end_tail()
        k.call(ep, 's', 32)
    vh1 = vT1
    if half == 0:
        assert ws.limit > 28
        if OPT['fl3'] == 6: flag_load(2)
    if half == 0: ws.force(-1); k.seg(999, 999*OPT['perG'])
    k.wait(lg='xw'); e('s_barrier')
    stamp(f'B{half}.end')
    if stop(f'B{half}', 61440): return True
    hvo = lambda T: vh1 if T else vL16
    MF2 = [MFR, MFR]
    resrd = lambda T: k.ds(f'ds_read_b128 {vr(vR+4*T,4)}, v{vres} offset:{L_X + T*toff}', 'res')
    ACC1 = lambda T, u: B[2*T + u]
    def bread(i):
        q = i % 28
        def f():
            k.ds(f'ds_read_b128 {vr(BR(i),4)}, v{vb} offset:{L_X + (i//28)*toff + 2*(q % 7 if OPT["rot"] else q)*us}', f'B{i}')
            if OPT['rot'] and q % 7 == 6 and i < 55: e(f'v_add_u32 v{vb}, s{sRD + q//7}, v{vb}')
        return Op('ds', 4, f)
    k.depth += 1; bread(0)(); bread(1)(); k.depth -= 1
    def stats_ops(T):
        SB = lambda j: B[6] + 4*(j % 2); s1, s2, lo, hi = B[6] + 8, B[6] + 9, B[6] + 10, B[6] + 12
        rd = lambda j: k.ds(f'ds_read_b128 {vr(SB(j),4)}, v{vs} offset:{L_X + T*toff + 8*j*us}', f'S{T}{j}')
        ops = rec(lambda: (rd(0), rd(1))) + [None, None]
        def body():
            for j in range(1 if OPT['nostats'] else 7):
                k.wait(lg=f'S{T}{j}')
                for m in range(4):
                    l_, h_ = lo + m % 2, hi + m % 2
                    e(f'v_lshlrev_b32 v{l_}, 16, v{SB(j)+m}'); e(f'v_and_b32 v{h_}, s{sFF}, v{SB(j)+m}')
                    if m == 3 and j + 2 < 7: rd(j + 2)
                    if j == 0 and m == 0: e(f'v_add_f32 v{s1}, v{l_}, v{h_}'); e(f'v_mul_f32 v{s2}, v{l_}, v{l_}'); e(f'v_fmac_f32 v{s2}, v{h_}, v{h_}')
                    else: e(f'v_add_f32 v{s1}, v{s1}, v{l_}'); e(f'v_fmac_f32 v{s2}, v{l_}, v{l_}'); e(f'v_add_f32 v{s1}, v{s1}, v{h_}'); e(f'v_fmac_f32 v{s2}, v{h_}, v{h_}')
        ops += rec(body)
        for c in ('quad_perm:[1,0,3,2]', 'quad_perm:[2,3,0,1]', 'row_half_mirror'):
            ops += rec(lambda: [e('s_nop 0')] + [e(f'v_add_f32_dpp v{r}, v{r}, v{r} {c} row_mask:0xf bank_mask:0xf') for r in (s1, s2)])
        ops += rec(lambda: (e(f'v_mul_f32 v{s1}, {fl(-1.0/448)}, v{s1}'), e(f'v_mul_f32 v{lo}, v{s1}, v{s1}'), e(f'v_fmamk_f32 v{s2}, v{s2}, {fl(-1.0/448)}, v{lo}'),
                e(f'v_min_f32 v{s2}, 0, v{s2}'), e(f'v_sub_f32 v{s2}, {fl(1e-5)}, v{s2}'), e(f'v_rsq_f32 v{s2}, v{s2}'))) + [None]
        ops += rec(lambda: k.ds(f'ds_write_b64 v{vh}, {vr(s1,2)} offset:{L_ST + 256*T}', 'stw')) + [None, None]
        ops += rec(lambda: (k.wait(lg='stw'), e('s_barrier'), k.ds(f'ds_read_b32 v{t}, v{vst} offset:{L_ST + 256*T}', 'm'))) + [None, None, None]
        ops += rec(lambda: (k.wait(lg='m'), e(f'v_cndmask_b32 v{t}, 0, v{t}, {sr(sMK,2)}'), e(f'v_cvt_pk_bf16_f32 v{MFR}, v{t}, v{t}'),
                e(f'v_and_b32 v{t+1}, s{sFF}, v{MFR}'), e(f'v_sub_f32 v{t}, v{t}, v{t+1}'), e(f'v_cvt_pk_bf16_f32 v{MFR+1}, v{t}, 0')))
        return ops
    OWN = [B[4], B[6]]
    def bump(c): k.bg_next = max(k.bg_next, k.clk - 40) + c
    ownfix = lambda T: None
    def epi1(T):
        ng = '-' if half else ''
        for u in range(2):
            for be in range(2):
                d = OWN[T] + 8*u + 4*be; a = ACC1(T, u) + 8*be
                for m in range(4):
                    ng = '-' if (half != (m == 3)) else ''; e(f'v_cvt_pk_bf16_f32 v{d+m}, {ng}v{a+2*m}, {ng}v{a+2*m+1}')
                for m in range(4): e(f'v_pk_max_u16 v{d+m}, v{d+m}, s{sMK+2}' if (half != (m == 3)) else f'v_pk_max_i16 v{d+m}, v{d+m}, 0')
                if OPT['noh'] & (4 << T): continue
                k.call(lambda d=d, u=u, be=be: (k.vmem(f'buffer_store_dwordx4 {vr(d,4)}, v{hvo(T)}, {sr(sWS,4)}, s{sHS} offen offset:{1024*(2*u+be)} sc1', 'hst'), bump(96)), 'vm', 24)
    HB = {(0, 0): B[4], (0, 1): B[0], (0, 2): B[1], (0, 3): B[7], (0, 4): B[4], (0, 5): B[0], (0, 6): B[1],
          (1, 0): B[6], (1, 1): B[7], (1, 2): B[4], (1, 3): B[6], (1, 4): B[7], (1, 5): B[4], (1, 6): B[6]}
    inflight = []
    def hload(T, jp, i, track=True):
        def f():
            if OPT['noh'] & 1: return
            k.vmem(f'buffer_load_dwordx4 {vr(HB[T,jp]+4*i,4)}, v{hvo(T)}, {sr(sWS,4)}, s{sHS+jp} offen offset:{1024*i} sc1', f'h{T}{jp}{i}')
            if track: inflight.append((T, jp, i)); bump(OPT['perH'] if len(inflight) > 12 else 60)
        return Op('vm', 4, f)
    prevuse = {(0, 4): (0, 0), (0, 5): (0, 1), (0, 6): (0, 2), (1, 1): (0, 3), (1, 2): (0, 4), (1, 3): (1, 0), (1, 4): (1, 1), (1, 5): (1, 2), (1, 6): (1, 3)}
    order = [(0, 1), (0, 2), (0, 3), (0, 4), (0, 5), (1, 1), (0, 6)] + [(1, j) for j in range(2, 7)] if OPT['hord'] else [(T, j) for T in range(2) for j in range(1, 7)]
    hq = []
    for T, jp in order:
        for i in range(4):
            rdy = OPT['hq_slot' if half else 'hq0'] if T == 0 else 116 + OPT['t1_slot']
            if (T, jp) in prevuse: pT, pj = prevuse[T, jp]; rdy = max(rdy, 116 + 56*pT + 8*pj + 2*i + 1)
            hq.append((rdy, 116 + 56*T + 8*jp - OPT['hdl'] - 2*(3 - i), T, jp, i))
    def hpace(slot):
        def f():
            if not hq or OPT['noh'] & 1: return
            due = min(x[1] for x in hq[:8]) <= slot
            wfirst = half == 0 and ws.sent < 56 and ws.use(ws.sent) - OPT['lead'] <= hq[0][1]
            if hq[0][0] <= slot and ((k.clk >= k.bg_next and not wfirst) or due):
                x = hq.pop(0)
                if x[3:] == (1, 0) and OPT['hack'] >> (2*half + x[2]) & 1: k.wait(vm='hst')
                if half == 0 and OPT['cntlate'] and x[2:] == (1, 1, 0): cnt_load(vSa)
                hload(*x[2:])()
                if OPT['verbose'] > 2: print(f'; h{x[2:]} at slot {slot} use {116 + 56*x[2] + 8*x[3]}', file=sys.stderr)
        return Op('vm', 0, f)
    def g1_slots(T):
        sl = []
        for n in range(28):
            i = 28*T + n
            for u in range(2):
                A = ACC1(T, u)
                def mf(A=A, n=n, u=u, i=i):
                    k.wait(lg=f'B{i}')
                    if half == 0 and T == 0:
                        if n < NR: assert ws.done > n; k.wait(lg=f'tr{n}')
                        else: assert ws.sent > n; k.wait(vm=f'w{n}')
                    e(f'v_mfma_f32_32x32x16_bf16 {vr(A,16)}, {w1f(n,u)}, {vr(BR(i),4)}, {vr(A,16) if n else 0}')
                pre = [bread(i + 2)] if (u == 0 and i + 2 < 56) else []
                if u == 0 and n % 7 == 0: pre.append(Op('s', 0, lambda n=n: ls(f'c{half}.{T}{n//7}')))
                if half == 0 and u == 1: pre.append(Op('ds', 0, lambda n=n: ws.force(58*T + 2*n + 1)))
                sl.append([[Op('mfma', 8, mf)], pre, []])
        return sl
    def corr(T): return [[rec(lambda: e(f'v_mfma_f32_32x32x8_bf16 {vr(ACC1(T,u),16)}, {vr(vCS+2*u,2)}, {vr(MF2[T],2)}, {vr(ACC1(T,u),16)}')), [], []] for u in range(2)]
    st0 = stats_ops(0); st1 = stats_ops(1)
    sl = g1_slots(0)
    res = [rec(lambda: k.ds(f'ds_read_b128 {vr(vR+4*T,4)}, v{vres} offset:{L_X + T*toff}', 'res')) for T in range(2)]
    nbg = OPT['nbgG']; STAG = OPT['stag']
    if half == 0:
        assert OPT['fc3'] < OPT['css']
        if OPT['fl3'] > 6: sl[OPT['fl3'] - 7][1] += rec(lambda: flag_load(2))
        sl[OPT['fc3']][2] += rec(lambda: flag_check(2)) + [Op('s', 0, lambda: setattr(ws, 'limit', 56))]
        sl[OPT['css']][1] += rec(cs_load); sl[49][2] += rec(lambda: k.wait(vm='cs'))
    q0 = st0[:1] + rec(more) + st0[1:2] + st0[4:18] + res[0] + st0[18:43] + res[1] + st0[43:]
    if STAG:
        mv = [sl[i][1].pop(0) for i in (52, 54)]; sl[51][1].insert(0, mv[0]); sl[53][1].insert(0, mv[1])
        tb = [sl[51], sl[53], sl[55]]; sl = sl[:50] + [sl[50], sl[52], sl[54]]
    k.slots(sl, q0, 52 if STAG else 54, nbg=nbg)
    log('g1(0) done')
    if OPT['fine'] & 2: stamp(f'C{half}.g10')
    c0 = corr(0); ep0 = rec(lambda: epi1(0)); nop = lambda n: rec(lambda: e(f's_nop {n}'))
    tail1 = st1[26:] + rec(lambda: e(f'v_add_u32 v{vh1}, {7*16384}, v{vL16}'))
    if STAG:
        k.slots([c0[0]] + tb[:2], st1[:1] + nop(3) + [None] + st1[1:2] + nop(2) + [None] + ep0[:5], nbg=0)
        sl = [tb[2], c0[1]] + g1_slots(1)
        q = ep0[5:18] + st1[4:9] + ep0[18:] + st1[9:26] + tail1
    else:
        sl = c0 + g1_slots(1)
        q = st1[:14] + ep0 + st1[14:26] + tail1
    for n in range(len(sl)): sl[n][1].append(hpace(56 + n))
    if half == 0 and not OPT['cntlate']: sl[OPT['hq0'] - 57][1] += rec(lambda: cnt_load(vT1 + 1, 1))
    k.slots(sl, q, 57, nbg=nbg)
    k.slots(corr(1))
    stamp(f'C{half}.g1')
    k.depth += 1
    while len(inflight) < OPT['hB%d' % half]: hload(*hq.pop(0)[2:])()
    epi1(1)
    k.depth -= 1
    if OPT['fine'] & 4: stamp(f'C{half}.epi'); k.wait(vm='h023'); stamp(f'C{half}.h02'); k.wait(vm='all'); stamp(f'C{half}.ack')
    if stop(f'C{half}'): return True
    ACC2 = lambda T, v: (B[2 + v] if T == 0 else B[v])
    ORD = [[(kk, v) for kk in range(28) for v in range(2)] for T in range(2)]
    V8 = OPT['v8'] >> half & 1; k0 = 20 if V8 else 24
    ORD[1] = ORD[1][:2*k0] + [(kk, v) for v in range(2) for kk in range(k0, 28)]
    CUR = [0]
    AR = lambda kk, v: B[5] + 4*(ORD[CUR[0]].index((kk, v)) % 4)
    def aread(kk, v):
        def f():
            assert ws.sent > 28 + kk; k.wait(vm=f'w{28+kk}')
            k.ds(f'ds_read_b128 {vr(AR(kk,v),4)}, v{vT2} offset:{2048*(kk-17) + 1024*v}', f'A{kk}{v}')
        return Op('ds', 4, f)
    tc = vb
    def hcheck(T, jp):
        R = HB[T, jp]
        def part(i):
            r = R + 4*i
            e(f'v_or3_b32 v{tc}, v{r}, v{r+1}, v{tc}' if i else f'v_or_b32 v{tc}, v{r}, v{r+1}'); e(f'v_bitop3_b32 v{tc}, v{tc}, v{r+2}, v{r+3} bitop3:0xfd')
        def fin(): e(f'v_and_b32 v{tc}, s{sMK+2}, v{tc}'); e(f'v_cmp_ne_u32 vcc, 0, v{tc}')
        def chk():
            if half == 0: [part(i) for i in range(4)]; fin()
            else: e(f'v_bitop3_b32 v{tc}, v{R}, v{R+4}, v{R+8} bitop3:0x80'); e(f'v_and_b32 v{tc}, v{tc}, v{R+12}'); e(f'v_cmp_le_i32 vcc, 0, v{tc}')
        def br():
            todo = [x for x in inflight if (x[:2] == (T, jp) if OPT['hsel'] else x[:2] >= (T, jp))]
            retry_site(chk, lambda: [hload(*x, track=False)() for x in todo], f'h{half}_{T}{jp}')
        def w(i):
            assert (T, jp, i) in inflight, (T, jp, i); k.wait(vm=f'h{T}{jp}{i}')
        o = [[] for _ in range(8)]
        if half: o[6] = [Op('v', 16, lambda: (w(3), chk()))]
        else:
            o[4] = [Op('v', 20, lambda: (w(1), part(0), part(1)))]; o[5] = [Op('v', 12, lambda: (w(2), part(2)))]; o[6] = [Op('v', 20, lambda: (w(3), part(3), fin()))]
        o[7] = [Op('s', 20, br)]
        return o
    RS = 1088; vrr, vo, vrwb = vs, vh, vT1 + 1
    def g2addr():
        tau, cc = B[5], B[5] + 1
        if half == 0: e(f'v_and_b32 v{tau}, 7, v{vL}'); e(f'v_lshrrev_b32 v{cc}, 3, v{vL}')
        else: e(f'v_lshrrev_b32 v{tau}, 3, v{vL}'); e(f'v_and_b32 v{cc}, 7, v{vL}')
        e(f's_lshl_b32 s{sT}, s{sW}, 3'); e(f'v_add_u32 v{tau}, s{sT}, v{tau}')
        e(f'v_mul_u32_u24 v{vrr}, {RS}, v{cc}'); e(f'v_lshl_add_u32 v{vrr}, v{tau}, 4, v{vrr}')
        if half == 0: e(f'v_bfe_i32 v{cc+1}, v{cc}, 0, 1'); e(f'v_lshl_add_u32 v{vrr}, v{cc+1}, 6, v{vrr}')
        e(f'v_lshlrev_b32 v{vst}, 3, v{tau}')
        if half == 0:
            rowaddr(1, vo, tau, cc + 1); e(f'v_lshl_add_u32 v{vo}, v{cc}, 8, v{vo}')
            for T in range(2):
                e(f's_mul_i32 s{sMK+4+T}, s{sRB if T else sP}, 28672'); e(f's_lshl_b32 s{sT}, s{sG}, 11'); e(f's_add_u32 s{sMK+4+T}, s{sMK+4+T}, s{sT}'); e(f's_add_u32 s{sMK+4+T}, s{sMK+4+T}, {WS_X2}')
        else:
            e(f'v_mul_u32_u24 v{vo}, 57344, v{tau}'); e(f'v_lshl_add_u32 v{vo}, v{cc}, 4, v{vo}')
            for T in range(2):
                e(f's_mul_i32 s{sMK+4+T}, s{sRB if T else sP}, 896'); e(f's_lshl_b32 s{sT}, s{sG}, 7'); e(f's_add_u32 s{sMK+4+T}, s{sMK+4+T}, s{sT}')
        e(f's_mul_i32 s{sT}, s{sW}, {8*RS}'); e(f'v_add_u32 v{vrwb}, s{sT}, v{vL16}')
        e('s_barrier')
    def g2more():
        if half == 0:
            e(f's_lshr_b32 s{sT}, s{sW}, 1'); e(f's_lshl_b32 s{sT}, s{sT}, 5'); e(f's_add_u32 s{sT}, s{sT}, s{sP}'); e(f's_lshl_b32 s{sT}, s{sT}, 1')
            e(f's_and_b32 s{sT+1}, s{sW}, 1'); e(f's_add_u32 s{sT}, s{sT}, s{sT+1}'); e(f's_lshl_b32 s49, s{sT}, 10'); e(f's_add_u32 s49, s49, {WS_SS}')
            e(f's_mul_i32 s{sT}, s{sT}, 14336'); e(f's_add_u32 s{sT}, s{sT}, {WS_X2}'); e(f's_lshl_b32 s{sT+1}, s{sG}, 11')
            for b in range(7):
                if b: e(f's_add_u32 s{sT+1}, s{sT+1}, 2048'); e(f's_sub_u32 s{sT+2}, s{sT+1}, 14336'); e(f's_min_u32 s{sT+1}, s{sT+1}, s{sT+2}')
                e(f's_add_u32 s{SX[b]}, s{sT}, s{sT+1}')
            for T in range(2):
                e(f's_lshl_b32 s{sT}, s{sRB if T else sP}, 11'); e(f's_lshr_b32 s{sT+1}, s{sW}, 1'); e(f's_lshl_b32 s{sT+1}, s{sT+1}, 10'); e(f's_add_u32 s{sT}, s{sT}, s{sT+1}')
                e(f's_and_b32 s{sT+1}, s{sW}, 1'); e(f's_lshl_b32 s{sT+1}, s{sT+1}, 7'); e(f's_add_u32 s{sT}, s{sT}, s{sT+1}')
                e(f's_lshr_b32 s{sT+1}, s{sG}, 1'); e(f's_lshl_b32 s{sT+1}, s{sT+1}, 8'); e(f's_add_u32 s{sT}, s{sT}, s{sT+1}')
                e(f's_and_b32 s{sT+1}, s{sG}, 1'); e(f's_lshl_b32 s{sT+1}, s{sT+1}, 3'); e(f's_add_u32 s{sT}, s{sT}, s{sT+1}'); e(f's_add_u32 s{sMK+6+T}, s{sT}, {WS_SS}')
    rr = vSb
    rwr = lambda T, c: k.ds(f'ds_write_b128 v{vrwb}, {vr(ACC2(T, c >> 2) + 4*(c & 3), 4)} offset:{L_RED + RS*c - (0 if half else 64*(c & 1))}', 'rw')
    rrd = lambda T: k.ds(f'ds_read_b32 v{rr}, v{vst} offset:{L_ST + 4 + 256*T}', 'rw')
    def red_final(T, PB, pk):
        x = vR + 4*T; ops = []
        for pw in range(4):
            ops += rec(lambda: [k.ds(f'ds_read_b128 {vr(PB+8*pw+4*h,4)}, v{vrr} offset:{L_RED + 8*RS*pw + 512*h}', f'p{pw}') for h in range(2)]) + [None]
        XT = B[7] if pk else None
        def body():
            if pk:
                k.wait(lg='p1')
                for n in range(0, 8, 2): e(f'v_pk_add_f32 {vr(PB+n,2)}, {vr(PB+n,2)}, {vr(PB+8+n,2)}')
                k.wait(lg='p3')
                for n in range(0, 8, 2): e(f'v_pk_add_f32 {vr(PB+16+n,2)}, {vr(PB+16+n,2)}, {vr(PB+24+n,2)}')
                for n in range(0, 8, 2): e(f'v_pk_add_f32 {vr(PB+n,2)}, {vr(PB+n,2)}, {vr(PB+16+n,2)}')
                ng = ' neg_lo:[1,0,0] neg_hi:[1,0,0]' if half else ''
                for n in range(0, 8, 2): e(f'v_pk_fma_f32 {vr(PB+n,2)}, {vr(PB+n,2)}, {vr(rr-1,2)}, {vr(XT+n,2)} op_sel:[0,1,0]{ng}')
            else:
                for pw in range(1, 4):
                    k.wait(lg=f'p{pw}')
                    for n in range(8): e(f'v_add_f32 v{PB+n}, v{PB+n}, v{PB+8*pw+n}')
                for n in range(8): e(f'v_and_b32 v{PB+8+n}, s{sFF}, v{x + n//2}' if n & 1 else f'v_lshlrev_b32 v{PB+8+n}, 16, v{x + n//2}')
                for n in range(8): e(f'v_fma_f32 v{PB+n}, {"-" if half else ""}v{rr}, v{PB+n}, v{PB+8+n}')
            for m in range(4): e(f'v_cvt_pk_bf16_f32 v{x+m}, v{PB+2*m}, v{PB+2*m+1}')
            if half == 0:
                k.vmem(f'buffer_store_dwordx4 {vr(x,4)}, v{vo}, {sr(sWS,4)}, s{sMK+4+T} offen sc1', 'xst')
                a, b, c = PB + 16, PB + 17, PB + 18
                e(f'v_add_f32 v{a}, v{PB}, v{PB+1}'); e(f'v_mul_f32 v{b}, v{PB}, v{PB}'); e(f'v_fmac_f32 v{b}, v{PB+1}, v{PB+1}')
                for n in range(2, 8): e(f'v_add_f32 v{a}, v{a}, v{PB+n}'); e(f'v_fmac_f32 v{b}, v{PB+n}, v{PB+n}')
                e(f'v_and_b32 v{c}, 0x70, v{vL16}'); e(f'v_lshrrev_b32 v{c+1}, 5, v{vL}')
                e(f'v_permlane32_swap_b32 v{a}, v{b}'); e(f'v_add_f32 v{a}, v{a}, v{b}'); e(f'v_mov_b32 v{b}, v{a}'); e(f'v_lshl_add_u32 v{c}, v{c+1}, 2, v{c}')
                e(f'v_permlane16_swap_b32 v{a}, v{b}'); e(f'v_add_f32 v{a}, v{a}, v{b}')
                e(f'v_add_f32_dpp v{a}, v{a}, v{a} row_ror:8 row_mask:0xf bank_mask:0xf')
                k.call(lambda: (e('s_mov_b32 exec_lo, 0xff\ns_mov_b32 exec_hi, 0xff'), k.vmem(f'buffer_store_dword v{a}, v{c}, {sr(sWS,4)}, s{sMK+6+T} offen sc1', 'xst'), e('s_mov_b64 exec, -1')), 's', 16)
            else: k.vmem(f'buffer_store_dwordx4 {vr(x,4)}, v{vo}, {sr(sOUT,4)}, s{sMK+4+T} offen' + ('', ' sc1', ' nt', ' sc0 sc1', ' sc1 nt')[OPT['outsc'] // (1, 10)[T] % 10], 'xst')
        return ops + [None] + rec(body)
    for T in range(2):
        sl = []; CUR[0] = T
        for pos, (kk, v) in enumerate(ORD[T]):
            jp, i = kk >> 2, kk & 3
            if True:
                A = ACC2(T, v); wr = w2reg(kk, v)
                def mf(A=A, wr=wr, kk=kk, v=v, jp=jp, i=i):
                    if wr is None: k.wait(lg=f'A{kk}{v}')
                    elif half == 0 and T == 0:
                        assert ws.sent > 28 + kk; k.wait(vm=f'w{28+kk}')
                    a = rn(wr, 4) if wr else vr(AR(kk, v), 4)
                    e(f'v_mfma_f32_32x32x16_bf16 {vr(A,16)}, {a}, {vr(HB[T,jp]+4*i,4)}, {vr(A,16) if kk else 0}')
                pre, post = [], []
                if i == 0 and v == 0: pre.append(Op('s', 0, lambda jp=jp, T=T: ls(f'g{half}.{T}{jp}')))
                if half == 0 and T == 0 and v == 0: pre.append(Op('ds', 0, lambda kk=kk: ws.force(116 + 2*kk)))
                if pos + 4 < 56 and ORD[T][pos + 4][0] >= 17: pre.append(aread(*ORD[T][pos + 4]))
                pre.append(hpace(116 + 56*T + 2*kk + v))
                if T and V8 and pos >= 40:
                    if pos < 44 and not OPT['noh'] & 2: post += hcheck(T, 6)[pos - 36]
                elif jp < 6 and not OPT['noh'] & 2: post += hcheck(T, jp + 1)[2*i + v]
                sl.append([[Op('mfma', 8, mf)], pre, post])
        if T == 0: k.slots(sl[:26], rec(lambda: (half or OPT['cntlate'] or cnt_check(vT1 + 1, 1), g2addr())), 24); k.slots(sl[26:], rec(g2more), 28)
        else:
            k.bg_flush(); assert half or ws.ni == 56
            q = [None, None]
            q += rec(lambda: rrd(0))
            if half == 0 and OPT['cntlate']: sl[9][2] += rec(lambda: cnt_check(vSa))
            for c in range(8): q += rec(lambda: rwr(0, c)) + [None, None]
            q += [Op('s', 0, lambda: CHECKED[0])] + rec(lambda: (k.wait(lg='rw'), e('s_barrier'))) + red_final(0, B[2], False) + [None] + rec(lambda: (e('s_barrier'), rrd(1)))
            x = vR + 4
            un = rec(lambda: [e(f'v_and_b32 v{B[7]+n}, s{sFF}, v{x + n//2}' if n & 1 else f'v_lshlrev_b32 v{B[7]+n}, 16, v{x + n//2}') for n in range(8)])
            if V8:
                sl[47][2] += un[:4]; sl[48][2] += un[4:]
                for c, at in enumerate((49, 51, 53, 55)): sl[at][2] += rec(lambda: rwr(1, c))
            else: sl[52][2] += un[:5]; sl[53][2] += un[5:]; sl[54][2] += rec(lambda: rwr(1, 0)); sl[55][2] += rec(lambda: rwr(1, 1))
            k.slots(sl, q, 46 if V8 else 51)
        log(f'g2({T}) done')
        if OPT['fine'] & 2 and T == 0: stamp(f'D{half}.g20')
    stamp(f'D{half}.g2')
    for c in range(4 if V8 else 2, 8): rwr(1, c)
    ls(f'd{half}.w'); k.wait(lg='all'); e('s_barrier'); ls(f'd{half}.b')
    k.run(red_final(1, B[2], True))
    stamp(f'D{half}.st')
    if half == 0: epoch()
    k.refill = None
    return False

def only_stream():
    srds((sX0, sW1, sW2, sWS)); e(f's_lshl_b32 s49, s3, 2'); e(f's_add_u32 s49, s49, s{sW}')
    e(f'v_lshlrev_b32 v17, 7, v{vL}'); e(f's_mul_i32 s{sIL}, s49, {14*128}')
    e('s_waitcnt lgkmcnt(0)'); copy_ptrs(True); copy_ptrs(False)
    e(f's_mov_b32 s{sTS}, s50'); nts[0] = 1; tsn.append('start'); e(f's_mov_b32 s{sRETRY}, 20000')
    e('s_mov_b64 exec, 0x3fff')
    if OPT['touch'] & 2: k.vmem(f'buffer_load_dword v19, v17, {sr(sW1,4)}, s{sIL} offen', 'touch')
    if OPT['touch'] & 4: k.vmem(f'buffer_load_dword v19, v17, {sr(sW2,4)}, s{sIL} offen', 'touch')
    e('s_mov_b64 exec, -1')
    stream_setup(); late_setup(); warm(0, 1); warm(1, 5)
    if OPT['touch'] & 8: k.wait(vm='touch')
    stamp('go'); ws.limit = 56; ws.lag = 9
    while ws.ni < 56 or ws.nd < 45:
        n = ws.nd; ws.refill(); k.bg_flush()
        if ws.nd != n and ws.nd % 7 == 0: stamp(f'nd{ws.nd}')
    k.wait(vm='all'); stamp('end'); finish_stamps(); e('s_endpgm')
def main():
    prologue()
    if OPT['only']: return only_stream()
    for half in range(2):
        HALF[0] = half
        phA(half)
        if stop(f'A{half}'): return
        phB(half)
        if ffn(half): return
        if stop(f'D{half}'): return
    finish_stamps()
    e('s_endpgm')
main()
k.tail.append('L_end:')
k.tail.append('s_endpgm')

HEADER = """; Kernarg layout for this problem (88 bytes, ptrs only, base s[0:1]):
;   offset   0: d_in[0] A_x  shape=(1, 2048, 448) dtype=bfloat16 strides=(1835008, 896, 2) contiguous=True
;   offset   8: d_in[1] A_dft_seq_re  shape=(2048, 2048) dtype=bfloat16   (constant DFT table, regenerated in the kernel)
;   offset  16: d_in[2] A_dft_seq_im  shape=(2048, 2048) dtype=bfloat16   (constant)
;   offset  24: d_in[3] A_dft_hid_re  shape=(448, 448) dtype=bfloat16     (constant)
;   offset  32: d_in[4] A_dft_hid_im  shape=(448, 448) dtype=bfloat16     (constant)
;   offset  40: d_in[5] B_x  shape=(1, 2048, 448) dtype=bfloat16          (unused by the reference)
;   offset  48: d_in[6] B_w1  shape=(448, 1792) dtype=bfloat16 strides=(3584, 2) contiguous=True
;   offset  56: d_in[7] B_w2  shape=(1792, 448) dtype=bfloat16 strides=(896, 2) contiguous=True
;   offset  64: d_out     shape=(1, 2048, 448) dtype=bfloat16 (2 bytes/elem)
;
; One persistent launch, one workgroup (4 waves, 512 registers each, 160 KiB LDS) per CU. Written by my own generator script.
;  workers (workgroups 32..255) = 32 clusters x 7 members; a cluster owns 64 rows {t = +-p mod 64}, member g owns 256 columns
;   A: rows s = p mod 32: hidden DFT for 32 frequencies (the other half follows from the real input), LN applied to the result
;      (rstd * (x H - mean * colsum(H)); frequency 0 is 0 after LN), 64-point DFT over the rows      -> U (f16)
;   C: x w1 - mean * colsum(w1), relu                                                                -> h (bf16)
;  workgroups 0..31 put part of the weights into MFMA fragment order, take the column sums of w1 and lay down sentinels.
;  U of layer 1 and the flags of workgroups 0..31 carry a tag = ~(word left in d_ws), which only tells this launch's hand-offs
;  from older bytes; h carries a fixed sign pattern (opposite in the two layers); x2, its row sums and U of layer 2 replace sentinels.
"""
txt, nops = finish(k, OPT['grid'], 256, LDS_SZ, verbose=OPT['verbose'] > 1, pads=PADS if OPT['pads'] else None, header=HEADER)
print(txt)
if TS or OPT['verbose']: print(f'; wait states added: {nops}; stamps: {",".join(tsn)}')
```

```python
import sys, struct, re
from kasm import *

OPT = dict(ts=0, stop='', verbose=0, hq_slot=90, t1_grp=4, grid=256, lag=7, perA=96, perB=96, perG=67, perH=64, rot=0, touch=1, pads=1, hpre=17, nx=8, nA=99, dA=60, nT=2, nK=26, nU=10, nE=10, nU0=0, nS=0, late=750, xack=0, uack=1, ud=0, outsc=11, xd=920, wt=0, usel=1, hsel=1, hl=14, np=2, xe=200, v8=3, upipe=1, sb=100, nB=4, csw=1, mrg=1, fb=12, ho=1, trim=1, je=3, stag=1, hack=1, ta=7, fl=-1, fc=-1, ja=3, fl2=2, fc2=2, fl3=10, fc3=21, sp=1, l2k=28, css=23, hB0=12, hB1=0, v2=0, w2t=0, imgb=8, wsc='sc1', pP=84, wG1=22, wG2=50, hG2=10, ssp=7, rt=0, clump=80, nbgA=1, nbgG=2, l2first=2, cntlate=1, pS=64, pA=72, pT=84, pK=76, pU=76, pE=80, n0=11, xs0=4, fillslot=6, e0=14, t1_slot=26, hord=0, hdl=18, lead=18, rot2=0, only=0, hq0=94,
           idleU=500, nostats=0, nofill=0, nocnt=0, fine=0, noh=0)
for a in sys.argv[1:]:
    key, val = a.split('=')
    OPT[key] = val if key in ('stop', 'amp', 'ls') else int(val)
AMP = OPT.get('amp')
if AMP: OPT['ts'] = 1
TS, STOP = OPT['ts'], OPT['stop']
TSI = 's_memtime' if TS == 2 else 's_memrealtime'

S, D, F = 2048, 448, 1792
XB = S * D * 2
WS_U1, WS_U2, WS_X2, WS_H = 0, XB, 2 * XB, 3 * XB
WS_SS = WS_H + S * F * 2
NR = 28 - 4*OPT['np']
WFS = (56 - NR) * 2048
WS_WF = WS_SS + 131072
WS_CS = WS_WF + 28 * WFS
WS_FL = WS_CS + 16384
WS_EP = WS_FL + 16384
WS_END = WS_EP + 64
WS_TS = 0x1000000
WS_DBG = 0x1100000
L_X = 0; L_RED = 28672; L_H = 0; L_ST = 64512
L_M = 65536; L_WA = L_M + 8192; WA_SZ = 22528
L_C = lambda half: 57344 if half else L_M
LDS_SZ = L_WA + 4 * WA_SZ
assert LDS_SZ <= 163840
NSLOT = 11
sX0, sW1, sW2, sOUT, sWS = 8, 12, 16, 20, 24
sW, sG, sP, sRB, sRETRY, sWA, sSO, sLO, sHI, sCI = 32, 33, 34, 35, 36, 37, 38, 39, 40, 41
sT = 42
sBG = 48
sMK = 52
sHS = 60
sIM, sIL = 67, 68
sFF = 69
sUO = 4
sRD = 96
sN = 28
sTS = 70
sDBG = 92
sRC = 100
sRO = 101
vL, vL16, vCS, vSa, vSb, vT1, vT2, vA = 0, 1, 2, 6, 7, 8, 10, 12
B = [16 + 16 * i for i in range(8)]; vR = 144
vCA, vSEL, vX = 240, 248, 252
def w1f(n, u): return ar(8 * n + 4 * u, 4)
def w2reg(kk, v):
    if kk < 4: return ('a', 224 + 8 * kk + 4 * v)
    if kk < 17: return ('v', 152 + 8 * (kk - 4) + 4 * v)
    return None
def rn(t, n): return ar(t[1], n) if t[0] == 'a' else vr(t[1], n)
fl = lambda x: '0x%08x' % struct.unpack('<I', struct.pack('<f', x))[0]

k = K(); e = k.e; rec = k.rec; k.clump = OPT['clump']
nts = [0]; tsn = []
def log(msg):
    if OPT['verbose']: print(f'; [{k.clk}] {msg} ni={ws.ni} nd={ws.nd} cs={ws.nc}', file=sys.stderr)
LS = OPT.get('ls')
def ls(name):
    if TS and LS and re.fullmatch(LS, name):
        i = nts[0]; nts[0] += 1; tsn.append(name); assert i < 11
        k._emit(f'{TSI} s[{sTS+2*i}:{sTS+2*i+1}]')
def stamp(name):
    log(name)
    if LS: return ls(name)
    if not TS or (AMP and name != AMP) or ('half' in OPT and name[1] == str(1 - OPT['half']) and name != 'D0.st'): return
    i = nts[0]; nts[0] += 1; tsn.append(name); assert i < 22
    k.wait(lg='all')
    e(f'{TSI} s[50:51]\ns_waitcnt lgkmcnt(0)\ns_mov_b32 s{sTS+i}, s50')
def finish_stamps():
    if not TS: return
    if AMP:
        if AMP[0] == 'H' and not k.in_tail: return
        if AMP[0] == 'R': e(f's_bfe_u32 s{sTS+1}, s{sRC}, {0x40000 + 4*int(AMP[1])}'); e(f's_mul_i32 s{sTS+1}, s{sTS+1}, 100'); e(f's_mov_b32 s{sTS}, 0')
        if not OPT.get('ampall'): e('s_cmp_lg_u32 s2, 100'); e('s_cbranch_scc1 L_exit')
        e(f's_sub_u32 s44, s{sTS+1}, s{sTS}'); e('s_min_u32 s44, s44, 10000'); e('s_mul_i32 s44, s44, 20')
        e('s_memrealtime s[50:51]'); e('s_waitcnt lgkmcnt(0)'); e('s_add_u32 s44, s44, s50')
        e('L_amp:'); e('s_memrealtime s[50:51]'); e('s_waitcnt lgkmcnt(0)'); e('s_sub_u32 s45, s50, s44'); e('s_cmp_lt_i32 s45, 0'); e('s_cbranch_scc1 L_amp')
        return
    e('v_mov_b32 v16, 0')
    e('s_waitcnt lgkmcnt(0)')
    for i in range(nts[0]): e(f'v_writelane_b32 v16, s{sTS + (2*i if LS and not k.in_tail else i)}, {i}')
    e(f'v_writelane_b32 v16, s{sRETRY}, 63'); e(f'v_writelane_b32 v16, s{sRC}, 62')
    e(f's_lshl_b32 s{sT}, s2, 2'); e(f's_add_u32 s{sT}, s{sT}, s{sW}'); e(f's_lshl_b32 s{sT}, s{sT}, 8'); e(f's_add_u32 s{sT}, s{sT}, {WS_TS}')
    e(f'v_lshlrev_b32 v17, 2, v{vL}')
    e(f'buffer_store_dword v16, v17, {sr(sWS,4)}, s{sT} offen')
def stop(name, dump_lds=0):
    if STOP != name: return False
    k.bg_period = None
    k.wait(vm='all', lg='all'); e('s_barrier')
    if dump_lds:
        e(f's_lshl_b32 s{sT}, s{sW}, 10'); e(f'v_add_u32 v20, s{sT}, v{vL16}')
        e(f's_lshl_b32 s{sT}, s2, 16'); e(f's_add_u32 s{sT}, s{sT}, {WS_DBG}')
        for i in range(dump_lds // 4096):
            e(f'ds_read_b128 v[16:19], v20'); e('s_waitcnt lgkmcnt(0)')
            e(f'buffer_store_dwordx4 v[16:19], v20, {sr(sWS,4)}, s{sT} offen'); e('s_nop 1'); e('v_add_u32 v20, 4096, v20')
    finish_stamps(); e('s_endpgm')
    return True

RCLS = {'f0': 0 if 'rf' not in OPT or OPT['rf'] == 0 else 7, 'f1': 0 if 'rf' not in OPT or OPT['rf'] == 1 else 7, 'f2': 0 if 'rf' not in OPT or OPT['rf'] == 2 else 7, 'cnt': 0 if 'rf' not in OPT or OPT['rf'] == 3 else 7, 'U0': 1, 'h0': 2, 'x2': 3, 'img': 4, 'U1': 5, 'h1': 6}
def retry_site(check, reload, name, br='s_cbranch_vccnz', after=None):
    def f():
        slow, ok = k.lab('slow_' + name), k.lab('ok_' + name)
        e(f'{br} {slow}'); e(f'{ok}:')
        k.begin_tail()
        e(f'{slow}:')
        e(f's_cmp_eq_u32 s{sRETRY}, 0'); e(f's_cbranch_scc1 {ok}'); e(f's_sub_u32 s{sRETRY}, s{sRETRY}, 1')
        if TS: e(f's_add_u32 s{sRC}, s{sRC}, {1 << 4*RCLS[name.split("_")[0]]}')
        reload(); k.wait(vm='all', lg='all'); check(); k.wait(vm='all', lg='all')
        e(f'{br} {slow}')
        if after: after()
        e('s_nop 1'); e(f's_branch {ok}')
        k.end_tail()
    k.call(f, 's', 20)
def cnt_load(reg, i=1):
    def f():
        e(f'v_lshlrev_b32 v{reg}, 7, v{vL}'); e(f's_lshl_b32 s{sBG}, s{sW}, 10'); e(f's_add_u32 s{sBG}, s{sBG}, {WS_FL + 12288}')
        e('s_mov_b64 exec, 0xff'); k.vmem(f'buffer_load_dword v{reg}, v{reg}, {sr(sWS,4)}, s{sBG} offen sc1', 'cnt'); e('s_mov_b64 exec, -1')
    k.call(f, 'v', 24)
def cnt_check(reg, i=1):
    chk = lambda: e(f'v_cmp_ne_u32 {sr(sT+4,2)}, s{sN}, v{reg}\ns_nop 0\ns_and_b32 s{sT+4}, s{sT+4}, 0xff')
    k.call(lambda: (k.wait(vm='cnt'), chk(), retry_site(chk, lambda: cnt_load(reg), 'cnt_1', 's_cbranch_scc1'), CHECKED.append(1)), 'v', 36)
CHECKED = []
def flag_load(i=0):
    def f():
        e(f's_lshl_b32 s49, s{sW}, 7'); e(f'v_lshlrev_b32 v{vCS}, 9, v{vL}' if i else f'v_lshlrev_b32 v{vCS}, 9, s{sG}'); e(f's_add_u32 s49, s49, {WS_FL + 4096*i}')
        e(f's_mov_b64 exec, {0x7f if i else 1}'); k.vmem(f'buffer_load_dword v{vCS+1}, v{vCS}, {sr(sWS,4)}, s49 offen sc1', 'flag'); e('s_mov_b64 exec, -1')
    k.call(f, 'v', 24)
def flag_check(i=0):
    chk = lambda: e(f'v_cmp_ne_u32 vcc, s{sN}, v{vCS+1}\ns_nop 0\ns_and_b64 vcc, vcc, {0x7f if i else 1}')
    k.call(lambda: (k.wait(vm='flag'), chk(), retry_site(chk, lambda: flag_load(i), f'f{i}_x', 's_cbranch_scc1')), 'v', 36)
def cs_load():
    def f():
        e(f's_lshl_b32 s49, s{sG}, 2\ns_add_u32 s49, s49, s{sW}\ns_lshl_b32 s49, s49, 9\ns_add_u32 s49, s49, {WS_CS}\nv_and_b32 v{vSa}, 0x1f0, v{vL16}')
        assert ws.sent >= NR; k.vmem(f'buffer_load_dwordx4 {vr(vCS,4)}, v{vSa}, {sr(sWS,4)}, s49 offen sc1', 'cs')
    k.call(f, 's', 24)
def warm(site, first):
    def f():
        if OPT['pads']:
            e('s_mov_b64 exec, 0')
            for w in range(3): e(f's_cmp_eq_u32 s{sW}, {w}'); e(f's_cbranch_scc1 L_pad{first+w}')
            e(f's_branch L_pad{first+3}')
        elif site == 0: e('s_branch L_ret0')
        if site == 0: k.in_tail = True; helper(); k.in_tail = False
        e(f'L_ret{site}:'); e('s_mov_b64 exec, -1'); k.clk += 200
    k.call(f, 's', 250)
PADS = lambda p: 'L_ret0' if p <= 4 else f'L_pad{p+2}' if p <= 6 else 'L_ret1' if p <= 8 else f'L_pad{p+2}' if p <= 14 else 'L_ret2'

class Stream:
    def __init__(s): s.ni = 0; s.nd = 0; s.nc = 56; s.limit = 4; s.lag = 99
    def issue_ops(s):
        n = s.ni; s.ni += 1
        if n >= NR:
            kk = n - 28
            def ld(v):
                if v == 0 and n == NR: e(f's_lshl_b32 s{sSO}, s{sG}, 2\ns_add_u32 s{sSO}, s{sSO}, s{sW}\ns_mul_i32 s{sSO}, s{sSO}, {WFS}\ns_add_u32 s{sSO}, s{sSO}, {WS_WF}')
                if v == 0 and kk == 17: assert s.done == NR; k.wait(lg=f'tr{NR-1}')
                if v == 0 and (kk == 17 or kk > 17 and kk % 2 == 0): e(f's_add_u32 m0, s{sWA}, {(kk - kk % 2 - 17)*2048}')
                if v == 0 and n > NR and n % 2 == 0: e(f's_add_u32 s{sSO}, s{sSO}, 4096')
                t = w2reg(kk, v) if kk >= 0 else ('a', 8*n + 4*v); off = 2048*(n % 2) + 1024*v; tag = f'w{n}' if v else f'wa{n}'
                if t: k.vmem(f'buffer_load_dwordx4 {rn(t,4)}, v{vL16}, {sr(sWS,4)}, s{sSO} offen offset:{off} sc1', tag)
                else: k.vmem(f'buffer_load_dwordx4 v{vL16}, {sr(sWS,4)}, s{sSO} offen offset:{off} sc1 lds', tag)
                if v: s.sent = n + 1
            return [Op('vm', 8, lambda: ld(0), 1), Op('vm', 4, lambda: ld(1), 1)]
        srd = sr(sW1, 4)
        def a():
            if n >= NSLOT: assert s.done > n - NSLOT; k.wait(lg=f'tr{n-NSLOT}')
            elif n >= 4: k.wait(lg=f'xr{n-4}')
            e(f's_add_u32 m0, s{sWA}, {(n % NSLOT)*2048}')
            if n: e(f's_add_u32 s{sSO}, s{sSO}, {16*3584}')
            if n and n % 7 == 0 and OPT['rot']: e(f's_sub_u32 s{sBG}, s{sSO}, {D*3584}\ns_min_u32 s{sSO}, s{sSO}, s{sBG}')
            k.vmem(f'buffer_load_dwordx4 v{vSa}, {srd}, s{sSO} offen lds', f'wa{n}')
        def b(): k.vmem(f'buffer_load_dwordx4 v{vSb}, {srd}, s{sSO} offen offset:1024 lds', f'w{n}'); s.sent = n + 1
        return [Op('s', 12, a, 1), Op('vm', 4, b, 1)]
    def drain_ops(s):
        n = s.nd; s.nd += 1
        so = (n % NSLOT) * 2048
        def rd(u, h2):
            def f():
                assert s.sent > n; k.wait(vm=f'w{n}')
                if n < 28: dst, ad, off = ar(8*n + 4*u + 2*h2, 2), vT1 + u, so + 512*h2
                else:
                    t = w2reg(n - 28, u); dst, ad, off = rn((t[0], t[1] + 2*h2), 2), vT2 + u, so + 1024*h2
                k.ds(f'ds_read_b64_tr_b16 {dst}, v{ad} offset:{off}', f'tr{n}')
                if u and h2: s.done = n + 1
            return Op('ds', 4, f)
        return [rd(0, 0), rd(0, 1), rd(1, 0), rd(1, 1)]
    done = 0; sent = 0
    cs_on = 0; dmax = NR
    def free(s, n): return n - NSLOT < s.nd if n < NR else (n < 45 or s.nd == NR)
    def refill(s):
        can = s.ni < min(56, s.limit) and s.free(s.ni)
        if s.nd < min(NR, s.ni) and s.lag < 99 and (s.ni - s.nd > s.lag or (not can and s.ni > NR)): k.bg += s.drain_ops()
        elif can: k.bg += s.issue_ops()
    def ensure(s, n):
        while s.done <= n:
            if not k.bg:
                if s.ni <= n and s.free(s.ni): k.bg += s.issue_ops()
                else: k.bg += s.drain_ops()
            k.bg_step()
    use = staticmethod(lambda n: 2*n if n < 28 else 116 + 2*(n - 28))
    def force(s, slot):
        if s.sent < s.ni and s.use(s.sent) <= slot + OPT['lead']: k.bg_flush()
        while s.ni < 56 and s.use(s.ni) <= slot + OPT['lead']:
            k.bg_flush()
            while not s.free(s.ni): k.bg += s.drain_ops()
            k.bg += s.issue_ops(); k.bg_flush()
        n = max([-1] + [i for i in range(NR) if s.use(i) <= slot + 4])
        if n >= 0: s.ensure(n)
    def cs_op(s):
        n, u = s.nc >> 1, s.nc & 1; s.nc += 1
        def g():
            assert s.done > n; k.wait(lg=f'tr{n}')
            acc = vr(vCA + 4*u, 4)
            e(f'v_mfma_f32_16x16x32_bf16 {acc}, {vr(vSEL,4)}, {w1f(n, u)}, {acc if n else 0}')
        return Op('mfma', 16, g)
    def cs_flush(s, maxn=99, behind=0):
        while s.nc < 2*min(28, s.done - behind) and maxn > 0: k.run([s.cs_op()]); maxn -= 1
ws = Stream()
def src_off(stride):
    e(f'v_lshrrev_b32 v{vSa}, 3, v{vL}'); e(f'v_lshrrev_b32 v{vSb}, 2, v{vL}'); e(f'v_and_b32 v{vSb}, 4, v{vSb}')
    e(f'v_xor_b32 v{vSb}, v{vSb}, v{vL}'); e(f'v_and_b32 v{vSb}, 7, v{vSb}'); e(f'v_mul_u32_u24 v{vSa}, {stride}, v{vSa}')
    e(f'v_lshl_add_u32 v{vSa}, v{vSb}, 4, v{vSa}'); e(f'v_add_u32 v{vSb}, {8*stride-1024}, v{vSa}')
def tr_addr(dst, sh, t):
    e(f'v_bfe_u32 v{t}, v{vL}, 2, 2'); e(f'v_bfe_u32 v{t+1}, v{vL}, 3, 1'); e(f'v_bfe_u32 v{t+2}, v{vL}, 4, 1'); e(f'v_and_b32 v{t+3}, 3, v{vL}')
    e(f'v_lshlrev_b32 v{t}, 7, v{t}'); e(f'v_lshl_add_u32 v{t}, v{t+1}, 6, v{t}'); e(f'v_lshl_add_u32 v{t}, v{t+2}, 5, v{t}'); e(f'v_lshl_add_u32 v{t}, v{t+3}, 3, v{t}')
    e(f'v_add_u32 v{t}, s{sWA}, v{t}'); e(f'v_lshrrev_b32 v{t+1}, 5, v{vL}')
    e(f'v_lshl_add_u32 v{dst}, v{t+1}, {sh}, v{t}'); e(f'v_xor_b32 v{dst+1}, 64, v{dst}')
def stream_setup():
    src_off(3584)
    rot = OPT['rot']
    e(f's_lshl_b32 s{sSO}, s{sG}, 2'); e(f's_add_u32 s{sSO}, s{sSO}, s{sW}'); e(f's_lshl_b32 s{sSO}, s{sSO}, 7')
    if rot:
        e(f's_and_b32 s{sRO}, s2, 3' if rot == 3 else f's_add_u32 s{sRO}, s2, s{sW}\ns_and_b32 s{sRO}, s{sRO}, 3'); e(f's_mul_i32 s{sT}, s{sRO}, {7*16*3584}'); e(f's_add_u32 s{sSO}, s{sSO}, s{sT}')
def stream_setup2(t):
    tr_addr(vT1, 10, t); e(f'v_add_u32 v{vT2}, s{sWA}, v{vL16}')
def late_setup():
    e(f's_mul_i32 s{sT}, s{sP}, {2*7*16384}'); e(f's_lshl_b32 s{sT+1}, s{sW}, 12'); e(f's_add_u32 s{sT}, s{sT}, s{sT+1}'); e(f's_add_u32 s{sT}, s{sT}, {WS_H}')
    e({0: f's_mov_b32 s{sT+3}, 1', 1: f's_add_u32 s{sT+3}, s{sCI}, 1', 2: f's_and_b32 s{sT+3}, s2, 3\ns_add_u32 s{sT+3}, s{sT+3}, 1'}[OPT['rot2']]); e(f's_mov_b32 s{sT+1}, s{sG}')
    for jp in range(7):
        if jp: e(f's_add_u32 s{sT+1}, s{sT+1}, s{sT+3}'); e(f's_sub_u32 s{sT+2}, s{sT+1}, 7'); e(f's_min_u32 s{sT+1}, s{sT+1}, s{sT+2}')
        e(f's_lshl_b32 s{sT+2}, s{sT+1}, 14'); e(f's_add_u32 s{sHS+jp}, s{sT}, s{sT+2}')

def prologue():
    e('s_load_dwordx2 s[8:9], s[0:1], 0'); e('s_load_dwordx4 s[4:7], s[0:1], 48')
    e('s_load_dwordx2 s[20:21], s[0:1], 64'); e('s_load_dwordx2 s[24:25], s[0:1], 80')
    e('s_getpc_b64 s[46:47]'); e('L_pc:')
    e('v_lshrrev_b32 v1, 6, v0'); e('v_and_b32 v0, 63, v0'); e('s_bfe_u32 s3, s2, 0x50003'); e(f'v_readfirstlane_b32 s{sW}, v1')
    e('v_lshl_add_u32 v2, s3, 2, v1'); e('v_lshl_add_u32 v2, v0, 7, v2'); e('v_lshlrev_b32 v2, 7, v2'); e('v_min_u32 v2, L_end-L_pc, v2')
    e('s_mov_b64 exec, 7'); k.vmem('global_load_dword v3, v2, s[46:47]', 'touch'); e('s_mov_b64 exec, -1')
    e(f'v_lshlrev_b32 v{vL16}, 4, v0')
    e('s_sub_u32 s3, s2, 32'); e('s_cmp_ge_u32 s3, 224'); e('s_cbranch_scc1 L_helper')
    if TS: e(f'{TSI} s[50:51]'); e(f's_mov_b32 s{sRC}, 0')
    e(f's_lshr_b32 s{sT}, s3, 3'); e(f's_mul_i32 s{sCI}, s{sT}, 37'); e(f's_lshr_b32 s{sCI}, s{sCI}, 8')
    e(f's_mul_i32 s{sG}, s{sCI}, 7'); e(f's_sub_u32 s{sG}, s{sT}, s{sG}')
    e(f's_and_b32 s{sP}, s3, 7'); e(f's_lshl_b32 s{sP}, s{sP}, 1'); e(f's_lshr_b32 s{sT}, s{sCI}, 1'); e(f's_add_u32 s{sP}, s{sP}, s{sT}')
    e(f's_sub_u32 s{sT}, 32, s{sP}'); e(f's_cmp_eq_u32 s{sP}, 0'); e(f's_cselect_b32 s{sT}, 16, s{sT}')
    e(f's_bitcmp1_b32 s{sCI}, 0'); e(f's_cselect_b32 s{sP}, s{sT}, s{sP}')
    e(f's_mul_i32 s{sWA}, s{sW}, {WA_SZ}'); e(f's_add_u32 s{sWA}, s{sWA}, {L_WA}')
def srds(which):
    for r, n in ((sX0, XB), (sW1, D*F*2), (sW2, D*F*2), (sOUT, XB), (sWS, 0x2000000 if (TS or STOP) else WS_END)):
        if r in which: e(f's_mov_b32 s{r+2}, {n}'); e(f's_mov_b32 s{r+3}, 0x20000')
def copy_ptrs(first):
    if first: e(f's_mov_b32 s{sW1}, s4'); e(f's_mov_b32 s{sW1+1}, s5')
    else:
        e(f's_mov_b32 s{sW2}, s6'); e(f's_mov_b32 s{sW2+1}, s7')

def helper():
    e('L_helper:')
    e('s_cmp_ge_u32 s2, 32'); e('s_cbranch_scc1 L_exit')
    srds((sW1, sW2, sWS))
    src_off(3584); e(f's_mul_i32 s{sIL}, s{sW}, 14336'); e(f's_mul_i32 s{sIM}, s{sW}, {16*3584}'); e(f's_lshl_b32 s{sT}, s2, 7'); e(f's_add_u32 s{sIM}, s{sIM}, s{sT}'); e(f's_mov_b32 s{sT+1}, {WS_EP}')
    e('s_waitcnt lgkmcnt(0)'); copy_ptrs(True); copy_ptrs(False)
    hs = [0]
    def hstamp(w=None):
        if TS and not AMP:
            if w is not None: e(f's_waitcnt vmcnt({w})')
            e(f'{TSI} s[50:51]\ns_waitcnt lgkmcnt(0)\ns_mov_b32 s{sTS+hs[0]}, s50'); hs[0] += 1
        elif AMP and AMP[0] == 'H':
            if hs[0] in (0, int(AMP[1])): e(f'{TSI} s[50:51]\ns_waitcnt lgkmcnt(0)\ns_mov_b32 s{sTS + (hs[0] > 0)}, s50')
            hs[0] += 1
    hstamp()
    if TS:
        for i in range(1, 5): e(f's_mov_b32 s{sTS+i}, s50')
    e(f'buffer_load_dwordx4 v[140:143], off, {sr(sWS,4)}, s{sT+1} sc1')
    e('s_cmp_ge_u32 s2, 28'); e('s_cbranch_scc1 L_hrest')
    for i in range(7):
        e(f's_add_u32 m0, s{sIL}, {2048*i}')
        if i: e(f's_add_u32 s{sIM}, s{sIM}, {64*3584}')
        e(f'buffer_load_dwordx4 v{vSa}, {sr(sW1,4)}, s{sIM} offen lds'); e(f'buffer_load_dwordx4 v{vSb}, {sr(sW1,4)}, s{sIM} offen offset:1024 lds')
    e('s_branch L_helper2')
    save = k.out; k.out = k.tail
    FB = OPT['fb']; FA = 112 - 7*FB; assert (4*FA + 28*FB)*8192 == 2*XB
    e('L_hrest:')
    if OPT['sp']:
        e(f's_sub_u32 s{sT}, s2, 28'); e(f's_lshl_b32 s{sT}, s{sT}, 2'); e(f's_add_u32 s{sT}, s{sT}, s{sW}'); e(f's_mul_i32 s{sT}, s{sT}, 112'); e(f'v_min_u32 v2, 55, v{vL}')
        for j in range(OPT['sp']):
            for hh in range(2):
                e(f'v_add_u32 v4, s{sT}, v2'); e(f'v_add_u32 v4, {56*hh}, v4'); e('v_lshrrev_b32 v8, 8, v4'); e(f'v_add_u32 v8, {1 + j}, v8'); e('v_subrev_u32 v9, 7, v8'); e('v_min_u32 v8, v8, v9')
                e('v_mul_u32_u24 v4, 896, v4'); e('v_lshl_add_u32 v4, v8, 7, v4'); e(f'buffer_load_dword v144, v4, {sr(sW2,4)}, 0 offen')
    e(f's_sub_u32 s{sT}, s2, 28'); e(f's_mul_i32 s{sT}, s{sT}, {FA*8192}'); e(f's_add_u32 s{sT}, s{sT}, {WS_U2}'); e(f's_mov_b32 s{sT+1}, {FA}'); e('s_waitcnt vmcnt(0)'); e('s_branch L_hfill2')
    e('L_helper2:')
    src_off(896); e(f's_mov_b32 s{sWA}, s{sIL}'); tr_addr(vT1, 10, 12)
    e(f's_mul_i32 s{sWA}, s{sW}, {WA_SZ}'); e(f's_add_u32 s{sWA}, s{sWA}, {L_WA}'); tr_addr(vT2, 9, 12)
    e(f's_lshl_b32 s{sT}, s2, 2'); e(f's_add_u32 s{sT}, s{sT}, s{sW}'); e(f's_mul_i32 s{sT}, s{sT}, {16*896}'); e(f's_lshr_b32 s{sT+1}, s2, 2')
    e(f's_mov_b32 s{sIM}, s{sT}'); e(f's_mov_b32 s{sIL}, s{sT+1}')
    def d2(j0, j1):
        for j in range(j0, j1):
            if j: e(f's_sub_u32 s{sIL}, s{sIL}, 1'); e(f's_min_u32 s{sIL}, s{sIL}, 6')
            e(f's_add_u32 m0, s{sWA}, {2048*j}'); e(f's_lshl_b32 s{sT+2}, s{sIL}, 7'); e(f's_add_u32 s{sT+2}, s{sT+2}, s{sIM}')
            e(f'buffer_load_dwordx4 v{vSa}, {sr(sW2,4)}, s{sT+2} offen lds'); e(f'buffer_load_dwordx4 v{vSb}, {sr(sW2,4)}, s{sT+2} offen offset:1024 lds')
    JE = OPT['je']; d2(0, JE)
    e(f's_waitcnt vmcnt({2*JE})')
    for i in range(7):
        for u in range(2):
            for h2 in range(2): e(f'ds_read_b64_tr_b16 {vr(16+8*i+4*u+2*h2,2)}, v{vT1+u} offset:{2048*i + 512*h2}')
    e(f's_mul_i32 s{sT}, s2, {WFS}'); e(f's_lshl_b32 s{sT+1}, s{sW}, 11'); e(f's_add_u32 s{sT}, s{sT}, s{sT+1}'); e(f's_add_u32 s{sT}, s{sT}, {WS_WF}')
    e(f's_mov_b32 s{sT+4}, 0x3f803f80'); e('v_mov_b32 v72, 0'); e('v_mov_b32 v73, 0'); e('s_waitcnt lgkmcnt(0)')
    NP = OPT['np']
    for i in range(7 - NP, 7):
        for u in range(2): e(f'buffer_store_dwordx4 {vr(16+8*i+4*u,4)}, v{vL16}, {sr(sWS,4)}, s{sT} offen offset:{1024*u} sc1')
        e(f's_add_u32 s{sT}, s{sT}, 8192')
    for i in range(7):
        for m in range(4):
            for u in range(2): e(f'v_dot2c_f32_bf16 v{72+u}, s{sT+4}, v{16+8*i+4*u+m}')
    e(f'v_lshlrev_b32 v4, 2, v{vL}'); e(f'v_add_u32 v4, {L_M}, v4'); e(f's_lshl_b32 s{sT}, s{sW}, 8'); e(f'v_add_u32 v2, s{sT}, v4')
    e('v_permlane32_swap_b32 v72, v73'); e('v_add_f32 v72, v72, v73'); e('ds_write_b32 v2, v72'); e('s_waitcnt lgkmcnt(0)'); e('s_barrier')
    e('ds_read2st64_b32 v[72:73], v4 offset0:0 offset1:1'); e('ds_read2st64_b32 v[74:75], v4 offset0:2 offset1:3')
    e(f'v_and_b32 v76, 0x1f0, v{vL16}'); e(f'v_lshrrev_b32 v2, 5, v{vL}'); e('v_lshl_add_u32 v76, v2, 3, v76'); e(f's_lshl_b32 s{sT}, s2, 9'); e(f's_add_u32 s{sT}, s{sT}, {WS_CS}')
    e('s_waitcnt lgkmcnt(0)'); e('v_add_f32 v72, v72, v73'); e('v_add_f32 v74, v74, v75'); e('v_add_f32 v72, v72, v74')
    e('v_cvt_pk_bf16_f32 v73, v72, v72'); e('v_and_b32 v74, 0xffff0000, v73'); e('v_sub_f32 v75, v72, v74'); e('v_cvt_pk_bf16_f32 v78, v74, v75'); e('v_and_b32 v79, 0xffff, v73')
    e(f's_cmp_lg_u32 s{sW}, 0'); e('s_cbranch_scc1 L_hnocs')
    e(f'buffer_store_dwordx2 v[78:79], v76, {sr(sWS,4)}, s{sT} offen sc1')
    e('L_hnocs:')
    e(f's_and_b32 s{sT}, s2, 3'); e(f's_mul_i32 s{sT}, s{sT}, {WFS}'); e(f's_lshl_b32 s{sT+1}, s{sW}, 11'); e(f's_add_u32 s{sT}, s{sT}, s{sT+1}'); e(f's_add_u32 s{sT}, s{sT}, {WS_WF + 8192*NP}')
    e(f's_lshr_b32 s{sT+1}, s2, 2'); e(f's_mov_b32 s{sT+4}, 0x80008000')
    JA = OPT['ja']
    e(f's_lshl_b32 s{sT+5}, s2, 7'); e(f's_add_u32 s{sT+5}, s{sT+5}, {WS_FL}')
    def reads(j0, j1, younger):
        for j in range(j0, j1):
            e(f's_waitcnt vmcnt({12 - 2*j + younger})')
            for v in range(2):
                for h2 in range(2): e(f'ds_read_b64_tr_b16 {vr(80+8*j+4*v+2*h2,2)}, v{vT2+v} offset:{2048*j + 1024*h2}')
        e('s_waitcnt lgkmcnt(0)')
    def stores(j0, j1):
        for j in range(j0, j1):
            if j: e(f's_sub_u32 s{sT+1}, s{sT+1}, 1'); e(f's_min_u32 s{sT+1}, s{sT+1}, 6'); e(f's_add_u32 s{sT}, s{sT}, 8192')
            e(f's_mul_i32 s{sT+2}, s{sT+1}, {4*WFS}'); e(f's_add_u32 s{sT+2}, s{sT+2}, s{sT}')
            for v in range(2):
                r = 80 + 8*j + 4*v; e(f'v_xor_b32 v{r+3}, s{sT+4}, v{r+3}'); e(f'buffer_store_dwordx4 {vr(r,4)}, v{vL16}, {sr(sWS,4)}, s{sT+2} offen offset:{1024*v} sc1')
    def flag(i, n=0):
        e(f's_waitcnt vmcnt({n})'); e('s_barrier'); e(f's_cmp_lg_u32 s{sW}, 0'); e(f's_cbranch_scc1 L_hsig{i}')
        e(f'v_lshlrev_b32 v145, 2, v{vL}'); e('s_mov_b32 exec_hi, 0'); e(f'buffer_store_dword v5, v145, {sr(sWS,4)}, s{sT+5} offen sc1'); e('s_mov_b32 exec_hi, -1')
        e(f'L_hsig{i}:'); e(f's_add_u32 s{sT+5}, s{sT+5}, 4096'); hstamp()
    e('v_not_b32 v5, v140'); flag(0)
    if OPT['ho'] == 0: d2(JE, 7); reads(0, JA, 0); stores(0, JA); reads(JA, 7, 2*JA); flag(1); stores(JA, 7)
    else:
        assert JA <= JE; reads(0, JA, 20); stores(0, JA); d2(JE, 7); flag(1, 2*(7 - JE)); reads(JA, 7, 0); stores(JA, 7)
    flag(2)
    def fills():
        e(f's_mul_i32 s{sT}, s2, {FB*8192}'); e(f's_add_u32 s{sT}, s{sT}, {WS_U2 + 4*FA*8192}'); e(f's_mov_b32 s{sT+1}, {FB}')
        e('L_hfill2:')
        if OPT['nofill']: e(f's_mov_b32 s{sT+1}, 1')
        for i in range(4): e(f'v_mov_b32 v{12+i}, -1')
        e(f's_lshl_b32 s{sT+2}, s{sW}, 10'); e(f'v_add_u32 v10, s{sT+2}, v{vL16}')
        e(f's_lshl_b32 s{sT+2}, s2, 12'); e(f's_add_u32 s{sT+2}, s{sT+2}, {WS_SS}'); e(f'buffer_store_dwordx4 v[12:15], v10, {sr(sWS,4)}, s{sT+2} offen sc1')
        e('L_fill:')
        for j in range(2): e(f'buffer_store_dwordx4 v[12:15], v10, {sr(sWS,4)}, s{sT} offen sc1'); e(f's_add_u32 s{sT}, s{sT}, 4096')
        e(f's_sub_u32 s{sT+1}, s{sT+1}, 1'); e(f's_cmp_lg_u32 s{sT+1}, 0'); e('s_cbranch_scc1 L_fill')
        e(f's_lshl_b32 s{sT+5}, s2, 7'); e(f's_add_u32 s{sT+5}, s{sT+5}, {WS_FL + 12288}'); e('s_waitcnt vmcnt(0)'); e('v_not_b32 v5, v140')
        flag(3)
    if OPT['l2k'] < 28:
        k0 = OPT['l2k']
        e('s_cmp_ge_u32 s2, 24'); e('s_cbranch_scc1 L_hfill')
        e(f'v_min_u32 v2, 27, v{vL}'); e('v_lshlrev_b32 v2, 7, v2'); e(f's_mov_b32 s{sT}, {WS_FL + 4096}'); e(f's_mov_b32 s{sT+1}, 8')
        e('L_l2w:'); e(f'buffer_load_dword v4, v2, {sr(sWS,4)}, s{sT} offen sc1'); e(f's_sub_u32 s{sT+1}, s{sT+1}, 1'); e('s_cbranch_scc1 L_hfill')
        e('s_waitcnt vmcnt(0)'); e('v_cmp_ne_u32 vcc, v4, v5'); e('s_cbranch_vccnz L_l2w')
        e(f's_lshr_b32 s{sT}, s2, 3'); e(f's_lshl_b32 s{sT}, s{sT}, 2'); e(f's_add_u32 s{sT}, s{sT}, s{sW}'); e(f's_mul_i32 s{sT}, s{sT}, 38')
        e(f'v_min_u32 v2, 37, v{vL}'); e(f'v_add_u32 v2, s{sT}, v2'); e('v_min_u32 v2, 447, v2'); e('v_lshrrev_b32 v4, 4, v2'); e('v_and_b32 v2, 15, v2')
        e(f'v_mul_u32_u24 v4, {WFS}, v4'); e('v_lshl_add_u32 v4, v2, 7, v4'); e(f's_mov_b32 s{sT}, {WS_WF + 8192*NP + 2048*k0}'); e(f's_mov_b32 s{sT+1}, {28 - k0}')
        e('s_mov_b32 exec_hi, 0x3f')
        e('L_l2:'); e(f'buffer_load_dword v8, v4, {sr(sWS,4)}, s{sT} offen sc1'); e(f's_add_u32 s{sT}, s{sT}, 2048')
        e(f's_sub_u32 s{sT+1}, s{sT+1}, 1'); e(f's_cmp_lg_u32 s{sT+1}, 0'); e('s_cbranch_scc1 L_l2'); e('s_mov_b32 exec_hi, -1'); hstamp(0)
        e('L_hfill:')
    fills()
    if TS and (not AMP or AMP[0] == 'H'):
        n = nts[0]; nts[0] = 8; finish_stamps(); nts[0] = n
    e('L_exit:'); e('s_endpgm')
    k.out = save

HALF = [0]
def gen_H():
    ef, a0, tc, q8 = 72, 73, 74, 75
    P0, P1, PK = 76, 84, 92
    e(f'v_and_b32 v{ef}, 15, v{vL}'); e(f's_and_b32 s{sT}, s{sW}, 1'); e(f's_lshl_b32 s{sT+1}, s{sG}, 5'); e(f's_add_u32 s{sT}, s{sT}, s{sT+1}')
    e(f'v_lshl_add_u32 v{ef}, v{ef}, 1, s{sT}'); e(f'v_mov_b32 v{a0}, 224'); e(f'v_cmp_eq_u32 vcc, 0, v{ef}')
    e(f'v_lshrrev_b32 v{q8}, 4, v{vL}'); e(f's_lshl_b32 s{sT+1}, s{sT+1}, 1'); e(f'v_lshl_add_u32 v{q8}, v{q8}, 3, s{sT+1}')
    e(f'v_cndmask_b32 v{ef}, v{ef}, v{a0}, vcc'); e(f'v_cvt_f32_u32 v{q8}, v{q8}'); e(f'v_cvt_f32_u32 v{ef}, v{ef}')
    e(f's_cmp_ge_u32 s{sW}, 2\ns_cselect_b32 s{sT}, {fl(-112.0)}, 0')
    e(f'v_fma_f32 v{a0}, v{q8}, v{ef}, s{sT}'); e(f'v_mul_f32 v{ef}, {fl(1.0/448)}, v{ef}'); e(f'v_mul_f32 v{q8}, {fl(1.0/448)}, v{a0}')
    e(f'v_rndne_f32 v{q8}, v{q8}'); e(f'v_fmamk_f32 v{a0}, v{q8}, {fl(-448.0)}, v{a0}'); e(f'v_mul_f32 v{a0}, {fl(1.0/448)}, v{a0}')
    e(f'v_mul_f32 v{tc}, {fl(32.0)}, v{ef}'); e(f'v_cos_f32 v{tc}, v{tc}')
    e(f's_mul_i32 s{sT}, s{sW}, {7*1024}'); e(f's_add_u32 s{sT}, s{sT}, {L_H}'); e(f'v_add_u32 v{q8}, s{sT}, v{vL16}')
    e(f'v_add_f32 v{tc}, v{tc}, v{tc}')
    for kap in range(7):
        cur, prv = (P0, P1) if kap % 2 == 0 else (P1, P0)
        if HALF[0]: ls(f'H.{kap}')
        if kap < 2:
            for jj in range(8): e(f'v_fmamk_f32 v{cur+jj}, v{ef}, {fl(32.0*kap+jj)}, v{a0}')
            for jj in range(8): e(f'v_cos_f32 v{cur+jj}, v{cur+jj}')
        else:
            for jj in range(0, 8, 2): e(f'v_pk_fma_f32 {vr(cur+jj,2)}, {vr(tc,2)}, {vr(prv+jj,2)}, {vr(cur+jj,2)} op_sel_hi:[0,1,1] neg_lo:[0,0,1] neg_hi:[0,0,1]')
        pk = PK + 4*(kap % 2)
        for m in range(4): e(f'v_cvt_pk_bf16_f32 v{pk+m}, v{cur+2*m}, v{cur+2*m+1}')
        k.ds(f'ds_write_b128 v{q8}, {vr(pk,4)} offset:{1024*kap}', 'Hw')
def gen_F(dst, tb=100, T=120):
    mf, a0, t = tb, tb + 1, tb + 2
    e(f'v_bfe_u32 v{mf}, v{vL}, 1, 3'); e(f's_lshl_b32 s{sT}, s{sW}, 3'); e(f'v_add_u32 v{mf}, s{sT}, v{mf}')
    e(f'v_and_b32 v{t}, 1, v{vL}'); e(f'v_cvt_f32_u32 v{a0}, v{t}'); e(f'v_cmp_eq_u32 vcc, 0, v{mf}')
    e(f'v_lshlrev_b32 v{t}, 5, v{t}'); e(f'v_mul_f32 v{a0}, {fl(-0.25)}, v{a0}')
    e(f'v_cndmask_b32 v{mf}, v{mf}, v{t}, vcc'); e(f'v_cndmask_b32 v{a0}, v{a0}, 0, vcc')
    e(f'v_bfe_i32 v{t+1}, v{mf}, 0, 1'); e(f'v_cvt_f32_u32 v{mf}, v{mf}'); e(f'v_and_b32 v{t}, 48, v{vL}'); e(f'v_cvt_f32_u32 v{t}, v{t}'); e(f'v_and_b32 v{t+1}, 0x80008000, v{t+1}')
    e(f'v_mul_f32 v{mf}, {fl(1.0/128)}, v{mf}'); e(f'v_fma_f32 v{a0}, v{t}, v{mf}, v{a0}')
    for k1 in range(2):
        for jj in range(4): e(f'v_fmamk_f32 v{T+4*k1+jj}, v{mf}, {fl(2.0*k1 + 4.0*jj)}, v{a0}')
    for i in range(8): e(f'v_cos_f32 v{T+i}, v{T+i}')
    for k1 in range(2):
        for m in range(2): e(f'v_cvt_pk_f16_f32 v{dst+4*k1+m}, v{T+4*k1+2*m}, v{T+4*k1+2*m+1}')
    for k1 in range(2):
        for m in range(2): e(f'v_xor_b32 v{dst+4*k1+2+m}, v{dst+4*k1+m}, v{t+1}')
def gen_M(t0):
    j, s2f, ad = t0, t0 + 1, t0 + 2
    e(f'v_and_b32 v{j}, 31, v{vL}'); e(f'v_lshlrev_b32 v{j}, 6, v{j}')
    S2 = t0 + 36
    e(f'v_lshrrev_b32 v{s2f}, 5, v{vL}'); e(f's_add_u32 s{sT}, s{sW}, s{sG}'); e(f's_and_b32 s{sT}, s{sT}, 3'); e(f's_lshl_b32 s{sT}, s{sT}, 2')
    for jj in range(4):
        if jj: e(f's_add_u32 s{sT}, s{sT}, 1')
        e(f's_lshl_b32 s{sT+1}, s{sT}, 1'); e(f's_sub_u32 s{sT+1}, 32, s{sT+1}')
        if jj == 0: e(f's_cmp_eq_u32 s{sT}, 0\ns_cselect_b32 s{sT+1}, 16, s{sT+1}')
        e(f'v_mul_u32_u24 v{S2+jj}, s{sT+1}, v{s2f}'); e(f'v_add_u32 v{S2+jj}, s{sT}, v{S2+jj}'); e(f'v_cvt_f32_u32 v{S2+jj}, v{S2+jj}')
    e(f's_lshl_b32 s{sT}, s{sW}, 10'); e(f's_add_u32 s{sT}, s{sT}, {L_M}'); e(f'v_add_u32 v{ad}, s{sT}, v{vL16}')
    e(f's_cmp_eq_u32 s{sP}, 0\ns_cselect_b32 s{sT}, {fl(0.25)}, 0')
    for pq in range(2):
        T = t0 + 4 + 16*pq
        tf, a0 = T + 12, T + 13
        e(f'v_add_u32 v{tf}, s{sRB if pq else sP}, v{j}'); e(f'v_cvt_f32_u32 v{tf}, v{tf}'); e(f'v_mul_f32 v{tf}, {fl(1.0/2048)}, v{tf}')
        for jj in range(4): e(f'v_fma_f32 v{T+jj}, v{tf}, v{S2+jj}, s{sT}' if pq else f'v_mul_f32 v{T+jj}, v{tf}, v{S2+jj}')
        for jj in range(4): e(f'v_sin_f32 v{T+4+jj}, v{T+jj}')
        for jj in range(4): e(f'v_cos_f32 v{T+jj}, v{T+jj}')
        for jj in range(4): e(f'v_cvt_pk_f16_f32 v{T+8+jj}, v{T+jj}, v{T+4+jj}')
        k.ds(f'ds_write_b128 v{ad}, {vr(T+8,4)} offset:{4096*pq}', 'Mw')

def img_ops(half, T):
    ops = []; rho = sRB if T else sP
    if half == 0:
        for r in range(8):
            def f(r=r):
                if r == 0: e(f's_lshl_b32 s{sIM}, s{sW}, 9\ns_add_u32 s{sIM}, s{sIM}, s{rho}\ns_mul_i32 s{sIM}, s{sIM}, 896\ns_mul_i32 s{sIL}, s{sW}, {8*912}')
                else: e(f's_add_u32 s{sIM}, s{sIM}, 57344')
                e(f's_add_u32 m0, s{sIL}, {L_X + 912*(32*T + r)}'); e('s_mov_b32 exec_hi, 0x00ffffff')
                k.vmem(f'buffer_load_dwordx4 v{vL16}, {sr(sX0,4)}, s{sIM} offen lds', f'img{T}'); e('s_mov_b32 exec_hi, -1')
            ops.append(Op('s', 20, f, 1))
    else:
        for i in range(7):
            def f(i=i):
                if i == 0: e(f's_mul_i32 s{sIL}, s{sW}, 7168\ns_add_u32 m0, s{sIL}, {L_X + 28672*T}\ns_mul_i32 s{sIM}, s{rho}, 28672\ns_add_u32 s{sIM}, s{sIM}, s{sIL}\ns_add_u32 s{sIM}, s{sIM}, {WS_X2}')
                if i == 4: e(f's_add_u32 m0, m0, 4096\ns_add_u32 s{sIM}, s{sIM}, 4096')
                k.vmem(f'buffer_load_dwordx4 v{vL16}, {sr(sWS,4)}, s{sIM} offen offset:{1024*(i%4)} sc1 lds', f'img{T}')
            ops.append(Op('s' if i % 4 == 0 else 'vm', 4, f, 1))
    return ops

XF = lambda kap: 16 + 4 * kap
BORD = [0, 3, 4, 1, 5, 2, 6]
IMG_LATE = []; ADR = []
SX = [0, 1, 3, 4, 5, 6, 7]
def x2_loads(first):
    for kp in range(first, 7):
        for kap in (kp, kp + 7):
            k.vmem(f'buffer_load_dwordx4 {vr(XF(kap),4)}, v{vL16}, {sr(sWS,4)}, s{SX[kap//2]} offen offset:{1024*(kap%2)} sc1', f'x{kap}')
def phA(half):
    aT = [72, 76, 84, 88]; aHi = {1: 80, 3: 92}; aS, aG = 96, 100
    HR = [104, 120]; ones = 136; Ff = 140; t = 148
    vx, vh, vtr, vu, vcw, k1 = vA, vL16, vA + 2, vA + 3, 150, 151
    lc = L_C(half); vHS = vT2 + 1; aH = aG if half else 164
    def misc():
        if half == 0:
            mk = [0x1000010000100001, 0x2000020000200002, 0x4000040000400004, 0x8000080000800008]
            for i in range(4): e(f's_mov_b32 s{sMK+2*i}, {mk[i] & 0xffffffff:#x}'); e(f's_mov_b32 s{sMK+2*i+1}, {mk[i] >> 32:#x}')
        else: e(f's_mov_b32 s{sMK}, -1'); e(f's_mov_b32 s{sMK+1}, 0xffff')
        e(f'v_and_b32 v{t}, 15, v{vL}'); e(f'v_lshrrev_b32 v{t+1}, 4, v{vL}');
        if OPT['csw']: e(f'v_lshrrev_b32 v{vtr}, 2, v{t}'); e(f'v_xor_b32 v{vtr}, v{vtr}, v{t+1}'); e(f'v_lshlrev_b32 v{vcw}, 5, v{t}'); e(f'v_lshl_add_u32 v{vcw}, v{vtr}, 3, v{vcw}')
        else: e(f'v_lshlrev_b32 v{vcw}, 5, v{t}'); e(f'v_lshl_add_u32 v{vcw}, v{t+1}, 3, v{vcw}')
        e(f's_lshl_b32 s{sT}, s{sW}, 9'); e(f's_add_u32 s{sT}, s{sT}, {lc}'); e(f'v_add_u32 v{vcw}, s{sT}, v{vcw}')
        e(f's_lshl_b32 s{sT}, s{sW}, 2'); e(f'v_add_u32 v{vu}, s{sT}, v{t+1}'); e(f'v_cmp_eq_u32 vcc, 0, v{vu}')
        e(f'v_mul_u32_u24 v{vu}, {2*57344}, v{vu}'); e(f'v_lshl_add_u32 v{vu}, v{t}, 4, v{vu}'); e(f'v_cndmask_b32 v{k1}, -1.0, 0, vcc')
        e(f's_and_b32 s{sT+4}, s2, 7'); e(f's_lshl_b32 s{sT+4}, s{sT+4}, 2'); e(f's_add_u32 s{sT+4}, s{sT+4}, s{sCI}'); e(f's_mul_i32 s{sT+4}, s{sT+4}, 7'); e(f's_add_u32 s{sT+4}, s{sT+4}, s{sG}'); e(f's_lshl_b32 s{sT+4}, s{sT+4}, 8'); e(f's_add_u32 s{sT+4}, s{sT+4}, {WS_U2 if half else WS_U1}')
        e(f's_add_u32 s{sT+5}, s{sT+4}, 57344'); e(f'v_xor_b32 v{vtr}, v{vL}, v{t+1}' if OPT['csw'] else f'v_mov_b32 v{vtr}, v{vL}'); e(f'v_lshlrev_b32 v{vtr}, 3, v{vtr}'); e(f'v_add_u32 v{vtr}, {lc}, v{vtr}')
    hread = lambda kp: rec(lambda: [k.ds(f'ds_read_b128 {vr(HR[kp%2]+4*tl,4)}, v{vh} offset:{L_H + (7*tl+kp)*1024}', f'H{kp}{tl}') for tl in (1, 3, 0, 2)])
    st_load = lambda: k.vmem(f'buffer_load_dwordx4 {vr(ones,4)}, v{vL16}, {sr(sWS,4)}, s49 offen sc1', 'ss')
    if half == 0:
        va, vb = vX, vX + 1
        srds((sX0,))
        e(f'v_lshrrev_b32 v{va}, 3, v{vL}'); e(f'v_lshrrev_b32 v{vb}, 4, v{vL}'); e(f'v_xor_b32 v{vb}, v{vb}, v{vL}'); e(f'v_and_b32 v{vb}, 7, v{vb}')
        e(f'v_mul_u32_u24 v{va}, 57344, v{va}'); e(f'v_lshl_add_u32 v{va}, v{vb}, 4, v{va}')
        e(f'v_xor_b32 v{vb}, 64, v{va}'); e(f'v_add_u32 v{vb}, {8*57344-1024}, v{vb}')
        e(f's_lshr_b32 s{sT}, s{sW}, 1'); e(f's_lshl_b32 s{sT}, s{sT}, 5'); e(f's_add_u32 s{sT}, s{sT}, s{sP}')
        e(f's_and_b32 s{sT+1}, s{sW}, 1'); e(f's_lshl_b32 s{sT+1}, s{sT+1}, 10'); e(f's_add_u32 s{sT}, s{sT}, s{sT+1}'); e(f's_mul_i32 s3, s{sT}, 896')
        e(f's_lshl_b32 s{sIM}, s{sG}, 7')
        def xdma(i):
            b = BORD[i]
            def a():
                if b: e(f's_add_u32 s{sBG}, s{sIM}, {128*b}\ns_sub_u32 s{sIL}, s{sBG}, 896\ns_min_u32 s{sBG}, s{sBG}, s{sIL}')
                e(f's_add_u32 m0, s{sWA}, {8192 + 2048*i}\ns_add_u32 s{sBG}, s3, s{sBG if b else sIM}')
                if i == 0:
                    if OPT['rt']:
                        e(f'v_lshl_add_u32 v4, s{sG}, 4, v{vL}'); e('v_mul_u32_u24 v5, 37, v4'); e('v_lshrrev_b32 v5, 8, v5') if False else None
                        e('v_mul_u32_u24 v5, 9363, v4'); e('v_lshrrev_b32 v5, 16, v5'); e(f'v_mul_u32_u24 v5, {57344-896}, v5'); e('v_lshl_add_u32 v4, v4, 7, v5')
                    e('s_waitcnt lgkmcnt(0)')
                    if TS: e(f's_mov_b32 s{sTS}, s50'); nts[0] = 1; tsn.append('start')
                    if OPT['rt']: e('s_mov_b64 exec, 0xffff'); k.vmem(f'buffer_load_dword v5, v4, {sr(sX0,4)}, s3 offen', 'touch'); e('s_mov_b64 exec, -1')
                k.vmem(f'buffer_load_dwordx4 v{va}, {sr(sX0,4)}, s{sBG} offen lds', f'xa{b}')
            return [Op('s', 24, a), Op('vm', 4, lambda: k.vmem(f'buffer_load_dwordx4 v{vb}, {sr(sX0,4)}, s{sBG} offen offset:1024 lds', f'xb{b}'))]
        xs = []
        for i in range(7): xs += xdma(i)
        k.run(xs[:4]); t0 = k.clk
        if OPT['fine'] & 1: stamp('iss')
        def rest():
            copy_ptrs(True); srds((sW1, sWS)); e(f's_sub_u32 s{sRB}, 64, s{sP}'); e(f's_cmp_eq_u32 s{sP}, 0\ns_cselect_b32 s{sRB}, 32, s{sRB}')
            gen_H()
            for i in range(4): e(f'v_mov_b32 v{ones+i}, 0x3f803f80')
            e(f'v_and_b32 v{t}, 15, v{vL}'); e(f'v_lshrrev_b32 v{t+1}, 4, v{vL}')
            e(f'v_lshrrev_b32 v{vx}, 1, v{t}'); e(f'v_xor_b32 v{vx}, v{vx}, v{t+1}'); e(f'v_lshlrev_b32 v{t}, 7, v{t}'); e(f'v_lshl_add_u32 v{t}, v{vx}, 4, v{t}')
            e(f's_add_u32 s{sT}, s{sWA}, 8192'); e(f'v_add_u32 v{vx}, s{sT}, v{t}'); e(f'v_xor_b32 v{vx+1}, 64, v{vx}')
            stream_setup()
            if OPT['trim'] < 2: warm(0, 1)
            if not OPT['trim']: rest2()
        def rest2():
            stream_setup2(152); srds((sOUT,)); assert not OPT['w2t']
            e(f's_mov_b32 s{sRETRY}, 20000'); e(f's_mov_b32 s{sLO}, 0x3f80'); e(f's_mov_b32 s{sHI}, 0x3f800000'); e(f's_mov_b32 s{sFF}, 0xffff0000')
            misc(); gen_F(Ff, 152, 156); e(f'v_mov_b32 v{vX+2}, 0x10001')
        nx = OPT['nx']
        if OPT.get('xprobe'):
            k.run(xs[4:nx]); ls('p.i'); k.wait(vm='xb0'); ls('p.0'); k.wait(vm='xb3'); ls('p.1'); k.run(xs[nx:]); k.wait(vm='xb1'); ls('p.3'); k.wait(vm='xb6'); ls('p.6'); xs = xs[:4]
        fill = k.weave(xs[4:nx], rec(rest), 64)
        while fill and k.clk < t0 + OPT['late']: fill.pop(0)()
        epl = Op('s', 16, lambda: (e(f's_mov_b32 s{sBG}, {WS_EP}'), e('s_mov_b64 exec, 1'), k.vmem(f'buffer_load_dwordx4 {vr(vSEL,4)}, off, {sr(sWS,4)}, s{sBG} sc1', 'ep'), e('s_mov_b64 exec, -1')), 1)
        k.bg += [Op(o.kind, o.cost, o.fn, 1) for o in xs[nx:]] + [epl]
        def touch():
            e(f's_sub_u32 s{sBG}, s2, 32\ns_lshl_b32 s{sBG}, s{sBG}, 2\ns_add_u32 s{sBG}, s{sBG}, s{sW}\ns_mul_i32 s{sBG}, s{sBG}, {14*128}\nv_lshlrev_b32 v4, 7, v{vL}\ns_mov_b64 exec, 0x3fff')
            if OPT['w2t'] & 2: k.vmem(f'buffer_load_dword v5, v4, {sr(sW1,4)}, s{sBG} offen', 'touch')
            if OPT['w2t'] & 1: k.vmem(f'buffer_load_dword v2, v4, {sr(sW2,4)}, s{sBG} offen', 'touch')
            e('s_mov_b64 exec, -1')
        im = img_ops(0, 1); nb = OPT['imgb']; IMG_LATE[:] = im[nb:]
        after = im[:nb] + ([Op('s', 36, touch, 1)] if OPT['w2t'] else []); k.bg += after
        k.seg(999, 999*OPT['pS'])
        k.run(fill)
        while len(k.bg) > len(after): k.bg_step()
        if OPT['trim'] == 2: warm(0, 1)
        k.quota = len(k.bg) + OPT['nA']
        k.refill = ws.refill
        k.wait(lg='Hw'); e('s_barrier')
        k.run(hread(0))
    else:
        t0 = k.clk
        fill = rec(lambda: (gen_H(), misc(), k.wait(lg='Hw'), e('s_barrier'), k.run(hread(0)), gen_F(Ff), e(f'v_mul_u32_u24 v{t+1}, 80, v{t+1}'), [k.ds(f'ds_bpermute_b32 v{aH+r}, v{t+1}, v{vHS} offset:{4*r}', 'hs') for r in range(4)]))
        ld = rec(lambda: x2_loads(0)); ld = ld[:OPT['ssp']] + rec(st_load) + ld[OPT['ssp']:]
        if OPT['xe']:
            def grp(ops, late, track):
                l = k.lab('xskip'); save = list(k.vm)
                k.call(lambda: (e(f's_cmp_lt_u32 s{sW}, 2'), e(f's_cbranch_scc{int(late)} {l}'), k.run(ops), e(f'{l}:')))
                if not track: k.vm = save
            while fill and k.clk < t0 + OPT['xe']: fill.pop(0)()
            grp(ld[:6], False, False)
            while fill and k.clk < t0 + OPT['xe'] + 250: fill.pop(0)()
            grp(ld[6:11], False, False)
            while fill and k.clk < t0 + OPT['xd']: fill.pop(0)()
            stamp('A1.ack')
            grp(ld[:6], True, True)
            t1 = k.clk
            while fill and k.clk < t1 + 120: fill.pop(0)()
            grp(ld[6:11], True, True); k.run(fill)
        else:
            while fill and k.clk < t0 + OPT['xd']: fill.pop(0)()
            if OPT['xack']: k.wait(vm='xst')
            stamp('A1.ack')
            k.run(ld[:4])
            k.run(k.weave(ld[4:11], fill, 60))
        later = ld[11:] + img_ops(1, 1)
    stamp(f'A{half}.consts')
    def xread(i):
        b = BORD[i]
        def g(h):
            k.wait(vm=f'xb{b}'); k.ds(f'ds_read_b128 {vr(XF(2*b+h),4)}, v{vx+h} offset:{2048*i}', f'xr{i}')
            if h: ws.limit = 5 + i if i < 6 else NR
        return [Op('ds', 8, lambda: g(0)), Op('ds', 4, lambda: g(1))]
    def xchk(k0, k1_, ss=False):
        d = ones
        def chk():
            r = [XF(x) for kp in range(k0, k1_ + 1) for x in (kp, kp + 7)]
            if ss:
                e(f'v_cndmask_b32 v{d+2}, 0, v{d+2}, {sr(sMK,2)}'); e(f'v_cndmask_b32 v{d+3}, 0, v{d+3}, {sr(sMK,2)}'); r += [d, d + 1, d + 2, d + 3]
            e(f'v_max_u32 v{t+1}, v{r[0]}, v{r[1]}')
            for i in range(2, len(r), 2): e(f'v_max3_u32 v{t+1}, v{t+1}, v{r[i]}, v{r[i+1]}')
            e(f'v_cmp_eq_u32 vcc, -1, v{t+1}')
        return rec(lambda: (k.wait(vm=f'x{k1_+7}'), chk(), retry_site(chk, lambda: (x2_loads(k0), k0 <= 2 and st_load()), f'x2_{k0}')))
    k.depth += 1
    if half == 0: k.run(xread(0) + xread(1))
    else: k.run(xchk(0, 1))
    k.depth -= 1
    def rstd():
        e(f'v_fmamk_f32 v{t}, v{t}, {fl(-1.0/448)}, v{aS}')
        e(f'v_min_f32 v{t}, 0, v{t}'); e(f'v_sub_f32 v{t}, {fl(1e-5)}, v{t}'); e(f'v_rsq_f32 v{t}, v{t}')
    def scale(tl, pk):
        a = aT[tl]
        if pk:
            if tl == 0:
                for r in (0, 2): e(f'v_pk_fma_f32 {vr(a+r,2)}, {vr(aH+r,2)}, {vr(aS+2,2)}, {vr(a+r,2)} op_sel_hi:[1,0,1]')
            if tl in aHi:
                for r in (0, 2): e(f'v_pk_add_f32 {vr(a+r,2)}, {vr(a+r,2)}, {vr(aHi[tl]+r,2)} neg_lo:[0,1] neg_hi:[0,1]')
            for r in (0, 2): e(f'v_pk_mul_f32 {vr(a+r,2)}, {vr(a+r,2)}, {vr(t,2)} op_sel_hi:[1,0]')
        else:
            for r in range(4): e(f'v_sub_f32 v{a+r}, v{a+r}, v{aHi[tl]+r}')
            for r in range(4): e(f'v_mul_f32 v{a+r}, v{a+r}, v{t}')
        for m in range(2): e(f'v_cvt_pk_f16_f32 v{a+m}, v{a+2*m}, v{a+2*m+1}')
        k.ds(f'ds_write_b64 v{vcw}, {vr(a,2)} offset:{2048*tl}', 'cw')
    sl = []; o0 = 0 if half else 4
    for kp in range(7):
        lo, hi = vr(XF(kp), 4), vr(XF(kp+7), 4)
        c = lambda a: vr(a, 4) if kp else '0'
        mm = lambda d, a, b, cc: f'v_mfma_f32_16x16x32_bf16 {vr(d,4)}, {a}, {b}, {cc}'
        ms = [] if half else [mm(aS, vr(ones, 4), lo, c(aS)), mm(aG, lo, lo, c(aG)), mm(aS, vr(ones, 4), hi, vr(aS, 4)), mm(aG, hi, hi, vr(aG, 4))]
        ms += [mm(aT[tl], vr(HR[kp%2]+4*tl, 4), lo, c(aT[tl])) for tl in (1, 3, 0, 2)]
        ms += [mm(aHi[tl], vr(HR[kp%2]+4*tl, 4), hi, c(aHi[tl])) if tl in aHi else mm(aT[tl], vr(HR[kp%2]+4*tl, 4), hi, vr(aT[tl], 4)) for tl in (1, 3, 0, 2)]
        if kp == 6: ms = ms[:o0] + [ms[o0 + i] for i in (0, 4, 1, 5, 2, 6, 3, 7)]
        cur = [[rec(lambda m=m: e(m)), [], []] for m in ms]; cur[0][1].append(Op('s', 0, lambda kp=kp: ls(f'a{half}.{kp}')))
        if half == 0:
            cur[0][0] = rec(lambda: k.wait(lg=f'xr{min(kp+1, 6)}')) + cur[0][0]
            cur[o0][0] = rec(lambda: e(mm(aH, vr(HR[kp%2], 4), vr(ones, 4), c(aH)))) + cur[o0][0]
        if half == 0: cur[o0][0] = rec(lambda: k.wait(lg=f'H{kp}2')) + cur[o0][0]
        else:
            cur[0][0] = rec(lambda: k.wait(lg=f'H{kp}3')) + cur[0][0]; i2 = 4 if kp == 6 else 2; cur[i2][0] = rec(lambda: k.wait(lg=f'H{kp}2')) + cur[i2][0]
        if kp < 6:
            for i, o in enumerate(hread(kp + 1)): cur[o0 + i][1].append(o)
            if half == 0 and kp < 5:
                for i, o in enumerate(xread(kp + 2)): cur[2 + i][1].append(o)
        sl += cur
    if half == 0:
        k.bg_period = OPT['pA']
        ep = rec(lambda: (k.wait(vm='ep'), [e(f'v_readfirstlane_b32 s{sN+i}, v{vSEL+i}') for i in range(4)], [e(f's_not_b32 s{sN+i}, s{sN+i}') for i in range(4)]))
        for i, o in enumerate(ep): sl[68 + i][2].append(o)
        def stats():
            e(f'v_cndmask_b32 v{t}, 0, v{aG}, {sr(sMK,2)}')
            for r in range(1, 4): e(f'v_cndmask_b32 v{t}, v{t}, v{aG+r}, {sr(sMK+2*r,2)}')
            e(f'v_mul_f32 v{aS+2}, {fl(-2.0/448)}, v{aS}'); e(f'v_mul_f32 v{aS}, {fl(1.0/448)}, v{aS}')
            for sw in ('16', '32'):
                e(f'v_mov_b32 v{t+1}, v{t}')
                if sw == '16': e(f'v_mul_f32 v{aS}, v{aS}, v{aS}')
                e(f'v_permlane{sw}_swap_b32 v{t}, v{t+1}'); e(f'v_add_f32 v{t}, v{t}, v{t+1}')
            rstd()
        k.slots(sl[:80], rec(rest2) if OPT['trim'] else [], 78, nbg=OPT['nbgA'], res0=0)
        if OPT['fine'] & 1: stamp(f'A{half}.mf')
        k.bg_period = OPT['pT']
        st = rec(stats)
        for i in range(80, 84): sl[i][2] += st[:2]; st = st[2:]
        k.slots(sl[80:], nbg=0)
        k.run(st)
    else:
        d = ones
        for at, o in (((12, 12, 12, 13, 13, 14, 14, 14, 15), xchk(2, 3, True)), ((29, 29, 30, 30, 31), xchk(4, 5)), ((46, 46, 47, 47), xchk(6, 6))):
            assert len(at) == len(o)
            for i, x in zip(at, o): sl[i][2].append(x)
        for i, x in zip((4, 5, 6, 7, 20, 21, 22, 23, 36, 37, 38), later): sl[i][1].append(x)
        def sums():
            e(f'v_add_f32 v{d}, v{d}, v{d+2}'); e(f'v_add_f32 v{d+1}, v{d+1}, v{d+3}'); e(f'v_permlane32_swap_b32 v{d}, v{d+1}'); e(f'v_add_f32 v{d}, v{d}, v{d+1}')
            e(f'v_mov_b32 v{d+1}, v{d}'); e(f'v_permlane16_swap_b32 v{d}, v{d+1}'); e(f'v_add_f32 v{aS}, v{d}, v{d+1}')
            e(f'v_mov_b32 v{t}, v{aS}'); e(f'v_permlane32_swap_b32 v{aS}, v{t}')
            e(f'v_mul_f32 v{aS+2}, {fl(-2.0/448)}, v{aS}'); e(f'v_mul_f32 v{aS}, {fl(1.0/448)}, v{aS}'); e(f'v_mul_f32 v{aS}, v{aS}, v{aS}'); rstd()
        idx = [16, 17, 19, 24, 25, 27, 28, 32, 34, 35, 39, 40, 41, 42, 43, 44]
        for i, x in zip(idx, rec(sums)): sl[i][2].append(x)
        sc = rec(lambda: scale(1, False)); sl[53][2] += sc[:3]; sl[54][2] += sc[3:6]; sl[55][2] += sc[6:]
        k.slots(sl, nbg=1)
        if OPT['fine'] & 1: stamp(f'A{half}.mf')
    k.wait(lg='hs')
    for tl in ((3, 0, 2) if half else (1, 3, 0, 2)): scale(tl, True)
    k.wait(lg='cw'); e('s_barrier')
    stamp(f'A{half}.hdft')
    cf = lambda tl, k1_: 72 + 8*tl + 4*k1_
    k.depth += 1
    so = [(0, 0), (2, 0), (0, 1), (2, 1), (1, 0), (3, 0), (1, 1), (3, 1)]
    for tl, k1_ in so:
        for h2 in range(2): k.ds(f'ds_read_b64_tr_b16 {vr(cf(tl,k1_)+2*h2,2)}, v{vtr} offset:{2048*tl + 1024*k1_ + 512*h2}', f'c{tl}{k1_}')
    if half == 0:
        e(f'v_cndmask_b32 v{vHS}, 0, v{aH}, {sr(sMK,2)}')
        for r in range(1, 4): e(f'v_cndmask_b32 v{vHS}, v{vHS}, v{aH+r}, {sr(sMK+2*r,2)}')
        k.burst(OPT['nS'])
    else: k.bg_flush()
    Dt = lambda tl: 104 + 4*tl
    def smf(tl, k1_):
        k.wait(lg=f'c{tl}{k1_}')
        e(f'v_mfma_f32_16x16x32_f16 {vr(Dt(tl),4)}, {vr(Ff+4*k1_,4)}, {vr(cf(tl,k1_),4)}, {vr(Dt(tl),4) if k1_ else 0}')
    def bfly(pp, u):
        kk1 = f'v{k1}' if pp == 0 else '-1.0'; nk1 = f'-v{k1}' if pp == 0 else '1.0'
        CA, SA, CB, SB = Dt(u) + 2*pp, Dt(u) + 2*pp + 1, Dt(2+u) + 2*pp, Dt(2+u) + 2*pp + 1
        o = 120 + 8*pp + 4*u
        e(f'v_fma_f32 v{o}, {kk1}, v{SB}, v{CA}'); e(f'v_fma_f32 v{o+1}, {kk1}, v{SA}, -v{CB}')
        e(f'v_fma_f32 v{o+2}, {nk1}, v{CA}, v{SB}'); e(f'v_fma_f32 v{o+3}, {kk1}, v{CB}, v{SA}')
        for m in range(2): e(f'v_cvt_pk_f16_f32 v{72+4*pp+2*u+m}, v{o+2*m}, v{o+2*m+1}')
        if half == 0:
            for m in range(2): e(f'v_bfi_b32 v{72+4*pp+2*u+m}, v{vX+2}, s{sN+2*u+m}, v{72+4*pp+2*u+m}')
    for x in so: smf(*x)
    if half == 0: e('s_barrier')
    bfly(0, 0); bfly(1, 0)
    for pp in range(2):
        bfly(pp, 1)
        k.vmem(f'buffer_store_dwordx4 {vr(72+4*pp,4)}, v{vu}, {sr(sWS,4)}, s{sT+4+pp} offen sc1', 'Ust')
    k.depth -= 1
    stamp(f'A{half}.ust')

def US(half): return 16 if half == 0 else 256
def TOFF(half): return 32 * 912 if half == 0 else 28672
def rowaddr(half, dst, j, t):
    if half == 0: e(f'v_mul_u32_u24 v{dst}, 912, v{j}')
    else:
        e(f'v_lshrrev_b32 v{t}, 4, v{j}'); e(f'v_mul_u32_u24 v{t}, 14336, v{t}'); e(f'v_and_b32 v{dst}, 15, v{j}'); e(f'v_lshl_add_u32 v{dst}, v{dst}, 4, v{t}')
def phB(half):
    us = US(half); RAW = lambda kap: 16 + 16*kap; ACC = lambda u, pq: 80 + 32*pq + 16*u; MF = 144
    vu, vd, vmP, vmQ = vA, vA + 1, vA + 2, vA + 3
    vu2, vm, tc, vbn = (vSa, vSb, vT1, vT1 + 1) if half else (vX, vX + 1, vX + 2, vX + 3)
    t = 88; t0 = k.clk
    save = k.refill
    if half == 0: ws.lag = OPT['lag']; k.bg += IMG_LATE; k.burst(OPT['nB']); k.seg(OPT['nK'], OPT['pK']*OPT['nK'], 300)
    def tile0():
        if OPT['pads']:
            e(f's_cmp_lt_u32 s{sW}, 2'); e(f's_cbranch_scc1 L_t0_{half}')
            e('s_mov_b64 exec, 0'); e(f's_cmp_eq_u32 s{sW}, 2'); e(f's_cbranch_scc1 L_pad{5 + 4*half}'); e(f's_branch L_pad{6 + 4*half}'); e(f'L_t0_{half}:')
        else: e(f's_cmp_ge_u32 s{sW}, 2'); e(f's_cbranch_scc1 L_ret{1 + half}')
        bs = 128 if half == 0 else 2048
        if half == 0:
            e(f'v_and_b32 v{t}, 15, v{vL}'); e(f'v_lshl_add_u32 v{t}, s{sW}, 4, v{t}'); e(f'v_mul_u32_u24 v{t}, 912, v{t}')
            e(f'v_and_b32 v{t+1}, 48, v{vL}'); e(f'v_add_u32 v{t}, v{t}, v{t+1}')
        else: e(f's_mul_i32 s{sT}, s{sW}, 14336'); e(f'v_add_u32 v{t}, s{sT}, v{vL16}')
        e(f's_mul_i32 s{sT}, s{sG}, {bs}')
        for b in range(7):
            if b: e(f's_add_u32 s{sT}, s{sT}, {bs}'); e(f's_sub_u32 s{sT+1}, s{sT}, {7*bs}'); e(f's_min_u32 s{sT}, s{sT}, s{sT+1}')
            e(f'v_add_u32 v{t+1}, s{sT}, v{t}')
            for h in range(2): e(f'ds_write_b128 v{t+1}, {vr(XF(2*b+h),4)} offset:{L_X + h*bs//2}')
        e(f'L_ret{1 + half}:'); e('s_mov_b64 exec, -1')
    k.call(tile0); ls(f'b{half}.t0')
    if half == 0: late_setup()
    e(f'v_bfe_u32 v{t}, v{vL}, 2, 1'); e(f'v_bfe_u32 v{t+1}, v{vL}, 3, 2'); e(f'v_and_b32 v{t+2}, 3, v{vL}')
    e(f'v_lshl_add_u32 v{t+1}, v{t}, 2, v{t+1}'); e(f'v_lshl_add_u32 v{t+1}, v{t+1}, 2, v{t+2}'); e(f's_mul_i32 s{sT+2}, s{sW}, 448')
    e(f'v_lshl_add_u32 v{t+1}, v{t+1}, 4, s{sT+2}'); e(f'v_subrev_u32 v{t}, 1792, v{t+1}'); e(f'v_min_u32 v{t+1}, v{t}, v{t+1}')
    e(f'v_lshrrev_b32 v{t+2}, 5, v{vL}'); e(f'v_mul_u32_u24 v{t}, 1792, v{t+2}'); e(f'v_add_u32 v{vu}, v{t}, v{t+1}'); e(f'v_add_u32 v{vu2}, 7168, v{vu}')
    e(f's_mul_i32 s{sT}, s{sP}, 57344'); e(f's_add_u32 s{sT}, s{sT}, {WS_U2 if half else WS_U1}')
    for i in range(4): e(f's_add_u32 s{sT+1}, s{sG}, {i}'); e(f's_and_b32 s{sT+1}, s{sT+1}, 3'); e(f's_mul_i32 s{sT+1}, s{sT+1}, 14336'); e(f's_add_u32 s{sUO+i}, s{sT}, s{sT+1}')
    def adr():
        j, a = t + 3, t + 4
        e(f'v_and_b32 v{j}, 31, v{vL}'); e(f's_mul_i32 s{sT}, s{sW}, 7'); e(f'v_lshl_add_u32 v{a}, v{t+2}, 2, s{sT}')
        rowaddr(half, vd, j, t); e(f'v_mul_u32_u24 v{t+1}, {us}, v{a}'); e(f'v_add_u32 v{vd}, v{vd}, v{t+1}')
        e(f'v_sub_u32 v{a}, {52*us}, v{t+1}')
        e(f's_cmp_eq_u32 s{sP}, 0\ns_cselect_b32 s{sT}, 32, 63\ns_cselect_b32 s{sT+1}, 31, 63\ns_cselect_b32 s{sT+2}, 63, 31')
        e(f'v_sub_u32 v{t+5}, s{sT}, v{j}'); e(f'v_and_b32 v{t+5}, s{sT+1}, v{t+5}'); rowaddr(half, vmP, t + 5, t); e(f'v_add_u32 v{vmP}, v{vmP}, v{a}')
        e(f'v_sub_u32 v{t+5}, s{sT+2}, v{j}'); rowaddr(half, vmQ, t + 5, t); e(f'v_add_u32 v{vmQ}, v{vmQ}, v{a}')
        e(f's_cmp_eq_u32 s{sW}, 0\ns_cselect_b32 s{sMK}, 0, -1'); e(f's_mov_b32 s{sMK+1}, -1')
        e(f'v_add_u32 v{vm}, {L_M}, v{vL16}')
        e(f's_mul_i32 s{sT}, s{sW}, {7*us}'); e(f'v_mul_u32_u24 v{t+2}, {3*us}, v{t+2}'); e(f'v_subrev_u32 v{vbn}, s{sT}, v{vd}'); e(f'v_sub_u32 v{vbn}, v{vbn}, v{t+2}')
        if OPT['rot']:
            e(f's_mul_i32 s{sT}, s{sRO}, {14*us}'); e(f'v_add_u32 v{vbn}, s{sT}, v{vbn}'); e(f's_mov_b32 s{sT}, {14*us}')
            for q in range(4): e(f's_cmp_eq_u32 s{sRO}, {3-q}\ns_cselect_b32 s{sRD+q}, {-42*us}, s{sT}')
    if half == 0:
        setup = rec(lambda: (gen_M(96), adr(), e(f's_mov_b32 s{sMK+2}, 0xfffefffe'))); nb = len(setup)*OPT['sb']//100
        k.run(setup[:nb]); setup = setup[nb:]
        k.burst(k.quota)
    else:
        def ichk():
            e(f's_mul_i32 s{sT}, s{sW}, 7168'); e(f'v_add_u32 v{t}, s{sT}, v{vL16}')
            for i in range(7): k.ds(f'ds_read_b32 v{t+2+i}, v{t} offset:{L_X + 28672 + 1024*i}', 'ic')
            k.wait(lg='all')
            for i in range(3): e(f'v_max3_u32 v{t+2}, v{t+2}, v{t+3+2*i}, v{t+4+2*i}')
            e(f'v_cmp_eq_u32 vcc, -1, v{t+2}')
    k.refill = None; k.bg_flush()
    if OPT['uack']: k.wait(vm='Ust')
    stamp(f'B{half}.ack')
    def uloads(first, last=4):
        for kap in range(first, last):
            for jj in range(4):
                k.vmem(f'buffer_load_dwordx4 {vr(RAW(kap)+4*jj,4)}, v{vu if jj < 2 else vu2}, {sr(sWS,4)}, s{sUO+kap} offen offset:{3584*(jj%2)} sc1', f'U{kap}{jj}')
    ld = rec(lambda: uloads(0))
    n0 = OPT['n0']
    if half == 0:
        if OPT['fl'] < 0: flag_load()
        fill = []
        while ws.nd < min(ws.dmax, ws.ni): fill += ws.drain_ops()
        per = -(-len(setup) // n0)
        for o in ld[:n0]:
            k.run([o] + fill[:4] + setup[:per]); fill = fill[4:]; setup = setup[per:]
        k.run(fill)
        k.wait(vm='img1', lg='all'); e('s_barrier')
    else:
        fill = rec(lambda: (adr(), k.wait(vm='img1'), ichk())); t1 = k.clk
        while fill and k.clk < t1 + OPT['ud']: fill.pop(0)()
        k.run(ld[:4])
        k.run(k.weave(ld[4:n0], fill, 56))
        retry_site(ichk, lambda: k.run(img_ops(1, 1)), 'img')
        e('s_barrier')
    mread = lambda kap, pq: k.ds(f'ds_read_b128 {vr(MF+4*pq,4)}, v{vm} offset:{4096*pq + 1024*kap}', f'M{pq}')
    mread(0, 0); mread(0, 1)
    if half == 0: ws.cs_flush(); ws.cs_on = 0; ws.lag = 99
    rest = ld[n0:]
    XU = lambda pq, b, mir: RAW(2*pq + (b >> 1)) + 8*(b & 1) + 4*mir
    MRG = OPT['mrg']; vd3, vm3 = XU(0, 3, 0), XU(0, 3, 0) + 1
    def xadr(pq, b, mir):
        if MRG and b == 3: return (vm3, L_X) if mir else (vd3, L_X + 3*us)
        return (vmQ if pq else vmP, L_X + (3-b)*us) if mir else (vd, L_X + pq*TOFF(half) + b*us)
    def xread(pq, b):
        if MRG and (pq, b) == (0, 3):
            e(f'v_mov_b32 v{vd3}, v{vd}'); e(f'v_mov_b32 v{vm3}, v{vmP}')
            k.call(lambda: e(f's_mov_b32 exec_lo, 0\nv_add_u32 v{vd3}, {TOFF(half) - 4*us}, v{vd}\nv_add_u32 v{vm3}, {4*us}, v{vmQ}\ns_mov_b32 exec_lo, -1'), 's', 16)
            return
        for mir in range(2):
            a, o = xadr(pq, b, mir); k.ds(f'ds_read_b128 {vr(XU(pq,b,mir),4)}, v{a} offset:{o}', f'x{"dm"[mir]}{pq}{b}')
    def uchk(kap):
        R = RAW(kap)
        if half: e(f'v_max3_u32 v{tc}, v{R}, v{R+4}, v{R+8}'); e(f'v_max_u32 v{tc}, v{tc}, v{R+12}'); e(f'v_cmp_eq_u32 vcc, -1, v{tc}')
        else:
            e(f'v_xor_b32 v{tc}, s{sN}, v{R}')
            for i in range(1, 16): e(f'v_bitop3_b32 v{tc}, v{tc}, v{R+i}, s{sN + i%4} bitop3:0xf6')
            e(f'v_and_b32 v{tc}, 0x10001, v{tc}'); e(f'v_cmp_ne_u32 vcc, 0, v{tc}')
    def ureload(kap):
        if half == 0 or not OPT['usel']: return uloads(kap)
        uloads(kap, kap + 1)
        if kap < 3: e('s_waitcnt vmcnt(4)')
        for k2 in range(kap + 1, 4):
            l = k.lab('have'); uchk(k2); e(f's_cbranch_vccz {l}'); uloads(k2, k2 + 1); e(f'{l}:')
    if half and OPT['upipe']:
        sw = lambda kap, i, jx: e(f'v_swap_b32 v{RAW(kap)+4*i+jx}, v{RAW(kap)+4*jx+i}')
        def step(kap, jj):
            if kap > 3: return
            R = RAW(kap); k.wait(vm=f'U{kap}{jj}')
            if kap == 0:
                for _ in range(2 if jj == 3 else 1): k.run([rest.pop(0)])
            if jj == 3: assert not rest; ls(f'b{half}.u{kap}')
            e(f'v_max_u32 v{tc}, v{tc}, v{R+4*jj}' if jj else f'v_mov_b32 v{tc}, v{R}')
            if jj < 3:
                for i in range(jj): sw(kap, i, jj)
            else:
                e(f'v_cmp_eq_u32 vcc, -1, v{tc}'); sw(kap, 0, 3)
                retry_site(lambda: uchk(kap), lambda: ureload(kap), f'U{half}_{kap}', after=lambda: (sw(kap, 0, 1), sw(kap, 0, 2), sw(kap, 1, 2), sw(kap, 0, 3)))
        def mf(kap, u, pq):
            A = ACC(u, pq); e(f'v_mfma_f32_32x32x16_f16 {vr(A,16)}, {vr(RAW(kap)+4*(2*u+pq),4)}, {vr(MF+4*pq,4)}, {vr(A,16) if kap else 0}')
        xr = lambda kap, i: kap >= 0 and xread(kap >> 1, 2*(kap & 1) + i)
        ls('b1.w0')
        for jj in range(4): step(0, jj)
        for kap in range(4):
            if kap == 3: stamp(f'B{half}.Uin')
            k.wait(lg='M0'); mf(kap, 0, 0); sw(kap, 2, 3); sw(kap, 1, 3); k.wait(lg='M1')
            mf(kap, 1, 0)
            if kap < 3: mread(kap + 1, 0)
            xr(kap - 1, 0); step(kap + 1, 0)
            mf(kap, 0, 1); xr(kap - 1, 1); step(kap + 1, 1)
            mf(kap, 1, 1)
            if kap < 3: mread(kap + 1, 1)
            step(kap + 1, 2); step(kap + 1, 3)
        xr(3, 0); xr(3, 1)
    for kap in range(0 if half and OPT['upipe'] else 4):
        R = RAW(kap)
        ls(f'b{half}.w{kap}')
        sw = lambda i, jx, R=R: e(f'v_swap_b32 v{R+4*i+jx}, v{R+4*jx+i}')
        if half:
            for jj in range(4):
                k.wait(vm=f'U{kap}{jj}')
                if kap == 0: k.run(rest[:2 if jj == 3 else 1]); rest = rest[2 if jj == 3 else 1:]
                if jj == 3: assert not rest; ls(f'b{half}.u{kap}')
                e(f'v_max_u32 v{tc}, v{tc}, v{R+4*jj}' if jj else f'v_mov_b32 v{tc}, v{R}')
                if jj == 3: e(f'v_cmp_eq_u32 vcc, -1, v{tc}'); sw(0, 3)
                else:
                    for i in range(jj): sw(i, jj)
            retry_site(lambda kap=kap: uchk(kap), lambda kap=kap: ureload(kap), f'U{half}_{kap}', after=lambda sw=sw: (sw(0, 1), sw(0, 2), sw(1, 2), sw(0, 3)))
        else:
            k.wait(vm=f'U{kap}3'); ls(f'b{half}.u{kap}')
            if kap == 0: k.run(rest); k.refill = save; k.seg(999, 999*OPT['pU'], 300)
            if kap + OPT['fc'] == -1: flag_check(); ws.limit = 28
            uchk(kap); retry_site(lambda kap=kap: uchk(kap), lambda kap=kap: ureload(kap), f'U{half}_{kap}')
        if kap == 3: stamp(f'B{half}.Uin')
        SP = R if half else 220 + 16*(kap & 1)
        def mf(u, pq):
            A = ACC(u, pq); e(f'v_mfma_f32_32x32x16_f16 {vr(A,16)}, {vr(SP+4*(2*u+pq),4)}, {vr(MF+4*pq,4)}, {vr(A,16) if kap else 0}')
        if half:
            k.wait(lg='M0')
            mf(0, 0); sw(2, 3); sw(1, 3); k.wait(lg='M1'); mf(1, 0)
            if kap < 3: mread(kap + 1, 0)
            mf(0, 1); mf(1, 1)
        else:
            assert ws.ni <= 40
            mv = lambda d: [e(f'v_and_b32 v{SP+4*d+jj}, s{sMK+2}, v{R+4*jj+d}') for jj in range(4)]
            mv(0); mv(2); k.wait(lg='M0'); mf(0, 0); mv(1); mf(1, 0)
            if kap < 3: mread(kap + 1, 0)
            mv(3); k.wait(lg='M1'); mf(0, 1); mf(1, 1)
        if kap < 3: mread(kap + 1, 1)
        if half == 0 and kap == OPT['fl2']: flag_load(1)
        xread(kap >> 1, 2*(kap & 1)); xread(kap >> 1, 2*(kap & 1) + 1)
    if half == 0:
        ws.lag = OPT['lag']; k.bg_period = OPT['pE']
    ADR[:] = [vu2, vm]
    e(f'v_lshrrev_b32 v{vm}, 3, v{vL}'); e(f'v_lshl_add_u32 v{vm}, s{sW}, 3, v{vm}'); rowaddr(half, vu2, vm, tc)
    e(f'v_and_b32 v{tc}, 7, v{vL}'); e(f'v_lshl_add_u32 v{vu2}, v{tc}, {us.bit_length()-1}, v{vu2}'); e(f'v_lshlrev_b32 v{vm}, 3, v{vm}'); e(f's_lshl_b32 s{sT}, s{sW}, 3')
    T = MF
    sel = lambda hi: f's{sHI if hi else sLO}'
    YY = lambda pq, b, n: ACC(n & 1, pq) + 4*b + (n >> 1)
    for pq in range(2):
        e(f'v_mov_b32 v{tc if MRG and pq else vu}, v{YY(pq,0,0)}'); e(f'v_cndmask_b32 v{YY(pq,0,0)}, 0, v{YY(pq,0,0)}, {sr(sMK,2)}')
        for b in range(4):
            if MRG and (pq, b) == (0, 3): continue
            Y = lambda b_, n: YY(0 if MRG and b == 3 else pq, b_, n)
            if b == 3 and not MRG: k.depth += 1; e('s_mov_b32 exec_hi, 0')
            xd, xm = XU(pq, b, 0), XU(pq, b, 1); ls(f'e{half}.{pq}{b}')
            if half == 0 and 4 + 3*pq + b == OPT['fl2'] and b < 3: flag_load(1)
            if half == 0 and 3*pq + b == OPT['fc2'] and b < 3: flag_check(1); ws.limit = min(44, 28 + 4*OPT['ja'])
            if half == 0 and 3*pq + b == OPT['fl3'] and b < 3: assert ws.limit > 28; flag_load(2)
            k.wait(lg=f'xm{pq}{b}')
            if MRG and b == 3:
                for n in range(8): e(f'v_permlane32_swap_b32 v{YY(0,3,n)}, v{YY(1,3,n)}')
            for n in range(8): e(f'v_dot2_f32_bf16 v{T+n}, v{xd + (n >> 1)}, {sel(n & 1)}, v{Y(b,n)}')
            e(f'v_dot2_f32_bf16 v{Y(b,0)}, v{xm}, {sel(0)}, v{Y(b+1,0) if b < 3 else tc}')
            for m in range(4): e(f'v_cvt_pk_bf16_f32 v{xd+m}, v{T+2*m}, v{T+2*m+1}')
            a, o = xadr(pq, b, 0); k.ds(f'ds_write_b128 v{a}, {vr(xd,4)} offset:{o}', 'xw')
            for m in range(1, 8): e(f'v_dot2c_f32_bf16 v{Y(b,8-m)}, {sel(m & 1)}, v{xm + (m >> 1)}')
            if b == 0 and (pq or not MRG): e(f'v_permlane32_swap_b32 v{vu}, v{tc}')
            for m in range(4): e(f'v_cvt_pk_bf16_f32 v{xm+m}, v{Y(b,(8-2*m)%8)}, v{Y(b,7-2*m)}')
            a, o = xadr(pq, b, 1); k.ds(f'ds_write_b128 v{a}, {vr(xm,4)} offset:{o}', 'xw')
        if not MRG: e('s_mov_b32 exec_hi, -1'); k.depth -= 1

def ffn(half):
    us = US(half); toff = TOFF(half); ls(f'e{half}.x')
    vb, vs, vst, vh = vA, vA + 1, vA + 2, vA + 3
    BR = lambda i: B[5] + 4*(i % 3); MFR = B[5] + 12; t = B[5] + 14
    vres = B[4]
    e(f'v_mov_b32 v{vb}, v{vT1 + 1 if half else vX + 3}')
    def adr0():
        e(f'v_lshrrev_b32 v{t}, 3, v{vL}'); e(f's_lshl_b32 s{sT}, s{sW}, 3'); e(f'v_add_u32 v{t}, s{sT}, v{t}'); rowaddr(half, vs, t, t + 1)
        e(f'v_lshlrev_b32 v{vh}, 3, v{t}')
        e(f'v_and_b32 v{t}, 7, v{vL}'); e(f'v_lshl_add_u32 v{vs}, v{t}, {us.bit_length()-1}, v{vs}')
    e(f'v_mov_b32 v{vs}, v{ADR[0]}'); e(f'v_mov_b32 v{vh}, v{ADR[1]}')
    def more():
        e(f's_mul_i32 s{sT+1}, s{sG}, {8*us}')
        if half == 0:
            e(f'v_and_b32 v{t}, 7, v{vL}'); e(f'v_add_u32 v{t}, s{sT}, v{t}'); rowaddr(half, vres, t, t + 1)
            e(f'v_lshrrev_b32 v{t}, 3, v{vL}'); e(f'v_lshl_add_u32 v{vres}, v{t}, 4, v{vres}'); e(f'v_add_u32 v{vres}, s{sT+1}, v{vres}')
        else: e(f'v_add_u32 v{vres}, s{sT+1}, v{vs}')
        e(f'v_and_b32 v{vst}, 31, v{vL}'); e(f'v_lshlrev_b32 v{vst}, 3, v{vst}')
        e(f's_mov_b32 s{sMK}, -1'); e(f's_mov_b32 s{sMK+1}, 0'); e(f's_mov_b32 s{sMK+2}, 0x80008000')
    def epoch():
        def ep():
            e(f's_lshl_b32 s{sT+4}, s2, 2'); e(f's_add_u32 s{sT+4}, s{sT+4}, s{sW}'); e(f's_cmp_eq_u32 s{sT+4}, 128'); e('s_cbranch_scc1 L_epoch'); e('L_epoch_ret:')
            k.begin_tail(); e('L_epoch:')
            for i in range(4): e(f'v_mov_b32 v{B[5]+i}, s{sN+i}')
            e(f's_mov_b32 s{sT+4}, {WS_EP}'); e('s_mov_b64 exec, 1'); e(f'buffer_store_dwordx4 {vr(B[5],4)}, off, {sr(sWS,4)}, s{sT+4} sc1'); e('s_mov_b64 exec, -1'); e('s_branch L_epoch_ret')
            k.end_tail()
        k.call(ep, 's', 32)
    vh1 = vT1
    if half == 0:
        assert ws.limit > 28
        if OPT['fl3'] == 6: flag_load(2)
    if half == 0: ws.force(-1); k.seg(999, 999*OPT['perG'])
    k.wait(lg='xw'); e('s_barrier')
    stamp(f'B{half}.end')
    if stop(f'B{half}', 61440): return True
    hvo = lambda T: vh1 if T else vL16
    MF2 = [MFR, MFR]
    resrd = lambda T: k.ds(f'ds_read_b128 {vr(vR+4*T,4)}, v{vres} offset:{L_X + T*toff}', 'res')
    ACC1 = lambda T, u: B[2*T + u]
    def bread(i):
        q = i % 28
        def f():
            k.ds(f'ds_read_b128 {vr(BR(i),4)}, v{vb} offset:{L_X + (i//28)*toff + 2*(q % 7 if OPT["rot"] else q)*us}', f'B{i}')
            if OPT['rot'] and q % 7 == 6 and i < 55: e(f'v_add_u32 v{vb}, s{sRD + q//7}, v{vb}')
        return Op('ds', 4, f)
    k.depth += 1; bread(0)(); bread(1)(); k.depth -= 1
    def stats_ops(T):
        SB = lambda j: B[6] + 4*(j % 2); s1, s2, lo, hi = B[6] + 8, B[6] + 9, B[6] + 10, B[6] + 12
        rd = lambda j: k.ds(f'ds_read_b128 {vr(SB(j),4)}, v{vs} offset:{L_X + T*toff + 8*j*us}', f'S{T}{j}')
        ops = rec(lambda: (rd(0), rd(1))) + [None, None]
        def body():
            for j in range(1 if OPT['nostats'] else 7):
                k.wait(lg=f'S{T}{j}')
                for m in range(4):
                    l_, h_ = lo + m % 2, hi + m % 2
                    e(f'v_lshlrev_b32 v{l_}, 16, v{SB(j)+m}'); e(f'v_and_b32 v{h_}, s{sFF}, v{SB(j)+m}')
                    if m == 3 and j + 2 < 7: rd(j + 2)
                    if j == 0 and m == 0: e(f'v_add_f32 v{s1}, v{l_}, v{h_}'); e(f'v_mul_f32 v{s2}, v{l_}, v{l_}'); e(f'v_fmac_f32 v{s2}, v{h_}, v{h_}')
                    else: e(f'v_add_f32 v{s1}, v{s1}, v{l_}'); e(f'v_fmac_f32 v{s2}, v{l_}, v{l_}'); e(f'v_add_f32 v{s1}, v{s1}, v{h_}'); e(f'v_fmac_f32 v{s2}, v{h_}, v{h_}')
        ops += rec(body)
        for c in ('quad_perm:[1,0,3,2]', 'quad_perm:[2,3,0,1]', 'row_half_mirror'):
            ops += rec(lambda: [e('s_nop 0')] + [e(f'v_add_f32_dpp v{r}, v{r}, v{r} {c} row_mask:0xf bank_mask:0xf') for r in (s1, s2)])
        ops += rec(lambda: (e(f'v_mul_f32 v{s1}, {fl(-1.0/448)}, v{s1}'), e(f'v_mul_f32 v{lo}, v{s1}, v{s1}'), e(f'v_fmamk_f32 v{s2}, v{s2}, {fl(-1.0/448)}, v{lo}'),
                e(f'v_min_f32 v{s2}, 0, v{s2}'), e(f'v_sub_f32 v{s2}, {fl(1e-5)}, v{s2}'), e(f'v_rsq_f32 v{s2}, v{s2}'))) + [None]
        ops += rec(lambda: k.ds(f'ds_write_b64 v{vh}, {vr(s1,2)} offset:{L_ST + 256*T}', 'stw')) + [None, None]
        ops += rec(lambda: (k.wait(lg='stw'), e('s_barrier'), k.ds(f'ds_read_b32 v{t}, v{vst} offset:{L_ST + 256*T}', 'm'))) + [None, None, None]
        ops += rec(lambda: (k.wait(lg='m'), e(f'v_cndmask_b32 v{t}, 0, v{t}, {sr(sMK,2)}'), e(f'v_cvt_pk_bf16_f32 v{MFR}, v{t}, v{t}'),
                e(f'v_and_b32 v{t+1}, s{sFF}, v{MFR}'), e(f'v_sub_f32 v{t}, v{t}, v{t+1}'), e(f'v_cvt_pk_bf16_f32 v{MFR+1}, v{t}, 0')))
        return ops
    OWN = [B[4], B[6]]
    def bump(c): k.bg_next = max(k.bg_next, k.clk - 40) + c
    ownfix = lambda T: None
    def epi1(T):
        ng = '-' if half else ''
        for u in range(2):
            for be in range(2):
                d = OWN[T] + 8*u + 4*be; a = ACC1(T, u) + 8*be
                for m in range(4):
                    ng = '-' if (half != (m == 3)) else ''; e(f'v_cvt_pk_bf16_f32 v{d+m}, {ng}v{a+2*m}, {ng}v{a+2*m+1}')
                for m in range(4): e(f'v_pk_max_u16 v{d+m}, v{d+m}, s{sMK+2}' if (half != (m == 3)) else f'v_pk_max_i16 v{d+m}, v{d+m}, 0')
                if OPT['noh'] & (4 << T): continue
                k.call(lambda d=d, u=u, be=be: (k.vmem(f'buffer_store_dwordx4 {vr(d,4)}, v{hvo(T)}, {sr(sWS,4)}, s{sHS} offen offset:{1024*(2*u+be)} sc1', 'hst'), bump(96)), 'vm', 24)
    HB = {(0, 0): B[4], (0, 1): B[0], (0, 2): B[1], (0, 3): B[7], (0, 4): B[4], (0, 5): B[0], (0, 6): B[1],
          (1, 0): B[6], (1, 1): B[7], (1, 2): B[4], (1, 3): B[6], (1, 4): B[7], (1, 5): B[4], (1, 6): B[6]}
    inflight = []
    def hload(T, jp, i, track=True):
        def f():
            if OPT['noh'] & 1: return
            k.vmem(f'buffer_load_dwordx4 {vr(HB[T,jp]+4*i,4)}, v{hvo(T)}, {sr(sWS,4)}, s{sHS+jp} offen offset:{1024*i} sc1', f'h{T}{jp}{i}')
            if track: inflight.append((T, jp, i)); bump(OPT['perH'] if len(inflight) > 12 else 60)
        return Op('vm', 4, f)
    prevuse = {(0, 4): (0, 0), (0, 5): (0, 1), (0, 6): (0, 2), (1, 1): (0, 3), (1, 2): (0, 4), (1, 3): (1, 0), (1, 4): (1, 1), (1, 5): (1, 2), (1, 6): (1, 3)}
    order = [(0, 1), (0, 2), (0, 3), (0, 4), (0, 5), (1, 1), (0, 6)] + [(1, j) for j in range(2, 7)] if OPT['hord'] else [(T, j) for T in range(2) for j in range(1, 7)]
    hq = []
    for T, jp in order:
        for i in range(4):
            rdy = OPT['hq_slot' if half else 'hq0'] if T == 0 else 116 + OPT['t1_slot']
            if (T, jp) in prevuse: pT, pj = prevuse[T, jp]; rdy = max(rdy, 116 + 56*pT + 8*pj + 2*i + 1)
            hq.append((rdy, 116 + 56*T + 8*jp - OPT['hdl'] - 2*(3 - i), T, jp, i))
    def hpace(slot):
        def f():
            if not hq or OPT['noh'] & 1: return
            due = min(x[1] for x in hq[:8]) <= slot
            wfirst = half == 0 and ws.sent < 56 and ws.use(ws.sent) - OPT['lead'] <= hq[0][1]
            if hq[0][0] <= slot and ((k.clk >= k.bg_next and not wfirst) or due):
                x = hq.pop(0)
                if x[3:] == (1, 0) and OPT['hack'] >> (2*half + x[2]) & 1: k.wait(vm='hst')
                if half == 0 and OPT['cntlate'] and x[2:] == (1, 1, 0): cnt_load(vSa)
                hload(*x[2:])()
                if OPT['verbose'] > 2: print(f'; h{x[2:]} at slot {slot} use {116 + 56*x[2] + 8*x[3]}', file=sys.stderr)
        return Op('vm', 0, f)
    def g1_slots(T):
        sl = []
        for n in range(28):
            i = 28*T + n
            for u in range(2):
                A = ACC1(T, u)
                def mf(A=A, n=n, u=u, i=i):
                    k.wait(lg=f'B{i}')
                    if half == 0 and T == 0:
                        if n < NR: assert ws.done > n; k.wait(lg=f'tr{n}')
                        else: assert ws.sent > n; k.wait(vm=f'w{n}')
                    e(f'v_mfma_f32_32x32x16_bf16 {vr(A,16)}, {w1f(n,u)}, {vr(BR(i),4)}, {vr(A,16) if n else 0}')
                pre = [bread(i + 2)] if (u == 0 and i + 2 < 56) else []
                if u == 0 and n % 7 == 0: pre.append(Op('s', 0, lambda n=n: ls(f'c{half}.{T}{n//7}')))
                if half == 0 and u == 1: pre.append(Op('ds', 0, lambda n=n: ws.force(58*T + 2*n + 1)))
                sl.append([[Op('mfma', 8, mf)], pre, []])
        return sl
    def corr(T): return [[rec(lambda: e(f'v_mfma_f32_32x32x8_bf16 {vr(ACC1(T,u),16)}, {vr(vCS+2*u,2)}, {vr(MF2[T],2)}, {vr(ACC1(T,u),16)}')), [], []] for u in range(2)]
    st0 = stats_ops(0); st1 = stats_ops(1)
    sl = g1_slots(0)
    res = [rec(lambda: k.ds(f'ds_read_b128 {vr(vR+4*T,4)}, v{vres} offset:{L_X + T*toff}', 'res')) for T in range(2)]
    nbg = OPT['nbgG']; STAG = OPT['stag']
    if half == 0:
        assert OPT['fc3'] < OPT['css']
        if OPT['fl3'] > 6: sl[OPT['fl3'] - 7][1] += rec(lambda: flag_load(2))
        sl[OPT['fc3']][2] += rec(lambda: flag_check(2)) + [Op('s', 0, lambda: setattr(ws, 'limit', 56))]
        sl[OPT['css']][1] += rec(cs_load); sl[49][2] += rec(lambda: k.wait(vm='cs'))
    q0 = st0[:1] + rec(more) + st0[1:2] + st0[4:18] + res[0] + st0[18:43] + res[1] + st0[43:]
    if STAG:
        mv = [sl[i][1].pop(0) for i in (52, 54)]; sl[51][1].insert(0, mv[0]); sl[53][1].insert(0, mv[1])
        tb = [sl[51], sl[53], sl[55]]; sl = sl[:50] + [sl[50], sl[52], sl[54]]
    k.slots(sl, q0, 52 if STAG else 54, nbg=nbg)
    log('g1(0) done')
    if OPT['fine'] & 2: stamp(f'C{half}.g10')
    c0 = corr(0); ep0 = rec(lambda: epi1(0)); nop = lambda n: rec(lambda: e(f's_nop {n}'))
    tail1 = st1[26:] + rec(lambda: e(f'v_add_u32 v{vh1}, {7*16384}, v{vL16}'))
    if STAG:
        k.slots([c0[0]] + tb[:2], st1[:1] + nop(3) + [None] + st1[1:2] + nop(2) + [None] + ep0[:5], nbg=0)
        sl = [tb[2], c0[1]] + g1_slots(1)
        q = ep0[5:18] + st1[4:9] + ep0[18:] + st1[9:26] + tail1
    else:
        sl = c0 + g1_slots(1)
        q = st1[:14] + ep0 + st1[14:26] + tail1
    for n in range(len(sl)): sl[n][1].append(hpace(56 + n))
    if half == 0 and not OPT['cntlate']: sl[OPT['hq0'] - 57][1] += rec(lambda: cnt_load(vT1 + 1, 1))
    k.slots(sl, q, 57, nbg=nbg)
    k.slots(corr(1))
    stamp(f'C{half}.g1')
    k.depth += 1
    while len(inflight) < OPT['hB%d' % half]: hload(*hq.pop(0)[2:])()
    epi1(1)
    k.depth -= 1
    if OPT['fine'] & 4: stamp(f'C{half}.epi'); k.wait(vm='h023'); stamp(f'C{half}.h02'); k.wait(vm='all'); stamp(f'C{half}.ack')
    if stop(f'C{half}'): return True
    ACC2 = lambda T, v: (B[2 + v] if T == 0 else B[v])
    ORD = [[(kk, v) for kk in range(28) for v in range(2)] for T in range(2)]
    V8 = OPT['v8'] >> half & 1; k0 = 20 if V8 else 24
    ORD[1] = ORD[1][:2*k0] + [(kk, v) for v in range(2) for kk in range(k0, 28)]
    CUR = [0]
    AR = lambda kk, v: B[5] + 4*(ORD[CUR[0]].index((kk, v)) % 4)
    def aread(kk, v):
        def f():
            assert ws.sent > 28 + kk; k.wait(vm=f'w{28+kk}')
            k.ds(f'ds_read_b128 {vr(AR(kk,v),4)}, v{vT2} offset:{2048*(kk-17) + 1024*v}', f'A{kk}{v}')
        return Op('ds', 4, f)
    tc = vb
    def hcheck(T, jp):
        R = HB[T, jp]
        def part(i):
            r = R + 4*i
            e(f'v_or3_b32 v{tc}, v{r}, v{r+1}, v{tc}' if i else f'v_or_b32 v{tc}, v{r}, v{r+1}'); e(f'v_bitop3_b32 v{tc}, v{tc}, v{r+2}, v{r+3} bitop3:0xfd')
        def fin(): e(f'v_and_b32 v{tc}, s{sMK+2}, v{tc}'); e(f'v_cmp_ne_u32 vcc, 0, v{tc}')
        def chk():
            if half == 0: [part(i) for i in range(4)]; fin()
            else: e(f'v_bitop3_b32 v{tc}, v{R}, v{R+4}, v{R+8} bitop3:0x80'); e(f'v_and_b32 v{tc}, v{tc}, v{R+12}'); e(f'v_cmp_le_i32 vcc, 0, v{tc}')
        def br():
            todo = [x for x in inflight if (x[:2] == (T, jp) if OPT['hsel'] else x[:2] >= (T, jp))]
            retry_site(chk, lambda: [hload(*x, track=False)() for x in todo], f'h{half}_{T}{jp}')
        def w(i):
            assert (T, jp, i) in inflight, (T, jp, i); k.wait(vm=f'h{T}{jp}{i}')
        o = [[] for _ in range(8)]
        if half: o[6] = [Op('v', 16, lambda: (w(3), chk()))]
        else:
            o[4] = [Op('v', 20, lambda: (w(1), part(0), part(1)))]; o[5] = [Op('v', 12, lambda: (w(2), part(2)))]; o[6] = [Op('v', 20, lambda: (w(3), part(3), fin()))]
        o[7] = [Op('s', 20, br)]
        return o
    RS = 1088; vrr, vo, vrwb = vs, vh, vT1 + 1
    def g2addr():
        tau, cc = B[5], B[5] + 1
        if half == 0: e(f'v_and_b32 v{tau}, 7, v{vL}'); e(f'v_lshrrev_b32 v{cc}, 3, v{vL}')
        else: e(f'v_lshrrev_b32 v{tau}, 3, v{vL}'); e(f'v_and_b32 v{cc}, 7, v{vL}')
        e(f's_lshl_b32 s{sT}, s{sW}, 3'); e(f'v_add_u32 v{tau}, s{sT}, v{tau}')
        e(f'v_mul_u32_u24 v{vrr}, {RS}, v{cc}'); e(f'v_lshl_add_u32 v{vrr}, v{tau}, 4, v{vrr}')
        if half == 0: e(f'v_bfe_i32 v{cc+1}, v{cc}, 0, 1'); e(f'v_lshl_add_u32 v{vrr}, v{cc+1}, 6, v{vrr}')
        e(f'v_lshlrev_b32 v{vst}, 3, v{tau}')
        if half == 0:
            rowaddr(1, vo, tau, cc + 1); e(f'v_lshl_add_u32 v{vo}, v{cc}, 8, v{vo}')
            for T in range(2):
                e(f's_mul_i32 s{sMK+4+T}, s{sRB if T else sP}, 28672'); e(f's_lshl_b32 s{sT}, s{sG}, 11'); e(f's_add_u32 s{sMK+4+T}, s{sMK+4+T}, s{sT}'); e(f's_add_u32 s{sMK+4+T}, s{sMK+4+T}, {WS_X2}')
        else:
            e(f'v_mul_u32_u24 v{vo}, 57344, v{tau}'); e(f'v_lshl_add_u32 v{vo}, v{cc}, 4, v{vo}')
            for T in range(2):
                e(f's_mul_i32 s{sMK+4+T}, s{sRB if T else sP}, 896'); e(f's_lshl_b32 s{sT}, s{sG}, 7'); e(f's_add_u32 s{sMK+4+T}, s{sMK+4+T}, s{sT}')
        e(f's_mul_i32 s{sT}, s{sW}, {8*RS}'); e(f'v_add_u32 v{vrwb}, s{sT}, v{vL16}')
        e('s_barrier')
    def g2more():
        if half == 0:
            e(f's_lshr_b32 s{sT}, s{sW}, 1'); e(f's_lshl_b32 s{sT}, s{sT}, 5'); e(f's_add_u32 s{sT}, s{sT}, s{sP}'); e(f's_lshl_b32 s{sT}, s{sT}, 1')
            e(f's_and_b32 s{sT+1}, s{sW}, 1'); e(f's_add_u32 s{sT}, s{sT}, s{sT+1}'); e(f's_lshl_b32 s49, s{sT}, 10'); e(f's_add_u32 s49, s49, {WS_SS}')
            e(f's_mul_i32 s{sT}, s{sT}, 14336'); e(f's_add_u32 s{sT}, s{sT}, {WS_X2}'); e(f's_lshl_b32 s{sT+1}, s{sG}, 11')
            for b in range(7):
                if b: e(f's_add_u32 s{sT+1}, s{sT+1}, 2048'); e(f's_sub_u32 s{sT+2}, s{sT+1}, 14336'); e(f's_min_u32 s{sT+1}, s{sT+1}, s{sT+2}')
                e(f's_add_u32 s{SX[b]}, s{sT}, s{sT+1}')
            for T in range(2):
                e(f's_lshl_b32 s{sT}, s{sRB if T else sP}, 11'); e(f's_lshr_b32 s{sT+1}, s{sW}, 1'); e(f's_lshl_b32 s{sT+1}, s{sT+1}, 10'); e(f's_add_u32 s{sT}, s{sT}, s{sT+1}')
                e(f's_and_b32 s{sT+1}, s{sW}, 1'); e(f's_lshl_b32 s{sT+1}, s{sT+1}, 7'); e(f's_add_u32 s{sT}, s{sT}, s{sT+1}')
                e(f's_lshr_b32 s{sT+1}, s{sG}, 1'); e(f's_lshl_b32 s{sT+1}, s{sT+1}, 8'); e(f's_add_u32 s{sT}, s{sT}, s{sT+1}')
                e(f's_and_b32 s{sT+1}, s{sG}, 1'); e(f's_lshl_b32 s{sT+1}, s{sT+1}, 3'); e(f's_add_u32 s{sT}, s{sT}, s{sT+1}'); e(f's_add_u32 s{sMK+6+T}, s{sT}, {WS_SS}')
    rr = vSb
    rwr = lambda T, c: k.ds(f'ds_write_b128 v{vrwb}, {vr(ACC2(T, c >> 2) + 4*(c & 3), 4)} offset:{L_RED + RS*c - (0 if half else 64*(c & 1))}', 'rw')
    rrd = lambda T: k.ds(f'ds_read_b32 v{rr}, v{vst} offset:{L_ST + 4 + 256*T}', 'rw')
    def red_final(T, PB, pk):
        x = vR + 4*T; ops = []
        for pw in range(4):
            ops += rec(lambda: [k.ds(f'ds_read_b128 {vr(PB+8*pw+4*h,4)}, v{vrr} offset:{L_RED + 8*RS*pw + 512*h}', f'p{pw}') for h in range(2)]) + [None]
        XT = B[7] if pk else None
        def body():
            if pk:
                k.wait(lg='p1')
                for n in range(0, 8, 2): e(f'v_pk_add_f32 {vr(PB+n,2)}, {vr(PB+n,2)}, {vr(PB+8+n,2)}')
                k.wait(lg='p3')
                for n in range(0, 8, 2): e(f'v_pk_add_f32 {vr(PB+16+n,2)}, {vr(PB+16+n,2)}, {vr(PB+24+n,2)}')
                for n in range(0, 8, 2): e(f'v_pk_add_f32 {vr(PB+n,2)}, {vr(PB+n,2)}, {vr(PB+16+n,2)}')
                ng = ' neg_lo:[1,0,0] neg_hi:[1,0,0]' if half else ''
                for n in range(0, 8, 2): e(f'v_pk_fma_f32 {vr(PB+n,2)}, {vr(PB+n,2)}, {vr(rr-1,2)}, {vr(XT+n,2)} op_sel:[0,1,0]{ng}')
            else:
                for pw in range(1, 4):
                    k.wait(lg=f'p{pw}')
                    for n in range(8): e(f'v_add_f32 v{PB+n}, v{PB+n}, v{PB+8*pw+n}')
                for n in range(8): e(f'v_and_b32 v{PB+8+n}, s{sFF}, v{x + n//2}' if n & 1 else f'v_lshlrev_b32 v{PB+8+n}, 16, v{x + n//2}')
                for n in range(8): e(f'v_fma_f32 v{PB+n}, {"-" if half else ""}v{rr}, v{PB+n}, v{PB+8+n}')
            for m in range(4): e(f'v_cvt_pk_bf16_f32 v{x+m}, v{PB+2*m}, v{PB+2*m+1}')
            if half == 0:
                k.vmem(f'buffer_store_dwordx4 {vr(x,4)}, v{vo}, {sr(sWS,4)}, s{sMK+4+T} offen sc1', 'xst')
                a, b, c = PB + 16, PB + 17, PB + 18
                e(f'v_add_f32 v{a}, v{PB}, v{PB+1}'); e(f'v_mul_f32 v{b}, v{PB}, v{PB}'); e(f'v_fmac_f32 v{b}, v{PB+1}, v{PB+1}')
                for n in range(2, 8): e(f'v_add_f32 v{a}, v{a}, v{PB+n}'); e(f'v_fmac_f32 v{b}, v{PB+n}, v{PB+n}')
                e(f'v_and_b32 v{c}, 0x70, v{vL16}'); e(f'v_lshrrev_b32 v{c+1}, 5, v{vL}')
                e(f'v_permlane32_swap_b32 v{a}, v{b}'); e(f'v_add_f32 v{a}, v{a}, v{b}'); e(f'v_mov_b32 v{b}, v{a}'); e(f'v_lshl_add_u32 v{c}, v{c+1}, 2, v{c}')
                e(f'v_permlane16_swap_b32 v{a}, v{b}'); e(f'v_add_f32 v{a}, v{a}, v{b}')
                e(f'v_add_f32_dpp v{a}, v{a}, v{a} row_ror:8 row_mask:0xf bank_mask:0xf')
                k.call(lambda: (e('s_mov_b32 exec_lo, 0xff\ns_mov_b32 exec_hi, 0xff'), k.vmem(f'buffer_store_dword v{a}, v{c}, {sr(sWS,4)}, s{sMK+6+T} offen sc1', 'xst'), e('s_mov_b64 exec, -1')), 's', 16)
            else: k.vmem(f'buffer_store_dwordx4 {vr(x,4)}, v{vo}, {sr(sOUT,4)}, s{sMK+4+T} offen' + ('', ' sc1', ' nt', ' sc0 sc1', ' sc1 nt')[OPT['outsc'] // (1, 10)[T] % 10], 'xst')
        return ops + [None] + rec(body)
    for T in range(2):
        sl = []; CUR[0] = T
        for pos, (kk, v) in enumerate(ORD[T]):
            jp, i = kk >> 2, kk & 3
            if True:
                A = ACC2(T, v); wr = w2reg(kk, v)
                def mf(A=A, wr=wr, kk=kk, v=v, jp=jp, i=i):
                    if wr is None: k.wait(lg=f'A{kk}{v}')
                    elif half == 0 and T == 0:
                        assert ws.sent > 28 + kk; k.wait(vm=f'w{28+kk}')
                    a = rn(wr, 4) if wr else vr(AR(kk, v), 4)
                    e(f'v_mfma_f32_32x32x16_bf16 {vr(A,16)}, {a}, {vr(HB[T,jp]+4*i,4)}, {vr(A,16) if kk else 0}')
                pre, post = [], []
                if i == 0 and v == 0: pre.append(Op('s', 0, lambda jp=jp, T=T: ls(f'g{half}.{T}{jp}')))
                if half == 0 and T == 0 and v == 0: pre.append(Op('ds', 0, lambda kk=kk: ws.force(116 + 2*kk)))
                if pos + 4 < 56 and ORD[T][pos + 4][0] >= 17: pre.append(aread(*ORD[T][pos + 4]))
                pre.append(hpace(116 + 56*T + 2*kk + v))
                if T and V8 and pos >= 40:
                    if pos < 44 and not OPT['noh'] & 2: post += hcheck(T, 6)[pos - 36]
                elif jp < 6 and not OPT['noh'] & 2: post += hcheck(T, jp + 1)[2*i + v]
                sl.append([[Op('mfma', 8, mf)], pre, post])
        if T == 0: k.slots(sl[:26], rec(lambda: (half or OPT['cntlate'] or cnt_check(vT1 + 1, 1), g2addr())), 24); k.slots(sl[26:], rec(g2more), 28)
        else:
            k.bg_flush(); assert half or ws.ni == 56
            q = [None, None]
            q += rec(lambda: rrd(0))
            if half == 0 and OPT['cntlate']: sl[9][2] += rec(lambda: cnt_check(vSa))
            for c in range(8): q += rec(lambda: rwr(0, c)) + [None, None]
            q += [Op('s', 0, lambda: CHECKED[0])] + rec(lambda: (k.wait(lg='rw'), e('s_barrier'))) + red_final(0, B[2], False) + [None] + rec(lambda: (e('s_barrier'), rrd(1)))
            x = vR + 4
            un = rec(lambda: [e(f'v_and_b32 v{B[7]+n}, s{sFF}, v{x + n//2}' if n & 1 else f'v_lshlrev_b32 v{B[7]+n}, 16, v{x + n//2}') for n in range(8)])
            if V8:
                sl[47][2] += un[:4]; sl[48][2] += un[4:]
                for c, at in enumerate((49, 51, 53, 55)): sl[at][2] += rec(lambda: rwr(1, c))
            else: sl[52][2] += un[:5]; sl[53][2] += un[5:]; sl[54][2] += rec(lambda: rwr(1, 0)); sl[55][2] += rec(lambda: rwr(1, 1))
            k.slots(sl, q, 46 if V8 else 51)
        log(f'g2({T}) done')
        if OPT['fine'] & 2 and T == 0: stamp(f'D{half}.g20')
    stamp(f'D{half}.g2')
    for c in range(4 if V8 else 2, 8): rwr(1, c)
    ls(f'd{half}.w'); k.wait(lg='all'); e('s_barrier'); ls(f'd{half}.b')
    k.run(red_final(1, B[2], True))
    stamp(f'D{half}.st')
    if half == 0: epoch()
    k.refill = None
    return False

def only_stream():
    srds((sX0, sW1, sW2, sWS)); e(f's_lshl_b32 s49, s3, 2'); e(f's_add_u32 s49, s49, s{sW}')
    e(f'v_lshlrev_b32 v17, 7, v{vL}'); e(f's_mul_i32 s{sIL}, s49, {14*128}')
    e('s_waitcnt lgkmcnt(0)'); copy_ptrs(True); copy_ptrs(False)
    e(f's_mov_b32 s{sTS}, s50'); nts[0] = 1; tsn.append('start'); e(f's_mov_b32 s{sRETRY}, 20000')
    e('s_mov_b64 exec, 0x3fff')
    if OPT['touch'] & 2: k.vmem(f'buffer_load_dword v19, v17, {sr(sW1,4)}, s{sIL} offen', 'touch')
    if OPT['touch'] & 4: k.vmem(f'buffer_load_dword v19, v17, {sr(sW2,4)}, s{sIL} offen', 'touch')
    e('s_mov_b64 exec, -1')
    stream_setup(); late_setup(); warm(0, 1); warm(1, 5)
    if OPT['touch'] & 8: k.wait(vm='touch')
    stamp('go'); ws.limit = 56; ws.lag = 9
    while ws.ni < 56 or ws.nd < 45:
        n = ws.nd; ws.refill(); k.bg_flush()
        if ws.nd != n and ws.nd % 7 == 0: stamp(f'nd{ws.nd}')
    k.wait(vm='all'); stamp('end'); finish_stamps(); e('s_endpgm')
def main():
    prologue()
    if OPT['only']: return only_stream()
    for half in range(2):
        HALF[0] = half
        phA(half)
        if stop(f'A{half}'): return
        phB(half)
        if ffn(half): return
        if stop(f'D{half}'): return
    finish_stamps()
    e('s_endpgm')
main()
k.tail.append('L_end:')
k.tail.append('s_endpgm')

HEADER = """; Kernarg layout for this problem (88 bytes, ptrs only, base s[0:1]):
;   offset   0: d_in[0] A_x  shape=(1, 2048, 448) dtype=bfloat16 strides=(1835008, 896, 2) contiguous=True
;   offset   8: d_in[1] A_dft_seq_re  shape=(2048, 2048) dtype=bfloat16   (constant DFT table, regenerated in the kernel)
;   offset  16: d_in[2] A_dft_seq_im  shape=(2048, 2048) dtype=bfloat16   (constant)
;   offset  24: d_in[3] A_dft_hid_re  shape=(448, 448) dtype=bfloat16     (constant)
;   offset  32: d_in[4] A_dft_hid_im  shape=(448, 448) dtype=bfloat16     (constant)
;   offset  40: d_in[5] B_x  shape=(1, 2048, 448) dtype=bfloat16          (unused by the reference)
;   offset  48: d_in[6] B_w1  shape=(448, 1792) dtype=bfloat16 strides=(3584, 2) contiguous=True
;   offset  56: d_in[7] B_w2  shape=(1792, 448) dtype=bfloat16 strides=(896, 2) contiguous=True
;   offset  64: d_out     shape=(1, 2048, 448) dtype=bfloat16 (2 bytes/elem)
;
; One persistent launch, one workgroup (4 waves, 512 registers each, 160 KiB LDS) per CU. Written by my own generator script.
;  workers (workgroups 32..255) = 32 clusters x 7 members; a cluster owns 64 rows {t = +-p mod 64}, member g owns 256 columns
;   A: rows s = p mod 32: hidden DFT for 32 frequencies (the other half follows from the real input), LN applied to the result
;      (rstd * (x H - mean * colsum(H)); frequency 0 is 0 after LN), 64-point DFT over the rows      -> U (f16)
;   C: x w1 - mean * colsum(w1), relu                                                                -> h (bf16)
;  workgroups 0..31 put part of the weights into MFMA fragment order, take the column sums of w1 and lay down sentinels.
;  U of layer 1 and the flags of workgroups 0..31 carry a tag = ~(word left in d_ws), which only tells this launch's hand-offs
;  from older bytes; h carries a fixed sign pattern (opposite in the two layers); x2, its row sums and U of layer 2 replace sentinels.
"""
txt, nops = finish(k, OPT['grid'], 256, LDS_SZ, verbose=OPT['verbose'] > 1, pads=PADS if OPT['pads'] else None, header=HEADER)
print(txt)
if TS or OPT['verbose']: print(f'; wait states added: {nops}; stamps: {",".join(tsn)}')
```

```python
import sys, struct, re
from kasm import *

OPT = dict(ts=0, stop='', verbose=0, hq_slot=90, t1_grp=4, grid=256, lag=7, perA=96, perB=96, perG=67, perH=64, rot=0, touch=1, pads=1, hpre=17, nx=8, nA=99, dA=60, nT=2, nK=26, nU=10, nE=10, nU0=0, nS=0, late=750, xack=0, uack=1, ud=0, outsc=11, xd=920, wt=0, usel=1, hsel=1, hl=14, np=2, xe=200, v8=3, upipe=1, sb=100, nB=4, csw=1, mrg=1, fb=12, ho=1, trim=1, je=3, stag=1, hack=1, ta=7, fl=-1, fc=-1, ja=3, fl2=2, fc2=2, fl3=10, fc3=21, sp=1, l2k=28, css=23, hB0=12, hB1=0, v2=0, w2t=0, imgb=8, wsc='sc1', pP=84, wG1=22, wG2=50, hG2=10, ssp=7, rt=0, clump=80, nbgA=1, nbgG=2, l2first=2, cntlate=1, pS=64, pA=72, pT=84, pK=76, pU=76, pE=80, n0=11, xs0=4, fillslot=6, e0=14, t1_slot=26, hord=0, hdl=18, lead=18, rot2=0, only=0, hq0=94,
           idleU=500, nostats=0, nofill=0, nocnt=0, fine=0, noh=0)
for a in sys.argv[1:]:
    key, val = a.split('=')
    OPT[key] = val if key in ('stop', 'amp', 'ls') else int(val)
AMP = OPT.get('amp')
if AMP: OPT['ts'] = 1
TS, STOP = OPT['ts'], OPT['stop']
TSI = 's_memtime' if TS == 2 else 's_memrealtime'

S, D, F = 2048, 448, 1792
XB = S * D * 2
WS_U1, WS_U2, WS_X2, WS_H = 0, XB, 2 * XB, 3 * XB
WS_SS = WS_H + S * F * 2
NR = 28 - 4*OPT['np']
WFS = (56 - NR) * 2048
WS_WF = WS_SS + 131072
WS_CS = WS_WF + 28 * WFS
WS_FL = WS_CS + 16384
WS_EP = WS_FL + 16384
WS_END = WS_EP + 64
WS_TS = 0x1000000
WS_DBG = 0x1100000
L_X = 0; L_RED = 28672; L_H = 0; L_ST = 64512
L_M = 65536; L_WA = L_M + 8192; WA_SZ = 22528
L_C = lambda half: 57344 if half else L_M
LDS_SZ = L_WA + 4 * WA_SZ
assert LDS_SZ <= 163840
NSLOT = 11
sX0, sW1, sW2, sOUT, sWS = 8, 12, 16, 20, 24
sW, sG, sP, sRB, sRETRY, sWA, sSO, sLO, sHI, sCI = 32, 33, 34, 35, 36, 37, 38, 39, 40, 41
sT = 42
sBG = 48
sMK = 52
sHS = 60
sIM, sIL = 67, 68
sFF = 69
sUO = 4
sRD = 96
sN = 28
sTS = 70
sDBG = 92
sRC = 100
sRO = 101
vL, vL16, vCS, vSa, vSb, vT1, vT2, vA = 0, 1, 2, 6, 7, 8, 10, 12
B = [16 + 16 * i for i in range(8)]; vR = 144
vCA, vSEL, vX = 240, 248, 252
def w1f(n, u): return ar(8 * n + 4 * u, 4)
def w2reg(kk, v):
    if kk < 4: return ('a', 224 + 8 * kk + 4 * v)
    if kk < 17: return ('v', 152 + 8 * (kk - 4) + 4 * v)
    return None
def rn(t, n): return ar(t[1], n) if t[0] == 'a' else vr(t[1], n)
fl = lambda x: '0x%08x' % struct.unpack('<I', struct.pack('<f', x))[0]

k = K(); e = k.e; rec = k.rec; k.clump = OPT['clump']
nts = [0]; tsn = []
def log(msg):
    if OPT['verbose']: print(f'; [{k.clk}] {msg} ni={ws.ni} nd={ws.nd} cs={ws.nc}', file=sys.stderr)
LS = OPT.get('ls')
import random
JR = random.Random(OPT.get('jit', 0))
def jitter():
    if not OPT.get('jit') or JR.random() > 0.35: return
    a, b, c = JR.randrange(1, 64, 2), JR.choice((0, 0, JR.randrange(1, 16, 2))), JR.randrange(64); m = JR.choice((3, 7, 15, 63)); n = JR.choice((4, 12, 40, 100))
    l = k.lab('jit')
    for x in (f's_cselect_b32 s91, 1, 0', f's_mul_i32 s90, s2, {a}', f's_mul_i32 s89, s{sW}, {b}', 's_add_u32 s90, s90, s89', f's_add_u32 s90, s90, {c}', 's_lshr_b32 s90, s90, 1', f's_and_b32 s90, s90, {m}',
              f's_cbranch_scc1 {l}', f's_sleep {n}', f'{l}:', 's_cmp_lg_u32 s91, 0'): k.out.append(x)
def ls(name):
    if k.recq is None: jitter()
    if TS and LS and re.fullmatch(LS, name):
        i = nts[0]; nts[0] += 1; tsn.append(name); assert i < 11
        k._emit(f'{TSI} s[{sTS+2*i}:{sTS+2*i+1}]')
def stamp(name):
    log(name); jitter()
    if LS: return ls(name)
    if not TS or (AMP and name != AMP) or ('half' in OPT and name[1] == str(1 - OPT['half']) and name != 'D0.st'): return
    i = nts[0]; nts[0] += 1; tsn.append(name); assert i < 22
    k.wait(lg='all')
    e(f'{TSI} s[50:51]\ns_waitcnt lgkmcnt(0)\ns_mov_b32 s{sTS+i}, s50')
def finish_stamps():
    if not TS: return
    if AMP:
        if AMP[0] == 'H' and not k.in_tail: return
        if AMP[0] == 'R': e(f's_bfe_u32 s{sTS+1}, s{sRC}, {0x40000 + 4*int(AMP[1])}'); e(f's_mul_i32 s{sTS+1}, s{sTS+1}, 100'); e(f's_mov_b32 s{sTS}, 0')
        if not OPT.get('ampall'): e('s_cmp_lg_u32 s2, 100'); e('s_cbranch_scc1 L_exit')
        e(f's_sub_u32 s44, s{sTS+1}, s{sTS}'); e('s_min_u32 s44, s44, 10000'); e('s_mul_i32 s44, s44, 20')
        e('s_memrealtime s[50:51]'); e('s_waitcnt lgkmcnt(0)'); e('s_add_u32 s44, s44, s50')
        e('L_amp:'); e('s_memrealtime s[50:51]'); e('s_waitcnt lgkmcnt(0)'); e('s_sub_u32 s45, s50, s44'); e('s_cmp_lt_i32 s45, 0'); e('s_cbranch_scc1 L_amp')
        return
    e('v_mov_b32 v16, 0')
    e('s_waitcnt lgkmcnt(0)')
    for i in range(nts[0]): e(f'v_writelane_b32 v16, s{sTS + (2*i if LS and not k.in_tail else i)}, {i}')
    e(f'v_writelane_b32 v16, s{sRETRY}, 63'); e(f'v_writelane_b32 v16, s{sRC}, 62')
    e(f's_lshl_b32 s{sT}, s2, 2'); e(f's_add_u32 s{sT}, s{sT}, s{sW}'); e(f's_lshl_b32 s{sT}, s{sT}, 8'); e(f's_add_u32 s{sT}, s{sT}, {WS_TS}')
    e(f'v_lshlrev_b32 v17, 2, v{vL}')
    e(f'buffer_store_dword v16, v17, {sr(sWS,4)}, s{sT} offen')
def stop(name, dump_lds=0):
    if STOP != name: return False
    k.bg_period = None
    k.wait(vm='all', lg='all'); e('s_barrier')
    if dump_lds:
        e(f's_lshl_b32 s{sT}, s{sW}, 10'); e(f'v_add_u32 v20, s{sT}, v{vL16}')
        e(f's_lshl_b32 s{sT}, s2, 16'); e(f's_add_u32 s{sT}, s{sT}, {WS_DBG}')
        for i in range(dump_lds // 4096):
            e(f'ds_read_b128 v[16:19], v20'); e('s_waitcnt lgkmcnt(0)')
            e(f'buffer_store_dwordx4 v[16:19], v20, {sr(sWS,4)}, s{sT} offen'); e('s_nop 1'); e('v_add_u32 v20, 4096, v20')
    finish_stamps(); e('s_endpgm')
    return True

RCLS = {'f0': 0 if 'rf' not in OPT or OPT['rf'] == 0 else 7, 'f1': 0 if 'rf' not in OPT or OPT['rf'] == 1 else 7, 'f2': 0 if 'rf' not in OPT or OPT['rf'] == 2 else 7, 'cnt': 0 if 'rf' not in OPT or OPT['rf'] == 3 else 7, 'U0': 1, 'h0': 2, 'x2': 3, 'img': 4, 'U1': 5, 'h1': 6}
def retry_site(check, reload, name, br='s_cbranch_vccnz', after=None):
    def f():
        slow, ok = k.lab('slow_' + name), k.lab('ok_' + name)
        e(f'{br} {slow}'); e(f'{ok}:')
        k.begin_tail()
        e(f'{slow}:')
        e(f's_cmp_eq_u32 s{sRETRY}, 0'); e(f's_cbranch_scc1 {ok}'); e(f's_sub_u32 s{sRETRY}, s{sRETRY}, 1')
        if TS: e(f's_add_u32 s{sRC}, s{sRC}, {1 << 4*RCLS[name.split("_")[0]]}')
        reload(); k.wait(vm='all', lg='all'); check(); k.wait(vm='all', lg='all')
        e(f'{br} {slow}')
        if after: after()
        e('s_nop 1'); e(f's_branch {ok}')
        k.end_tail()
    k.call(f, 's', 20)
def cnt_load(reg, i=1):
    def f():
        e(f'v_lshlrev_b32 v{reg}, 7, v{vL}'); e(f's_lshl_b32 s{sBG}, s{sW}, 10'); e(f's_add_u32 s{sBG}, s{sBG}, {WS_FL + 12288}')
        e('s_mov_b64 exec, 0xff'); k.vmem(f'buffer_load_dword v{reg}, v{reg}, {sr(sWS,4)}, s{sBG} offen sc1', 'cnt'); e('s_mov_b64 exec, -1')
    k.call(f, 'v', 24)
def cnt_check(reg, i=1):
    chk = lambda: e(f'v_cmp_ne_u32 {sr(sT+4,2)}, s{sN}, v{reg}\ns_nop 0\ns_and_b32 s{sT+4}, s{sT+4}, 0xff')
    k.call(lambda: (k.wait(vm='cnt'), chk(), retry_site(chk, lambda: cnt_load(reg), 'cnt_1', 's_cbranch_scc1'), CHECKED.append(1)), 'v', 36)
CHECKED = []
def flag_load(i=0):
    def f():
        e(f's_lshl_b32 s49, s{sW}, 7'); e(f'v_lshlrev_b32 v{vCS}, 9, v{vL}' if i else f'v_lshlrev_b32 v{vCS}, 9, s{sG}'); e(f's_add_u32 s49, s49, {WS_FL + 4096*i}')
        e(f's_mov_b64 exec, {0x7f if i else 1}'); k.vmem(f'buffer_load_dword v{vCS+1}, v{vCS}, {sr(sWS,4)}, s49 offen sc1', 'flag'); e('s_mov_b64 exec, -1')
    k.call(f, 'v', 24)
def flag_check(i=0):
    chk = lambda: e(f'v_cmp_ne_u32 vcc, s{sN}, v{vCS+1}\ns_nop 0\ns_and_b64 vcc, vcc, {0x7f if i else 1}')
    k.call(lambda: (k.wait(vm='flag'), chk(), retry_site(chk, lambda: flag_load(i), f'f{i}_x', 's_cbranch_scc1')), 'v', 36)
def cs_load():
    def f():
        e(f's_lshl_b32 s49, s{sG}, 2\ns_add_u32 s49, s49, s{sW}\ns_lshl_b32 s49, s49, 9\ns_add_u32 s49, s49, {WS_CS}\nv_and_b32 v{vSa}, 0x1f0, v{vL16}')
        assert ws.sent >= NR; k.vmem(f'buffer_load_dwordx4 {vr(vCS,4)}, v{vSa}, {sr(sWS,4)}, s49 offen sc1', 'cs')
    k.call(f, 's', 24)
def warm(site, first):
    def f():
        if OPT['pads']:
            e('s_mov_b64 exec, 0')
            for w in range(3): e(f's_cmp_eq_u32 s{sW}, {w}'); e(f's_cbranch_scc1 L_pad{first+w}')
            e(f's_branch L_pad{first+3}')
        elif site == 0: e('s_branch L_ret0')
        if site == 0: k.in_tail = True; helper(); k.in_tail = False
        e(f'L_ret{site}:'); e('s_mov_b64 exec, -1'); k.clk += 200
    k.call(f, 's', 250)
PADS = lambda p: 'L_ret0' if p <= 4 else f'L_pad{p+2}' if p <= 6 else 'L_ret1' if p <= 8 else f'L_pad{p+2}' if p <= 14 else 'L_ret2'

class Stream:
    def __init__(s): s.ni = 0; s.nd = 0; s.nc = 56; s.limit = 4; s.lag = 99
    def issue_ops(s):
        n = s.ni; s.ni += 1
        if n >= NR:
            kk = n - 28
            def ld(v):
                if v == 0 and n == NR: e(f's_lshl_b32 s{sSO}, s{sG}, 2\ns_add_u32 s{sSO}, s{sSO}, s{sW}\ns_mul_i32 s{sSO}, s{sSO}, {WFS}\ns_add_u32 s{sSO}, s{sSO}, {WS_WF}')
                if v == 0 and kk == 17: assert s.done == NR; k.wait(lg=f'tr{NR-1}')
                if v == 0 and (kk == 17 or kk > 17 and kk % 2 == 0): e(f's_add_u32 m0, s{sWA}, {(kk - kk % 2 - 17)*2048}')
                if v == 0 and n > NR and n % 2 == 0: e(f's_add_u32 s{sSO}, s{sSO}, 4096')
                t = w2reg(kk, v) if kk >= 0 else ('a', 8*n + 4*v); off = 2048*(n % 2) + 1024*v; tag = f'w{n}' if v else f'wa{n}'
                if t: k.vmem(f'buffer_load_dwordx4 {rn(t,4)}, v{vL16}, {sr(sWS,4)}, s{sSO} offen offset:{off} sc1', tag)
                else: k.vmem(f'buffer_load_dwordx4 v{vL16}, {sr(sWS,4)}, s{sSO} offen offset:{off} sc1 lds', tag)
                if v: s.sent = n + 1
            return [Op('vm', 8, lambda: ld(0), 1), Op('vm', 4, lambda: ld(1), 1)]
        srd = sr(sW1, 4)
        def a():
            if n >= NSLOT: assert s.done > n - NSLOT; k.wait(lg=f'tr{n-NSLOT}')
            elif n >= 4: k.wait(lg=f'xr{n-4}')
            e(f's_add_u32 m0, s{sWA}, {(n % NSLOT)*2048}')
            if n: e(f's_add_u32 s{sSO}, s{sSO}, {16*3584}')
            if n and n % 7 == 0 and OPT['rot']: e(f's_sub_u32 s{sBG}, s{sSO}, {D*3584}\ns_min_u32 s{sSO}, s{sSO}, s{sBG}')
            k.vmem(f'buffer_load_dwordx4 v{vSa}, {srd}, s{sSO} offen lds', f'wa{n}')
        def b(): k.vmem(f'buffer_load_dwordx4 v{vSb}, {srd}, s{sSO} offen offset:1024 lds', f'w{n}'); s.sent = n + 1
        return [Op('s', 12, a, 1), Op('vm', 4, b, 1)]
    def drain_ops(s):
        n = s.nd; s.nd += 1
        so = (n % NSLOT) * 2048
        def rd(u, h2):
            def f():
                assert s.sent > n; k.wait(vm=f'w{n}')
                if n < 28: dst, ad, off = ar(8*n + 4*u + 2*h2, 2), vT1 + u, so + 512*h2
                else:
                    t = w2reg(n - 28, u); dst, ad, off = rn((t[0], t[1] + 2*h2), 2), vT2 + u, so + 1024*h2
                k.ds(f'ds_read_b64_tr_b16 {dst}, v{ad} offset:{off}', f'tr{n}')
                if u and h2: s.done = n + 1
            return Op('ds', 4, f)
        return [rd(0, 0), rd(0, 1), rd(1, 0), rd(1, 1)]
    done = 0; sent = 0
    cs_on = 0; dmax = NR
    def free(s, n): return n - NSLOT < s.nd if n < NR else (n < 45 or s.nd == NR)
    def refill(s):
        can = s.ni < min(56, s.limit) and s.free(s.ni)
        if s.nd < min(NR, s.ni) and s.lag < 99 and (s.ni - s.nd > s.lag or (not can and s.ni > NR)): k.bg += s.drain_ops()
        elif can: k.bg += s.issue_ops()
    def ensure(s, n):
        while s.done <= n:
            if not k.bg:
                if s.ni <= n and s.free(s.ni): k.bg += s.issue_ops()
                else: k.bg += s.drain_ops()
            k.bg_step()
    use = staticmethod(lambda n: 2*n if n < 28 else 116 + 2*(n - 28))
    def force(s, slot):
        if s.sent < s.ni and s.use(s.sent) <= slot + OPT['lead']: k.bg_flush()
        while s.ni < 56 and s.use(s.ni) <= slot + OPT['lead']:
            k.bg_flush()
            while not s.free(s.ni): k.bg += s.drain_ops()
            k.bg += s.issue_ops(); k.bg_flush()
        n = max([-1] + [i for i in range(NR) if s.use(i) <= slot + 4])
        if n >= 0: s.ensure(n)
    def cs_op(s):
        n, u = s.nc >> 1, s.nc & 1; s.nc += 1
        def g():
            assert s.done > n; k.wait(lg=f'tr{n}')
            acc = vr(vCA + 4*u, 4)
            e(f'v_mfma_f32_16x16x32_bf16 {acc}, {vr(vSEL,4)}, {w1f(n, u)}, {acc if n else 0}')
        return Op('mfma', 16, g)
    def cs_flush(s, maxn=99, behind=0):
        while s.nc < 2*min(28, s.done - behind) and maxn > 0: k.run([s.cs_op()]); maxn -= 1
ws = Stream()
def src_off(stride):
    e(f'v_lshrrev_b32 v{vSa}, 3, v{vL}'); e(f'v_lshrrev_b32 v{vSb}, 2, v{vL}'); e(f'v_and_b32 v{vSb}, 4, v{vSb}')
    e(f'v_xor_b32 v{vSb}, v{vSb}, v{vL}'); e(f'v_and_b32 v{vSb}, 7, v{vSb}'); e(f'v_mul_u32_u24 v{vSa}, {stride}, v{vSa}')
    e(f'v_lshl_add_u32 v{vSa}, v{vSb}, 4, v{vSa}'); e(f'v_add_u32 v{vSb}, {8*stride-1024}, v{vSa}')
def tr_addr(dst, sh, t):
    e(f'v_bfe_u32 v{t}, v{vL}, 2, 2'); e(f'v_bfe_u32 v{t+1}, v{vL}, 3, 1'); e(f'v_bfe_u32 v{t+2}, v{vL}, 4, 1'); e(f'v_and_b32 v{t+3}, 3, v{vL}')
    e(f'v_lshlrev_b32 v{t}, 7, v{t}'); e(f'v_lshl_add_u32 v{t}, v{t+1}, 6, v{t}'); e(f'v_lshl_add_u32 v{t}, v{t+2}, 5, v{t}'); e(f'v_lshl_add_u32 v{t}, v{t+3}, 3, v{t}')
    e(f'v_add_u32 v{t}, s{sWA}, v{t}'); e(f'v_lshrrev_b32 v{t+1}, 5, v{vL}')
    e(f'v_lshl_add_u32 v{dst}, v{t+1}, {sh}, v{t}'); e(f'v_xor_b32 v{dst+1}, 64, v{dst}')
def stream_setup():
    src_off(3584)
    rot = OPT['rot']
    e(f's_lshl_b32 s{sSO}, s{sG}, 2'); e(f's_add_u32 s{sSO}, s{sSO}, s{sW}'); e(f's_lshl_b32 s{sSO}, s{sSO}, 7')
    if rot:
        e(f's_and_b32 s{sRO}, s2, 3' if rot == 3 else f's_add_u32 s{sRO}, s2, s{sW}\ns_and_b32 s{sRO}, s{sRO}, 3'); e(f's_mul_i32 s{sT}, s{sRO}, {7*16*3584}'); e(f's_add_u32 s{sSO}, s{sSO}, s{sT}')
def stream_setup2(t):
    tr_addr(vT1, 10, t); e(f'v_add_u32 v{vT2}, s{sWA}, v{vL16}')
def late_setup():
    e(f's_mul_i32 s{sT}, s{sP}, {2*7*16384}'); e(f's_lshl_b32 s{sT+1}, s{sW}, 12'); e(f's_add_u32 s{sT}, s{sT}, s{sT+1}'); e(f's_add_u32 s{sT}, s{sT}, {WS_H}')
    e({0: f's_mov_b32 s{sT+3}, 1', 1: f's_add_u32 s{sT+3}, s{sCI}, 1', 2: f's_and_b32 s{sT+3}, s2, 3\ns_add_u32 s{sT+3}, s{sT+3}, 1'}[OPT['rot2']]); e(f's_mov_b32 s{sT+1}, s{sG}')
    for jp in range(7):
        if jp: e(f's_add_u32 s{sT+1}, s{sT+1}, s{sT+3}'); e(f's_sub_u32 s{sT+2}, s{sT+1}, 7'); e(f's_min_u32 s{sT+1}, s{sT+1}, s{sT+2}')
        e(f's_lshl_b32 s{sT+2}, s{sT+1}, 14'); e(f's_add_u32 s{sHS+jp}, s{sT}, s{sT+2}')

def prologue():
    e('s_load_dwordx2 s[8:9], s[0:1], 0'); e('s_load_dwordx4 s[4:7], s[0:1], 48')
    e('s_load_dwordx2 s[20:21], s[0:1], 64'); e('s_load_dwordx2 s[24:25], s[0:1], 80')
    e('s_getpc_b64 s[46:47]'); e('L_pc:')
    e('v_lshrrev_b32 v1, 6, v0'); e('v_and_b32 v0, 63, v0'); e('s_bfe_u32 s3, s2, 0x50003'); e(f'v_readfirstlane_b32 s{sW}, v1')
    e('v_lshl_add_u32 v2, s3, 2, v1'); e('v_lshl_add_u32 v2, v0, 7, v2'); e('v_lshlrev_b32 v2, 7, v2'); e('v_min_u32 v2, L_end-L_pc, v2')
    e('s_mov_b64 exec, 7'); k.vmem('global_load_dword v3, v2, s[46:47]', 'touch'); e('s_mov_b64 exec, -1')
    e(f'v_lshlrev_b32 v{vL16}, 4, v0')
    e('s_sub_u32 s3, s2, 32'); e('s_cmp_ge_u32 s3, 224'); e('s_cbranch_scc1 L_helper')
    if TS: e(f'{TSI} s[50:51]'); e(f's_mov_b32 s{sRC}, 0')
    e(f's_lshr_b32 s{sT}, s3, 3'); e(f's_mul_i32 s{sCI}, s{sT}, 37'); e(f's_lshr_b32 s{sCI}, s{sCI}, 8')
    e(f's_mul_i32 s{sG}, s{sCI}, 7'); e(f's_sub_u32 s{sG}, s{sT}, s{sG}')
    e(f's_and_b32 s{sP}, s3, 7'); e(f's_lshl_b32 s{sP}, s{sP}, 1'); e(f's_lshr_b32 s{sT}, s{sCI}, 1'); e(f's_add_u32 s{sP}, s{sP}, s{sT}')
    e(f's_sub_u32 s{sT}, 32, s{sP}'); e(f's_cmp_eq_u32 s{sP}, 0'); e(f's_cselect_b32 s{sT}, 16, s{sT}')
    e(f's_bitcmp1_b32 s{sCI}, 0'); e(f's_cselect_b32 s{sP}, s{sT}, s{sP}')
    e(f's_mul_i32 s{sWA}, s{sW}, {WA_SZ}'); e(f's_add_u32 s{sWA}, s{sWA}, {L_WA}')
def srds(which):
    for r, n in ((sX0, XB), (sW1, D*F*2), (sW2, D*F*2), (sOUT, XB), (sWS, 0x2000000 if (TS or STOP) else WS_END)):
        if r in which: e(f's_mov_b32 s{r+2}, {n}'); e(f's_mov_b32 s{r+3}, 0x20000')
def copy_ptrs(first):
    if first: e(f's_mov_b32 s{sW1}, s4'); e(f's_mov_b32 s{sW1+1}, s5')
    else:
        e(f's_mov_b32 s{sW2}, s6'); e(f's_mov_b32 s{sW2+1}, s7')

def helper():
    e('L_helper:')
    e('s_cmp_ge_u32 s2, 32'); e('s_cbranch_scc1 L_exit')
    srds((sW1, sW2, sWS))
    src_off(3584); e(f's_mul_i32 s{sIL}, s{sW}, 14336'); e(f's_mul_i32 s{sIM}, s{sW}, {16*3584}'); e(f's_lshl_b32 s{sT}, s2, 7'); e(f's_add_u32 s{sIM}, s{sIM}, s{sT}'); e(f's_mov_b32 s{sT+1}, {WS_EP}')
    e('s_waitcnt lgkmcnt(0)'); copy_ptrs(True); copy_ptrs(False)
    hs = [0]
    def hstamp(w=None):
        jitter(); jitter()
        if TS and not AMP:
            if w is not None: e(f's_waitcnt vmcnt({w})')
            e(f'{TSI} s[50:51]\ns_waitcnt lgkmcnt(0)\ns_mov_b32 s{sTS+hs[0]}, s50'); hs[0] += 1
        elif AMP and AMP[0] == 'H':
            if hs[0] in (0, int(AMP[1])): e(f'{TSI} s[50:51]\ns_waitcnt lgkmcnt(0)\ns_mov_b32 s{sTS + (hs[0] > 0)}, s50')
            hs[0] += 1
    hstamp()
    if TS:
        for i in range(1, 5): e(f's_mov_b32 s{sTS+i}, s50')
    e(f'buffer_load_dwordx4 v[140:143], off, {sr(sWS,4)}, s{sT+1} sc1')
    e('s_cmp_ge_u32 s2, 28'); e('s_cbranch_scc1 L_hrest')
    for i in range(7):
        e(f's_add_u32 m0, s{sIL}, {2048*i}')
        if i: e(f's_add_u32 s{sIM}, s{sIM}, {64*3584}')
        e(f'buffer_load_dwordx4 v{vSa}, {sr(sW1,4)}, s{sIM} offen lds'); e(f'buffer_load_dwordx4 v{vSb}, {sr(sW1,4)}, s{sIM} offen offset:1024 lds')
    e('s_branch L_helper2')
    save = k.out; k.out = k.tail
    FB = OPT['fb']; FA = 112 - 7*FB; assert (4*FA + 28*FB)*8192 == 2*XB
    e('L_hrest:')
    if OPT['sp']:
        e(f's_sub_u32 s{sT}, s2, 28'); e(f's_lshl_b32 s{sT}, s{sT}, 2'); e(f's_add_u32 s{sT}, s{sT}, s{sW}'); e(f's_mul_i32 s{sT}, s{sT}, 112'); e(f'v_min_u32 v2, 55, v{vL}')
        for j in range(OPT['sp']):
            for hh in range(2):
                e(f'v_add_u32 v4, s{sT}, v2'); e(f'v_add_u32 v4, {56*hh}, v4'); e('v_lshrrev_b32 v8, 8, v4'); e(f'v_add_u32 v8, {1 + j}, v8'); e('v_subrev_u32 v9, 7, v8'); e('v_min_u32 v8, v8, v9')
                e('v_mul_u32_u24 v4, 896, v4'); e('v_lshl_add_u32 v4, v8, 7, v4'); e(f'buffer_load_dword v144, v4, {sr(sW2,4)}, 0 offen')
    e(f's_sub_u32 s{sT}, s2, 28'); e(f's_mul_i32 s{sT}, s{sT}, {FA*8192}'); e(f's_add_u32 s{sT}, s{sT}, {WS_U2}'); e(f's_mov_b32 s{sT+1}, {FA}'); e('s_waitcnt vmcnt(0)'); e('s_branch L_hfill2')
    e('L_helper2:')
    src_off(896); e(f's_mov_b32 s{sWA}, s{sIL}'); tr_addr(vT1, 10, 12)
    e(f's_mul_i32 s{sWA}, s{sW}, {WA_SZ}'); e(f's_add_u32 s{sWA}, s{sWA}, {L_WA}'); tr_addr(vT2, 9, 12)
    e(f's_lshl_b32 s{sT}, s2, 2'); e(f's_add_u32 s{sT}, s{sT}, s{sW}'); e(f's_mul_i32 s{sT}, s{sT}, {16*896}'); e(f's_lshr_b32 s{sT+1}, s2, 2')
    e(f's_mov_b32 s{sIM}, s{sT}'); e(f's_mov_b32 s{sIL}, s{sT+1}')
    def d2(j0, j1):
        for j in range(j0, j1):
            if j: e(f's_sub_u32 s{sIL}, s{sIL}, 1'); e(f's_min_u32 s{sIL}, s{sIL}, 6')
            e(f's_add_u32 m0, s{sWA}, {2048*j}'); e(f's_lshl_b32 s{sT+2}, s{sIL}, 7'); e(f's_add_u32 s{sT+2}, s{sT+2}, s{sIM}')
            e(f'buffer_load_dwordx4 v{vSa}, {sr(sW2,4)}, s{sT+2} offen lds'); e(f'buffer_load_dwordx4 v{vSb}, {sr(sW2,4)}, s{sT+2} offen offset:1024 lds')
    JE = OPT['je']; d2(0, JE)
    e(f's_waitcnt vmcnt({2*JE})')
    for i in range(7):
        for u in range(2):
            for h2 in range(2): e(f'ds_read_b64_tr_b16 {vr(16+8*i+4*u+2*h2,2)}, v{vT1+u} offset:{2048*i + 512*h2}')
    e(f's_mul_i32 s{sT}, s2, {WFS}'); e(f's_lshl_b32 s{sT+1}, s{sW}, 11'); e(f's_add_u32 s{sT}, s{sT}, s{sT+1}'); e(f's_add_u32 s{sT}, s{sT}, {WS_WF}')
    e(f's_mov_b32 s{sT+4}, 0x3f803f80'); e('v_mov_b32 v72, 0'); e('v_mov_b32 v73, 0'); e('s_waitcnt lgkmcnt(0)')
    NP = OPT['np']
    for i in range(7 - NP, 7):
        for u in range(2): e(f'buffer_store_dwordx4 {vr(16+8*i+4*u,4)}, v{vL16}, {sr(sWS,4)}, s{sT} offen offset:{1024*u} sc1')
        e(f's_add_u32 s{sT}, s{sT}, 8192')
    for i in range(7):
        for m in range(4):
            for u in range(2): e(f'v_dot2c_f32_bf16 v{72+u}, s{sT+4}, v{16+8*i+4*u+m}')
    e(f'v_lshlrev_b32 v4, 2, v{vL}'); e(f'v_add_u32 v4, {L_M}, v4'); e(f's_lshl_b32 s{sT}, s{sW}, 8'); e(f'v_add_u32 v2, s{sT}, v4')
    e('v_permlane32_swap_b32 v72, v73'); e('v_add_f32 v72, v72, v73'); e('ds_write_b32 v2, v72'); e('s_waitcnt lgkmcnt(0)'); e('s_barrier')
    e('ds_read2st64_b32 v[72:73], v4 offset0:0 offset1:1'); e('ds_read2st64_b32 v[74:75], v4 offset0:2 offset1:3')
    e(f'v_and_b32 v76, 0x1f0, v{vL16}'); e(f'v_lshrrev_b32 v2, 5, v{vL}'); e('v_lshl_add_u32 v76, v2, 3, v76'); e(f's_lshl_b32 s{sT}, s2, 9'); e(f's_add_u32 s{sT}, s{sT}, {WS_CS}')
    e('s_waitcnt lgkmcnt(0)'); e('v_add_f32 v72, v72, v73'); e('v_add_f32 v74, v74, v75'); e('v_add_f32 v72, v72, v74')
    e('v_cvt_pk_bf16_f32 v73, v72, v72'); e('v_and_b32 v74, 0xffff0000, v73'); e('v_sub_f32 v75, v72, v74'); e('v_cvt_pk_bf16_f32 v78, v74, v75'); e('v_and_b32 v79, 0xffff, v73')
    e(f's_cmp_lg_u32 s{sW}, 0'); e('s_cbranch_scc1 L_hnocs')
    e(f'buffer_store_dwordx2 v[78:79], v76, {sr(sWS,4)}, s{sT} offen sc1')
    e('L_hnocs:')
    e(f's_and_b32 s{sT}, s2, 3'); e(f's_mul_i32 s{sT}, s{sT}, {WFS}'); e(f's_lshl_b32 s{sT+1}, s{sW}, 11'); e(f's_add_u32 s{sT}, s{sT}, s{sT+1}'); e(f's_add_u32 s{sT}, s{sT}, {WS_WF + 8192*NP}')
    e(f's_lshr_b32 s{sT+1}, s2, 2'); e(f's_mov_b32 s{sT+4}, 0x80008000')
    JA = OPT['ja']
    e(f's_lshl_b32 s{sT+5}, s2, 7'); e(f's_add_u32 s{sT+5}, s{sT+5}, {WS_FL}')
    def reads(j0, j1, younger):
        for j in range(j0, j1):
            e(f's_waitcnt vmcnt({12 - 2*j + younger})')
            for v in range(2):
                for h2 in range(2): e(f'ds_read_b64_tr_b16 {vr(80+8*j+4*v+2*h2,2)}, v{vT2+v} offset:{2048*j + 1024*h2}')
        e('s_waitcnt lgkmcnt(0)')
    def stores(j0, j1):
        for j in range(j0, j1):
            if j: e(f's_sub_u32 s{sT+1}, s{sT+1}, 1'); e(f's_min_u32 s{sT+1}, s{sT+1}, 6'); e(f's_add_u32 s{sT}, s{sT}, 8192')
            e(f's_mul_i32 s{sT+2}, s{sT+1}, {4*WFS}'); e(f's_add_u32 s{sT+2}, s{sT+2}, s{sT}')
            for v in range(2):
                r = 80 + 8*j + 4*v; e(f'v_xor_b32 v{r+3}, s{sT+4}, v{r+3}'); e(f'buffer_store_dwordx4 {vr(r,4)}, v{vL16}, {sr(sWS,4)}, s{sT+2} offen offset:{1024*v} sc1')
    def flag(i, n=0):
        e(f's_waitcnt vmcnt({n})'); e('s_barrier'); e(f's_cmp_lg_u32 s{sW}, 0'); e(f's_cbranch_scc1 L_hsig{i}')
        e(f'v_lshlrev_b32 v145, 2, v{vL}'); e('s_mov_b32 exec_hi, 0'); e(f'buffer_store_dword v5, v145, {sr(sWS,4)}, s{sT+5} offen sc1'); e('s_mov_b32 exec_hi, -1')
        e(f'L_hsig{i}:'); e(f's_add_u32 s{sT+5}, s{sT+5}, 4096'); hstamp()
    e('v_not_b32 v5, v140'); flag(0)
    if OPT['ho'] == 0: d2(JE, 7); reads(0, JA, 0); stores(0, JA); reads(JA, 7, 2*JA); flag(1); stores(JA, 7)
    else:
        assert JA <= JE; reads(0, JA, 20); stores(0, JA); d2(JE, 7); flag(1, 2*(7 - JE)); reads(JA, 7, 0); stores(JA, 7)
    flag(2)
    def fills():
        e(f's_mul_i32 s{sT}, s2, {FB*8192}'); e(f's_add_u32 s{sT}, s{sT}, {WS_U2 + 4*FA*8192}'); e(f's_mov_b32 s{sT+1}, {FB}')
        e('L_hfill2:')
        if OPT['nofill']: e(f's_mov_b32 s{sT+1}, 1')
        for i in range(4): e(f'v_mov_b32 v{12+i}, -1')
        e(f's_lshl_b32 s{sT+2}, s{sW}, 10'); e(f'v_add_u32 v10, s{sT+2}, v{vL16}')
        e(f's_lshl_b32 s{sT+2}, s2, 12'); e(f's_add_u32 s{sT+2}, s{sT+2}, {WS_SS}'); e(f'buffer_store_dwordx4 v[12:15], v10, {sr(sWS,4)}, s{sT+2} offen sc1')
        e('L_fill:')
        for j in range(2): e(f'buffer_store_dwordx4 v[12:15], v10, {sr(sWS,4)}, s{sT} offen sc1'); e(f's_add_u32 s{sT}, s{sT}, 4096')
        e(f's_sub_u32 s{sT+1}, s{sT+1}, 1'); e(f's_cmp_lg_u32 s{sT+1}, 0'); e('s_cbranch_scc1 L_fill')
        e(f's_lshl_b32 s{sT+5}, s2, 7'); e(f's_add_u32 s{sT+5}, s{sT+5}, {WS_FL + 12288}'); e('s_waitcnt vmcnt(0)'); e('v_not_b32 v5, v140')
        flag(3)
    if OPT['l2k'] < 28:
        k0 = OPT['l2k']
        e('s_cmp_ge_u32 s2, 24'); e('s_cbranch_scc1 L_hfill')
        e(f'v_min_u32 v2, 27, v{vL}'); e('v_lshlrev_b32 v2, 7, v2'); e(f's_mov_b32 s{sT}, {WS_FL + 4096}'); e(f's_mov_b32 s{sT+1}, 8')
        e('L_l2w:'); e(f'buffer_load_dword v4, v2, {sr(sWS,4)}, s{sT} offen sc1'); e(f's_sub_u32 s{sT+1}, s{sT+1}, 1'); e('s_cbranch_scc1 L_hfill')
        e('s_waitcnt vmcnt(0)'); e('v_cmp_ne_u32 vcc, v4, v5'); e('s_cbranch_vccnz L_l2w')
        e(f's_lshr_b32 s{sT}, s2, 3'); e(f's_lshl_b32 s{sT}, s{sT}, 2'); e(f's_add_u32 s{sT}, s{sT}, s{sW}'); e(f's_mul_i32 s{sT}, s{sT}, 38')
        e(f'v_min_u32 v2, 37, v{vL}'); e(f'v_add_u32 v2, s{sT}, v2'); e('v_min_u32 v2, 447, v2'); e('v_lshrrev_b32 v4, 4, v2'); e('v_and_b32 v2, 15, v2')
        e(f'v_mul_u32_u24 v4, {WFS}, v4'); e('v_lshl_add_u32 v4, v2, 7, v4'); e(f's_mov_b32 s{sT}, {WS_WF + 8192*NP + 2048*k0}'); e(f's_mov_b32 s{sT+1}, {28 - k0}')
        e('s_mov_b32 exec_hi, 0x3f')
        e('L_l2:'); e(f'buffer_load_dword v8, v4, {sr(sWS,4)}, s{sT} offen sc1'); e(f's_add_u32 s{sT}, s{sT}, 2048')
        e(f's_sub_u32 s{sT+1}, s{sT+1}, 1'); e(f's_cmp_lg_u32 s{sT+1}, 0'); e('s_cbranch_scc1 L_l2'); e('s_mov_b32 exec_hi, -1'); hstamp(0)
        e('L_hfill:')
    fills()
    if TS and (not AMP or AMP[0] == 'H'):
        n = nts[0]; nts[0] = 8; finish_stamps(); nts[0] = n
    e('L_exit:'); e('s_endpgm')
    k.out = save

HALF = [0]
def gen_H():
    ef, a0, tc, q8 = 72, 73, 74, 75
    P0, P1, PK = 76, 84, 92
    e(f'v_and_b32 v{ef}, 15, v{vL}'); e(f's_and_b32 s{sT}, s{sW}, 1'); e(f's_lshl_b32 s{sT+1}, s{sG}, 5'); e(f's_add_u32 s{sT}, s{sT}, s{sT+1}')
    e(f'v_lshl_add_u32 v{ef}, v{ef}, 1, s{sT}'); e(f'v_mov_b32 v{a0}, 224'); e(f'v_cmp_eq_u32 vcc, 0, v{ef}')
    e(f'v_lshrrev_b32 v{q8}, 4, v{vL}'); e(f's_lshl_b32 s{sT+1}, s{sT+1}, 1'); e(f'v_lshl_add_u32 v{q8}, v{q8}, 3, s{sT+1}')
    e(f'v_cndmask_b32 v{ef}, v{ef}, v{a0}, vcc'); e(f'v_cvt_f32_u32 v{q8}, v{q8}'); e(f'v_cvt_f32_u32 v{ef}, v{ef}')
    e(f's_cmp_ge_u32 s{sW}, 2\ns_cselect_b32 s{sT}, {fl(-112.0)}, 0')
    e(f'v_fma_f32 v{a0}, v{q8}, v{ef}, s{sT}'); e(f'v_mul_f32 v{ef}, {fl(1.0/448)}, v{ef}'); e(f'v_mul_f32 v{q8}, {fl(1.0/448)}, v{a0}')
    e(f'v_rndne_f32 v{q8}, v{q8}'); e(f'v_fmamk_f32 v{a0}, v{q8}, {fl(-448.0)}, v{a0}'); e(f'v_mul_f32 v{a0}, {fl(1.0/448)}, v{a0}')
    e(f'v_mul_f32 v{tc}, {fl(32.0)}, v{ef}'); e(f'v_cos_f32 v{tc}, v{tc}')
    e(f's_mul_i32 s{sT}, s{sW}, {7*1024}'); e(f's_add_u32 s{sT}, s{sT}, {L_H}'); e(f'v_add_u32 v{q8}, s{sT}, v{vL16}')
    e(f'v_add_f32 v{tc}, v{tc}, v{tc}')
    for kap in range(7):
        cur, prv = (P0, P1) if kap % 2 == 0 else (P1, P0)
        if HALF[0]: ls(f'H.{kap}')
        if kap < 2:
            for jj in range(8): e(f'v_fmamk_f32 v{cur+jj}, v{ef}, {fl(32.0*kap+jj)}, v{a0}')
            for jj in range(8): e(f'v_cos_f32 v{cur+jj}, v{cur+jj}')
        else:
            for jj in range(0, 8, 2): e(f'v_pk_fma_f32 {vr(cur+jj,2)}, {vr(tc,2)}, {vr(prv+jj,2)}, {vr(cur+jj,2)} op_sel_hi:[0,1,1] neg_lo:[0,0,1] neg_hi:[0,0,1]')
        pk = PK + 4*(kap % 2)
        for m in range(4): e(f'v_cvt_pk_bf16_f32 v{pk+m}, v{cur+2*m}, v{cur+2*m+1}')
        k.ds(f'ds_write_b128 v{q8}, {vr(pk,4)} offset:{1024*kap}', 'Hw')
def gen_F(dst, tb=100, T=120):
    mf, a0, t = tb, tb + 1, tb + 2
    e(f'v_bfe_u32 v{mf}, v{vL}, 1, 3'); e(f's_lshl_b32 s{sT}, s{sW}, 3'); e(f'v_add_u32 v{mf}, s{sT}, v{mf}')
    e(f'v_and_b32 v{t}, 1, v{vL}'); e(f'v_cvt_f32_u32 v{a0}, v{t}'); e(f'v_cmp_eq_u32 vcc, 0, v{mf}')
    e(f'v_lshlrev_b32 v{t}, 5, v{t}'); e(f'v_mul_f32 v{a0}, {fl(-0.25)}, v{a0}')
    e(f'v_cndmask_b32 v{mf}, v{mf}, v{t}, vcc'); e(f'v_cndmask_b32 v{a0}, v{a0}, 0, vcc')
    e(f'v_bfe_i32 v{t+1}, v{mf}, 0, 1'); e(f'v_cvt_f32_u32 v{mf}, v{mf}'); e(f'v_and_b32 v{t}, 48, v{vL}'); e(f'v_cvt_f32_u32 v{t}, v{t}'); e(f'v_and_b32 v{t+1}, 0x80008000, v{t+1}')
    e(f'v_mul_f32 v{mf}, {fl(1.0/128)}, v{mf}'); e(f'v_fma_f32 v{a0}, v{t}, v{mf}, v{a0}')
    for k1 in range(2):
        for jj in range(4): e(f'v_fmamk_f32 v{T+4*k1+jj}, v{mf}, {fl(2.0*k1 + 4.0*jj)}, v{a0}')
    for i in range(8): e(f'v_cos_f32 v{T+i}, v{T+i}')
    for k1 in range(2):
        for m in range(2): e(f'v_cvt_pk_f16_f32 v{dst+4*k1+m}, v{T+4*k1+2*m}, v{T+4*k1+2*m+1}')
    for k1 in range(2):
        for m in range(2): e(f'v_xor_b32 v{dst+4*k1+2+m}, v{dst+4*k1+m}, v{t+1}')
def gen_M(t0):
    j, s2f, ad = t0, t0 + 1, t0 + 2
    e(f'v_and_b32 v{j}, 31, v{vL}'); e(f'v_lshlrev_b32 v{j}, 6, v{j}')
    S2 = t0 + 36
    e(f'v_lshrrev_b32 v{s2f}, 5, v{vL}'); e(f's_add_u32 s{sT}, s{sW}, s{sG}'); e(f's_and_b32 s{sT}, s{sT}, 3'); e(f's_lshl_b32 s{sT}, s{sT}, 2')
    for jj in range(4):
        if jj: e(f's_add_u32 s{sT}, s{sT}, 1')
        e(f's_lshl_b32 s{sT+1}, s{sT}, 1'); e(f's_sub_u32 s{sT+1}, 32, s{sT+1}')
        if jj == 0: e(f's_cmp_eq_u32 s{sT}, 0\ns_cselect_b32 s{sT+1}, 16, s{sT+1}')
        e(f'v_mul_u32_u24 v{S2+jj}, s{sT+1}, v{s2f}'); e(f'v_add_u32 v{S2+jj}, s{sT}, v{S2+jj}'); e(f'v_cvt_f32_u32 v{S2+jj}, v{S2+jj}')
    e(f's_lshl_b32 s{sT}, s{sW}, 10'); e(f's_add_u32 s{sT}, s{sT}, {L_M}'); e(f'v_add_u32 v{ad}, s{sT}, v{vL16}')
    e(f's_cmp_eq_u32 s{sP}, 0\ns_cselect_b32 s{sT}, {fl(0.25)}, 0')
    for pq in range(2):
        T = t0 + 4 + 16*pq
        tf, a0 = T + 12, T + 13
        e(f'v_add_u32 v{tf}, s{sRB if pq else sP}, v{j}'); e(f'v_cvt_f32_u32 v{tf}, v{tf}'); e(f'v_mul_f32 v{tf}, {fl(1.0/2048)}, v{tf}')
        for jj in range(4): e(f'v_fma_f32 v{T+jj}, v{tf}, v{S2+jj}, s{sT}' if pq else f'v_mul_f32 v{T+jj}, v{tf}, v{S2+jj}')
        for jj in range(4): e(f'v_sin_f32 v{T+4+jj}, v{T+jj}')
        for jj in range(4): e(f'v_cos_f32 v{T+jj}, v{T+jj}')
        for jj in range(4): e(f'v_cvt_pk_f16_f32 v{T+8+jj}, v{T+jj}, v{T+4+jj}')
        k.ds(f'ds_write_b128 v{ad}, {vr(T+8,4)} offset:{4096*pq}', 'Mw')

def img_ops(half, T):
    ops = []; rho = sRB if T else sP
    if half == 0:
        for r in range(8):
            def f(r=r):
                if r == 0: e(f's_lshl_b32 s{sIM}, s{sW}, 9\ns_add_u32 s{sIM}, s{sIM}, s{rho}\ns_mul_i32 s{sIM}, s{sIM}, 896\ns_mul_i32 s{sIL}, s{sW}, {8*912}')
                else: e(f's_add_u32 s{sIM}, s{sIM}, 57344')
                e(f's_add_u32 m0, s{sIL}, {L_X + 912*(32*T + r)}'); e('s_mov_b32 exec_hi, 0x00ffffff')
                k.vmem(f'buffer_load_dwordx4 v{vL16}, {sr(sX0,4)}, s{sIM} offen lds', f'img{T}'); e('s_mov_b32 exec_hi, -1')
            ops.append(Op('s', 20, f, 1))
    else:
        for i in range(7):
            def f(i=i):
                if i == 0: e(f's_mul_i32 s{sIL}, s{sW}, 7168\ns_add_u32 m0, s{sIL}, {L_X + 28672*T}\ns_mul_i32 s{sIM}, s{rho}, 28672\ns_add_u32 s{sIM}, s{sIM}, s{sIL}\ns_add_u32 s{sIM}, s{sIM}, {WS_X2}')
                if i == 4: e(f's_add_u32 m0, m0, 4096\ns_add_u32 s{sIM}, s{sIM}, 4096')
                k.vmem(f'buffer_load_dwordx4 v{vL16}, {sr(sWS,4)}, s{sIM} offen offset:{1024*(i%4)} sc1 lds', f'img{T}')
            ops.append(Op('s' if i % 4 == 0 else 'vm', 4, f, 1))
    return ops

XF = lambda kap: 16 + 4 * kap
BORD = [0, 3, 4, 1, 5, 2, 6]
IMG_LATE = []; ADR = []
SX = [0, 1, 3, 4, 5, 6, 7]
def x2_loads(first):
    for kp in range(first, 7):
        for kap in (kp, kp + 7):
            k.vmem(f'buffer_load_dwordx4 {vr(XF(kap),4)}, v{vL16}, {sr(sWS,4)}, s{SX[kap//2]} offen offset:{1024*(kap%2)} sc1', f'x{kap}')
def phA(half):
    aT = [72, 76, 84, 88]; aHi = {1: 80, 3: 92}; aS, aG = 96, 100
    HR = [104, 120]; ones = 136; Ff = 140; t = 148
    vx, vh, vtr, vu, vcw, k1 = vA, vL16, vA + 2, vA + 3, 150, 151
    lc = L_C(half); vHS = vT2 + 1; aH = aG if half else 164
    def misc():
        if half == 0:
            mk = [0x1000010000100001, 0x2000020000200002, 0x4000040000400004, 0x8000080000800008]
            for i in range(4): e(f's_mov_b32 s{sMK+2*i}, {mk[i] & 0xffffffff:#x}'); e(f's_mov_b32 s{sMK+2*i+1}, {mk[i] >> 32:#x}')
        else: e(f's_mov_b32 s{sMK}, -1'); e(f's_mov_b32 s{sMK+1}, 0xffff')
        e(f'v_and_b32 v{t}, 15, v{vL}'); e(f'v_lshrrev_b32 v{t+1}, 4, v{vL}');
        if OPT['csw']: e(f'v_lshrrev_b32 v{vtr}, 2, v{t}'); e(f'v_xor_b32 v{vtr}, v{vtr}, v{t+1}'); e(f'v_lshlrev_b32 v{vcw}, 5, v{t}'); e(f'v_lshl_add_u32 v{vcw}, v{vtr}, 3, v{vcw}')
        else: e(f'v_lshlrev_b32 v{vcw}, 5, v{t}'); e(f'v_lshl_add_u32 v{vcw}, v{t+1}, 3, v{vcw}')
        e(f's_lshl_b32 s{sT}, s{sW}, 9'); e(f's_add_u32 s{sT}, s{sT}, {lc}'); e(f'v_add_u32 v{vcw}, s{sT}, v{vcw}')
        e(f's_lshl_b32 s{sT}, s{sW}, 2'); e(f'v_add_u32 v{vu}, s{sT}, v{t+1}'); e(f'v_cmp_eq_u32 vcc, 0, v{vu}')
        e(f'v_mul_u32_u24 v{vu}, {2*57344}, v{vu}'); e(f'v_lshl_add_u32 v{vu}, v{t}, 4, v{vu}'); e(f'v_cndmask_b32 v{k1}, -1.0, 0, vcc')
        e(f's_and_b32 s{sT+4}, s2, 7'); e(f's_lshl_b32 s{sT+4}, s{sT+4}, 2'); e(f's_add_u32 s{sT+4}, s{sT+4}, s{sCI}'); e(f's_mul_i32 s{sT+4}, s{sT+4}, 7'); e(f's_add_u32 s{sT+4}, s{sT+4}, s{sG}'); e(f's_lshl_b32 s{sT+4}, s{sT+4}, 8'); e(f's_add_u32 s{sT+4}, s{sT+4}, {WS_U2 if half else WS_U1}')
        e(f's_add_u32 s{sT+5}, s{sT+4}, 57344'); e(f'v_xor_b32 v{vtr}, v{vL}, v{t+1}' if OPT['csw'] else f'v_mov_b32 v{vtr}, v{vL}'); e(f'v_lshlrev_b32 v{vtr}, 3, v{vtr}'); e(f'v_add_u32 v{vtr}, {lc}, v{vtr}')
    hread = lambda kp: rec(lambda: [k.ds(f'ds_read_b128 {vr(HR[kp%2]+4*tl,4)}, v{vh} offset:{L_H + (7*tl+kp)*1024}', f'H{kp}{tl}') for tl in (1, 3, 0, 2)])
    st_load = lambda: k.vmem(f'buffer_load_dwordx4 {vr(ones,4)}, v{vL16}, {sr(sWS,4)}, s49 offen sc1', 'ss')
    if half == 0:
        va, vb = vX, vX + 1
        srds((sX0,))
        e(f'v_lshrrev_b32 v{va}, 3, v{vL}'); e(f'v_lshrrev_b32 v{vb}, 4, v{vL}'); e(f'v_xor_b32 v{vb}, v{vb}, v{vL}'); e(f'v_and_b32 v{vb}, 7, v{vb}')
        e(f'v_mul_u32_u24 v{va}, 57344, v{va}'); e(f'v_lshl_add_u32 v{va}, v{vb}, 4, v{va}')
        e(f'v_xor_b32 v{vb}, 64, v{va}'); e(f'v_add_u32 v{vb}, {8*57344-1024}, v{vb}')
        e(f's_lshr_b32 s{sT}, s{sW}, 1'); e(f's_lshl_b32 s{sT}, s{sT}, 5'); e(f's_add_u32 s{sT}, s{sT}, s{sP}')
        e(f's_and_b32 s{sT+1}, s{sW}, 1'); e(f's_lshl_b32 s{sT+1}, s{sT+1}, 10'); e(f's_add_u32 s{sT}, s{sT}, s{sT+1}'); e(f's_mul_i32 s3, s{sT}, 896')
        e(f's_lshl_b32 s{sIM}, s{sG}, 7')
        def xdma(i):
            b = BORD[i]
            def a():
                if b: e(f's_add_u32 s{sBG}, s{sIM}, {128*b}\ns_sub_u32 s{sIL}, s{sBG}, 896\ns_min_u32 s{sBG}, s{sBG}, s{sIL}')
                e(f's_add_u32 m0, s{sWA}, {8192 + 2048*i}\ns_add_u32 s{sBG}, s3, s{sBG if b else sIM}')
                if i == 0:
                    if OPT['rt']:
                        e(f'v_lshl_add_u32 v4, s{sG}, 4, v{vL}'); e('v_mul_u32_u24 v5, 37, v4'); e('v_lshrrev_b32 v5, 8, v5') if False else None
                        e('v_mul_u32_u24 v5, 9363, v4'); e('v_lshrrev_b32 v5, 16, v5'); e(f'v_mul_u32_u24 v5, {57344-896}, v5'); e('v_lshl_add_u32 v4, v4, 7, v5')
                    e('s_waitcnt lgkmcnt(0)')
                    if TS: e(f's_mov_b32 s{sTS}, s50'); nts[0] = 1; tsn.append('start')
                    if OPT['rt']: e('s_mov_b64 exec, 0xffff'); k.vmem(f'buffer_load_dword v5, v4, {sr(sX0,4)}, s3 offen', 'touch'); e('s_mov_b64 exec, -1')
                k.vmem(f'buffer_load_dwordx4 v{va}, {sr(sX0,4)}, s{sBG} offen lds', f'xa{b}')
            return [Op('s', 24, a), Op('vm', 4, lambda: k.vmem(f'buffer_load_dwordx4 v{vb}, {sr(sX0,4)}, s{sBG} offen offset:1024 lds', f'xb{b}'))]
        xs = []
        for i in range(7): xs += xdma(i)
        k.run(xs[:4]); t0 = k.clk
        if OPT['fine'] & 1: stamp('iss')
        def rest():
            copy_ptrs(True); srds((sW1, sWS)); e(f's_sub_u32 s{sRB}, 64, s{sP}'); e(f's_cmp_eq_u32 s{sP}, 0\ns_cselect_b32 s{sRB}, 32, s{sRB}')
            gen_H()
            for i in range(4): e(f'v_mov_b32 v{ones+i}, 0x3f803f80')
            e(f'v_and_b32 v{t}, 15, v{vL}'); e(f'v_lshrrev_b32 v{t+1}, 4, v{vL}')
            e(f'v_lshrrev_b32 v{vx}, 1, v{t}'); e(f'v_xor_b32 v{vx}, v{vx}, v{t+1}'); e(f'v_lshlrev_b32 v{t}, 7, v{t}'); e(f'v_lshl_add_u32 v{t}, v{vx}, 4, v{t}')
            e(f's_add_u32 s{sT}, s{sWA}, 8192'); e(f'v_add_u32 v{vx}, s{sT}, v{t}'); e(f'v_xor_b32 v{vx+1}, 64, v{vx}')
            stream_setup()
            if OPT['trim'] < 2: warm(0, 1)
            if not OPT['trim']: rest2()
        def rest2():
            stream_setup2(152); srds((sOUT,)); assert not OPT['w2t']
            e(f's_mov_b32 s{sRETRY}, {20000 if TS else 200000}'); e(f's_mov_b32 s{sLO}, 0x3f80'); e(f's_mov_b32 s{sHI}, 0x3f800000'); e(f's_mov_b32 s{sFF}, 0xffff0000')
            misc(); gen_F(Ff, 152, 156); e(f'v_mov_b32 v{vX+2}, 0x10001')
        nx = OPT['nx']
        if OPT.get('xprobe'):
            k.run(xs[4:nx]); ls('p.i'); k.wait(vm='xb0'); ls('p.0'); k.wait(vm='xb3'); ls('p.1'); k.run(xs[nx:]); k.wait(vm='xb1'); ls('p.3'); k.wait(vm='xb6'); ls('p.6'); xs = xs[:4]
        fill = k.weave(xs[4:nx], rec(rest), 64)
        while fill and k.clk < t0 + OPT['late']: fill.pop(0)()
        epl = Op('s', 16, lambda: (e(f's_mov_b32 s{sBG}, {WS_EP}'), e('s_mov_b64 exec, 1'), k.vmem(f'buffer_load_dwordx4 {vr(vSEL,4)}, off, {sr(sWS,4)}, s{sBG} sc1', 'ep'), e('s_mov_b64 exec, -1')), 1)
        k.bg += [Op(o.kind, o.cost, o.fn, 1) for o in xs[nx:]] + [epl]
        def touch():
            e(f's_sub_u32 s{sBG}, s2, 32\ns_lshl_b32 s{sBG}, s{sBG}, 2\ns_add_u32 s{sBG}, s{sBG}, s{sW}\ns_mul_i32 s{sBG}, s{sBG}, {14*128}\nv_lshlrev_b32 v4, 7, v{vL}\ns_mov_b64 exec, 0x3fff')
            if OPT['w2t'] & 2: k.vmem(f'buffer_load_dword v5, v4, {sr(sW1,4)}, s{sBG} offen', 'touch')
            if OPT['w2t'] & 1: k.vmem(f'buffer_load_dword v2, v4, {sr(sW2,4)}, s{sBG} offen', 'touch')
            e('s_mov_b64 exec, -1')
        im = img_ops(0, 1); nb = OPT['imgb']; IMG_LATE[:] = im[nb:]
        after = im[:nb] + ([Op('s', 36, touch, 1)] if OPT['w2t'] else []); k.bg += after
        k.seg(999, 999*OPT['pS'])
        k.run(fill)
        while len(k.bg) > len(after): k.bg_step()
        if OPT['trim'] == 2: warm(0, 1)
        k.quota = len(k.bg) + OPT['nA']
        k.refill = ws.refill
        k.wait(lg='Hw'); e('s_barrier')
        k.run(hread(0))
    else:
        t0 = k.clk
        fill = rec(lambda: (gen_H(), misc(), k.wait(lg='Hw'), e('s_barrier'), k.run(hread(0)), gen_F(Ff), e(f'v_mul_u32_u24 v{t+1}, 80, v{t+1}'), [k.ds(f'ds_bpermute_b32 v{aH+r}, v{t+1}, v{vHS} offset:{4*r}', 'hs') for r in range(4)]))
        ld = rec(lambda: x2_loads(0)); ld = ld[:OPT['ssp']] + rec(st_load) + ld[OPT['ssp']:]
        if OPT['xe']:
            def grp(ops, late, track):
                l = k.lab('xskip'); save = list(k.vm)
                k.call(lambda: (e(f's_cmp_lt_u32 s{sW}, 2'), e(f's_cbranch_scc{int(late)} {l}'), k.run(ops), e(f'{l}:')))
                if not track: k.vm = save
            while fill and k.clk < t0 + OPT['xe']: fill.pop(0)()
            grp(ld[:6], False, False)
            while fill and k.clk < t0 + OPT['xe'] + 250: fill.pop(0)()
            grp(ld[6:11], False, False)
            while fill and k.clk < t0 + OPT['xd']: fill.pop(0)()
            stamp('A1.ack')
            grp(ld[:6], True, True)
            t1 = k.clk
            while fill and k.clk < t1 + 120: fill.pop(0)()
            grp(ld[6:11], True, True); k.run(fill)
        else:
            while fill and k.clk < t0 + OPT['xd']: fill.pop(0)()
            if OPT['xack']: k.wait(vm='xst')
            stamp('A1.ack')
            k.run(ld[:4])
            k.run(k.weave(ld[4:11], fill, 60))
        later = ld[11:] + img_ops(1, 1)
    stamp(f'A{half}.consts')
    def xread(i):
        b = BORD[i]
        def g(h):
            k.wait(vm=f'xb{b}'); k.ds(f'ds_read_b128 {vr(XF(2*b+h),4)}, v{vx+h} offset:{2048*i}', f'xr{i}')
            if h: ws.limit = 5 + i if i < 6 else NR
        return [Op('ds', 8, lambda: g(0)), Op('ds', 4, lambda: g(1))]
    def xchk(k0, k1_, ss=False):
        d = ones
        def chk():
            r = [XF(x) for kp in range(k0, k1_ + 1) for x in (kp, kp + 7)]
            if ss:
                e(f'v_cndmask_b32 v{d+2}, 0, v{d+2}, {sr(sMK,2)}'); e(f'v_cndmask_b32 v{d+3}, 0, v{d+3}, {sr(sMK,2)}'); r += [d, d + 1, d + 2, d + 3]
            e(f'v_max_u32 v{t+1}, v{r[0]}, v{r[1]}')
            for i in range(2, len(r), 2): e(f'v_max3_u32 v{t+1}, v{t+1}, v{r[i]}, v{r[i+1]}')
            e(f'v_cmp_eq_u32 vcc, -1, v{t+1}')
        return rec(lambda: (k.wait(vm=f'x{k1_+7}'), chk(), retry_site(chk, lambda: (x2_loads(k0), k0 <= 2 and st_load()), f'x2_{k0}')))
    k.depth += 1
    if half == 0: k.run(xread(0) + xread(1))
    else: k.run(xchk(0, 1))
    k.depth -= 1
    def rstd():
        e(f'v_fmamk_f32 v{t}, v{t}, {fl(-1.0/448)}, v{aS}')
        e(f'v_min_f32 v{t}, 0, v{t}'); e(f'v_sub_f32 v{t}, {fl(1e-5)}, v{t}'); e(f'v_rsq_f32 v{t}, v{t}')
    def scale(tl, pk):
        a = aT[tl]
        if pk:
            if tl == 0:
                for r in (0, 2): e(f'v_pk_fma_f32 {vr(a+r,2)}, {vr(aH+r,2)}, {vr(aS+2,2)}, {vr(a+r,2)} op_sel_hi:[1,0,1]')
            if tl in aHi:
                for r in (0, 2): e(f'v_pk_add_f32 {vr(a+r,2)}, {vr(a+r,2)}, {vr(aHi[tl]+r,2)} neg_lo:[0,1] neg_hi:[0,1]')
            for r in (0, 2): e(f'v_pk_mul_f32 {vr(a+r,2)}, {vr(a+r,2)}, {vr(t,2)} op_sel_hi:[1,0]')
        else:
            for r in range(4): e(f'v_sub_f32 v{a+r}, v{a+r}, v{aHi[tl]+r}')
            for r in range(4): e(f'v_mul_f32 v{a+r}, v{a+r}, v{t}')
        for m in range(2): e(f'v_cvt_pk_f16_f32 v{a+m}, v{a+2*m}, v{a+2*m+1}')
        k.ds(f'ds_write_b64 v{vcw}, {vr(a,2)} offset:{2048*tl}', 'cw')
    sl = []; o0 = 0 if half else 4
    for kp in range(7):
        lo, hi = vr(XF(kp), 4), vr(XF(kp+7), 4)
        c = lambda a: vr(a, 4) if kp else '0'
        mm = lambda d, a, b, cc: f'v_mfma_f32_16x16x32_bf16 {vr(d,4)}, {a}, {b}, {cc}'
        ms = [] if half else [mm(aS, vr(ones, 4), lo, c(aS)), mm(aG, lo, lo, c(aG)), mm(aS, vr(ones, 4), hi, vr(aS, 4)), mm(aG, hi, hi, vr(aG, 4))]
        ms += [mm(aT[tl], vr(HR[kp%2]+4*tl, 4), lo, c(aT[tl])) for tl in (1, 3, 0, 2)]
        ms += [mm(aHi[tl], vr(HR[kp%2]+4*tl, 4), hi, c(aHi[tl])) if tl in aHi else mm(aT[tl], vr(HR[kp%2]+4*tl, 4), hi, vr(aT[tl], 4)) for tl in (1, 3, 0, 2)]
        if kp == 6: ms = ms[:o0] + [ms[o0 + i] for i in (0, 4, 1, 5, 2, 6, 3, 7)]
        cur = [[rec(lambda m=m: e(m)), [], []] for m in ms]; cur[0][1].append(Op('s', 0, lambda kp=kp: ls(f'a{half}.{kp}')))
        if half == 0:
            cur[0][0] = rec(lambda: k.wait(lg=f'xr{min(kp+1, 6)}')) + cur[0][0]
            cur[o0][0] = rec(lambda: e(mm(aH, vr(HR[kp%2], 4), vr(ones, 4), c(aH)))) + cur[o0][0]
        if half == 0: cur[o0][0] = rec(lambda: k.wait(lg=f'H{kp}2')) + cur[o0][0]
        else:
            cur[0][0] = rec(lambda: k.wait(lg=f'H{kp}3')) + cur[0][0]; i2 = 4 if kp == 6 else 2; cur[i2][0] = rec(lambda: k.wait(lg=f'H{kp}2')) + cur[i2][0]
        if kp < 6:
            for i, o in enumerate(hread(kp + 1)): cur[o0 + i][1].append(o)
            if half == 0 and kp < 5:
                for i, o in enumerate(xread(kp + 2)): cur[2 + i][1].append(o)
        sl += cur
    if half == 0:
        k.bg_period = OPT['pA']
        ep = rec(lambda: (k.wait(vm='ep'), [e(f'v_readfirstlane_b32 s{sN+i}, v{vSEL+i}') for i in range(4)], [e(f's_not_b32 s{sN+i}, s{sN+i}') for i in range(4)]))
        for i, o in enumerate(ep): sl[68 + i][2].append(o)
        def stats():
            e(f'v_cndmask_b32 v{t}, 0, v{aG}, {sr(sMK,2)}')
            for r in range(1, 4): e(f'v_cndmask_b32 v{t}, v{t}, v{aG+r}, {sr(sMK+2*r,2)}')
            e(f'v_mul_f32 v{aS+2}, {fl(-2.0/448)}, v{aS}'); e(f'v_mul_f32 v{aS}, {fl(1.0/448)}, v{aS}')
            for sw in ('16', '32'):
                e(f'v_mov_b32 v{t+1}, v{t}')
                if sw == '16': e(f'v_mul_f32 v{aS}, v{aS}, v{aS}')
                e(f'v_permlane{sw}_swap_b32 v{t}, v{t+1}'); e(f'v_add_f32 v{t}, v{t}, v{t+1}')
            rstd()
        k.slots(sl[:80], rec(rest2) if OPT['trim'] else [], 78, nbg=OPT['nbgA'], res0=0)
        if OPT['fine'] & 1: stamp(f'A{half}.mf')
        k.bg_period = OPT['pT']
        st = rec(stats)
        for i in range(80, 84): sl[i][2] += st[:2]; st = st[2:]
        k.slots(sl[80:], nbg=0)
        k.run(st)
    else:
        d = ones
        for at, o in (((12, 12, 12, 13, 13, 14, 14, 14, 15), xchk(2, 3, True)), ((29, 29, 30, 30, 31), xchk(4, 5)), ((46, 46, 47, 47), xchk(6, 6))):
            assert len(at) == len(o)
            for i, x in zip(at, o): sl[i][2].append(x)
        for i, x in zip((4, 5, 6, 7, 20, 21, 22, 23, 36, 37, 38), later): sl[i][1].append(x)
        def sums():
            e(f'v_add_f32 v{d}, v{d}, v{d+2}'); e(f'v_add_f32 v{d+1}, v{d+1}, v{d+3}'); e(f'v_permlane32_swap_b32 v{d}, v{d+1}'); e(f'v_add_f32 v{d}, v{d}, v{d+1}')
            e(f'v_mov_b32 v{d+1}, v{d}'); e(f'v_permlane16_swap_b32 v{d}, v{d+1}'); e(f'v_add_f32 v{aS}, v{d}, v{d+1}')
            e(f'v_mov_b32 v{t}, v{aS}'); e(f'v_permlane32_swap_b32 v{aS}, v{t}')
            e(f'v_mul_f32 v{aS+2}, {fl(-2.0/448)}, v{aS}'); e(f'v_mul_f32 v{aS}, {fl(1.0/448)}, v{aS}'); e(f'v_mul_f32 v{aS}, v{aS}, v{aS}'); rstd()
        idx = [16, 17, 19, 24, 25, 27, 28, 32, 34, 35, 39, 40, 41, 42, 43, 44]
        for i, x in zip(idx, rec(sums)): sl[i][2].append(x)
        sc = rec(lambda: scale(1, False)); sl[53][2] += sc[:3]; sl[54][2] += sc[3:6]; sl[55][2] += sc[6:]
        k.slots(sl, nbg=1)
        if OPT['fine'] & 1: stamp(f'A{half}.mf')
    k.wait(lg='hs')
    for tl in ((3, 0, 2) if half else (1, 3, 0, 2)): scale(tl, True)
    k.wait(lg='cw'); e('s_barrier')
    stamp(f'A{half}.hdft')
    cf = lambda tl, k1_: 72 + 8*tl + 4*k1_
    k.depth += 1
    so = [(0, 0), (2, 0), (0, 1), (2, 1), (1, 0), (3, 0), (1, 1), (3, 1)]
    for tl, k1_ in so:
        for h2 in range(2): k.ds(f'ds_read_b64_tr_b16 {vr(cf(tl,k1_)+2*h2,2)}, v{vtr} offset:{2048*tl + 1024*k1_ + 512*h2}', f'c{tl}{k1_}')
    if half == 0:
        e(f'v_cndmask_b32 v{vHS}, 0, v{aH}, {sr(sMK,2)}')
        for r in range(1, 4): e(f'v_cndmask_b32 v{vHS}, v{vHS}, v{aH+r}, {sr(sMK+2*r,2)}')
        k.burst(OPT['nS'])
    else: k.bg_flush()
    Dt = lambda tl: 104 + 4*tl
    def smf(tl, k1_):
        k.wait(lg=f'c{tl}{k1_}')
        e(f'v_mfma_f32_16x16x32_f16 {vr(Dt(tl),4)}, {vr(Ff+4*k1_,4)}, {vr(cf(tl,k1_),4)}, {vr(Dt(tl),4) if k1_ else 0}')
    def bfly(pp, u):
        kk1 = f'v{k1}' if pp == 0 else '-1.0'; nk1 = f'-v{k1}' if pp == 0 else '1.0'
        CA, SA, CB, SB = Dt(u) + 2*pp, Dt(u) + 2*pp + 1, Dt(2+u) + 2*pp, Dt(2+u) + 2*pp + 1
        o = 120 + 8*pp + 4*u
        e(f'v_fma_f32 v{o}, {kk1}, v{SB}, v{CA}'); e(f'v_fma_f32 v{o+1}, {kk1}, v{SA}, -v{CB}')
        e(f'v_fma_f32 v{o+2}, {nk1}, v{CA}, v{SB}'); e(f'v_fma_f32 v{o+3}, {kk1}, v{CB}, v{SA}')
        for m in range(2): e(f'v_cvt_pk_f16_f32 v{72+4*pp+2*u+m}, v{o+2*m}, v{o+2*m+1}')
        if half == 0:
            for m in range(2): e(f'v_bfi_b32 v{72+4*pp+2*u+m}, v{vX+2}, s{sN+2*u+m}, v{72+4*pp+2*u+m}')
    for x in so: smf(*x)
    if half == 0: e('s_barrier')
    bfly(0, 0); bfly(1, 0)
    for pp in range(2):
        bfly(pp, 1)
        k.vmem(f'buffer_store_dwordx4 {vr(72+4*pp,4)}, v{vu}, {sr(sWS,4)}, s{sT+4+pp} offen sc1', 'Ust')
    k.depth -= 1
    stamp(f'A{half}.ust')

def US(half): return 16 if half == 0 else 256
def TOFF(half): return 32 * 912 if half == 0 else 28672
def rowaddr(half, dst, j, t):
    if half == 0: e(f'v_mul_u32_u24 v{dst}, 912, v{j}')
    else:
        e(f'v_lshrrev_b32 v{t}, 4, v{j}'); e(f'v_mul_u32_u24 v{t}, 14336, v{t}'); e(f'v_and_b32 v{dst}, 15, v{j}'); e(f'v_lshl_add_u32 v{dst}, v{dst}, 4, v{t}')
def phB(half):
    us = US(half); RAW = lambda kap: 16 + 16*kap; ACC = lambda u, pq: 80 + 32*pq + 16*u; MF = 144
    vu, vd, vmP, vmQ = vA, vA + 1, vA + 2, vA + 3
    vu2, vm, tc, vbn = (vSa, vSb, vT1, vT1 + 1) if half else (vX, vX + 1, vX + 2, vX + 3)
    t = 88; t0 = k.clk
    save = k.refill
    if half == 0: ws.lag = OPT['lag']; k.bg += IMG_LATE; k.burst(OPT['nB']); k.seg(OPT['nK'], OPT['pK']*OPT['nK'], 300)
    def tile0():
        if OPT['pads']:
            e(f's_cmp_lt_u32 s{sW}, 2'); e(f's_cbranch_scc1 L_t0_{half}')
            e('s_mov_b64 exec, 0'); e(f's_cmp_eq_u32 s{sW}, 2'); e(f's_cbranch_scc1 L_pad{5 + 4*half}'); e(f's_branch L_pad{6 + 4*half}'); e(f'L_t0_{half}:')
        else: e(f's_cmp_ge_u32 s{sW}, 2'); e(f's_cbranch_scc1 L_ret{1 + half}')
        bs = 128 if half == 0 else 2048
        if half == 0:
            e(f'v_and_b32 v{t}, 15, v{vL}'); e(f'v_lshl_add_u32 v{t}, s{sW}, 4, v{t}'); e(f'v_mul_u32_u24 v{t}, 912, v{t}')
            e(f'v_and_b32 v{t+1}, 48, v{vL}'); e(f'v_add_u32 v{t}, v{t}, v{t+1}')
        else: e(f's_mul_i32 s{sT}, s{sW}, 14336'); e(f'v_add_u32 v{t}, s{sT}, v{vL16}')
        e(f's_mul_i32 s{sT}, s{sG}, {bs}')
        for b in range(7):
            if b: e(f's_add_u32 s{sT}, s{sT}, {bs}'); e(f's_sub_u32 s{sT+1}, s{sT}, {7*bs}'); e(f's_min_u32 s{sT}, s{sT}, s{sT+1}')
            e(f'v_add_u32 v{t+1}, s{sT}, v{t}')
            for h in range(2): e(f'ds_write_b128 v{t+1}, {vr(XF(2*b+h),4)} offset:{L_X + h*bs//2}')
        e(f'L_ret{1 + half}:'); e('s_mov_b64 exec, -1')
    k.call(tile0); ls(f'b{half}.t0')
    if half == 0: late_setup()
    e(f'v_bfe_u32 v{t}, v{vL}, 2, 1'); e(f'v_bfe_u32 v{t+1}, v{vL}, 3, 2'); e(f'v_and_b32 v{t+2}, 3, v{vL}')
    e(f'v_lshl_add_u32 v{t+1}, v{t}, 2, v{t+1}'); e(f'v_lshl_add_u32 v{t+1}, v{t+1}, 2, v{t+2}'); e(f's_mul_i32 s{sT+2}, s{sW}, 448')
    e(f'v_lshl_add_u32 v{t+1}, v{t+1}, 4, s{sT+2}'); e(f'v_subrev_u32 v{t}, 1792, v{t+1}'); e(f'v_min_u32 v{t+1}, v{t}, v{t+1}')
    e(f'v_lshrrev_b32 v{t+2}, 5, v{vL}'); e(f'v_mul_u32_u24 v{t}, 1792, v{t+2}'); e(f'v_add_u32 v{vu}, v{t}, v{t+1}'); e(f'v_add_u32 v{vu2}, 7168, v{vu}')
    e(f's_mul_i32 s{sT}, s{sP}, 57344'); e(f's_add_u32 s{sT}, s{sT}, {WS_U2 if half else WS_U1}')
    for i in range(4): e(f's_add_u32 s{sT+1}, s{sG}, {i}'); e(f's_and_b32 s{sT+1}, s{sT+1}, 3'); e(f's_mul_i32 s{sT+1}, s{sT+1}, 14336'); e(f's_add_u32 s{sUO+i}, s{sT}, s{sT+1}')
    def adr():
        j, a = t + 3, t + 4
        e(f'v_and_b32 v{j}, 31, v{vL}'); e(f's_mul_i32 s{sT}, s{sW}, 7'); e(f'v_lshl_add_u32 v{a}, v{t+2}, 2, s{sT}')
        rowaddr(half, vd, j, t); e(f'v_mul_u32_u24 v{t+1}, {us}, v{a}'); e(f'v_add_u32 v{vd}, v{vd}, v{t+1}')
        e(f'v_sub_u32 v{a}, {52*us}, v{t+1}')
        e(f's_cmp_eq_u32 s{sP}, 0\ns_cselect_b32 s{sT}, 32, 63\ns_cselect_b32 s{sT+1}, 31, 63\ns_cselect_b32 s{sT+2}, 63, 31')
        e(f'v_sub_u32 v{t+5}, s{sT}, v{j}'); e(f'v_and_b32 v{t+5}, s{sT+1}, v{t+5}'); rowaddr(half, vmP, t + 5, t); e(f'v_add_u32 v{vmP}, v{vmP}, v{a}')
        e(f'v_sub_u32 v{t+5}, s{sT+2}, v{j}'); rowaddr(half, vmQ, t + 5, t); e(f'v_add_u32 v{vmQ}, v{vmQ}, v{a}')
        e(f's_cmp_eq_u32 s{sW}, 0\ns_cselect_b32 s{sMK}, 0, -1'); e(f's_mov_b32 s{sMK+1}, -1')
        e(f'v_add_u32 v{vm}, {L_M}, v{vL16}')
        e(f's_mul_i32 s{sT}, s{sW}, {7*us}'); e(f'v_mul_u32_u24 v{t+2}, {3*us}, v{t+2}'); e(f'v_subrev_u32 v{vbn}, s{sT}, v{vd}'); e(f'v_sub_u32 v{vbn}, v{vbn}, v{t+2}')
        if OPT['rot']:
            e(f's_mul_i32 s{sT}, s{sRO}, {14*us}'); e(f'v_add_u32 v{vbn}, s{sT}, v{vbn}'); e(f's_mov_b32 s{sT}, {14*us}')
            for q in range(4): e(f's_cmp_eq_u32 s{sRO}, {3-q}\ns_cselect_b32 s{sRD+q}, {-42*us}, s{sT}')
    if half == 0:
        setup = rec(lambda: (gen_M(96), adr(), e(f's_mov_b32 s{sMK+2}, 0xfffefffe'))); nb = len(setup)*OPT['sb']//100
        k.run(setup[:nb]); setup = setup[nb:]
        k.burst(k.quota)
    else:
        def ichk():
            e(f's_mul_i32 s{sT}, s{sW}, 7168'); e(f'v_add_u32 v{t}, s{sT}, v{vL16}')
            for i in range(7): k.ds(f'ds_read_b32 v{t+2+i}, v{t} offset:{L_X + 28672 + 1024*i}', 'ic')
            k.wait(lg='all')
            for i in range(3): e(f'v_max3_u32 v{t+2}, v{t+2}, v{t+3+2*i}, v{t+4+2*i}')
            e(f'v_cmp_eq_u32 vcc, -1, v{t+2}')
    k.refill = None; k.bg_flush()
    if OPT['uack']: k.wait(vm='Ust')
    stamp(f'B{half}.ack')
    def uloads(first, last=4):
        for kap in range(first, last):
            for jj in range(4):
                k.vmem(f'buffer_load_dwordx4 {vr(RAW(kap)+4*jj,4)}, v{vu if jj < 2 else vu2}, {sr(sWS,4)}, s{sUO+kap} offen offset:{3584*(jj%2)} sc1', f'U{kap}{jj}')
    ld = rec(lambda: uloads(0))
    n0 = OPT['n0']
    if half == 0:
        if OPT['fl'] < 0: flag_load()
        fill = []
        while ws.nd < min(ws.dmax, ws.ni): fill += ws.drain_ops()
        per = -(-len(setup) // n0)
        for o in ld[:n0]:
            k.run([o] + fill[:4] + setup[:per]); fill = fill[4:]; setup = setup[per:]
        k.run(fill)
        k.wait(vm='img1', lg='all'); e('s_barrier')
    else:
        fill = rec(lambda: (adr(), k.wait(vm='img1'), ichk())); t1 = k.clk
        while fill and k.clk < t1 + OPT['ud']: fill.pop(0)()
        k.run(ld[:4])
        k.run(k.weave(ld[4:n0], fill, 56))
        retry_site(ichk, lambda: k.run(img_ops(1, 1)), 'img')
        e('s_barrier')
    mread = lambda kap, pq: k.ds(f'ds_read_b128 {vr(MF+4*pq,4)}, v{vm} offset:{4096*pq + 1024*kap}', f'M{pq}')
    mread(0, 0); mread(0, 1)
    if half == 0: ws.cs_flush(); ws.cs_on = 0; ws.lag = 99
    rest = ld[n0:]
    XU = lambda pq, b, mir: RAW(2*pq + (b >> 1)) + 8*(b & 1) + 4*mir
    MRG = OPT['mrg']; vd3, vm3 = XU(0, 3, 0), XU(0, 3, 0) + 1
    def xadr(pq, b, mir):
        if MRG and b == 3: return (vm3, L_X) if mir else (vd3, L_X + 3*us)
        return (vmQ if pq else vmP, L_X + (3-b)*us) if mir else (vd, L_X + pq*TOFF(half) + b*us)
    def xread(pq, b):
        if MRG and (pq, b) == (0, 3):
            e(f'v_mov_b32 v{vd3}, v{vd}'); e(f'v_mov_b32 v{vm3}, v{vmP}')
            k.call(lambda: e(f's_mov_b32 exec_lo, 0\nv_add_u32 v{vd3}, {TOFF(half) - 4*us}, v{vd}\nv_add_u32 v{vm3}, {4*us}, v{vmQ}\ns_mov_b32 exec_lo, -1'), 's', 16)
            return
        for mir in range(2):
            a, o = xadr(pq, b, mir); k.ds(f'ds_read_b128 {vr(XU(pq,b,mir),4)}, v{a} offset:{o}', f'x{"dm"[mir]}{pq}{b}')
    def uchk(kap):
        R = RAW(kap)
        if half: e(f'v_max3_u32 v{tc}, v{R}, v{R+4}, v{R+8}'); e(f'v_max_u32 v{tc}, v{tc}, v{R+12}'); e(f'v_cmp_eq_u32 vcc, -1, v{tc}')
        else:
            e(f'v_xor_b32 v{tc}, s{sN}, v{R}')
            for i in range(1, 16): e(f'v_bitop3_b32 v{tc}, v{tc}, v{R+i}, s{sN + i%4} bitop3:0xf6')
            e(f'v_and_b32 v{tc}, 0x10001, v{tc}'); e(f'v_cmp_ne_u32 vcc, 0, v{tc}')
    def ureload(kap):
        if half == 0 or not OPT['usel']: return uloads(kap)
        uloads(kap, kap + 1)
        if kap < 3: e('s_waitcnt vmcnt(4)')
        for k2 in range(kap + 1, 4):
            l = k.lab('have'); uchk(k2); e(f's_cbranch_vccz {l}'); uloads(k2, k2 + 1); e(f'{l}:')
    if half and OPT['upipe']:
        sw = lambda kap, i, jx: e(f'v_swap_b32 v{RAW(kap)+4*i+jx}, v{RAW(kap)+4*jx+i}')
        def step(kap, jj):
            if kap > 3: return
            R = RAW(kap); k.wait(vm=f'U{kap}{jj}')
            if kap == 0:
                for _ in range(2 if jj == 3 else 1): k.run([rest.pop(0)])
            if jj == 3: assert not rest; ls(f'b{half}.u{kap}')
            e(f'v_max_u32 v{tc}, v{tc}, v{R+4*jj}' if jj else f'v_mov_b32 v{tc}, v{R}')
            if jj < 3:
                for i in range(jj): sw(kap, i, jj)
            else:
                e(f'v_cmp_eq_u32 vcc, -1, v{tc}'); sw(kap, 0, 3)
                retry_site(lambda: uchk(kap), lambda: ureload(kap), f'U{half}_{kap}', after=lambda: (sw(kap, 0, 1), sw(kap, 0, 2), sw(kap, 1, 2), sw(kap, 0, 3)))
        def mf(kap, u, pq):
            A = ACC(u, pq); e(f'v_mfma_f32_32x32x16_f16 {vr(A,16)}, {vr(RAW(kap)+4*(2*u+pq),4)}, {vr(MF+4*pq,4)}, {vr(A,16) if kap else 0}')
        xr = lambda kap, i: kap >= 0 and xread(kap >> 1, 2*(kap & 1) + i)
        ls('b1.w0')
        for jj in range(4): step(0, jj)
        for kap in range(4):
            if kap == 3: stamp(f'B{half}.Uin')
            k.wait(lg='M0'); mf(kap, 0, 0); sw(kap, 2, 3); sw(kap, 1, 3); k.wait(lg='M1')
            mf(kap, 1, 0)
            if kap < 3: mread(kap + 1, 0)
            xr(kap - 1, 0); step(kap + 1, 0)
            mf(kap, 0, 1); xr(kap - 1, 1); step(kap + 1, 1)
            mf(kap, 1, 1)
            if kap < 3: mread(kap + 1, 1)
            step(kap + 1, 2); step(kap + 1, 3)
        xr(3, 0); xr(3, 1)
    for kap in range(0 if half and OPT['upipe'] else 4):
        R = RAW(kap)
        ls(f'b{half}.w{kap}')
        sw = lambda i, jx, R=R: e(f'v_swap_b32 v{R+4*i+jx}, v{R+4*jx+i}')
        if half:
            for jj in range(4):
                k.wait(vm=f'U{kap}{jj}')
                if kap == 0: k.run(rest[:2 if jj == 3 else 1]); rest = rest[2 if jj == 3 else 1:]
                if jj == 3: assert not rest; ls(f'b{half}.u{kap}')
                e(f'v_max_u32 v{tc}, v{tc}, v{R+4*jj}' if jj else f'v_mov_b32 v{tc}, v{R}')
                if jj == 3: e(f'v_cmp_eq_u32 vcc, -1, v{tc}'); sw(0, 3)
                else:
                    for i in range(jj): sw(i, jj)
            retry_site(lambda kap=kap: uchk(kap), lambda kap=kap: ureload(kap), f'U{half}_{kap}', after=lambda sw=sw: (sw(0, 1), sw(0, 2), sw(1, 2), sw(0, 3)))
        else:
            k.wait(vm=f'U{kap}3'); ls(f'b{half}.u{kap}')
            if kap == 0: k.run(rest); k.refill = save; k.seg(999, 999*OPT['pU'], 300)
            if kap + OPT['fc'] == -1: flag_check(); ws.limit = 28
            uchk(kap); retry_site(lambda kap=kap: uchk(kap), lambda kap=kap: ureload(kap), f'U{half}_{kap}')
        if kap == 3: stamp(f'B{half}.Uin')
        SP = R if half else 220 + 16*(kap & 1)
        def mf(u, pq):
            A = ACC(u, pq); e(f'v_mfma_f32_32x32x16_f16 {vr(A,16)}, {vr(SP+4*(2*u+pq),4)}, {vr(MF+4*pq,4)}, {vr(A,16) if kap else 0}')
        if half:
            k.wait(lg='M0')
            mf(0, 0); sw(2, 3); sw(1, 3); k.wait(lg='M1'); mf(1, 0)
            if kap < 3: mread(kap + 1, 0)
            mf(0, 1); mf(1, 1)
        else:
            assert ws.ni <= 40
            mv = lambda d: [e(f'v_and_b32 v{SP+4*d+jj}, s{sMK+2}, v{R+4*jj+d}') for jj in range(4)]
            mv(0); mv(2); k.wait(lg='M0'); mf(0, 0); mv(1); mf(1, 0)
            if kap < 3: mread(kap + 1, 0)
            mv(3); k.wait(lg='M1'); mf(0, 1); mf(1, 1)
        if kap < 3: mread(kap + 1, 1)
        if half == 0 and kap == OPT['fl2']: flag_load(1)
        xread(kap >> 1, 2*(kap & 1)); xread(kap >> 1, 2*(kap & 1) + 1)
    if half == 0:
        ws.lag = OPT['lag']; k.bg_period = OPT['pE']
    ADR[:] = [vu2, vm]
    e(f'v_lshrrev_b32 v{vm}, 3, v{vL}'); e(f'v_lshl_add_u32 v{vm}, s{sW}, 3, v{vm}'); rowaddr(half, vu2, vm, tc)
    e(f'v_and_b32 v{tc}, 7, v{vL}'); e(f'v_lshl_add_u32 v{vu2}, v{tc}, {us.bit_length()-1}, v{vu2}'); e(f'v_lshlrev_b32 v{vm}, 3, v{vm}'); e(f's_lshl_b32 s{sT}, s{sW}, 3')
    T = MF
    sel = lambda hi: f's{sHI if hi else sLO}'
    YY = lambda pq, b, n: ACC(n & 1, pq) + 4*b + (n >> 1)
    for pq in range(2):
        e(f'v_mov_b32 v{tc if MRG and pq else vu}, v{YY(pq,0,0)}'); e(f'v_cndmask_b32 v{YY(pq,0,0)}, 0, v{YY(pq,0,0)}, {sr(sMK,2)}')
        for b in range(4):
            if MRG and (pq, b) == (0, 3): continue
            Y = lambda b_, n: YY(0 if MRG and b == 3 else pq, b_, n)
            if b == 3 and not MRG: k.depth += 1; e('s_mov_b32 exec_hi, 0')
            xd, xm = XU(pq, b, 0), XU(pq, b, 1); ls(f'e{half}.{pq}{b}')
            if half == 0 and 4 + 3*pq + b == OPT['fl2'] and b < 3: flag_load(1)
            if half == 0 and 3*pq + b == OPT['fc2'] and b < 3: flag_check(1); ws.limit = min(44, 28 + 4*OPT['ja'])
            if half == 0 and 3*pq + b == OPT['fl3'] and b < 3: assert ws.limit > 28; flag_load(2)
            k.wait(lg=f'xm{pq}{b}')
            if MRG and b == 3:
                for n in range(8): e(f'v_permlane32_swap_b32 v{YY(0,3,n)}, v{YY(1,3,n)}')
            for n in range(8): e(f'v_dot2_f32_bf16 v{T+n}, v{xd + (n >> 1)}, {sel(n & 1)}, v{Y(b,n)}')
            e(f'v_dot2_f32_bf16 v{Y(b,0)}, v{xm}, {sel(0)}, v{Y(b+1,0) if b < 3 else tc}')
            for m in range(4): e(f'v_cvt_pk_bf16_f32 v{xd+m}, v{T+2*m}, v{T+2*m+1}')
            a, o = xadr(pq, b, 0); k.ds(f'ds_write_b128 v{a}, {vr(xd,4)} offset:{o}', 'xw')
            for m in range(1, 8): e(f'v_dot2c_f32_bf16 v{Y(b,8-m)}, {sel(m & 1)}, v{xm + (m >> 1)}')
            if b == 0 and (pq or not MRG): e(f'v_permlane32_swap_b32 v{vu}, v{tc}')
            for m in range(4): e(f'v_cvt_pk_bf16_f32 v{xm+m}, v{Y(b,(8-2*m)%8)}, v{Y(b,7-2*m)}')
            a, o = xadr(pq, b, 1); k.ds(f'ds_write_b128 v{a}, {vr(xm,4)} offset:{o}', 'xw')
        if not MRG: e('s_mov_b32 exec_hi, -1'); k.depth -= 1

def ffn(half):
    us = US(half); toff = TOFF(half); ls(f'e{half}.x')
    vb, vs, vst, vh = vA, vA + 1, vA + 2, vA + 3
    BR = lambda i: B[5] + 4*(i % 3); MFR = B[5] + 12; t = B[5] + 14
    vres = B[4]
    e(f'v_mov_b32 v{vb}, v{vT1 + 1 if half else vX + 3}')
    def adr0():
        e(f'v_lshrrev_b32 v{t}, 3, v{vL}'); e(f's_lshl_b32 s{sT}, s{sW}, 3'); e(f'v_add_u32 v{t}, s{sT}, v{t}'); rowaddr(half, vs, t, t + 1)
        e(f'v_lshlrev_b32 v{vh}, 3, v{t}')
        e(f'v_and_b32 v{t}, 7, v{vL}'); e(f'v_lshl_add_u32 v{vs}, v{t}, {us.bit_length()-1}, v{vs}')
    e(f'v_mov_b32 v{vs}, v{ADR[0]}'); e(f'v_mov_b32 v{vh}, v{ADR[1]}')
    def more():
        e(f's_mul_i32 s{sT+1}, s{sG}, {8*us}')
        if half == 0:
            e(f'v_and_b32 v{t}, 7, v{vL}'); e(f'v_add_u32 v{t}, s{sT}, v{t}'); rowaddr(half, vres, t, t + 1)
            e(f'v_lshrrev_b32 v{t}, 3, v{vL}'); e(f'v_lshl_add_u32 v{vres}, v{t}, 4, v{vres}'); e(f'v_add_u32 v{vres}, s{sT+1}, v{vres}')
        else: e(f'v_add_u32 v{vres}, s{sT+1}, v{vs}')
        e(f'v_and_b32 v{vst}, 31, v{vL}'); e(f'v_lshlrev_b32 v{vst}, 3, v{vst}')
        e(f's_mov_b32 s{sMK}, -1'); e(f's_mov_b32 s{sMK+1}, 0'); e(f's_mov_b32 s{sMK+2}, 0x80008000')
    def epoch():
        def ep():
            e(f's_lshl_b32 s{sT+4}, s2, 2'); e(f's_add_u32 s{sT+4}, s{sT+4}, s{sW}'); e(f's_cmp_eq_u32 s{sT+4}, 128'); e('s_cbranch_scc1 L_epoch'); e('L_epoch_ret:')
            k.begin_tail(); e('L_epoch:')
            for i in range(4): e(f'v_mov_b32 v{B[5]+i}, s{sN+i}')
            e(f's_mov_b32 s{sT+4}, {WS_EP}'); e('s_mov_b64 exec, 1'); e(f'buffer_store_dwordx4 {vr(B[5],4)}, off, {sr(sWS,4)}, s{sT+4} sc1'); e('s_mov_b64 exec, -1'); e('s_branch L_epoch_ret')
            k.end_tail()
        k.call(ep, 's', 32)
    vh1 = vT1
    if half == 0:
        assert ws.limit > 28
        if OPT['fl3'] == 6: flag_load(2)
    if half == 0: ws.force(-1); k.seg(999, 999*OPT['perG'])
    k.wait(lg='xw'); e('s_barrier')
    stamp(f'B{half}.end')
    if stop(f'B{half}', 61440): return True
    hvo = lambda T: vh1 if T else vL16
    MF2 = [MFR, MFR]
    resrd = lambda T: k.ds(f'ds_read_b128 {vr(vR+4*T,4)}, v{vres} offset:{L_X + T*toff}', 'res')
    ACC1 = lambda T, u: B[2*T + u]
    def bread(i):
        q = i % 28
        def f():
            k.ds(f'ds_read_b128 {vr(BR(i),4)}, v{vb} offset:{L_X + (i//28)*toff + 2*(q % 7 if OPT["rot"] else q)*us}', f'B{i}')
            if OPT['rot'] and q % 7 == 6 and i < 55: e(f'v_add_u32 v{vb}, s{sRD + q//7}, v{vb}')
        return Op('ds', 4, f)
    k.depth += 1; bread(0)(); bread(1)(); k.depth -= 1
    def stats_ops(T):
        SB = lambda j: B[6] + 4*(j % 2); s1, s2, lo, hi = B[6] + 8, B[6] + 9, B[6] + 10, B[6] + 12
        rd = lambda j: k.ds(f'ds_read_b128 {vr(SB(j),4)}, v{vs} offset:{L_X + T*toff + 8*j*us}', f'S{T}{j}')
        ops = rec(lambda: (rd(0), rd(1))) + [None, None]
        def body():
            for j in range(1 if OPT['nostats'] else 7):
                k.wait(lg=f'S{T}{j}')
                for m in range(4):
                    l_, h_ = lo + m % 2, hi + m % 2
                    e(f'v_lshlrev_b32 v{l_}, 16, v{SB(j)+m}'); e(f'v_and_b32 v{h_}, s{sFF}, v{SB(j)+m}')
                    if m == 3 and j + 2 < 7: rd(j + 2)
                    if j == 0 and m == 0: e(f'v_add_f32 v{s1}, v{l_}, v{h_}'); e(f'v_mul_f32 v{s2}, v{l_}, v{l_}'); e(f'v_fmac_f32 v{s2}, v{h_}, v{h_}')
                    else: e(f'v_add_f32 v{s1}, v{s1}, v{l_}'); e(f'v_fmac_f32 v{s2}, v{l_}, v{l_}'); e(f'v_add_f32 v{s1}, v{s1}, v{h_}'); e(f'v_fmac_f32 v{s2}, v{h_}, v{h_}')
        ops += rec(body)
        for c in ('quad_perm:[1,0,3,2]', 'quad_perm:[2,3,0,1]', 'row_half_mirror'):
            ops += rec(lambda: [e('s_nop 0')] + [e(f'v_add_f32_dpp v{r}, v{r}, v{r} {c} row_mask:0xf bank_mask:0xf') for r in (s1, s2)])
        ops += rec(lambda: (e(f'v_mul_f32 v{s1}, {fl(-1.0/448)}, v{s1}'), e(f'v_mul_f32 v{lo}, v{s1}, v{s1}'), e(f'v_fmamk_f32 v{s2}, v{s2}, {fl(-1.0/448)}, v{lo}'),
                e(f'v_min_f32 v{s2}, 0, v{s2}'), e(f'v_sub_f32 v{s2}, {fl(1e-5)}, v{s2}'), e(f'v_rsq_f32 v{s2}, v{s2}'))) + [None]
        ops += rec(lambda: k.ds(f'ds_write_b64 v{vh}, {vr(s1,2)} offset:{L_ST + 256*T}', 'stw')) + [None, None]
        ops += rec(lambda: (k.wait(lg='stw'), e('s_barrier'), k.ds(f'ds_read_b32 v{t}, v{vst} offset:{L_ST + 256*T}', 'm'))) + [None, None, None]
        ops += rec(lambda: (k.wait(lg='m'), e(f'v_cndmask_b32 v{t}, 0, v{t}, {sr(sMK,2)}'), e(f'v_cvt_pk_bf16_f32 v{MFR}, v{t}, v{t}'),
                e(f'v_and_b32 v{t+1}, s{sFF}, v{MFR}'), e(f'v_sub_f32 v{t}, v{t}, v{t+1}'), e(f'v_cvt_pk_bf16_f32 v{MFR+1}, v{t}, 0')))
        return ops
    OWN = [B[4], B[6]]
    def bump(c): k.bg_next = max(k.bg_next, k.clk - 40) + c
    ownfix = lambda T: None
    def epi1(T):
        ng = '-' if half else ''
        for u in range(2):
            for be in range(2):
                d = OWN[T] + 8*u + 4*be; a = ACC1(T, u) + 8*be
                for m in range(4):
                    ng = '-' if (half != (m == 3)) else ''; e(f'v_cvt_pk_bf16_f32 v{d+m}, {ng}v{a+2*m}, {ng}v{a+2*m+1}')
                for m in range(4): e(f'v_pk_max_u16 v{d+m}, v{d+m}, s{sMK+2}' if (half != (m == 3)) else f'v_pk_max_i16 v{d+m}, v{d+m}, 0')
                if OPT['noh'] & (4 << T): continue
                k.call(lambda d=d, u=u, be=be: (k.vmem(f'buffer_store_dwordx4 {vr(d,4)}, v{hvo(T)}, {sr(sWS,4)}, s{sHS} offen offset:{1024*(2*u+be)} sc1', 'hst'), bump(96)), 'vm', 24)
    HB = {(0, 0): B[4], (0, 1): B[0], (0, 2): B[1], (0, 3): B[7], (0, 4): B[4], (0, 5): B[0], (0, 6): B[1],
          (1, 0): B[6], (1, 1): B[7], (1, 2): B[4], (1, 3): B[6], (1, 4): B[7], (1, 5): B[4], (1, 6): B[6]}
    inflight = []
    def hload(T, jp, i, track=True):
        def f():
            if OPT['noh'] & 1: return
            k.vmem(f'buffer_load_dwordx4 {vr(HB[T,jp]+4*i,4)}, v{hvo(T)}, {sr(sWS,4)}, s{sHS+jp} offen offset:{1024*i} sc1', f'h{T}{jp}{i}')
            if track: inflight.append((T, jp, i)); bump(OPT['perH'] if len(inflight) > 12 else 60)
        return Op('vm', 4, f)
    prevuse = {(0, 4): (0, 0), (0, 5): (0, 1), (0, 6): (0, 2), (1, 1): (0, 3), (1, 2): (0, 4), (1, 3): (1, 0), (1, 4): (1, 1), (1, 5): (1, 2), (1, 6): (1, 3)}
    order = [(0, 1), (0, 2), (0, 3), (0, 4), (0, 5), (1, 1), (0, 6)] + [(1, j) for j in range(2, 7)] if OPT['hord'] else [(T, j) for T in range(2) for j in range(1, 7)]
    hq = []
    for T, jp in order:
        for i in range(4):
            rdy = OPT['hq_slot' if half else 'hq0'] if T == 0 else 116 + OPT['t1_slot']
            if (T, jp) in prevuse: pT, pj = prevuse[T, jp]; rdy = max(rdy, 116 + 56*pT + 8*pj + 2*i + 1)
            hq.append((rdy, 116 + 56*T + 8*jp - OPT['hdl'] - 2*(3 - i), T, jp, i))
    def hpace(slot):
        def f():
            if not hq or OPT['noh'] & 1: return
            due = min(x[1] for x in hq[:8]) <= slot
            wfirst = half == 0 and ws.sent < 56 and ws.use(ws.sent) - OPT['lead'] <= hq[0][1]
            if hq[0][0] <= slot and ((k.clk >= k.bg_next and not wfirst) or due):
                x = hq.pop(0)
                if x[3:] == (1, 0) and OPT['hack'] >> (2*half + x[2]) & 1: k.wait(vm='hst')
                if half == 0 and OPT['cntlate'] and x[2:] == (1, 1, 0): cnt_load(vSa)
                hload(*x[2:])()
                if OPT['verbose'] > 2: print(f'; h{x[2:]} at slot {slot} use {116 + 56*x[2] + 8*x[3]}', file=sys.stderr)
        return Op('vm', 0, f)
    def g1_slots(T):
        sl = []
        for n in range(28):
            i = 28*T + n
            for u in range(2):
                A = ACC1(T, u)
                def mf(A=A, n=n, u=u, i=i):
                    k.wait(lg=f'B{i}')
                    if half == 0 and T == 0:
                        if n < NR: assert ws.done > n; k.wait(lg=f'tr{n}')
                        else: assert ws.sent > n; k.wait(vm=f'w{n}')
                    e(f'v_mfma_f32_32x32x16_bf16 {vr(A,16)}, {w1f(n,u)}, {vr(BR(i),4)}, {vr(A,16) if n else 0}')
                pre = [bread(i + 2)] if (u == 0 and i + 2 < 56) else []
                if u == 0 and n % 7 == 0: pre.append(Op('s', 0, lambda n=n: ls(f'c{half}.{T}{n//7}')))
                if half == 0 and u == 1: pre.append(Op('ds', 0, lambda n=n: ws.force(58*T + 2*n + 1)))
                sl.append([[Op('mfma', 8, mf)], pre, []])
        return sl
    def corr(T): return [[rec(lambda: e(f'v_mfma_f32_32x32x8_bf16 {vr(ACC1(T,u),16)}, {vr(vCS+2*u,2)}, {vr(MF2[T],2)}, {vr(ACC1(T,u),16)}')), [], []] for u in range(2)]
    st0 = stats_ops(0); st1 = stats_ops(1)
    sl = g1_slots(0)
    res = [rec(lambda: k.ds(f'ds_read_b128 {vr(vR+4*T,4)}, v{vres} offset:{L_X + T*toff}', 'res')) for T in range(2)]
    nbg = OPT['nbgG']; STAG = OPT['stag']
    if half == 0:
        assert OPT['fc3'] < OPT['css']
        if OPT['fl3'] > 6: sl[OPT['fl3'] - 7][1] += rec(lambda: flag_load(2))
        sl[OPT['fc3']][2] += rec(lambda: flag_check(2)) + [Op('s', 0, lambda: setattr(ws, 'limit', 56))]
        sl[OPT['css']][1] += rec(cs_load); sl[49][2] += rec(lambda: k.wait(vm='cs'))
    q0 = st0[:1] + rec(more) + st0[1:2] + st0[4:18] + res[0] + st0[18:43] + res[1] + st0[43:]
    if STAG:
        mv = [sl[i][1].pop(0) for i in (52, 54)]; sl[51][1].insert(0, mv[0]); sl[53][1].insert(0, mv[1])
        tb = [sl[51], sl[53], sl[55]]; sl = sl[:50] + [sl[50], sl[52], sl[54]]
    k.slots(sl, q0, 52 if STAG else 54, nbg=nbg)
    log('g1(0) done')
    if OPT['fine'] & 2: stamp(f'C{half}.g10')
    c0 = corr(0); ep0 = rec(lambda: epi1(0)); nop = lambda n: rec(lambda: e(f's_nop {n}'))
    tail1 = st1[26:] + rec(lambda: e(f'v_add_u32 v{vh1}, {7*16384}, v{vL16}'))
    if STAG:
        k.slots([c0[0]] + tb[:2], st1[:1] + nop(3) + [None] + st1[1:2] + nop(2) + [None] + ep0[:5], nbg=0)
        sl = [tb[2], c0[1]] + g1_slots(1)
        q = ep0[5:18] + st1[4:9] + ep0[18:] + st1[9:26] + tail1
    else:
        sl = c0 + g1_slots(1)
        q = st1[:14] + ep0 + st1[14:26] + tail1
    for n in range(len(sl)): sl[n][1].append(hpace(56 + n))
    if half == 0 and not OPT['cntlate']: sl[OPT['hq0'] - 57][1] += rec(lambda: cnt_load(vT1 + 1, 1))
    k.slots(sl, q, 57, nbg=nbg)
    k.slots(corr(1))
    stamp(f'C{half}.g1')
    k.depth += 1
    while len(inflight) < OPT['hB%d' % half]: hload(*hq.pop(0)[2:])()
    epi1(1)
    k.depth -= 1
    if OPT['fine'] & 4: stamp(f'C{half}.epi'); k.wait(vm='h023'); stamp(f'C{half}.h02'); k.wait(vm='all'); stamp(f'C{half}.ack')
    if stop(f'C{half}'): return True
    ACC2 = lambda T, v: (B[2 + v] if T == 0 else B[v])
    ORD = [[(kk, v) for kk in range(28) for v in range(2)] for T in range(2)]
    V8 = OPT['v8'] >> half & 1; k0 = 20 if V8 else 24
    ORD[1] = ORD[1][:2*k0] + [(kk, v) for v in range(2) for kk in range(k0, 28)]
    CUR = [0]
    AR = lambda kk, v: B[5] + 4*(ORD[CUR[0]].index((kk, v)) % 4)
    def aread(kk, v):
        def f():
            assert ws.sent > 28 + kk; k.wait(vm=f'w{28+kk}')
            k.ds(f'ds_read_b128 {vr(AR(kk,v),4)}, v{vT2} offset:{2048*(kk-17) + 1024*v}', f'A{kk}{v}')
        return Op('ds', 4, f)
    tc = vb
    def hcheck(T, jp):
        R = HB[T, jp]
        def part(i):
            r = R + 4*i
            e(f'v_or3_b32 v{tc}, v{r}, v{r+1}, v{tc}' if i else f'v_or_b32 v{tc}, v{r}, v{r+1}'); e(f'v_bitop3_b32 v{tc}, v{tc}, v{r+2}, v{r+3} bitop3:0xfd')
        def fin(): e(f'v_and_b32 v{tc}, s{sMK+2}, v{tc}'); e(f'v_cmp_ne_u32 vcc, 0, v{tc}')
        def chk():
            if half == 0: [part(i) for i in range(4)]; fin()
            else: e(f'v_bitop3_b32 v{tc}, v{R}, v{R+4}, v{R+8} bitop3:0x80'); e(f'v_and_b32 v{tc}, v{tc}, v{R+12}'); e(f'v_cmp_le_i32 vcc, 0, v{tc}')
        def br():
            todo = [x for x in inflight if (x[:2] == (T, jp) if OPT['hsel'] else x[:2] >= (T, jp))]
            retry_site(chk, lambda: [hload(*x, track=False)() for x in todo], f'h{half}_{T}{jp}')
        def w(i):
            assert (T, jp, i) in inflight, (T, jp, i); k.wait(vm=f'h{T}{jp}{i}')
        o = [[] for _ in range(8)]
        if half: o[6] = [Op('v', 16, lambda: (w(3), chk()))]
        else:
            o[4] = [Op('v', 20, lambda: (w(1), part(0), part(1)))]; o[5] = [Op('v', 12, lambda: (w(2), part(2)))]; o[6] = [Op('v', 20, lambda: (w(3), part(3), fin()))]
        o[7] = [Op('s', 20, br)]
        return o
    RS = 1088; vrr, vo, vrwb = vs, vh, vT1 + 1
    def g2addr():
        tau, cc = B[5], B[5] + 1
        if half == 0: e(f'v_and_b32 v{tau}, 7, v{vL}'); e(f'v_lshrrev_b32 v{cc}, 3, v{vL}')
        else: e(f'v_lshrrev_b32 v{tau}, 3, v{vL}'); e(f'v_and_b32 v{cc}, 7, v{vL}')
        e(f's_lshl_b32 s{sT}, s{sW}, 3'); e(f'v_add_u32 v{tau}, s{sT}, v{tau}')
        e(f'v_mul_u32_u24 v{vrr}, {RS}, v{cc}'); e(f'v_lshl_add_u32 v{vrr}, v{tau}, 4, v{vrr}')
        if half == 0: e(f'v_bfe_i32 v{cc+1}, v{cc}, 0, 1'); e(f'v_lshl_add_u32 v{vrr}, v{cc+1}, 6, v{vrr}')
        e(f'v_lshlrev_b32 v{vst}, 3, v{tau}')
        if half == 0:
            rowaddr(1, vo, tau, cc + 1); e(f'v_lshl_add_u32 v{vo}, v{cc}, 8, v{vo}')
            for T in range(2):
                e(f's_mul_i32 s{sMK+4+T}, s{sRB if T else sP}, 28672'); e(f's_lshl_b32 s{sT}, s{sG}, 11'); e(f's_add_u32 s{sMK+4+T}, s{sMK+4+T}, s{sT}'); e(f's_add_u32 s{sMK+4+T}, s{sMK+4+T}, {WS_X2}')
        else:
            e(f'v_mul_u32_u24 v{vo}, 57344, v{tau}'); e(f'v_lshl_add_u32 v{vo}, v{cc}, 4, v{vo}')
            for T in range(2):
                e(f's_mul_i32 s{sMK+4+T}, s{sRB if T else sP}, 896'); e(f's_lshl_b32 s{sT}, s{sG}, 7'); e(f's_add_u32 s{sMK+4+T}, s{sMK+4+T}, s{sT}')
        e(f's_mul_i32 s{sT}, s{sW}, {8*RS}'); e(f'v_add_u32 v{vrwb}, s{sT}, v{vL16}')
        e('s_barrier')
    def g2more():
        if half == 0:
            e(f's_lshr_b32 s{sT}, s{sW}, 1'); e(f's_lshl_b32 s{sT}, s{sT}, 5'); e(f's_add_u32 s{sT}, s{sT}, s{sP}'); e(f's_lshl_b32 s{sT}, s{sT}, 1')
            e(f's_and_b32 s{sT+1}, s{sW}, 1'); e(f's_add_u32 s{sT}, s{sT}, s{sT+1}'); e(f's_lshl_b32 s49, s{sT}, 10'); e(f's_add_u32 s49, s49, {WS_SS}')
            e(f's_mul_i32 s{sT}, s{sT}, 14336'); e(f's_add_u32 s{sT}, s{sT}, {WS_X2}'); e(f's_lshl_b32 s{sT+1}, s{sG}, 11')
            for b in range(7):
                if b: e(f's_add_u32 s{sT+1}, s{sT+1}, 2048'); e(f's_sub_u32 s{sT+2}, s{sT+1}, 14336'); e(f's_min_u32 s{sT+1}, s{sT+1}, s{sT+2}')
                e(f's_add_u32 s{SX[b]}, s{sT}, s{sT+1}')
            for T in range(2):
                e(f's_lshl_b32 s{sT}, s{sRB if T else sP}, 11'); e(f's_lshr_b32 s{sT+1}, s{sW}, 1'); e(f's_lshl_b32 s{sT+1}, s{sT+1}, 10'); e(f's_add_u32 s{sT}, s{sT}, s{sT+1}')
                e(f's_and_b32 s{sT+1}, s{sW}, 1'); e(f's_lshl_b32 s{sT+1}, s{sT+1}, 7'); e(f's_add_u32 s{sT}, s{sT}, s{sT+1}')
                e(f's_lshr_b32 s{sT+1}, s{sG}, 1'); e(f's_lshl_b32 s{sT+1}, s{sT+1}, 8'); e(f's_add_u32 s{sT}, s{sT}, s{sT+1}')
                e(f's_and_b32 s{sT+1}, s{sG}, 1'); e(f's_lshl_b32 s{sT+1}, s{sT+1}, 3'); e(f's_add_u32 s{sT}, s{sT}, s{sT+1}'); e(f's_add_u32 s{sMK+6+T}, s{sT}, {WS_SS}')
    rr = vSb
    rwr = lambda T, c: k.ds(f'ds_write_b128 v{vrwb}, {vr(ACC2(T, c >> 2) + 4*(c & 3), 4)} offset:{L_RED + RS*c - (0 if half else 64*(c & 1))}', 'rw')
    rrd = lambda T: k.ds(f'ds_read_b32 v{rr}, v{vst} offset:{L_ST + 4 + 256*T}', 'rw')
    def red_final(T, PB, pk):
        x = vR + 4*T; ops = []
        for pw in range(4):
            ops += rec(lambda: [k.ds(f'ds_read_b128 {vr(PB+8*pw+4*h,4)}, v{vrr} offset:{L_RED + 8*RS*pw + 512*h}', f'p{pw}') for h in range(2)]) + [None]
        XT = B[7] if pk else None
        def body():
            if pk:
                k.wait(lg='p1')
                for n in range(0, 8, 2): e(f'v_pk_add_f32 {vr(PB+n,2)}, {vr(PB+n,2)}, {vr(PB+8+n,2)}')
                k.wait(lg='p3')
                for n in range(0, 8, 2): e(f'v_pk_add_f32 {vr(PB+16+n,2)}, {vr(PB+16+n,2)}, {vr(PB+24+n,2)}')
                for n in range(0, 8, 2): e(f'v_pk_add_f32 {vr(PB+n,2)}, {vr(PB+n,2)}, {vr(PB+16+n,2)}')
                ng = ' neg_lo:[1,0,0] neg_hi:[1,0,0]' if half else ''
                for n in range(0, 8, 2): e(f'v_pk_fma_f32 {vr(PB+n,2)}, {vr(PB+n,2)}, {vr(rr-1,2)}, {vr(XT+n,2)} op_sel:[0,1,0]{ng}')
            else:
                for pw in range(1, 4):
                    k.wait(lg=f'p{pw}')
                    for n in range(8): e(f'v_add_f32 v{PB+n}, v{PB+n}, v{PB+8*pw+n}')
                for n in range(8): e(f'v_and_b32 v{PB+8+n}, s{sFF}, v{x + n//2}' if n & 1 else f'v_lshlrev_b32 v{PB+8+n}, 16, v{x + n//2}')
                for n in range(8): e(f'v_fma_f32 v{PB+n}, {"-" if half else ""}v{rr}, v{PB+n}, v{PB+8+n}')
            for m in range(4): e(f'v_cvt_pk_bf16_f32 v{x+m}, v{PB+2*m}, v{PB+2*m+1}')
            if half == 0:
                k.vmem(f'buffer_store_dwordx4 {vr(x,4)}, v{vo}, {sr(sWS,4)}, s{sMK+4+T} offen sc1', 'xst')
                a, b, c = PB + 16, PB + 17, PB + 18
                e(f'v_add_f32 v{a}, v{PB}, v{PB+1}'); e(f'v_mul_f32 v{b}, v{PB}, v{PB}'); e(f'v_fmac_f32 v{b}, v{PB+1}, v{PB+1}')
                for n in range(2, 8): e(f'v_add_f32 v{a}, v{a}, v{PB+n}'); e(f'v_fmac_f32 v{b}, v{PB+n}, v{PB+n}')
                e(f'v_and_b32 v{c}, 0x70, v{vL16}'); e(f'v_lshrrev_b32 v{c+1}, 5, v{vL}')
                e(f'v_permlane32_swap_b32 v{a}, v{b}'); e(f'v_add_f32 v{a}, v{a}, v{b}'); e(f'v_mov_b32 v{b}, v{a}'); e(f'v_lshl_add_u32 v{c}, v{c+1}, 2, v{c}')
                e(f'v_permlane16_swap_b32 v{a}, v{b}'); e(f'v_add_f32 v{a}, v{a}, v{b}')
                e(f'v_add_f32_dpp v{a}, v{a}, v{a} row_ror:8 row_mask:0xf bank_mask:0xf')
                k.call(lambda: (e('s_mov_b32 exec_lo, 0xff\ns_mov_b32 exec_hi, 0xff'), k.vmem(f'buffer_store_dword v{a}, v{c}, {sr(sWS,4)}, s{sMK+6+T} offen sc1', 'xst'), e('s_mov_b64 exec, -1')), 's', 16)
            else: k.vmem(f'buffer_store_dwordx4 {vr(x,4)}, v{vo}, {sr(sOUT,4)}, s{sMK+4+T} offen' + ('', ' sc1', ' nt', ' sc0 sc1', ' sc1 nt')[OPT['outsc'] // (1, 10)[T] % 10], 'xst')
        return ops + [None] + rec(body)
    for T in range(2):
        sl = []; CUR[0] = T
        for pos, (kk, v) in enumerate(ORD[T]):
            jp, i = kk >> 2, kk & 3
            if True:
                A = ACC2(T, v); wr = w2reg(kk, v)
                def mf(A=A, wr=wr, kk=kk, v=v, jp=jp, i=i):
                    if wr is None: k.wait(lg=f'A{kk}{v}')
                    elif half == 0 and T == 0:
                        assert ws.sent > 28 + kk; k.wait(vm=f'w{28+kk}')
                    a = rn(wr, 4) if wr else vr(AR(kk, v), 4)
                    e(f'v_mfma_f32_32x32x16_bf16 {vr(A,16)}, {a}, {vr(HB[T,jp]+4*i,4)}, {vr(A,16) if kk else 0}')
                pre, post = [], []
                if i == 0 and v == 0: pre.append(Op('s', 0, lambda jp=jp, T=T: ls(f'g{half}.{T}{jp}')))
                if half == 0 and T == 0 and v == 0: pre.append(Op('ds', 0, lambda kk=kk: ws.force(116 + 2*kk)))
                if pos + 4 < 56 and ORD[T][pos + 4][0] >= 17: pre.append(aread(*ORD[T][pos + 4]))
                pre.append(hpace(116 + 56*T + 2*kk + v))
                if T and V8 and pos >= 40:
                    if pos < 44 and not OPT['noh'] & 2: post += hcheck(T, 6)[pos - 36]
                elif jp < 6 and not OPT['noh'] & 2: post += hcheck(T, jp + 1)[2*i + v]
                sl.append([[Op('mfma', 8, mf)], pre, post])
        if T == 0: k.slots(sl[:26], rec(lambda: (half or OPT['cntlate'] or cnt_check(vT1 + 1, 1), g2addr())), 24); k.slots(sl[26:], rec(g2more), 28)
        else:
            k.bg_flush(); assert half or ws.ni == 56
            q = [None, None]
            q += rec(lambda: rrd(0))
            if half == 0 and OPT['cntlate']: sl[9][2] += rec(lambda: cnt_check(vSa))
            for c in range(8): q += rec(lambda: rwr(0, c)) + [None, None]
            q += [Op('s', 0, lambda: CHECKED[0])] + rec(lambda: (k.wait(lg='rw'), e('s_barrier'))) + red_final(0, B[2], False) + [None] + rec(lambda: (e('s_barrier'), rrd(1)))
            x = vR + 4
            un = rec(lambda: [e(f'v_and_b32 v{B[7]+n}, s{sFF}, v{x + n//2}' if n & 1 else f'v_lshlrev_b32 v{B[7]+n}, 16, v{x + n//2}') for n in range(8)])
            if V8:
                sl[47][2] += un[:4]; sl[48][2] += un[4:]
                for c, at in enumerate((49, 51, 53, 55)): sl[at][2] += rec(lambda: rwr(1, c))
            else: sl[52][2] += un[:5]; sl[53][2] += un[5:]; sl[54][2] += rec(lambda: rwr(1, 0)); sl[55][2] += rec(lambda: rwr(1, 1))
            k.slots(sl, q, 46 if V8 else 51)
        log(f'g2({T}) done')
        if OPT['fine'] & 2 and T == 0: stamp(f'D{half}.g20')
    stamp(f'D{half}.g2')
    for c in range(4 if V8 else 2, 8): rwr(1, c)
    ls(f'd{half}.w'); k.wait(lg='all'); e('s_barrier'); ls(f'd{half}.b')
    k.run(red_final(1, B[2], True))
    stamp(f'D{half}.st')
    if half == 0: epoch()
    k.refill = None
    return False

def only_stream():
    srds((sX0, sW1, sW2, sWS)); e(f's_lshl_b32 s49, s3, 2'); e(f's_add_u32 s49, s49, s{sW}')
    e(f'v_lshlrev_b32 v17, 7, v{vL}'); e(f's_mul_i32 s{sIL}, s49, {14*128}')
    e('s_waitcnt lgkmcnt(0)'); copy_ptrs(True); copy_ptrs(False)
    e(f's_mov_b32 s{sTS}, s50'); nts[0] = 1; tsn.append('start'); e(f's_mov_b32 s{sRETRY}, {20000 if TS else 200000}')
    e('s_mov_b64 exec, 0x3fff')
    if OPT['touch'] & 2: k.vmem(f'buffer_load_dword v19, v17, {sr(sW1,4)}, s{sIL} offen', 'touch')
    if OPT['touch'] & 4: k.vmem(f'buffer_load_dword v19, v17, {sr(sW2,4)}, s{sIL} offen', 'touch')
    e('s_mov_b64 exec, -1')
    stream_setup(); late_setup(); warm(0, 1); warm(1, 5)
    if OPT['touch'] & 8: k.wait(vm='touch')
    stamp('go'); ws.limit = 56; ws.lag = 9
    while ws.ni < 56 or ws.nd < 45:
        n = ws.nd; ws.refill(); k.bg_flush()
        if ws.nd != n and ws.nd % 7 == 0: stamp(f'nd{ws.nd}')
    k.wait(vm='all'); stamp('end'); finish_stamps(); e('s_endpgm')
def main():
    prologue()
    if OPT['only']: return only_stream()
    for half in range(2):
        HALF[0] = half
        phA(half)
        if stop(f'A{half}'): return
        phB(half)
        if ffn(half): return
        if stop(f'D{half}'): return
    finish_stamps()
    e('s_endpgm')
main()
k.tail.append('L_end:')
k.tail.append('s_endpgm')

HEADER = """; Kernarg layout for this problem (88 bytes, ptrs only, base s[0:1]):
;   offset   0: d_in[0] A_x  shape=(1, 2048, 448) dtype=bfloat16 strides=(1835008, 896, 2) contiguous=True
;   offset   8: d_in[1] A_dft_seq_re  shape=(2048, 2048) dtype=bfloat16   (constant DFT table, regenerated in the kernel)
;   offset  16: d_in[2] A_dft_seq_im  shape=(2048, 2048) dtype=bfloat16   (constant)
;   offset  24: d_in[3] A_dft_hid_re  shape=(448, 448) dtype=bfloat16     (constant)
;   offset  32: d_in[4] A_dft_hid_im  shape=(448, 448) dtype=bfloat16     (constant)
;   offset  40: d_in[5] B_x  shape=(1, 2048, 448) dtype=bfloat16          (unused by the reference)
;   offset  48: d_in[6] B_w1  shape=(448, 1792) dtype=bfloat16 strides=(3584, 2) contiguous=True
;   offset  56: d_in[7] B_w2  shape=(1792, 448) dtype=bfloat16 strides=(896, 2) contiguous=True
;   offset  64: d_out     shape=(1, 2048, 448) dtype=bfloat16 (2 bytes/elem)
;
; One persistent launch, one workgroup (4 waves, 512 registers each, 160 KiB LDS) per CU. Written by my own generator script.
;  workers (workgroups 32..255) = 32 clusters x 7 members; a cluster owns 64 rows {t = +-p mod 64}, member g owns 256 columns
;   A: rows s = p mod 32: hidden DFT for 32 frequencies (the other half follows from the real input), LN applied to the result
;      (rstd * (x H - mean * colsum(H)); frequency 0 is 0 after LN), 64-point DFT over the rows      -> U (f16)
;   C: x w1 - mean * colsum(w1), relu                                                                -> h (bf16)
;  workgroups 0..31 put part of the weights into MFMA fragment order, take the column sums of w1 and lay down sentinels.
;  U of layer 1 and the flags of workgroups 0..31 carry a tag = ~(word left in d_ws), which only tells this launch's hand-offs
;  from older bytes; h carries a fixed sign pattern (opposite in the two layers); x2, its row sums and U of layer 2 replace sentinels.
"""
txt, nops = finish(k, OPT['grid'], 256, LDS_SZ, verbose=OPT['verbose'] > 1, pads=PADS if OPT['pads'] else None, header=HEADER)
print(txt)
if TS or OPT['verbose']: print(f'; wait states added: {nops}; stamps: {",".join(tsn)}')
```
